```python
import torch

def _softmax(x, axis=-1):
    return torch.softmax(x, dim=axis)
def _gelu(x):
    return torch.nn.functional.gelu(x, approximate="tanh")
def _silu(x):
    return torch.nn.functional.silu(x)
def _sigmoid(x):
    return torch.sigmoid(x)
def _layernorm(x, axis=-1, eps=1e-5):
    m = x.mean(dim=axis, keepdim=True)
    v = x.var(dim=axis, keepdim=True, unbiased=False)
    return (x - m) / torch.sqrt(v + eps)
def _scatter_add(tgt, idx, src, axis=0):
    return tgt.clone().index_add_(axis, idx, src)
def _segment_sum(src, seg, n):
    out = torch.zeros((n,) + src.shape[1:], dtype=src.dtype)
    return out.index_add_(0, seg, src)
def _pad(x, pw):
    flat = tuple(v for pair in reversed(pw) for v in pair)
    return torch.nn.functional.pad(x, flat)

kernel_name = 'parallel_sum__linear_kernel_hedgehog__glu_gated_reglu__prompt'

def setup_inputs():

    _w = (lambda a: (lambda t: t.to(torch.bfloat16) if t.is_floating_point() else t)(torch.as_tensor(a)))
    def _A_setup():
        B, S, D, H = 1, 2048, 576, 32
        Dh = D // H
        return {
            "x": _w((lambda *s: torch.randn(*s, dtype=torch.bfloat16) * 0.05)(B, S, D)),
            "wqkv": _w((lambda *s: torch.randn(*s, dtype=torch.bfloat16) * 0.2)(D, 3 * D)),
            "w_phi": _w((lambda *s: torch.randn(*s, dtype=torch.bfloat16) * 0.2)(H, Dh, Dh) * (Dh ** -0.5)),
            "wo": _w((lambda *s: torch.randn(*s, dtype=torch.bfloat16) * 0.05)(D, D)),
        }
    _A_in = _A_setup()

    def _B_setup():
        B, S, D, F = 1, 2048, 576, 4608
        return {
            "x": _w((lambda *s: torch.randn(*s, dtype=torch.bfloat16) * 0.05)(B, S, D)),
            "W_gate": _w((lambda *s: torch.randn(*s, dtype=torch.bfloat16) * 0.4)(D, F) * (2.0 / D) ** 0.5),
            "W_up": _w((lambda *s: torch.randn(*s, dtype=torch.bfloat16) * 0.4)(D, F) * (2.0 / D) ** 0.5),
            "W_down": _w((lambda *s: torch.randn(*s, dtype=torch.bfloat16) * 0.4)(F, D) * (1.0 / F) ** 0.5),
        }
    _B_in = _B_setup()

    return {
        "A_x": _A_in["x"],
        "A_wqkv": _A_in["wqkv"],
        "A_w_phi": _A_in["w_phi"],
        "A_wo": _A_in["wo"],
        "B_x": _B_in["x"],
        "B_W_gate": _B_in["W_gate"],
        "B_W_up": _B_in["W_up"],
        "B_W_down": _B_in["W_down"],
    }

def reference(A_x, A_wqkv, A_w_phi, A_wo, B_x, B_W_gate, B_W_up, B_W_down):
    def _A_ref(x, wqkv, w_phi, wo):
        B, S, D = x.shape
        H = 32; Dh = D // H
        qkv = (lambda x, *d: x.permute(*d))((x @ wqkv).reshape(B, S, 3, H, Dh), 2, 0, 3, 1, 4)
        q, k, v = qkv[0], qkv[1], qkv[2]
        pq = torch.einsum("bhsd,hdf->bhsf", q, w_phi)
        pk = torch.einsum("bhsd,hdf->bhsf", k, w_phi)
        phi_q = torch.concatenate([_softmax(pq, axis=-1), _softmax(-pq, axis=-1)], axis=-1)
        phi_k = torch.concatenate([_softmax(pk, axis=-1), _softmax(-pk, axis=-1)], axis=-1)
        kv = torch.einsum("bhsf,bhsd->bhfd", phi_k, v)
        z  = torch.einsum("bhsf->bhf", phi_k)
        num = torch.einsum("bhqf,bhfd->bhqd", phi_q, kv)
        den = torch.einsum("bhqf,bhf->bhq", phi_q, z)[..., None] + 1e-6
        o = num / den
        return (lambda x, *d: x.permute(*d))(o, 0, 2, 1, 3).reshape(B, S, D) @ wo

    def _B_ref(x, W_gate, W_up, W_down):
        gate = torch.einsum("bsd,df->bsf", x, W_gate)
        up = torch.einsum("bsd,df->bsf", x, W_up)
        gate = gate * (lambda x, dt: x.to(dt))(gate > 0, gate.dtype)
        h = gate * up
        return torch.einsum("bsf,fd->bsd", h, W_down)

    x = A_x
    xn = _layernorm(x, axis=-1)
    return x + _A_ref(xn, A_wqkv, A_w_phi, A_wo) + _B_ref(xn, B_W_gate, B_W_up, B_W_down)
```

```python
class Asm:
    def __init__(self):
        self.lines = []
        self.nlabel = 0
    def e(self, s):
        self.lines.append("    " + s)
    def c(self, s):
        self.lines.append("    ; " + s)
    def label(self, name):
        self.lines.append(name + ":")
    def raw(self, s):
        self.lines.append(s)
    def newlabel(self, p="L"):
        self.nlabel += 1
        return "%s_%d" % (p, self.nlabel)
    def text(self):
        return "\n".join(self.lines) + "\n"

def vr(b, n=1):
    return "v%d" % b if n == 1 else "v[%d:%d]" % (b, b + n - 1)
def ar(b, n=1):
    return "a%d" % b if n == 1 else "a[%d:%d]" % (b, b + n - 1)
def sr(b, n=1):
    return "s%d" % b if n == 1 else "s[%d:%d]" % (b, b + n - 1)

def kernel_head(a, name):
    a.raw(".globl %s" % name)
    a.raw(".p2align 8")
    a.raw(".type %s,@function" % name)
    a.label(name)

def kernel_desc(name, nvgpr, accum, nsgpr=102):
    return """.p2align 6
.amdhsa_kernel %s
  .amdhsa_next_free_vgpr %d
  .amdhsa_next_free_sgpr %d
  .amdhsa_accum_offset %d
  .amdhsa_group_segment_fixed_size 0
  .amdhsa_kernarg_size 88
  .amdhsa_user_sgpr_count 2
  .amdhsa_user_sgpr_kernarg_segment_ptr 1
  .amdhsa_system_sgpr_workgroup_id_x 1
.end_amdhsa_kernel
""" % (name, nvgpr, nsgpr, accum)

def srd(a, d, lo, hi, nbytes):
    a.e("s_mov_b32 s%d, s%d" % (d, lo))
    a.e("s_and_b32 s%d, s%d, 0xffff" % (d + 1, hi))
    a.e("s_mov_b32 s%d, 0x%x" % (d + 2, nbytes))
    a.e("s_mov_b32 s%d, 0x20000" % (d + 3))
```

```python
from asmlib import *
import gen as G
from gen import *

TBL = 155648; ZER = 163328; SCR = 98304; OOB = 0x40000000
sODD = 42
sWO = 44
sKV, sQ, sKVP, sCNT = 49, 50, 51, 52
ACC = 32

def softmax(g, p, o, tt, E):
    e = g.e
    for op, d in (("max", 24), ("min", 25)):
        e("v_%s3_f32 v%d, v%d, v%d, v%d" % (op, d, p, p + 1, p + 2))
        for i in range(3, 17, 2): e("v_%s3_f32 v%d, v%d, v%d, v%d" % (op, d, d, p + i, p + i + 1))
        e("v_%s_f32 v%d, v%d, v%d" % (op, d, d, p + 17))
    e("v_mul_f32 v24, v24, v%d" % (14 + tt))
    e("v_mul_f32 v25, v25, v%d" % (14 + tt))
    for i in range(0, 18, 2):
        e("v_pk_fma_f32 %s, %s, v[14:15], v[24:25] op_sel:[0,%d,0] op_sel_hi:[1,%d,0] neg_lo:[0,0,1] neg_hi:[0,0,1]" % (vr(E + i, 2), vr(p + i, 2), tt, tt))
        e("v_pk_fma_f32 %s, %s, v[14:15], v[24:25] op_sel:[0,%d,1] op_sel_hi:[1,%d,1] neg_lo:[0,1,0] neg_hi:[0,1,0]" % (vr(p + i, 2), vr(p + i, 2), tt, tt))
    for i in range(18):
        e("v_exp_f32 v%d, v%d" % (E + i, E + i))
        e("v_exp_f32 v%d, v%d" % (p + i, p + i))
    e("v_pk_add_f32 v[24:25], %s, %s" % (vr(E, 2), vr(E + 2, 2)))
    e("v_pk_add_f32 v[26:27], %s, %s" % (vr(p, 2), vr(p + 2, 2)))
    for i in range(4, 18, 2):
        e("v_pk_add_f32 v[24:25], v[24:25], %s" % vr(E + i, 2))
        e("v_pk_add_f32 v[26:27], v[26:27], %s" % vr(p + i, 2))
    e("v_add_f32 v24, v24, v25")
    e("v_add_f32 v25, v26, v27")
    e("v_rcp_f32 v24, v24")
    e("v_rcp_f32 v25, v25")
    e("s_nop 0")
    for i in range(0, 18, 2):
        e("v_pk_mul_f32 %s, %s, v[24:25] op_sel:[0,0] op_sel_hi:[1,0]" % (vr(E + i, 2), vr(E + i, 2)))
        e("v_pk_mul_f32 %s, %s, v[24:25] op_sel:[0,1] op_sel_hi:[1,1]" % (vr(p + i, 2), vr(p + i, 2)))
    for i in range(9):
        e("v_cvt_pk_bf16_f32 v%d, v%d, v%d" % (o + i, E + 2 * i, E + 2 * i + 1))
        e("v_cvt_pk_bf16_f32 v%d, v%d, v%d" % (o + 9 + i, p + 2 * i, p + 2 * i + 1))

def phi_frag_reads(g, rho):
    e = g.e
    if rho == 0: e("v_mov_b32 v28, v18")
    else: e("v_mad_u32_u24 v28, v19, 12, v18")
    for ks in range(3):
        for to in range(5):
            b = 176 + (ks * 5 + to) * 4
            e("ds_read_b64_tr_b16 %s, v28 offset:%d" % (ar(b, 2), to * 8))
            e("ds_read_b64_tr_b16 %s, v28 offset:%d" % (ar(b + 2, 2), to * 8 + 160))
        if ks < 2: e("v_add_u32 v28, v28, v19")

def phi_mfma(g, pk, P):
    for ks in range(3):
        for to in range(5):
            for tt in range(2):
                g.e(mfma(vr(P + 20 * tt + 4 * to, 4), ar(176 + (ks * 5 + to) * 4, 4), vr(pk[tt] + 4 * ks, 4), "0" if ks == 0 else None))

def pack20(g, src, dst):
    for i in range(10): g.e("v_cvt_pk_bf16_f32 v%d, v%d, v%d" % (dst + i, src + 2 * i, src + 2 * i + 1))

def poll(g, off, target):
    e = g.e
    L = g.newlabel("L_poll"); Ld = g.newlabel("L_polld")
    e("s_mov_b32 s%d, 0x40000" % sT)
    g.label(L)
    e("buffer_load_dword v28, off, s[%d:%d], s%d offset:%d sc1" % (SDBG, SDBG + 3, sCNT, off))
    e("s_waitcnt vmcnt(0)")
    e("v_readfirstlane_b32 s%d, v28" % sT2)
    e("s_nop 0")
    e("s_cmp_ge_u32 s%d, %d" % (sT2, target))
    e("s_cbranch_scc1 %s" % Ld)
    e("s_sleep 2")
    e("s_sub_u32 s%d, s%d, 1" % (sT, sT))
    e("s_cmp_lg_u32 s%d, 0" % sT)
    e("s_cbranch_scc1 %s" % L)
    g.label(Ld)

def signal(g, off):
    g.e("v_mov_b32 v28, 1")
    g.e("buffer_atomic_add v28, v20, s[%d:%d], s%d offen offset:%d" % (SDBG, SDBG + 3, sCNT, off))

def att_role(g):
    e, opt = g.e, g.opt
    wf = opt.get("aflags", "nt")
    srd(g, SW1, 66, 67, 576 * 1728 * 2)
    srd(g, SW2, 70, 71, 576 * 576 * 2)
    srd(g, SPHI, 68, 69, 32 * 18 * 18 * 2)
    srd(g, SDBG, 80, 81, 256)
    e("s_mul_i32 s%d, s%d, 3072" % (sM0W, sW))
    e("s_mul_i32 s%d, s%d, 288" % (sQ, sS))
    e("s_add_u32 s%d, s%d, 1152" % (sKV, sQ))
    e("s_lshl_b32 s%d, s%d, 2" % (sCNT, sS))
    e("s_add_u32 s%d, s%d, 12" % (sST, sS))
    e("s_mul_i32 s%d, s%d, %d" % (sST, sST, PSZ))
    e("s_lshl_b32 s%d, s%d, 2" % (sT, sR))
    e("s_add_u32 s%d, s%d, s%d" % (sT, sT, sW))
    e("s_mul_i32 s%d, s%d, 36864" % (sT, sT))
    e("s_add_u32 s%d, s%d, s%d" % (sST, sST, sT))
    e("s_lshl_b32 s%d, s%d, 3" % (sKVP, sS))
    e("s_add_u32 s%d, s%d, s%d" % (sKVP, sKVP, sW))
    e("s_lshl_b32 s%d, s%d, 4" % (sKVP, sKVP))
    e("s_add_u32 s%d, s%d, s%d" % (sKVP, sKVP, sR))
    e("s_mul_i32 s%d, s%d, 2880" % (sKVP, sKVP))
    e("s_add_u32 s%d, s%d, 0x%x" % (sKVP, sKVP, WS_KVP))
    e("s_mul_i32 s%d, s%d, %d" % (sB2, sS, 144 * 1152))
    e("s_mul_i32 s%d, s%d, 5120" % (sB1, sW))
    for i in range(5):
        d = sWO + i
        e("s_mul_i32 s%d, s%d, 5" % (sT, sW))
        e("s_add_u32 s%d, s%d, %d" % (sT, sT, i))
        e("s_lshr_b32 s%d, s%d, 1" % (sT2, sT))
        e("s_lshl_b32 s%d, s%d, 2" % (d, sT2))
        e("s_cmp_ge_u32 s%d, 5" % sT2)
        e("s_cselect_b32 s%d, 52, 0" % sT2)
        e("s_add_u32 s%d, s%d, s%d" % (d, d, sT2))
        e("s_and_b32 s%d, s%d, 1" % (sT, sT))
        e("s_mul_i32 s%d, s%d, 36" % (sT, sT))
        e("s_add_u32 s%d, s%d, s%d" % (d, d, sT))
        e("s_mul_i32 s%d, s%d, 1152" % (d, d))
        e("s_add_u32 s%d, s%d, s%d" % (d, d, sB2))
    stages = []
    for ps in range(3):
        for ks in range(18):
            n = len(stages); lo = (n % 8) * 12288
            sb, add, vo = (sKV, 144 * ps, 1) if ps < 2 else (sQ, 0, 4)
            pre = ["s_add_u32 m0, s%d, %d" % (sM0W, lo), "s_add_u32 s%d, s%d, %d" % (sOFF, sb, ks * 32 * 3456 + add)]
            dmas = ["buffer_load_dwordx4 v%d, s[%d:%d], s%d offen offset:%d %s lds" % (vo + i, SW1, SW1 + 3, sOFF, i * 1024, wf) for i in range(3)]
            frags = []
            for sec in range(2):
                for t in range(5):
                    off = lo + sec * 144 + 8 * t
                    def rd(buf, off=off):
                        b = 7 + (off >> 16); o = off & 0xffff
                        assert o + 1280 < 65536
                        return ["ds_read_b64_tr_b16 %s, v%d offset:%d" % (ar(buf, 2), b, o), "ds_read_b64_tr_b16 %s, v%d offset:%d" % (ar(buf + 2, 2), b, o + 1280)]
                    def mf(buf, ks=ks, sec=sec, t=t):
                        order = (0, 1) if (sec * 5 + t) % 2 == 0 else (1, 0)
                        return [mfma(vr(ACC + (sec * 2 + tt) * 20 + 4 * t, 4), ar(buf, 4), XC(tt, ks), "0" if ks == 0 else None) for tt in order]
                    frags.append((rd, mf))
            stages.append(Stage(lo, lo + 12288, pre, dmas, frags, "x"))
    OB = 192; B2 = 64; PK = 76; A2 = [32, 96]; VST = 21
    for c in range(9):
        lo = ((c + 5) % 7) * 20480
        dmas = [["s_add_u32 m0, s%d, %d" % (sB1, lo + i * 1024), "s_add_u32 s%d, s%d, %d" % (sOFF, sWO + i, c * 128),
                 "buffer_load_dwordx4 v9, s[%d:%d], s%d offen %s lds" % (SW2, SW2 + 3, sOFF, wf)] for i in range(5)]
        frags = []
        for u in range(5):
            for t in range(4):
                def mf(buf, u=u, t=t, acc=A2[c & 1]):
                    order = (0, 1) if t % 2 == 0 else (1, 0)
                    return [mfma(vr(acc + (t * 2 + tt) * 4, 4), ar(buf, 4), vr(OB + 20 * tt + 4 * u, 4), "0" if u == 0 else None) for tt in order]
                frags.append((tr_reads(B2, t, lo + u * 4096, 2048), mf))
        stages.append(Stage(lo, lo + 20480, [], dmas, frags, "scr"))
    pipe = Pipe(g, stages, opt.get("D", 6))

    def early():
        e("s_lshl_b32 s%d, s%d, 6" % (sOFF, sW))
        e("v_add_u32 v29, s%d, v0" % sOFF)
        for i in range(4): e("v_mov_b32 v%d, 0" % (96 + i))
        e("v_lshlrev_b32 v28, 5, v29")
        e("v_add_u32 v28, %d, v28" % TBL)
        e("ds_write_b128 v28, v[96:99]")
        e("ds_write_b128 v28, v[96:99] offset:16")
        e("s_mul_i32 s%d, s%d, 5184" % (sOFF, sS))
        e("v_lshlrev_b32 v28, 2, v29")
        for i in range(6):
            e("buffer_load_dword v%d, v28, s[%d:%d], s%d offen offset:%d" % (84 + i, SPHI, SPHI + 3, sOFF, (i % 4) * 1024) if i < 4 else
              "buffer_load_dword v%d, v100, s[%d:%d], s%d offen offset:%d" % (84 + i, SPHI, SPHI + 3, sOFF, (i % 4) * 1024), "phi")
            if i == 0: e("v_add_u32 v100, 4096, v28")
        for i in range(6):
            a = 90 + i
            e("v_add_u32 v28, %d, v29" % (256 * i))
            e("v_mul_u32_u24 v30, 7282, v28")
            e("v_lshrrev_b32 v30, 16, v30")
            e("v_mul_u32_u24 v31, 3641, v30")
            e("v_lshrrev_b32 v31, 16, v31")
            e("v_add_lshl_u32 v%d, v28, v30, 2" % a)
            e("v_mul_u32_u24 v30, 240, v31")
            e("v_add_u32 v%d, v%d, v30" % (a, a))
            e("v_and_b32 v31, 1, v31")
            e("v_mul_u32_u24 v31, 80, v31")
            e("v_add3_u32 v%d, v%d, v31, s%d" % (a, a, sT)) if False else None
            e("v_add_u32 v%d, v%d, v31" % (a, a))
            e("v_add_u32 v%d, %d, v%d" % (a, TBL, a))
        e("v_cmp_gt_u32 vcc, 16, v29")
        e("v_mov_b32 v28, 150000")
        e("s_nop 0")
        e("v_cndmask_b32 v95, v28, v95, vcc")
        e("s_and_b32 s%d, s%d, 1" % (sOFF, sW))
        e("s_lshl_b32 s3, s%d, 3" % sW)
        e("v_mov_b32 v101, 0x%x" % OOB)
        for i in range(3):
            e("v_add_u32 v28, %d, v0" % (64 * i))
            e("v_subrev_u32 v28, s%d, v28" % sOFF)
            e("v_and_b32 v28, 0xffff, v28")
            e("v_mul_u32_u24 v30, 3277, v28")
            e("v_lshrrev_b32 v30, 16, v30")
            e("v_mul_u32_u24 v31, 20, v30")
            e("v_sub_u32 v31, v28, v31")
            e("v_cmp_gt_u32 s[54:55], 8, v30")
            e("v_cmp_gt_u32 s[56:57], 18, v31")
            e("v_cmp_lt_u32 vcc, 8, v31")
            e("v_add_u32 v30, s3, v30")
            e("v_mul_u32_u24 v30, 3456, v30")
            e("v_lshl_add_u32 v30, v31, 4, v30")
            e("s_and_b64 s[54:55], s[54:55], s[56:57]")
            if i: e("v_subrev_u32 v30, %d, v30" % (1024 * i))
            e("v_add_u32 v31, %d, v30" % (1152 - 144))
            e("v_cndmask_b32 v31, v30, v31, vcc")
            e("v_cndmask_b32 v%d, v101, v31, s[54:55]" % (1 + i))
            e("v_cndmask_b32 v%d, v101, v30, s[54:55]" % (4 + i))
        e("v_mul_u32_u24 v7, 3072, v22")
        e("v_and_b32 v28, 1, v22")
        e("v_cmp_eq_u32 s[%d:%d], 1, v28" % (sODD, sODD + 1))
        e("v_lshl_add_u32 v7, v28, 4, v7")
        e("v_bfe_u32 v28, v0, 2, 2")
        e("v_mul_u32_u24 v30, 320, v28")
        e("v_add_u32 v7, v7, v30")
        e("v_bfe_u32 v30, v0, 1, 1")
        e("v_mul_u32_u24 v30, 72, v30")
        e("v_add_u32 v7, v7, v30")
        e("v_and_b32 v30, 1, v0")
        e("v_lshl_add_u32 v7, v30, 5, v7")
        e("v_add_u32 v8, 0x10000, v7")
        e("v_mul_u32_u24 v18, 960, v22")
        e("v_mul_u32_u24 v30, 40, v28")
        e("v_add_u32 v18, v18, v30")
        e("v_add_u32 v18, %d, v18" % TBL)
        e("v_and_b32 v30, 3, v0")
        e("v_cmp_eq_u32 vcc, v30, v22")
        e("v_mov_b32 v30, %d" % ZER)
        e("v_mov_b32 v31, 320")
        e("v_cndmask_b32 v18, v30, v18, vcc")
        e("v_cndmask_b32 v19, 0, v31, vcc")
        e("v_lshrrev_b32 v28, 5, v0")
        e("v_bfe_u32 v30, v0, 3, 2")
        e("v_lshl_add_u32 v28, v28, 4, v30")
        e("v_mul_u32_u24 v9, 1152, v28")
        e("v_lshlrev_b32 v28, 1, v22")
        e("v_and_b32 v30, 7, v0")
        e("v_xor_b32 v28, v28, v30")
        e("v_lshl_add_u32 v9, v28, 4, v9")
        e("v_cmp_eq_u32 vcc, 0, v29")
        e("v_lshlrev_b32 v%d, 4, v0" % VST)
        e("s_nop 0")
        e("v_cndmask_b32 v20, v101, 0, vcc") if False else None
        e("v_mov_b32 v20, 0")
        e("v_cndmask_b32 v20, v101, v20, vcc")
        e("s_lshl_b32 s3, s%d, 5" % sW)
        e("v_add_u32 v28, s3, v23")
        e("v_mul_u32_u24 v10, 112, v28")
        e("v_mul_u32_u24 v28, 14336, v22")
        e("v_add_u32 v10, v10, v28")
        e("v_add_u32 v10, %d, v10" % SCR)
        e("v_bfe_u32 v28, v0, 2, 2")
        e("v_lshl_add_u32 v28, v22, 3, v28")
        e("v_mul_u32_u24 v11, 112, v28")
        e("v_and_b32 v28, 3, v0")
        e("v_lshl_add_u32 v11, v28, 3, v11")
        e("s_mul_i32 s3, s%d, 14336" % sW)
        e("s_add_u32 s3, s3, %d" % SCR)
        e("v_add_u32 v11, s3, v11")
        e("v_mul_u32_u24 v12, 144, v23")
        e("v_lshl_add_u32 v12, v22, 4, v12")
    def afterbar():
        g.wait_vm("phi")
        for i in range(6): e("ds_write_b32 v%d, v%d" % (90 + i, 84 + i))
    prologue(g, pipe, early=early, afterbar=afterbar)
    pipe.flush()
    e("s_nop 0")
    for ks in range(18):
        for tt in range(2):
            e(mfma(vr(64 + 4 * tt, 4), XC(tt, ks), XC(tt, ks), "0" if ks == 0 else None))
    e("v_and_b32 v28, 1, v0")
    e("v_cmp_eq_u32 vcc, 1, v28")
    e("v_and_b32 v28, 2, v0")
    e("v_cmp_eq_u32 s[54:55], 2, v28")
    e("v_lshrrev_b32 v28, 2, v23")
    e("v_lshl_add_u32 v28, v28, 4, v23")
    e("v_lshlrev_b32 v28, 2, v28")
    e("s_nop 3")
    for tt in range(2):
        d = 64 + 4 * tt
        e("v_cndmask_b32 v%d, v%d, v%d, vcc" % (d, d, d + 1))
        e("v_cndmask_b32 v%d, v%d, v%d, vcc" % (d + 2, d + 2, d + 3))
        e("v_cndmask_b32 v%d, v%d, v%d, s[54:55]" % (d, d, d + 2))
        e("ds_bpermute_b32 v%d, v28, v%d" % (16 + tt, d))
    e("s_mov_b32 s%d, 0x3ae38e39" % sT)
    e("v_mov_b32 v30, 0x3727c5ac")
    e("s_waitcnt lgkmcnt(0)")
    for tt in range(2): e("v_fma_f32 v%d, v%d, s%d, v30" % (16 + tt, 16 + tt, sT))
    for tt in range(2): e("v_rcp_f32 v%d, v%d" % (64 + tt, 16 + tt))
    for tt in range(2): e("v_rsq_f32 v%d, v%d" % (16 + tt, 16 + tt))
    e("s_lshl_b32 s%d, s%d, 2" % (sT, sR))
    e("s_add_u32 s%d, s%d, s%d" % (sT, sT, sW))
    e("s_lshl_b32 s%d, s%d, 7" % (sT, sT))
    e("s_add_u32 s%d, s%d, 0x%x" % (sT, sT, WS_RS2))
    e("s_cmp_eq_u32 s%d, 0" % sS)
    e("s_cselect_b32 s%d, 16, 0" % sT2)
    e("v_cmp_gt_u32 vcc, s%d, v0" % sT2)
    e("v_lshlrev_b32 v28, 2, v0")
    e("v_mov_b32 v30, 0x%x" % OOB)
    e("v_cndmask_b32 v28, v30, v28, vcc")
    for tt in range(2): e("buffer_store_dword v%d, v28, s[%d:%d], s%d offen offset:%d" % (64 + tt, SWS, SWS + 3, sT, 64 * tt))
    for tt in range(2): e("v_mul_f32 v%d, 0x3fb8aa3b, v%d" % (14 + tt, 16 + tt))
    g.stamp()
    PKK = [112, 124]; P = 136; ROW = [176, 204]; E = 232
    for rho in range(2):
        pipe.run(18 * rho, 18 * rho + 18)
        pipe.flush()
        g.stamp()
        phi_frag_reads(g, rho)
        for tt in range(2):
            for i in (10, 11): e("v_mov_b32 v%d, 0" % (PKK[tt] + i))
        for tt in range(2): pack20(g, ACC + tt * 20, PKK[tt])
        e("s_waitcnt lgkmcnt(0)")
        phi_mfma(g, PKK, P)
        e("v_mov_b32 v28, 0x3f80")
        for tt in range(2):
            s = ACC + (2 + tt) * 20
            for i in range(0, 20, 2):
                e("v_pk_mul_f32 %s, %s, v[16:17] op_sel:[0,%d] op_sel_hi:[1,%d]" % (vr(s + i, 2), vr(s + i, 2), tt, tt))
            pack20(g, s, ROW[tt] + 18)
            e("v_cndmask_b32 v%d, v%d, v28, s[%d:%d]" % (ROW[tt] + 18, ROW[tt] + 18, sODD, sODD + 1))
            e("v_cndmask_b32 v%d, v28, v%d, s[%d:%d]" % (ROW[tt] + 27, ROW[tt] + 27, sODD, sODD + 1))
        for tt in range(2):
            softmax(g, P + 20 * tt, ROW[tt], tt, E)
            for i in range(7): e("ds_write_b128 v10, %s offset:%d" % (vr(ROW[tt] + 4 * i, 4), tt * 16 * 112 + 16 * i))
        e("s_waitcnt lgkmcnt(0)")
        e("s_barrier")
        pipe.drained(18 * rho + 17); pipe.flush()
        for kk in range(4):
            for f in range(5):
                col = 32 * f if f < 3 else 72 + 32 * (f - 3)
                d = ACC + (kk * 5 + f) * 4
                e("ds_read_b64_tr_b16 %s, v11 offset:%d" % (vr(d, 2), kk * 32 * 112 + col))
                e("ds_read_b64_tr_b16 %s, v11 offset:%d" % (vr(d + 2, 2), kk * 32 * 112 + col + 4 * 112))
        e("v_cmp_eq_u32 vcc, 0, v22")
        e("v_cmp_gt_u32 s[54:55], 4, v23")
        e("v_mov_b32 v28, 0x%x" % OOB)
        e("s_add_u32 s%d, s%d, %d" % (sT, sKVP, rho * 4 * 16 * 2880))
        e("v_cndmask_b32 v25, v28, v12, vcc")
        e("v_cndmask_b32 v26, v28, v12, s[54:55]")
        e("v_cndmask_b32 v27, v28, v25, s[54:55]")
        e("s_waitcnt lgkmcnt(0)")
        for kk in range(4):
            for a in range(3):
                for b in range(2):
                    e(mfma(vr(112 + (a * 2 + b) * 4, 4), vr(ACC + (kk * 5 + a) * 4, 4), vr(ACC + (kk * 5 + 3 + b) * 4, 4), "0" if kk == 0 else None))
        e("s_nop 7")
        for a in range(3):
            for b in range(2):
                vo = {(0, 0): 12, (1, 0): 25, (0, 1): 26, (1, 1): 27}[(int(a == 2), b)]
                e("buffer_store_dwordx4 %s, v%d, s[%d:%d], s%d offen offset:%d sc1" % (vr(112 + (a * 2 + b) * 4, 4), vo, SWS, SWS + 3, sT, b * 2304 + a * 64), "kvst")
        g.stamp()
    stages[37].after = lambda: pipe.open.add("scr")
    stages[39].before = lambda: g.wait_vm("kvst")
    stages[39].after = lambda: signal(g, 0)
    pipe.run(36, 54)
    pipe.flush()
    g.stamp()
    poll(g, 0, 16)
    g.stamp()
    e("s_mul_i32 s3, s%d, 25" % sW)
    e("v_add_u32 v28, s3, v0")
    e("v_mul_u32_u24 v30, 6554, v28")
    e("v_lshrrev_b32 v30, 16, v30")
    e("v_mul_u32_u24 v31, 10, v30")
    e("v_sub_u32 v31, v28, v31")
    e("s_and_b32 s3, s%d, 1" % sR)
    e("s_mul_i32 s3, s3, 10")
    e("v_add_u32 v30, s3, v30")
    e("v_cmp_gt_u32 vcc, 25, v0")
    e("v_cmp_gt_u32 s[54:55], 9, v31")
    e("v_mul_u32_u24 v24, 144, v30")
    e("v_lshl_add_u32 v24, v31, 4, v24")
    e("v_mul_u32_u24 v25, 80, v30")
    e("v_lshl_add_u32 v25, v31, 3, v25")
    e("v_mov_b32 v28, 0x%x" % OOB)
    e("v_cndmask_b32 v24, v28, v24, vcc")
    e("v_cndmask_b32 v24, v28, v24, s[54:55]")
    e("v_cndmask_b32 v13, v28, v25, vcc")
    e("s_lshl_b32 s3, s%d, 3" % sS)
    e("s_lshr_b32 s%d, s%d, 1" % (sT, sR))
    e("s_add_u32 s3, s3, s%d" % sT)
    e("s_mul_i32 s%d, s3, %d" % (sT, 16 * 2880))
    e("s_add_u32 s%d, s%d, 0x%x" % (sT, sT, WS_KVP))
    for p in range(16):
        e("buffer_load_dwordx4 %s, v24, s[%d:%d], s%d offen sc1" % (vr(160 + 4 * p, 4), SWS, SWS + 3, sT), ("l1", p))
        if p < 15: e("s_add_u32 s%d, s%d, 2880" % (sT, sT))
    PQ = [[112, 124], [136, 148]]
    for rho in range(2):
        for tt in range(2):
            for i in (10, 11): e("v_mov_b32 v%d, 0" % (PQ[rho][tt] + i))
            pack20(g, ACC + (rho * 2 + tt) * 20, PQ[rho][tt])
    phi_frag_reads(g, 0)
    e("s_mul_i32 s%d, s3, 1600" % sT)
    e("s_add_u32 s%d, s%d, 0x%x" % (sT, sT, WS_KVF))
    for p in range(1, 16):
        g.wait_vm(("l1", p))
        e("v_pk_add_f32 v[160:161], v[160:161], %s" % vr(160 + 4 * p, 2))
        e("v_pk_add_f32 v[162:163], v[162:163], %s" % vr(162 + 4 * p, 2))
    e("v_cvt_pk_bf16_f32 v160, v160, v161")
    e("v_cvt_pk_bf16_f32 v161, v162, v163")
    e("buffer_store_dwordx2 v[160:161], v13, s[%d:%d], s%d offen sc1" % (SWS, SWS + 3, sT), "kvf")
    P = 164; E = 204; PHQ = 32
    for rho in range(2):
        e("s_waitcnt lgkmcnt(0)")
        phi_mfma(g, PQ[rho], P)
        if rho == 0:
            g.wait_vm("kvf"); e("s_barrier"); signal(g, 128)
            pipe.drained(53); pipe.flush()
            phi_frag_reads(g, 1)
        e("s_nop 7")
        for tt in range(2):
            o = PHQ + (rho * 2 + tt) * 20
            softmax(g, P + 20 * tt, o, tt, E)
            e("v_mov_b32 v%d, 0" % (o + 18)); e("v_mov_b32 v%d, 0" % (o + 19))
    g.stamp()
    poll(g, 128, 16)
    g.stamp()
    e("v_lshrrev_b32 v28, 2, v23")
    e("v_cmp_eq_u32 vcc, v28, v22")
    e("v_mul_u32_u24 v24, 1600, v22")
    e("v_and_b32 v28, 3, v23")
    e("v_mul_u32_u24 v28, 80, v28")
    e("v_add_u32 v24, v24, v28")
    e("v_mov_b32 v28, 0x%x" % OOB)
    e("v_cndmask_b32 v24, v28, v24, vcc")
    e("s_mul_i32 s%d, s%d, 12800" % (sT, sS))
    e("s_add_u32 s%d, s%d, 0x%x" % (sT, sT, WS_KVF))
    e("s_add_u32 s%d, s%d, 6400" % (sT2, sT))
    def kva(rho, to, ks):
        i = rho * 25 + to * 5 + ks
        return 4 * i if i < 36 else 176 + 4 * (i - 36)
    for rho in range(2):
        for to in range(5):
            for ks in range(5):
                e("buffer_load_dwordx4 %s, v24, s[%d:%d], s%d offen offset:%d sc1" % (ar(kva(rho, to, ks), 4), SWS, SWS + 3, (sT, sT2)[rho], to * 320 + ks * 16), ("kva", rho, to))
    NUM = 112
    for rho in range(2):
        for to in range(5):
            g.wait_vm(("kva", rho, to))
            for ks in range(5):
                for tt in range(2):
                    e(mfma(vr(NUM + (rho * 2 + tt) * 20 + 4 * to, 4), ar(kva(rho, to, ks), 4), vr(PHQ + (rho * 2 + tt) * 20 + 4 * ks, 4), "0" if ks == 0 else None))
    for t in tr_bases(g, B2, 4): e(t)
    for rho in range(2):
        for tt in range(2):
            s = NUM + (rho * 2 + tt) * 20; o = OB + 20 * tt + 10 * rho
            e("v_cndmask_b32 v24, v%d, v%d, s[%d:%d]" % (s + 18, s, sODD, sODD + 1))
            e("v_add_f32 v24, 0x358637bd, v24")
            e("v_rcp_f32 v24, v24")
            e("s_nop 0")
            for i in range(0, 20, 2): e("v_pk_mul_f32 %s, %s, v[24:25] op_sel_hi:[1,0]" % (vr(s + i, 2), vr(s + i, 2)))
            pack20(g, s, o)
            e("v_cndmask_b32 v%d, v%d, 0, s[%d:%d]" % (o, o, sODD, sODD + 1))
            e("v_cndmask_b32 v%d, 0, v%d, s[%d:%d]" % (o + 9, o + 9, sODD, sODD + 1))
    g.stamp()
    extra = {}
    for c in range(8): spread(store_ops(g, A2[c & 1], PK, c, VST), 20 * (c + 1) + 3, 20 * (c + 1) + 19, extra)
    pipe.run(54, 63, extra)
    e("s_nop 7")
    for t in store_ops(g, A2[0], PK, 8, VST): e(t)
    if opt.get("ts"):
        e("s_waitcnt vmcnt(0)"); g.stamp()
```

```python
import re
def regs(tok):
    tok = tok.strip()
    tok = re.sub(r"^-|^abs\(|\)$|^\|", "", tok).rstrip("|")
    m = re.match(r"^([vas])(\d+)$", tok)
    if m: return {(m.group(1), int(m.group(2)))}
    m = re.match(r"^([vas])\[(\d+):(\d+)\]$", tok)
    if m: return {(m.group(1), i) for i in range(int(m.group(2)), int(m.group(3)) + 1)}
    if tok == "vcc": return {("s", 106), ("s", 107)}
    if tok == "m0": return {("s", 124)}
    if tok == "exec": return {("s", 126), ("s", 127)}
    return set()
TRANS = ("v_exp_f32", "v_log_f32", "v_rcp_f32", "v_rsq_f32", "v_sqrt_f32", "v_sin_f32", "v_cos_f32")
class I: pass
def parse(line):
    s = line.split(";")[0].strip()
    if not s or s.endswith(":") or s.startswith("."): return None
    p = s.split(None, 1)
    op = p[0]; rest = p[1] if len(p) > 1 else ""
    ops = [x.strip() for x in re.split(r",(?![^\[]*\])", rest)] if rest else []
    mods = ""
    if ops:
        q = ops[-1].split(None, 1)
        ops[-1] = q[0]; mods = q[1] if len(q) > 1 else ""
    i = I(); i.op = op; i.text = s; i.w = set(); i.r = set(); i.kind = "other"; i.states = 1
    R = [regs(o) for o in ops]
    if op == "s_nop": i.states = int(ops[0]) + 1; return i
    if op.startswith("v_mfma"):
        i.kind = "mfma"; i.w = R[0]; i.A = R[1]; i.B = R[2]; i.C = R[3]; i.r = R[1] | R[2] | R[3]
        i.passes = 8 if "32x32" in op else 4
    elif op.startswith("v_"):
        i.kind = "valu"
        if op.startswith("v_cmp"):
            i.w = R[0]; i.r = set().union(*R[1:])
        elif op.startswith("v_permlane"):
            i.w = R[0] | R[1]; i.r = R[0] | R[1]
        elif op.startswith(("v_add_co", "v_sub_co", "v_addc_co", "v_subb_co")):
            i.w = R[0] | R[1]; i.r = set().union(*R[2:])
        else:
            i.w = R[0]; i.r = set().union(*R[1:]) if len(R) > 1 else set()
            if op.startswith(("v_fmac", "v_dot2c")): i.r |= R[0]
    elif op.startswith("ds_"):
        i.kind = "ds"
        if op.startswith(("ds_read", "ds_bpermute", "ds_permute", "ds_swizzle")):
            i.w = R[0]; i.r = set().union(*R[1:])
        else:
            i.r = set().union(*R)
    elif op.startswith(("buffer_", "global_")):
        i.kind = "vmem"
        lds = " lds" in (" " + mods)
        i.lds = lds
        if op in ("buffer_wbl2", "buffer_inv"): pass
        elif "load" in op and not lds:
            i.w = R[0]; i.r = set().union(*R[1:])
        elif "atomic" in op and "sc0" in mods:
            i.w = R[0]; i.r = set().union(*R)
        else:
            i.r = set().union(*R)
        if lds: i.r |= {("s", 124)}
        i.widestore = ("store" in op) and op.endswith(("x3", "x4"))
        if i.widestore:
            i.data = R[0] if op.startswith("buffer_") else R[1]
    elif op.startswith("s_"):
        i.kind = "salu"
        if op.startswith(("s_cmp", "s_bitcmp", "s_waitcnt", "s_barrier", "s_cbranch", "s_branch", "s_sleep", "s_setprio", "s_endpgm")):
            i.r = set().union(*R) if R else set()
        else:
            i.w = R[0] if R else set(); i.r = set().union(*R[1:]) if len(R) > 1 else set()
            if "saveexec" in op: i.w |= regs("exec")
    return i
def check(lines):
    ins = [(n, parse(l)) for n, l in enumerate(lines)]
    ins = [(n, i) for n, i in ins if i is not None]
    errs = []
    for k, (n, c) in enumerate(ins):
        d = 0
        for j in range(k - 1, max(k - 24, -1), -1):
            p = ins[j][1]
            need = 0; why = ""
            vw = {x for x in p.w if x[0] in "va"}; sw = {x for x in p.w if x[0] == "s"}
            if p.kind == "valu":
                if c.kind == "mfma" and vw & c.r: need, why = 2, "valu->mfma"
                if c.kind == "mfma" and p.op.startswith("v_pk_"): need, why = max(need, 1), "pk->mfma (measured erratum)"
                if c.kind == "vmem" and sw & c.r: need, why = 5, "valu sgpr->vmem"
                if c.kind == "valu" and sw & c.r: need, why = max(need, 2), "valu sgpr->valu"
                if c.kind == "valu" and c.op.startswith(("v_readlane", "v_readfirstlane")) and vw & c.r: need, why = max(need, 1), "valu->readlane"
                if c.kind == "valu" and c.op.startswith("v_permlane") and vw & c.r: need, why = max(need, 2), "valu->permlane"
                if c.kind == "valu" and "dpp" in c.op and vw & c.r: need, why = max(need, 2), "valu->dpp"
                if p.op.startswith(TRANS) and c.kind in ("valu", "mfma") and vw & c.r and not c.op.startswith(TRANS): need, why = max(need, 1), "trans"
                if p.op.startswith("v_dot") and c.kind in ("valu", "mfma", "vmem", "ds") and vw & (c.r | c.w) and not (c.op == p.op): need, why = max(need, 3), "dot"
                if "sdwa" in p.op and c.kind == "valu" and vw & (c.r | c.w): need, why = max(need, 1), "sdwa"
                if c.kind == "salu" and sw & c.r: need, why = max(need, 1), "valu sgpr->salu (pad)"
            if p.kind == "mfma":
                big = p.passes == 8
                if c.kind == "mfma":
                    if p.w & (c.A | c.B): need, why = (12 if big else 8), "mfma D->A/B"
                    elif p.w & c.C and not (p.w == c.C and p.passes == c.passes): need, why = (10 if big else 6), "mfma D->C partial"
                    elif p.w & c.w and not (p.w == c.C): need, why = (12 if big else 8), "mfma WAW"
                elif c.kind in ("valu", "vmem", "ds"):
                    if p.w & (c.r | c.w): need, why = (12 if big else 8), "mfma D->valu/mem"
                    if c.kind == "valu" and p.C & c.w: need, why = max(need, 7 if big else 3), "mfma C WAR"
            if p.kind == "vmem" and getattr(p, "widestore", False):
                if c.kind in ("valu",) and p.data & c.w: need, why = 2, "store data WAR"
                elif p.data & c.w: need, why = 1, "store data WAR"
            if p.kind == "salu" and ("s", 124) in p.w and c.kind == "vmem" and getattr(c, "lds", False): need, why = 1, "m0->dma"
            if p.kind == "salu" and (("s", 126) in p.w) and False: pass
            if need > d:
                errs.append("line %d: %s  <- %s  [%s need %d have %d]" % (n, c.text, p.text, why, need, d))
            d += p.states
            if d > 20: break
    return errs
```

```python
import sys, re, json
from asmlib import *
import hazard
BASE = "parallel_sum__linear_kernel_hedgehog__glu_gated_reglu__prompt"
K1 = BASE + "_kernel"
K2 = "reduce_kernel"

PSZ = 2048 * 576 * 2
WS_RS2 = 0x2400000
WS_KVP = 0x2410000
WS_KVF = 0x2600000
WS_TS = 0x2800000
WS_BYTES = 0x10000000
SX, SW1, SW2, SWS, SDBG, SPHI = 8, 12, 16, 20, 24, 28
sW, sR, sS, sT, sOFF, sM0W, sB1, sB2, sST, sT2 = 32, 33, 34, 35, 36, 37, 38, 39, 40, 41
RING = 144
NB = 8

class G(Asm):
    def __init__(self, opt):
        super().__init__()
        self.opt = opt
        self.vm = []
        self.lg = []
        self.nts = 0
    def e(self, s, tag=None):
        if s.startswith(("buffer_", "global_")): self.vm.append(tag)
        if s.startswith("ds_"): self.lg.append(tag)
        super().e(s)
    def vm_n(self, tag):
        idx = [i for i, t in enumerate(self.vm) if t == tag]
        assert idx, tag
        return len(self.vm) - 1 - idx[-1]
    def wait_vm(self, tag):
        n = min(self.vm_n(tag), 63)
        self.e("s_waitcnt vmcnt(%d)" % n)
    def wait_lg(self, tag):
        idx = [i for i, t in enumerate(self.lg) if t == tag]
        n = min(len(self.lg) - 1 - idx[-1], 15)
        self.e("s_waitcnt lgkmcnt(%d)" % n)
    def stamp(self):
        if not self.opt.get("ts"): return
        e = self.e
        e("s_memtime s[90:91]"); e("s_memrealtime s[92:93]")
        e("s_waitcnt lgkmcnt(0)")
        e("v_mov_b32 v30, s90"); e("v_mov_b32 v31, s92"); e("v_mov_b32 v29, 0")
        e("buffer_store_dwordx2 v[30:31], v29, s[%d:%d], s94 offen offset:%d" % (SWS, SWS + 3, 8 * self.nts))
        self.nts += 1

def mfma(d, a, b, c=None):
    return "v_mfma_f32_16x16x32_bf16 %s, %s, %s, %s" % (d, a, b, d if c is None else c)

class Stage:
    def __init__(self, lo, hi, pre, dmas, frags, gate=None):
        dmas = [d if isinstance(d, list) else [d] for d in dmas]
        dmas[0] = list(pre) + dmas[0]
        self.lo, self.hi, self.dmas, self.frags, self.gate = lo, hi, dmas, frags, gate
        self.before = None; self.after = None

class Pipe:
    def __init__(self, g, stages, D=6):
        self.g, self.st, self.D = g, stages, D
        self.next = 0
        self.safe = -1
        self.q = []
        self.open = set()
        self.fi = 0
    def can(self, m):
        s = self.st[m]
        if s.gate is not None and s.gate not in self.open: return False
        return all(k <= self.safe for k in range(m) if self.st[k].lo < s.hi and s.lo < self.st[k].hi)
    def refill(self):
        while self.next < len(self.st) and self.can(self.next):
            s = self.st[self.next]
            for d in s.dmas: self.q.append((d, ("st", self.next)))
            self.next += 1
    def pop(self):
        if not self.q: return []
        t, tag = self.q.pop(0)
        return [(x, tag) for x in t]
    def flush(self):
        while self.q:
            for t, tag in self.pop(): self.g.e(t, tag)
    def enter(self, n):
        g = self.g
        while any(tag == ("st", n) for _, tag in self.q):
            for t, tg in self.pop(): g.e(t, tg)
        assert self.next > n, n
        if self.st[n].before: self.st[n].before()
        g.wait_vm(("st", n)); g.e("s_barrier")
        if self.st[n].after: self.st[n].after()
        self.safe = max(self.safe, n - 2)
        self.refill()
    def run(self, s0, s1, extra=None, dma_every=3):
        g, D = self.g, self.D
        extra = extra or {}
        fl = [(n, k, f) for n in range(s0, s1) for k, f in enumerate(self.st[n].frags)]
        base = self.fi
        def reads(j):
            n, k, f = fl[j]
            if k == 0: self.enter(n)
            buf = RING + 4 * ((base + j) % NB)
            for t in f[0](buf): g.e(t, ("fr", base + j))
        for j in range(min(D, len(fl))): reads(j)
        since = 0
        for i, (n, k, f) in enumerate(fl):
            if i % 2 == 0: g.wait_lg(("fr", base + min(i + 1, len(fl) - 1)))
            buf = RING + 4 * ((base + i) % NB)
            ms = f[1](buf)
            g.e(ms[0])
            if i + D < len(fl): reads(i + D)
            g.e(ms[1])
            since += 1
            if self.q and (since >= dma_every or len(self.q) > 5):
                for t, tag in self.pop(): g.e(t, tag)
                since = 0
            for t in extra.get(i, []): g.e(t)
        self.fi = base + len(fl)
    def drained(self, upto):
        self.safe = max(self.safe, upto); self.refill()

def spread(ops, lo, hi, extra):
    n = hi - lo
    for k, op in enumerate(ops):
        extra.setdefault(lo + k * n // len(ops), []).append(op)

def lane_consts(g):
    e = g.e
    e("v_lshrrev_b32 v22, 4, v0")
    e("v_and_b32 v23, 15, v0")

def prologue(g, pipe, XV=112, early=None, afterbar=None):
    e, opt = g.e, g.opt
    xf = opt.get("xflags", "nt")
    e("v_lshrrev_b32 v24, 3, v0")
    e("v_mul_u32_u24 v24, 1152, v24")
    e("v_and_b32 v25, 7, v0")
    e("v_xor_b32 v25, v25, v22")
    e("v_lshl_add_u32 v24, v25, 4, v24")
    e("v_xor_b32 v25, 64, v24")
    e("s_lshl_b32 s%d, s%d, 2" % (sT, sR))
    e("s_add_u32 s%d, s%d, s%d" % (sT, sT, sW))
    e("s_mul_i32 s%d, s%d, %d" % (sT, sT, 32 * 1152))
    e("s_mul_i32 s%d, s%d, 36864" % (sT2, sW))
    for j in range(9):
        for o in range(4):
            e("s_add_u32 m0, s%d, %d" % (sT2, (o * 9 + j) * 1024))
            e("s_add_u32 s%d, s%d, %d" % (sOFF, sT, o * 9216 + j * 128))
            e("buffer_load_dwordx4 v%d, s[%d:%d], s%d offen %s lds" % (24 + (o & 1), SX, SX + 3, sOFF, xf), ("x", j))
    if early: early()
    e("v_lshrrev_b32 v26, 3, v23")
    e("v_mul_u32_u24 v26, 9216, v26")
    e("v_and_b32 v27, 7, v23")
    e("v_lshl_add_u32 v26, v27, 7, v26")
    e("v_lshrrev_b32 v27, 1, v23")
    e("v_xor_b32 v27, v27, v22")
    e("v_lshl_add_u32 v26, v27, 4, v26")
    e("v_add_u32 v26, s%d, v26" % sT2)
    e("v_xor_b32 v27, 64, v26")
    for i in range(4): e("v_mov_b32 v%d, 0x3f803f80" % (80 + i))
    for i in (72, 73, 76, 77): e("v_mov_b32 v%d, 0" % i)
    e("v_lshrrev_b32 v28, 2, v23")
    e("v_cmp_eq_u32 vcc, v28, v22")
    e("v_and_b32 v28, 1, v23")
    e("v_lshlrev_b32 v28, 4, v28")
    e("v_mov_b32 v78, 0x3f80")
    e("v_lshlrev_b32 v78, v28, v78")
    e("v_cndmask_b32 v78, 0, v78, vcc")
    e("v_and_b32 v28, 2, v23")
    e("v_cmp_eq_u32 vcc, 0, v28")
    e("s_nop 1")
    e("v_cndmask_b32 v74, 0, v78, vcc")
    e("v_cndmask_b32 v75, v78, 0, vcc") if False else None
    e("v_sub_u32 v75, v78, v74")
    X = lambda tt, ks: XV + (ks * 2 + tt) * 4
    g.stamp()
    for j in range(10):
        if j < 9:
            g.wait_vm(("x", j))
            for ks in (2 * j, 2 * j + 1):
                for tt in range(2):
                    e("ds_read_b128 %s, v%d offset:%d" % (vr(X(tt, ks), 4), 26 + (ks & 1), tt * 18432 + j * 1024), ("xr", j))
        if j > 0:
            g.wait_lg(("xr", j - 1))
            for ks in (2 * j - 2, 2 * j - 1):
                for tt in range(2):
                    e(mfma(vr(64 + 4 * tt, 4), vr(80, 4), vr(X(tt, ks), 4), "0" if ks == 0 else None))
    e("s_barrier")
    g.stamp()
    pipe.open.add("x"); pipe.refill()
    if afterbar: afterbar()
    for _ in range(2):
        for t, tag in pipe.pop(): e(t, tag)
    e("s_nop 3")
    e("s_mov_b32 s%d, 0x%08x" % (sT, 0xbae38e39))
    for i in range(8): e("v_mul_f32 v%d, s%d, v%d" % (64 + i, sT, 64 + i))
    e("s_nop 1")
    fr = [(tt, ks) for ks in range(18) for tt in range(2)]
    LAG = 2
    for k in range(len(fr) + LAG):
        if k < len(fr):
            tt, ks = fr[k]; d = 32 + 8 * (k % 4)
            e(mfma(vr(d, 4), vr(74, 4), vr(X(tt, ks), 4), vr(64 + 4 * tt, 4)))
            e(mfma(vr(d + 4, 4), vr(72, 4), vr(X(tt, ks), 4), vr(64 + 4 * tt, 4)))
        else:
            e("s_nop 1")
        for t, tag in pipe.pop(): e(t, tag)
        if k >= LAG:
            tt, ks = fr[k - LAG]; d = 32 + 8 * ((k - LAG) % 4); x = X(tt, ks)
            for i in range(4): e("v_cvt_pk_bf16_f32 v%d, v%d, v%d" % (x + i, d + 2 * i, d + 2 * i + 1))
            for i in range(4): e("v_accvgpr_write_b32 a%d, v%d" % ((ks * 2 + tt) * 4 + i, x + i))
    g.stamp()

def XC(tt, ks): return ar((ks * 2 + tt) * 4, 4)

def tr_bases(g, dst, rowmul):
    e = g.e
    out = []
    out.append("v_bfe_u32 v28, v0, 2, 2")
    out.append("v_mad_u32_u24 v28, v22, %d, v28" % rowmul)
    out.append("v_lshlrev_b32 v%d, 7, v28" % dst)
    out.append("v_bfe_u32 v28, v0, 3, 2")
    out.append("v_lshl_add_u32 v%d, v28, 5, v%d" % (dst, dst))
    out.append("v_and_b32 v28, 3, v0")
    out.append("v_lshl_add_u32 v%d, v28, 3, v%d" % (dst, dst))
    for t in range(1, 4): out.append("v_xor_b32 v%d, %d, v%d" % (dst + t, 32 * t, dst))
    for grp in (1, 2):
        for t in range(4): out.append("v_add_u32 v%d, 0x%x, v%d" % (dst + 4 * grp + t, grp << 16, dst + t))
    return out

def tr_reads(bases, t, off, second):
    def f(buf):
        o2 = off + second
        assert (off >> 16) == (o2 >> 16)
        b = bases + 4 * (off >> 16) + t
        return ["ds_read_b64_tr_b16 %s, v%d offset:%d" % (ar(buf, 2), b, off & 0xffff),
                "ds_read_b64_tr_b16 %s, v%d offset:%d" % (ar(buf + 2, 2), b, o2 & 0xffff)]
    return f

def store_ops(g, acc, P, c, voff):
    sf = g.opt.get("sflags", "")
    ops = ["s_add_u32 s%d, s%d, %d" % (sT2, sST, c * 4096)]
    for tt in range(2):
        for hf in range(2):
            p = P + (tt * 2 + hf) * 4
            for k in range(2):
                s = acc + ((2 * hf + k) * 2 + tt) * 4
                ops.append("v_cvt_pk_bf16_f32 v%d, v%d, v%d" % (p + 2 * k, s, s + 1))
                ops.append("v_cvt_pk_bf16_f32 v%d, v%d, v%d" % (p + 2 * k + 1, s + 2, s + 3))
            if not g.opt.get("nostore"):
                ops.append("buffer_store_dwordx4 %s, v%d, s[%d:%d], s%d offen offset:%d %s" % (vr(p, 4), voff, SWS, SWS + 3, sT2, (tt * 2 + hf) * 1024, sf))
    return ops

def ffn_role(g):
    e, opt = g.e, g.opt
    wf = opt.get("wflags", "nt")
    ACC = [32, 96]; H = 160; B1 = 9; B2 = 64; PK = 76; VST = 21
    e("s_cmp_ge_u32 s%d, 2" % sW)
    e("s_cselect_b32 s%d, s74, s72" % sT)
    e("s_cselect_b32 s%d, s75, s73" % sT2)
    srd(g, SW1, sT, sT2, 576 * 4608 * 2)
    srd(g, SW2, 76, 77, 4608 * 576 * 2)
    e("s_lshl_b32 s%d, s%d, 12" % (sM0W, sW))
    e("s_mul_i32 s%d, s%d, 768" % (sB1, sS))
    e("s_mul_i32 s%d, s%d, %d" % (sB2, sS, 384 * 1152))
    e("s_mul_i32 s%d, s%d, %d" % (sST, sS, PSZ))
    e("s_lshl_b32 s%d, s%d, 2" % (sT, sR))
    e("s_add_u32 s%d, s%d, s%d" % (sT, sT, sW))
    e("s_mul_i32 s%d, s%d, 36864" % (sT, sT))
    e("s_add_u32 s%d, s%d, s%d" % (sST, sST, sT))
    stages = []
    def slot(n): return ((n + 9) % 10) * 16384
    for rho in range(6):
        acc = ACC[rho & 1]
        for st in range(9):
            n = len(stages); lo = slot(n)
            pre = ["s_add_u32 m0, s%d, %d" % (sM0W, lo), "s_add_u32 s%d, s%d, %d" % (sOFF, sB1, st * 64 * 9216 + rho * 128)]
            dmas = ["buffer_load_dwordx4 v%d, s[%d:%d], s%d offen offset:%d %s lds" % (1 + i, SW1, SW1 + 3, sOFF, i * 1024, wf) for i in range(4)]
            frags = []
            for kk in range(2):
                ks = 2 * st + kk
                for t in range(4):
                    for mat in range(2):
                        def mf(buf, ks=ks, t=t, mat=mat, acc=acc):
                            order = (0, 1) if mat == 0 else (1, 0)
                            return [mfma(vr(acc + ((t * 2 + mat) * 2 + tt) * 4, 4), ar(buf, 4), XC(tt, ks), "0" if ks == 0 else None) for tt in order]
                        frags.append((tr_reads(B1, t, lo + mat * 8192 + kk * 4096, 512), mf))
            stages.append(Stage(lo, lo + 16384, pre, dmas, frags, None if n == 0 else "x"))
    A2 = [32, 96]
    for c in range(9):
        acc = A2[c & 1]
        for st in range(3):
            n = len(stages); lo = slot(n)
            pre = ["s_add_u32 m0, s%d, %d" % (sM0W, lo), "s_add_u32 s%d, s%d, %d" % (sOFF, sB2, st * 128 * 1152 + c * 128)]
            dmas = ["buffer_load_dwordx4 v%d, s[%d:%d], s%d offen offset:%d %s lds" % (5 + i, SW2, SW2 + 3, sOFF, i * 1024, wf) for i in range(4)]
            frags = []
            for kk in range(4):
                u = 4 * st + kk
                for t in range(4):
                    def mf(buf, u=u, t=t, acc=acc):
                        order = (0, 1) if t % 2 == 0 else (1, 0)
                        return [mfma(vr(acc + (t * 2 + tt) * 4, 4), ar(buf, 4), vr(H + (u * 2 + tt) * 4, 4), "0" if u == 0 else None) for tt in order]
                    frags.append((tr_reads(B2, t, lo + kk * 4096, 2048), mf))
            stages.append(Stage(lo, lo + 16384, pre, dmas, frags, "x"))
    pipe = Pipe(g, stages, opt.get("D", 6))
    def early():
        e("v_lshrrev_b32 v28, 3, v0")
        e("s_and_b32 s%d, s%d, 1" % (sOFF, sW))
        e("s_lshl_b32 s%d, s%d, 5" % (sOFF, sOFF))
        e("v_add_u32 v1, s%d, v28" % sOFF)
        e("v_mul_u32_u24 v1, 9216, v1")
        e("v_and_b32 v2, 2, v28")
        e("v_and_b32 v3, 7, v0")
        e("v_xor_b32 v2, v2, v3")
        e("v_lshl_add_u32 v1, v2, 4, v1")
        e("v_xor_b32 v2, 64, v1")
        e("v_add_u32 v2, %d, v2" % (8 * 9216 - 1024))
        e("v_add_u32 v3, %d, v1" % (2 * (8 * 9216 - 1024)))
        e("v_add_u32 v4, %d, v2" % (2 * (8 * 9216 - 1024)))
        pipe.refill(); pipe.flush()
        e("s_lshl_b32 s%d, s%d, 5" % (sOFF, sW))
        e("v_add_u32 v5, s%d, v28" % sOFF)
        e("v_mul_u32_u24 v5, 1152, v5")
        e("v_lshlrev_b32 v6, 1, v22")
        e("v_and_b32 v7, 7, v0")
        e("v_xor_b32 v6, v6, v7")
        e("v_lshl_add_u32 v5, v6, 4, v5")
        for i in range(1, 4): e("v_add_u32 v%d, %d, v5" % (5 + i, i * (8 * 1152 - 1024)))
        for t in tr_bases(g, B1, 8): e(t)
        e("v_lshlrev_b32 v%d, 4, v0" % VST)
    prologue(g, pipe, early=early)
    def epi1(rho):
        acc = ACC[rho & 1]; ops = []
        for t in range(4):
            for tt in range(2):
                gt = acc + ((t * 2) * 2 + tt) * 4; up = acc + ((t * 2 + 1) * 2 + tt) * 4
                h = H + ((2 * rho + t // 2) * 2 + tt) * 4 + (t & 1) * 2
                for k in range(2):
                    for i in (2 * k, 2 * k + 1): ops.append("v_max_f32 v%d, 0, v%d" % (gt + i, gt + i))
                    for i in (2 * k, 2 * k + 1): ops.append("v_mul_f32 v%d, v%d, v%d" % (gt + i, gt + i, up + i))
                    ops.append("v_cvt_pk_bf16_f32 v%d, v%d, v%d" % (h + k, gt + 2 * k, gt + 2 * k + 1))
        return ops
    extra = {}
    for rho in range(5):
        spread(epi1(rho), 144 * (rho + 1) + 3, 144 * (rho + 1) + (100 if rho == 4 else 140), extra)
    spread(tr_bases(g, B2, 4), 144 * 5 + 102, 144 * 5 + 130, extra)
    spread(epi1(5), 864 + 3, 864 + 38, extra)
    for c in range(8):
        spread(store_ops(g, A2[c & 1], PK, c, VST), 864 + 48 * (c + 1) + 3, 864 + 48 * (c + 1) + 44, extra)
    if opt.get("ts"):
        pipe.run(0, 54, extra); g.stamp()
        ex2 = {k - 864: v for k, v in extra.items() if k >= 864}
        pipe.run(54, 81, ex2)
    else:
        pipe.run(0, 81, extra)
    g.stamp()
    e("s_nop 7")
    for t in store_ops(g, A2[0], PK, 8, VST): e(t)
    if opt.get("ts"):
        e("s_waitcnt vmcnt(0)"); g.stamp()

def k1(g):
    e, opt = g.e, g.opt
    kernel_head(g, K1)
    e("s_cmp_ge_u32 s2, 256")
    e("s_cbranch_scc1 L_k1_end")
    e("s_load_dwordx8 s[64:71], s[0:1], 0")
    e("s_load_dwordx4 s[72:75], s[0:1], 40")
    e("s_load_dwordx2 s[76:77], s[0:1], 56")
    e("s_load_dwordx4 s[80:83], s[0:1], 72")
    e("v_lshrrev_b32 v1, 6, v0")
    e("v_and_b32 v0, 63, v0")
    e("v_readfirstlane_b32 s%d, v1" % sW)
    lane_consts(g)
    e("s_and_b32 s%d, s2, 1" % sR)
    e("s_lshl_b32 s%d, s%d, 3" % (sR, sR))
    e("s_bfe_u32 s%d, s2, 0x30003" % sT)
    e("s_or_b32 s%d, s%d, s%d" % (sR, sR, sT))
    e("s_bfe_u32 s%d, s2, 0x20001" % sS)
    e("s_lshr_b32 s3, s2, 6")
    if opt.get("ts"):
        e("s_lshl_b32 s94, s2, 2"); e("s_add_u32 s94, s94, s%d" % sW); e("s_lshl_b32 s94, s94, 8"); e("s_add_u32 s94, s94, 0x%x" % WS_TS)
    e("s_waitcnt lgkmcnt(0)")
    srd(g, SX, 64, 65, PSZ)
    srd(g, SWS, 82, 83, WS_BYTES)
    g.stamp()
    e("s_cmp_eq_u32 s3, 0")
    e("s_cbranch_scc1 L_att")
    e("s_mul_i32 s%d, s%d, 3" % (sS, sS))
    e("s_add_u32 s%d, s%d, s3" % (sS, sS))
    e("s_sub_u32 s%d, s%d, 1" % (sS, sS))
    sv = (list(g.vm), list(g.lg), g.nts)
    ffn_role(g)
    e("s_endpgm")
    g.vm, g.lg, g.nts = sv
    g.raw(".p2align 6")
    g.label("L_att")
    import att
    att.att_role(g)
    g.label("L_k1_end")
    e("s_endpgm")

def k2(g):
    e, opt = g.e, g.opt
    g.vm = []; g.lg = []
    kernel_head(g, K2)
    lf = opt.get("k2flags", "nt")
    e("s_cmp_ge_u32 s2, 256")
    e("s_cbranch_scc1 L_k2_end")
    e("s_load_dwordx2 s[4:5], s[0:1], 0")
    e("s_load_dwordx2 s[6:7], s[0:1], 64")
    e("s_load_dwordx2 s[24:25], s[0:1], 80")
    e("v_lshrrev_b32 v1, 6, v0")
    e("v_and_b32 v0, 63, v0")
    e("v_readfirstlane_b32 s3, v1")
    e("s_mul_i32 s26, s2, 9")
    e("s_add_u32 s26, s26, s3")
    e("s_lshl_b32 s27, s26, 10")
    e("v_lshlrev_b32 v1, 4, v0")
    e("s_waitcnt lgkmcnt(0)")
    srd(g, 16, 24, 25, WS_BYTES)
    for p in range(16):
        e("buffer_load_dwordx4 %s, v1, s[16:19], s27 offen %s" % (vr(16 + 4 * p, 4), lf), ("p", p))
        if p < 15: e("s_add_u32 s27, s27, %d" % PSZ)
    srd(g, 8, 4, 5, PSZ)
    srd(g, 12, 6, 7, PSZ)
    e("s_lshr_b32 s28, s26, 2")
    e("s_mul_i32 s29, s28, 7282")
    e("s_lshr_b32 s29, s29, 16")
    e("s_mul_i32 s30, s29, 9")
    e("s_sub_u32 s30, s28, s30")
    e("s_lshl_b32 s29, s29, 5")
    e("s_bfe_u32 s31, s26, 0x10001")
    e("s_lshl_b32 s31, s31, 4")
    e("s_add_u32 s29, s29, s31")
    e("s_lshl_b32 s30, s30, 7")
    e("s_and_b32 s31, s26, 1")
    e("s_lshl_b32 s31, s31, 6")
    e("s_add_u32 s30, s30, s31")
    e("v_and_b32 v2, 15, v0")
    e("v_add_u32 v2, s29, v2")
    e("v_lshlrev_b32 v3, 2, v2")
    e("s_mov_b32 s31, 0x%x" % WS_RS2)
    e("buffer_load_dword v5, v3, s[16:19], s31 offen", "rs")
    e("v_mul_u32_u24 v2, 1152, v2")
    e("v_bfe_u32 v3, v0, 4, 1")
    e("v_lshl_add_u32 v2, v3, 5, v2")
    e("v_lshrrev_b32 v3, 5, v0")
    e("v_lshl_add_u32 v2, v3, 4, v2")
    e("buffer_load_dwordx4 v[12:15], v2, s[8:11], s30 offen", "x")
    e("s_mov_b32 s20, 0x3f80")
    e("s_mov_b32 s21, 0x3f800000")
    for i in range(16): e("v_mov_b32 v%d, 0" % (80 + i))
    for p in range(16):
        g.wait_vm(("p", p))
        acc = 80 if p < 12 else 88
        for i in range(4):
            e("v_dot2c_f32_bf16 v%d, s20, v%d" % (acc + 2 * i, 16 + 4 * p + i))
            e("v_dot2c_f32_bf16 v%d, s21, v%d" % (acc + 2 * i + 1, 16 + 4 * p + i))
    e("s_waitcnt vmcnt(0)")
    e("s_nop 2")
    for i in range(8): e("v_fma_f32 v%d, v%d, v5, v%d" % (80 + i, 80 + i, 88 + i))
    e("s_nop 1")
    for i in range(4): e("v_permlane16_swap_b32 v%d, v%d" % (80 + i, 84 + i))
    for i in range(4):
        e("v_lshlrev_b32 v6, 16, v%d" % (12 + i))
        e("v_and_b32 v7, 0xffff0000, v%d" % (12 + i))
        e("v_add_f32 v%d, v%d, v6" % (80 + 2 * i, 80 + 2 * i))
        e("v_add_f32 v%d, v%d, v7" % (81 + 2 * i, 81 + 2 * i))
        e("v_cvt_pk_bf16_f32 v%d, v%d, v%d" % (8 + i, 80 + 2 * i, 81 + 2 * i))
    e("buffer_store_dwordx4 v[8:11], v2, s[12:15], s30 offen")
    g.label("L_k2_end")
    e("s_endpgm")

MACROS = """.macro MA d,a,b
v_mfma_f32_16x16x32_bf16 v[\\d:\\d+3], a[\\a:\\a+3], a[\\b:\\b+3], v[\\d:\\d+3]
.endm
.macro MV d,a,b
v_mfma_f32_16x16x32_bf16 v[\\d:\\d+3], a[\\a:\\a+3], v[\\b:\\b+3], v[\\d:\\d+3]
.endm
.macro RT d,b,o
ds_read_b64_tr_b16 a[\\d:\\d+1], v\\b offset:\\o
.endm
.macro WL n
s_waitcnt lgkmcnt(\\n)
.endm
.macro CV d,a,b
v_cvt_pk_bf16_f32 v\\d, v\\a, v\\b
.endm
"""
def compress(line):
    s = line.strip()
    m = re.match(r"v_mfma_f32_16x16x32_bf16 v\[(\d+):\d+\], a\[(\d+):\d+\], ([av])\[(\d+):\d+\], v\[(\d+):\d+\]$", s)
    if m and m.group(1) == m.group(5): return "M%s %s,%s,%s" % (m.group(3).upper(), m.group(1), m.group(2), m.group(4))
    m = re.match(r"ds_read_b64_tr_b16 a\[(\d+):\d+\], v(\d+) offset:(\d+)$", s)
    if m: return "RT %s,%s,%s" % m.groups()
    m = re.match(r"s_waitcnt lgkmcnt\((\d+)\)$", s)
    if m: return "WL %s" % m.group(1)
    m = re.match(r"v_cvt_pk_bf16_f32 v(\d+), v(\d+), v(\d+)$", s)
    if m: return "CV %s,%s,%s" % m.groups()
    return s

def gen(**opt):
    g = G(opt)
    k1(g)
    k2(g)
    errs = hazard.check(g.lines)
    if errs:
        print("\n".join(errs[:40])); raise SystemExit("hazards: %d" % len(errs))
    head = open("cdna_kernels/%s.s.ref" % BASE).read().split("; Override launch")[0] if not opt.get("nohead") else ""
    out = head
    out += "; @launch kernel=%s grid=(256,1,1) block=(256,1,1) lds=163840\n" % K1
    out += "; @launch kernel=%s grid=(256,1,1) block=(576,1,1) lds=0\n" % K2
    out += '.amdgcn_target "amdgcn-amd-amdhsa--gfx950"\n.text\n' + MACROS
    out += "\n".join(compress(l) for l in g.lines) + "\n"
    out += '.section .rodata,"a"\n' + kernel_desc(K1, 512, 256) + kernel_desc(K2, 96, 96, 40)
    return out

if __name__ == "__main__":
    kw = json.loads(sys.argv[2]) if len(sys.argv) > 2 else {}
    open(sys.argv[1], "w").write(gen(**kw))
```

```python
import sys, re, json
from asmlib import *
import hazard
BASE = "parallel_sum__linear_kernel_hedgehog__glu_gated_reglu__prompt"
K1 = BASE + "_kernel"
K2 = "reduce_kernel"

PSZ = 2048 * 576 * 2
WS_RS2 = 0x2400000
WS_KVP = 0x2410000
WS_KVF = 0x2600000
WS_TS = 0x2800000
WS_BYTES = 0x10000000
SX, SW1, SW2, SWS, SDBG, SPHI = 8, 12, 16, 20, 24, 28
sW, sR, sS, sT, sOFF, sM0W, sB1, sB2, sST, sT2 = 32, 33, 34, 35, 36, 37, 38, 39, 40, 41
RING = 144
NB = 8

class G(Asm):
    def __init__(self, opt):
        super().__init__()
        self.opt = opt
        self.vm = []
        self.lg = []
        self.nts = 0
    def e(self, s, tag=None):
        if s.startswith(("buffer_", "global_")): self.vm.append(tag)
        if s.startswith("ds_"): self.lg.append(tag)
        super().e(s)
    def vm_n(self, tag):
        idx = [i for i, t in enumerate(self.vm) if t == tag]
        assert idx, tag
        return len(self.vm) - 1 - idx[-1]
    def wait_vm(self, tag):
        n = min(self.vm_n(tag), 63)
        self.e("s_waitcnt vmcnt(%d)" % n)
    def wait_lg(self, tag):
        idx = [i for i, t in enumerate(self.lg) if t == tag]
        n = min(len(self.lg) - 1 - idx[-1], 15)
        self.e("s_waitcnt lgkmcnt(%d)" % n)
    def stamp(self):
        if not self.opt.get("ts"): return
        e = self.e
        e("s_memtime s[90:91]"); e("s_memrealtime s[92:93]")
        e("s_waitcnt lgkmcnt(0)")
        e("v_mov_b32 v30, s90"); e("v_mov_b32 v31, s92"); e("v_mov_b32 v29, 0")
        e("buffer_store_dwordx2 v[30:31], v29, s[%d:%d], s94 offen offset:%d" % (SWS, SWS + 3, 8 * self.nts))
        self.nts += 1

def mfma(d, a, b, c=None):
    return "v_mfma_f32_16x16x32_bf16 %s, %s, %s, %s" % (d, a, b, d if c is None else c)

class Stage:
    def __init__(self, lo, hi, pre, dmas, frags, gate=None):
        dmas = [d if isinstance(d, list) else [d] for d in dmas]
        dmas[0] = list(pre) + dmas[0]
        self.lo, self.hi, self.dmas, self.frags, self.gate = lo, hi, dmas, frags, gate
        self.before = None; self.after = None

class Pipe:
    def __init__(self, g, stages, D=6):
        self.g, self.st, self.D = g, stages, D
        self.next = 0
        self.safe = -1
        self.q = []
        self.open = set()
        self.fi = 0
    def can(self, m):
        s = self.st[m]
        if s.gate is not None and s.gate not in self.open: return False
        return all(k <= self.safe for k in range(m) if self.st[k].lo < s.hi and s.lo < self.st[k].hi)
    def refill(self):
        while self.next < len(self.st) and self.can(self.next):
            s = self.st[self.next]
            for d in s.dmas: self.q.append((d, ("st", self.next)))
            self.next += 1
    def pop(self):
        if not self.q: return []
        t, tag = self.q.pop(0)
        return [(x, tag) for x in t]
    def flush(self):
        while self.q:
            for t, tag in self.pop(): self.g.e(t, tag)
    def enter(self, n):
        g = self.g
        while any(tag == ("st", n) for _, tag in self.q):
            for t, tg in self.pop(): g.e(t, tg)
        assert self.next > n, n
        if self.st[n].before: self.st[n].before()
        g.wait_vm(("st", n)); g.e("s_barrier")
        if self.st[n].after: self.st[n].after()
        self.safe = max(self.safe, n - 2)
        self.refill()
    def run(self, s0, s1, extra=None, dma_every=3):
        g, D = self.g, self.D
        extra = extra or {}
        fl = [(n, k, f) for n in range(s0, s1) for k, f in enumerate(self.st[n].frags)]
        base = self.fi
        def reads(j):
            n, k, f = fl[j]
            if k == 0: self.enter(n)
            buf = RING + 4 * ((base + j) % NB)
            for t in f[0](buf): g.e(t, ("fr", base + j))
        for j in range(min(D, len(fl))): reads(j)
        since = 0
        for i, (n, k, f) in enumerate(fl):
            if i % 2 == 0: g.wait_lg(("fr", base + min(i + 1, len(fl) - 1)))
            buf = RING + 4 * ((base + i) % NB)
            ms = f[1](buf)
            g.e(ms[0])
            if i + D < len(fl): reads(i + D)
            g.e(ms[1])
            since += 1
            if self.q and (since >= dma_every or len(self.q) > 5):
                for t, tag in self.pop(): g.e(t, tag)
                since = 0
            for t in extra.get(i, []): g.e(t)
        self.fi = base + len(fl)
    def drained(self, upto):
        self.safe = max(self.safe, upto); self.refill()

def spread(ops, lo, hi, extra):
    n = hi - lo
    for k, op in enumerate(ops):
        extra.setdefault(lo + k * n // len(ops), []).append(op)

def lane_consts(g):
    e = g.e
    e("v_lshrrev_b32 v22, 4, v0")
    e("v_and_b32 v23, 15, v0")

def prologue(g, pipe, XV=112, early=None, afterbar=None):
    e, opt = g.e, g.opt
    xf = opt.get("xflags", "nt")
    e("v_lshrrev_b32 v24, 3, v0")
    e("v_mul_u32_u24 v24, 1152, v24")
    e("v_and_b32 v25, 7, v0")
    e("v_xor_b32 v25, v25, v22")
    e("v_lshl_add_u32 v24, v25, 4, v24")
    e("v_xor_b32 v25, 64, v24")
    e("s_lshl_b32 s%d, s%d, 2" % (sT, sR))
    e("s_add_u32 s%d, s%d, s%d" % (sT, sT, sW))
    e("s_mul_i32 s%d, s%d, %d" % (sT, sT, 32 * 1152))
    e("s_mul_i32 s%d, s%d, 36864" % (sT2, sW))
    for j in range(9):
        for o in range(4):
            e("s_add_u32 m0, s%d, %d" % (sT2, (o * 9 + j) * 1024))
            e("s_add_u32 s%d, s%d, %d" % (sOFF, sT, o * 9216 + j * 128))
            e("buffer_load_dwordx4 v%d, s[%d:%d], s%d offen %s lds" % (24 + (o & 1), SX, SX + 3, sOFF, xf), ("x", j))
    if early: early()
    e("v_lshrrev_b32 v26, 3, v23")
    e("v_mul_u32_u24 v26, 9216, v26")
    e("v_and_b32 v27, 7, v23")
    e("v_lshl_add_u32 v26, v27, 7, v26")
    e("v_lshrrev_b32 v27, 1, v23")
    e("v_xor_b32 v27, v27, v22")
    e("v_lshl_add_u32 v26, v27, 4, v26")
    e("v_add_u32 v26, s%d, v26" % sT2)
    e("v_xor_b32 v27, 64, v26")
    for i in range(4): e("v_mov_b32 v%d, 0x3f803f80" % (80 + i))
    for i in (72, 73, 76, 77): e("v_mov_b32 v%d, 0" % i)
    e("v_lshrrev_b32 v28, 2, v23")
    e("v_cmp_eq_u32 vcc, v28, v22")
    e("v_and_b32 v28, 1, v23")
    e("v_lshlrev_b32 v28, 4, v28")
    e("v_mov_b32 v78, 0x3f80")
    e("v_lshlrev_b32 v78, v28, v78")
    e("v_cndmask_b32 v78, 0, v78, vcc")
    e("v_and_b32 v28, 2, v23")
    e("v_cmp_eq_u32 vcc, 0, v28")
    e("s_nop 1")
    e("v_cndmask_b32 v74, 0, v78, vcc")
    e("v_cndmask_b32 v75, v78, 0, vcc") if False else None
    e("v_sub_u32 v75, v78, v74")
    X = lambda tt, ks: XV + (ks * 2 + tt) * 4
    g.stamp()
    for j in range(10):
        if j < 9:
            g.wait_vm(("x", j))
            for ks in (2 * j, 2 * j + 1):
                for tt in range(2):
                    e("ds_read_b128 %s, v%d offset:%d" % (vr(X(tt, ks), 4), 26 + (ks & 1), tt * 18432 + j * 1024), ("xr", j))
        if j > 0:
            g.wait_lg(("xr", j - 1))
            for ks in (2 * j - 2, 2 * j - 1):
                for tt in range(2):
                    e(mfma(vr(64 + 4 * tt, 4), vr(80, 4), vr(X(tt, ks), 4), "0" if ks == 0 else None))
    e("s_barrier")
    g.stamp()
    pipe.open.add("x"); pipe.refill()
    if afterbar: afterbar()
    for _ in range(2):
        for t, tag in pipe.pop(): e(t, tag)
    e("s_nop 3")
    e("s_mov_b32 s%d, 0x%08x" % (sT, 0xbae38e39))
    for i in range(8): e("v_mul_f32 v%d, s%d, v%d" % (64 + i, sT, 64 + i))
    e("s_nop 1")
    fr = [(tt, ks) for ks in range(18) for tt in range(2)]
    LAG = 2
    for k in range(len(fr) + LAG):
        if k < len(fr):
            tt, ks = fr[k]; d = 32 + 8 * (k % 4)
            e(mfma(vr(d, 4), vr(74, 4), vr(X(tt, ks), 4), vr(64 + 4 * tt, 4)))
            e(mfma(vr(d + 4, 4), vr(72, 4), vr(X(tt, ks), 4), vr(64 + 4 * tt, 4)))
        else:
            e("s_nop 1")
        for t, tag in pipe.pop(): e(t, tag)
        if k >= LAG:
            tt, ks = fr[k - LAG]; d = 32 + 8 * ((k - LAG) % 4); x = X(tt, ks)
            for i in range(4): e("v_cvt_pk_bf16_f32 v%d, v%d, v%d" % (x + i, d + 2 * i, d + 2 * i + 1))
            for i in range(4): e("v_accvgpr_write_b32 a%d, v%d" % ((ks * 2 + tt) * 4 + i, x + i))
    g.stamp()

def XC(tt, ks): return ar((ks * 2 + tt) * 4, 4)

def tr_bases(g, dst, rowmul):
    e = g.e
    out = []
    out.append("v_bfe_u32 v28, v0, 2, 2")
    out.append("v_mad_u32_u24 v28, v22, %d, v28" % rowmul)
    out.append("v_lshlrev_b32 v%d, 7, v28" % dst)
    out.append("v_bfe_u32 v28, v0, 3, 2")
    out.append("v_lshl_add_u32 v%d, v28, 5, v%d" % (dst, dst))
    out.append("v_and_b32 v28, 3, v0")
    out.append("v_lshl_add_u32 v%d, v28, 3, v%d" % (dst, dst))
    for t in range(1, 4): out.append("v_xor_b32 v%d, %d, v%d" % (dst + t, 32 * t, dst))
    for grp in (1, 2):
        for t in range(4): out.append("v_add_u32 v%d, 0x%x, v%d" % (dst + 4 * grp + t, grp << 16, dst + t))
    return out

def tr_reads(bases, t, off, second):
    def f(buf):
        o2 = off + second
        assert (off >> 16) == (o2 >> 16)
        b = bases + 4 * (off >> 16) + t
        return ["ds_read_b64_tr_b16 %s, v%d offset:%d" % (ar(buf, 2), b, off & 0xffff),
                "ds_read_b64_tr_b16 %s, v%d offset:%d" % (ar(buf + 2, 2), b, o2 & 0xffff)]
    return f

def store_ops(g, acc, P, c, voff):
    sf = g.opt.get("sflags", "")
    ops = ["s_add_u32 s%d, s%d, %d" % (sT2, sST, c * 4096)]
    for tt in range(2):
        for hf in range(2):
            p = P + (tt * 2 + hf) * 4
            for k in range(2):
                s = acc + ((2 * hf + k) * 2 + tt) * 4
                ops.append("v_cvt_pk_bf16_f32 v%d, v%d, v%d" % (p + 2 * k, s, s + 1))
                ops.append("v_cvt_pk_bf16_f32 v%d, v%d, v%d" % (p + 2 * k + 1, s + 2, s + 3))
            if not g.opt.get("nostore"):
                ops.append("buffer_store_dwordx4 %s, v%d, s[%d:%d], s%d offen offset:%d %s" % (vr(p, 4), voff, SWS, SWS + 3, sT2, (tt * 2 + hf) * 1024, sf))
    return ops

def ffn_role(g):
    e, opt = g.e, g.opt
    wf = opt.get("wflags", "nt")
    ACC = [32, 96]; H = 160; B1 = 9; B2 = 64; PK = 76; VST = 21
    e("s_cmp_ge_u32 s%d, 2" % sW)
    e("s_cselect_b32 s%d, s74, s72" % sT)
    e("s_cselect_b32 s%d, s75, s73" % sT2)
    srd(g, SW1, sT, sT2, 576 * 4608 * 2)
    srd(g, SW2, 76, 77, 4608 * 576 * 2)
    e("s_lshl_b32 s%d, s%d, 12" % (sM0W, sW))
    e("s_mul_i32 s%d, s%d, 768" % (sB1, sS))
    e("s_mul_i32 s%d, s%d, %d" % (sB2, sS, 384 * 1152))
    e("s_mul_i32 s%d, s%d, %d" % (sST, sS, PSZ))
    e("s_lshl_b32 s%d, s%d, 2" % (sT, sR))
    e("s_add_u32 s%d, s%d, s%d" % (sT, sT, sW))
    e("s_mul_i32 s%d, s%d, 36864" % (sT, sT))
    e("s_add_u32 s%d, s%d, s%d" % (sST, sST, sT))
    stages = []
    def slot(n): return ((n + 9) % 10) * 16384
    for rho in range(6):
        acc = ACC[rho & 1]
        for st in range(9):
            n = len(stages); lo = slot(n)
            pre = ["s_add_u32 m0, s%d, %d" % (sM0W, lo), "s_add_u32 s%d, s%d, %d" % (sOFF, sB1, st * 64 * 9216 + rho * 128)]
            dmas = ["buffer_load_dwordx4 v%d, s[%d:%d], s%d offen offset:%d %s lds" % (1 + i, SW1, SW1 + 3, sOFF, i * 1024, wf) for i in range(4)]
            frags = []
            for kk in range(2):
                ks = 2 * st + kk
                for t in range(4):
                    for mat in range(2):
                        def mf(buf, ks=ks, t=t, mat=mat, acc=acc):
                            order = (0, 1) if mat == 0 else (1, 0)
                            return [mfma(vr(acc + ((t * 2 + mat) * 2 + tt) * 4, 4), ar(buf, 4), XC(tt, ks), "0" if ks == 0 else None) for tt in order]
                        frags.append((tr_reads(B1, t, lo + mat * 8192 + kk * 4096, 512), mf))
            stages.append(Stage(lo, lo + 16384, pre, dmas, frags, None if n == 0 else "x"))
    A2 = [32, 96]
    for c in range(9):
        acc = A2[c & 1]
        for st in range(3):
            n = len(stages); lo = slot(n)
            pre = ["s_add_u32 m0, s%d, %d" % (sM0W, lo), "s_add_u32 s%d, s%d, %d" % (sOFF, sB2, st * 128 * 1152 + c * 128)]
            dmas = ["buffer_load_dwordx4 v%d, s[%d:%d], s%d offen offset:%d %s lds" % (5 + i, SW2, SW2 + 3, sOFF, i * 1024, wf) for i in range(4)]
            frags = []
            for kk in range(4):
                u = 4 * st + kk
                for t in range(4):
                    def mf(buf, u=u, t=t, acc=acc):
                        order = (0, 1) if t % 2 == 0 else (1, 0)
                        return [mfma(vr(acc + (t * 2 + tt) * 4, 4), ar(buf, 4), vr(H + (u * 2 + tt) * 4, 4), "0" if u == 0 else None) for tt in order]
                    frags.append((tr_reads(B2, t, lo + kk * 4096, 2048), mf))
            stages.append(Stage(lo, lo + 16384, pre, dmas, frags, "x"))
    pipe = Pipe(g, stages, opt.get("D", 6))
    def early():
        e("v_lshrrev_b32 v28, 3, v0")
        e("s_and_b32 s%d, s%d, 1" % (sOFF, sW))
        e("s_lshl_b32 s%d, s%d, 5" % (sOFF, sOFF))
        e("v_add_u32 v1, s%d, v28" % sOFF)
        e("v_mul_u32_u24 v1, 9216, v1")
        e("v_and_b32 v2, 2, v28")
        e("v_and_b32 v3, 7, v0")
        e("v_xor_b32 v2, v2, v3")
        e("v_lshl_add_u32 v1, v2, 4, v1")
        e("v_xor_b32 v2, 64, v1")
        e("v_add_u32 v2, %d, v2" % (8 * 9216 - 1024))
        e("v_add_u32 v3, %d, v1" % (2 * (8 * 9216 - 1024)))
        e("v_add_u32 v4, %d, v2" % (2 * (8 * 9216 - 1024)))
        pipe.refill(); pipe.flush()
        e("s_lshl_b32 s%d, s%d, 5" % (sOFF, sW))
        e("v_add_u32 v5, s%d, v28" % sOFF)
        e("v_mul_u32_u24 v5, 1152, v5")
        e("v_lshlrev_b32 v6, 1, v22")
        e("v_and_b32 v7, 7, v0")
        e("v_xor_b32 v6, v6, v7")
        e("v_lshl_add_u32 v5, v6, 4, v5")
        for i in range(1, 4): e("v_add_u32 v%d, %d, v5" % (5 + i, i * (8 * 1152 - 1024)))
        for t in tr_bases(g, B1, 8): e(t)
        e("v_lshlrev_b32 v%d, 4, v0" % VST)
    prologue(g, pipe, early=early)
    def epi1(rho):
        acc = ACC[rho & 1]; ops = []
        for t in range(4):
            for tt in range(2):
                gt = acc + ((t * 2) * 2 + tt) * 4; up = acc + ((t * 2 + 1) * 2 + tt) * 4
                h = H + ((2 * rho + t // 2) * 2 + tt) * 4 + (t & 1) * 2
                for k in range(2):
                    for i in (2 * k, 2 * k + 1): ops.append("v_max_f32 v%d, 0, v%d" % (gt + i, gt + i))
                    for i in (2 * k, 2 * k + 1): ops.append("v_mul_f32 v%d, v%d, v%d" % (gt + i, gt + i, up + i))
                    ops.append("v_cvt_pk_bf16_f32 v%d, v%d, v%d" % (h + k, gt + 2 * k, gt + 2 * k + 1))
        return ops
    extra = {}
    for rho in range(5):
        spread(epi1(rho), 144 * (rho + 1) + 3, 144 * (rho + 1) + (100 if rho == 4 else 140), extra)
    spread(tr_bases(g, B2, 4), 144 * 5 + 102, 144 * 5 + 130, extra)
    spread(epi1(5), 864 + 3, 864 + 38, extra)
    for c in range(8):
        spread(store_ops(g, A2[c & 1], PK, c, VST), 864 + 48 * (c + 1) + 3, 864 + 48 * (c + 1) + 44, extra)
    if opt.get("ts"):
        pipe.run(0, 54, extra); g.stamp()
        ex2 = {k - 864: v for k, v in extra.items() if k >= 864}
        pipe.run(54, 81, ex2)
    else:
        pipe.run(0, 81, extra)
    g.stamp()
    e("s_nop 7")
    for t in store_ops(g, A2[0], PK, 8, VST): e(t)
    if opt.get("ts"):
        e("s_waitcnt vmcnt(0)"); g.stamp()

def k1(g):
    e, opt = g.e, g.opt
    kernel_head(g, K1)
    e("s_cmp_ge_u32 s2, 256")
    e("s_cbranch_scc1 L_k1_end")
    e("s_load_dwordx8 s[64:71], s[0:1], 0")
    e("s_load_dwordx4 s[72:75], s[0:1], 40")
    e("s_load_dwordx2 s[76:77], s[0:1], 56")
    e("s_load_dwordx4 s[80:83], s[0:1], 72")
    if opt.get("codepf", 1):
        e("s_getpc_b64 s[84:85]")
        e("s_lshr_b32 s3, s2, 3")
        e("s_lshl_b32 s3, s3, 12")
        e("v_and_b32 v2, 31, v0")
        e("v_lshlrev_b32 v2, 7, v2")
        e("v_add_u32 v2, s3, v2")
        e("v_min_u32 v2, L_k1_end-%s, v2" % K1)
        e("global_load_dword v255, v2, s[84:85]")
    e("v_lshrrev_b32 v1, 6, v0")
    e("v_and_b32 v0, 63, v0")
    e("v_readfirstlane_b32 s%d, v1" % sW)
    lane_consts(g)
    e("s_and_b32 s%d, s2, 1" % sR)
    e("s_lshl_b32 s%d, s%d, 3" % (sR, sR))
    e("s_bfe_u32 s%d, s2, 0x30003" % sT)
    e("s_or_b32 s%d, s%d, s%d" % (sR, sR, sT))
    e("s_bfe_u32 s%d, s2, 0x20001" % sS)
    e("s_lshr_b32 s3, s2, 6")
    if opt.get("ts"):
        e("s_lshl_b32 s94, s2, 2"); e("s_add_u32 s94, s94, s%d" % sW); e("s_lshl_b32 s94, s94, 8"); e("s_add_u32 s94, s94, 0x%x" % WS_TS)
    e("s_waitcnt lgkmcnt(0)")
    srd(g, SX, 64, 65, PSZ)
    wb = opt.get("wsbase", 0)
    if wb:
        e("s_add_u32 s82, s82, 0x%x" % wb); e("s_addc_u32 s83, s83, 0")
    srd(g, SWS, 82, 83, WS_BYTES - wb)
    g.stamp()
    e("s_cmp_eq_u32 s3, 0")
    e("s_cbranch_scc1 L_att")
    e("s_mul_i32 s%d, s%d, 3" % (sS, sS))
    e("s_add_u32 s%d, s%d, s3" % (sS, sS))
    e("s_sub_u32 s%d, s%d, 1" % (sS, sS))
    sv = (list(g.vm), list(g.lg), g.nts)
    ffn_role(g)
    e("s_endpgm")
    g.vm, g.lg, g.nts = sv
    g.raw(".p2align 6")
    g.label("L_att")
    import att
    att.att_role(g)
    g.label("L_k1_end")
    e("s_endpgm")

def k2(g):
    e, opt = g.e, g.opt
    g.vm = []; g.lg = []
    kernel_head(g, K2)
    lf = opt.get("k2flags", "nt")
    e("s_cmp_ge_u32 s2, 256")
    e("s_cbranch_scc1 L_k2_end")
    if opt.get("ts"): e("s_memrealtime s[32:33]")
    e("s_load_dwordx2 s[4:5], s[0:1], 0")
    e("s_load_dwordx2 s[6:7], s[0:1], 64")
    e("s_load_dwordx2 s[24:25], s[0:1], 80")
    e("v_lshrrev_b32 v1, 6, v0")
    e("v_and_b32 v0, 63, v0")
    e("v_readfirstlane_b32 s3, v1")
    e("s_mul_i32 s26, s2, 9")
    e("s_add_u32 s26, s26, s3")
    e("s_lshl_b32 s27, s26, 10")
    e("v_lshlrev_b32 v1, 4, v0")
    e("s_waitcnt lgkmcnt(0)")
    wb = opt.get("wsbase", 0)
    if wb:
        e("s_add_u32 s24, s24, 0x%x" % wb); e("s_addc_u32 s25, s25, 0")
    srd(g, 16, 24, 25, WS_BYTES - wb)
    for p in range(16):
        e("buffer_load_dwordx4 %s, v1, s[16:19], s27 offen %s" % (vr(16 + 4 * p, 4), lf), ("p", p))
        if p < 15: e("s_add_u32 s27, s27, %d" % PSZ)
    srd(g, 8, 4, 5, PSZ)
    srd(g, 12, 6, 7, PSZ)
    e("s_lshr_b32 s28, s26, 2")
    e("s_mul_i32 s29, s28, 7282")
    e("s_lshr_b32 s29, s29, 16")
    e("s_mul_i32 s30, s29, 9")
    e("s_sub_u32 s30, s28, s30")
    e("s_lshl_b32 s29, s29, 5")
    e("s_bfe_u32 s31, s26, 0x10001")
    e("s_lshl_b32 s31, s31, 4")
    e("s_add_u32 s29, s29, s31")
    e("s_lshl_b32 s30, s30, 7")
    e("s_and_b32 s31, s26, 1")
    e("s_lshl_b32 s31, s31, 6")
    e("s_add_u32 s30, s30, s31")
    e("v_and_b32 v2, 15, v0")
    e("v_add_u32 v2, s29, v2")
    e("v_lshlrev_b32 v3, 2, v2")
    e("s_mov_b32 s31, 0x%x" % WS_RS2)
    e("buffer_load_dword v5, v3, s[16:19], s31 offen", "rs")
    e("v_mul_u32_u24 v2, 1152, v2")
    e("v_bfe_u32 v3, v0, 4, 1")
    e("v_lshl_add_u32 v2, v3, 5, v2")
    e("v_lshrrev_b32 v3, 5, v0")
    e("v_lshl_add_u32 v2, v3, 4, v2")
    e("buffer_load_dwordx4 v[12:15], v2, s[8:11], s30 offen", "x")
    e("s_mov_b32 s20, 0x3f80")
    e("s_mov_b32 s21, 0x3f800000")
    for i in range(16): e("v_mov_b32 v%d, 0" % (80 + i))
    for p in range(16):
        g.wait_vm(("p", p))
        acc = 80 if p < 12 else 88
        for i in range(4):
            e("v_dot2c_f32_bf16 v%d, s20, v%d" % (acc + 2 * i, 16 + 4 * p + i))
            e("v_dot2c_f32_bf16 v%d, s21, v%d" % (acc + 2 * i + 1, 16 + 4 * p + i))
    e("s_waitcnt vmcnt(0)")
    e("s_nop 2")
    for i in range(8): e("v_fma_f32 v%d, v%d, v5, v%d" % (80 + i, 80 + i, 88 + i))
    e("s_nop 1")
    for i in range(4): e("v_permlane16_swap_b32 v%d, v%d" % (80 + i, 84 + i))
    for i in range(4):
        e("v_lshlrev_b32 v6, 16, v%d" % (12 + i))
        e("v_and_b32 v7, 0xffff0000, v%d" % (12 + i))
        e("v_add_f32 v%d, v%d, v6" % (80 + 2 * i, 80 + 2 * i))
        e("v_add_f32 v%d, v%d, v7" % (81 + 2 * i, 81 + 2 * i))
        e("v_cvt_pk_bf16_f32 v%d, v%d, v%d" % (8 + i, 80 + 2 * i, 81 + 2 * i))
    e("buffer_store_dwordx4 v[8:11], v2, s[12:15], s30 offen")
    if opt.get("ts"):
        e("s_waitcnt vmcnt(0)"); e("s_memrealtime s[34:35]"); e("s_waitcnt lgkmcnt(0)")
        e("v_mov_b32 v30, s32"); e("v_mov_b32 v31, s34"); e("v_mov_b32 v29, 0")
        e("s_lshl_b32 s26, s26, 3"); e("s_add_u32 s26, s26, 0x%x" % (WS_TS + 0x100000))
        e("buffer_store_dwordx2 v[30:31], v29, s[16:19], s26 offen")
    g.label("L_k2_end")
    e("s_endpgm")

MACROS = """.macro MA d,a,b
v_mfma_f32_16x16x32_bf16 v[\\d:\\d+3], a[\\a:\\a+3], a[\\b:\\b+3], v[\\d:\\d+3]
.endm
.macro MV d,a,b
v_mfma_f32_16x16x32_bf16 v[\\d:\\d+3], a[\\a:\\a+3], v[\\b:\\b+3], v[\\d:\\d+3]
.endm
.macro RT d,b,o
ds_read_b64_tr_b16 a[\\d:\\d+1], v\\b offset:\\o
.endm
.macro WL n
s_waitcnt lgkmcnt(\\n)
.endm
.macro CV d,a,b
v_cvt_pk_bf16_f32 v\\d, v\\a, v\\b
.endm
"""
def compress(line):
    s = line.strip()
    m = re.match(r"v_mfma_f32_16x16x32_bf16 v\[(\d+):\d+\], a\[(\d+):\d+\], ([av])\[(\d+):\d+\], v\[(\d+):\d+\]$", s)
    if m and m.group(1) == m.group(5): return "M%s %s,%s,%s" % (m.group(3).upper(), m.group(1), m.group(2), m.group(4))
    m = re.match(r"ds_read_b64_tr_b16 a\[(\d+):\d+\], v(\d+) offset:(\d+)$", s)
    if m: return "RT %s,%s,%s" % m.groups()
    m = re.match(r"s_waitcnt lgkmcnt\((\d+)\)$", s)
    if m: return "WL %s" % m.group(1)
    m = re.match(r"v_cvt_pk_bf16_f32 v(\d+), v(\d+), v(\d+)$", s)
    if m: return "CV %s,%s,%s" % m.groups()
    return s

def gen(**opt):
    g = G(opt)
    k1(g)
    k2(g)
    errs = hazard.check(g.lines)
    if errs:
        print("\n".join(errs[:40])); raise SystemExit("hazards: %d" % len(errs))
    head = open("cdna_kernels/%s.s.ref" % BASE).read().split("; Override launch")[0] if not opt.get("nohead") else ""
    out = head
    out += "; @launch kernel=%s grid=(256,1,1) block=(256,1,1) lds=163840\n" % K1
    out += "; @launch kernel=%s grid=(256,1,1) block=(576,1,1) lds=0\n" % K2
    out += '.amdgcn_target "amdgcn-amd-amdhsa--gfx950"\n.text\n' + MACROS
    out += "\n".join(compress(l) for l in g.lines) + "\n"
    out += '.section .rodata,"a"\n' + kernel_desc(K1, 512, 256) + kernel_desc(K2, 96, 96, 40)
    return out

if __name__ == "__main__":
    kw = json.loads(sys.argv[2]) if len(sys.argv) > 2 else {}
    open(sys.argv[1], "w").write(gen(**kw))
```

```python
from asmlib import *
import gen as G
from gen import *

TBL = 155648; ZER = 163328; SCR = 98304
sODD = 42
sWO = 44
sKV, sQ, sKVP, sCQ, sOXB = 49, 50, 51, 44, 45
ACC = 32

def softmax(p, o, tt, E):
    L = []; e = L.append
    e("v_max3_f32 v24, v%d, v%d, v%d" % (p, p + 1, p + 2)); e("v_min3_f32 v25, v%d, v%d, v%d" % (p, p + 1, p + 2))
    for i in range(3, 17, 2):
        e("v_max3_f32 v24, v24, v%d, v%d" % (p + i, p + i + 1)); e("v_min3_f32 v25, v25, v%d, v%d" % (p + i, p + i + 1))
    e("v_max_f32 v24, v24, v%d" % (p + 17)); e("v_min_f32 v25, v25, v%d" % (p + 17))
    e("v_pk_mul_f32 v[24:25], v[24:25], v[14:15] op_sel:[0,%d] op_sel_hi:[1,%d]" % (tt, tt))
    for i in range(0, 18, 2):
        e("v_pk_fma_f32 %s, %s, v[14:15], v[24:25] op_sel:[0,%d,0] op_sel_hi:[1,%d,0] neg_lo:[0,0,1] neg_hi:[0,0,1]" % (vr(E + i, 2), vr(p + i, 2), tt, tt))
        e("v_pk_fma_f32 %s, %s, v[14:15], v[24:25] op_sel:[0,%d,1] op_sel_hi:[1,%d,1] neg_lo:[0,1,0] neg_hi:[0,1,0]" % (vr(p + i, 2), vr(p + i, 2), tt, tt))
    for i in range(18):
        e("v_exp_f32 v%d, v%d" % (E + i, E + i))
        e("v_exp_f32 v%d, v%d" % (p + i, p + i))
    e("v_pk_add_f32 v[24:25], %s, %s" % (vr(E, 2), vr(E + 2, 2)))
    e("v_pk_add_f32 v[26:27], %s, %s" % (vr(p, 2), vr(p + 2, 2)))
    for i in range(4, 18, 2):
        e("v_pk_add_f32 v[24:25], v[24:25], %s" % vr(E + i, 2))
        e("v_pk_add_f32 v[26:27], v[26:27], %s" % vr(p + i, 2))
    e("v_add_f32 v24, v24, v25")
    e("v_add_f32 v25, v26, v27")
    e("v_rcp_f32 v24, v24")
    e("v_rcp_f32 v25, v25")
    e("s_nop 0")
    for i in range(0, 18, 2):
        e("v_pk_mul_f32 %s, %s, v[24:25] op_sel:[0,0] op_sel_hi:[1,0]" % (vr(E + i, 2), vr(E + i, 2)))
        e("v_pk_mul_f32 %s, %s, v[24:25] op_sel:[0,1] op_sel_hi:[1,1]" % (vr(p + i, 2), vr(p + i, 2)))
    for i in range(8, -1, -1): e("v_cvt_pk_bf16_f32 v%d, v%d, v%d" % (o + 9 + i, p + 2 * i, p + 2 * i + 1))
    for i in range(9): e("v_cvt_pk_bf16_f32 v%d, v%d, v%d" % (o + i, E + 2 * i, E + 2 * i + 1))
    out = []
    for x in L:
        if x.startswith("v_pk_"):
            if out and isinstance(out[-1], list): out[-1].append(x)
            else: out.append([x])
        else: out.append(x)
    for x in out:
        if isinstance(x, list): x.append("s_nop 0")
    return out

def phi_frag_reads(rho, A, tag):
    L = ["v_mov_b32 v29, v18" if rho == 0 else "v_mad_u32_u24 v29, v19, 12, v18"]
    for ks in range(3):
        for to in range(5):
            b = A + (ks * 5 + to) * 4
            L.append(("ds_read_b64_tr_b16 %s, v29 offset:%d" % (ar(b, 2), to * 8), tag))
            L.append(("ds_read_b64_tr_b16 %s, v29 offset:%d" % (ar(b + 2, 2), to * 8 + 160), tag))
        if ks < 2: L.append("v_add_u32 v29, v29, v19")
    return L

def phi_mfma(pk, P, A):
    return [mfma(vr(P[tt] + 4 * to, 4), ar(A + (ks * 5 + to) * 4, 4), vr(pk[tt] + 4 * ks, 4), "0" if ks == 0 else None)
            for ks in range(3) for to in range(5) for tt in range(2)]

def pack20(src, dst):
    return ["v_cvt_pk_bf16_f32 v%d, v%d, v%d" % (dst + i, src + 2 * i, src + 2 * i + 1) for i in range(10)]

def put(g, L):
    for it in L:
        if callable(it): it()
        elif isinstance(it, list): put(g, it)
        elif isinstance(it, tuple): g.e(it[0], it[1])
        else: g.e(it)

def weave(g, ms, fill, per=2):
    fill = list(fill)
    for m in ms:
        put(g, [m]); put(g, fill[:per]); fill = fill[per:]
    put(g, fill)

def c1(f):
    f.cost = 1
    return f

def att_role(g):
    e, opt = g.e, g.opt
    wf = opt.get("aflags", ""); TOUCH = opt.get("touch", 1); tf = opt.get("tflags", "")
    CPF = opt.get("codepf", 0)
    srd(g, SW1, 66, 67, 576 * 1728 * 2)
    srd(g, SPHI, 68, 69, 32 * 18 * 18 * 2)
    e("s_mul_i32 s%d, s%d, 3072" % (sM0W, sW))
    e("s_mul_i32 s%d, s%d, 288" % (sQ, sS))
    e("s_add_u32 s%d, s%d, 1152" % (sKV, sQ))
    e("s_lshl_b32 s%d, s%d, 7" % (sCNT, sS))
    e("s_add_u32 s%d, s%d, 0x%x" % (sCNT, sCNT, WS_FLG + 64 * 128))
    e("s_add_u32 s46, s%d, 512" % sCNT)
    e("s_lshl_b32 s63, s%d, 2" % sR)
    e("s_add_u32 s63, s63, s%d" % sCNT)
    e("s_lshl_b32 s%d, s%d, 2" % (sT, sR))
    e("s_add_u32 s%d, s%d, s%d" % (sT, sT, sS))
    e("s_lshl_b32 s%d, s%d, 7" % (sCQ, sT))
    e("s_add_u32 s%d, s%d, 0x%x" % (sCQ, sCQ, WS_FLG))
    e("s_lshl_b32 s%d, s%d, 2" % (sT, sT))
    e("s_add_u32 s%d, s%d, s%d" % (sT, sT, sW))
    e("s_mul_i32 s%d, s%d, 10240" % (sOXB, sT))
    e("s_add_u32 s%d, s%d, 0x%x" % (sOXB, sOXB, WS_OX))
    e("s_lshl_b32 s%d, s%d, 3" % (sKVP, sS))
    e("s_add_u32 s%d, s%d, s%d" % (sKVP, sKVP, sW))
    e("s_lshl_b32 s%d, s%d, 4" % (sKVP, sKVP))
    e("s_add_u32 s%d, s%d, s%d" % (sKVP, sKVP, sR))
    e("s_mul_i32 s%d, s%d, 2880" % (sKVP, sKVP))
    e("s_add_u32 s%d, s%d, 0x%x" % (sKVP, sKVP, WS_KVP))
    stages = []
    for ps in range(3):
        for ks in range(18):
            n = len(stages); lo = (n % 8) * 12288
            sb, add, vo = (sKV, 144 * ps, 1) if ps < 2 else (sQ, 0, 4)
            pre = ["s_add_u32 m0, s%d, %d" % (sM0W, lo), "s_add_u32 s%d, s%d, %d" % (sOFF, sb, ks * 32 * 3456 + add)]
            dmas = ["buffer_load_dwordx4 v%d, s[%d:%d], s%d offen offset:%d %s lds" % (vo + i, SW1, SW1 + 3, sOFF, i * 1024, wf) for i in range(3)]
            frags = []
            for sec in range(2):
                for t in range(5):
                    off = lo + sec * 144 + 8 * t
                    def rd(buf, off=off):
                        b = 7 + (off >> 16); o = off & 0xffff
                        assert o + 1280 < 65536
                        return ["ds_read_b64_tr_b16 %s, v%d offset:%d" % (ar(buf, 2), b, o), "ds_read_b64_tr_b16 %s, v%d offset:%d" % (ar(buf + 2, 2), b, o + 1280)]
                    def mf(buf, ks=ks, sec=sec, t=t):
                        order = (0, 1) if (sec * 5 + t) % 2 == 0 else (1, 0)
                        return [mfma(vr(ACC + (sec * 2 + tt) * 20 + 4 * t, 4), ar(buf, 4), XC(tt, ks), "0" if ks == 0 else None) for tt in order]
                    frags.append((rd, mf))
            stages.append(Stage(lo, lo + 12288, pre, dmas, frags, "x"))
    OB = 192; VST = 21
    pipe = Pipe(g, stages, opt.get("D", 7), opt.get("ABE", 2))

    def early():
        if TOUCH:
            e("v_mul_u32_u24 v28, 3641, v0")
            e("v_lshrrev_b32 v28, 16, v28")
            e("v_mul_u32_u24 v9, 18, v28")
            e("v_sub_u32 v9, v0, v9")
            e("s_mul_i32 s3, s%d, 18" % sW)
            e("s_and_b32 s%d, s%d, 7" % (sOFF, sR))
            e("s_mul_i32 s%d, s%d, 72" % (sOFF, sOFF))
            e("s_add_u32 s3, s3, s%d" % sOFF)
            e("v_add_u32 v9, s3, v9")
            e("v_mul_u32_u24 v9, 3456, v9")
            e("v_lshl_add_u32 v9, v28, 7, v9")
            e("v_cmp_gt_u32 vcc, 54, v0")
            e("v_mov_b32 v28, 0x%x" % OOB)
            e("s_nop 0")
            e("v_cndmask_b32 v9, v28, v9, vcc")
        e("s_lshl_b32 s%d, s%d, 6" % (sOFF, sW))
        e("v_add_u32 v29, s%d, v0" % sOFF)
        for i in range(4): e("v_mov_b32 v%d, 0" % (96 + i))
        e("v_lshlrev_b32 v28, 5, v29")
        e("v_add_u32 v28, %d, v28" % TBL)
        e("ds_write_b128 v28, v[96:99]")
        e("ds_write_b128 v28, v[96:99] offset:16")
        for i in range(6):
            a = 90 + i
            e("v_add_u32 v28, %d, v29" % (256 * i))
            e("v_mul_u32_u24 v30, 7282, v28")
            e("v_lshrrev_b32 v30, 16, v30")
            e("v_mul_u32_u24 v31, 3641, v30")
            e("v_lshrrev_b32 v31, 16, v31")
            e("v_add_lshl_u32 v%d, v28, v30, 2" % a)
            e("v_mul_u32_u24 v30, 240, v31")
            e("v_add_u32 v%d, v%d, v30" % (a, a))
            e("v_and_b32 v31, 1, v31")
            e("v_mul_u32_u24 v31, 80, v31")
            e("v_add3_u32 v%d, v%d, v31, s%d" % (a, a, sT)) if False else None
            e("v_add_u32 v%d, v%d, v31" % (a, a))
            e("v_add_u32 v%d, %d, v%d" % (a, TBL, a))
        e("v_cmp_gt_u32 vcc, 16, v29")
        e("v_mov_b32 v28, 150000")
        e("s_nop 0")
        e("v_cndmask_b32 v95, v28, v95, vcc")
        e("s_and_b32 s%d, s%d, 1" % (sOFF, sW))
        e("s_lshl_b32 s3, s%d, 3" % sW)
        e("v_mov_b32 v111, 0x%x" % OOB)
        for i in range(3):
            e("v_add_u32 v28, %d, v0" % (64 * i))
            e("v_subrev_u32 v28, s%d, v28" % sOFF)
            e("v_and_b32 v28, 0xffff, v28")
            e("v_mul_u32_u24 v30, 3277, v28")
            e("v_lshrrev_b32 v30, 16, v30")
            e("v_mul_u32_u24 v31, 20, v30")
            e("v_sub_u32 v31, v28, v31")
            e("v_cmp_gt_u32 s[54:55], 8, v30")
            e("v_cmp_gt_u32 s[56:57], 18, v31")
            e("v_cmp_lt_u32 vcc, 8, v31")
            e("v_add_u32 v30, s3, v30")
            e("v_mul_u32_u24 v30, 3456, v30")
            e("v_lshl_add_u32 v30, v31, 4, v30")
            e("s_and_b64 s[54:55], s[54:55], s[56:57]")
            if i: e("v_subrev_u32 v30, %d, v30" % (1024 * i))
            e("v_add_u32 v31, %d, v30" % (1152 - 144))
            e("v_cndmask_b32 v31, v30, v31, vcc")
            e("v_cndmask_b32 v%d, v111, v31, s[54:55]" % (1 + i))
            e("v_cndmask_b32 v%d, v111, v30, s[54:55]" % (4 + i))
        e("v_mul_u32_u24 v7, 3072, v22")
        e("v_and_b32 v28, 1, v22")
        e("v_cmp_eq_u32 s[%d:%d], 1, v28" % (sODD, sODD + 1))
        e("v_lshl_add_u32 v7, v28, 4, v7")
        e("v_bfe_u32 v28, v0, 2, 2")
        e("v_mul_u32_u24 v30, 320, v28")
        e("v_add_u32 v7, v7, v30")
        e("v_bfe_u32 v30, v0, 1, 1")
        e("v_mul_u32_u24 v30, 72, v30")
        e("v_add_u32 v7, v7, v30")
        e("v_and_b32 v30, 1, v0")
        e("v_lshl_add_u32 v7, v30, 5, v7")
        e("v_add_u32 v8, 0x10000, v7")
        e("v_mul_u32_u24 v18, 960, v22")
        e("v_mul_u32_u24 v30, 40, v28")
        e("v_add_u32 v18, v18, v30")
        e("v_add_u32 v18, %d, v18" % TBL)
        e("v_and_b32 v30, 3, v0")
        e("v_cmp_eq_u32 vcc, v30, v22")
        e("v_mov_b32 v30, %d" % ZER)
        e("v_mov_b32 v31, 320")
        e("v_cndmask_b32 v18, v30, v18, vcc")
        e("v_cndmask_b32 v19, 0, v31, vcc")
        e("v_cmp_eq_u32 vcc, 0, v29")
        e("v_lshlrev_b32 v%d, 4, v0" % VST)
        e("s_nop 0")
        e("v_cndmask_b32 v20, v111, 0, vcc") if False else None
        e("v_mov_b32 v20, 0")
        e("v_cndmask_b32 v20, v111, v20, vcc")
        e("s_lshl_b32 s3, s%d, 5" % sW)
        e("v_add_u32 v28, s3, v23")
        e("v_mul_u32_u24 v10, 112, v28")
        e("v_mul_u32_u24 v28, 14336, v22")
        e("v_add_u32 v10, v10, v28")
        e("v_add_u32 v10, %d, v10" % SCR)
        e("v_bfe_u32 v28, v0, 2, 2")
        e("v_lshl_add_u32 v28, v22, 3, v28")
        e("v_mul_u32_u24 v11, 112, v28")
        e("v_and_b32 v28, 3, v0")
        e("v_lshl_add_u32 v11, v28, 3, v11")
        e("s_mul_i32 s3, s%d, 14336" % sW)
        e("s_add_u32 s3, s3, %d" % SCR)
        e("v_add_u32 v11, s3, v11")
        e("v_mul_u32_u24 v12, 144, v23")
        e("v_lshl_add_u32 v12, v22, 4, v12")
    def late():
        e("s_mul_i32 s%d, s%d, 5184" % (95, sS))
        e("v_lshlrev_b32 v110, 2, v29")
        for i in range(6):
            e("buffer_load_dword v%d, v110, s[%d:%d], s%d offen offset:%d" % (84 + i, SPHI, SPHI + 3, 95, (i % 4) * 1024) if i < 4 else
              "buffer_load_dword v%d, v109, s[%d:%d], s%d offen offset:%d" % (84 + i, SPHI, SPHI + 3, 95, (i % 4) * 1024), "phi")
            if i == 0: e("v_add_u32 v109, 4096, v110")
        if TOUCH:
            e("buffer_load_dword v13, v9, s[%d:%d], s%d offen offset:%d %s" % (SW1, SW1 + 3, sQ, 1152, tf))
            e("buffer_load_dword v13, v9, s[%d:%d], s%d offen offset:%d %s" % (SW1, SW1 + 3, sQ, 2304, tf))
    import re
    sv = (g.lines, list(g.vm), list(g.lg)); g.lines = []
    early()
    fill = [re.sub(r"\bs3\b", "s96", re.sub(r"\bs%d\b" % sOFF, "s95", l.strip())) for l in g.lines]
    g.lines, g.vm, g.lg = sv
    pipe.qthr = 3
    prologue(g, pipe, afterbar=late, fill=fill, var=True, nfirst=opt.get('anfirst', 9))
    g.wait_vm("phi")
    for i in range(6): e("ds_write_b32 v%d, v%d" % (90 + i, 84 + i))
    e("v_and_b32 v28, 1, v0")
    e("v_cmp_eq_u32 vcc, 1, v28")
    e("v_and_b32 v28, 2, v0")
    e("v_cmp_eq_u32 s[54:55], 2, v28")
    e("v_lshrrev_b32 v28, 2, v23")
    e("v_lshl_add_u32 v28, v28, 4, v23")
    e("v_lshlrev_b32 v28, 2, v28")
    for tt in range(2):
        d = 96 + 4 * tt
        e("v_cndmask_b32 v%d, v%d, v%d, vcc" % (d, d, d + 1))
        e("v_cndmask_b32 v%d, v%d, v%d, vcc" % (d + 2, d + 2, d + 3))
        e("v_cndmask_b32 v%d, v%d, v%d, s[54:55]" % (d, d, d + 2))
        e("ds_bpermute_b32 v%d, v28, v%d" % (16 + tt, d))
    e("s_mov_b32 s%d, 0x3ae38e39" % sT)
    e("v_mov_b32 v30, 0x3727c5ac")
    e("s_waitcnt lgkmcnt(0)")
    for tt in range(2): e("v_fma_f32 v%d, v%d, s%d, v30" % (16 + tt, 16 + tt, sT))
    for tt in range(2): e("v_accvgpr_write_b32 a%d, v%d" % (240 + tt, 16 + tt))
    for tt in range(2): e("v_rcp_f32 v%d, v%d" % (64 + tt, 16 + tt))
    for tt in range(2): e("v_rsq_f32 v%d, v%d" % (16 + tt, 16 + tt))
    e("s_lshl_b32 s%d, s%d, 2" % (sT, sR))
    e("s_add_u32 s%d, s%d, s%d" % (sT, sT, sW))
    e("s_lshl_b32 s%d, s%d, 7" % (sT, sT))
    e("s_add_u32 s%d, s%d, 0x%x" % (sT, sT, WS_RS2))
    e("s_cmp_eq_u32 s%d, 0" % sS)
    e("s_cselect_b32 s%d, 16, 0" % sT2)
    e("v_cmp_gt_u32 vcc, s%d, v0" % sT2)
    e("v_lshlrev_b32 v28, 2, v0")
    e("v_mov_b32 v30, 0x%x" % OOB)
    e("v_cndmask_b32 v28, v30, v28, vcc")
    for tt in range(2): e("buffer_store_dword v%d, v28, s[%d:%d], s%d offen offset:%d" % (64 + tt, SWS, SWS + 3, sT, 64 * tt))
    for tt in range(2): e("v_mul_f32 v%d, 0x3fb8aa3b, v%d" % (14 + tt, 16 + tt))
    g.stamp()
    PKK = [112, 124]; P = [136, 156]; ROW = [176, 204]; E = 232; FA = 176
    def touch(sec): return "buffer_load_dword v13, v9, s[%d:%d], s%d offen offset:%d %s" % (SW1, SW1 + 3, sQ, sec * 1152, tf)
    def head(rho):
        e("s_nop 3")
        for tt in range(2):
            for i in (10, 11): e("v_mov_b32 v%d, 0" % (PKK[tt] + i))
        for tt in range(2): put(g, pack20(ACC + tt * 20, PKK[tt]))
        g.wait_lg(("phf", rho))
        V = ["v_mov_b32 v28, 0x3f80"]
        for tt in range(2):
            s = ACC + (2 + tt) * 20
            put(g, ["v_pk_mul_f32 %s, %s, v[16:17] op_sel:[0,%d] op_sel_hi:[1,%d]" % (vr(s + i, 2), vr(s + i, 2), tt, tt) for i in range(0, 20, 2)])
            V += pack20(s, ROW[tt] + 18)
            V += ["v_cndmask_b32 v%d, v%d, v28, s[%d:%d]" % (ROW[tt] + 18, ROW[tt] + 18, sODD, sODD + 1),
                  "v_cndmask_b32 v%d, v28, v%d, s[%d:%d]" % (ROW[tt] + 27, ROW[tt] + 27, sODD, sODD + 1)]
        e("s_nop 0")
        weave(g, phi_mfma(PKK, P, FA), V)
    def post(rho):
        L = []
        for tt in range(2):
            L += softmax(P[tt], ROW[tt], tt, E)
            L += [("ds_write_b128 v10, %s offset:%d" % (vr(ROW[tt] + 4 * i, 4), tt * 16 * 112 + 16 * i), ("sw", rho)) for i in range(7)]
        L += ["v_cmp_eq_u32 vcc, 0, v22", "v_cmp_gt_u32 s[54:55], 4, v23", "v_mov_b32 v28, 0x%x" % OOB,
              "s_add_u32 s%d, s%d, %d" % (sT, sKVP, rho * 4 * 16 * 2880),
              "v_cndmask_b32 v25, v28, v12, vcc", "v_cndmask_b32 v26, v28, v12, s[54:55]", "v_cndmask_b32 v27, v28, v25, s[54:55]"]
        L.append(Hook(before=lambda: g.wait_lg(("sw", rho))))
        KF = 136
        for kk in range(4):
            for f in range(5):
                col = 32 * f if f < 3 else 72 + 32 * (f - 3)
                d = KF + (kk * 5 + f) * 4
                L.append(("ds_read_b64_tr_b16 %s, v11 offset:%d" % (vr(d, 2), kk * 32 * 112 + col), ("kr", rho, kk)))
                L.append(("ds_read_b64_tr_b16 %s, v11 offset:%d" % (vr(d + 2, 2), kk * 32 * 112 + col + 4 * 112), ("kr", rho, kk)))
        L.append(Delay(2))
        L.append(c1(lambda: g.wait_lg(("kr", rho, 3))))
        for kk in range(4):
            for a in range(3):
                for b in range(2):
                    L.append(mfma(vr(112 + (a * 2 + b) * 4, 4), vr(KF + (kk * 5 + a) * 4, 4), vr(KF + (kk * 5 + 3 + b) * 4, 4), "0" if kk == 0 else None))
        L.append(Delay(3)); L.append("s_nop 0")
        for a in range(3):
            for b in range(2):
                vo = {(0, 0): 12, (1, 0): 25, (0, 1): 26, (1, 1): 27}[(int(a == 2), b)]
                L.append(("buffer_store_dwordx4 %s, v%d, s[%d:%d], s%d offen offset:%d sc1" % (vr(112 + (a * 2 + b) * 4, 4), vo, SWS, SWS + 3, sT, b * 2304 + a * 64), "kvst"))
        return L
    DB, DQ = opt.get("dens", [2, 6])
    APZ = opt.get("apause", 40)
    pipe.run(0, 18, {40: flag_lane_offsets(250, 28) + [lambda: flag_issue(g, 28, 250, None), Delay(30), Hook(before=lambda: flag_check(g, 28, 250, None, 0))] + phi_frag_reads(0, FA, ("phf", 0))}, lagok=False)
    g.stamp()
    if TOUCH: e(touch(1)); e(touch(2))
    head(0)
    g.stamp()
    pipe.run(18, 36, {2: [Dens(DB)] + post(0) + phi_frag_reads(1, FA, ("phf", 1)) + [Mark("postA")]}, lagok=False)
    g.stamp()
    if TOUCH: e(touch(0))
    head(1)
    g.stamp()
    L1 = ["s_mul_i32 s96, s%d, 25" % sW, "v_add_u32 v28, s96, v0", "v_mul_u32_u24 v29, 6554, v28", "v_lshrrev_b32 v29, 16, v29",
          "v_mul_u32_u24 v31, 10, v29", "v_sub_u32 v31, v28, v31", "s_and_b32 s96, s%d, 1" % sR, "s_mul_i32 s96, s96, 10",
          "v_add_u32 v29, s96, v29", "v_cmp_gt_u32 vcc, 25, v0", "v_cmp_gt_u32 s[54:55], 9, v31",
          "v_mul_u32_u24 v24, 144, v29", "v_lshl_add_u32 v24, v31, 4, v24", "v_mul_u32_u24 v25, 80, v29", "v_lshl_add_u32 v25, v31, 3, v25",
          "v_mov_b32 v28, 0x%x" % OOB, "v_cndmask_b32 v24, v28, v24, vcc", "v_cndmask_b32 v24, v28, v24, s[54:55]", "v_cndmask_b32 v12, v28, v25, vcc",
          "s_lshl_b32 s96, s%d, 3" % sS, "s_lshr_b32 s95, s%d, 1" % sR, "s_add_u32 s96, s96, s95",
          "s_mul_i32 s%d, s96, %d" % (sT, 16 * 2880), "s_add_u32 s%d, s%d, 0x%x" % (sT, sT, WS_KVP),
          "s_mul_i32 s95, s96, 1600", "s_add_u32 s95, s95, 0x%x" % WS_KVF]
    L1L = []
    for p in range(16):
        L1L.append(("buffer_load_dwordx4 %s, v24, s[%d:%d], s%d offen sc1" % (vr(160 + 4 * p, 4), SWS, SWS + 3, sT), ("l1", p)))
        if p < 15: L1L.append("s_add_u32 s%d, s%d, 2880" % (sT, sT))
    Lq = [Dens(DQ)] + post(1) + [Mark("postB"), Dens(2)] + L1 + [Dens(0), Delay(opt.get("d1", 10)),
          Hook(before=lambda: g.wait_vm("kvst"), after=lambda: signal(g, 28, 20, 63, 0)), Mark("sigA"), Dens(1)] + phi_frag_reads(0, FA, ("phf", 2))
    Lq += [Delay(opt.get("d2", 8)), lambda: flag_issue(g, 28, 250, sCNT), Mark("issA"), Delay(opt.get("d3", 12)), Hook(before=lambda: flag_check(g, 28, 250, sCNT, 0xffff)), Mark("chkA"), Dens(2)] + L1L + [Mark("l1")]
    pipe.run(36, 54, {2: Lq}, lagok=False)
    if opt.get("verbose"): print(pipe.when)
    g.stamp()
    PQ = [[112, 124], [136, 148]]; PHQ = ACC; E = 164
    KVL = SCR; KZ = SCR + 13312
    put(g, phi_frag_reads(1, 0, ("phf", 3)))
    def packq(rho):
        L = []
        for tt in range(2):
            L += ["v_mov_b32 v%d, 0" % (PQ[rho][tt] + i) for i in (10, 11)] + pack20(ACC + (rho * 2 + tt) * 20, PQ[rho][tt])
        return L
    put(g, packq(0))
    g.wait_lg(("phf", 2))
    S = [lambda: g.wait_vm(("l1", 15))]
    for p in range(1, 16): S += ["v_add_f32 v%d, v%d, v%d" % (160 + i, 160 + i, 160 + 4 * p + i) for i in range(4)]
    S += ["v_cvt_pk_bf16_f32 v160, v160, v161", "v_cvt_pk_bf16_f32 v161, v162, v163",
          ("buffer_store_dwordx2 v[160:161], v12, s[%d:%d], s95 offen sc1" % (SWS, SWS + 3), "kvf")]
    blk = lambda rho: [ACC + (rho * 2) * 20, ACC + (rho * 2 + 1) * 20]
    weave(g, phi_mfma(PQ[0], blk(0), FA), packq(1) + [lambda: g.wait_lg(("phf", 3))])
    weave(g, phi_mfma(PQ[1], blk(1), 0), S)
    put(g, softmax(blk(0)[0], blk(0)[0], 0, E))
    g.wait_vm("kvf"); e("s_barrier"); signal(g, 28, 20, 63, 512)
    e("s_lshl_b32 s3, s%d, 6" % sW)
    e("v_add_u32 v28, s3, v0")
    e("v_lshlrev_b32 v224, 4, v28")
    e("v_lshlrev_b32 v225, 3, v28")
    e("v_add_u32 v225, %d, v225" % KZ)
    e("v_mov_b32 v226, 0"); e("v_mov_b32 v227, 0")
    e("ds_write_b64 v225, v[226:227]")
    e("v_cmp_gt_u32 vcc, 32, v28")
    e("v_mov_b32 v230, 0x%x" % OOB)
    e("v_add_u32 v231, %d, v224" % KVL)
    e("v_cndmask_b32 v230, v230, v224, vcc")
    e("v_add_u32 v28, 16384, v231")
    e("v_add_u32 v248, 12288, v231")
    e("v_cndmask_b32 v248, v28, v248, vcc")
    e("s_mul_i32 s%d, s%d, 12800" % (sT2, sS))
    e("s_add_u32 s%d, s%d, 0x%x" % (sT2, sT2, WS_KVF))
    e("v_lshrrev_b32 v28, 2, v23")
    e("v_cmp_eq_u32 s[54:55], v28, v22")
    e("v_mul_u32_u24 v228, 1600, v22")
    e("v_and_b32 v28, 3, v23")
    e("v_mul_u32_u24 v28, 80, v28")
    e("v_add_u32 v228, v228, v28")
    e("v_add_u32 v228, %d, v228" % KVL)
    e("v_add_u32 v229, 6400, v228")
    e("v_mov_b32 v28, %d" % KZ)
    e("v_cndmask_b32 v228, v28, v228, s[54:55]")
    e("v_cndmask_b32 v229, v28, v229, s[54:55]")
    put(g, softmax(blk(0)[1], blk(0)[1], 1, E))
    flag_issue(g, 28, 250, 46)
    put(g, softmax(blk(1)[0], blk(1)[0], 0, E))
    g.stamp()
    flag_check(g, 28, 250, 46, 0xffff)
    e("s_barrier")
    g.stamp()
    for k in range(4):
        e("buffer_load_dwordx4 %s, v%d, s[%d:%d], s%d offen sc1" % (vr(232 + 4 * k, 4), 224 if k < 3 else 230, SWS, SWS + 3, sT2), ("kvl", k))
        if k < 3: e("s_add_u32 s%d, s%d, 4096" % (sT2, sT2))
    put(g, softmax(blk(1)[1], blk(1)[1], 1, E))
    for k in range(4):
        g.wait_vm(("kvl", k))
        e("ds_write_b128 v%d, %s offset:%d" % (231 if k < 3 else 248, vr(232 + 4 * k, 4), 4096 * k if k < 3 else 0))
    e("s_waitcnt lgkmcnt(0)")
    e("s_barrier")
    g.stamp()
    def kva(rho, to, ks):
        i = rho * 25 + to * 5 + ks
        return 4 * i if i < 36 else 176 + 4 * (i - 36)
    NUM = 112
    grp = [(rho, to) for rho in range(2) for to in range(5)]
    def kreads(k):
        rho, to = grp[k]
        return [("ds_read_b128 %s, v%d offset:%d" % (ar(kva(rho, to, ks), 4), 228 + rho, to * 320 + ks * 16), ("kva", k)) for ks in range(5)]
    def ocalc(rho):
        L = []
        for tt in range(2):
            s = NUM + (rho * 2 + tt) * 20; o = OB + 20 * tt + 10 * rho
            L += ["v_cndmask_b32 v24, v%d, v%d, s[%d:%d]" % (s + 18, s, sODD, sODD + 1), "v_add_f32 v24, 0x358637bd, v24", "v_rcp_f32 v24, v24", "s_nop 0",
                  "v_mul_f32 v24, v24, v%d" % (26 + tt)]
            if rho: L += ["v_pk_mul_f32 %s, %s, v[24:25] op_sel_hi:[1,0]" % (vr(s + i, 2), vr(s + i, 2)) for i in range(0, 20, 2)]
            else: L += ["v_mul_f32 v%d, v%d, v24" % (s + i, s + i) for i in range(20)]
            L += pack20(s, o)
            L += ["v_cndmask_b32 v%d, v%d, 0, s[%d:%d]" % (o, o, sODD, sODD + 1), "v_cndmask_b32 v%d, 0, v%d, s[%d:%d]" % (o + 9, o + 9, sODD, sODD + 1)]
        return L
    put(g, kreads(0) + kreads(1))
    for tt in range(2): e("v_accvgpr_read_b32 v%d, a%d" % (26 + tt, 240 + tt))
    oc = ocalc(0)
    for k, (rho, to) in enumerate(grp):
        g.wait_lg(("kva", k))
        ms = [mfma(vr(NUM + (rho * 2 + tt) * 20 + 4 * to, 4), ar(kva(rho, to, ks), 4), vr(PHQ + (rho * 2 + tt) * 20 + 4 * ks, 4), "0" if ks == 0 else None)
              for ks in range(5) for tt in range(2)]
        fill = kreads(k + 2) if k + 2 < 10 else []
        if k >= 6:
            n = 20 - len(fill) - 1; fill = fill + oc[:n]; oc = oc[n:]
        weave(g, ms, fill)
    put(g, oc)
    e("s_nop 7")
    put(g, ocalc(1))
    g.stamp()
    for u in range(5):
        if u % 2 == 0: e("s_add_u32 s%d, s%d, %d" % (sT, sOXB, u * 2048))
        for tt in range(2):
            e("buffer_store_dwordx4 %s, v%d, s[%d:%d], s%d offen offset:%d sc1" % (vr(OB + 20 * tt + 4 * u, 4), VST, SWS, SWS + 3, sT, ((u & 1) * 2 + tt) * 1024))
    e("s_waitcnt vmcnt(0)")
    e("s_barrier")
    signal(g, 28, 20, sCQ, 32)
    g.stamp()
```

```python
import sys, re, json
from asmlib import *
import hazard
BASE = "parallel_sum__linear_kernel_hedgehog__glu_gated_reglu__prompt"
K1 = BASE + "_kernel"
K2 = "reduce_kernel"

PSZ = 2048 * 576 * 2
WS_HX = 0x1000000
WS_OX = 0x2200000
WS_RS2 = 0x2500000
WS_KVP = 0x2510000
WS_KVF = 0x2700000
WS_FLG = 0x2780000
WS_TS = 0x2800000
WS_BYTES = 0x10000000
SX, SW1, SW2, SWS, SDBG, SPHI = 8, 12, 16, 20, 24, 28
sW, sR, sS, sT, sOFF, sM0W, sB1, sB2, sST, sT2 = 32, 33, 34, 35, 36, 37, 38, 39, 40, 41
sCNT = 52
OOB = 0x40000000
RING = 144
NB = 8

class G(Asm):
    def __init__(self, opt):
        super().__init__()
        self.opt = opt
        self.vm = []
        self.lg = []
        self.nts = 0
    def e(self, s, tag=None):
        if s.startswith(("buffer_", "global_")): self.vm.append(tag)
        if s.startswith("ds_"): self.lg.append(tag)
        super().e(s)
    def vm_n(self, tag):
        idx = [i for i, t in enumerate(self.vm) if t == tag]
        assert idx, tag
        return len(self.vm) - 1 - idx[-1]
    def wait_vm(self, tag):
        n = min(self.vm_n(tag), 63)
        self.e("s_waitcnt vmcnt(%d)" % n)
    def wait_lg(self, tag):
        idx = [i for i, t in enumerate(self.lg) if t == tag]
        n = min(len(self.lg) - 1 - idx[-1], 15)
        self.e("s_waitcnt lgkmcnt(%d)" % n)
    def stamp(self):
        if not self.opt.get("ts"): return
        e = self.e
        e("s_memtime s[90:91]"); e("s_memrealtime s[92:93]")
        e("s_waitcnt lgkmcnt(0)")
        for k, sg in enumerate((90, 92)):
            e("v_mov_b32 v30, s%d" % sg)
            e("buffer_store_dword v30, off, s[%d:%d], s94 offset:%d" % (SWS, SWS + 3, 8 * self.nts + 4 * k))
        self.nts += 1

def mfma(d, a, b, c=None):
    return "v_mfma_f32_16x16x32_bf16 %s, %s, %s, %s" % (d, a, b, d if c is None else c)

class Stage:
    def __init__(self, lo, hi, pre, dmas, frags, gate=None):
        dmas = [d if isinstance(d, list) else [d] for d in dmas]
        dmas[0] = list(pre) + dmas[0]
        self.lo, self.hi, self.dmas, self.frags, self.gate = lo, hi, dmas, frags, gate
        self.before = None; self.after = None

class Pipe:
    def __init__(self, g, stages, D=6, BE=1):
        self.g, self.st, self.D, self.BE = g, stages, D, BE
        self.next = 0
        self.safe = -1
        self.q = []
        self.open = set()
        self.fi = 0
        self.done = -1
        self.qthr = 4 * BE + 1
        self.when = {}
    def can(self, m):
        s = self.st[m]
        if s.gate is not None and s.gate not in self.open: return False
        return all(k <= self.safe for k in range(m) if self.st[k].lo < s.hi and s.lo < self.st[k].hi)
    def refill(self):
        while self.next < len(self.st) and self.can(self.next):
            for d in self.st[self.next].dmas: self.q.append([list(d), ("st", self.next)])
            self.next += 1
    def pop(self):
        if not self.q: return []
        t, tag = self.q.pop(0)
        return [(x, tag) for x in t]
    def flush(self):
        while self.q:
            for t, tag in self.pop(): self.g.e(t, tag)
    def enter(self, n, last, hook=None):
        g = self.g
        late = 0
        while any(tag[1] <= last for _, tag in self.q):
            late += 1
            for t, tg in self.pop(): g.e(t, tg)
        if late and n > 2: print("warning: %d DMA issued late for stage %d" % (late, n))
        assert self.next > last, (n, last)
        for k in range(n, last + 1):
            if self.st[k].before: self.st[k].before()
        if hook and hook.before: hook.before()
        g.wait_vm(("st", last)); g.e("s_barrier")
        if hook and hook.after: hook.after()
        for k in range(n, last + 1):
            if self.st[k].after: self.st[k].after()
        self.safe = max(self.safe, self.done)
        self.refill()
    def run(self, s0, s1, extra=None, pauses=(), groups=None, urgent=None, lagok=True):
        g, D = self.g, self.D
        WP = g.opt.get("wp", 4)
        pend = []; urg = []; urgent = urgent or {}; cur = [0]; dens = [0]
        extra = extra or {}
        fl = [(n, k, f) for n in range(s0, s1) for k, f in enumerate(self.st[n].frags)]
        if groups is None: groups = list(range(s0, s1, self.BE))
        gend = {a: (groups[i + 1] if i + 1 < len(groups) else s1) - 1 for i, a in enumerate(groups)}
        base = self.fi
        needbar = lambda j: j < len(fl) and fl[j][1] == 0 and fl[j][0] in gend
        def reads(j):
            buf = RING + 4 * ((base + j) % NB)
            for t in fl[j][2][0](buf): g.e(t, ("fr", base + j))
        def wl(i):
            w = min(i + WP - 1, len(fl) - 1)
            g.wait_lg(("fr", base + w))
            self.done = max(self.done, fl[w][0] if fl[w][1] == len(self.st[fl[w][0]].frags) - 1 else fl[w][0] - 1)
        def cost(it):
            if isinstance(it, (Mark, Dens)): return 0
            if isinstance(it, Hook): return 99
            if isinstance(it, Delay):
                if it.until is None: it.until = cur[0] + it.n
                return 0 if cur[0] >= it.until else 99
            if callable(it): return getattr(it, "cost", 2)
            if isinstance(it, list): return min(len(it), 2)
            t = it[0] if isinstance(it, tuple) else it
            return 2 if t.startswith(("buffer_", "global_", "v_mfma", "v_exp", "v_rcp")) else 1
        def emit(it, i):
            if isinstance(it, Mark): self.when[it.name] = i
            elif isinstance(it, Dens): dens[0] = it.n
            elif isinstance(it, Delay):
                if i >= len(fl): g.e("s_nop 7")
            elif isinstance(it, Hook):
                if it.before: it.before()
                g.e("s_barrier")
                if it.after: it.after()
            elif callable(it): it()
            elif isinstance(it, list):
                for x in it: g.e(x)
            elif isinstance(it, tuple): g.e(it[0], it[1])
            else: g.e(it)
        for j in range(min(D, len(fl))):
            if needbar(j): self.enter(fl[j][0], gend[fl[j][0]])
            reads(j)
        if needbar(D): self.enter(fl[D][0], gend[fl[D][0]])
        wl(0)
        since = 9
        for i, (n, k, f) in enumerate(fl):
            ms = f[1](RING + 4 * ((base + i) % NB))
            g.e(ms[0])
            if i + D < len(fl): reads(i + D)
            g.e(ms[1])
            pend += [(i, x) for x in extra.get(i, [])]; urg += urgent.get(i, [])
            since += 1; cur[0] = i
            wdue = (i + 1) % WP == 0 and i + 1 < len(fl)
            if needbar(i + 1 + D):
                if wdue: wl(i + 1)
                hook = pend.pop(0)[1] if pend and isinstance(pend[0][1], Hook) else None
                self.enter(fl[i + 1 + D][0], gend[fl[i + 1 + D][0]], hook)
                continue
            paused = any(a <= i < b for a, b in pauses)
            if urg and not wdue:
                slots = 2
                while urg and cost(urg[0]) <= slots:
                    it = urg.pop(0); slots -= cost(it); emit(it, i)
                continue
            used = False
            if self.q and len(self.q[0][0]) > 1:
                if wdue: wl(i + 1)
                while len(self.q[0][0]) > 1: g.e(self.q[0][0].pop(0))
                used = True
            elif self.q and not wdue and not paused and since >= (2 if len(self.q) > self.qthr else self.g.opt.get("dcad", 3)):
                it = self.q.pop(0); g.e(it[0][0], it[1]); since = 0
                used = True
            if used and not dens[0]: continue
            slots = 0 if used else 2
            if wdue and not used: wl(i + 1); slots = 1
            if dens[0]: slots += dens[0]
            elif lagok and pend and i - pend[0][0] > g.opt.get("lag", 30): slots += 1
            while pend and cost(pend[0][1]) <= slots:
                it = pend.pop(0)[1]; slots -= cost(it); emit(it, i)
        for it in urg + [x[1] for x in pend]: emit(it, len(fl))
        self.fi = base + len(fl)
    def drained(self, upto):
        self.safe = max(self.safe, upto); self.refill()

class Mark:
    def __init__(self, name): self.name = name
class Hook:
    def __init__(self, before=None, after=None): self.before, self.after = before, after
class Delay:
    def __init__(self, n): self.n = n; self.until = None
class Dens:
    def __init__(self, n): self.n = n

def group_scc(ops):
    out = []
    for op in ops:
        if isinstance(op, str) and op.startswith("s_cselect"): out[-1] = [out[-1], op]
        else: out.append(op)
    return out

def spread(ops, lo, hi, extra):
    ops = group_scc(ops); n = hi - lo
    for k, op in enumerate(ops):
        extra.setdefault(lo + k * n // len(ops), []).append(op)

def lane_consts(g):
    e = g.e
    e("v_lshrrev_b32 v22, 4, v0")
    e("v_and_b32 v23, 15, v0")

def prologue(g, pipe, XV=112, early=None, afterbar=None, fill=(), var=False, nfirst=8):
    e, opt = g.e, g.opt
    xf = opt.get("xflags", "")
    e("v_lshrrev_b32 v104, 3, v0")
    e("v_mul_u32_u24 v104, 1152, v104")
    e("v_and_b32 v105, 7, v0")
    e("v_xor_b32 v105, v105, v22")
    e("v_lshl_add_u32 v104, v105, 4, v104")
    e("v_xor_b32 v105, 64, v104")
    e("s_lshl_b32 s%d, s%d, 2" % (sT, sR))
    e("s_add_u32 s%d, s%d, s%d" % (sT, sT, sW))
    e("s_mul_i32 s%d, s%d, %d" % (sT, sT, 32 * 1152))
    e("s_mul_i32 s%d, s%d, 36864" % (sT2, sW))
    e("s_lshr_b32 s60, s2, 6") if opt.get("xrot", 1) else e("s_mov_b32 s60, 0")
    e("s_and_b32 s3, s60, 1")
    e("s_lshl_b32 s3, s3, 6")
    e("v_xor_b32 v104, s3, v104")
    e("v_xor_b32 v105, s3, v105")
    for o in range(4):
        e("s_add_u32 s3, s60, %d" % o)
        e("s_and_b32 s3, s3, 3")
        e("s_mul_i32 s3, s3, 9216")
        e("s_add_u32 s61, s%d, s3" % sT2)
        e("s_add_u32 s62, s%d, s3" % sT)
        for j in range(9):
            e("s_add_u32 m0, s61, %d" % (j * 1024))
            e("s_add_u32 s%d, s62, %d" % (sOFF, j * 128))
            e("buffer_load_dwordx4 v%d, s[%d:%d], s%d offen %s lds" % (104 + (o & 1), SX, SX + 3, sOFF, xf), ("x", j))
            if o * 9 + j >= 6:
                for it in fill[(o * 9 + j - 6) * len(fill) // 30:(o * 9 + j - 5) * len(fill) // 30]:
                    for x in (it if isinstance(it, list) else [it]): e(x, "fill")
    if early: early()
    e("v_lshrrev_b32 v106, 3, v23")
    e("v_mul_u32_u24 v106, 9216, v106")
    e("v_and_b32 v107, 7, v23")
    e("v_lshl_add_u32 v106, v107, 7, v106")
    e("v_lshrrev_b32 v107, 1, v23")
    e("v_xor_b32 v107, v107, v22")
    e("v_lshl_add_u32 v106, v107, 4, v106")
    e("v_add_u32 v106, s%d, v106" % sT2)
    e("v_xor_b32 v107, 64, v106")
    for i in range(4): e("v_mov_b32 v%d, 0x3f803f80" % (80 + i))
    for i in (72, 73, 76, 77): e("v_mov_b32 v%d, 0" % i)
    e("v_lshrrev_b32 v108, 2, v23")
    e("v_cmp_eq_u32 vcc, v108, v22")
    e("v_and_b32 v108, 1, v23")
    e("v_lshlrev_b32 v108, 4, v108")
    e("v_mov_b32 v78, 0x3f80")
    e("v_lshlrev_b32 v78, v108, v78")
    e("v_cndmask_b32 v78, 0, v78, vcc")
    e("v_and_b32 v108, 2, v23")
    e("v_cmp_eq_u32 vcc, 0, v108")
    e("s_nop 1")
    e("v_cndmask_b32 v74, 0, v78, vcc")
    e("v_cndmask_b32 v75, v78, 0, vcc") if False else None
    e("v_sub_u32 v75, v78, v74")
    X = lambda tt, ks: XV + (ks * 2 + tt) * 4
    g.stamp()
    for j in range(10):
        if j < 9:
            g.wait_vm(("x", j))
            for ks in (2 * j, 2 * j + 1):
                for tt in range(2):
                    e("ds_read_b128 %s, v%d offset:%d" % (vr(X(tt, ks), 4), 106 + (ks & 1), tt * 18432 + j * 1024), ("xr", j))
        if j > 0:
            g.wait_lg(("xr", j - 1))
            for ks in (2 * j - 2, 2 * j - 1):
                for tt in range(2):
                    e(mfma(vr(64 + 4 * tt, 4), vr(80, 4), vr(X(tt, ks), 4), "0" if ks == 0 else None))
    e("s_barrier")
    g.stamp()
    pipe.open.add("x"); pipe.refill()
    for _ in range(nfirst):
        for t, tag in pipe.pop(): e(t, tag)
    if afterbar: afterbar()
    e("s_nop 3")
    e("s_mov_b32 s%d, 0x%08x" % (sT, 0xbae38e39))
    for i in range(8): e("v_mul_f32 v%d, s%d, v%d" % (64 + i, sT, 64 + i))
    e("s_nop 1")
    fr = [(tt, ks) for ks in range(18) for tt in range(2)]
    LAG = 2
    for k in range(len(fr) + LAG):
        if k < len(fr):
            tt, ks = fr[k]; d = 32 + 8 * (k % 4)
            e(mfma(vr(d, 4), vr(74, 4), vr(X(tt, ks), 4), vr(64 + 4 * tt, 4)))
            e(mfma(vr(d + 4, 4), vr(72, 4), vr(X(tt, ks), 4), vr(64 + 4 * tt, 4)))
        else:
            e("s_nop 1")
        if k >= opt.get("cstart", 99) and k % opt.get("cdma", 2) == 0:
            for t, tag in pipe.pop(): e(t, tag)
        if k == LAG: e("s_nop 3")
        if k >= LAG:
            tt, ks = fr[k - LAG]; d = 32 + 8 * ((k - LAG) % 4); x = X(tt, ks)
            for i in range(4): e("v_cvt_pk_bf16_f32 v%d, v%d, v%d" % (x + i, d + 2 * i, d + 2 * i + 1))
            for i in range(4): e("v_accvgpr_write_b32 a%d, v%d" % ((ks * 2 + tt) * 4 + i, x + i))
            if var: e(mfma(vr(96 + 4 * tt, 4), vr(x, 4), vr(x, 4), "0" if ks == 0 else None))
    g.stamp()

def XC(tt, ks): return ar((ks * 2 + tt) * 4, 4)

def tr_bases(g, dst, rowmul):
    e = g.e
    out = []
    out.append("v_bfe_u32 v28, v0, 2, 2")
    out.append("v_mad_u32_u24 v28, v22, %d, v28" % rowmul)
    out.append("v_lshlrev_b32 v%d, 7, v28" % dst)
    out.append("v_bfe_u32 v28, v0, 3, 2")
    out.append("v_lshl_add_u32 v%d, v28, 5, v%d" % (dst, dst))
    out.append("v_and_b32 v28, 3, v0")
    out.append("v_lshl_add_u32 v%d, v28, 3, v%d" % (dst, dst))
    for t in range(1, 4): out.append("v_xor_b32 v%d, %d, v%d" % (dst + t, 32 * t, dst))
    for grp in (1, 2):
        for t in range(4): out.append("v_add_u32 v%d, 0x%x, v%d" % (dst + 4 * grp + t, grp << 16, dst + t))
    return out

def tr_reads(bases, t, off, second):
    def f(buf):
        o2 = off + second
        assert (off >> 16) == (o2 >> 16)
        b = bases + 4 * (off >> 16) + t
        return ["ds_read_b64_tr_b16 %s, v%d offset:%d" % (ar(buf, 2), b, off & 0xffff),
                "ds_read_b64_tr_b16 %s, v%d offset:%d" % (ar(buf + 2, 2), b, o2 & 0xffff)]
    return f

def store_ops(g, acc, P, c, voff):
    sf = g.opt.get("sflags", "")
    ops = ["s_add_u32 s%d, s%d, %d" % (sT2, sST, c * 4096)]
    for tt in range(2):
        for hf in range(2):
            p = P + (tt * 2 + hf) * 4
            for k in range(2):
                s = acc + ((2 * hf + k) * 2 + tt) * 4
                ops.append("v_cvt_pk_bf16_f32 v%d, v%d, v%d" % (p + 2 * k, s, s + 1))
                ops.append("v_cvt_pk_bf16_f32 v%d, v%d, v%d" % (p + 2 * k + 1, s + 2, s + 3))
            if not g.opt.get("nostore"):
                ops.append("buffer_store_dwordx4 %s, v%d, s[%d:%d], s%d offen offset:%d %s" % (vr(p, 4), voff, SWS, SWS + 3, sT2, (tt * 2 + hf) * 1024, sf))
    return ops

sNON = 97
def flag_load(vreg, vfl, sline):
    if sline is None: return "buffer_load_dword v%d, v%d, s[%d:%d], 0 offen sc1" % (vreg, vfl, SDBG, SDBG + 3)
    return "buffer_load_dword v%d, v%d, s[%d:%d], s%d offen sc1" % (vreg, vfl, SWS, SWS + 3, sline)

def flag_issue(g, vreg, vfl, sline):
    g.e(flag_load(vreg, vfl, sline), "flag")

def flag_check(g, vreg, vfl, sline, mask, issued=True, sleep=4):
    if g.opt.get("nofl") and sline is not None: return
    e = g.e
    L = g.newlabel("L_poll"); Ld = g.newlabel("L_polld"); Lc = g.newlabel("L_pollc")
    e("s_cmp_lg_u32 s%d, 0" % sW)
    e("s_cbranch_scc1 %s" % Ld)
    e("s_mov_b32 s89, 0x20000")
    if issued:
        g.wait_vm("flag")
        e("s_branch %s" % Lc)
    g.label(L)
    Asm.e(g, flag_load(vreg, vfl, sline))
    e("s_waitcnt vmcnt(0)")
    g.label(Lc)
    if sline is None:
        e("v_readfirstlane_b32 s%d, v%d" % (sNON, vreg))
        e("s_sub_u32 s89, s89, 1")
        e("s_cmp_lg_u32 s%d, 0" % sNON)
    else:
        e("v_cmp_eq_u32 s[98:99], s%d, v%d" % (sNON, vreg))
        e("s_sub_u32 s89, s89, 1")
        e("s_and_b32 s98, s98, 0x%x" % mask)
        e("s_cmp_eq_u32 s98, 0x%x" % mask)
    e("s_cbranch_scc1 %s" % Ld)
    e("s_sleep %d" % sleep)
    e("s_cmp_lg_u32 s89, 0")
    e("s_cbranch_scc1 %s" % L)
    g.label(Ld)

def flag_lane_offsets(vfl, vtmp):
    return ["s_lshl_b32 s96, s%d, 6" % sW, "v_add_u32 v%d, s96, v0" % vtmp, "v_cmp_gt_u32 vcc, 16, v%d" % vtmp, "v_lshlrev_b32 v%d, 2, v0" % vfl,
            "v_mov_b32 v%d, 0x%x" % (vtmp, OOB), "v_cndmask_b32 v%d, v%d, v%d, vcc" % (vfl, vtmp, vfl)]

def code_pf(label, add=0):
    return "s_load_dword s88, s[86:87], @%s+%d" % (label, add)

def signal(g, vtmp, voff, sword, imm=0):
    g.e("v_mov_b32 v%d, s%d" % (vtmp, sNON))
    g.e("buffer_store_dword v%d, v%d, s[%d:%d], s%d offen offset:%d sc1" % (vtmp, voff, SWS, SWS + 3, sword, imm))

def ffn_role(g):
    e, opt = g.e, g.opt
    wf = opt.get("wflags", "")
    ACC = [32, 96]; H = 160; B1 = 9; PK = 128; VST = 21
    sI, sJ = 42, 43; sKB = 44; sHX = 47; sOX = 50; sWO = 53; sM0B = 58
    CPF = opt.get("codepf", 0)
    e("s_sub_u32 s%d, s3, 1" % sI)
    e("s_mov_b32 s%d, s%d" % (sJ, sS))
    e("s_mul_i32 s%d, s%d, 3" % (sS, sJ))
    e("s_add_u32 s%d, s%d, s%d" % (sS, sS, sI))
    e("s_cmp_ge_u32 s%d, 2" % sW)
    e("s_cselect_b32 s%d, s74, s72" % sT)
    e("s_cselect_b32 s%d, s75, s73" % sT2)
    srd(g, SW1, sT, sT2, 576 * 4608 * 2)
    e("s_lshl_b32 s%d, s%d, 12" % (sM0W, sW))
    e("s_mul_i32 s%d, s%d, %d" % (sB1, sS, 0 if opt.get("samew") else 768))
    def late_setup():
        o = []; sT = 95
        a = Asm(); srd(a, SW2, 76, 77, 4608 * 576 * 2); srd(a, SPHI, 70, 71, 576 * 576 * 2)
        o += [l.strip() for l in a.lines]
        for b in range(3):
            o += ["s_add_u32 s%d, s%d, %d" % (sT, sI, b), "s_cmp_ge_u32 s%d, 3" % sT, "s_cselect_b32 s96, 3, 0", "s_sub_u32 s%d, s%d, s96" % (sT, sT),
                  "s_mul_i32 s96, s%d, 3" % sJ, "s_add_u32 s%d, s%d, s96" % (sT, sT),
                  "s_mul_i32 s%d, s%d, %d" % (sKB + b, sT, 384 * 1152), "s_mul_i32 s96, s%d, 384" % sI, "s_add_u32 s%d, s%d, s96" % (sKB + b, sKB + b),
                  "s_mul_i32 s96, s%d, 12" % sR, "s_add_u32 s%d, s%d, s96" % (sT, sT), "s_lshl_b32 s%d, s%d, 2" % (sT, sT), "s_add_u32 s%d, s%d, s%d" % (sT, sT, sW),
                  "s_mul_i32 s%d, s%d, 24576" % (sHX + b, sT), "s_add_u32 s%d, s%d, 0x%x" % (sHX + b, sHX + b, WS_HX)]
        o += ["s_lshl_b32 s%d, s%d, 2" % (sT, sR), "s_add_u32 s%d, s%d, s%d" % (sT, sT, sJ), "s_lshl_b32 s%d, s%d, 7" % (sCNT, sT), "s_add_u32 s%d, s%d, 0x%x" % (sCNT, sCNT, WS_FLG),
              "s_lshl_b32 s63, s%d, 2" % sI, "s_add_u32 s63, s63, s%d" % sCNT,
              "s_lshl_b32 s%d, s%d, 2" % (sT, sT), "s_add_u32 s%d, s%d, s%d" % (sT, sT, sW), "s_mul_i32 s%d, s%d, 10240" % (sOX, sT), "s_add_u32 s%d, s%d, 0x%x" % (sOX, sOX, WS_OX)]
        o += ["s_mul_i32 s%d, s%d, %d" % (sST, sJ, PSZ), "s_lshl_b32 s%d, s%d, 2" % (sT, sR), "s_add_u32 s%d, s%d, s%d" % (sT, sT, sW),
              "s_mul_i32 s%d, s%d, 36864" % (sT, sT), "s_add_u32 s%d, s%d, s%d" % (sST, sST, sT),
              "s_mul_i32 s%d, s%d, 12288" % (sT, sI), "s_add_u32 s%d, s%d, s%d" % (sST, sST, sT)]
        o += ["s_mul_i32 s%d, s%d, %d" % (sB2, sJ, 144 * 1152), "s_mul_i32 s96, s%d, 384" % sI, "s_add_u32 s%d, s%d, s96" % (sB2, sB2),
              "s_lshl_b32 s%d, s%d, 10" % (sM0B, sW)]
        for i in range(5):
            d = sWO + i
            o += (["s_lshl_b32 s%d, s%d, 2" % (sT, sW), "s_add_u32 s%d, s%d, %d" % (sT, sT, i)] if i < 4 else ["s_add_u32 s%d, s%d, 16" % (sT, sW)])
            o += ["s_lshr_b32 s96, s%d, 1" % sT, "s_lshl_b32 s%d, s96, 2" % d, "s_cmp_ge_u32 s96, 5", "s_cselect_b32 s96, 52, 0",
                  "s_add_u32 s%d, s%d, s96" % (d, d), "s_and_b32 s%d, s%d, 1" % (sT, sT), "s_mul_i32 s%d, s%d, 36" % (sT, sT),
                  "s_add_u32 s%d, s%d, s%d" % (d, d, sT), "s_mul_i32 s%d, s%d, 1152" % (d, d), "s_add_u32 s%d, s%d, s%d" % (d, d, sB2)]
        return o
    stages = []
    def slot(n): return ((n + 9) % 10) * 16384
    for rho in range(6):
        acc = ACC[rho & 1]
        for st in range(9):
            n = len(stages); lo = slot(n)
            pre = ["s_add_u32 m0, s%d, %d" % (sM0W, lo), "s_add_u32 s%d, s%d, %d" % (sOFF, sB1, st * 64 * 9216 + (0 if opt.get('samew') else rho * 128))]
            dmas = ["buffer_load_dwordx4 v%d, s[%d:%d], s%d offen offset:%d %s lds" % (1 + i, SW1, SW1 + 3, sOFF, i * 1024, wf) for i in range(4)]
            frags = []
            for kk in range(2):
                ks = 2 * st + kk
                for t in range(4):
                    for mat in range(2):
                        def mf(buf, ks=ks, t=t, mat=mat, acc=acc):
                            order = (0, 1) if mat == 0 else (1, 0)
                            return [mfma(vr(acc + ((t * 2 + mat) * 2 + tt) * 4, 4), ar(buf, 4), XC(tt, ks), "0" if ks == 0 else None) for tt in order]
                        frags.append((tr_reads(B1, t, lo + mat * 8192 + kk * 4096, 512), mf))
            stages.append(Stage(lo, lo + 16384, pre, dmas, frags, None if n == 0 else "x"))
    def hreg(b, u, tt):
        k = (u * 2 + tt) * 4
        if b == 0: return vr(H + k, 4)
        if b == 1: return ar(k, 4)
        if b == 2: return ar(176 + k, 4) if u < 8 else ar(96 + k - 64, 4)
        if u < 2: return ar(128 + k, 4)
        if u < 4: return ar(240 + k - 16, 4)
        return vr(144 + k - 32, 4)
    def g2stage(b, us, cg, first):
        n = len(stages); lo = slot(n); acc = 32 + 32 * cg
        if b < 3:
            pre = ["s_add_u32 m0, s%d, %d" % (sM0W, lo), "s_add_u32 s%d, s%d, %d" % (sOFF, sKB + b, (us[0] // 4) * 128 * 1152 + cg * 128)]
            dmas = ["buffer_load_dwordx4 v%d, s[%d:%d], s%d offen offset:%d %s lds" % (5 + i, SW2, SW2 + 3, sOFF, i * 1024, wf) for i in range(4)]
        else:
            pre = []
            sel = [(sM0W, lo + i * 1024, sWO + i) for i in range(4)] if len(us) == 4 else [(sM0B, lo, sWO + 4)]
            dmas = [["s_add_u32 m0, s%d, %d" % (m, o), "s_add_u32 s%d, s%d, %d" % (sOFF, so, cg * 128),
                     "buffer_load_dwordx4 v25, s[%d:%d], s%d offen %s lds" % (SPHI, SPHI + 3, sOFF, wf)] for m, o, so in sel]
        frags = []
        for kk, u in enumerate(us):
            for t in range(4):
                def mf(buf, u=u, t=t, z=(first and kk == 0)):
                    order = (0, 1) if t % 2 == 0 else (1, 0)
                    return [mfma(vr(acc + (t * 2 + tt) * 4, 4), ar(buf, 4), hreg(b, u, tt), "0" if z else None) for tt in order]
                frags.append((tr_reads(B1, t, lo + kk * 4096, 2048), mf))
        stages.append(Stage(lo, lo + 16384, pre, dmas, frags, "x"))
    Q = lambda q: list(range(4 * q, 4 * q + 4))
    for q, cg in ((0, 0), (0, 1), (1, 0), (1, 1), (0, 2), (1, 2)): g2stage(0, Q(q), cg, q == 0)
    G2C2 = 64
    for b, q in ((0, 2), (1, 0), (1, 1), (2, 0), (2, 1), (1, 2), (2, 2)):
        for cg in range(3): g2stage(b, Q(q), cg, False)
    for cg in range(3):
        for b, us in ((3, Q(0)), (3, [4])): g2stage(b, us, cg, False)
    pipe = Pipe(g, stages, opt.get("D", 7), opt.get("BE", 2))
    TOUCH = opt.get("touch", 1); tf = opt.get("tflags", "")
    def touch1(rho):
        return ["buffer_load_dword v31, v29, s[%d:%d], s%d offen offset:%d %s" % (SW1, SW1 + 3, sB1, rho * 128, tf)]
    def touch2(b):
        if b < 3: return ["buffer_load_dword v31, v26, s[%d:%d], s%d offen %s" % (SW2, SW2 + 3, sKB + b, tf)]
        return ["buffer_load_dword v31, v26, s[%d:%d], s59 offen %s" % (SPHI, SPHI + 3, tf)]
    def touchh(k):
        return ["s_add_u32 s3, s%d, %d" % (sHX, k * 8192), "buffer_load_dword v31, v22, s[%d:%d], s3 offen" % (SWS, SWS + 3)]
    def early():
        e("v_lshrrev_b32 v28, 3, v0")
        e("s_and_b32 s%d, s%d, 1" % (sOFF, sW))
        e("s_lshl_b32 s%d, s%d, 5" % (sOFF, sOFF))
        e("v_add_u32 v1, s%d, v28" % sOFF)
        e("v_mul_u32_u24 v1, 9216, v1")
        e("v_and_b32 v2, 2, v28")
        e("v_and_b32 v3, 7, v0")
        e("v_xor_b32 v2, v2, v3")
        e("v_lshl_add_u32 v1, v2, 4, v1")
        e("v_xor_b32 v2, 64, v1")
        e("v_add_u32 v2, %d, v2" % (8 * 9216 - 1024))
        e("v_add_u32 v3, %d, v1" % (2 * (8 * 9216 - 1024)))
        e("v_add_u32 v4, %d, v2" % (2 * (8 * 9216 - 1024)))
        pipe.refill(); pipe.flush()
        if TOUCH:
            e("s_and_b32 s3, s%d, 1" % sW)
            e("s_mul_i32 s3, s3, 36")
            e("s_and_b32 s%d, s%d, 7" % (sOFF, sR))
            e("s_mul_i32 s%d, s%d, 72" % (sOFF, sOFF))
            e("s_add_u32 s3, s3, s%d" % sOFF)
            e("v_add_u32 v29, s3, v0")
            e("v_mul_u32_u24 v29, 9216, v29")
            e("v_cmp_gt_u32 vcc, 36, v0")
            e("v_mov_b32 v28, 0x%x" % OOB)
            e("s_nop 0")
            e("v_cndmask_b32 v29, v28, v29, vcc")
    vset = ["v_lshrrev_b32 v28, 3, v0", "s_lshl_b32 s96, s%d, 5" % sW, "v_add_u32 v5, s96, v28", "v_mul_u32_u24 v5, 1152, v5",
            "v_lshlrev_b32 v6, 1, v22", "v_and_b32 v7, 7, v0", "v_xor_b32 v6, v6, v7", "v_lshl_add_u32 v5, v6, 4, v5",
            "v_lshrrev_b32 v28, 5, v0", "v_bfe_u32 v7, v0, 3, 2", "v_lshl_add_u32 v28, v28, 4, v7", "v_mul_u32_u24 v25, 1152, v28", "v_lshl_add_u32 v25, v6, 4, v25"]
    vset += ["v_add_u32 v%d, %d, v5" % (5 + i, i * (8 * 1152 - 1024)) for i in range(1, 4)]
    vset += ["v_lshlrev_b32 v%d, 4, v0" % VST, "v_lshlrev_b32 v27, 9, v22", "v_add_u32 v28, s%d, v0" % sW, "v_cmp_eq_u32 vcc, 0, v28",
             "v_mov_b32 v24, 0x%x" % OOB, "v_mov_b32 v28, 0", "v_cndmask_b32 v24, v24, v28, vcc"]
    vset += ["v_mul_u32_u24 v28, 5462, v0", "v_lshrrev_b32 v28, 16, v28", "v_mul_u32_u24 v26, 12, v28", "v_sub_u32 v26, v0, v26",
             "s_mul_i32 s96, s%d, 12" % sW, "s_and_b32 s%d, s%d, 7" % (95, sR), "s_mul_i32 s%d, s%d, 48" % (95, 95), "s_add_u32 s96, s96, s95",
             "v_add_u32 v26, s96, v26", "v_mul_u32_u24 v26, 1152, v26", "v_lshl_add_u32 v26, v28, 7, v26",
             "v_cmp_gt_u32 vcc, 36, v0", "v_mov_b32 v28, 0x%x" % OOB, "s_nop 0", "v_cndmask_b32 v26, v28, v26, vcc",
             "s_cmp_ge_u32 s96, 144", "s_cselect_b32 s59, 0x%x, s%d" % (OOB, sB2)]
    prologue(g, pipe, early=early, afterbar=(lambda: [e(t) for t in touch1(0) + touch1(1)]) if TOUCH else None, nfirst=opt.get('nfirst', 8), fill=group_scc(late_setup() + vset + tr_bases(g, B1, 8)))
    hf = opt.get("hflags", "sc1")
    def epi1(rho):
        acc = ACC[rho & 1]; ops = []; sts = []
        for t in range(4):
            for tt in range(2):
                gt = acc + ((t * 2) * 2 + tt) * 4; up = acc + ((t * 2 + 1) * 2 + tt) * 4
                u = 2 * rho + t // 2
                h = H + (u * 2 + tt) * 4 + (t & 1) * 2
                for k in range(2):
                    for i in (2 * k, 2 * k + 1): ops.append("v_max_f32 v%d, 0, v%d" % (gt + i, gt + i))
                    for i in (2 * k, 2 * k + 1): ops.append("v_mul_f32 v%d, v%d, v%d" % (gt + i, gt + i, up + i))
                    ops.append("v_cvt_pk_bf16_f32 v%d, v%d, v%d" % (h + k, gt + 2 * k, gt + 2 * k + 1))
                if t & 1 and not (opt.get("nohst") and (t, tt) != (1, 0)):
                    if t == 1 and tt == 0: sts.append("s_add_u32 s%d, s%d, %d" % (sT2, sHX, rho * 4096))
                    sts.append(("buffer_store_dwordx4 %s, v%d, s[%d:%d], s%d offen offset:%d %s" % (hreg(0, u, tt), VST, SWS, SWS + 3, sT2, ((u & 1) * 2 + tt) * 1024, hf), ("hst", rho)))
        return ops + sts
    def hloads(b, us, tag):
        ops = []
        base = sOX if b == 3 else sHX + b
        if opt.get("noh"): us = list(us)[:1]
        for u in us:
            if u % 2 == 0: ops.append("s_add_u32 s%d, s%d, %d" % (sT, base, u * 2048))
            for tt in range(2):
                ops.append(("buffer_load_dwordx4 %s, v%d, s[%d:%d], s%d offen offset:%d %s" % (hreg(b, u, tt), VST, SWS, SWS + 3, sT, ((u & 1) * 2 + tt) * 1024, opt.get("hlflags", "sc1")), tag))
        return ops
    extra = {}
    urgent = {}
    add = lambda k, l: extra.setdefault(k, []).extend(l)
    addu = lambda k, l: urgent.setdefault(k, []).extend(l)
    EP = opt.get("epiw", 75)
    for rho in range(5):
        spread(epi1(rho) + [Mark("epi%d" % rho)], 144 * (rho + 1) + 3, 144 * (rho + 1) + EP, extra)
    P2 = 864; S2 = 54
    n01 = 40
    add(P2 + 3, epi1(5)[:n01] + [Mark("epi5a")] + epi1(5)[n01:] + [Mark("epi5")])
    pauses = []
    PA, PB = opt.get("pause", [0, 60])
    def event(k, ops):
        addu(k, ops); pauses.append((k + PA, k + PB))
    if TOUCH:
        for k, ops in zip(opt.get("tpos", [76, 288 + 4, 432 + 4, 720 + 2]), (touch1(2) + touch1(3), touch1(4) + touch1(5), touch2(0) + touch2(1), touch2(2) + touch2(3))):
            event(k, ops)
    add(20, flag_lane_offsets(23, 28))
    addu(144 + 110, [lambda: flag_issue(g, 28, 23, None)])
    stages[18].before = lambda: flag_check(g, 28, 23, None, 0)
    stages[46].before = lambda: g.wait_vm(("hst", 3))
    stages[46].after = lambda: signal(g, 28, 24, 63, 0)
    addu(720 + 76, [lambda: flag_issue(g, 28, 23, sCNT)])
    stages[52].before = lambda: flag_check(g, 28, 23, sCNT, 0x7)
    spread(hloads(1, Q(0), "h10") + hloads(1, Q(1), "h11"), 720 + 107, P2, urgent)
    spread(hloads(2, Q(0), "h20") + hloads(2, Q(1), "h21"), P2 + 80, P2 + 150, urgent)
    def to_g2():
        for k in range(12): e("v_sub_u32 v%d, v%d, v27" % (B1 + k, B1 + k))
    stages[S2].after = to_g2
    stages[S2 + 8].before = lambda: g.wait_vm("h10")
    stages[S2 + 10].before = lambda: g.wait_vm(("hst", 5))
    stages[S2 + 10].after = lambda: signal(g, 28, 24, 63, 16)
    stages[S2 + 12].before = lambda: g.wait_vm("h11")
    addu(P2 + 16 * 14, [lambda: flag_issue(g, 28, 23, sCNT)])
    stages[S2 + 14].before = lambda: g.wait_vm("h20")
    stages[S2 + 16].before = lambda: flag_check(g, 28, 23, sCNT, 0x70)
    spread(hloads(1, Q(2), "h12") + hloads(2, Q(2), "h22"), P2 + 16 * 16 - 5, P2 + 16 * 19, urgent)
    stages[S2 + 18].before = lambda: g.wait_vm("h21")
    stages[S2 + 20].before = lambda: g.wait_vm("h12")
    addu(P2 + 16 * 22, [lambda: flag_issue(g, 28, 23, sCNT)])
    stages[S2 + 24].before = lambda: (g.wait_vm("h22"), flag_check(g, 28, 23, sCNT, 0x100))
    addu(P2 + 16 * 24 - 5, hloads(3, range(5), "oL"))
    stages[S2 + 27].before = lambda: g.wait_vm("oL")
    C0 = P2 + 16 * 27
    for cg in range(2): add(C0 + 20 * (cg + 1) + 3, store_ops(g, 32 + 32 * cg, PK + 0, cg, VST))
    if opt.get("ts"):
        for k in (144, 288, 432, 576, 720, P2, P2 + 144, P2 + 288, C0): addu(k, [g.stamp])
    groups = list(range(0, S2 + 25, 2)) + [S2 + 27, S2 + 29, S2 + 31]
    pipe.run(0, len(stages), extra, pauses=pauses, groups=groups, urgent=urgent)
    w = pipe.when
    if opt.get("verbose"): print(w)
    assert all(w["epi%d" % r] < 144 * (r + 2) - 1 for r in range(5)), w
    assert w["epi5a"] < P2 + G2C2 - 1 and w["epi5"] < P2 + 96 - 1, w
    g.stamp()
    e("s_nop 7")
    for t in store_ops(g, 96, PK, 2, VST): e(t)
    if opt.get("ts"):
        e("s_waitcnt vmcnt(0)"); g.stamp()

def k1(g):
    e, opt = g.e, g.opt
    kernel_head(g, K1)
    e("s_getpc_b64 s[84:85]")
    e("s_cmp_ge_u32 s2, 256")
    e("s_cbranch_scc1 L_k1_end")
    e("s_load_dwordx8 s[64:71], s[0:1], 0")
    e("s_load_dwordx4 s[72:75], s[0:1], 40")
    e("s_load_dwordx2 s[76:77], s[0:1], 56")
    e("s_load_dwordx4 s[80:83], s[0:1], 72")
    if opt.get("vpf", 1):
        e("s_lshr_b32 s3, s2, 3")
        e("s_lshl_b32 s3, s3, 12")
        e("v_lshrrev_b32 v2, 3, v0")
        e("v_lshlrev_b32 v2, 7, v2")
        e("v_add_u32 v2, s3, v2")
        e("v_min_u32 v2, L_k1_end-%s, v2" % K1)
        e("global_load_dword v255, v2, s[84:85]")
    e("v_lshrrev_b32 v1, 6, v0")
    e("v_and_b32 v0, 63, v0")
    e("v_readfirstlane_b32 s%d, v1" % sW)
    lane_consts(g)
    e("s_and_b32 s%d, s2, 1" % sR)
    e("s_lshl_b32 s%d, s%d, 3" % (sR, sR))
    e("s_bfe_u32 s%d, s2, 0x30003" % sT)
    e("s_or_b32 s%d, s%d, s%d" % (sR, sR, sT))
    e("s_bfe_u32 s%d, s2, 0x20001" % sS)
    e("s_lshr_b32 s3, s2, 6")
    if opt.get("ts"):
        e("s_lshl_b32 s94, s2, 2"); e("s_add_u32 s94, s94, s%d" % sW); e("s_lshl_b32 s94, s94, 8"); e("s_add_u32 s94, s94, 0x%x" % WS_TS)
    e("s_lshr_b32 s86, s2, 3")
    e("s_cmp_ge_u32 s86, 8")
    e("s_cselect_b32 s87, 8, 0")
    e("s_sub_u32 s86, s86, s87")
    e("s_lshl_b32 s86, s86, 2")
    e("s_add_u32 s86, s86, s%d" % sW)
    e("s_lshl_b32 s86, s86, 6")
    e("s_add_u32 s86, s84, s86")
    e("s_addc_u32 s87, s85, 0")
    e("s_waitcnt lgkmcnt(0)")
    srd(g, SX, 64, 65, PSZ)
    wb = opt.get("wsbase", 0)
    if wb:
        e("s_add_u32 s82, s82, 0x%x" % wb); e("s_addc_u32 s83, s83, 0")
    srd(g, SWS, 82, 83, WS_BYTES - wb)
    srd(g, SDBG, 80, 81, 256)
    e("s_or_b32 s%d, s2, s%d" % (sT, sW))
    e("s_cbranch_scc1 L_nonce_done")
    e("s_memrealtime s[98:99]")
    e("s_waitcnt lgkmcnt(0)")
    e("v_mov_b32 v2, s98")
    e("v_or_b32 v2, 1, v2")
    Asm.e(g, "buffer_store_dword v2, off, s[%d:%d], 0 sc1" % (SDBG, SDBG + 3))
    g.label("L_nonce_done")
    g.stamp()
    e("s_cmp_eq_u32 s3, 0")
    e("s_cbranch_scc1 %s" % ("L_k1_end" if opt.get("noatt") else "L_att"))
    sv = (list(g.vm), list(g.lg), g.nts)
    ffn_role(g)
    e("s_endpgm")
    g.vm, g.lg, g.nts = sv
    g.raw(".p2align 6")
    g.label("L_att")
    import att
    att.att_role(g)
    g.label("L_k1_end")
    e("s_endpgm")

def k2(g):
    e, opt = g.e, g.opt
    g.vm = []; g.lg = []
    kernel_head(g, K2)
    lf = opt.get("k2flags", "")
    e("s_cmp_ge_u32 s2, 256")
    e("s_cbranch_scc1 L_k2_end")
    if opt.get("ts"): e("s_memrealtime s[32:33]")
    e("s_load_dwordx2 s[4:5], s[0:1], 0")
    e("s_load_dwordx2 s[6:7], s[0:1], 64")
    e("s_load_dwordx2 s[24:25], s[0:1], 80")
    e("v_lshrrev_b32 v1, 6, v0")
    e("v_and_b32 v0, 63, v0")
    e("v_readfirstlane_b32 s3, v1")
    e("s_mul_i32 s26, s2, 9")
    e("s_add_u32 s26, s26, s3")
    e("s_lshl_b32 s27, s26, 10")
    e("v_lshlrev_b32 v1, 4, v0")
    e("s_waitcnt lgkmcnt(0)")
    wb = opt.get("wsbase", 0)
    if wb:
        e("s_add_u32 s24, s24, 0x%x" % wb); e("s_addc_u32 s25, s25, 0")
    srd(g, 16, 24, 25, WS_BYTES - wb)
    for p in range(4):
        e("buffer_load_dwordx4 %s, v1, s[16:19], s27 offen %s" % (vr(16 + 4 * p, 4), lf), ("p", p))
        if p < 3: e("s_add_u32 s27, s27, %d" % PSZ)
    srd(g, 8, 4, 5, PSZ)
    srd(g, 12, 6, 7, PSZ)
    e("s_lshr_b32 s28, s26, 2")
    e("s_mul_i32 s29, s28, 7282")
    e("s_lshr_b32 s29, s29, 16")
    e("s_mul_i32 s30, s29, 9")
    e("s_sub_u32 s30, s28, s30")
    e("s_lshl_b32 s29, s29, 5")
    e("s_bfe_u32 s31, s26, 0x10001")
    e("s_lshl_b32 s31, s31, 4")
    e("s_add_u32 s29, s29, s31")
    e("s_lshl_b32 s30, s30, 7")
    e("s_and_b32 s31, s26, 1")
    e("s_lshl_b32 s31, s31, 6")
    e("s_add_u32 s30, s30, s31")
    e("v_and_b32 v2, 15, v0")
    e("v_add_u32 v2, s29, v2")
    e("v_lshlrev_b32 v3, 2, v2")
    e("s_mov_b32 s31, 0x%x" % WS_RS2)
    e("buffer_load_dword v5, v3, s[16:19], s31 offen", "rs")
    e("v_mul_u32_u24 v2, 1152, v2")
    e("v_bfe_u32 v3, v0, 4, 1")
    e("v_lshl_add_u32 v2, v3, 5, v2")
    e("v_lshrrev_b32 v3, 5, v0")
    e("v_lshl_add_u32 v2, v3, 4, v2")
    e("buffer_load_dwordx4 v[12:15], v2, s[8:11], s30 offen", "x")
    e("s_mov_b32 s20, 0x3f80")
    e("s_mov_b32 s21, 0x3f800000")
    for i in range(8): e("v_mov_b32 v%d, 0" % (80 + i))
    for p in range(4):
        g.wait_vm(("p", p))
        acc = 80
        for i in range(4):
            e("v_dot2c_f32_bf16 v%d, s20, v%d" % (acc + 2 * i, 16 + 4 * p + i))
            e("v_dot2c_f32_bf16 v%d, s21, v%d" % (acc + 2 * i + 1, 16 + 4 * p + i))
    e("s_waitcnt vmcnt(0)")
    e("s_nop 2")
    for i in range(8): e("v_mul_f32 v%d, v%d, v5" % (80 + i, 80 + i))
    e("s_nop 1")
    for i in range(4): e("v_permlane16_swap_b32 v%d, v%d" % (80 + i, 84 + i))
    for i in range(4):
        e("v_lshlrev_b32 v6, 16, v%d" % (12 + i))
        e("v_and_b32 v7, 0xffff0000, v%d" % (12 + i))
        e("v_add_f32 v%d, v%d, v6" % (80 + 2 * i, 80 + 2 * i))
        e("v_add_f32 v%d, v%d, v7" % (81 + 2 * i, 81 + 2 * i))
        e("v_cvt_pk_bf16_f32 v%d, v%d, v%d" % (8 + i, 80 + 2 * i, 81 + 2 * i))
    e("buffer_store_dwordx4 v[8:11], v2, s[12:15], s30 offen")
    if opt.get("ts"):
        e("s_waitcnt vmcnt(0)"); e("s_memrealtime s[34:35]"); e("s_waitcnt lgkmcnt(0)")
        e("v_mov_b32 v30, s32"); e("v_mov_b32 v31, s34"); e("v_mov_b32 v29, 0")
        e("s_lshl_b32 s26, s26, 3"); e("s_add_u32 s26, s26, 0x%x" % (WS_TS + 0x100000))
        e("buffer_store_dwordx2 v[30:31], v29, s[16:19], s26 offen")
    g.label("L_k2_end")
    e("s_endpgm")

VOP3ONLY = ("v_mfma", "v_pk_", "v_fma_f32", "v_cvt_pk_bf16", "v_accvgpr_read", "v_accvgpr_write", "v_max3", "v_min3", "v_lshl_add", "v_add_lshl", "v_mad_u32",
            "v_bfe", "v_add3", "v_mul_lo", "v_mul_hi", "v_lshl_or", "v_and_or", "v_readlane", "v_perm_b32")
NOWIDE = ("v_readfirstlane", "v_permlane", "v_dot2c", "v_nop")
def has_lit(s):
    for t in re.split(r"[ ,]+", s)[1:]:
        if re.match(r"^-?(0x[0-9a-f]+|\d+)$", t):
            v = int(t, 0)
            if not (-16 <= v <= 64) and v not in (0x3f800000, 0x3f000000, 0x40000000, 0x40800000, 0xbf800000, 0xbf000000, 0xc0000000, 0xc0800000): return True
        if t.startswith("L_"): return not s.startswith(("s_cbranch", "s_branch"))
    return False
def isize(s):
    op = s.split()[0]
    if op.startswith(("ds_", "buffer_", "global_", "s_load", "s_mem")): return 8, False
    if op.startswith("s_"):
        if op.startswith(("s_waitcnt", "s_nop", "s_barrier", "s_sleep", "s_endpgm", "s_cbranch", "s_branch", "s_setprio", "s_getreg")): return 4, False
        return (8 if has_lit(s) else 4), False
    if op.startswith(VOP3ONLY): return 8, False
    if has_lit(s): return 8, False
    ops = [x.strip() for x in re.split(r",(?![^\[]*\])", s.split(None, 1)[1])]
    if op.startswith("v_cmp") and ops[0] != "vcc": return 8, False
    if op.startswith("v_cndmask") and ops[-1] != "vcc": return 8, False
    if len(ops) >= 3 and not ops[2].startswith("v"): return 8, False
    return 4, not op.startswith(NOWIDE)
def align_pass(lines, minrun=4):
    ins = [l.strip() for l in lines]
    out = []; par = 0
    isins = lambda l: l and not l.endswith(":") and not l.startswith((".", ";"))
    n = len(ins)
    def nxt(i):
        i += 1
        while i < n and not isins(ins[i]):
            if ins[i].startswith(".p2align"): return None
            i += 1
        return i if i < n else None
    for i, l in enumerate(ins):
        if not isins(l):
            if l.startswith(".p2align"): par = 0
            out.append(l); continue
        sz, flex = isize(l)
        if sz == 8: out.append(l); continue
        if par == 1: out.append(l); par = 0; continue
        j = nxt(i)
        if j is None or isize(ins[j])[0] == 4: out.append(l); par = 1; continue
        if flex:
            op, rest = l.split(None, 1); out.append(op + "_e64 " + rest); continue
        run = 0
        while j is not None and isize(ins[j])[0] == 8 and run < minrun: run += 1; j = nxt(j)
        out.append(l)
        if run >= minrun and not l.startswith(("s_branch", "s_endpgm")): out.append("s_nop 0")
        else: par = 1
    return out

LABELS = {}
def resolve(lines):
    off = 0; LABELS.clear()
    for l in lines:
        l = l.strip()
        if l.endswith(":"): LABELS[l[:-1]] = off
        elif l.startswith(".p2align"):
            a = 1 << int(l.split()[1]); off = (off + a - 1) // a * a
        elif l and not l.startswith((".", ";")):
            off += 8 if l.split()[0].endswith("_e64") else isize(l)[0]
    end = LABELS["L_k1_end"]
    def f(m):
        span = 2048 if LABELS[m.group(1)] >= LABELS["L_att"] else 6144
        return "0x%x" % (min(LABELS[m.group(1)] + int(m.group(2)), end - span) & ~3)
    return [re.sub(r"@(\w+)\+(\d+)", f, l) if l.strip().startswith("s_load") else l for l in lines]

MACROS = """.macro MA d,a,b
v_mfma_f32_16x16x32_bf16 v[\\d:\\d+3], a[\\a:\\a+3], a[\\b:\\b+3], v[\\d:\\d+3]
.endm
.macro MV d,a,b
v_mfma_f32_16x16x32_bf16 v[\\d:\\d+3], a[\\a:\\a+3], v[\\b:\\b+3], v[\\d:\\d+3]
.endm
.macro RT d,b,o
ds_read_b64_tr_b16 a[\\d:\\d+1], v\\b offset:\\o
.endm
.macro WL n
s_waitcnt lgkmcnt(\\n)
.endm
.macro CV d,a,b
v_cvt_pk_bf16_f32 v\\d, v\\a, v\\b
.endm
"""
def compress(line):
    s = line.strip()
    m = re.match(r"v_mfma_f32_16x16x32_bf16 v\[(\d+):\d+\], a\[(\d+):\d+\], ([av])\[(\d+):\d+\], v\[(\d+):\d+\]$", s)
    if m and m.group(1) == m.group(5): return "M%s %s,%s,%s" % (m.group(3).upper(), m.group(1), m.group(2), m.group(4))
    m = re.match(r"ds_read_b64_tr_b16 a\[(\d+):\d+\], v(\d+) offset:(\d+)$", s)
    if m: return "RT %s,%s,%s" % m.groups()
    m = re.match(r"s_waitcnt lgkmcnt\((\d+)\)$", s)
    if m: return "WL %s" % m.group(1)
    m = re.match(r"v_cvt_pk_bf16_f32 v(\d+), v(\d+), v(\d+)$", s)
    if m: return "CV %s,%s,%s" % m.groups()
    return s

def gen(**opt):
    g = G(opt)
    k1(g)
    k2(g)
    errs = hazard.check(g.lines)
    if errs:
        print("\n".join(errs[:40])); raise SystemExit("hazards: %d" % len(errs))
    head = open("cdna_kernels/%s.s.ref" % BASE).read().split("; Override launch")[0] if not opt.get("nohead") else ""
    out = head
    for _ in range(opt.get("k1n", 1)): out += "; @launch kernel=%s grid=(256,1,1) block=(256,1,1) lds=163840\n" % K1
    for _ in range(opt.get("k2n", 1)): out += "; @launch kernel=%s grid=(256,1,1) block=(576,1,1) lds=0\n" % K2
    out += '.amdgcn_target "amdgcn-amd-amdhsa--gfx950"\n.text\n' + MACROS
    lines = align_pass(g.lines, opt.get("minrun", 4)) if opt.get("align", 1) else g.lines
    lines = resolve(lines)
    out += "\n".join(compress(l) for l in lines) + "\n"
    out += '.section .rodata,"a"\n' + kernel_desc(K1, 512, 256) + kernel_desc(K2, 96, 96, 40)
    return out

if __name__ == "__main__":
    kw = json.loads(sys.argv[2]) if len(sys.argv) > 2 else {}
    open(sys.argv[1], "w").write(gen(**kw))
```

```python
from asmlib import *
import gen as G
from gen import *

TBL = 155648; ZER = 163328; SCR = 98304
sODD = 42
sWO = 44
sKV, sQ, sKVP, sCQ, sOXB = 49, 50, 51, 44, 45
ACC = 32

def softmax(p, o, tt, E):
    L = []; e = L.append
    e("v_max3_f32 v24, v%d, v%d, v%d" % (p, p + 1, p + 2)); e("v_min3_f32 v25, v%d, v%d, v%d" % (p, p + 1, p + 2))
    for i in range(3, 17, 2):
        e("v_max3_f32 v24, v24, v%d, v%d" % (p + i, p + i + 1)); e("v_min3_f32 v25, v25, v%d, v%d" % (p + i, p + i + 1))
    e("v_max_f32 v24, v24, v%d" % (p + 17)); e("v_min_f32 v25, v25, v%d" % (p + 17))
    e("v_pk_mul_f32 v[24:25], v[24:25], v[14:15] op_sel:[0,%d] op_sel_hi:[1,%d]" % (tt, tt))
    for i in range(0, 18, 2):
        e("v_pk_fma_f32 %s, %s, v[14:15], v[24:25] op_sel:[0,%d,0] op_sel_hi:[1,%d,0] neg_lo:[0,0,1] neg_hi:[0,0,1]" % (vr(E + i, 2), vr(p + i, 2), tt, tt))
        e("v_pk_fma_f32 %s, %s, v[14:15], v[24:25] op_sel:[0,%d,1] op_sel_hi:[1,%d,1] neg_lo:[0,1,0] neg_hi:[0,1,0]" % (vr(p + i, 2), vr(p + i, 2), tt, tt))
    for i in range(18):
        e("v_exp_f32 v%d, v%d" % (E + i, E + i))
        e("v_exp_f32 v%d, v%d" % (p + i, p + i))
    e("v_pk_add_f32 v[24:25], %s, %s" % (vr(E, 2), vr(E + 2, 2)))
    e("v_pk_add_f32 v[26:27], %s, %s" % (vr(p, 2), vr(p + 2, 2)))
    for i in range(4, 18, 2):
        e("v_pk_add_f32 v[24:25], v[24:25], %s" % vr(E + i, 2))
        e("v_pk_add_f32 v[26:27], v[26:27], %s" % vr(p + i, 2))
    e("v_add_f32 v24, v24, v25")
    e("v_add_f32 v25, v26, v27")
    e("v_rcp_f32 v24, v24")
    e("v_rcp_f32 v25, v25")
    e("s_nop 0")
    for i in range(0, 18, 2):
        e("v_pk_mul_f32 %s, %s, v[24:25] op_sel:[0,0] op_sel_hi:[1,0]" % (vr(E + i, 2), vr(E + i, 2)))
        e("v_pk_mul_f32 %s, %s, v[24:25] op_sel:[0,1] op_sel_hi:[1,1]" % (vr(p + i, 2), vr(p + i, 2)))
    for i in range(8, -1, -1): e("v_cvt_pk_bf16_f32 v%d, v%d, v%d" % (o + 9 + i, p + 2 * i, p + 2 * i + 1))
    for i in range(9): e("v_cvt_pk_bf16_f32 v%d, v%d, v%d" % (o + i, E + 2 * i, E + 2 * i + 1))
    out = []
    for x in L:
        if x.startswith("v_pk_"):
            if out and isinstance(out[-1], list): out[-1].append(x)
            else: out.append([x])
        else: out.append(x)
    for x in out:
        if isinstance(x, list): x.append("s_nop 0")
    return out

def phi_frag_reads(rho, A, tag):
    L = ["v_mov_b32 v29, v18" if rho == 0 else "v_mad_u32_u24 v29, v19, 12, v18"]
    for ks in range(3):
        for to in range(5):
            b = A + (ks * 5 + to) * 4
            L.append(("ds_read_b64_tr_b16 %s, v29 offset:%d" % (ar(b, 2), to * 8), tag))
            L.append(("ds_read_b64_tr_b16 %s, v29 offset:%d" % (ar(b + 2, 2), to * 8 + 160), tag))
        if ks < 2: L.append("v_add_u32 v29, v29, v19")
    return L

def phi_mfma(pk, P, A):
    return [mfma(vr(P[tt] + 4 * to, 4), ar(A + (ks * 5 + to) * 4, 4), vr(pk[tt] + 4 * ks, 4), "0" if ks == 0 else None)
            for ks in range(3) for to in range(5) for tt in range(2)]

def pack20(src, dst):
    return ["v_cvt_pk_bf16_f32 v%d, v%d, v%d" % (dst + i, src + 2 * i, src + 2 * i + 1) for i in range(10)]

def put(g, L):
    for it in L:
        if callable(it): it()
        elif isinstance(it, list): put(g, it)
        elif isinstance(it, tuple): g.e(it[0], it[1])
        else: g.e(it)

def weave(g, ms, fill, per=2):
    fill = list(fill)
    for m in ms:
        put(g, [m]); put(g, fill[:per]); fill = fill[per:]
    put(g, fill)

def c1(f):
    f.cost = 1
    return f

def att_role(g):
    e, opt = g.e, g.opt
    wf = opt.get("aflags", ""); TOUCH = opt.get("touch", 1); tf = opt.get("tflags", "")
    CPF = opt.get("codepf", 0)
    e("s_sub_u32 s66, s66, 2048")
    e("s_subb_u32 s67, s67, 0")
    srd(g, SW1, 66, 67, 576 * 1728 * 2 + 2048)
    srd(g, SPHI, 68, 69, 32 * 18 * 18 * 2)
    e("s_mul_i32 s%d, s%d, 3072" % (sM0W, sW))
    e("s_and_b32 s%d, s%d, 1" % (sT, sW))
    e("s_lshl_b32 s%d, s%d, 4" % (sT, sT))
    e("s_add_u32 s%d, s%d, s%d" % (sM0W, sM0W, sT))
    e("s_and_b32 s%d, s%d, 2" % (sT, sW))
    e("s_lshl_b32 s%d, s%d, 7" % (sT, sT))
    e("s_add_u32 s%d, s%d, s%d" % (sM0W, sM0W, sT))
    e("s_mul_i32 s%d, s%d, 288" % (sQ, sS))
    e("s_and_b32 s47, s%d, 0xffc0" % sQ)
    e("s_add_u32 s%d, s47, 1152" % sKV)
    e("s_lshl_b32 s%d, s%d, 7" % (sCNT, sS))
    e("s_add_u32 s%d, s%d, 0x%x" % (sCNT, sCNT, WS_FLG + 64 * 128))
    e("s_add_u32 s46, s%d, 512" % sCNT)
    e("s_lshl_b32 s63, s%d, 2" % sR)
    e("s_add_u32 s63, s63, s%d" % sCNT)
    e("s_lshl_b32 s%d, s%d, 2" % (sT, sR))
    e("s_add_u32 s%d, s%d, s%d" % (sT, sT, sS))
    e("s_lshl_b32 s%d, s%d, 7" % (sCQ, sT))
    e("s_add_u32 s%d, s%d, 0x%x" % (sCQ, sCQ, WS_FLG))
    e("s_lshl_b32 s%d, s%d, 2" % (sT, sT))
    e("s_add_u32 s%d, s%d, s%d" % (sT, sT, sW))
    e("s_mul_i32 s%d, s%d, 10240" % (sOXB, sT))
    e("s_add_u32 s%d, s%d, 0x%x" % (sOXB, sOXB, WS_OX))
    e("s_lshl_b32 s%d, s%d, 3" % (sKVP, sS))
    e("s_add_u32 s%d, s%d, s%d" % (sKVP, sKVP, sW))
    e("s_lshl_b32 s%d, s%d, 4" % (sKVP, sKVP))
    e("s_add_u32 s%d, s%d, s%d" % (sKVP, sKVP, sR))
    e("s_mul_i32 s%d, s%d, 2880" % (sKVP, sKVP))
    e("s_add_u32 s%d, s%d, 0x%x" % (sKVP, sKVP, WS_KVP))
    stages = []; SLOT = 12800; NSL = 7
    for ps in range(3):
        for ks in range(18):
            n = len(stages); lo = (n % NSL) * SLOT
            sb, add, vo = (sKV, 128 * ps, 1) if ps < 2 else (47, 0, 4)
            pre = ["s_add_u32 m0, s%d, %d" % (sM0W, lo), "s_add_u32 s%d, s%d, %d" % (sOFF, sb, ks * 32 * 3456 + add)]
            dmas = ["buffer_load_dwordx4 v%d, s[%d:%d], s%d offen offset:%d %s lds" % (vo + i, SW1, SW1 + 3, sOFF, i * 1024, wf) for i in range(3)]
            frags = []
            for sec in range(2):
                for t in range(5):
                    off = lo + sec * 1536 + 8 * t + 16 * (ps if ps < 2 else sec)
                    def rd(buf, off=off):
                        b = 7 + (off >> 16); o = off & 0xffff
                        assert o + 768 < 65536
                        return ["ds_read_b64_tr_b16 %s, v%d offset:%d" % (ar(buf, 2), b, o), "ds_read_b64_tr_b16 %s, v%d offset:%d" % (ar(buf + 2, 2), b, o + 768)]
                    def mf(buf, ks=ks, sec=sec, t=t, XC=(XC if ps else XV0)):
                        order = (0, 1) if (sec * 5 + t) % 2 == 0 else (1, 0)
                        return [mfma(vr(ACC + (sec * 2 + tt) * 20 + 4 * t, 4), ar(buf, 4), XC(tt, ks), "0" if ks == 0 else None) for tt in order]
                    frags.append((rd, mf))
            stages.append(Stage(lo, lo + SLOT, pre, dmas, frags, "x"))
    OB = 192; VST = 21
    pipe = Pipe(g, stages, opt.get("D", 7), opt.get("ABE", 2))

    def early():
        if TOUCH:
            e("v_mul_u32_u24 v28, 3641, v0")
            e("v_lshrrev_b32 v28, 16, v28")
            e("v_mul_u32_u24 v9, 18, v28")
            e("v_sub_u32 v9, v0, v9")
            e("s_mul_i32 s3, s%d, 18" % sW)
            e("s_and_b32 s%d, s%d, 7" % (sOFF, sR))
            e("s_mul_i32 s%d, s%d, 72" % (sOFF, sOFF))
            e("s_add_u32 s3, s3, s%d" % sOFF)
            e("v_add_u32 v9, s3, v9")
            e("v_mul_u32_u24 v9, 3456, v9")
            e("v_lshl_add_u32 v9, v28, 7, v9")
            e("v_add_u32 v9, 2048, v9")
            e("v_cmp_gt_u32 vcc, 54, v0")
            e("v_mov_b32 v28, 0x%x" % OOB)
            e("s_nop 0")
            e("v_cndmask_b32 v9, v28, v9, vcc")
        e("s_lshl_b32 s%d, s%d, 6" % (sOFF, sW))
        e("v_add_u32 v29, s%d, v0" % sOFF)
        for i in range(4): e("v_mov_b32 v%d, 0" % (96 + i))
        e("v_lshlrev_b32 v28, 5, v29")
        e("v_add_u32 v28, %d, v28" % TBL)
        e("ds_write_b128 v28, v[96:99]")
        e("ds_write_b128 v28, v[96:99] offset:16")
        for i in range(6):
            a = 90 + i
            e("v_add_u32 v28, %d, v29" % (256 * i))
            e("v_mul_u32_u24 v30, 7282, v28")
            e("v_lshrrev_b32 v30, 16, v30")
            e("v_mul_u32_u24 v31, 3641, v30")
            e("v_lshrrev_b32 v31, 16, v31")
            e("v_add_lshl_u32 v%d, v28, v30, 2" % a)
            e("v_mul_u32_u24 v30, 240, v31")
            e("v_add_u32 v%d, v%d, v30" % (a, a))
            e("v_and_b32 v31, 1, v31")
            e("v_mul_u32_u24 v31, 80, v31")
            e("v_add3_u32 v%d, v%d, v31, s%d" % (a, a, sT)) if False else None
            e("v_add_u32 v%d, v%d, v31" % (a, a))
            e("v_add_u32 v%d, %d, v%d" % (a, TBL, a))
        e("v_cmp_gt_u32 vcc, 16, v29")
        e("v_mov_b32 v28, 150000")
        e("s_nop 0")
        e("v_cndmask_b32 v95, v28, v95, vcc")
        e("s_lshl_b32 s3, s%d, 3" % sW)
        e("v_mov_b32 v111, 0x%x" % OOB)
        for i in range(3):
            e("v_add_u32 v28, %d, v0" % (64 * i))
            e("v_mul_u32_u24 v30, 5462, v28")
            e("v_lshrrev_b32 v30, 16, v30")
            e("v_mul_u32_u24 v31, 12, v30")
            e("v_sub_u32 v31, v28, v31")
            e("v_lshrrev_b32 v28, 3, v30")
            e("v_and_b32 v30, 7, v30")
            e("v_add_u32 v30, s3, v30")
            e("v_mul_u32_u24 v30, 3456, v30")
            e("v_lshl_add_u32 v30, v31, 4, v30")
            e("v_add_u32 v30, %d, v30" % (2048 - 1024 * i))
            e("v_lshl_add_u32 v%d, v28, 7, v30" % (4 + i))
            e("v_mul_u32_u24 v28, 1152, v28")
            e("v_add_u32 v%d, v28, v30" % (1 + i))
        e("v_mul_u32_u24 v7, 3072, v22")
        e("v_and_b32 v28, 1, v22")
        e("v_cmp_eq_u32 s[%d:%d], 1, v28" % (sODD, sODD + 1))
        e("v_lshl_add_u32 v7, v28, 4, v7")
        e("v_lshrrev_b32 v28, 1, v22")
        e("v_lshl_add_u32 v7, v28, 8, v7")
        e("v_bfe_u32 v28, v0, 2, 2")
        e("v_mul_u32_u24 v30, 192, v28")
        e("v_add_u32 v7, v7, v30")
        e("v_bfe_u32 v30, v0, 1, 1")
        e("v_mul_u32_u24 v30, 72, v30")
        e("v_add_u32 v7, v7, v30")
        e("v_and_b32 v30, 1, v0")
        e("v_lshl_add_u32 v7, v30, 5, v7")
        e("s_and_b32 s3, s%d, 63" % sQ)
        e("v_add_u32 v7, s3, v7")
        e("v_add_u32 v8, 0x10000, v7")
        e("v_mul_u32_u24 v18, 960, v22")
        e("v_mul_u32_u24 v30, 40, v28")
        e("v_add_u32 v18, v18, v30")
        e("v_add_u32 v18, %d, v18" % TBL)
        e("v_and_b32 v30, 3, v0")
        e("v_cmp_eq_u32 vcc, v30, v22")
        e("v_mov_b32 v30, %d" % ZER)
        e("v_mov_b32 v31, 320")
        e("v_cndmask_b32 v18, v30, v18, vcc")
        e("v_cndmask_b32 v19, 0, v31, vcc")
        e("v_cmp_eq_u32 vcc, 0, v29")
        e("v_lshlrev_b32 v%d, 4, v0" % VST)
        e("s_nop 0")
        e("v_cndmask_b32 v20, v111, 0, vcc") if False else None
        e("v_mov_b32 v20, 0")
        e("v_cndmask_b32 v20, v111, v20, vcc")
        e("s_lshl_b32 s3, s%d, 5" % sW)
        e("v_add_u32 v28, s3, v23")
        e("v_mul_u32_u24 v10, 112, v28")
        e("v_mul_u32_u24 v28, 14336, v22")
        e("v_add_u32 v10, v10, v28")
        e("v_add_u32 v10, %d, v10" % SCR)
        e("v_bfe_u32 v28, v0, 2, 2")
        e("v_lshl_add_u32 v28, v22, 3, v28")
        e("v_mul_u32_u24 v11, 112, v28")
        e("v_and_b32 v28, 3, v0")
        e("v_lshl_add_u32 v11, v28, 3, v11")
        e("s_mul_i32 s3, s%d, 14336" % sW)
        e("s_add_u32 s3, s3, %d" % SCR)
        e("v_add_u32 v11, s3, v11")
        e("v_mul_u32_u24 v12, 144, v23")
        e("v_lshl_add_u32 v12, v22, 4, v12")
    def late():
        e("s_mul_i32 s%d, s%d, 5184" % (95, sS))
        e("v_lshlrev_b32 v110, 2, v29")
        for i in range(6):
            e("buffer_load_dword v%d, v110, s[%d:%d], s%d offen offset:%d" % (84 + i, SPHI, SPHI + 3, 95, (i % 4) * 1024) if i < 4 else
              "buffer_load_dword v%d, v109, s[%d:%d], s%d offen offset:%d" % (84 + i, SPHI, SPHI + 3, 95, (i % 4) * 1024), "phi")
            if i == 0: e("v_add_u32 v109, 4096, v110")
        if TOUCH:
            e("buffer_load_dword v13, v9, s[%d:%d], s%d offen offset:%d %s" % (SW1, SW1 + 3, sQ, 1152, tf))
            e("buffer_load_dword v13, v9, s[%d:%d], s%d offen offset:%d %s" % (SW1, SW1 + 3, sQ, 2304, tf))
    import re
    sv = (g.lines, list(g.vm), list(g.lg)); g.lines = []
    early()
    fill = [re.sub(r"\bs3\b", "s96", re.sub(r"\bs%d\b" % sOFF, "s95", l.strip())) for l in g.lines]
    g.lines, g.vm, g.lg = sv
    pipe.qthr = 3
    prologue(g, pipe, afterbar=late, fill=fill, var=True, nfirst=opt.get('anfirst', 9))
    g.wait_vm("phi")
    for i in range(6): e("ds_write_b32 v%d, v%d" % (90 + i, 84 + i))
    e("v_and_b32 v28, 1, v0")
    e("v_cmp_eq_u32 vcc, 1, v28")
    e("v_and_b32 v28, 2, v0")
    e("v_cmp_eq_u32 s[54:55], 2, v28")
    e("v_lshrrev_b32 v28, 2, v23")
    e("v_lshl_add_u32 v28, v28, 4, v23")
    e("v_lshlrev_b32 v28, 2, v28")
    for tt in range(2):
        d = 96 + 4 * tt
        e("v_cndmask_b32 v%d, v%d, v%d, vcc" % (d, d, d + 1))
        e("v_cndmask_b32 v%d, v%d, v%d, vcc" % (d + 2, d + 2, d + 3))
        e("v_cndmask_b32 v%d, v%d, v%d, s[54:55]" % (d, d, d + 2))
        e("ds_bpermute_b32 v%d, v28, v%d" % (16 + tt, d))
    e("s_mov_b32 s%d, 0x3ae38e39" % sT)
    e("v_mov_b32 v30, 0x3727c5ac")
    e("s_waitcnt lgkmcnt(0)")
    for tt in range(2): e("v_fma_f32 v%d, v%d, s%d, v30" % (16 + tt, 16 + tt, sT))
    for tt in range(2): e("v_accvgpr_write_b32 a%d, v%d" % (240 + tt, 16 + tt))
    for tt in range(2): e("v_rcp_f32 v%d, v%d" % (64 + tt, 16 + tt))
    for tt in range(2): e("v_rsq_f32 v%d, v%d" % (16 + tt, 16 + tt))
    e("s_lshl_b32 s%d, s%d, 2" % (sT, sR))
    e("s_add_u32 s%d, s%d, s%d" % (sT, sT, sS))
    e("s_lshl_b32 s%d, s%d, 2" % (sT, sT))
    e("s_add_u32 s%d, s%d, s%d" % (sT, sT, sW))
    e("s_lshl_b32 s%d, s%d, 7" % (sT, sT))
    e("s_add_u32 s%d, s%d, 0x%x" % (sT, sT, WS_RS2))
    e("v_cmp_gt_u32 vcc, 16, v0")
    e("v_lshlrev_b32 v28, 2, v0")
    e("v_mov_b32 v30, 0x%x" % OOB)
    e("v_cndmask_b32 v28, v30, v28, vcc")
    for tt in range(2): e("buffer_store_dword v%d, v28, s[%d:%d], s%d offen offset:%d sc1" % (64 + tt, SWS, SWS + 3, sT, 64 * tt))
    for tt in range(2): e("v_mul_f32 v%d, 0x3fb8aa3b, v%d" % (14 + tt, 16 + tt))
    g.stamp()
    PKK = [112, 124]; P = [136, 156]; ROW = [176, 204]; E = 232; FA = 176
    def touch(sec): return "buffer_load_dword v13, v9, s[%d:%d], s%d offen offset:%d %s" % (SW1, SW1 + 3, sQ, sec * 1152, tf)
    def head(rho):
        e("s_nop 3")
        for tt in range(2):
            for i in (10, 11): e("v_mov_b32 v%d, 0" % (PKK[tt] + i))
        for tt in range(2): put(g, pack20(ACC + tt * 20, PKK[tt]))
        g.wait_lg(("phf", rho))
        V = ["v_mov_b32 v28, 0x3f80"]
        for tt in range(2):
            s = ACC + (2 + tt) * 20
            put(g, ["v_pk_mul_f32 %s, %s, v[16:17] op_sel:[0,%d] op_sel_hi:[1,%d]" % (vr(s + i, 2), vr(s + i, 2), tt, tt) for i in range(0, 20, 2)])
            V += pack20(s, ROW[tt] + 18)
            V += ["v_cndmask_b32 v%d, v%d, v28, s[%d:%d]" % (ROW[tt] + 18, ROW[tt] + 18, sODD, sODD + 1),
                  "v_cndmask_b32 v%d, v28, v%d, s[%d:%d]" % (ROW[tt] + 27, ROW[tt] + 27, sODD, sODD + 1)]
        e("s_nop 0")
        weave(g, phi_mfma(PKK, P, FA), V)
    def post(rho):
        L = []
        for tt in range(2):
            L += softmax(P[tt], ROW[tt], tt, E)
            L += [("ds_write_b128 v10, %s offset:%d" % (vr(ROW[tt] + 4 * i, 4), tt * 16 * 112 + 16 * i), ("sw", rho)) for i in range(7)]
        L += ["v_cmp_eq_u32 vcc, 0, v22", "v_cmp_gt_u32 s[54:55], 4, v23", "v_mov_b32 v28, 0x%x" % OOB,
              "s_add_u32 s%d, s%d, %d" % (sT, sKVP, rho * 4 * 16 * 2880),
              "v_cndmask_b32 v25, v28, v12, vcc", "v_cndmask_b32 v26, v28, v12, s[54:55]", "v_cndmask_b32 v27, v28, v25, s[54:55]"]
        L.append(Hook(before=lambda: g.wait_lg(("sw", rho))))
        KF = 136
        for kk in range(4):
            for f in range(5):
                col = 32 * f if f < 3 else 72 + 32 * (f - 3)
                d = KF + (kk * 5 + f) * 4
                L.append(("ds_read_b64_tr_b16 %s, v11 offset:%d" % (vr(d, 2), kk * 32 * 112 + col), ("kr", rho, kk)))
                L.append(("ds_read_b64_tr_b16 %s, v11 offset:%d" % (vr(d + 2, 2), kk * 32 * 112 + col + 4 * 112), ("kr", rho, kk)))
        L.append(Delay(2))
        L.append(c1(lambda: g.wait_lg(("kr", rho, 3))))
        for kk in range(4):
            for a in range(3):
                for b in range(2):
                    L.append(mfma(vr(112 + (a * 2 + b) * 4, 4), vr(KF + (kk * 5 + a) * 4, 4), vr(KF + (kk * 5 + 3 + b) * 4, 4), "0" if kk == 0 else None))
        L.append(Delay(3)); L.append("s_nop 0")
        for a in range(3):
            for b in range(2):
                vo = {(0, 0): 12, (1, 0): 25, (0, 1): 26, (1, 1): 27}[(int(a == 2), b)]
                L.append(("buffer_store_dwordx4 %s, v%d, s[%d:%d], s%d offen offset:%d sc1" % (vr(112 + (a * 2 + b) * 4, 4), vo, SWS, SWS + 3, sT, b * 2304 + a * 64), "kvst"))
        return L
    DB, DQ = opt.get("dens", [2, 6])
    APZ = opt.get("apause", 0)
    fine = {k: [g.stamp] for k in range(30, 180, 30)} if opt.get("fine") else {}
    pipe.run(0, 18, {1: xc_copies(), 110: [Dens(1)] + phi_frag_reads(0, FA, ("phf", 0)) + [Mark('pA')]}, lagok=True)
    g.stamp()
    put(g, flag_lane_offsets(250, 28)); flag_issue(g, 251, 250, None)
    if TOUCH: e(touch(1)); e(touch(2))
    head(0)
    g.stamp()
    pipe.run(18, 36, {2: [Dens(DB)] + post(0) + phi_frag_reads(1, FA, ("phf", 1)) + [Mark("postA")]}, lagok=False, urgent=fine, pauses=[(0, APZ)])
    g.stamp()
    flag_check(g, 251, 250, None, 0)
    if TOUCH: e(touch(0))
    head(1)
    g.stamp()
    L1 = ["s_mul_i32 s96, s%d, 25" % sW, "v_add_u32 v28, s96, v0", "v_mul_u32_u24 v29, 6554, v28", "v_lshrrev_b32 v29, 16, v29",
          "v_mul_u32_u24 v31, 10, v29", "v_sub_u32 v31, v28, v31", "s_and_b32 s96, s%d, 1" % sR, "s_mul_i32 s96, s96, 10",
          "v_add_u32 v29, s96, v29", "v_cmp_gt_u32 vcc, 25, v0", "v_cmp_gt_u32 s[54:55], 9, v31",
          "v_mul_u32_u24 v24, 144, v29", "v_lshl_add_u32 v24, v31, 4, v24", "v_mul_u32_u24 v25, 80, v29", "v_lshl_add_u32 v25, v31, 3, v25",
          "v_mov_b32 v28, 0x%x" % OOB, "v_cndmask_b32 v24, v28, v24, vcc", "v_cndmask_b32 v24, v28, v24, s[54:55]", "v_cndmask_b32 v12, v28, v25, vcc",
          "s_lshl_b32 s96, s%d, 3" % sS, "s_lshr_b32 s95, s%d, 1" % sR, "s_add_u32 s96, s96, s95",
          "s_mul_i32 s%d, s96, %d" % (sT, 16 * 2880), "s_add_u32 s%d, s%d, 0x%x" % (sT, sT, WS_KVP),
          "s_mul_i32 s95, s96, 1600", "s_add_u32 s95, s95, 0x%x" % WS_KVF]
    L1L = []
    for p in range(16):
        L1L.append(("buffer_load_dwordx4 %s, v24, s[%d:%d], s%d offen sc1" % (vr(160 + 4 * p, 4), SWS, SWS + 3, sT), ("l1", p)))
        if p < 15: L1L.append("s_add_u32 s%d, s%d, 2880" % (sT, sT))
    Lq = [Dens(DQ)] + post(1) + [Mark("postB"), Dens(2)] + L1 + [Dens(0), Delay(opt.get("d1", 10)),
          Hook(before=lambda: g.wait_vm("kvst"), after=lambda: signal(g, 28, 20, 63, 0)), Mark("sigA"), Dens(1)] + phi_frag_reads(0, FA, ("phf", 2))
    Lq += [Delay(opt.get("d2", 8)), lambda: flag_issue(g, 28, 250, sCNT), Mark("issA"), Delay(opt.get("d3", 12)), Hook(before=lambda: flag_check(g, 28, 250, sCNT, 0xffff)), Mark("chkA"), Dens(2)] + L1L + [Mark("l1")]
    pipe.run(36, 54, {2: Lq}, lagok=False, urgent=fine, pauses=[(0, APZ)])
    if opt.get("verbose"): print(pipe.when)
    g.stamp()
    PQ = [[112, 124], [136, 148]]; PHQ = ACC; E = 164
    KVL = SCR; KZ = SCR + 13312
    put(g, phi_frag_reads(1, 0, ("phf", 3)))
    def packq(rho):
        L = []
        for tt in range(2):
            L += ["v_mov_b32 v%d, 0" % (PQ[rho][tt] + i) for i in (10, 11)] + pack20(ACC + (rho * 2 + tt) * 20, PQ[rho][tt])
        return L
    put(g, packq(0))
    g.wait_lg(("phf", 2))
    S = [lambda: g.wait_vm(("l1", 15))]
    for p in range(1, 16): S += ["v_add_f32 v%d, v%d, v%d" % (160 + i, 160 + i, 160 + 4 * p + i) for i in range(4)]
    S += ["v_cvt_pk_bf16_f32 v160, v160, v161", "v_cvt_pk_bf16_f32 v161, v162, v163",
          ("buffer_store_dwordx2 v[160:161], v12, s[%d:%d], s95 offen sc1" % (SWS, SWS + 3), "kvf")]
    blk = lambda rho: [ACC + (rho * 2) * 20, ACC + (rho * 2 + 1) * 20]
    weave(g, phi_mfma(PQ[0], blk(0), FA), packq(1) + [lambda: g.wait_lg(("phf", 3))])
    weave(g, phi_mfma(PQ[1], blk(1), 0), S)
    put(g, softmax(blk(0)[0], blk(0)[0], 0, E))
    g.wait_vm("kvf"); e("s_barrier"); signal(g, 28, 20, 63, 512)
    e("s_lshl_b32 s3, s%d, 6" % sW)
    e("v_add_u32 v28, s3, v0")
    e("v_lshlrev_b32 v224, 4, v28")
    e("v_lshlrev_b32 v225, 3, v28")
    e("v_add_u32 v225, %d, v225" % KZ)
    e("v_mov_b32 v226, 0"); e("v_mov_b32 v227, 0")
    e("ds_write_b64 v225, v[226:227]")
    e("v_cmp_gt_u32 vcc, 32, v28")
    e("v_mov_b32 v230, 0x%x" % OOB)
    e("v_add_u32 v231, %d, v224" % KVL)
    e("v_cndmask_b32 v230, v230, v224, vcc")
    e("v_add_u32 v28, 16384, v231")
    e("v_add_u32 v248, 12288, v231")
    e("v_cndmask_b32 v248, v28, v248, vcc")
    e("s_mul_i32 s%d, s%d, 12800" % (sT2, sS))
    e("s_add_u32 s%d, s%d, 0x%x" % (sT2, sT2, WS_KVF))
    e("v_lshrrev_b32 v28, 2, v23")
    e("v_cmp_eq_u32 s[54:55], v28, v22")
    e("v_mul_u32_u24 v228, 1600, v22")
    e("v_and_b32 v28, 3, v23")
    e("v_mul_u32_u24 v28, 80, v28")
    e("v_add_u32 v228, v228, v28")
    e("v_add_u32 v228, %d, v228" % KVL)
    e("v_add_u32 v229, 6400, v228")
    e("v_mov_b32 v28, %d" % KZ)
    e("v_cndmask_b32 v228, v28, v228, s[54:55]")
    e("v_cndmask_b32 v229, v28, v229, s[54:55]")
    put(g, softmax(blk(0)[1], blk(0)[1], 1, E))
    flag_issue(g, 28, 250, 46)
    put(g, softmax(blk(1)[0], blk(1)[0], 0, E))
    g.stamp()
    flag_check(g, 28, 250, 46, 0xffff)
    e("s_barrier")
    g.stamp()
    for k in range(4):
        e("buffer_load_dwordx4 %s, v%d, s[%d:%d], s%d offen sc1" % (vr(232 + 4 * k, 4), 224 if k < 3 else 230, SWS, SWS + 3, sT2), ("kvl", k))
        if k < 3: e("s_add_u32 s%d, s%d, 4096" % (sT2, sT2))
    put(g, softmax(blk(1)[1], blk(1)[1], 1, E))
    for k in range(4):
        g.wait_vm(("kvl", k))
        e("ds_write_b128 v%d, %s offset:%d" % (231 if k < 3 else 248, vr(232 + 4 * k, 4), 4096 * k if k < 3 else 0))
    e("s_waitcnt lgkmcnt(0)")
    e("s_barrier")
    g.stamp()
    def kva(rho, to, ks):
        i = rho * 25 + to * 5 + ks
        return 4 * i if i < 36 else 176 + 4 * (i - 36)
    NUM = 112
    grp = [(rho, to) for rho in range(2) for to in range(5)]
    def kreads(k):
        rho, to = grp[k]
        return [("ds_read_b128 %s, v%d offset:%d" % (ar(kva(rho, to, ks), 4), 228 + rho, to * 320 + ks * 16), ("kva", k)) for ks in range(5)]
    def ocalc(rho):
        L = []
        for tt in range(2):
            s = NUM + (rho * 2 + tt) * 20; o = OB + 20 * tt + 10 * rho
            L += ["v_cndmask_b32 v24, v%d, v%d, s[%d:%d]" % (s + 18, s, sODD, sODD + 1), "v_add_f32 v24, 0x358637bd, v24", "v_rcp_f32 v24, v24", "s_nop 0",
                  "v_mul_f32 v24, v24, v%d" % (26 + tt)]
            if rho: L += ["v_pk_mul_f32 %s, %s, v[24:25] op_sel_hi:[1,0]" % (vr(s + i, 2), vr(s + i, 2)) for i in range(0, 20, 2)]
            else: L += ["v_mul_f32 v%d, v%d, v24" % (s + i, s + i) for i in range(20)]
            L += pack20(s, o)
            L += ["v_cndmask_b32 v%d, v%d, 0, s[%d:%d]" % (o, o, sODD, sODD + 1), "v_cndmask_b32 v%d, 0, v%d, s[%d:%d]" % (o + 9, o + 9, sODD, sODD + 1)]
        return L
    put(g, kreads(0) + kreads(1))
    for tt in range(2): e("v_accvgpr_read_b32 v%d, a%d" % (26 + tt, 240 + tt))
    oc = ocalc(0)
    for k, (rho, to) in enumerate(grp):
        g.wait_lg(("kva", k))
        ms = [mfma(vr(NUM + (rho * 2 + tt) * 20 + 4 * to, 4), ar(kva(rho, to, ks), 4), vr(PHQ + (rho * 2 + tt) * 20 + 4 * ks, 4), "0" if ks == 0 else None)
              for ks in range(5) for tt in range(2)]
        fill = kreads(k + 2) if k + 2 < 10 else []
        if k >= 6:
            n = 20 - len(fill) - 1; fill = fill + oc[:n]; oc = oc[n:]
        weave(g, ms, fill)
    put(g, oc)
    e("s_nop 7")
    put(g, ocalc(1))
    g.stamp()
    for u in range(5):
        if u % 2 == 0: e("s_add_u32 s%d, s%d, %d" % (sT, sOXB, u * 2048))
        for tt in range(2):
            e("buffer_store_dwordx4 %s, v%d, s[%d:%d], s%d offen offset:%d sc1" % (vr(OB + 20 * tt + 4 * u, 4), VST, SWS, SWS + 3, sT, ((u & 1) * 2 + tt) * 1024))
    e("s_waitcnt vmcnt(0)")
    e("s_barrier")
    signal(g, 28, 20, sCQ, 32)
    g.stamp()
```

```python
import sys, re, json
from asmlib import *
import hazard
BASE = "parallel_sum__linear_kernel_hedgehog__glu_gated_reglu__prompt"
K1 = BASE + "_kernel"
K2 = "reduce_kernel"

PSZ = 2048 * 576 * 2
WS_HX = 0x1000000
WS_OX = 0x2200000
WS_RS2 = 0x2500000
WS_KVP = 0x2510000
WS_KVF = 0x2700000
WS_FLG = 0x2780000
WS_TS = 0x2800000
WS_BYTES = 0x10000000
SX, SW1, SW2, SWS, SDBG, SPHI = 8, 12, 16, 20, 24, 28
sW, sR, sS, sT, sOFF, sM0W, sB1, sB2, sST, sT2 = 32, 33, 34, 35, 36, 37, 38, 39, 40, 41
sCNT = 52
OOB = 0x40000000
RING = 144
NB = 8

class G(Asm):
    def __init__(self, opt):
        super().__init__()
        self.opt = opt
        self.vm = []
        self.lg = []
        self.nts = 0
    def e(self, s, tag=None):
        if s.startswith(("buffer_", "global_")): self.vm.append(tag)
        if s.startswith("ds_"): self.lg.append(tag)
        super().e(s)
    def vm_n(self, tag):
        idx = [i for i, t in enumerate(self.vm) if t == tag]
        assert idx, tag
        return len(self.vm) - 1 - idx[-1]
    def wait_vm(self, tag):
        n = min(self.vm_n(tag), 63)
        self.e("s_waitcnt vmcnt(%d)" % n)
    def wait_lg(self, tag):
        idx = [i for i, t in enumerate(self.lg) if t == tag]
        n = min(len(self.lg) - 1 - idx[-1], 15)
        self.e("s_waitcnt lgkmcnt(%d)" % n)
    def stamp(self):
        if not self.opt.get("ts"): return
        e = self.e
        e("s_memtime s[90:91]"); e("s_memrealtime s[92:93]")
        e("s_waitcnt lgkmcnt(0)")
        for k, sg in enumerate((90, 92)):
            e("v_mov_b32 v30, s%d" % sg)
            e("buffer_store_dword v30, off, s[%d:%d], s94 offset:%d" % (SWS, SWS + 3, 8 * self.nts + 4 * k))
        self.nts += 1

def mfma(d, a, b, c=None):
    return "v_mfma_f32_16x16x32_bf16 %s, %s, %s, %s" % (d, a, b, d if c is None else c)

class Stage:
    def __init__(self, lo, hi, pre, dmas, frags, gate=None):
        dmas = [d if isinstance(d, list) else [d] for d in dmas]
        dmas[0] = list(pre) + dmas[0]
        self.lo, self.hi, self.dmas, self.frags, self.gate = lo, hi, dmas, frags, gate
        self.before = None; self.after = None

class Pipe:
    def __init__(self, g, stages, D=6, BE=1):
        self.g, self.st, self.D, self.BE = g, stages, D, BE
        self.next = 0
        self.safe = -1
        self.q = []
        self.open = set()
        self.fi = 0
        self.done = -1
        self.qthr = 4 * BE + 1
        self.when = {}
    def can(self, m):
        s = self.st[m]
        if s.gate is not None and s.gate not in self.open: return False
        return all(k <= self.safe for k in range(m) if self.st[k].lo < s.hi and s.lo < self.st[k].hi)
    def refill(self):
        while self.next < len(self.st) and self.can(self.next):
            for d in self.st[self.next].dmas: self.q.append([list(d), ("st", self.next)])
            self.next += 1
    def pop(self):
        if not self.q: return []
        t, tag = self.q.pop(0)
        return [(x, tag) for x in t]
    def flush(self):
        while self.q:
            for t, tag in self.pop(): self.g.e(t, tag)
    def enter(self, n, last, hook=None):
        g = self.g
        late = 0
        while any(tag[1] <= last for _, tag in self.q):
            late += 1
            for t, tg in self.pop(): g.e(t, tg)
        if late and n > 2: print("warning: %d DMA issued late for stage %d" % (late, n))
        assert self.next > last, (n, last)
        for k in range(n, last + 1):
            if self.st[k].before: self.st[k].before()
        if hook and hook.before: hook.before()
        g.wait_vm(("st", last)); g.e("s_barrier")
        if hook and hook.after: hook.after()
        for k in range(n, last + 1):
            if self.st[k].after: self.st[k].after()
        self.safe = max(self.safe, self.done)
        self.refill()
    def run(self, s0, s1, extra=None, pauses=(), groups=None, urgent=None, lagok=True):
        g, D = self.g, self.D
        WP = g.opt.get("wp", 4)
        pend = []; urg = []; urgent = urgent or {}; cur = [0]; dens = [0]
        extra = extra or {}
        fl = [(n, k, f) for n in range(s0, s1) for k, f in enumerate(self.st[n].frags)]
        if groups is None: groups = list(range(s0, s1, self.BE))
        gend = {a: (groups[i + 1] if i + 1 < len(groups) else s1) - 1 for i, a in enumerate(groups)}
        base = self.fi
        needbar = lambda j: j < len(fl) and fl[j][1] == 0 and fl[j][0] in gend
        def reads(j):
            buf = RING + 4 * ((base + j) % NB)
            for t in fl[j][2][0](buf): g.e(t, ("fr", base + j))
        def wl(i):
            w = min(i + WP - 1, len(fl) - 1)
            g.wait_lg(("fr", base + w))
            self.done = max(self.done, fl[w][0] if fl[w][1] == len(self.st[fl[w][0]].frags) - 1 else fl[w][0] - 1)
        def cost(it):
            if isinstance(it, (Mark, Dens)): return 0
            if isinstance(it, Hook): return 99
            if isinstance(it, Delay):
                if it.until is None: it.until = cur[0] + it.n
                return 0 if cur[0] >= it.until else 99
            if callable(it): return getattr(it, "cost", 2)
            if isinstance(it, list): return min(len(it), 2)
            t = it[0] if isinstance(it, tuple) else it
            return 2 if t.startswith(("buffer_", "global_", "v_mfma", "v_exp", "v_rcp")) else 1
        def emit(it, i):
            if isinstance(it, Mark): self.when[it.name] = i
            elif isinstance(it, Dens): dens[0] = it.n
            elif isinstance(it, Delay):
                if i >= len(fl): g.e("s_nop 7")
            elif isinstance(it, Hook):
                if it.before: it.before()
                g.e("s_barrier")
                if it.after: it.after()
            elif callable(it): it()
            elif isinstance(it, list):
                for x in it: g.e(x)
            elif isinstance(it, tuple): g.e(it[0], it[1])
            else: g.e(it)
        for j in range(min(D, len(fl))):
            if needbar(j): self.enter(fl[j][0], gend[fl[j][0]])
            reads(j)
        if needbar(D): self.enter(fl[D][0], gend[fl[D][0]])
        wl(0)
        since = 9
        for i, (n, k, f) in enumerate(fl):
            ms = f[1](RING + 4 * ((base + i) % NB))
            g.e(ms[0])
            if i + D < len(fl): reads(i + D)
            g.e(ms[1])
            pend += [(i, x) for x in extra.get(i, [])]; urg += urgent.get(i, [])
            since += 1; cur[0] = i
            wdue = (i + 1) % WP == 0 and i + 1 < len(fl)
            if needbar(i + 1 + D):
                if wdue: wl(i + 1)
                hook = pend.pop(0)[1] if pend and isinstance(pend[0][1], Hook) else None
                self.enter(fl[i + 1 + D][0], gend[fl[i + 1 + D][0]], hook)
                continue
            paused = any(a <= i < b for a, b in pauses)
            if urg and not wdue:
                slots = 2
                while urg and cost(urg[0]) <= slots:
                    it = urg.pop(0); slots -= cost(it); emit(it, i)
                continue
            used = False
            if self.q and len(self.q[0][0]) > 1:
                if wdue: wl(i + 1)
                while len(self.q[0][0]) > 1: g.e(self.q[0][0].pop(0))
                used = True
            elif self.q and not wdue and not paused and since >= (2 if len(self.q) > self.qthr else self.g.opt.get("dcad", 3)):
                it = self.q.pop(0); g.e(it[0][0], it[1]); since = 0
                used = True
            if used and not dens[0]: continue
            slots = 0 if used else 2
            if wdue and not used: wl(i + 1); slots = 1
            if dens[0]: slots += dens[0]
            elif lagok and pend and i - pend[0][0] > g.opt.get("lag", 30): slots += 1
            while pend and cost(pend[0][1]) <= slots:
                it = pend.pop(0)[1]; slots -= cost(it); emit(it, i)
        for it in urg + [x[1] for x in pend]: emit(it, len(fl))
        self.fi = base + len(fl)
    def drained(self, upto):
        self.safe = max(self.safe, upto); self.refill()

class Mark:
    def __init__(self, name): self.name = name
class Hook:
    def __init__(self, before=None, after=None): self.before, self.after = before, after
class Delay:
    def __init__(self, n): self.n = n; self.until = None
class Dens:
    def __init__(self, n): self.n = n

def group_scc(ops):
    out = []
    for op in ops:
        if isinstance(op, str) and op.startswith("s_cselect"): out[-1] = [out[-1], op]
        else: out.append(op)
    return out

def spread(ops, lo, hi, extra):
    ops = group_scc(ops); n = hi - lo
    for k, op in enumerate(ops):
        extra.setdefault(lo + k * n // len(ops), []).append(op)

def lane_consts(g):
    e = g.e
    e("v_lshrrev_b32 v22, 4, v0")
    e("v_and_b32 v23, 15, v0")

def prologue(g, pipe, XV=112, early=None, afterbar=None, fill=(), var=False, nfirst=8, mid=None):
    e, opt = g.e, g.opt
    xf = opt.get("xflags", "")
    e("v_lshrrev_b32 v104, 3, v0")
    e("v_mul_u32_u24 v104, 1152, v104")
    e("v_and_b32 v105, 7, v0")
    e("v_xor_b32 v105, v105, v22")
    e("v_lshl_add_u32 v104, v105, 4, v104")
    e("v_xor_b32 v105, 64, v104")
    e("s_lshl_b32 s%d, s%d, 2" % (sT, sR))
    e("s_add_u32 s%d, s%d, s%d" % (sT, sT, sW))
    e("s_mul_i32 s%d, s%d, %d" % (sT, sT, 32 * 1152))
    e("s_mul_i32 s%d, s%d, 36864" % (sT2, sW))
    e("s_lshr_b32 s60, s2, 6") if opt.get("xrot", 1) else e("s_mov_b32 s60, 0")
    e("s_and_b32 s3, s60, 1")
    e("s_lshl_b32 s3, s3, 6")
    e("v_xor_b32 v104, s3, v104")
    e("v_xor_b32 v105, s3, v105")
    for o in range(4):
        e("s_add_u32 s3, s60, %d" % o)
        e("s_and_b32 s3, s3, 3")
        e("s_mul_i32 s3, s3, 9216")
        e("s_add_u32 s61, s%d, s3" % sT2)
        e("s_add_u32 s62, s%d, s3" % sT)
        for j in range(9):
            e("s_add_u32 m0, s61, %d" % (j * 1024))
            e("s_add_u32 s%d, s62, %d" % (sOFF, j * 128))
            e("buffer_load_dwordx4 v%d, s[%d:%d], s%d offen %s lds" % (104 + (o & 1), SX, SX + 3, sOFF, xf), ("x", j))
            if mid and o * 9 + j == mid[0]: mid[1]()
            if o * 9 + j >= 6:
                for it in fill[(o * 9 + j - 6) * len(fill) // 30:(o * 9 + j - 5) * len(fill) // 30]:
                    for x in (it if isinstance(it, list) else [it]): e(x, "fill")
    if early: early()
    e("v_lshrrev_b32 v106, 3, v23")
    e("v_mul_u32_u24 v106, 9216, v106")
    e("v_and_b32 v107, 7, v23")
    e("v_lshl_add_u32 v106, v107, 7, v106")
    e("v_lshrrev_b32 v107, 1, v23")
    e("v_xor_b32 v107, v107, v22")
    e("v_lshl_add_u32 v106, v107, 4, v106")
    e("v_add_u32 v106, s%d, v106" % sT2)
    e("v_xor_b32 v107, 64, v106")
    for i in range(4): e("v_mov_b32 v%d, 0x3f803f80" % (80 + i))
    for i in (72, 73, 76, 77): e("v_mov_b32 v%d, 0" % i)
    e("v_lshrrev_b32 v108, 2, v23")
    e("v_cmp_eq_u32 vcc, v108, v22")
    e("v_and_b32 v108, 1, v23")
    e("v_lshlrev_b32 v108, 4, v108")
    e("v_mov_b32 v78, 0x3f80")
    e("v_lshlrev_b32 v78, v108, v78")
    e("v_cndmask_b32 v78, 0, v78, vcc")
    e("v_and_b32 v108, 2, v23")
    e("v_cmp_eq_u32 vcc, 0, v108")
    e("s_nop 1")
    e("v_cndmask_b32 v74, 0, v78, vcc")
    e("v_cndmask_b32 v75, v78, 0, vcc") if False else None
    e("v_sub_u32 v75, v78, v74")
    X = lambda tt, ks: XV + (ks * 2 + tt) * 4
    g.stamp()
    for j in range(10):
        if j < 9:
            g.wait_vm(("x", j))
            for ks in (2 * j, 2 * j + 1):
                for tt in range(2):
                    e("ds_read_b128 %s, v%d offset:%d" % (vr(X(tt, ks), 4), 106 + (ks & 1), tt * 18432 + j * 1024), ("xr", j))
        if j > 0:
            g.wait_lg(("xr", j - 1))
            for ks in (2 * j - 2, 2 * j - 1):
                for tt in range(2):
                    e(mfma(vr(64 + 4 * tt, 4), vr(80, 4), vr(X(tt, ks), 4), "0" if ks == 0 else None))
    e("s_barrier")
    g.stamp()
    pipe.open.add("x"); pipe.refill()
    for _ in range(nfirst):
        for t, tag in pipe.pop(): e(t, tag)
    if afterbar: afterbar()
    e("s_nop 3")
    e("s_mov_b32 s%d, 0x%08x" % (sT, 0xbae38e39))
    for i in range(8): e("v_mul_f32 v%d, s%d, v%d" % (64 + i, sT, 64 + i))
    e("s_nop 1")
    fr = [(tt, ks) for ks in range(18) for tt in range(2)]
    LAG = 2
    for k in range(len(fr) + LAG + 1):
        cv = []
        if LAG <= k < len(fr) + LAG:
            tt, ks = fr[k - LAG]; d = 32 + 8 * ((k - LAG) % 4); x = X(tt, ks)
            cv = ["v_cvt_pk_bf16_f32 v%d, v%d, v%d" % (x + i, d + 2 * i, d + 2 * i + 1) for i in range(4)]
        if k < len(fr):
            tt, ks = fr[k]; d = 32 + 8 * (k % 4)
            e(mfma(vr(d, 4), vr(74, 4), vr(X(tt, ks), 4), vr(64 + 4 * tt, 4)))
            if k == LAG: e("s_nop 3")
            for t in cv[:2]: e(t)
            e(mfma(vr(d + 4, 4), vr(72, 4), vr(X(tt, ks), 4), vr(64 + 4 * tt, 4)))
            for t in cv[2:]: e(t)
        else:
            e("s_nop 3")
            for t in cv: e(t)
        if var and k > LAG:
            tt, ks = fr[k - LAG - 1]; x = X(tt, ks)
            e(mfma(vr(96 + 4 * tt, 4), vr(x, 4), vr(x, 4), "0" if ks == 0 else None))
    g.stamp()

def XV0(tt, ks): return vr(112 + (ks * 2 + tt) * 4, 4)
def xc_copies(): return ["v_accvgpr_write_b32 a%d, v%d" % (i, 112 + i) for i in range(144)]
def XC(tt, ks): return ar((ks * 2 + tt) * 4, 4)

def tr_bases(g, dst, rowmul):
    e = g.e
    out = []
    out.append("v_bfe_u32 v28, v0, 2, 2")
    out.append("v_mad_u32_u24 v28, v22, %d, v28" % rowmul)
    out.append("v_lshlrev_b32 v%d, 7, v28" % dst)
    out.append("v_bfe_u32 v28, v0, 3, 2")
    out.append("v_lshl_add_u32 v%d, v28, 5, v%d" % (dst, dst))
    out.append("v_and_b32 v28, 3, v0")
    out.append("v_lshl_add_u32 v%d, v28, 3, v%d" % (dst, dst))
    for t in range(1, 4): out.append("v_xor_b32 v%d, %d, v%d" % (dst + t, 32 * t, dst))
    for grp in (1, 2):
        for t in range(4): out.append("v_add_u32 v%d, 0x%x, v%d" % (dst + 4 * grp + t, grp << 16, dst + t))
    return out

def tr_reads(bases, t, off, second):
    def f(buf):
        o2 = off + second
        assert (off >> 16) == (o2 >> 16)
        b = bases + 4 * (off >> 16) + t
        return ["ds_read_b64_tr_b16 %s, v%d offset:%d" % (ar(buf, 2), b, off & 0xffff),
                "ds_read_b64_tr_b16 %s, v%d offset:%d" % (ar(buf + 2, 2), b, o2 & 0xffff)]
    return f

def store_ops(g, acc, P, c, voff):
    sf = g.opt.get("sflags", "sc1" if g.opt.get("fuse", 1) else "")
    ops = ["s_add_u32 s%d, s%d, %d" % (sT2, sST, c * 4096)]
    for tt in range(2):
        for hf in range(2):
            p = P + (tt * 2 + hf) * 4
            for k in range(2):
                s = acc + ((2 * hf + k) * 2 + tt) * 4
                ops.append("v_cvt_pk_bf16_f32 v%d, v%d, v%d" % (p + 2 * k, s, s + 1))
                ops.append("v_cvt_pk_bf16_f32 v%d, v%d, v%d" % (p + 2 * k + 1, s + 2, s + 3))
            if not g.opt.get("nostore"):
                ops.append("buffer_store_dwordx4 %s, v%d, s[%d:%d], s%d offen offset:%d %s" % (vr(p, 4), voff, SWS, SWS + 3, sT2, (tt * 2 + hf) * 1024, sf))
    return ops

sNON = 97
def flag_load(vreg, vfl, sline):
    if sline is None: return "buffer_load_dword v%d, v%d, s[%d:%d], 0 offen sc1" % (vreg, vfl, SDBG, SDBG + 3)
    return "buffer_load_dword v%d, v%d, s[%d:%d], s%d offen sc1" % (vreg, vfl, SWS, SWS + 3, sline)

def flag_issue(g, vreg, vfl, sline):
    g.e(flag_load(vreg, vfl, sline), "flag")

def flag_check(g, vreg, vfl, sline, mask, issued=True, sleep=4):
    if g.opt.get("nofl") and sline is not None: return
    e = g.e
    L = g.newlabel("L_poll"); Ld = g.newlabel("L_polld"); Lc = g.newlabel("L_pollc")
    e("s_cmp_lg_u32 s%d, 0" % sW)
    e("s_cbranch_scc1 %s" % Ld)
    e("s_mov_b32 s89, 0x20000")
    if issued:
        g.wait_vm("flag")
        e("s_branch %s" % Lc)
    g.label(L)
    Asm.e(g, flag_load(vreg, vfl, sline))
    e("s_waitcnt vmcnt(0)")
    g.label(Lc)
    if sline is None:
        e("v_readfirstlane_b32 s%d, v%d" % (sNON, vreg))
        e("s_sub_u32 s89, s89, 1")
        e("s_cmp_lg_u32 s%d, 0" % sNON)
    else:
        e("v_cmp_eq_u32 s[98:99], s%d, v%d" % (sNON, vreg))
        e("s_sub_u32 s89, s89, 1")
        e("s_and_b32 s98, s98, 0x%x" % mask)
        e("s_cmp_eq_u32 s98, 0x%x" % mask)
    e("s_cbranch_scc1 %s" % Ld)
    e("s_sleep %d" % sleep)
    e("s_cmp_lg_u32 s89, 0")
    e("s_cbranch_scc1 %s" % L)
    g.label(Ld)

def flag_lane_offsets(vfl, vtmp):
    return ["s_lshl_b32 s96, s%d, 6" % sW, "v_add_u32 v%d, s96, v0" % vtmp, "v_cmp_gt_u32 vcc, 16, v%d" % vtmp, "v_lshlrev_b32 v%d, 2, v0" % vfl,
            "v_mov_b32 v%d, 0x%x" % (vtmp, OOB), "v_cndmask_b32 v%d, v%d, v%d, vcc" % (vfl, vtmp, vfl)]

def code_pf(label, add=0):
    return "s_load_dword s88, s[86:87], @%s+%d" % (label, add)

def signal(g, vtmp, voff, sword, imm=0):
    g.e("v_mov_b32 v%d, s%d" % (vtmp, sNON))
    g.e("buffer_store_dword v%d, v%d, s[%d:%d], s%d offen offset:%d sc1" % (vtmp, voff, SWS, SWS + 3, sword, imm))

def ffn_role(g):
    e, opt = g.e, g.opt
    wf = opt.get("wflags", "")
    ACC = [32, 96]; H = 160; B1 = 9; PK = 128; VST = 21
    sI, sJ = 42, 43; sKB = 44; sHX = 47; sOX = 50; sWO = 53; sM0B = 58
    CPF = opt.get("codepf", 0)
    e("s_sub_u32 s%d, s3, 1" % sI)
    e("s_mov_b32 s%d, s%d" % (sJ, sS))
    e("s_mul_i32 s%d, s%d, 3" % (sS, sJ))
    e("s_add_u32 s%d, s%d, s%d" % (sS, sS, sI))
    e("s_cmp_ge_u32 s%d, 2" % sW)
    e("s_cselect_b32 s%d, s74, s72" % sT)
    e("s_cselect_b32 s%d, s75, s73" % sT2)
    srd(g, SW1, sT, sT2, 576 * 4608 * 2)
    e("s_lshl_b32 s%d, s%d, 12" % (sM0W, sW))
    e("s_mul_i32 s%d, s%d, %d" % (sB1, sS, 0 if opt.get("samew") else 768))
    def late_setup():
        o = []; sT = 95
        a = Asm(); srd(a, SW2, 76, 77, 4608 * 576 * 2); srd(a, SPHI, 70, 71, 576 * 576 * 2)
        o += [l.strip() for l in a.lines]
        for b in range(3):
            o += ["s_add_u32 s%d, s%d, %d" % (sT, sI, b), "s_cmp_ge_u32 s%d, 3" % sT, "s_cselect_b32 s96, 3, 0", "s_sub_u32 s%d, s%d, s96" % (sT, sT),
                  "s_mul_i32 s96, s%d, 3" % sJ, "s_add_u32 s%d, s%d, s96" % (sT, sT),
                  "s_mul_i32 s%d, s%d, %d" % (sKB + b, sT, 384 * 1152), "s_mul_i32 s96, s%d, 384" % sI, "s_add_u32 s%d, s%d, s96" % (sKB + b, sKB + b),
                  "s_mul_i32 s96, s%d, 12" % sR, "s_add_u32 s%d, s%d, s96" % (sT, sT), "s_lshl_b32 s%d, s%d, 2" % (sT, sT), "s_add_u32 s%d, s%d, s%d" % (sT, sT, sW),
                  "s_mul_i32 s%d, s%d, 24576" % (sHX + b, sT), "s_add_u32 s%d, s%d, 0x%x" % (sHX + b, sHX + b, WS_HX)]
        o += ["s_lshl_b32 s%d, s%d, 2" % (sT, sR), "s_add_u32 s%d, s%d, s%d" % (sT, sT, sJ), "s_lshl_b32 s%d, s%d, 7" % (sCNT, sT), "s_add_u32 s%d, s%d, 0x%x" % (sCNT, sCNT, WS_FLG),
              "s_lshl_b32 s63, s%d, 2" % sI, "s_add_u32 s63, s63, s%d" % sCNT,
              "s_lshl_b32 s%d, s%d, 2" % (sT, sT), "s_add_u32 s%d, s%d, s%d" % (sT, sT, sW), "s_mul_i32 s%d, s%d, 10240" % (sOX, sT), "s_add_u32 s%d, s%d, 0x%x" % (sOX, sOX, WS_OX)]
        o += ["s_mul_i32 s%d, s%d, %d" % (sST, sJ, PSZ), "s_lshl_b32 s%d, s%d, 2" % (sT, sR), "s_add_u32 s%d, s%d, s%d" % (sT, sT, sW),
              "s_mul_i32 s%d, s%d, 36864" % (sT, sT), "s_add_u32 s%d, s%d, s%d" % (sST, sST, sT),
              "s_mul_i32 s%d, s%d, 12288" % (sT, sI), "s_add_u32 s%d, s%d, s%d" % (sST, sST, sT)]
        o += ["s_mul_i32 s%d, s%d, %d" % (sB2, sJ, 144 * 1152), "s_mul_i32 s96, s%d, 384" % sI, "s_add_u32 s%d, s%d, s96" % (sB2, sB2),
              "s_lshl_b32 s%d, s%d, 10" % (sM0B, sW)]
        for i in range(5):
            d = sWO + i
            o += (["s_lshl_b32 s%d, s%d, 2" % (sT, sW), "s_add_u32 s%d, s%d, %d" % (sT, sT, i)] if i < 4 else ["s_add_u32 s%d, s%d, 16" % (sT, sW)])
            o += ["s_lshr_b32 s96, s%d, 1" % sT, "s_lshl_b32 s%d, s96, 2" % d, "s_cmp_ge_u32 s96, 5", "s_cselect_b32 s96, 52, 0",
                  "s_add_u32 s%d, s%d, s96" % (d, d), "s_and_b32 s%d, s%d, 1" % (sT, sT), "s_mul_i32 s%d, s%d, 36" % (sT, sT),
                  "s_add_u32 s%d, s%d, s%d" % (d, d, sT), "s_mul_i32 s%d, s%d, 1152" % (d, d), "s_add_u32 s%d, s%d, s%d" % (d, d, sB2)]
        return o
    stages = []
    def slot(n): return ((n + 9) % 10) * 16384
    for rho in range(6):
        acc = ACC[rho & 1]
        for st in range(9):
            n = len(stages); lo = slot(n)
            pre = ["s_add_u32 m0, s%d, %d" % (sM0W, lo), "s_add_u32 s%d, s%d, %d" % (sOFF, sB1, st * 64 * 9216 + (0 if opt.get('samew') else rho * 128))]
            dmas = ["buffer_load_dwordx4 v%d, s[%d:%d], s%d offen offset:%d %s lds" % (1 + i, SW1, SW1 + 3, sOFF, i * 1024, wf) for i in range(4)]
            frags = []
            for kk in range(2):
                ks = 2 * st + kk
                for t in range(4):
                    for mat in range(2):
                        def mf(buf, ks=ks, t=t, mat=mat, acc=acc, XC=(XC if rho else XV0)):
                            order = (0, 1) if mat == 0 else (1, 0)
                            return [mfma(vr(acc + ((t * 2 + mat) * 2 + tt) * 4, 4), ar(buf, 4), XC(tt, ks), "0" if ks == 0 else None) for tt in order]
                        frags.append((tr_reads(B1, t, lo + mat * 8192 + kk * 4096, 512), mf))
            stages.append(Stage(lo, lo + 16384, pre, dmas, frags, None if n == 0 else "x"))
    def hreg(b, u, tt):
        k = (u * 2 + tt) * 4
        if b == 0: return vr(H + k, 4)
        if b == 1: return ar(k, 4)
        if b == 2: return ar(176 + k, 4) if u < 8 else ar(96 + k - 64, 4)
        if u < 2: return ar(128 + k, 4)
        if u < 4: return ar(240 + k - 16, 4)
        return vr(144 + k - 32, 4)
    def g2stage(b, us, cg, first):
        n = len(stages); lo = slot(n); acc = 32 + 32 * cg
        if b < 3:
            pre = ["s_add_u32 m0, s%d, %d" % (sM0W, lo), "s_add_u32 s%d, s%d, %d" % (sOFF, sKB + b, (us[0] // 4) * 128 * 1152 + cg * 128)]
            dmas = ["buffer_load_dwordx4 v%d, s[%d:%d], s%d offen offset:%d %s lds" % (5 + i, SW2, SW2 + 3, sOFF, i * 1024, wf) for i in range(4)]
        else:
            pre = []
            sel = [(sM0W, lo + i * 1024, sWO + i) for i in range(4)] if len(us) == 4 else [(sM0B, lo, sWO + 4)]
            dmas = [["s_add_u32 m0, s%d, %d" % (m, o), "s_add_u32 s%d, s%d, %d" % (sOFF, so, cg * 128),
                     "buffer_load_dwordx4 v25, s[%d:%d], s%d offen %s lds" % (SPHI, SPHI + 3, sOFF, wf)] for m, o, so in sel]
        frags = []
        for kk, u in enumerate(us):
            for t in range(4):
                def mf(buf, u=u, t=t, z=(first and kk == 0)):
                    order = (0, 1) if t % 2 == 0 else (1, 0)
                    return [mfma(vr(acc + (t * 2 + tt) * 4, 4), ar(buf, 4), hreg(b, u, tt), "0" if z else None) for tt in order]
                frags.append((tr_reads(B1, t, lo + kk * 4096, 2048), mf))
        stages.append(Stage(lo, lo + 16384, pre, dmas, frags, "x"))
    Q = lambda q: list(range(4 * q, 4 * q + 4))
    for q, cg in ((0, 0), (0, 1), (1, 0), (1, 1), (0, 2), (1, 2)): g2stage(0, Q(q), cg, q == 0)
    G2C2 = 64
    for b, q in ((0, 2), (1, 0), (1, 1), (2, 0), (2, 1), (1, 2), (2, 2)):
        for cg in range(3): g2stage(b, Q(q), cg, False)
    for cg in range(3):
        for b, us in ((3, Q(0)), (3, [4])): g2stage(b, us, cg, False)
    pipe = Pipe(g, stages, opt.get("D", 7), opt.get("BE", 2))
    TOUCH = opt.get("touch", 1); tf = opt.get("tflags", "")
    def touch1(rho):
        return ["buffer_load_dword v31, v29, s[%d:%d], s%d offen offset:%d %s" % (SW1, SW1 + 3, sB1, rho * 128, tf)]
    def touch2(b):
        if b < 3: return ["buffer_load_dword v31, v26, s[%d:%d], s%d offen %s" % (SW2, SW2 + 3, sKB + b, tf)]
        return ["buffer_load_dword v31, v26, s[%d:%d], s59 offen %s" % (SPHI, SPHI + 3, tf)]
    def touchh(k):
        return ["s_add_u32 s3, s%d, %d" % (sHX, k * 8192), "buffer_load_dword v31, v22, s[%d:%d], s3 offen" % (SWS, SWS + 3)]
    def early():
        e("v_lshrrev_b32 v28, 3, v0")
        e("s_and_b32 s%d, s%d, 1" % (sOFF, sW))
        e("s_lshl_b32 s%d, s%d, 5" % (sOFF, sOFF))
        e("v_add_u32 v1, s%d, v28" % sOFF)
        e("v_mul_u32_u24 v1, 9216, v1")
        e("v_and_b32 v2, 2, v28")
        e("v_and_b32 v3, 7, v0")
        e("v_xor_b32 v2, v2, v3")
        e("v_lshl_add_u32 v1, v2, 4, v1")
        e("v_xor_b32 v2, 64, v1")
        e("v_add_u32 v2, %d, v2" % (8 * 9216 - 1024))
        e("v_add_u32 v3, %d, v1" % (2 * (8 * 9216 - 1024)))
        e("v_add_u32 v4, %d, v2" % (2 * (8 * 9216 - 1024)))
        pipe.refill(); pipe.flush()
    def tsetup():
        e("s_and_b32 s98, s%d, 1" % sW)
        e("s_mul_i32 s98, s98, 36")
        e("s_and_b32 s%d, s%d, 7" % (99, sR))
        e("s_mul_i32 s%d, s%d, 72" % (99, 99))
        e("s_add_u32 s98, s98, s%d" % 99)
        e("v_add_u32 v29, s98, v0")
        e("v_mul_u32_u24 v29, 9216, v29")
        e("v_cmp_gt_u32 vcc, 36, v0")
        e("v_mov_b32 v31, 0x%x" % OOB)
        e("s_nop 0")
        e("v_cndmask_b32 v29, v31, v29, vcc")
    T0 = opt.get("t0pos", 8)
    if TOUCH: tsetup()
    vset = ["v_lshrrev_b32 v28, 3, v0", "s_lshl_b32 s96, s%d, 5" % sW, "v_add_u32 v5, s96, v28", "v_mul_u32_u24 v5, 1152, v5",
            "v_lshlrev_b32 v6, 1, v22", "v_and_b32 v7, 7, v0", "v_xor_b32 v6, v6, v7", "v_lshl_add_u32 v5, v6, 4, v5",
            "v_lshrrev_b32 v28, 5, v0", "v_bfe_u32 v7, v0, 3, 2", "v_lshl_add_u32 v28, v28, 4, v7", "v_mul_u32_u24 v25, 1152, v28", "v_lshl_add_u32 v25, v6, 4, v25"]
    vset += ["v_add_u32 v%d, %d, v5" % (5 + i, i * (8 * 1152 - 1024)) for i in range(1, 4)]
    vset += ["v_lshlrev_b32 v%d, 4, v0" % VST, "v_lshlrev_b32 v27, 9, v22", "v_add_u32 v28, s%d, v0" % sW, "v_cmp_eq_u32 vcc, 0, v28",
             "v_mov_b32 v24, 0x%x" % OOB, "v_mov_b32 v28, 0", "v_cndmask_b32 v24, v24, v28, vcc"]
    vset += ["v_mul_u32_u24 v28, 5462, v0", "v_lshrrev_b32 v28, 16, v28", "v_mul_u32_u24 v26, 12, v28", "v_sub_u32 v26, v0, v26",
             "s_mul_i32 s96, s%d, 12" % sW, "s_and_b32 s%d, s%d, 7" % (95, sR), "s_mul_i32 s%d, s%d, 48" % (95, 95), "s_add_u32 s96, s96, s95",
             "v_add_u32 v26, s96, v26", "v_mul_u32_u24 v26, 1152, v26", "v_lshl_add_u32 v26, v28, 7, v26",
             "v_cmp_gt_u32 vcc, 36, v0", "v_mov_b32 v28, 0x%x" % OOB, "s_nop 0", "v_cndmask_b32 v26, v28, v26, vcc",
             "s_cmp_ge_u32 s96, 144", "s_cselect_b32 s59, 0x%x, s%d" % (OOB, sB2)]
    prologue(g, pipe, early=early, afterbar=(lambda: [e(t) for t in (touch1(0) if T0 < 0 else []) + touch1(1)]) if TOUCH else None, mid=(T0, lambda: e(touch1(0)[0])) if TOUCH else None, nfirst=opt.get('nfirst', 8), fill=group_scc(late_setup() + vset + tr_bases(g, B1, 8)))
    hf = opt.get("hflags", "sc1")
    def epi1(rho):
        acc = ACC[rho & 1]; ops = []; sts = []
        for t in range(4):
            for tt in range(2):
                gt = acc + ((t * 2) * 2 + tt) * 4; up = acc + ((t * 2 + 1) * 2 + tt) * 4
                u = 2 * rho + t // 2
                h = H + (u * 2 + tt) * 4 + (t & 1) * 2
                for k in range(2):
                    for i in (2 * k, 2 * k + 1): ops.append("v_max_f32 v%d, 0, v%d" % (gt + i, gt + i))
                    for i in (2 * k, 2 * k + 1): ops.append("v_mul_f32 v%d, v%d, v%d" % (gt + i, gt + i, up + i))
                    ops.append("v_cvt_pk_bf16_f32 v%d, v%d, v%d" % (h + k, gt + 2 * k, gt + 2 * k + 1))
                if t & 1 and not (opt.get("nohst") and (t, tt) != (1, 0)):
                    if t == 1 and tt == 0: sts.append("s_add_u32 s%d, s%d, %d" % (sT2, sHX, rho * 4096))
                    sts.append(("buffer_store_dwordx4 %s, v%d, s[%d:%d], s%d offen offset:%d %s" % (hreg(0, u, tt), VST, SWS, SWS + 3, sT2, ((u & 1) * 2 + tt) * 1024, hf), ("hst", rho)))
        return ops + sts
    def hloads(b, us, tag):
        ops = []
        base = sOX if b == 3 else sHX + b
        if opt.get("noh"): us = list(us)[:1]
        for u in us:
            if u % 2 == 0: ops.append("s_add_u32 s%d, s%d, %d" % (sT, base, u * 2048))
            for tt in range(2):
                ops.append(("buffer_load_dwordx4 %s, v%d, s[%d:%d], s%d offen offset:%d %s" % (hreg(b, u, tt), VST, SWS, SWS + 3, sT, ((u & 1) * 2 + tt) * 1024, opt.get("hlflags", "sc1")), tag))
        return ops
    extra = {}
    urgent = {}
    add = lambda k, l: extra.setdefault(k, []).extend(l)
    addu = lambda k, l: urgent.setdefault(k, []).extend(l)
    EP = opt.get("epiw", 75)
    for rho in range(5):
        spread(epi1(rho) + [Mark("epi%d" % rho)], 144 * (rho + 1) + 3, 144 * (rho + 1) + EP, extra)
    P2 = 864; S2 = 54
    n01 = 40
    add(P2 + 3, epi1(5)[:n01] + [Mark("epi5a")] + epi1(5)[n01:] + [Mark("epi5")])
    pauses = []
    PA, PB = opt.get("pause", [0, 60])
    def event(k, ops):
        addu(k, ops); pauses.append((k + PA, k + PB))
    if TOUCH:
        for k, ops in zip(opt.get("tpos", [76, 292, 436, 580]), (touch1(2) + touch1(3), touch1(4) + touch1(5), touch2(0) + touch2(1), touch2(2) + touch2(3))):
            event(k, ops)
    add(1, xc_copies() + [Mark("xc")])
    add(144 + 90, flag_lane_offsets(23, 28) + [Mark("flo")])
    addu(288 + 100, [lambda: flag_issue(g, 28, 23, None)])
    stages[26].before = lambda: flag_check(g, 28, 23, None, 0)
    stages[46].before = lambda: g.wait_vm(("hst", 3))
    stages[46].after = lambda: signal(g, 28, 24, 63, 0)
    addu(720 + 76, [lambda: flag_issue(g, 28, 23, sCNT)])
    stages[52].before = lambda: flag_check(g, 28, 23, sCNT, 0x7)
    HB = opt.get("hburst", 30)
    def hevent(k, ops):
        addu(k, ops); pauses.append((k, k + HB))
    if HB:
        hevent(720 + 106, hloads(1, Q(0), "h10")); hevent(P2 + opt.get("h11pos", 30), hloads(1, Q(1), "h11"))
        spread(hloads(2, Q(0), "h20") + hloads(2, Q(1), "h21"), P2 + 120, P2 + 200, urgent)
    else:
        spread(hloads(1, Q(0), "h10") + hloads(1, Q(1), "h11"), 720 + 107, P2, urgent)
        spread(hloads(2, Q(0), "h20") + hloads(2, Q(1), "h21"), P2 + 80, P2 + 150, urgent)
    def to_g2():
        for k in range(12): e("v_sub_u32 v%d, v%d, v27" % (B1 + k, B1 + k))
    stages[S2].after = to_g2
    stages[S2 + 8].before = lambda: g.wait_vm("h10")
    stages[S2 + 10].before = lambda: g.wait_vm(("hst", 5))
    stages[S2 + 10].after = lambda: signal(g, 28, 24, 63, 16)
    stages[S2 + 12].before = lambda: g.wait_vm("h11")
    addu(P2 + 16 * 14, [lambda: flag_issue(g, 28, 23, sCNT)])
    stages[S2 + 14].before = lambda: g.wait_vm("h20")
    stages[S2 + 16].before = lambda: flag_check(g, 28, 23, sCNT, 0x70)
    if HB:
        hevent(P2 + 16 * 16 - 6, hloads(1, Q(2), "h12")); spread(hloads(2, Q(2), "h22"), P2 + 16 * 20, P2 + 16 * 22 - 2, urgent)
    else:
        spread(hloads(1, Q(2), "h12") + hloads(2, Q(2), "h22"), P2 + 16 * 16 - 5, P2 + 16 * 19, urgent)
    stages[S2 + 18].before = lambda: g.wait_vm("h21")
    stages[S2 + 20].before = lambda: g.wait_vm("h12")
    addu(P2 + 16 * 22, [lambda: flag_issue(g, 28, 23, sCNT)])
    stages[S2 + 24].before = lambda: (g.wait_vm("h22"), flag_check(g, 28, 23, sCNT, 0x100))
    addu(P2 + 16 * 24 - 5, hloads(3, range(5), "oL"))
    stages[S2 + 27].before = lambda: g.wait_vm("oL")
    C0 = P2 + 16 * 27
    FUSE = opt.get("fuse", 1)
    sFL, sFW, sPL, sCOL, sRS = 64, 65, 66, 67, 68
    if FUSE:
        a2 = Asm(); srd(a2, SW1, 78, 79, PSZ)
        fin = [l.strip() for l in a2.lines]
        fin += ["s_mul_i32 s95, s%d, 3" % sR, "s_add_u32 s95, s95, s%d" % sI, "s_lshl_b32 s%d, s95, 7" % sFL, "s_add_u32 s%d, s%d, 0x%x" % (sFL, sFL, WS_FLG + 72 * 128),
                "s_lshl_b32 s%d, s%d, 2" % (sFW, sJ), "s_add_u32 s%d, s%d, s%d" % (sFW, sFW, sFL),
                "s_mul_i32 s95, s%d, %d" % (sJ, PSZ - 1024), "s_sub_u32 s%d, s%d, s95" % (sPL, sST),
                "s_mul_i32 s%d, s%d, 384" % (sCOL, sI), "s_and_b32 s95, s%d, 1" % sJ, "s_lshl_b32 s95, s95, 6", "s_add_u32 s%d, s%d, s95" % (sCOL, sCOL),
                "s_lshr_b32 s95, s%d, 1" % sJ, "s_lshl_b32 s95, s95, 4", "s_lshl_b32 s96, s%d, 5" % sW, "s_add_u32 s95, s95, s96",
                "v_and_b32 v173, 15, v0", "v_add_u32 v173, s95, v173", "v_lshlrev_b32 v174, 2, v173",
                "s_lshl_b32 s96, s%d, 7" % sR, "v_add_u32 v173, s96, v173", "v_mul_u32_u24 v173, 1152, v173",
                "v_bfe_u32 v175, v0, 4, 1", "v_lshl_add_u32 v173, v175, 5, v173", "v_lshrrev_b32 v175, 5, v0", "v_lshl_add_u32 v173, v175, 4, v173",
                "s_lshl_b32 s96, s%d, 2" % sR, "s_add_u32 s96, s96, s%d" % sJ, "s_lshl_b32 s%d, s96, 9" % sRS, "s_add_u32 s%d, s%d, 0x%x" % (sRS, sRS, WS_RS2),
                "s_mov_b32 s70, 0x3f80", "s_mov_b32 s71, 0x3f800000"]
        fin += ["v_mov_b32 v%d, 0" % (224 + i) for i in range(24)]
        addu(P2 + 16 * 27 + 2, [("buffer_load_dwordx4 %s, v173, s[%d:%d], s%d offen offset:%d" % (vr(160 + 4 * cg, 4), SX, SX + 3, sCOL, cg * 128), "fx") for cg in range(3)])
        add(P2 + 16 * 11, fin + [Mark("fin")])
        addu(P2 + 16 * 24 - 5, [("buffer_load_dword v172, v174, s[%d:%d], s%d offen sc1" % (SWS, SWS + 3, sRS), "rs")])
    for cg in range(2): add(C0 + 20 * (cg + 1) + 3, store_ops(g, 32 + 32 * cg, PK + 0, cg, VST))
    if opt.get("ts"):
        for k in (144, 288, 432, 576, 720, P2, P2 + 144, P2 + 288, C0): addu(k, [g.stamp])
    groups = list(range(0, S2 + 25, 2)) + [S2 + 27, S2 + 29, S2 + 31]
    pipe.run(0, len(stages), extra, pauses=pauses, groups=groups, urgent=urgent)
    w = pipe.when
    if opt.get("verbose"): print(w)
    assert w["xc"] < 142 and w["flo"] < 288 + 100 and all(w["epi%d" % r] < 144 * (r + 2) - 1 for r in range(5)), w
    assert w["epi5a"] < P2 + G2C2 - 1 and w["epi5"] < P2 + 96 - 1, w
    g.stamp()
    e("s_nop 7")
    for t in store_ops(g, 96, PK, 2, VST): e(t)
    if FUSE:
        assert w["fin"] < P2 + 16 * 23
        e("s_waitcnt vmcnt(0)"); e("s_barrier")
        signal(g, 28, 24, sFW, 0)
        g.stamp()
        flag_check(g, 28, 23, sFL, 0xf, issued=False, sleep=1)
        e("s_barrier")
        g.stamp()
        for p in range(4):
            for cg in range(3):
                if cg: e("s_add_u32 s95, s%d, %d" % (sPL, p * PSZ + cg * 4096))
                elif p: e("s_add_u32 s95, s%d, %d" % (sPL, p * PSZ))
                e("buffer_load_dwordx4 %s, v%d, s[%d:%d], s%d offen sc1" % (vr(176 + 4 * (p * 3 + cg), 4), VST, SWS, SWS + 3, 95 if p or cg else sPL), ("pl", p))
        for p in range(4):
            g.wait_vm(("pl", p))
            for cg in range(3):
                for i in range(4):
                    e("v_dot2c_f32_bf16 v%d, s70, v%d" % (224 + 8 * cg + 2 * i, 176 + 4 * (p * 3 + cg) + i))
                    e("v_dot2c_f32_bf16 v%d, s71, v%d" % (225 + 8 * cg + 2 * i, 176 + 4 * (p * 3 + cg) + i))
        e("s_nop 2")
        for cg in range(3):
            A = 224 + 8 * cg
            for i in range(4): e("v_permlane16_swap_b32 v%d, v%d" % (A + i, A + 4 + i))
            for i in range(4):
                e("v_lshlrev_b32 v176, 16, v%d" % (160 + 4 * cg + i))
                e("v_and_b32 v177, 0xffff0000, v%d" % (160 + 4 * cg + i))
                e("v_fma_f32 v176, v%d, v172, v176" % (A + 2 * i))
                e("v_fma_f32 v177, v%d, v172, v177" % (A + 2 * i + 1))
                e("v_cvt_pk_bf16_f32 v%d, v176, v177" % (180 + 4 * cg + i))
            e("buffer_store_dwordx4 %s, v173, s[%d:%d], s%d offen offset:%d %s" % (vr(180 + 4 * cg, 4), SW1, SW1 + 3, sCOL, cg * 128, opt.get("oflags", "")))
    if opt.get("ts"):
        e("s_waitcnt vmcnt(0)"); g.stamp()

def k1(g):
    e, opt = g.e, g.opt
    kernel_head(g, K1)
    e("s_getpc_b64 s[84:85]")
    e("s_cmp_ge_u32 s2, 256")
    e("s_cbranch_scc1 L_k1_end")
    e("s_load_dwordx8 s[64:71], s[0:1], 0")
    e("s_load_dwordx4 s[72:75], s[0:1], 40")
    e("s_load_dwordx4 s[76:79], s[0:1], 56")
    e("s_load_dwordx4 s[80:83], s[0:1], 72")
    if opt.get("vpf", 1):
        e("s_lshr_b32 s3, s2, 3")
        e("s_lshl_b32 s3, s3, 12")
        e("v_lshrrev_b32 v2, 3, v0")
        e("v_lshlrev_b32 v2, 7, v2")
        e("v_add_u32 v2, s3, v2")
        e("v_min_u32 v2, L_k1_end-%s, v2" % K1)
        e("global_load_dword v255, v2, s[84:85]")
    e("v_lshrrev_b32 v1, 6, v0")
    e("v_and_b32 v0, 63, v0")
    e("v_readfirstlane_b32 s%d, v1" % sW)
    lane_consts(g)
    e("s_and_b32 s%d, s2, 1" % sR)
    e("s_lshl_b32 s%d, s%d, 3" % (sR, sR))
    e("s_bfe_u32 s%d, s2, 0x30003" % sT)
    e("s_or_b32 s%d, s%d, s%d" % (sR, sR, sT))
    e("s_bfe_u32 s%d, s2, 0x20001" % sS)
    e("s_lshr_b32 s3, s2, 6")
    if opt.get("ts"):
        e("s_lshl_b32 s94, s2, 2"); e("s_add_u32 s94, s94, s%d" % sW); e("s_lshl_b32 s94, s94, 8"); e("s_add_u32 s94, s94, 0x%x" % WS_TS)
    e("s_lshr_b32 s86, s2, 3")
    e("s_cmp_ge_u32 s86, 8")
    e("s_cselect_b32 s87, 8, 0")
    e("s_sub_u32 s86, s86, s87")
    e("s_lshl_b32 s86, s86, 2")
    e("s_add_u32 s86, s86, s%d" % sW)
    e("s_lshl_b32 s86, s86, 6")
    e("s_add_u32 s86, s84, s86")
    e("s_addc_u32 s87, s85, 0")
    e("s_waitcnt lgkmcnt(0)")
    srd(g, SX, 64, 65, PSZ)
    wb = opt.get("wsbase", 0)
    if wb:
        e("s_add_u32 s82, s82, 0x%x" % wb); e("s_addc_u32 s83, s83, 0")
    srd(g, SWS, 82, 83, WS_BYTES - wb)
    srd(g, SDBG, 80, 81, 256)
    e("s_or_b32 s%d, s2, s%d" % (sT, sW))
    e("s_cbranch_scc1 L_nonce_done")
    e("s_memrealtime s[98:99]")
    e("s_waitcnt lgkmcnt(0)")
    e("v_mov_b32 v2, s98")
    e("v_or_b32 v2, 1, v2")
    Asm.e(g, "buffer_store_dword v2, off, s[%d:%d], 0 sc1" % (SDBG, SDBG + 3))
    g.label("L_nonce_done")
    g.stamp()
    e("s_cmp_eq_u32 s3, 0")
    e("s_cbranch_scc1 %s" % ("L_k1_end" if opt.get("noatt") else "L_att"))
    sv = (list(g.vm), list(g.lg), g.nts)
    ffn_role(g)
    e("s_endpgm")
    g.vm, g.lg, g.nts = sv
    g.raw(".p2align 6")
    g.label("L_att")
    import att
    att.att_role(g)
    g.label("L_k1_end")
    e("s_endpgm")

def k2(g):
    e, opt = g.e, g.opt
    g.vm = []; g.lg = []
    kernel_head(g, K2)
    lf = opt.get("k2flags", "")
    e("s_cmp_ge_u32 s2, 256")
    e("s_cbranch_scc1 L_k2_end")
    if opt.get("ts"): e("s_memrealtime s[32:33]")
    e("s_load_dwordx2 s[4:5], s[0:1], 0")
    e("s_load_dwordx2 s[6:7], s[0:1], 64")
    e("s_load_dwordx2 s[24:25], s[0:1], 80")
    e("v_lshrrev_b32 v1, 6, v0")
    e("v_and_b32 v0, 63, v0")
    e("v_readfirstlane_b32 s3, v1")
    e("s_mul_i32 s26, s2, 9")
    e("s_add_u32 s26, s26, s3")
    e("s_lshl_b32 s27, s26, 10")
    e("v_lshlrev_b32 v1, 4, v0")
    e("s_waitcnt lgkmcnt(0)")
    wb = opt.get("wsbase", 0)
    if wb:
        e("s_add_u32 s24, s24, 0x%x" % wb); e("s_addc_u32 s25, s25, 0")
    srd(g, 16, 24, 25, WS_BYTES - wb)
    for p in range(4):
        e("buffer_load_dwordx4 %s, v1, s[16:19], s27 offen %s" % (vr(16 + 4 * p, 4), lf), ("p", p))
        if p < 3: e("s_add_u32 s27, s27, %d" % PSZ)
    srd(g, 8, 4, 5, PSZ)
    srd(g, 12, 6, 7, PSZ)
    e("s_lshr_b32 s28, s26, 2")
    e("s_mul_i32 s29, s28, 7282")
    e("s_lshr_b32 s29, s29, 16")
    e("s_mul_i32 s30, s29, 9")
    e("s_sub_u32 s30, s28, s30")
    e("s_lshl_b32 s29, s29, 5")
    e("s_bfe_u32 s31, s26, 0x10001")
    e("s_lshl_b32 s31, s31, 4")
    e("s_add_u32 s29, s29, s31")
    e("s_lshl_b32 s30, s30, 7")
    e("s_and_b32 s31, s26, 1")
    e("s_lshl_b32 s31, s31, 6")
    e("s_add_u32 s30, s30, s31")
    e("v_and_b32 v2, 15, v0")
    e("v_add_u32 v2, s29, v2")
    e("v_and_b32 v3, 127, v2")
    e("v_lshlrev_b32 v3, 2, v3")
    e("s_lshr_b32 s31, s29, 7")
    e("s_lshl_b32 s31, s31, 11")
    e("s_add_u32 s31, s31, 0x%x" % WS_RS2)
    e("buffer_load_dword v5, v3, s[16:19], s31 offen", "rs")
    e("v_mul_u32_u24 v2, 1152, v2")
    e("v_bfe_u32 v3, v0, 4, 1")
    e("v_lshl_add_u32 v2, v3, 5, v2")
    e("v_lshrrev_b32 v3, 5, v0")
    e("v_lshl_add_u32 v2, v3, 4, v2")
    e("buffer_load_dwordx4 v[12:15], v2, s[8:11], s30 offen", "x")
    e("s_mov_b32 s20, 0x3f80")
    e("s_mov_b32 s21, 0x3f800000")
    for i in range(8): e("v_mov_b32 v%d, 0" % (80 + i))
    for p in range(4):
        g.wait_vm(("p", p))
        acc = 80
        for i in range(4):
            e("v_dot2c_f32_bf16 v%d, s20, v%d" % (acc + 2 * i, 16 + 4 * p + i))
            e("v_dot2c_f32_bf16 v%d, s21, v%d" % (acc + 2 * i + 1, 16 + 4 * p + i))
    e("s_waitcnt vmcnt(0)")
    e("s_nop 2")
    for i in range(8): e("v_mul_f32 v%d, v%d, v5" % (80 + i, 80 + i))
    e("s_nop 1")
    for i in range(4): e("v_permlane16_swap_b32 v%d, v%d" % (80 + i, 84 + i))
    for i in range(4):
        e("v_lshlrev_b32 v6, 16, v%d" % (12 + i))
        e("v_and_b32 v7, 0xffff0000, v%d" % (12 + i))
        e("v_add_f32 v%d, v%d, v6" % (80 + 2 * i, 80 + 2 * i))
        e("v_add_f32 v%d, v%d, v7" % (81 + 2 * i, 81 + 2 * i))
        e("v_cvt_pk_bf16_f32 v%d, v%d, v%d" % (8 + i, 80 + 2 * i, 81 + 2 * i))
    e("buffer_store_dwordx4 v[8:11], v2, s[12:15], s30 offen")
    if opt.get("ts"):
        e("s_waitcnt vmcnt(0)"); e("s_memrealtime s[34:35]"); e("s_waitcnt lgkmcnt(0)")
        e("v_mov_b32 v30, s32"); e("v_mov_b32 v31, s34"); e("v_mov_b32 v29, 0")
        e("s_lshl_b32 s26, s26, 3"); e("s_add_u32 s26, s26, 0x%x" % (WS_TS + 0x100000))
        e("buffer_store_dwordx2 v[30:31], v29, s[16:19], s26 offen")
    g.label("L_k2_end")
    e("s_endpgm")

VOP3ONLY = ("v_mfma", "v_pk_", "v_fma_f32", "v_cvt_pk_bf16", "v_accvgpr_read", "v_accvgpr_write", "v_max3", "v_min3", "v_lshl_add", "v_add_lshl", "v_mad_u32",
            "v_bfe", "v_add3", "v_mul_lo", "v_mul_hi", "v_lshl_or", "v_and_or", "v_readlane", "v_perm_b32")
NOWIDE = ("v_readfirstlane", "v_permlane", "v_dot2c", "v_nop")
def has_lit(s):
    for t in re.split(r"[ ,]+", s)[1:]:
        if re.match(r"^-?(0x[0-9a-f]+|\d+)$", t):
            v = int(t, 0)
            if not (-16 <= v <= 64) and v not in (0x3f800000, 0x3f000000, 0x40000000, 0x40800000, 0xbf800000, 0xbf000000, 0xc0000000, 0xc0800000): return True
        if t.startswith("L_"): return not s.startswith(("s_cbranch", "s_branch"))
    return False
def isize(s):
    op = s.split()[0]
    if op.startswith(("ds_", "buffer_", "global_", "s_load", "s_mem")): return 8, False
    if op.startswith("s_"):
        if op.startswith(("s_waitcnt", "s_nop", "s_barrier", "s_sleep", "s_endpgm", "s_cbranch", "s_branch", "s_setprio", "s_getreg")): return 4, False
        return (8 if has_lit(s) else 4), False
    if op.startswith(VOP3ONLY): return 8, False
    if has_lit(s): return 8, False
    ops = [x.strip() for x in re.split(r",(?![^\[]*\])", s.split(None, 1)[1])]
    if op.startswith("v_cmp") and ops[0] != "vcc": return 8, False
    if op.startswith("v_cndmask") and ops[-1] != "vcc": return 8, False
    if len(ops) >= 3 and not ops[2].startswith("v"): return 8, False
    return 4, not op.startswith(NOWIDE)
def align_pass(lines, minrun=4):
    ins = [l.strip() for l in lines]
    out = []; par = 0
    isins = lambda l: l and not l.endswith(":") and not l.startswith((".", ";"))
    n = len(ins)
    def nxt(i):
        i += 1
        while i < n and not isins(ins[i]):
            if ins[i].startswith(".p2align"): return None
            i += 1
        return i if i < n else None
    for i, l in enumerate(ins):
        if not isins(l):
            if l.startswith(".p2align"): par = 0
            out.append(l); continue
        sz, flex = isize(l)
        if sz == 8: out.append(l); continue
        if par == 1: out.append(l); par = 0; continue
        j = nxt(i)
        if j is None or isize(ins[j])[0] == 4: out.append(l); par = 1; continue
        if flex:
            op, rest = l.split(None, 1); out.append(op + "_e64 " + rest); continue
        run = 0
        while j is not None and isize(ins[j])[0] == 8 and run < minrun: run += 1; j = nxt(j)
        out.append(l)
        if run >= minrun and not l.startswith(("s_branch", "s_endpgm")): out.append("s_nop 0")
        else: par = 1
    return out

LABELS = {}
def resolve(lines):
    off = 0; LABELS.clear()
    for l in lines:
        l = l.strip()
        if l.endswith(":"): LABELS[l[:-1]] = off
        elif l.startswith(".p2align"):
            a = 1 << int(l.split()[1]); off = (off + a - 1) // a * a
        elif l and not l.startswith((".", ";")):
            off += 8 if l.split()[0].endswith("_e64") else isize(l)[0]
    end = LABELS["L_k1_end"]
    def f(m):
        span = 2048 if LABELS[m.group(1)] >= LABELS["L_att"] else 6144
        return "0x%x" % (min(LABELS[m.group(1)] + int(m.group(2)), end - span) & ~3)
    return [re.sub(r"@(\w+)\+(\d+)", f, l) if l.strip().startswith("s_load") else l for l in lines]

MACROS = """.macro MA d,a,b
v_mfma_f32_16x16x32_bf16 v[\\d:\\d+3], a[\\a:\\a+3], a[\\b:\\b+3], v[\\d:\\d+3]
.endm
.macro MV d,a,b
v_mfma_f32_16x16x32_bf16 v[\\d:\\d+3], a[\\a:\\a+3], v[\\b:\\b+3], v[\\d:\\d+3]
.endm
.macro RT d,b,o
ds_read_b64_tr_b16 a[\\d:\\d+1], v\\b offset:\\o
.endm
.macro WL n
s_waitcnt lgkmcnt(\\n)
.endm
.macro CV d,a,b
v_cvt_pk_bf16_f32 v\\d, v\\a, v\\b
.endm
"""
def compress(line):
    s = line.strip()
    m = re.match(r"v_mfma_f32_16x16x32_bf16 v\[(\d+):\d+\], a\[(\d+):\d+\], ([av])\[(\d+):\d+\], v\[(\d+):\d+\]$", s)
    if m and m.group(1) == m.group(5): return "M%s %s,%s,%s" % (m.group(3).upper(), m.group(1), m.group(2), m.group(4))
    m = re.match(r"ds_read_b64_tr_b16 a\[(\d+):\d+\], v(\d+) offset:(\d+)$", s)
    if m: return "RT %s,%s,%s" % m.groups()
    m = re.match(r"s_waitcnt lgkmcnt\((\d+)\)$", s)
    if m: return "WL %s" % m.group(1)
    m = re.match(r"v_cvt_pk_bf16_f32 v(\d+), v(\d+), v(\d+)$", s)
    if m: return "CV %s,%s,%s" % m.groups()
    return s

def gen(**opt):
    g = G(opt)
    k1(g)
    FUSE = opt.get("fuse", 1)
    if not FUSE: k2(g)
    errs = hazard.check(g.lines)
    if errs:
        print("\n".join(errs[:40])); raise SystemExit("hazards: %d" % len(errs))
    head = open("cdna_kernels/%s.s.ref" % BASE).read().split("; Override launch")[0] if not opt.get("nohead") else ""
    out = head
    if FUSE: out += "; @launch grid=(256,1,1) block=(256,1,1) lds=163840\n"
    else: out += "; @launch kernel=%s grid=(256,1,1) block=(256,1,1) lds=163840\n" % K1
    if not FUSE: out += "; @launch kernel=%s grid=(256,1,1) block=(576,1,1) lds=0\n" % K2
    out += '.amdgcn_target "amdgcn-amd-amdhsa--gfx950"\n.text\n' + MACROS
    lines = align_pass(g.lines, opt.get("minrun", 4)) if opt.get("align", 1) else g.lines
    lines = resolve(lines)
    out += "\n".join(compress(l) for l in lines) + "\n"
    out += '.section .rodata,"a"\n' + kernel_desc(K1, 512, 256) + ("" if FUSE else kernel_desc(K2, 96, 96, 40))
    return out

if __name__ == "__main__":
    kw = json.loads(sys.argv[2]) if len(sys.argv) > 2 else {}
    open(sys.argv[1], "w").write(gen(**kw))
```

```python
import sys, re, json
from asmlib import *
import hazard
BASE = "parallel_sum__linear_kernel_hedgehog__glu_gated_reglu__prompt"
K1 = BASE + "_kernel"
K2 = "reduce_kernel"

PSZ = 2048 * 576 * 2
WS_HX = 0x1000000
WS_OX = 0x2200000
WS_RS2 = 0x2500000
WS_KVP = 0x2510000
WS_KVF = 0x2700000
WS_FLG = 0x2780000
WS_TS = 0x2800000
WS_BYTES = 0x10000000
SX, SW1, SW2, SWS, SDBG, SPHI = 8, 12, 16, 20, 24, 28
sW, sR, sS, sT, sOFF, sM0W, sB1, sB2, sST, sT2 = 32, 33, 34, 35, 36, 37, 38, 39, 40, 41
sCNT = 52
OOB = 0x40000000
RING = 144
NB = 8

class G(Asm):
    def __init__(self, opt):
        super().__init__()
        self.opt = opt
        self.vm = []
        self.lg = []
        self.nts = 0
    def e(self, s, tag=None):
        if s.startswith(("buffer_", "global_")): self.vm.append(tag)
        if s.startswith("ds_"): self.lg.append(tag)
        super().e(s)
    def vm_n(self, tag):
        idx = [i for i, t in enumerate(self.vm) if t == tag]
        assert idx, tag
        return len(self.vm) - 1 - idx[-1]
    def wait_vm(self, tag):
        n = min(self.vm_n(tag), 63)
        self.e("s_waitcnt vmcnt(%d)" % n)
    def wait_lg(self, tag):
        idx = [i for i, t in enumerate(self.lg) if t == tag]
        n = min(len(self.lg) - 1 - idx[-1], 15)
        self.e("s_waitcnt lgkmcnt(%d)" % n)
    def stamp(self):
        if not self.opt.get("ts"): return
        e = self.e
        e("s_memtime s[90:91]"); e("s_memrealtime s[92:93]")
        e("s_waitcnt lgkmcnt(0)")
        if self.opt.get("dbgts") is not None:
            sel = self.opt.get("dbgsel", list(range(15)))
            if self.nts in sel:
                e("v_mov_b32 v30, s92")
                e("buffer_store_dword v30, off, s[%d:%d], s94 offset:%d" % (SDBG, SDBG + 3, 4 + 4 * sel.index(self.nts)))
            self.nts += 1
            return
        for k, sg in enumerate((90, 92)):
            e("v_mov_b32 v30, s%d" % sg)
            e("buffer_store_dword v30, off, s[%d:%d], s94 offset:%d" % (SWS, SWS + 3, 8 * self.nts + 4 * k))
        self.nts += 1

def mfma(d, a, b, c=None):
    return "v_mfma_f32_16x16x32_bf16 %s, %s, %s, %s" % (d, a, b, d if c is None else c)

class Stage:
    def __init__(self, lo, hi, pre, dmas, frags, gate=None):
        dmas = [d if isinstance(d, list) else [d] for d in dmas]
        dmas[0] = list(pre) + dmas[0]
        self.lo, self.hi, self.dmas, self.frags, self.gate = lo, hi, dmas, frags, gate
        self.before = None; self.after = None

class Pipe:
    def __init__(self, g, stages, D=6, BE=1):
        self.g, self.st, self.D, self.BE = g, stages, D, BE
        self.next = 0
        self.safe = -1
        self.q = []
        self.open = set()
        self.fi = 0
        self.done = -1
        self.qthr = 4 * BE + 1
        self.when = {}
    def can(self, m):
        s = self.st[m]
        if s.gate is not None and s.gate not in self.open: return False
        return all(k <= self.safe for k in range(m) if self.st[k].lo < s.hi and s.lo < self.st[k].hi)
    def refill(self):
        while self.next < len(self.st) and self.can(self.next):
            for d in self.st[self.next].dmas: self.q.append([list(d), ("st", self.next)])
            self.next += 1
    def pop(self):
        if not self.q: return []
        t, tag = self.q.pop(0)
        return [(x, tag) for x in t]
    def flush(self):
        while self.q:
            for t, tag in self.pop(): self.g.e(t, tag)
    def enter(self, n, last, hook=None):
        g = self.g
        late = 0
        while any(tag[1] <= last for _, tag in self.q):
            late += 1
            for t, tg in self.pop(): g.e(t, tg)
        if late and n > 2: print("warning: %d DMA issued late for stage %d" % (late, n))
        assert self.next > last, (n, last)
        for k in range(n, last + 1):
            if self.st[k].before: self.st[k].before()
        if hook and hook.before: hook.before()
        g.wait_vm(("st", last)); g.e("s_barrier")
        if hook and hook.after: hook.after()
        for k in range(n, last + 1):
            if self.st[k].after: self.st[k].after()
        self.safe = max(self.safe, self.done)
        self.refill()
    def run(self, s0, s1, extra=None, pauses=(), groups=None, urgent=None, lagok=True):
        g, D = self.g, self.D
        WP = g.opt.get("wp", 4)
        pend = []; urg = []; urgent = urgent or {}; cur = [0]; dens = [0]
        extra = extra or {}
        fl = [(n, k, f) for n in range(s0, s1) for k, f in enumerate(self.st[n].frags)]
        if groups is None: groups = list(range(s0, s1, self.BE))
        gend = {a: (groups[i + 1] if i + 1 < len(groups) else s1) - 1 for i, a in enumerate(groups)}
        base = self.fi
        needbar = lambda j: j < len(fl) and fl[j][1] == 0 and fl[j][0] in gend
        def reads(j):
            buf = RING + 4 * ((base + j) % NB)
            for t in fl[j][2][0](buf): g.e(t, ("fr", base + j))
        def wl(i):
            w = min(i + WP - 1, len(fl) - 1)
            g.wait_lg(("fr", base + w))
            self.done = max(self.done, fl[w][0] if fl[w][1] == len(self.st[fl[w][0]].frags) - 1 else fl[w][0] - 1)
        def cost(it):
            if isinstance(it, (Mark, Dens)): return 0
            if isinstance(it, Hook): return 99
            if isinstance(it, Delay):
                if it.until is None: it.until = cur[0] + it.n
                return 0 if cur[0] >= it.until else 99
            if callable(it): return getattr(it, "cost", 2)
            if isinstance(it, list): return min(len(it), 2)
            t = it[0] if isinstance(it, tuple) else it
            return 2 if t.startswith(("buffer_", "global_", "v_mfma", "v_exp", "v_rcp")) else 1
        def emit(it, i):
            if isinstance(it, Mark): self.when[it.name] = i
            elif isinstance(it, Dens): dens[0] = it.n
            elif isinstance(it, Delay):
                if i >= len(fl): g.e("s_nop 7")
            elif isinstance(it, Hook):
                if it.before: it.before()
                g.e("s_barrier")
                if it.after: it.after()
            elif callable(it): it()
            elif isinstance(it, list):
                for x in it: g.e(x)
            elif isinstance(it, tuple): g.e(it[0], it[1])
            else: g.e(it)
        for j in range(min(D, len(fl))):
            if needbar(j): self.enter(fl[j][0], gend[fl[j][0]])
            reads(j)
        if needbar(D): self.enter(fl[D][0], gend[fl[D][0]])
        wl(0)
        since = 9
        for i, (n, k, f) in enumerate(fl):
            ms = f[1](RING + 4 * ((base + i) % NB))
            g.e(ms[0])
            if i + D < len(fl): reads(i + D)
            g.e(ms[1])
            pend += [(i, x) for x in extra.get(i, [])]; urg += urgent.get(i, [])
            since += 1; cur[0] = i
            wdue = (i + 1) % WP == 0 and i + 1 < len(fl)
            if needbar(i + 1 + D):
                if wdue: wl(i + 1)
                hook = pend.pop(0)[1] if pend and isinstance(pend[0][1], Hook) else None
                self.enter(fl[i + 1 + D][0], gend[fl[i + 1 + D][0]], hook)
                continue
            paused = any(a <= i < b for a, b in pauses)
            if urg and not wdue:
                slots = 2
                while urg and cost(urg[0]) <= slots:
                    it = urg.pop(0); slots -= cost(it); emit(it, i)
                continue
            used = False
            if self.q and len(self.q[0][0]) > 1:
                if wdue: wl(i + 1)
                while len(self.q[0][0]) > 1: g.e(self.q[0][0].pop(0))
                used = True
            elif self.q and not wdue and not paused and since >= (2 if len(self.q) > self.qthr else self.g.opt.get("dcad", 3)):
                it = self.q.pop(0); g.e(it[0][0], it[1]); since = 0
                used = True
            if used and not dens[0]: continue
            slots = 0 if used else 2
            if wdue and not used: wl(i + 1); slots = 1
            if dens[0]: slots += dens[0]
            elif lagok and pend and i - pend[0][0] > g.opt.get("lag", 30): slots += 1
            while pend and cost(pend[0][1]) <= slots:
                it = pend.pop(0)[1]; slots -= cost(it); emit(it, i)
        for it in urg + [x[1] for x in pend]: emit(it, len(fl))
        self.fi = base + len(fl)
    def drained(self, upto):
        self.safe = max(self.safe, upto); self.refill()

class Mark:
    def __init__(self, name): self.name = name
class Hook:
    def __init__(self, before=None, after=None): self.before, self.after = before, after
class Delay:
    def __init__(self, n): self.n = n; self.until = None
class Dens:
    def __init__(self, n): self.n = n

def group_scc(ops):
    out = []
    for op in ops:
        if isinstance(op, str) and op.startswith("s_cselect"): out[-1] = [out[-1], op]
        else: out.append(op)
    return out

def spread(ops, lo, hi, extra):
    ops = group_scc(ops); n = hi - lo
    for k, op in enumerate(ops):
        extra.setdefault(lo + k * n // len(ops), []).append(op)

def lane_consts(g):
    e = g.e
    e("v_lshrrev_b32 v22, 4, v0")
    e("v_and_b32 v23, 15, v0")

def prologue(g, pipe, XV=112, early=None, afterbar=None, fill=(), var=False, nfirst=8, mid=None):
    e, opt = g.e, g.opt
    xf = opt.get("xflags", "")
    e("v_lshrrev_b32 v104, 3, v0")
    e("v_mul_u32_u24 v104, 1152, v104")
    e("v_and_b32 v105, 7, v0")
    e("v_xor_b32 v105, v105, v22")
    e("v_lshl_add_u32 v104, v105, 4, v104")
    e("v_xor_b32 v105, 64, v104")
    e("s_lshl_b32 s%d, s%d, 2" % (sT, sR))
    e("s_add_u32 s%d, s%d, s%d" % (sT, sT, sW))
    e("s_mul_i32 s%d, s%d, %d" % (sT, sT, 32 * 1152))
    e("s_mul_i32 s%d, s%d, 36864" % (sT2, sW))
    e("s_lshr_b32 s60, s2, 6") if opt.get("xrot", 1) else e("s_mov_b32 s60, 0")
    e("s_and_b32 s3, s60, 1")
    e("s_lshl_b32 s3, s3, 6")
    e("v_xor_b32 v104, s3, v104")
    e("v_xor_b32 v105, s3, v105")
    for o in range(4):
        e("s_add_u32 s3, s60, %d" % o)
        e("s_and_b32 s3, s3, 3")
        e("s_mul_i32 s3, s3, 9216")
        e("s_add_u32 s61, s%d, s3" % sT2)
        e("s_add_u32 s62, s%d, s3" % sT)
        for j in range(9):
            e("s_add_u32 m0, s61, %d" % (j * 1024))
            e("s_add_u32 s%d, s62, %d" % (sOFF, j * 128))
            e("buffer_load_dwordx4 v%d, s[%d:%d], s%d offen %s lds" % (104 + (o & 1), SX, SX + 3, sOFF, xf), ("x", j))
            if mid and o * 9 + j == mid[0]: mid[1]()
            if o * 9 + j >= 6:
                for it in fill[(o * 9 + j - 6) * len(fill) // 30:(o * 9 + j - 5) * len(fill) // 30]:
                    for x in (it if isinstance(it, list) else [it]): e(x, "fill")
    if early: early()
    e("v_lshrrev_b32 v106, 3, v23")
    e("v_mul_u32_u24 v106, 9216, v106")
    e("v_and_b32 v107, 7, v23")
    e("v_lshl_add_u32 v106, v107, 7, v106")
    e("v_lshrrev_b32 v107, 1, v23")
    e("v_xor_b32 v107, v107, v22")
    e("v_lshl_add_u32 v106, v107, 4, v106")
    e("v_add_u32 v106, s%d, v106" % sT2)
    e("v_xor_b32 v107, 64, v106")
    for i in range(4): e("v_mov_b32 v%d, 0x3f803f80" % (80 + i))
    for i in (72, 73, 76, 77): e("v_mov_b32 v%d, 0" % i)
    e("v_lshrrev_b32 v108, 2, v23")
    e("v_cmp_eq_u32 vcc, v108, v22")
    e("v_and_b32 v108, 1, v23")
    e("v_lshlrev_b32 v108, 4, v108")
    e("v_mov_b32 v78, 0x3f80")
    e("v_lshlrev_b32 v78, v108, v78")
    e("v_cndmask_b32 v78, 0, v78, vcc")
    e("v_and_b32 v108, 2, v23")
    e("v_cmp_eq_u32 vcc, 0, v108")
    e("s_nop 1")
    e("v_cndmask_b32 v74, 0, v78, vcc")
    e("v_cndmask_b32 v75, v78, 0, vcc") if False else None
    e("v_sub_u32 v75, v78, v74")
    X = lambda tt, ks: XV + (ks * 2 + tt) * 4
    g.stamp()
    for j in range(10):
        if j < 9:
            g.wait_vm(("x", j))
            for ks in (2 * j, 2 * j + 1):
                for tt in range(2):
                    e("ds_read_b128 %s, v%d offset:%d" % (vr(X(tt, ks), 4), 106 + (ks & 1), tt * 18432 + j * 1024), ("xr", j))
        if j > 0:
            g.wait_lg(("xr", j - 1))
            for ks in (2 * j - 2, 2 * j - 1):
                for tt in range(2):
                    e(mfma(vr(64 + 4 * tt, 4), vr(80, 4), vr(X(tt, ks), 4), "0" if ks == 0 else None))
    e("s_barrier")
    g.stamp()
    pipe.open.add("x"); pipe.refill()
    for _ in range(nfirst):
        for t, tag in pipe.pop(): e(t, tag)
    if afterbar: afterbar()
    e("s_nop 3")
    e("s_mov_b32 s%d, 0x%08x" % (sT, 0xbae38e39))
    for i in range(8): e("v_mul_f32 v%d, s%d, v%d" % (64 + i, sT, 64 + i))
    e("s_nop 1")
    fr = [(tt, ks) for ks in range(18) for tt in range(2)]
    LAG = 2
    for k in range(len(fr) + LAG + 1):
        cv = []
        if LAG <= k < len(fr) + LAG:
            tt, ks = fr[k - LAG]; d = 32 + 8 * ((k - LAG) % 4); x = X(tt, ks)
            cv = ["v_cvt_pk_bf16_f32 v%d, v%d, v%d" % (x + i, d + 2 * i, d + 2 * i + 1) for i in range(4)]
        if k < len(fr):
            tt, ks = fr[k]; d = 32 + 8 * (k % 4)
            e(mfma(vr(d, 4), vr(74, 4), vr(X(tt, ks), 4), vr(64 + 4 * tt, 4)))
            if k == LAG: e("s_nop 3")
            for t in cv[:2]: e(t)
            e(mfma(vr(d + 4, 4), vr(72, 4), vr(X(tt, ks), 4), vr(64 + 4 * tt, 4)))
            for t in cv[2:]: e(t)
        else:
            e("s_nop 3")
            for t in cv: e(t)
        if var and k > LAG:
            tt, ks = fr[k - LAG - 1]; x = X(tt, ks)
            e(mfma(vr(96 + 4 * tt, 4), vr(x, 4), vr(x, 4), "0" if ks == 0 else None))
    g.stamp()

def XV0(tt, ks): return vr(112 + (ks * 2 + tt) * 4, 4)
def xc_copies(): return ["v_accvgpr_write_b32 a%d, v%d" % (i, 112 + i) for i in range(144)]
def XC(tt, ks): return ar((ks * 2 + tt) * 4, 4)

def tr_bases(g, dst, rowmul):
    e = g.e
    out = []
    out.append("v_bfe_u32 v28, v0, 2, 2")
    out.append("v_mad_u32_u24 v28, v22, %d, v28" % rowmul)
    out.append("v_lshlrev_b32 v%d, 7, v28" % dst)
    out.append("v_bfe_u32 v28, v0, 3, 2")
    out.append("v_lshl_add_u32 v%d, v28, 5, v%d" % (dst, dst))
    out.append("v_and_b32 v28, 3, v0")
    out.append("v_lshl_add_u32 v%d, v28, 3, v%d" % (dst, dst))
    for t in range(1, 4): out.append("v_xor_b32 v%d, %d, v%d" % (dst + t, 32 * t, dst))
    for grp in (1, 2):
        for t in range(4): out.append("v_add_u32 v%d, 0x%x, v%d" % (dst + 4 * grp + t, grp << 16, dst + t))
    return out

def tr_reads(bases, t, off, second):
    def f(buf):
        o2 = off + second
        assert (off >> 16) == (o2 >> 16)
        b = bases + 4 * (off >> 16) + t
        return ["ds_read_b64_tr_b16 %s, v%d offset:%d" % (ar(buf, 2), b, off & 0xffff),
                "ds_read_b64_tr_b16 %s, v%d offset:%d" % (ar(buf + 2, 2), b, o2 & 0xffff)]
    return f

def store_ops(g, acc, P, c, voff):
    sf = g.opt.get("sflags", "sc1" if g.opt.get("fuse", 1) else "")
    ops = ["s_add_u32 s%d, s%d, %d" % (sT2, sST, c * 4096)]
    for tt in range(2):
        for hf in range(2):
            p = P + (tt * 2 + hf) * 4
            for k in range(2):
                s = acc + ((2 * hf + k) * 2 + tt) * 4
                ops.append("v_cvt_pk_bf16_f32 v%d, v%d, v%d" % (p + 2 * k, s, s + 1))
                ops.append("v_cvt_pk_bf16_f32 v%d, v%d, v%d" % (p + 2 * k + 1, s + 2, s + 3))
            if not g.opt.get("nostore"):
                ops.append("buffer_store_dwordx4 %s, v%d, s[%d:%d], s%d offen offset:%d %s" % (vr(p, 4), voff, SWS, SWS + 3, sT2, (tt * 2 + hf) * 1024, sf))
    return ops

sNON = 97
def flag_load(vreg, vfl, sline):
    if sline is None: return "buffer_load_dword v%d, v%d, s[%d:%d], 0 offen sc1" % (vreg, vfl, SDBG, SDBG + 3)
    return "buffer_load_dword v%d, v%d, s[%d:%d], s%d offen sc1" % (vreg, vfl, SWS, SWS + 3, sline)

def flag_issue(g, vreg, vfl, sline):
    g.e(flag_load(vreg, vfl, sline), "flag")

def flag_check(g, vreg, vfl, sline, mask, issued=True, sleep=4):
    if g.opt.get("nofl") and sline is not None: return
    e = g.e
    L = g.newlabel("L_poll"); Ld = g.newlabel("L_polld"); Lc = g.newlabel("L_pollc")
    e("s_cmp_lg_u32 s%d, 0" % sW)
    e("s_cbranch_scc1 %s" % Ld)
    e("s_mov_b32 s89, 0x20000")
    if issued:
        g.wait_vm("flag")
        e("s_branch %s" % Lc)
    g.label(L)
    Asm.e(g, flag_load(vreg, vfl, sline))
    e("s_waitcnt vmcnt(0)")
    g.label(Lc)
    if sline is None:
        e("v_readfirstlane_b32 s%d, v%d" % (sNON, vreg))
        e("s_sub_u32 s89, s89, 1")
        e("s_cmp_lg_u32 s%d, 0" % sNON)
    else:
        e("v_cmp_eq_u32 s[98:99], s%d, v%d" % (sNON, vreg))
        e("s_sub_u32 s89, s89, 1")
        e("s_and_b32 s98, s98, 0x%x" % mask)
        e("s_cmp_eq_u32 s98, 0x%x" % mask)
    e("s_cbranch_scc1 %s" % Ld)
    e("s_sleep %d" % sleep)
    e("s_cmp_lg_u32 s89, 0")
    e("s_cbranch_scc1 %s" % L)
    g.label(Ld)

def flag_lane_offsets(vfl, vtmp):
    return ["s_lshl_b32 s96, s%d, 6" % sW, "v_add_u32 v%d, s96, v0" % vtmp, "v_cmp_gt_u32 vcc, 16, v%d" % vtmp, "v_lshlrev_b32 v%d, 2, v0" % vfl,
            "v_mov_b32 v%d, 0x%x" % (vtmp, OOB), "v_cndmask_b32 v%d, v%d, v%d, vcc" % (vfl, vtmp, vfl)]

def code_pf(label, add=0):
    return "s_load_dword s88, s[86:87], @%s+%d" % (label, add)

def signal(g, vtmp, voff, sword, imm=0):
    g.e("v_mov_b32 v%d, s%d" % (vtmp, sNON))
    g.e("buffer_store_dword v%d, v%d, s[%d:%d], s%d offen offset:%d sc1" % (vtmp, voff, SWS, SWS + 3, sword, imm))

def ffn_role(g):
    e, opt = g.e, g.opt
    wf = opt.get("wflags", "")
    ACC = [32, 96]; H = 160; B1 = 9; PK = 128; VST = 21
    sI, sJ = 42, 43; sKB = 44; sHX = 47; sOX = 50; sWO = 53; sM0B = 58
    CPF = opt.get("codepf", 0)
    e("s_sub_u32 s%d, s3, 1" % sI)
    e("s_mov_b32 s%d, s%d" % (sJ, sS))
    e("s_mul_i32 s%d, s%d, 3" % (sS, sJ))
    e("s_add_u32 s%d, s%d, s%d" % (sS, sS, sI))
    e("s_cmp_ge_u32 s%d, 2" % sW)
    e("s_cselect_b32 s%d, s74, s72" % sT)
    e("s_cselect_b32 s%d, s75, s73" % sT2)
    srd(g, SW1, sT, sT2, 576 * 4608 * 2)
    e("s_lshl_b32 s%d, s%d, 12" % (sM0W, sW))
    e("s_mul_i32 s%d, s%d, %d" % (sB1, sS, 0 if opt.get("samew") else 768))
    def late_setup():
        o = []; sT = 95
        a = Asm(); srd(a, SW2, 76, 77, 4608 * 576 * 2); srd(a, SPHI, 70, 71, 576 * 576 * 2)
        o += [l.strip() for l in a.lines]
        for b in range(3):
            o += ["s_add_u32 s%d, s%d, %d" % (sT, sI, b), "s_cmp_ge_u32 s%d, 3" % sT, "s_cselect_b32 s96, 3, 0", "s_sub_u32 s%d, s%d, s96" % (sT, sT),
                  "s_mul_i32 s96, s%d, 3" % sJ, "s_add_u32 s%d, s%d, s96" % (sT, sT),
                  "s_mul_i32 s%d, s%d, %d" % (sKB + b, sT, 384 * 1152), "s_mul_i32 s96, s%d, 384" % sI, "s_add_u32 s%d, s%d, s96" % (sKB + b, sKB + b),
                  "s_mul_i32 s96, s%d, 12" % sR, "s_add_u32 s%d, s%d, s96" % (sT, sT), "s_lshl_b32 s%d, s%d, 2" % (sT, sT), "s_add_u32 s%d, s%d, s%d" % (sT, sT, sW),
                  "s_mul_i32 s%d, s%d, 24576" % (sHX + b, sT), "s_add_u32 s%d, s%d, 0x%x" % (sHX + b, sHX + b, WS_HX)]
        o += ["s_lshl_b32 s%d, s%d, 2" % (sT, sR), "s_add_u32 s%d, s%d, s%d" % (sT, sT, sJ), "s_lshl_b32 s%d, s%d, 7" % (sCNT, sT), "s_add_u32 s%d, s%d, 0x%x" % (sCNT, sCNT, WS_FLG),
              "s_lshl_b32 s63, s%d, 2" % sI, "s_add_u32 s63, s63, s%d" % sCNT,
              "s_lshl_b32 s%d, s%d, 2" % (sT, sT), "s_add_u32 s%d, s%d, s%d" % (sT, sT, sW), "s_mul_i32 s%d, s%d, 10240" % (sOX, sT), "s_add_u32 s%d, s%d, 0x%x" % (sOX, sOX, WS_OX)]
        o += ["s_mul_i32 s%d, s%d, %d" % (sST, sJ, PSZ), "s_lshl_b32 s%d, s%d, 2" % (sT, sR), "s_add_u32 s%d, s%d, s%d" % (sT, sT, sW),
              "s_mul_i32 s%d, s%d, 36864" % (sT, sT), "s_add_u32 s%d, s%d, s%d" % (sST, sST, sT),
              "s_mul_i32 s%d, s%d, 12288" % (sT, sI), "s_add_u32 s%d, s%d, s%d" % (sST, sST, sT)]
        o += ["s_mul_i32 s%d, s%d, %d" % (sB2, sJ, 144 * 1152), "s_mul_i32 s96, s%d, 384" % sI, "s_add_u32 s%d, s%d, s96" % (sB2, sB2),
              "s_lshl_b32 s%d, s%d, 10" % (sM0B, sW)]
        for i in range(5):
            d = sWO + i
            o += (["s_lshl_b32 s%d, s%d, 2" % (sT, sW), "s_add_u32 s%d, s%d, %d" % (sT, sT, i)] if i < 4 else ["s_add_u32 s%d, s%d, 16" % (sT, sW)])
            o += ["s_lshr_b32 s96, s%d, 1" % sT, "s_lshl_b32 s%d, s96, 2" % d, "s_cmp_ge_u32 s96, 5", "s_cselect_b32 s96, 52, 0",
                  "s_add_u32 s%d, s%d, s96" % (d, d), "s_and_b32 s%d, s%d, 1" % (sT, sT), "s_mul_i32 s%d, s%d, 36" % (sT, sT),
                  "s_add_u32 s%d, s%d, s%d" % (d, d, sT), "s_mul_i32 s%d, s%d, 1152" % (d, d), "s_add_u32 s%d, s%d, s%d" % (d, d, sB2)]
        return o
    stages = []
    def slot(n): return ((n + 9) % 10) * 16384
    for rho in range(6):
        acc = ACC[rho & 1]
        for st in range(9):
            n = len(stages); lo = slot(n)
            pre = ["s_add_u32 m0, s%d, %d" % (sM0W, lo), "s_add_u32 s%d, s%d, %d" % (sOFF, sB1, st * 64 * 9216 + (0 if opt.get('samew') else rho * 128))]
            dmas = ["buffer_load_dwordx4 v%d, s[%d:%d], s%d offen offset:%d %s lds" % (1 + i, SW1, SW1 + 3, sOFF, i * 1024, wf) for i in range(4)]
            frags = []
            for kk in range(2):
                ks = 2 * st + kk
                for t in range(4):
                    for mat in range(2):
                        def mf(buf, ks=ks, t=t, mat=mat, acc=acc, XC=(XC if rho else XV0)):
                            order = (0, 1) if mat == 0 else (1, 0)
                            return [mfma(vr(acc + ((t * 2 + mat) * 2 + tt) * 4, 4), ar(buf, 4), XC(tt, ks), "0" if ks == 0 else None) for tt in order]
                        frags.append((tr_reads(B1, t, lo + mat * 8192 + kk * 4096, 512), mf))
            stages.append(Stage(lo, lo + 16384, pre, dmas, frags, None if n == 0 else "x"))
    def hreg(b, u, tt):
        k = (u * 2 + tt) * 4
        if b == 0: return vr(H + k, 4)
        if b == 1: return ar(k, 4)
        if b == 2: return ar(176 + k, 4) if u < 8 else ar(96 + k - 64, 4)
        if u < 2: return ar(128 + k, 4)
        if u < 4: return ar(240 + k - 16, 4)
        return vr(144 + k - 32, 4)
    def g2stage(b, us, cg, first):
        n = len(stages); lo = slot(n); acc = 32 + 32 * cg
        if b < 3:
            pre = ["s_add_u32 m0, s%d, %d" % (sM0W, lo), "s_add_u32 s%d, s%d, %d" % (sOFF, sKB + b, (us[0] // 4) * 128 * 1152 + cg * 128)]
            dmas = ["buffer_load_dwordx4 v%d, s[%d:%d], s%d offen offset:%d %s lds" % (5 + i, SW2, SW2 + 3, sOFF, i * 1024, wf) for i in range(4)]
        else:
            pre = []
            sel = [(sM0W, lo + i * 1024, sWO + i) for i in range(4)] if len(us) == 4 else [(sM0B, lo, sWO + 4)]
            dmas = [["s_add_u32 m0, s%d, %d" % (m, o), "s_add_u32 s%d, s%d, %d" % (sOFF, so, cg * 128),
                     "buffer_load_dwordx4 v25, s[%d:%d], s%d offen %s lds" % (SPHI, SPHI + 3, sOFF, wf)] for m, o, so in sel]
        frags = []
        for kk, u in enumerate(us):
            for t in range(4):
                def mf(buf, u=u, t=t, z=(first and kk == 0)):
                    order = (0, 1) if t % 2 == 0 else (1, 0)
                    return [mfma(vr(acc + (t * 2 + tt) * 4, 4), ar(buf, 4), hreg(b, u, tt), "0" if z else None) for tt in order]
                frags.append((tr_reads(B1, t, lo + kk * 4096, 2048), mf))
        stages.append(Stage(lo, lo + 16384, pre, dmas, frags, "x"))
    Q = lambda q: list(range(4 * q, 4 * q + 4))
    for q, cg in ((0, 0), (0, 1), (1, 0), (1, 1), (0, 2), (1, 2)): g2stage(0, Q(q), cg, q == 0)
    G2C2 = 64
    for b, q in ((0, 2), (1, 0), (1, 1), (2, 0), (2, 1), (1, 2), (2, 2)):
        for cg in range(3): g2stage(b, Q(q), cg, False)
    for cg in range(3):
        for b, us in ((3, Q(0)), (3, [4])): g2stage(b, us, cg, False)
    pipe = Pipe(g, stages, opt.get("D", 7), opt.get("BE", 2))
    TOUCH = opt.get("touch", 1); tf = opt.get("tflags", "")
    def touch1(rho):
        return ["buffer_load_dword v31, v29, s[%d:%d], s%d offen offset:%d %s" % (SW1, SW1 + 3, sB1, rho * 128, tf)]
    def touch2(b):
        if b < 3: return ["buffer_load_dword v31, v26, s[%d:%d], s%d offen %s" % (SW2, SW2 + 3, sKB + b, tf)]
        return ["buffer_load_dword v31, v26, s[%d:%d], s59 offen %s" % (SPHI, SPHI + 3, tf)]
    def touchh(k):
        return ["s_add_u32 s3, s%d, %d" % (sHX, k * 8192), "buffer_load_dword v31, v22, s[%d:%d], s3 offen" % (SWS, SWS + 3)]
    def early():
        e("v_lshrrev_b32 v28, 3, v0")
        e("s_and_b32 s%d, s%d, 1" % (sOFF, sW))
        e("s_lshl_b32 s%d, s%d, 5" % (sOFF, sOFF))
        e("v_add_u32 v1, s%d, v28" % sOFF)
        e("v_mul_u32_u24 v1, 9216, v1")
        e("v_and_b32 v2, 2, v28")
        e("v_and_b32 v3, 7, v0")
        e("v_xor_b32 v2, v2, v3")
        e("v_lshl_add_u32 v1, v2, 4, v1")
        e("v_xor_b32 v2, 64, v1")
        e("v_add_u32 v2, %d, v2" % (8 * 9216 - 1024))
        e("v_add_u32 v3, %d, v1" % (2 * (8 * 9216 - 1024)))
        e("v_add_u32 v4, %d, v2" % (2 * (8 * 9216 - 1024)))
        pipe.refill(); pipe.flush()
    def tsetup():
        e("s_and_b32 s98, s%d, 1" % sW)
        e("s_mul_i32 s98, s98, 36")
        e("s_and_b32 s%d, s%d, 7" % (99, sR))
        e("s_mul_i32 s%d, s%d, 72" % (99, 99))
        e("s_add_u32 s98, s98, s%d" % 99)
        e("v_add_u32 v29, s98, v0")
        e("v_mul_u32_u24 v29, 9216, v29")
        e("v_cmp_gt_u32 vcc, 36, v0")
        e("v_mov_b32 v31, 0x%x" % OOB)
        e("s_nop 0")
        e("v_cndmask_b32 v29, v31, v29, vcc")
    T0 = opt.get("t0pos", 8)
    if TOUCH: tsetup()
    vset = ["v_lshrrev_b32 v28, 3, v0", "s_lshl_b32 s96, s%d, 5" % sW, "v_add_u32 v5, s96, v28", "v_mul_u32_u24 v5, 1152, v5",
            "v_lshlrev_b32 v6, 1, v22", "v_and_b32 v7, 7, v0", "v_xor_b32 v6, v6, v7", "v_lshl_add_u32 v5, v6, 4, v5",
            "v_lshrrev_b32 v28, 5, v0", "v_bfe_u32 v7, v0, 3, 2", "v_lshl_add_u32 v28, v28, 4, v7", "v_mul_u32_u24 v25, 1152, v28", "v_lshl_add_u32 v25, v6, 4, v25"]
    vset += ["v_add_u32 v%d, %d, v5" % (5 + i, i * (8 * 1152 - 1024)) for i in range(1, 4)]
    vset += ["v_lshlrev_b32 v%d, 4, v0" % VST, "v_lshlrev_b32 v27, 9, v22", "v_add_u32 v28, s%d, v0" % sW, "v_cmp_eq_u32 vcc, 0, v28",
             "v_mov_b32 v24, 0x%x" % OOB, "v_mov_b32 v28, 0", "v_cndmask_b32 v24, v24, v28, vcc"]
    vset += ["v_mul_u32_u24 v28, 5462, v0", "v_lshrrev_b32 v28, 16, v28", "v_mul_u32_u24 v26, 12, v28", "v_sub_u32 v26, v0, v26",
             "s_mul_i32 s96, s%d, 12" % sW, "s_and_b32 s%d, s%d, 7" % (95, sR), "s_mul_i32 s%d, s%d, 48" % (95, 95), "s_add_u32 s96, s96, s95",
             "v_add_u32 v26, s96, v26", "v_mul_u32_u24 v26, 1152, v26", "v_lshl_add_u32 v26, v28, 7, v26",
             "v_cmp_gt_u32 vcc, 36, v0", "v_mov_b32 v28, 0x%x" % OOB, "s_nop 0", "v_cndmask_b32 v26, v28, v26, vcc",
             "s_cmp_ge_u32 s96, 144", "s_cselect_b32 s59, 0x%x, s%d" % (OOB, sB2)]
    prologue(g, pipe, early=early, afterbar=(lambda: [e(t) for t in (touch1(0) if T0 < 0 else []) + touch1(1)]) if TOUCH else None, mid=(T0, lambda: e(touch1(0)[0])) if TOUCH else None, nfirst=opt.get('nfirst', 8), fill=group_scc(late_setup() + vset + tr_bases(g, B1, 8)))
    hf = opt.get("hflags", "sc1")
    def epi1(rho):
        acc = ACC[rho & 1]; ops = []; sts = []
        for t in range(4):
            for tt in range(2):
                gt = acc + ((t * 2) * 2 + tt) * 4; up = acc + ((t * 2 + 1) * 2 + tt) * 4
                u = 2 * rho + t // 2
                h = H + (u * 2 + tt) * 4 + (t & 1) * 2
                for k in range(2):
                    for i in (2 * k, 2 * k + 1): ops.append("v_max_f32 v%d, 0, v%d" % (gt + i, gt + i))
                    for i in (2 * k, 2 * k + 1): ops.append("v_mul_f32 v%d, v%d, v%d" % (gt + i, gt + i, up + i))
                    ops.append("v_cvt_pk_bf16_f32 v%d, v%d, v%d" % (h + k, gt + 2 * k, gt + 2 * k + 1))
                if t & 1 and not (opt.get("nohst") and (t, tt) != (1, 0)):
                    if t == 1 and tt == 0: sts.append("s_add_u32 s%d, s%d, %d" % (sT2, sHX, rho * 4096))
                    sts.append(("buffer_store_dwordx4 %s, v%d, s[%d:%d], s%d offen offset:%d %s" % (hreg(0, u, tt), VST, SWS, SWS + 3, sT2, ((u & 1) * 2 + tt) * 1024, hf), ("hst", rho)))
        return ops + sts
    def hloads(b, us, tag):
        ops = []
        base = sOX if b == 3 else sHX + b
        if opt.get("noh"): us = list(us)[:1]
        for u in us:
            if u % 2 == 0: ops.append("s_add_u32 s%d, s%d, %d" % (sT, base, u * 2048))
            for tt in range(2):
                ops.append(("buffer_load_dwordx4 %s, v%d, s[%d:%d], s%d offen offset:%d %s" % (hreg(b, u, tt), VST, SWS, SWS + 3, sT, ((u & 1) * 2 + tt) * 1024, opt.get("hlflags", "sc1")), tag))
        return ops
    extra = {}
    urgent = {}
    add = lambda k, l: extra.setdefault(k, []).extend(l)
    addu = lambda k, l: urgent.setdefault(k, []).extend(l)
    EP = opt.get("epiw", 75)
    for rho in range(5):
        spread(epi1(rho) + [Mark("epi%d" % rho)], 144 * (rho + 1) + 3, 144 * (rho + 1) + EP, extra)
    P2 = 864; S2 = 54
    n01 = 40
    add(P2 + 3, epi1(5)[:n01] + [Mark("epi5a")] + epi1(5)[n01:] + [Mark("epi5")])
    pauses = []
    PA, PB = opt.get("pause", [0, 60])
    def event(k, ops):
        addu(k, ops); pauses.append((k + PA, k + PB))
    if TOUCH:
        for k, ops in zip(opt.get("tpos", [76, 292, 436, 580]), (touch1(2) + touch1(3), touch1(4) + touch1(5), touch2(0) + touch2(1), touch2(2) + touch2(3))):
            event(k, ops)
    add(1, xc_copies() + [Mark("xc")])
    add(144 + 90, flag_lane_offsets(23, 28) + [Mark("flo")])
    addu(288 + 100, [lambda: flag_issue(g, 28, 23, None)])
    stages[26].before = lambda: flag_check(g, 28, 23, None, 0)
    stages[46].before = lambda: g.wait_vm(("hst", 3))
    stages[46].after = lambda: signal(g, 28, 24, 63, 0)
    addu(720 + 76, [lambda: flag_issue(g, 28, 23, sCNT)])
    stages[52].before = lambda: flag_check(g, 28, 23, sCNT, 0x7)
    HB = opt.get("hburst", 30)
    def hevent(k, ops):
        addu(k, ops); pauses.append((k, k + HB))
    if HB:
        hevent(720 + 106, hloads(1, Q(0), "h10")); hevent(P2 + opt.get("h11pos", 30), hloads(1, Q(1), "h11"))
        spread(hloads(2, Q(0), "h20") + hloads(2, Q(1), "h21"), P2 + 120, P2 + 200, urgent)
    else:
        spread(hloads(1, Q(0), "h10") + hloads(1, Q(1), "h11"), 720 + 107, P2, urgent)
        spread(hloads(2, Q(0), "h20") + hloads(2, Q(1), "h21"), P2 + 80, P2 + 150, urgent)
    def to_g2():
        for k in range(12): e("v_sub_u32 v%d, v%d, v27" % (B1 + k, B1 + k))
    stages[S2].after = to_g2
    stages[S2 + 8].before = lambda: g.wait_vm("h10")
    stages[S2 + 10].before = lambda: g.wait_vm(("hst", 5))
    stages[S2 + 10].after = lambda: signal(g, 28, 24, 63, 16)
    stages[S2 + 12].before = lambda: g.wait_vm("h11")
    addu(P2 + 16 * 14, [lambda: flag_issue(g, 28, 23, sCNT)])
    stages[S2 + 14].before = lambda: g.wait_vm("h20")
    stages[S2 + 16].before = lambda: flag_check(g, 28, 23, sCNT, 0x70)
    if HB:
        hevent(P2 + 16 * 16 - 6, hloads(1, Q(2), "h12")); spread(hloads(2, Q(2), "h22"), P2 + 16 * 20, P2 + 16 * 22 - 2, urgent)
    else:
        spread(hloads(1, Q(2), "h12") + hloads(2, Q(2), "h22"), P2 + 16 * 16 - 5, P2 + 16 * 19, urgent)
    stages[S2 + 18].before = lambda: g.wait_vm("h21")
    stages[S2 + 20].before = lambda: g.wait_vm("h12")
    addu(P2 + 16 * 22, [lambda: flag_issue(g, 28, 23, sCNT)])
    stages[S2 + 24].before = lambda: (g.wait_vm("h22"), flag_check(g, 28, 23, sCNT, 0x100))
    addu(P2 + 16 * 24 - 5, hloads(3, range(5), "oL"))
    stages[S2 + 27].before = lambda: g.wait_vm("oL")
    C0 = P2 + 16 * 27
    FUSE = opt.get("fuse", 1)
    sFL, sFW, sPL, sCOL, sRS = 64, 65, 66, 67, 68
    if FUSE:
        a2 = Asm(); srd(a2, SW1, 78, 79, PSZ)
        fin = [l.strip() for l in a2.lines]
        fin += ["s_mul_i32 s95, s%d, 3" % sR, "s_add_u32 s95, s95, s%d" % sI, "s_lshl_b32 s%d, s95, 7" % sFL, "s_add_u32 s%d, s%d, 0x%x" % (sFL, sFL, WS_FLG + 72 * 128),
                "s_lshl_b32 s%d, s%d, 2" % (sFW, sJ), "s_add_u32 s%d, s%d, s%d" % (sFW, sFW, sFL),
                "s_mul_i32 s95, s%d, %d" % (sJ, PSZ - 1024), "s_sub_u32 s%d, s%d, s95" % (sPL, sST),
                "s_mul_i32 s%d, s%d, 384" % (sCOL, sI), "s_and_b32 s95, s%d, 1" % sJ, "s_lshl_b32 s95, s95, 6", "s_add_u32 s%d, s%d, s95" % (sCOL, sCOL),
                "s_lshr_b32 s95, s%d, 1" % sJ, "s_lshl_b32 s95, s95, 4", "s_lshl_b32 s96, s%d, 5" % sW, "s_add_u32 s95, s95, s96",
                "v_and_b32 v173, 15, v0", "v_add_u32 v173, s95, v173", "v_lshlrev_b32 v174, 2, v173",
                "s_lshl_b32 s96, s%d, 7" % sR, "v_add_u32 v173, s96, v173", "v_mul_u32_u24 v173, 1152, v173",
                "v_bfe_u32 v175, v0, 4, 1", "v_lshl_add_u32 v173, v175, 5, v173", "v_lshrrev_b32 v175, 5, v0", "v_lshl_add_u32 v173, v175, 4, v173",
                "s_lshl_b32 s96, s%d, 2" % sR, "s_add_u32 s96, s96, s%d" % sJ, "s_lshl_b32 s%d, s96, 9" % sRS, "s_add_u32 s%d, s%d, 0x%x" % (sRS, sRS, WS_RS2),
                "s_mov_b32 s70, 0x3f80", "s_mov_b32 s71, 0x3f800000"]
        fin += ["v_mov_b32 v%d, 0" % (224 + i) for i in range(24)]
        addu(P2 + 16 * 27 + 2, [("buffer_load_dwordx4 %s, v173, s[%d:%d], s%d offen offset:%d" % (vr(160 + 4 * cg, 4), SX, SX + 3, sCOL, cg * 128), "fx") for cg in range(3)])
        add(P2 + 16 * 11, fin + [Mark("fin")])
        addu(P2 + 16 * 24 - 5, [("buffer_load_dword v172, v174, s[%d:%d], s%d offen sc1" % (SWS, SWS + 3, sRS), "rs")])
    for cg in range(2): add(C0 + 20 * (cg + 1) + 3, store_ops(g, 32 + 32 * cg, PK + 0, cg, VST))
    if opt.get("ts"):
        for k in (144, 288, 432, 576, 720, P2, P2 + 144, P2 + 288, C0): addu(k, [g.stamp])
    groups = list(range(0, S2 + 25, 2)) + [S2 + 27, S2 + 29, S2 + 31]
    pipe.run(0, len(stages), extra, pauses=pauses, groups=groups, urgent=urgent)
    w = pipe.when
    if opt.get("verbose"): print(w)
    assert w["xc"] < 142 and w["flo"] < 288 + 100 and all(w["epi%d" % r] < 144 * (r + 2) - 1 for r in range(5)), w
    assert w["epi5a"] < P2 + G2C2 - 1 and w["epi5"] < P2 + 96 - 1, w
    g.stamp()
    e("s_nop 7")
    for t in store_ops(g, 96, PK, 2, VST): e(t)
    if FUSE:
        assert w["fin"] < P2 + 16 * 23
        e("s_waitcnt vmcnt(0)"); e("s_barrier")
        signal(g, 28, 24, sFW, 0)
        g.stamp()
        flag_check(g, 28, 23, sFL, 0xf, issued=False, sleep=1)
        e("s_barrier")
        g.stamp()
        for p in range(4):
            for cg in range(3):
                if cg: e("s_add_u32 s95, s%d, %d" % (sPL, p * PSZ + cg * 4096))
                elif p: e("s_add_u32 s95, s%d, %d" % (sPL, p * PSZ))
                e("buffer_load_dwordx4 %s, v%d, s[%d:%d], s%d offen sc1" % (vr(176 + 4 * (p * 3 + cg), 4), VST, SWS, SWS + 3, 95 if p or cg else sPL), ("pl", p))
        for p in range(4):
            g.wait_vm(("pl", p))
            for cg in range(3):
                for i in range(4):
                    e("v_dot2c_f32_bf16 v%d, s70, v%d" % (224 + 8 * cg + 2 * i, 176 + 4 * (p * 3 + cg) + i))
                    e("v_dot2c_f32_bf16 v%d, s71, v%d" % (225 + 8 * cg + 2 * i, 176 + 4 * (p * 3 + cg) + i))
        e("s_nop 2")
        for cg in range(3):
            A = 224 + 8 * cg
            for i in range(4): e("v_permlane16_swap_b32 v%d, v%d" % (A + i, A + 4 + i))
            for i in range(4):
                e("v_lshlrev_b32 v176, 16, v%d" % (160 + 4 * cg + i))
                e("v_and_b32 v177, 0xffff0000, v%d" % (160 + 4 * cg + i))
                e("v_fma_f32 v176, v%d, v172, v176" % (A + 2 * i))
                e("v_fma_f32 v177, v%d, v172, v177" % (A + 2 * i + 1))
                e("v_cvt_pk_bf16_f32 v%d, v176, v177" % (180 + 4 * cg + i))
            e("buffer_store_dwordx4 %s, v173, s[%d:%d], s%d offen offset:%d %s" % (vr(180 + 4 * cg, 4), SW1, SW1 + 3, sCOL, cg * 128, opt.get("oflags", "")))
    if opt.get("ts"):
        e("s_waitcnt vmcnt(0)"); g.stamp()

def k1(g):
    e, opt = g.e, g.opt
    kernel_head(g, K1)
    e("s_getpc_b64 s[84:85]")
    e("s_cmp_ge_u32 s2, 256")
    e("s_cbranch_scc1 L_k1_end")
    e("s_load_dwordx8 s[64:71], s[0:1], 0")
    e("s_load_dwordx4 s[72:75], s[0:1], 40")
    e("s_load_dwordx4 s[76:79], s[0:1], 56")
    e("s_load_dwordx4 s[80:83], s[0:1], 72")
    if opt.get("vpf", 1):
        e("s_lshr_b32 s3, s2, 3")
        e("s_lshl_b32 s3, s3, 12")
        e("v_lshrrev_b32 v2, 3, v0")
        e("v_lshlrev_b32 v2, 7, v2")
        e("v_add_u32 v2, s3, v2")
        e("v_min_u32 v2, L_k1_end-%s, v2" % K1)
        e("global_load_dword v255, v2, s[84:85]")
    e("v_lshrrev_b32 v1, 6, v0")
    e("v_and_b32 v0, 63, v0")
    e("v_readfirstlane_b32 s%d, v1" % sW)
    lane_consts(g)
    e("s_and_b32 s%d, s2, 1" % sR)
    e("s_lshl_b32 s%d, s%d, 3" % (sR, sR))
    e("s_bfe_u32 s%d, s2, 0x30003" % sT)
    e("s_or_b32 s%d, s%d, s%d" % (sR, sR, sT))
    e("s_bfe_u32 s%d, s2, 0x20001" % sS)
    e("s_lshr_b32 s3, s2, 6")
    if opt.get("ts"):
        e("s_lshl_b32 s94, s2, 2"); e("s_add_u32 s94, s94, s%d" % sW); e("s_lshl_b32 s94, s94, 8"); e("s_add_u32 s94, s94, 0x%x" % WS_TS)
        if opt.get("dbgts") is not None:
            e("s_lshl_b32 s94, s2, 2"); e("s_add_u32 s94, s94, s%d" % sW); e("s_cmp_eq_u32 s94, %d" % (4 * opt["dbgts"])); e("s_cselect_b32 s94, 0, 0x10000")
    e("s_lshr_b32 s86, s2, 3")
    e("s_cmp_ge_u32 s86, 8")
    e("s_cselect_b32 s87, 8, 0")
    e("s_sub_u32 s86, s86, s87")
    e("s_lshl_b32 s86, s86, 2")
    e("s_add_u32 s86, s86, s%d" % sW)
    e("s_lshl_b32 s86, s86, 6")
    e("s_add_u32 s86, s84, s86")
    e("s_addc_u32 s87, s85, 0")
    e("s_waitcnt lgkmcnt(0)")
    srd(g, SX, 64, 65, PSZ)
    wb = opt.get("wsbase", 0)
    if wb:
        e("s_add_u32 s82, s82, 0x%x" % wb); e("s_addc_u32 s83, s83, 0")
    srd(g, SWS, 82, 83, WS_BYTES - wb)
    srd(g, SDBG, 80, 81, 256)
    e("s_or_b32 s%d, s2, s%d" % (sT, sW))
    e("s_cbranch_scc1 L_nonce_done")
    e("s_memrealtime s[98:99]")
    e("s_waitcnt lgkmcnt(0)")
    e("v_mov_b32 v2, s98")
    e("v_or_b32 v2, 1, v2")
    Asm.e(g, "buffer_store_dword v2, off, s[%d:%d], 0 sc1" % (SDBG, SDBG + 3))
    g.label("L_nonce_done")
    g.stamp()
    e("s_cmp_eq_u32 s3, 0")
    e("s_cbranch_scc1 %s" % ("L_k1_end" if opt.get("noatt") else "L_att"))
    sv = (list(g.vm), list(g.lg), g.nts)
    ffn_role(g)
    e("s_endpgm")
    g.vm, g.lg, g.nts = sv
    g.raw(".p2align 6")
    g.label("L_att")
    import att
    att.att_role(g)
    g.label("L_k1_end")
    e("s_endpgm")

def k2(g):
    e, opt = g.e, g.opt
    g.vm = []; g.lg = []
    kernel_head(g, K2)
    lf = opt.get("k2flags", "")
    e("s_cmp_ge_u32 s2, 256")
    e("s_cbranch_scc1 L_k2_end")
    if opt.get("ts"): e("s_memrealtime s[32:33]")
    e("s_load_dwordx2 s[4:5], s[0:1], 0")
    e("s_load_dwordx2 s[6:7], s[0:1], 64")
    e("s_load_dwordx2 s[24:25], s[0:1], 80")
    e("v_lshrrev_b32 v1, 6, v0")
    e("v_and_b32 v0, 63, v0")
    e("v_readfirstlane_b32 s3, v1")
    e("s_mul_i32 s26, s2, 9")
    e("s_add_u32 s26, s26, s3")
    e("s_lshl_b32 s27, s26, 10")
    e("v_lshlrev_b32 v1, 4, v0")
    e("s_waitcnt lgkmcnt(0)")
    wb = opt.get("wsbase", 0)
    if wb:
        e("s_add_u32 s24, s24, 0x%x" % wb); e("s_addc_u32 s25, s25, 0")
    srd(g, 16, 24, 25, WS_BYTES - wb)
    for p in range(4):
        e("buffer_load_dwordx4 %s, v1, s[16:19], s27 offen %s" % (vr(16 + 4 * p, 4), lf), ("p", p))
        if p < 3: e("s_add_u32 s27, s27, %d" % PSZ)
    srd(g, 8, 4, 5, PSZ)
    srd(g, 12, 6, 7, PSZ)
    e("s_lshr_b32 s28, s26, 2")
    e("s_mul_i32 s29, s28, 7282")
    e("s_lshr_b32 s29, s29, 16")
    e("s_mul_i32 s30, s29, 9")
    e("s_sub_u32 s30, s28, s30")
    e("s_lshl_b32 s29, s29, 5")
    e("s_bfe_u32 s31, s26, 0x10001")
    e("s_lshl_b32 s31, s31, 4")
    e("s_add_u32 s29, s29, s31")
    e("s_lshl_b32 s30, s30, 7")
    e("s_and_b32 s31, s26, 1")
    e("s_lshl_b32 s31, s31, 6")
    e("s_add_u32 s30, s30, s31")
    e("v_and_b32 v2, 15, v0")
    e("v_add_u32 v2, s29, v2")
    e("v_and_b32 v3, 127, v2")
    e("v_lshlrev_b32 v3, 2, v3")
    e("s_lshr_b32 s31, s29, 7")
    e("s_lshl_b32 s31, s31, 11")
    e("s_add_u32 s31, s31, 0x%x" % WS_RS2)
    e("buffer_load_dword v5, v3, s[16:19], s31 offen", "rs")
    e("v_mul_u32_u24 v2, 1152, v2")
    e("v_bfe_u32 v3, v0, 4, 1")
    e("v_lshl_add_u32 v2, v3, 5, v2")
    e("v_lshrrev_b32 v3, 5, v0")
    e("v_lshl_add_u32 v2, v3, 4, v2")
    e("buffer_load_dwordx4 v[12:15], v2, s[8:11], s30 offen", "x")
    e("s_mov_b32 s20, 0x3f80")
    e("s_mov_b32 s21, 0x3f800000")
    for i in range(8): e("v_mov_b32 v%d, 0" % (80 + i))
    for p in range(4):
        g.wait_vm(("p", p))
        acc = 80
        for i in range(4):
            e("v_dot2c_f32_bf16 v%d, s20, v%d" % (acc + 2 * i, 16 + 4 * p + i))
            e("v_dot2c_f32_bf16 v%d, s21, v%d" % (acc + 2 * i + 1, 16 + 4 * p + i))
    e("s_waitcnt vmcnt(0)")
    e("s_nop 2")
    for i in range(8): e("v_mul_f32 v%d, v%d, v5" % (80 + i, 80 + i))
    e("s_nop 1")
    for i in range(4): e("v_permlane16_swap_b32 v%d, v%d" % (80 + i, 84 + i))
    for i in range(4):
        e("v_lshlrev_b32 v6, 16, v%d" % (12 + i))
        e("v_and_b32 v7, 0xffff0000, v%d" % (12 + i))
        e("v_add_f32 v%d, v%d, v6" % (80 + 2 * i, 80 + 2 * i))
        e("v_add_f32 v%d, v%d, v7" % (81 + 2 * i, 81 + 2 * i))
        e("v_cvt_pk_bf16_f32 v%d, v%d, v%d" % (8 + i, 80 + 2 * i, 81 + 2 * i))
    e("buffer_store_dwordx4 v[8:11], v2, s[12:15], s30 offen")
    if opt.get("ts"):
        e("s_waitcnt vmcnt(0)"); e("s_memrealtime s[34:35]"); e("s_waitcnt lgkmcnt(0)")
        e("v_mov_b32 v30, s32"); e("v_mov_b32 v31, s34"); e("v_mov_b32 v29, 0")
        e("s_lshl_b32 s26, s26, 3"); e("s_add_u32 s26, s26, 0x%x" % (WS_TS + 0x100000))
        e("buffer_store_dwordx2 v[30:31], v29, s[16:19], s26 offen")
    g.label("L_k2_end")
    e("s_endpgm")

VOP3ONLY = ("v_mfma", "v_pk_", "v_fma_f32", "v_cvt_pk_bf16", "v_accvgpr_read", "v_accvgpr_write", "v_max3", "v_min3", "v_lshl_add", "v_add_lshl", "v_mad_u32",
            "v_bfe", "v_add3", "v_mul_lo", "v_mul_hi", "v_lshl_or", "v_and_or", "v_readlane", "v_perm_b32")
NOWIDE = ("v_readfirstlane", "v_permlane", "v_dot2c", "v_nop")
def has_lit(s):
    for t in re.split(r"[ ,]+", s)[1:]:
        if re.match(r"^-?(0x[0-9a-f]+|\d+)$", t):
            v = int(t, 0)
            if not (-16 <= v <= 64) and v not in (0x3f800000, 0x3f000000, 0x40000000, 0x40800000, 0xbf800000, 0xbf000000, 0xc0000000, 0xc0800000): return True
        if t.startswith("L_"): return not s.startswith(("s_cbranch", "s_branch"))
    return False
def isize(s):
    op = s.split()[0]
    if op.startswith(("ds_", "buffer_", "global_", "s_load", "s_mem")): return 8, False
    if op.startswith("s_"):
        if op.startswith(("s_waitcnt", "s_nop", "s_barrier", "s_sleep", "s_endpgm", "s_cbranch", "s_branch", "s_setprio", "s_getreg")): return 4, False
        return (8 if has_lit(s) else 4), False
    if op.startswith(VOP3ONLY): return 8, False
    if has_lit(s): return 8, False
    ops = [x.strip() for x in re.split(r",(?![^\[]*\])", s.split(None, 1)[1])]
    if op.startswith("v_cmp") and ops[0] != "vcc": return 8, False
    if op.startswith("v_cndmask") and ops[-1] != "vcc": return 8, False
    if len(ops) >= 3 and not ops[2].startswith("v"): return 8, False
    return 4, not op.startswith(NOWIDE)
def align_pass(lines, minrun=4):
    ins = [l.strip() for l in lines]
    out = []; par = 0
    isins = lambda l: l and not l.endswith(":") and not l.startswith((".", ";"))
    n = len(ins)
    def nxt(i):
        i += 1
        while i < n and not isins(ins[i]):
            if ins[i].startswith(".p2align"): return None
            i += 1
        return i if i < n else None
    for i, l in enumerate(ins):
        if not isins(l):
            if l.startswith(".p2align"): par = 0
            out.append(l); continue
        sz, flex = isize(l)
        if sz == 8: out.append(l); continue
        if par == 1: out.append(l); par = 0; continue
        j = nxt(i)
        if j is None or isize(ins[j])[0] == 4: out.append(l); par = 1; continue
        if flex:
            op, rest = l.split(None, 1); out.append(op + "_e64 " + rest); continue
        run = 0
        while j is not None and isize(ins[j])[0] == 8 and run < minrun: run += 1; j = nxt(j)
        out.append(l)
        if run >= minrun and not l.startswith(("s_branch", "s_endpgm")): out.append("s_nop 0")
        else: par = 1
    return out

LABELS = {}
def resolve(lines):
    off = 0; LABELS.clear()
    for l in lines:
        l = l.strip()
        if l.endswith(":"): LABELS[l[:-1]] = off
        elif l.startswith(".p2align"):
            a = 1 << int(l.split()[1]); off = (off + a - 1) // a * a
        elif l and not l.startswith((".", ";")):
            off += 8 if l.split()[0].endswith("_e64") else isize(l)[0]
    end = LABELS["L_k1_end"]
    def f(m):
        span = 2048 if LABELS[m.group(1)] >= LABELS["L_att"] else 6144
        return "0x%x" % (min(LABELS[m.group(1)] + int(m.group(2)), end - span) & ~3)
    return [re.sub(r"@(\w+)\+(\d+)", f, l) if l.strip().startswith("s_load") else l for l in lines]

MACROS = """.macro MA d,a,b
v_mfma_f32_16x16x32_bf16 v[\\d:\\d+3], a[\\a:\\a+3], a[\\b:\\b+3], v[\\d:\\d+3]
.endm
.macro MV d,a,b
v_mfma_f32_16x16x32_bf16 v[\\d:\\d+3], a[\\a:\\a+3], v[\\b:\\b+3], v[\\d:\\d+3]
.endm
.macro RT d,b,o
ds_read_b64_tr_b16 a[\\d:\\d+1], v\\b offset:\\o
.endm
.macro WL n
s_waitcnt lgkmcnt(\\n)
.endm
.macro CV d,a,b
v_cvt_pk_bf16_f32 v\\d, v\\a, v\\b
.endm
"""
def compress(line):
    s = line.strip()
    m = re.match(r"v_mfma_f32_16x16x32_bf16 v\[(\d+):\d+\], a\[(\d+):\d+\], ([av])\[(\d+):\d+\], v\[(\d+):\d+\]$", s)
    if m and m.group(1) == m.group(5): return "M%s %s,%s,%s" % (m.group(3).upper(), m.group(1), m.group(2), m.group(4))
    m = re.match(r"ds_read_b64_tr_b16 a\[(\d+):\d+\], v(\d+) offset:(\d+)$", s)
    if m: return "RT %s,%s,%s" % m.groups()
    m = re.match(r"s_waitcnt lgkmcnt\((\d+)\)$", s)
    if m: return "WL %s" % m.group(1)
    m = re.match(r"v_cvt_pk_bf16_f32 v(\d+), v(\d+), v(\d+)$", s)
    if m: return "CV %s,%s,%s" % m.groups()
    return s

def gen(**opt):
    g = G(opt)
    k1(g)
    FUSE = opt.get("fuse", 1)
    if not FUSE: k2(g)
    errs = hazard.check(g.lines)
    if errs:
        print("\n".join(errs[:40])); raise SystemExit("hazards: %d" % len(errs))
    head = open("cdna_kernels/%s.s.ref" % BASE).read().split("; Override launch")[0] if not opt.get("nohead") else ""
    out = head
    if FUSE: out += "; @launch grid=(256,1,1) block=(256,1,1) lds=163840\n"
    else: out += "; @launch kernel=%s grid=(256,1,1) block=(256,1,1) lds=163840\n" % K1
    if not FUSE: out += "; @launch kernel=%s grid=(256,1,1) block=(576,1,1) lds=0\n" % K2
    out += '.amdgcn_target "amdgcn-amd-amdhsa--gfx950"\n.text\n' + MACROS
    lines = align_pass(g.lines, opt.get("minrun", 4)) if opt.get("align", 1) else g.lines
    lines = resolve(lines)
    out += "\n".join(compress(l) for l in lines) + "\n"
    out += '.section .rodata,"a"\n' + kernel_desc(K1, 512, 256) + ("" if FUSE else kernel_desc(K2, 96, 96, 40))
    return out

if __name__ == "__main__":
    kw = json.loads(sys.argv[2]) if len(sys.argv) > 2 else {}
    open(sys.argv[1], "w").write(gen(**kw))
```

```python
import sys, re, json
from asmlib import *
import hazard
BASE = "parallel_sum__linear_kernel_hedgehog__glu_gated_reglu__prompt"
K1 = BASE + "_kernel"
K2 = "reduce_kernel"

PSZ = 2048 * 576 * 2
WS_HX = 0x1000000
WS_OX = 0x2200000
WS_RS2 = 0x2500000
WS_KVP = 0x2510000
WS_KVF = 0x2700000
WS_FLG = 0x2780000
WS_TS = 0x2800000
WS_BYTES = 0x10000000
SX, SW1, SW2, SWS, SDBG, SPHI = 8, 12, 16, 20, 24, 28
sW, sR, sS, sT, sOFF, sM0W, sB1, sB2, sST, sT2 = 32, 33, 34, 35, 36, 37, 38, 39, 40, 41
sCNT = 52
OOB = 0x40000000
RING = 144
NB = 8

class G(Asm):
    def __init__(self, opt):
        super().__init__()
        self.opt = opt
        self.vm = []
        self.lg = []
        self.nts = 0
    def e(self, s, tag=None):
        if s.startswith(("buffer_", "global_")): self.vm.append(tag)
        if s.startswith("ds_"): self.lg.append(tag)
        super().e(s)
    def vm_n(self, tag):
        idx = [i for i, t in enumerate(self.vm) if t == tag]
        assert idx, tag
        return len(self.vm) - 1 - idx[-1]
    def wait_vm(self, tag):
        n = min(self.vm_n(tag), 63)
        self.e("s_waitcnt vmcnt(%d)" % n)
    def wait_lg(self, tag):
        idx = [i for i, t in enumerate(self.lg) if t == tag]
        n = min(len(self.lg) - 1 - idx[-1], 15)
        self.e("s_waitcnt lgkmcnt(%d)" % n)
    def stamp(self):
        e = self.e
        if self.opt.get("amp") is not None:
            if self.nts in (0, self.opt["amp"]):
                e("s_memrealtime s[92:93]"); e("s_waitcnt lgkmcnt(0)")
                e("s_mov_b32 s%d, s92" % (100 if self.nts == 0 else 101))
            self.nts += 1
            return
        if not self.opt.get("ts"): return
        e("s_memtime s[90:91]"); e("s_memrealtime s[92:93]")
        e("s_waitcnt lgkmcnt(0)")
        if self.opt.get("dbgts") is not None:
            sel = self.opt.get("dbgsel", list(range(15)))
            if self.nts in sel:
                e("v_mov_b32 v30, s92")
                e("buffer_store_dword v30, off, s[%d:%d], s94 offset:%d" % (SDBG, SDBG + 3, 4 + 4 * sel.index(self.nts)))
            self.nts += 1
            return
        for k, sg in enumerate((90, 92)):
            e("v_mov_b32 v30, s%d" % sg)
            e("buffer_store_dword v30, off, s[%d:%d], s94 offset:%d" % (SWS, SWS + 3, 8 * self.nts + 4 * k))
        self.nts += 1

def mfma(d, a, b, c=None):
    return "v_mfma_f32_16x16x32_bf16 %s, %s, %s, %s" % (d, a, b, d if c is None else c)

class Stage:
    def __init__(self, lo, hi, pre, dmas, frags, gate=None):
        dmas = [d if isinstance(d, list) else [d] for d in dmas]
        dmas[0] = list(pre) + dmas[0]
        self.lo, self.hi, self.dmas, self.frags, self.gate = lo, hi, dmas, frags, gate
        self.before = None; self.after = None

class Pipe:
    def __init__(self, g, stages, D=6, BE=1):
        self.g, self.st, self.D, self.BE = g, stages, D, BE
        self.next = 0
        self.safe = -1
        self.q = []
        self.open = set()
        self.fi = 0
        self.done = -1
        self.qthr = 4 * BE + 1
        self.when = {}
    def can(self, m):
        s = self.st[m]
        if s.gate is not None and s.gate not in self.open: return False
        return all(k <= self.safe for k in range(m) if self.st[k].lo < s.hi and s.lo < self.st[k].hi)
    def refill(self):
        while self.next < len(self.st) and self.can(self.next):
            for d in self.st[self.next].dmas: self.q.append([list(d), ("st", self.next)])
            self.next += 1
    def pop(self):
        if not self.q: return []
        t, tag = self.q.pop(0)
        return [(x, tag) for x in t]
    def flush(self):
        while self.q:
            for t, tag in self.pop(): self.g.e(t, tag)
    def enter(self, n, last, hook=None):
        g = self.g
        late = 0
        while any(tag[1] <= last for _, tag in self.q):
            late += 1
            for t, tg in self.pop(): g.e(t, tg)
        if late and n > 2: print("warning: %d DMA issued late for stage %d" % (late, n))
        assert self.next > last, (n, last)
        for k in range(n, last + 1):
            if self.st[k].before: self.st[k].before()
        if hook and hook.before: hook.before()
        g.wait_vm(("st", last)); g.e("s_barrier")
        if hook and hook.after: hook.after()
        for k in range(n, last + 1):
            if self.st[k].after: self.st[k].after()
        self.safe = max(self.safe, self.done)
        self.refill()
    def run(self, s0, s1, extra=None, pauses=(), groups=None, urgent=None, lagok=True):
        g, D = self.g, self.D
        WP = g.opt.get("wp", 4)
        pend = []; urg = []; urgent = urgent or {}; cur = [0]; dens = [0]
        extra = extra or {}
        fl = [(n, k, f) for n in range(s0, s1) for k, f in enumerate(self.st[n].frags)]
        if groups is None: groups = list(range(s0, s1, self.BE))
        gend = {a: (groups[i + 1] if i + 1 < len(groups) else s1) - 1 for i, a in enumerate(groups)}
        base = self.fi
        needbar = lambda j: j < len(fl) and fl[j][1] == 0 and fl[j][0] in gend
        def reads(j):
            buf = RING + 4 * ((base + j) % NB)
            for t in fl[j][2][0](buf): g.e(t, ("fr", base + j))
        def wl(i):
            w = min(i + WP - 1, len(fl) - 1)
            g.wait_lg(("fr", base + w))
            self.done = max(self.done, fl[w][0] if fl[w][1] == len(self.st[fl[w][0]].frags) - 1 else fl[w][0] - 1)
        def cost(it):
            if isinstance(it, (Mark, Dens)): return 0
            if isinstance(it, Hook): return 99
            if isinstance(it, Delay):
                if it.until is None: it.until = cur[0] + it.n
                return 0 if cur[0] >= it.until else 99
            if callable(it): return getattr(it, "cost", 2)
            if isinstance(it, list): return min(len(it), 2)
            t = it[0] if isinstance(it, tuple) else it
            return 2 if t.startswith(("buffer_", "global_", "v_mfma", "v_exp", "v_rcp")) else 1
        def emit(it, i):
            if isinstance(it, Mark): self.when[it.name] = i
            elif isinstance(it, Dens): dens[0] = it.n
            elif isinstance(it, Delay):
                if i >= len(fl): g.e("s_nop 7")
            elif isinstance(it, Hook):
                if it.before: it.before()
                g.e("s_barrier")
                if it.after: it.after()
            elif callable(it): it()
            elif isinstance(it, list):
                for x in it: g.e(x)
            elif isinstance(it, tuple): g.e(it[0], it[1])
            else: g.e(it)
        for j in range(min(D, len(fl))):
            if needbar(j): self.enter(fl[j][0], gend[fl[j][0]])
            reads(j)
        if needbar(D): self.enter(fl[D][0], gend[fl[D][0]])
        wl(0)
        since = 9
        for i, (n, k, f) in enumerate(fl):
            ms = f[1](RING + 4 * ((base + i) % NB))
            g.e(ms[0])
            if i + D < len(fl): reads(i + D)
            g.e(ms[1])
            pend += [(i, x) for x in extra.get(i, [])]; urg += urgent.get(i, [])
            since += 1; cur[0] = i
            wdue = (i + 1) % WP == 0 and i + 1 < len(fl)
            if needbar(i + 1 + D):
                if wdue: wl(i + 1)
                hook = pend.pop(0)[1] if pend and isinstance(pend[0][1], Hook) else None
                self.enter(fl[i + 1 + D][0], gend[fl[i + 1 + D][0]], hook)
                continue
            paused = any(a <= i < b for a, b in pauses)
            if urg and not wdue:
                slots = 2
                while urg and cost(urg[0]) <= slots:
                    it = urg.pop(0); slots -= cost(it); emit(it, i)
                continue
            used = False
            if self.q and len(self.q[0][0]) > 1:
                if wdue: wl(i + 1)
                while len(self.q[0][0]) > 1: g.e(self.q[0][0].pop(0))
                used = True
            elif self.q and not wdue and not paused and since >= (2 if len(self.q) > self.qthr else self.g.opt.get("dcad", 3)):
                it = self.q.pop(0); g.e(it[0][0], it[1]); since = 0
                used = True
            if used and not dens[0]: continue
            slots = 0 if used else 2
            if wdue and not used: wl(i + 1); slots = 1
            if dens[0]: slots += dens[0]
            elif lagok and pend and i - pend[0][0] > g.opt.get("lag", 30): slots += 1
            while pend and cost(pend[0][1]) <= slots:
                it = pend.pop(0)[1]; slots -= cost(it); emit(it, i)
        for it in urg + [x[1] for x in pend]: emit(it, len(fl))
        self.fi = base + len(fl)
    def drained(self, upto):
        self.safe = max(self.safe, upto); self.refill()

class Mark:
    def __init__(self, name): self.name = name
class Hook:
    def __init__(self, before=None, after=None): self.before, self.after = before, after
class Delay:
    def __init__(self, n): self.n = n; self.until = None
class Dens:
    def __init__(self, n): self.n = n

def group_scc(ops):
    out = []
    for op in ops:
        if isinstance(op, str) and op.startswith("s_cselect"): out[-1] = [out[-1], op]
        else: out.append(op)
    return out

def spread(ops, lo, hi, extra):
    ops = group_scc(ops); n = hi - lo
    for k, op in enumerate(ops):
        extra.setdefault(lo + k * n // len(ops), []).append(op)

def lane_consts(g):
    e = g.e
    e("v_lshrrev_b32 v22, 4, v0")
    e("v_and_b32 v23, 15, v0")

def prologue(g, pipe, XV=112, early=None, afterbar=None, fill=(), var=False, nfirst=8, mid=None):
    e, opt = g.e, g.opt
    xf = opt.get("xflags", "")
    e("v_lshrrev_b32 v104, 3, v0")
    e("v_mul_u32_u24 v104, 1152, v104")
    e("v_and_b32 v105, 7, v0")
    e("v_xor_b32 v105, v105, v22")
    e("v_lshl_add_u32 v104, v105, 4, v104")
    e("v_xor_b32 v105, 64, v104")
    e("s_lshl_b32 s%d, s%d, 2" % (sT, sR))
    e("s_add_u32 s%d, s%d, s%d" % (sT, sT, sW))
    e("s_mul_i32 s%d, s%d, %d" % (sT, sT, 32 * 1152))
    e("s_mul_i32 s%d, s%d, 36864" % (sT2, sW))
    e("s_lshr_b32 s60, s2, 6") if opt.get("xrot", 1) else e("s_mov_b32 s60, 0")
    e("s_and_b32 s3, s60, 1")
    e("s_lshl_b32 s3, s3, 6")
    e("v_xor_b32 v104, s3, v104")
    e("v_xor_b32 v105, s3, v105")
    for o in range(4):
        e("s_add_u32 s3, s60, %d" % o)
        e("s_and_b32 s3, s3, 3")
        e("s_mul_i32 s3, s3, 9216")
        e("s_add_u32 s61, s%d, s3" % sT2)
        e("s_add_u32 s62, s%d, s3" % sT)
        for j in range(9):
            e("s_add_u32 m0, s61, %d" % (j * 1024))
            e("s_add_u32 s%d, s62, %d" % (sOFF, j * 128))
            e("buffer_load_dwordx4 v%d, s[%d:%d], s%d offen %s lds" % (104 + (o & 1), SX, SX + 3, sOFF, xf), ("x", j))
            if mid and o * 9 + j == mid[0]: mid[1]()
            if o * 9 + j >= 6:
                for it in fill[(o * 9 + j - 6) * len(fill) // 30:(o * 9 + j - 5) * len(fill) // 30]:
                    for x in (it if isinstance(it, list) else [it]): e(x, "fill")
    if early: early()
    e("v_lshrrev_b32 v106, 3, v23")
    e("v_mul_u32_u24 v106, 9216, v106")
    e("v_and_b32 v107, 7, v23")
    e("v_lshl_add_u32 v106, v107, 7, v106")
    e("v_lshrrev_b32 v107, 1, v23")
    e("v_xor_b32 v107, v107, v22")
    e("v_lshl_add_u32 v106, v107, 4, v106")
    e("v_add_u32 v106, s%d, v106" % sT2)
    e("v_xor_b32 v107, 64, v106")
    for i in range(4): e("v_mov_b32 v%d, 0x3f803f80" % (80 + i))
    for i in (72, 73, 76, 77): e("v_mov_b32 v%d, 0" % i)
    e("v_lshrrev_b32 v108, 2, v23")
    e("v_cmp_eq_u32 vcc, v108, v22")
    e("v_and_b32 v108, 1, v23")
    e("v_lshlrev_b32 v108, 4, v108")
    e("v_mov_b32 v78, 0x3f80")
    e("v_lshlrev_b32 v78, v108, v78")
    e("v_cndmask_b32 v78, 0, v78, vcc")
    e("v_and_b32 v108, 2, v23")
    e("v_cmp_eq_u32 vcc, 0, v108")
    e("s_nop 1")
    e("v_cndmask_b32 v74, 0, v78, vcc")
    e("v_cndmask_b32 v75, v78, 0, vcc") if False else None
    e("v_sub_u32 v75, v78, v74")
    X = lambda tt, ks: XV + (ks * 2 + tt) * 4
    g.stamp()
    for j in range(10):
        if j < 9:
            g.wait_vm(("x", j))
            for ks in (2 * j, 2 * j + 1):
                for tt in range(2):
                    e("ds_read_b128 %s, v%d offset:%d" % (vr(X(tt, ks), 4), 106 + (ks & 1), tt * 18432 + j * 1024), ("xr", j))
        if j > 0:
            g.wait_lg(("xr", j - 1))
            for ks in (2 * j - 2, 2 * j - 1):
                for tt in range(2):
                    e(mfma(vr(64 + 4 * tt, 4), vr(80, 4), vr(X(tt, ks), 4), "0" if ks == 0 else None))
    e("s_barrier")
    g.stamp()
    pipe.open.add("x"); pipe.refill()
    for _ in range(nfirst):
        for t, tag in pipe.pop(): e(t, tag)
    if afterbar: afterbar()
    e("s_nop 3")
    e("s_mov_b32 s%d, 0x%08x" % (sT, 0xbae38e39))
    for i in range(8): e("v_mul_f32 v%d, s%d, v%d" % (64 + i, sT, 64 + i))
    e("s_nop 1")
    fr = [(tt, ks) for ks in range(18) for tt in range(2)]
    LAG = 2
    for k in range(len(fr) + LAG + 1):
        cv = []
        if LAG <= k < len(fr) + LAG:
            tt, ks = fr[k - LAG]; d = 32 + 8 * ((k - LAG) % 4); x = X(tt, ks)
            cv = ["v_cvt_pk_bf16_f32 v%d, v%d, v%d" % (x + i, d + 2 * i, d + 2 * i + 1) for i in range(4)]
        if k < len(fr):
            tt, ks = fr[k]; d = 32 + 8 * (k % 4)
            e(mfma(vr(d, 4), vr(74, 4), vr(X(tt, ks), 4), vr(64 + 4 * tt, 4)))
            if k == LAG: e("s_nop 3")
            for t in cv[:2]: e(t)
            e(mfma(vr(d + 4, 4), vr(72, 4), vr(X(tt, ks), 4), vr(64 + 4 * tt, 4)))
            for t in cv[2:]: e(t)
        else:
            e("s_nop 3")
            for t in cv: e(t)
        if var and k > LAG:
            tt, ks = fr[k - LAG - 1]; x = X(tt, ks)
            e(mfma(vr(96 + 4 * tt, 4), vr(x, 4), vr(x, 4), "0" if ks == 0 else None))
    g.stamp()

def XV0(tt, ks): return vr(112 + (ks * 2 + tt) * 4, 4)
def xc_copies(): return ["v_accvgpr_write_b32 a%d, v%d" % (i, 112 + i) for i in range(144)]
def XC(tt, ks): return ar((ks * 2 + tt) * 4, 4)

def tr_bases(g, dst, rowmul):
    e = g.e
    out = []
    out.append("v_bfe_u32 v28, v0, 2, 2")
    out.append("v_mad_u32_u24 v28, v22, %d, v28" % rowmul)
    out.append("v_lshlrev_b32 v%d, 7, v28" % dst)
    out.append("v_bfe_u32 v28, v0, 3, 2")
    out.append("v_lshl_add_u32 v%d, v28, 5, v%d" % (dst, dst))
    out.append("v_and_b32 v28, 3, v0")
    out.append("v_lshl_add_u32 v%d, v28, 3, v%d" % (dst, dst))
    for t in range(1, 4): out.append("v_xor_b32 v%d, %d, v%d" % (dst + t, 32 * t, dst))
    for grp in (1, 2):
        for t in range(4): out.append("v_add_u32 v%d, 0x%x, v%d" % (dst + 4 * grp + t, grp << 16, dst + t))
    return out

def tr_reads(bases, t, off, second):
    def f(buf):
        o2 = off + second
        assert (off >> 16) == (o2 >> 16)
        b = bases + 4 * (off >> 16) + t
        return ["ds_read_b64_tr_b16 %s, v%d offset:%d" % (ar(buf, 2), b, off & 0xffff),
                "ds_read_b64_tr_b16 %s, v%d offset:%d" % (ar(buf + 2, 2), b, o2 & 0xffff)]
    return f

def store_ops(g, acc, P, c, voff):
    sf = g.opt.get("sflags", "sc1" if g.opt.get("fuse", 1) else "")
    ops = ["s_add_u32 s%d, s%d, %d" % (sT2, sST, c * 4096)]
    for tt in range(2):
        for hf in range(2):
            p = P + (tt * 2 + hf) * 4
            for k in range(2):
                s = acc + ((2 * hf + k) * 2 + tt) * 4
                ops.append("v_cvt_pk_bf16_f32 v%d, v%d, v%d" % (p + 2 * k, s, s + 1))
                ops.append("v_cvt_pk_bf16_f32 v%d, v%d, v%d" % (p + 2 * k + 1, s + 2, s + 3))
            if not g.opt.get("nostore"):
                ops.append("buffer_store_dwordx4 %s, v%d, s[%d:%d], s%d offen offset:%d %s" % (vr(p, 4), voff, SWS, SWS + 3, sT2, (tt * 2 + hf) * 1024, sf))
    return ops

sNON = 97
def flag_load(vreg, vfl, sline):
    if sline is None: return "buffer_load_dword v%d, v%d, s[%d:%d], 0 offen sc1" % (vreg, vfl, SDBG, SDBG + 3)
    return "buffer_load_dword v%d, v%d, s[%d:%d], s%d offen sc1" % (vreg, vfl, SWS, SWS + 3, sline)

def flag_issue(g, vreg, vfl, sline):
    g.e(flag_load(vreg, vfl, sline), "flag")

def flag_check(g, vreg, vfl, sline, mask, issued=True, sleep=4):
    if g.opt.get("nofl") and sline is not None: return
    e = g.e
    L = g.newlabel("L_poll"); Ld = g.newlabel("L_polld"); Lc = g.newlabel("L_pollc")
    e("s_cmp_lg_u32 s%d, 0" % sW)
    e("s_cbranch_scc1 %s" % Ld)
    e("s_mov_b32 s89, 0x20000")
    if issued:
        g.wait_vm("flag")
        e("s_branch %s" % Lc)
    g.label(L)
    Asm.e(g, flag_load(vreg, vfl, sline))
    e("s_waitcnt vmcnt(0)")
    g.label(Lc)
    if sline is None:
        e("v_readfirstlane_b32 s%d, v%d" % (sNON, vreg))
        e("s_sub_u32 s89, s89, 1")
        e("s_cmp_lg_u32 s%d, 0" % sNON)
    else:
        e("v_cmp_eq_u32 s[98:99], s%d, v%d" % (sNON, vreg))
        e("s_sub_u32 s89, s89, 1")
        e("s_and_b32 s98, s98, 0x%x" % mask)
        e("s_cmp_eq_u32 s98, 0x%x" % mask)
    e("s_cbranch_scc1 %s" % Ld)
    e("s_sleep %d" % sleep)
    e("s_cmp_lg_u32 s89, 0")
    e("s_cbranch_scc1 %s" % L)
    g.label(Ld)

def flag_lane_offsets(vfl, vtmp):
    return ["s_lshl_b32 s96, s%d, 6" % sW, "v_add_u32 v%d, s96, v0" % vtmp, "v_cmp_gt_u32 vcc, 16, v%d" % vtmp, "v_lshlrev_b32 v%d, 2, v0" % vfl,
            "v_mov_b32 v%d, 0x%x" % (vtmp, OOB), "v_cndmask_b32 v%d, v%d, v%d, vcc" % (vfl, vtmp, vfl)]

def code_pf(label, add=0):
    return "s_load_dword s88, s[86:87], @%s+%d" % (label, add)

def signal(g, vtmp, voff, sword, imm=0):
    g.e("v_mov_b32 v%d, s%d" % (vtmp, sNON))
    g.e("buffer_store_dword v%d, v%d, s[%d:%d], s%d offen offset:%d sc1" % (vtmp, voff, SWS, SWS + 3, sword, imm))

def ffn_role(g):
    e, opt = g.e, g.opt
    wf = opt.get("wflags", "")
    ACC = [32, 96]; H = 160; B1 = 9; PK = 128; VST = 21
    sI, sJ = 42, 43; sKB = 44; sHX = 47; sOX = 50; sWO = 53; sM0B = 58
    CPF = opt.get("codepf", 0)
    e("s_sub_u32 s%d, s3, 1" % sI)
    e("s_mov_b32 s%d, s%d" % (sJ, sS))
    e("s_mul_i32 s%d, s%d, 3" % (sS, sJ))
    e("s_add_u32 s%d, s%d, s%d" % (sS, sS, sI))
    e("s_cmp_ge_u32 s%d, 2" % sW)
    e("s_cselect_b32 s%d, s74, s72" % sT)
    e("s_cselect_b32 s%d, s75, s73" % sT2)
    srd(g, SW1, sT, sT2, 576 * 4608 * 2)
    e("s_lshl_b32 s%d, s%d, 12" % (sM0W, sW))
    e("s_mul_i32 s%d, s%d, %d" % (sB1, sS, 0 if opt.get("samew") else 768))
    def late_setup():
        o = []; sT = 95
        a = Asm(); srd(a, SW2, 76, 77, 4608 * 576 * 2); srd(a, SPHI, 70, 71, 576 * 576 * 2)
        o += [l.strip() for l in a.lines]
        for b in range(3):
            o += ["s_add_u32 s%d, s%d, %d" % (sT, sI, b), "s_cmp_ge_u32 s%d, 3" % sT, "s_cselect_b32 s96, 3, 0", "s_sub_u32 s%d, s%d, s96" % (sT, sT),
                  "s_mul_i32 s96, s%d, 3" % sJ, "s_add_u32 s%d, s%d, s96" % (sT, sT),
                  "s_mul_i32 s%d, s%d, %d" % (sKB + b, sT, 384 * 1152), "s_mul_i32 s96, s%d, 384" % sI, "s_add_u32 s%d, s%d, s96" % (sKB + b, sKB + b),
                  "s_mul_i32 s96, s%d, 12" % sR, "s_add_u32 s%d, s%d, s96" % (sT, sT), "s_lshl_b32 s%d, s%d, 2" % (sT, sT), "s_add_u32 s%d, s%d, s%d" % (sT, sT, sW),
                  "s_mul_i32 s%d, s%d, 24576" % (sHX + b, sT), "s_add_u32 s%d, s%d, 0x%x" % (sHX + b, sHX + b, WS_HX)]
        o += ["s_lshl_b32 s%d, s%d, 2" % (sT, sR), "s_add_u32 s%d, s%d, s%d" % (sT, sT, sJ), "s_lshl_b32 s%d, s%d, 7" % (sCNT, sT), "s_add_u32 s%d, s%d, 0x%x" % (sCNT, sCNT, WS_FLG),
              "s_lshl_b32 s63, s%d, 2" % sI, "s_add_u32 s63, s63, s%d" % sCNT,
              "s_lshl_b32 s%d, s%d, 2" % (sT, sT), "s_add_u32 s%d, s%d, s%d" % (sT, sT, sW), "s_mul_i32 s%d, s%d, 10240" % (sOX, sT), "s_add_u32 s%d, s%d, 0x%x" % (sOX, sOX, WS_OX)]
        o += ["s_mul_i32 s%d, s%d, %d" % (sST, sJ, PSZ), "s_lshl_b32 s%d, s%d, 2" % (sT, sR), "s_add_u32 s%d, s%d, s%d" % (sT, sT, sW),
              "s_mul_i32 s%d, s%d, 36864" % (sT, sT), "s_add_u32 s%d, s%d, s%d" % (sST, sST, sT),
              "s_mul_i32 s%d, s%d, 12288" % (sT, sI), "s_add_u32 s%d, s%d, s%d" % (sST, sST, sT)]
        o += ["s_mul_i32 s%d, s%d, %d" % (sB2, sJ, 144 * 1152), "s_mul_i32 s96, s%d, 384" % sI, "s_add_u32 s%d, s%d, s96" % (sB2, sB2),
              "s_lshl_b32 s%d, s%d, 10" % (sM0B, sW)]
        for i in range(5):
            d = sWO + i
            o += (["s_lshl_b32 s%d, s%d, 2" % (sT, sW), "s_add_u32 s%d, s%d, %d" % (sT, sT, i)] if i < 4 else ["s_add_u32 s%d, s%d, 16" % (sT, sW)])
            o += ["s_lshr_b32 s96, s%d, 1" % sT, "s_lshl_b32 s%d, s96, 2" % d, "s_cmp_ge_u32 s96, 5", "s_cselect_b32 s96, 52, 0",
                  "s_add_u32 s%d, s%d, s96" % (d, d), "s_and_b32 s%d, s%d, 1" % (sT, sT), "s_mul_i32 s%d, s%d, 36" % (sT, sT),
                  "s_add_u32 s%d, s%d, s%d" % (d, d, sT), "s_mul_i32 s%d, s%d, 1152" % (d, d), "s_add_u32 s%d, s%d, s%d" % (d, d, sB2)]
        return o
    stages = []
    def slot(n): return ((n + 9) % 10) * 16384
    for rho in range(6):
        acc = ACC[rho & 1]
        for st in range(9):
            n = len(stages); lo = slot(n)
            pre = ["s_add_u32 m0, s%d, %d" % (sM0W, lo), "s_add_u32 s%d, s%d, %d" % (sOFF, sB1, st * 64 * 9216 + (0 if opt.get('samew') else rho * 128))]
            dmas = ["buffer_load_dwordx4 v%d, s[%d:%d], s%d offen offset:%d %s lds" % (1 + i, SW1, SW1 + 3, sOFF, i * 1024, wf) for i in range(4)]
            frags = []
            for kk in range(2):
                ks = 2 * st + kk
                for t in range(4):
                    for mat in range(2):
                        def mf(buf, ks=ks, t=t, mat=mat, acc=acc, XC=(XC if rho else XV0)):
                            order = (0, 1) if mat == 0 else (1, 0)
                            return [mfma(vr(acc + ((t * 2 + mat) * 2 + tt) * 4, 4), ar(buf, 4), XC(tt, ks), "0" if ks == 0 else None) for tt in order]
                        frags.append((tr_reads(B1, t, lo + mat * 8192 + kk * 4096, 512), mf))
            stages.append(Stage(lo, lo + 16384, pre, dmas, frags, None if n == 0 else "x"))
    def hreg(b, u, tt):
        k = (u * 2 + tt) * 4
        if b == 0: return vr(H + k, 4)
        if b == 1: return ar(k, 4)
        if b == 2: return ar(176 + k, 4) if u < 8 else ar(96 + k - 64, 4)
        if u < 2: return ar(128 + k, 4)
        if u < 4: return ar(240 + k - 16, 4)
        return vr(144 + k - 32, 4)
    def g2stage(b, us, cg, first):
        n = len(stages); lo = slot(n); acc = 32 + 32 * cg
        if b < 3:
            pre = ["s_add_u32 m0, s%d, %d" % (sM0W, lo), "s_add_u32 s%d, s%d, %d" % (sOFF, sKB + b, (us[0] // 4) * 128 * 1152 + cg * 128)]
            dmas = ["buffer_load_dwordx4 v%d, s[%d:%d], s%d offen offset:%d %s lds" % (5 + i, SW2, SW2 + 3, sOFF, i * 1024, wf) for i in range(4)]
        else:
            pre = []
            sel = [(sM0W, lo + i * 1024, sWO + i) for i in range(4)] if len(us) == 4 else [(sM0B, lo, sWO + 4)]
            dmas = [["s_add_u32 m0, s%d, %d" % (m, o), "s_add_u32 s%d, s%d, %d" % (sOFF, so, cg * 128),
                     "buffer_load_dwordx4 v25, s[%d:%d], s%d offen %s lds" % (SPHI, SPHI + 3, sOFF, wf)] for m, o, so in sel]
        frags = []
        for kk, u in enumerate(us):
            for t in range(4):
                def mf(buf, u=u, t=t, z=(first and kk == 0)):
                    order = (0, 1) if t % 2 == 0 else (1, 0)
                    return [mfma(vr(acc + (t * 2 + tt) * 4, 4), ar(buf, 4), hreg(b, u, tt), "0" if z else None) for tt in order]
                frags.append((tr_reads(B1, t, lo + kk * 4096, 2048), mf))
        stages.append(Stage(lo, lo + 16384, pre, dmas, frags, "x"))
    Q = lambda q: list(range(4 * q, 4 * q + 4))
    for q, cg in ((0, 0), (0, 1), (1, 0), (1, 1), (0, 2), (1, 2)): g2stage(0, Q(q), cg, q == 0)
    G2C2 = 64
    for b, q in ((0, 2), (1, 0), (1, 1), (2, 0), (2, 1), (1, 2), (2, 2)):
        for cg in range(3): g2stage(b, Q(q), cg, False)
    for cg in range(3):
        for b, us in ((3, Q(0)), (3, [4])): g2stage(b, us, cg, False)
    pipe = Pipe(g, stages, opt.get("D", 7), opt.get("BE", 2))
    TOUCH = opt.get("touch", 1); tf = opt.get("tflags", "")
    def touch1(rho):
        return ["buffer_load_dword v31, v29, s[%d:%d], s%d offen offset:%d %s" % (SW1, SW1 + 3, sB1, rho * 128, tf)]
    def touch2(b):
        if b < 3: return ["buffer_load_dword v31, v26, s[%d:%d], s%d offen %s" % (SW2, SW2 + 3, sKB + b, tf)]
        return ["buffer_load_dword v31, v26, s[%d:%d], s59 offen %s" % (SPHI, SPHI + 3, tf)]
    def touchh(k):
        return ["s_add_u32 s3, s%d, %d" % (sHX, k * 8192), "buffer_load_dword v31, v22, s[%d:%d], s3 offen" % (SWS, SWS + 3)]
    def early():
        e("v_lshrrev_b32 v28, 3, v0")
        e("s_and_b32 s%d, s%d, 1" % (sOFF, sW))
        e("s_lshl_b32 s%d, s%d, 5" % (sOFF, sOFF))
        e("v_add_u32 v1, s%d, v28" % sOFF)
        e("v_mul_u32_u24 v1, 9216, v1")
        e("v_and_b32 v2, 2, v28")
        e("v_and_b32 v3, 7, v0")
        e("v_xor_b32 v2, v2, v3")
        e("v_lshl_add_u32 v1, v2, 4, v1")
        e("v_xor_b32 v2, 64, v1")
        e("v_add_u32 v2, %d, v2" % (8 * 9216 - 1024))
        e("v_add_u32 v3, %d, v1" % (2 * (8 * 9216 - 1024)))
        e("v_add_u32 v4, %d, v2" % (2 * (8 * 9216 - 1024)))
        pipe.refill(); pipe.flush()
    def tsetup():
        e("s_and_b32 s98, s%d, 1" % sW)
        e("s_mul_i32 s98, s98, 36")
        e("s_and_b32 s%d, s%d, 7" % (99, sR))
        e("s_mul_i32 s%d, s%d, 72" % (99, 99))
        e("s_add_u32 s98, s98, s%d" % 99)
        e("v_add_u32 v29, s98, v0")
        e("v_mul_u32_u24 v29, 9216, v29")
        e("v_cmp_gt_u32 vcc, 36, v0")
        e("v_mov_b32 v31, 0x%x" % OOB)
        e("s_nop 0")
        e("v_cndmask_b32 v29, v31, v29, vcc")
    T0 = opt.get("t0pos", -1)
    if TOUCH: tsetup()
    vset = ["v_lshrrev_b32 v28, 3, v0", "s_lshl_b32 s96, s%d, 5" % sW, "v_add_u32 v5, s96, v28", "v_mul_u32_u24 v5, 1152, v5",
            "v_lshlrev_b32 v6, 1, v22", "v_and_b32 v7, 7, v0", "v_xor_b32 v6, v6, v7", "v_lshl_add_u32 v5, v6, 4, v5",
            "v_lshrrev_b32 v28, 5, v0", "v_bfe_u32 v7, v0, 3, 2", "v_lshl_add_u32 v28, v28, 4, v7", "v_mul_u32_u24 v25, 1152, v28", "v_lshl_add_u32 v25, v6, 4, v25"]
    vset += ["v_add_u32 v%d, %d, v5" % (5 + i, i * (8 * 1152 - 1024)) for i in range(1, 4)]
    vset += ["v_lshlrev_b32 v%d, 4, v0" % VST, "v_lshlrev_b32 v27, 9, v22", "v_add_u32 v28, s%d, v0" % sW, "v_cmp_eq_u32 vcc, 0, v28",
             "v_mov_b32 v24, 0x%x" % OOB, "v_mov_b32 v28, 0", "v_cndmask_b32 v24, v24, v28, vcc"]
    vset += ["v_mul_u32_u24 v28, 5462, v0", "v_lshrrev_b32 v28, 16, v28", "v_mul_u32_u24 v26, 12, v28", "v_sub_u32 v26, v0, v26",
             "s_mul_i32 s96, s%d, 12" % sW, "s_and_b32 s%d, s%d, 7" % (95, sR), "s_mul_i32 s%d, s%d, 48" % (95, 95), "s_add_u32 s96, s96, s95",
             "v_add_u32 v26, s96, v26", "v_mul_u32_u24 v26, 1152, v26", "v_lshl_add_u32 v26, v28, 7, v26",
             "v_cmp_gt_u32 vcc, 36, v0", "v_mov_b32 v28, 0x%x" % OOB, "s_nop 0", "v_cndmask_b32 v26, v28, v26, vcc",
             "s_cmp_ge_u32 s96, 144", "s_cselect_b32 s59, 0x%x, s%d" % (OOB, sB2)]
    prologue(g, pipe, early=early, afterbar=(lambda: [e(t) for t in (touch1(0) if T0 < 0 else []) + touch1(1)]) if TOUCH else None, mid=(T0, lambda: e(touch1(0)[0])) if TOUCH else None, nfirst=opt.get('nfirst', 8), fill=group_scc(late_setup() + vset + tr_bases(g, B1, 8)))
    hf = opt.get("hflags", "sc1")
    def epi1(rho):
        acc = ACC[rho & 1]; ops = []; sts = []
        for t in range(4):
            for tt in range(2):
                gt = acc + ((t * 2) * 2 + tt) * 4; up = acc + ((t * 2 + 1) * 2 + tt) * 4
                u = 2 * rho + t // 2
                h = H + (u * 2 + tt) * 4 + (t & 1) * 2
                for k in range(2):
                    for i in (2 * k, 2 * k + 1): ops.append("v_max_f32 v%d, 0, v%d" % (gt + i, gt + i))
                    for i in (2 * k, 2 * k + 1): ops.append("v_mul_f32 v%d, v%d, v%d" % (gt + i, gt + i, up + i))
                    ops.append("v_cvt_pk_bf16_f32 v%d, v%d, v%d" % (h + k, gt + 2 * k, gt + 2 * k + 1))
                if t & 1 and not (opt.get("nohst") and (t, tt) != (1, 0)):
                    if t == 1 and tt == 0: sts.append("s_add_u32 s%d, s%d, %d" % (sT2, sHX, rho * 4096))
                    sts.append(("buffer_store_dwordx4 %s, v%d, s[%d:%d], s%d offen offset:%d %s" % (hreg(0, u, tt), VST, SWS, SWS + 3, sT2, ((u & 1) * 2 + tt) * 1024, hf), ("hst", rho)))
        return ops + sts
    def hloads(b, us, tag):
        ops = []
        base = sOX if b == 3 else sHX + b
        if opt.get("noh"): us = list(us)[:1]
        for u in us:
            if u % 2 == 0: ops.append("s_add_u32 s%d, s%d, %d" % (sT, base, u * 2048))
            for tt in range(2):
                ops.append(("buffer_load_dwordx4 %s, v%d, s[%d:%d], s%d offen offset:%d %s" % (hreg(b, u, tt), VST, SWS, SWS + 3, sT, ((u & 1) * 2 + tt) * 1024, opt.get("hlflags", "sc1")), tag))
        return ops
    extra = {}
    urgent = {}
    add = lambda k, l: extra.setdefault(k, []).extend(l)
    addu = lambda k, l: urgent.setdefault(k, []).extend(l)
    EP = opt.get("epiw", 75)
    for rho in range(5):
        spread(epi1(rho) + [Mark("epi%d" % rho)], 144 * (rho + 1) + 3, 144 * (rho + 1) + EP, extra)
    P2 = 864; S2 = 54
    n01 = 40
    add(P2 + 3, epi1(5)[:n01] + [Mark("epi5a")] + epi1(5)[n01:] + [Mark("epi5")])
    pauses = []
    PA, PB = opt.get("pause", [0, 60])
    def event(k, ops):
        addu(k, ops); pauses.append((k + PA, k + PB))
    if TOUCH:
        for k, ops in zip(opt.get("tpos", [76, 292, 436, 580]), (touch1(2) + touch1(3), touch1(4) + touch1(5), touch2(0) + touch2(1), touch2(2) + touch2(3))):
            event(k, ops)
    add(1, xc_copies() + [Mark("xc")])
    add(144 + 90, flag_lane_offsets(23, 28) + [Mark("flo")])
    addu(288 + 100, [lambda: flag_issue(g, 28, 23, None)])
    stages[26].before = lambda: flag_check(g, 28, 23, None, 0)
    stages[46].before = lambda: g.wait_vm(("hst", 3))
    stages[46].after = lambda: signal(g, 28, 24, 63, 0)
    addu(720 + 76, [lambda: flag_issue(g, 28, 23, sCNT)])
    stages[52].before = lambda: flag_check(g, 28, 23, sCNT, 0x7)
    HB = opt.get("hburst", 30)
    def hevent(k, ops):
        addu(k, ops); pauses.append((k, k + HB))
    if HB:
        hevent(720 + 106, hloads(1, Q(0), "h10")); hevent(P2 + opt.get("h11pos", 30), hloads(1, Q(1), "h11"))
        spread(hloads(2, Q(0), "h20") + hloads(2, Q(1), "h21"), P2 + 120, P2 + 200, urgent)
    else:
        spread(hloads(1, Q(0), "h10") + hloads(1, Q(1), "h11"), 720 + 107, P2, urgent)
        spread(hloads(2, Q(0), "h20") + hloads(2, Q(1), "h21"), P2 + 80, P2 + 150, urgent)
    def to_g2():
        for k in range(12): e("v_sub_u32 v%d, v%d, v27" % (B1 + k, B1 + k))
    stages[S2].after = to_g2
    stages[S2 + 8].before = lambda: g.wait_vm("h10")
    stages[S2 + 10].before = lambda: g.wait_vm(("hst", 5))
    stages[S2 + 10].after = lambda: signal(g, 28, 24, 63, 16)
    stages[S2 + 12].before = lambda: g.wait_vm("h11")
    addu(P2 + 16 * 14, [lambda: flag_issue(g, 28, 23, sCNT)])
    stages[S2 + 14].before = lambda: g.wait_vm("h20")
    stages[S2 + 16].before = lambda: flag_check(g, 28, 23, sCNT, 0x70)
    if HB:
        hevent(P2 + 16 * 16 - 6, hloads(1, Q(2), "h12")); spread(hloads(2, Q(2), "h22"), P2 + 16 * 20, P2 + 16 * 22 - 2, urgent)
    else:
        spread(hloads(1, Q(2), "h12") + hloads(2, Q(2), "h22"), P2 + 16 * 16 - 5, P2 + 16 * 19, urgent)
    stages[S2 + 18].before = lambda: g.wait_vm("h21")
    stages[S2 + 20].before = lambda: g.wait_vm("h12")
    addu(P2 + 16 * 22, [lambda: flag_issue(g, 28, 23, sCNT)])
    stages[S2 + 24].before = lambda: (g.wait_vm("h22"), flag_check(g, 28, 23, sCNT, 0x100))
    addu(P2 + 16 * 24 - 5, hloads(3, range(5), "oL"))
    stages[S2 + 27].before = lambda: g.wait_vm("oL")
    C0 = P2 + 16 * 27
    FUSE = opt.get("fuse", 1)
    sFL, sFW, sPL, sCOL, sRS = 64, 65, 66, 67, 68
    if FUSE:
        a2 = Asm(); srd(a2, SW1, 78, 79, PSZ)
        fin = [l.strip() for l in a2.lines]
        fin += ["s_mul_i32 s95, s%d, 3" % sR, "s_add_u32 s95, s95, s%d" % sI, "s_lshl_b32 s%d, s95, 7" % sFL, "s_add_u32 s%d, s%d, 0x%x" % (sFL, sFL, WS_FLG + 72 * 128),
                "s_lshl_b32 s%d, s%d, 2" % (sFW, sJ), "s_add_u32 s%d, s%d, s%d" % (sFW, sFW, sFL),
                "s_mul_i32 s95, s%d, %d" % (sJ, PSZ - 1024), "s_sub_u32 s%d, s%d, s95" % (sPL, sST),
                "s_mul_i32 s%d, s%d, 384" % (sCOL, sI), "s_and_b32 s95, s%d, 1" % sJ, "s_lshl_b32 s95, s95, 6", "s_add_u32 s%d, s%d, s95" % (sCOL, sCOL),
                "s_lshr_b32 s95, s%d, 1" % sJ, "s_lshl_b32 s95, s95, 4", "s_lshl_b32 s96, s%d, 5" % sW, "s_add_u32 s95, s95, s96",
                "v_and_b32 v173, 15, v0", "v_add_u32 v173, s95, v173", "v_lshlrev_b32 v174, 2, v173",
                "s_lshl_b32 s96, s%d, 7" % sR, "v_add_u32 v173, s96, v173", "v_mul_u32_u24 v173, 1152, v173",
                "v_bfe_u32 v175, v0, 4, 1", "v_lshl_add_u32 v173, v175, 5, v173", "v_lshrrev_b32 v175, 5, v0", "v_lshl_add_u32 v173, v175, 4, v173",
                "s_lshl_b32 s96, s%d, 2" % sR, "s_add_u32 s96, s96, s%d" % sJ, "s_lshl_b32 s%d, s96, 9" % sRS, "s_add_u32 s%d, s%d, 0x%x" % (sRS, sRS, WS_RS2),
                "s_mov_b32 s70, 0x3f80", "s_mov_b32 s71, 0x3f800000"]
        fin += ["v_mov_b32 v%d, 0" % (224 + i) for i in range(24)]
        addu(P2 + 16 * 27 + 2, [("buffer_load_dwordx4 %s, v173, s[%d:%d], s%d offen offset:%d" % (vr(160 + 4 * cg, 4), SX, SX + 3, sCOL, cg * 128), "fx") for cg in range(3)])
        add(P2 + 16 * 11, fin + [Mark("fin")])
        addu(P2 + 16 * 24 - 5, [("buffer_load_dword v172, v174, s[%d:%d], s%d offen sc1" % (SWS, SWS + 3, sRS), "rs")])
    for cg in range(2): add(C0 + 20 * (cg + 1) + 3, store_ops(g, 32 + 32 * cg, PK + 0, cg, VST))
    if opt.get("ts") or opt.get("amp") is not None:
        for k in (144, 288, 432, 576, 720, P2, P2 + 144, P2 + 288, C0): addu(k, [g.stamp])
    groups = list(range(0, S2 + 25, 2)) + [S2 + 27, S2 + 29, S2 + 31]
    pipe.run(0, len(stages), extra, pauses=pauses, groups=groups, urgent=urgent)
    w = pipe.when
    if opt.get("verbose"): print(w)
    assert w["xc"] < 142 and w["flo"] < 288 + 100 and all(w["epi%d" % r] < 144 * (r + 2) - 1 for r in range(5)), w
    assert w["epi5a"] < P2 + G2C2 - 1 and w["epi5"] < P2 + 96 - 1, w
    g.stamp()
    e("s_nop 7")
    for t in store_ops(g, 96, PK, 2, VST): e(t)
    if FUSE:
        assert w["fin"] < P2 + 16 * 23
        e("s_waitcnt vmcnt(0)"); e("s_barrier")
        signal(g, 28, 24, sFW, 0)
        g.stamp()
        flag_check(g, 28, 23, sFL, 0xf, issued=False, sleep=1)
        e("s_barrier")
        g.stamp()
        for p in range(4):
            for cg in range(3):
                if cg: e("s_add_u32 s95, s%d, %d" % (sPL, p * PSZ + cg * 4096))
                elif p: e("s_add_u32 s95, s%d, %d" % (sPL, p * PSZ))
                e("buffer_load_dwordx4 %s, v%d, s[%d:%d], s%d offen sc1" % (vr(176 + 4 * (p * 3 + cg), 4), VST, SWS, SWS + 3, 95 if p or cg else sPL), ("pl", p))
        for p in range(4):
            g.wait_vm(("pl", p))
            for cg in range(3):
                for i in range(4):
                    e("v_dot2c_f32_bf16 v%d, s70, v%d" % (224 + 8 * cg + 2 * i, 176 + 4 * (p * 3 + cg) + i))
                    e("v_dot2c_f32_bf16 v%d, s71, v%d" % (225 + 8 * cg + 2 * i, 176 + 4 * (p * 3 + cg) + i))
        e("s_nop 2")
        for cg in range(3):
            A = 224 + 8 * cg
            for i in range(4): e("v_permlane16_swap_b32 v%d, v%d" % (A + i, A + 4 + i))
            for i in range(4):
                e("v_lshlrev_b32 v176, 16, v%d" % (160 + 4 * cg + i))
                e("v_and_b32 v177, 0xffff0000, v%d" % (160 + 4 * cg + i))
                e("v_fma_f32 v176, v%d, v172, v176" % (A + 2 * i))
                e("v_fma_f32 v177, v%d, v172, v177" % (A + 2 * i + 1))
                e("v_cvt_pk_bf16_f32 v%d, v176, v177" % (180 + 4 * cg + i))
            e("buffer_store_dwordx4 %s, v173, s[%d:%d], s%d offen offset:%d %s" % (vr(180 + 4 * cg, 4), SW1, SW1 + 3, sCOL, cg * 128, opt.get("oflags", "nt")))
    if opt.get("ts") or opt.get("amp") is not None:
        e("s_waitcnt vmcnt(0)"); g.stamp()

def k1(g):
    e, opt = g.e, g.opt
    kernel_head(g, K1)
    e("s_getpc_b64 s[84:85]")
    e("s_cmp_ge_u32 s2, 256")
    e("s_cbranch_scc1 L_k1_end")
    e("s_load_dwordx8 s[64:71], s[0:1], 0")
    e("s_load_dwordx4 s[72:75], s[0:1], 40")
    e("s_load_dwordx4 s[76:79], s[0:1], 56")
    e("s_load_dwordx4 s[80:83], s[0:1], 72")
    if opt.get("vpf", 1):
        e("s_lshr_b32 s3, s2, 3")
        e("s_lshl_b32 s3, s3, 12")
        e("v_lshrrev_b32 v2, 3, v0")
        e("v_lshlrev_b32 v2, 7, v2")
        e("v_add_u32 v2, s3, v2")
        e("v_min_u32 v2, L_k1_end-%s, v2" % K1)
        e("global_load_dword v255, v2, s[84:85]")
    e("v_lshrrev_b32 v1, 6, v0")
    e("v_and_b32 v0, 63, v0")
    e("v_readfirstlane_b32 s%d, v1" % sW)
    lane_consts(g)
    e("s_and_b32 s%d, s2, 1" % sR)
    e("s_lshl_b32 s%d, s%d, 3" % (sR, sR))
    e("s_bfe_u32 s%d, s2, 0x30003" % sT)
    e("s_or_b32 s%d, s%d, s%d" % (sR, sR, sT))
    e("s_bfe_u32 s%d, s2, 0x20001" % sS)
    e("s_lshr_b32 s3, s2, 6")
    if opt.get("ts"):
        e("s_lshl_b32 s94, s2, 2"); e("s_add_u32 s94, s94, s%d" % sW); e("s_lshl_b32 s94, s94, 8"); e("s_add_u32 s94, s94, 0x%x" % WS_TS)
        if opt.get("dbgts") is not None:
            e("s_lshl_b32 s94, s2, 2"); e("s_add_u32 s94, s94, s%d" % sW); e("s_cmp_eq_u32 s94, %d" % (4 * opt["dbgts"])); e("s_cselect_b32 s94, 0, 0x10000")
    e("s_lshr_b32 s86, s2, 3")
    e("s_cmp_ge_u32 s86, 8")
    e("s_cselect_b32 s87, 8, 0")
    e("s_sub_u32 s86, s86, s87")
    e("s_lshl_b32 s86, s86, 2")
    e("s_add_u32 s86, s86, s%d" % sW)
    e("s_lshl_b32 s86, s86, 6")
    e("s_add_u32 s86, s84, s86")
    e("s_addc_u32 s87, s85, 0")
    e("s_waitcnt lgkmcnt(0)")
    srd(g, SX, 64, 65, PSZ)
    wb = opt.get("wsbase", 0)
    if wb:
        e("s_add_u32 s82, s82, 0x%x" % wb); e("s_addc_u32 s83, s83, 0")
    srd(g, SWS, 82, 83, WS_BYTES - wb)
    srd(g, SDBG, 80, 81, 256)
    e("s_or_b32 s%d, s2, s%d" % (sT, sW))
    e("s_cbranch_scc1 L_nonce_done")
    e("s_memrealtime s[98:99]")
    e("s_waitcnt lgkmcnt(0)")
    e("v_mov_b32 v2, s98")
    e("v_or_b32 v2, 1, v2")
    Asm.e(g, "buffer_store_dword v2, off, s[%d:%d], 0 sc1" % (SDBG, SDBG + 3))
    g.label("L_nonce_done")
    g.stamp()
    e("s_cmp_eq_u32 s3, 0")
    e("s_cbranch_scc1 %s" % ("L_k1_end" if opt.get("noatt") else "L_att"))
    sv = (list(g.vm), list(g.lg), g.nts)
    ffn_role(g)
    def amp(role):
        if opt.get("amp") is None or opt.get("amprole", "ffn") != role: return
        L = g.newlabel("L_amp")
        e("s_sub_u32 s101, s101, s100")
        e("s_add_u32 s101, s101, %d" % opt.get("ampadd", 0))
        if role == "ffn":
            e("s_memrealtime s[92:93]"); e("s_waitcnt lgkmcnt(0)"); e("s_mov_b32 s100, s92")
        g.label(L)
        e("s_sleep 1"); e("s_memrealtime s[92:93]"); e("s_waitcnt lgkmcnt(0)")
        e("s_sub_u32 s92, s92, s100"); e("s_cmp_lt_u32 s92, s101"); e("s_cbranch_scc1 %s" % L)
    amp("ffn")
    e("s_endpgm")
    g.vm, g.lg, g.nts = sv
    g.raw(".p2align 6")
    g.label("L_att")
    import att
    att.att_role(g)
    amp("att")
    g.label("L_k1_end")
    e("s_endpgm")

def k2(g):
    e, opt = g.e, g.opt
    g.vm = []; g.lg = []
    kernel_head(g, K2)
    lf = opt.get("k2flags", "")
    e("s_cmp_ge_u32 s2, 256")
    e("s_cbranch_scc1 L_k2_end")
    if opt.get("ts"): e("s_memrealtime s[32:33]")
    e("s_load_dwordx2 s[4:5], s[0:1], 0")
    e("s_load_dwordx2 s[6:7], s[0:1], 64")
    e("s_load_dwordx2 s[24:25], s[0:1], 80")
    e("v_lshrrev_b32 v1, 6, v0")
    e("v_and_b32 v0, 63, v0")
    e("v_readfirstlane_b32 s3, v1")
    e("s_mul_i32 s26, s2, 9")
    e("s_add_u32 s26, s26, s3")
    e("s_lshl_b32 s27, s26, 10")
    e("v_lshlrev_b32 v1, 4, v0")
    e("s_waitcnt lgkmcnt(0)")
    wb = opt.get("wsbase", 0)
    if wb:
        e("s_add_u32 s24, s24, 0x%x" % wb); e("s_addc_u32 s25, s25, 0")
    srd(g, 16, 24, 25, WS_BYTES - wb)
    for p in range(4):
        e("buffer_load_dwordx4 %s, v1, s[16:19], s27 offen %s" % (vr(16 + 4 * p, 4), lf), ("p", p))
        if p < 3: e("s_add_u32 s27, s27, %d" % PSZ)
    srd(g, 8, 4, 5, PSZ)
    srd(g, 12, 6, 7, PSZ)
    e("s_lshr_b32 s28, s26, 2")
    e("s_mul_i32 s29, s28, 7282")
    e("s_lshr_b32 s29, s29, 16")
    e("s_mul_i32 s30, s29, 9")
    e("s_sub_u32 s30, s28, s30")
    e("s_lshl_b32 s29, s29, 5")
    e("s_bfe_u32 s31, s26, 0x10001")
    e("s_lshl_b32 s31, s31, 4")
    e("s_add_u32 s29, s29, s31")
    e("s_lshl_b32 s30, s30, 7")
    e("s_and_b32 s31, s26, 1")
    e("s_lshl_b32 s31, s31, 6")
    e("s_add_u32 s30, s30, s31")
    e("v_and_b32 v2, 15, v0")
    e("v_add_u32 v2, s29, v2")
    e("v_and_b32 v3, 127, v2")
    e("v_lshlrev_b32 v3, 2, v3")
    e("s_lshr_b32 s31, s29, 7")
    e("s_lshl_b32 s31, s31, 11")
    e("s_add_u32 s31, s31, 0x%x" % WS_RS2)
    e("buffer_load_dword v5, v3, s[16:19], s31 offen", "rs")
    e("v_mul_u32_u24 v2, 1152, v2")
    e("v_bfe_u32 v3, v0, 4, 1")
    e("v_lshl_add_u32 v2, v3, 5, v2")
    e("v_lshrrev_b32 v3, 5, v0")
    e("v_lshl_add_u32 v2, v3, 4, v2")
    e("buffer_load_dwordx4 v[12:15], v2, s[8:11], s30 offen", "x")
    e("s_mov_b32 s20, 0x3f80")
    e("s_mov_b32 s21, 0x3f800000")
    for i in range(8): e("v_mov_b32 v%d, 0" % (80 + i))
    for p in range(4):
        g.wait_vm(("p", p))
        acc = 80
        for i in range(4):
            e("v_dot2c_f32_bf16 v%d, s20, v%d" % (acc + 2 * i, 16 + 4 * p + i))
            e("v_dot2c_f32_bf16 v%d, s21, v%d" % (acc + 2 * i + 1, 16 + 4 * p + i))
    e("s_waitcnt vmcnt(0)")
    e("s_nop 2")
    for i in range(8): e("v_mul_f32 v%d, v%d, v5" % (80 + i, 80 + i))
    e("s_nop 1")
    for i in range(4): e("v_permlane16_swap_b32 v%d, v%d" % (80 + i, 84 + i))
    for i in range(4):
        e("v_lshlrev_b32 v6, 16, v%d" % (12 + i))
        e("v_and_b32 v7, 0xffff0000, v%d" % (12 + i))
        e("v_add_f32 v%d, v%d, v6" % (80 + 2 * i, 80 + 2 * i))
        e("v_add_f32 v%d, v%d, v7" % (81 + 2 * i, 81 + 2 * i))
        e("v_cvt_pk_bf16_f32 v%d, v%d, v%d" % (8 + i, 80 + 2 * i, 81 + 2 * i))
    e("buffer_store_dwordx4 v[8:11], v2, s[12:15], s30 offen")
    if opt.get("ts"):
        e("s_waitcnt vmcnt(0)"); e("s_memrealtime s[34:35]"); e("s_waitcnt lgkmcnt(0)")
        e("v_mov_b32 v30, s32"); e("v_mov_b32 v31, s34"); e("v_mov_b32 v29, 0")
        e("s_lshl_b32 s26, s26, 3"); e("s_add_u32 s26, s26, 0x%x" % (WS_TS + 0x100000))
        e("buffer_store_dwordx2 v[30:31], v29, s[16:19], s26 offen")
    g.label("L_k2_end")
    e("s_endpgm")

VOP3ONLY = ("v_mfma", "v_pk_", "v_fma_f32", "v_cvt_pk_bf16", "v_accvgpr_read", "v_accvgpr_write", "v_max3", "v_min3", "v_lshl_add", "v_add_lshl", "v_mad_u32",
            "v_bfe", "v_add3", "v_mul_lo", "v_mul_hi", "v_lshl_or", "v_and_or", "v_readlane", "v_perm_b32")
NOWIDE = ("v_readfirstlane", "v_permlane", "v_dot2c", "v_nop")
def has_lit(s):
    for t in re.split(r"[ ,]+", s)[1:]:
        if re.match(r"^-?(0x[0-9a-f]+|\d+)$", t):
            v = int(t, 0)
            if not (-16 <= v <= 64) and v not in (0x3f800000, 0x3f000000, 0x40000000, 0x40800000, 0xbf800000, 0xbf000000, 0xc0000000, 0xc0800000): return True
        if t.startswith("L_"): return not s.startswith(("s_cbranch", "s_branch"))
    return False
def isize(s):
    op = s.split()[0]
    if op.startswith(("ds_", "buffer_", "global_", "s_load", "s_mem")): return 8, False
    if op.startswith("s_"):
        if op.startswith(("s_waitcnt", "s_nop", "s_barrier", "s_sleep", "s_endpgm", "s_cbranch", "s_branch", "s_setprio", "s_getreg")): return 4, False
        return (8 if has_lit(s) else 4), False
    if op.startswith(VOP3ONLY): return 8, False
    if has_lit(s): return 8, False
    ops = [x.strip() for x in re.split(r",(?![^\[]*\])", s.split(None, 1)[1])]
    if op.startswith("v_cmp") and ops[0] != "vcc": return 8, False
    if op.startswith("v_cndmask") and ops[-1] != "vcc": return 8, False
    if len(ops) >= 3 and not ops[2].startswith("v"): return 8, False
    return 4, not op.startswith(NOWIDE)
def align_pass(lines, minrun=4):
    ins = [l.strip() for l in lines]
    out = []; par = 0
    isins = lambda l: l and not l.endswith(":") and not l.startswith((".", ";"))
    n = len(ins)
    def nxt(i):
        i += 1
        while i < n and not isins(ins[i]):
            if ins[i].startswith(".p2align"): return None
            i += 1
        return i if i < n else None
    for i, l in enumerate(ins):
        if not isins(l):
            if l.startswith(".p2align"): par = 0
            out.append(l); continue
        sz, flex = isize(l)
        if sz == 8: out.append(l); continue
        if par == 1: out.append(l); par = 0; continue
        j = nxt(i)
        if j is None or isize(ins[j])[0] == 4: out.append(l); par = 1; continue
        if flex:
            op, rest = l.split(None, 1); out.append(op + "_e64 " + rest); continue
        run = 0
        while j is not None and isize(ins[j])[0] == 8 and run < minrun: run += 1; j = nxt(j)
        out.append(l)
        if run >= minrun and not l.startswith(("s_branch", "s_endpgm")): out.append("s_nop 0")
        else: par = 1
    return out

LABELS = {}
def resolve(lines):
    off = 0; LABELS.clear()
    for l in lines:
        l = l.strip()
        if l.endswith(":"): LABELS[l[:-1]] = off
        elif l.startswith(".p2align"):
            a = 1 << int(l.split()[1]); off = (off + a - 1) // a * a
        elif l and not l.startswith((".", ";")):
            off += 8 if l.split()[0].endswith("_e64") else isize(l)[0]
    end = LABELS["L_k1_end"]
    def f(m):
        span = 2048 if LABELS[m.group(1)] >= LABELS["L_att"] else 6144
        return "0x%x" % (min(LABELS[m.group(1)] + int(m.group(2)), end - span) & ~3)
    return [re.sub(r"@(\w+)\+(\d+)", f, l) if l.strip().startswith("s_load") else l for l in lines]

MACROS = """.macro MA d,a,b
v_mfma_f32_16x16x32_bf16 v[\\d:\\d+3], a[\\a:\\a+3], a[\\b:\\b+3], v[\\d:\\d+3]
.endm
.macro MV d,a,b
v_mfma_f32_16x16x32_bf16 v[\\d:\\d+3], a[\\a:\\a+3], v[\\b:\\b+3], v[\\d:\\d+3]
.endm
.macro RT d,b,o
ds_read_b64_tr_b16 a[\\d:\\d+1], v\\b offset:\\o
.endm
.macro WL n
s_waitcnt lgkmcnt(\\n)
.endm
.macro CV d,a,b
v_cvt_pk_bf16_f32 v\\d, v\\a, v\\b
.endm
"""
def compress(line):
    s = line.strip()
    m = re.match(r"v_mfma_f32_16x16x32_bf16 v\[(\d+):\d+\], a\[(\d+):\d+\], ([av])\[(\d+):\d+\], v\[(\d+):\d+\]$", s)
    if m and m.group(1) == m.group(5): return "M%s %s,%s,%s" % (m.group(3).upper(), m.group(1), m.group(2), m.group(4))
    m = re.match(r"ds_read_b64_tr_b16 a\[(\d+):\d+\], v(\d+) offset:(\d+)$", s)
    if m: return "RT %s,%s,%s" % m.groups()
    m = re.match(r"s_waitcnt lgkmcnt\((\d+)\)$", s)
    if m: return "WL %s" % m.group(1)
    m = re.match(r"v_cvt_pk_bf16_f32 v(\d+), v(\d+), v(\d+)$", s)
    if m: return "CV %s,%s,%s" % m.groups()
    return s

def gen(**opt):
    g = G(opt)
    k1(g)
    FUSE = opt.get("fuse", 1)
    if not FUSE: k2(g)
    errs = hazard.check(g.lines)
    if errs:
        print("\n".join(errs[:40])); raise SystemExit("hazards: %d" % len(errs))
    head = open("cdna_kernels/%s.s.ref" % BASE).read().split("; Override launch")[0] if not opt.get("nohead") else ""
    out = head
    if FUSE: out += "; @launch grid=(256,1,1) block=(256,1,1) lds=163840\n"
    else: out += "; @launch kernel=%s grid=(256,1,1) block=(256,1,1) lds=163840\n" % K1
    if not FUSE: out += "; @launch kernel=%s grid=(256,1,1) block=(576,1,1) lds=0\n" % K2
    out += '.amdgcn_target "amdgcn-amd-amdhsa--gfx950"\n.text\n' + MACROS
    lines = align_pass(g.lines, opt.get("minrun", 4)) if opt.get("align", 1) else g.lines
    lines = resolve(lines)
    out += "\n".join(compress(l) for l in lines) + "\n"
    out += '.section .rodata,"a"\n' + kernel_desc(K1, 512, 256) + ("" if FUSE else kernel_desc(K2, 96, 96, 40))
    return out

if __name__ == "__main__":
    kw = json.loads(sys.argv[2]) if len(sys.argv) > 2 else {}
    open(sys.argv[1], "w").write(gen(**kw))
```

```python
from asmlib import *
import gen as G
from gen import *

TBL = 155648; ZER = 163328; SCR = 98304
sODD = 42
sWO = 44
sKV, sQ, sKVP, sCQ, sOXB = 49, 50, 51, 44, 45
ACC = 32

def softmax(p, o, tt, E):
    L = []; e = L.append
    e("v_max3_f32 v24, v%d, v%d, v%d" % (p, p + 1, p + 2)); e("v_min3_f32 v25, v%d, v%d, v%d" % (p, p + 1, p + 2))
    for i in range(3, 17, 2):
        e("v_max3_f32 v24, v24, v%d, v%d" % (p + i, p + i + 1)); e("v_min3_f32 v25, v25, v%d, v%d" % (p + i, p + i + 1))
    e("v_max_f32 v24, v24, v%d" % (p + 17)); e("v_min_f32 v25, v25, v%d" % (p + 17))
    e("v_pk_mul_f32 v[24:25], v[24:25], v[14:15] op_sel:[0,%d] op_sel_hi:[1,%d]" % (tt, tt))
    for i in range(0, 18, 2):
        e("v_pk_fma_f32 %s, %s, v[14:15], v[24:25] op_sel:[0,%d,0] op_sel_hi:[1,%d,0] neg_lo:[0,0,1] neg_hi:[0,0,1]" % (vr(E + i, 2), vr(p + i, 2), tt, tt))
        e("v_pk_fma_f32 %s, %s, v[14:15], v[24:25] op_sel:[0,%d,1] op_sel_hi:[1,%d,1] neg_lo:[0,1,0] neg_hi:[0,1,0]" % (vr(p + i, 2), vr(p + i, 2), tt, tt))
    for i in range(18):
        e("v_exp_f32 v%d, v%d" % (E + i, E + i))
        e("v_exp_f32 v%d, v%d" % (p + i, p + i))
    e("v_pk_add_f32 v[24:25], %s, %s" % (vr(E, 2), vr(E + 2, 2)))
    e("v_pk_add_f32 v[26:27], %s, %s" % (vr(p, 2), vr(p + 2, 2)))
    for i in range(4, 18, 2):
        e("v_pk_add_f32 v[24:25], v[24:25], %s" % vr(E + i, 2))
        e("v_pk_add_f32 v[26:27], v[26:27], %s" % vr(p + i, 2))
    e("v_add_f32 v24, v24, v25")
    e("v_add_f32 v25, v26, v27")
    e("v_rcp_f32 v24, v24")
    e("v_rcp_f32 v25, v25")
    e("s_nop 0")
    for i in range(0, 18, 2):
        e("v_pk_mul_f32 %s, %s, v[24:25] op_sel:[0,0] op_sel_hi:[1,0]" % (vr(E + i, 2), vr(E + i, 2)))
        e("v_pk_mul_f32 %s, %s, v[24:25] op_sel:[0,1] op_sel_hi:[1,1]" % (vr(p + i, 2), vr(p + i, 2)))
    for i in range(8, -1, -1): e("v_cvt_pk_bf16_f32 v%d, v%d, v%d" % (o + 9 + i, p + 2 * i, p + 2 * i + 1))
    for i in range(9): e("v_cvt_pk_bf16_f32 v%d, v%d, v%d" % (o + i, E + 2 * i, E + 2 * i + 1))
    out = []
    for x in L:
        if x.startswith("v_pk_"):
            if out and isinstance(out[-1], list): out[-1].append(x)
            else: out.append([x])
        else: out.append(x)
    for x in out:
        if isinstance(x, list): x.append("s_nop 0")
    return out

def phi_frag_reads(rho, A, tag):
    L = ["v_mov_b32 v29, v18" if rho == 0 else "v_mad_u32_u24 v29, v19, 12, v18"]
    for ks in range(3):
        for to in range(5):
            b = A + (ks * 5 + to) * 4
            L.append(("ds_read_b64_tr_b16 %s, v29 offset:%d" % (ar(b, 2), to * 8), tag))
            L.append(("ds_read_b64_tr_b16 %s, v29 offset:%d" % (ar(b + 2, 2), to * 8 + 160), tag))
        if ks < 2: L.append("v_add_u32 v29, v29, v19")
    return L

def phi_mfma(pk, P, A):
    return [mfma(vr(P[tt] + 4 * to, 4), ar(A + (ks * 5 + to) * 4, 4), vr(pk[tt] + 4 * ks, 4), "0" if ks == 0 else None)
            for ks in range(3) for to in range(5) for tt in range(2)]

def pack20(src, dst):
    return ["v_cvt_pk_bf16_f32 v%d, v%d, v%d" % (dst + i, src + 2 * i, src + 2 * i + 1) for i in range(10)]

def put(g, L):
    for it in L:
        if callable(it): it()
        elif isinstance(it, list): put(g, it)
        elif isinstance(it, tuple): g.e(it[0], it[1])
        else: g.e(it)

def weave(g, ms, fill, per=2):
    fill = list(fill)
    for m in ms:
        put(g, [m]); put(g, fill[:per]); fill = fill[per:]
    put(g, fill)

def c1(f):
    f.cost = 1
    return f

def att_role(g):
    e, opt = g.e, g.opt
    wf = opt.get("aflags", ""); TOUCH = opt.get("touch", 1); tf = opt.get("tflags", "")
    CPF = opt.get("codepf", 0)
    e("s_sub_u32 s66, s66, 2048")
    e("s_subb_u32 s67, s67, 0")
    srd(g, SW1, 66, 67, 576 * 1728 * 2 + 2048)
    srd(g, SPHI, 68, 69, 32 * 18 * 18 * 2)
    e("s_mul_i32 s%d, s%d, 3072" % (sM0W, sW))
    e("s_and_b32 s%d, s%d, 1" % (sT, sW))
    e("s_lshl_b32 s%d, s%d, 4" % (sT, sT))
    e("s_add_u32 s%d, s%d, s%d" % (sM0W, sM0W, sT))
    e("s_and_b32 s%d, s%d, 2" % (sT, sW))
    e("s_lshl_b32 s%d, s%d, 7" % (sT, sT))
    e("s_add_u32 s%d, s%d, s%d" % (sM0W, sM0W, sT))
    e("s_mul_i32 s%d, s%d, 288" % (sQ, sS))
    e("s_and_b32 s47, s%d, 0xffc0" % sQ)
    e("s_add_u32 s%d, s47, 1152" % sKV)
    e("s_lshl_b32 s%d, s%d, 7" % (sCNT, sS))
    e("s_add_u32 s%d, s%d, 0x%x" % (sCNT, sCNT, WS_FLG + 64 * 128))
    e("s_add_u32 s46, s%d, 512" % sCNT)
    e("s_lshl_b32 s63, s%d, 2" % sR)
    e("s_add_u32 s63, s63, s%d" % sCNT)
    e("s_lshl_b32 s%d, s%d, 2" % (sT, sR))
    e("s_add_u32 s%d, s%d, s%d" % (sT, sT, sS))
    e("s_lshl_b32 s%d, s%d, 7" % (sCQ, sT))
    e("s_add_u32 s%d, s%d, 0x%x" % (sCQ, sCQ, WS_FLG))
    e("s_lshl_b32 s%d, s%d, 2" % (sT, sT))
    e("s_add_u32 s%d, s%d, s%d" % (sT, sT, sW))
    e("s_mul_i32 s%d, s%d, 10240" % (sOXB, sT))
    e("s_add_u32 s%d, s%d, 0x%x" % (sOXB, sOXB, WS_OX))
    e("s_lshl_b32 s%d, s%d, 3" % (sKVP, sS))
    e("s_add_u32 s%d, s%d, s%d" % (sKVP, sKVP, sW))
    e("s_lshl_b32 s%d, s%d, 4" % (sKVP, sKVP))
    e("s_add_u32 s%d, s%d, s%d" % (sKVP, sKVP, sR))
    e("s_mul_i32 s%d, s%d, 2944" % (sKVP, sKVP))
    e("s_add_u32 s%d, s%d, 0x%x" % (sKVP, sKVP, WS_KVP))
    stages = []; SLOT = 12800; NSL = 7
    for ps in range(3):
        for ks in range(18):
            n = len(stages); lo = (n % NSL) * SLOT
            sb, add, vo = (sKV, 128 * ps, 1) if ps < 2 else (47, 0, 4)
            pre = ["s_add_u32 m0, s%d, %d" % (sM0W, lo), "s_add_u32 s%d, s%d, %d" % (sOFF, sb, ks * 32 * 3456 + add)]
            dmas = ["buffer_load_dwordx4 v%d, s[%d:%d], s%d offen offset:%d %s lds" % (vo + i, SW1, SW1 + 3, sOFF, i * 1024, wf) for i in range(3)]
            frags = []
            for sec in range(2):
                for t in range(5):
                    off = lo + sec * 1536 + 8 * t + 16 * (ps if ps < 2 else sec)
                    def rd(buf, off=off):
                        b = 7 + (off >> 16); o = off & 0xffff
                        assert o + 768 < 65536
                        return ["ds_read_b64_tr_b16 %s, v%d offset:%d" % (ar(buf, 2), b, o), "ds_read_b64_tr_b16 %s, v%d offset:%d" % (ar(buf + 2, 2), b, o + 768)]
                    def mf(buf, ks=ks, sec=sec, t=t, XC=(XC if ps else XV0)):
                        order = (0, 1) if (sec * 5 + t) % 2 == 0 else (1, 0)
                        return [mfma(vr(ACC + (sec * 2 + tt) * 20 + 4 * t, 4), ar(buf, 4), XC(tt, ks), "0" if ks == 0 else None) for tt in order]
                    frags.append((rd, mf))
            stages.append(Stage(lo, lo + SLOT, pre, dmas, frags, "x"))
    OB = 192; VST = 21
    pipe = Pipe(g, stages, opt.get("D", 7), opt.get("ABE", 2))

    def early():
        if TOUCH:
            e("v_mul_u32_u24 v28, 3641, v0")
            e("v_lshrrev_b32 v28, 16, v28")
            e("v_mul_u32_u24 v9, 18, v28")
            e("v_sub_u32 v9, v0, v9")
            e("s_mul_i32 s3, s%d, 18" % sW)
            e("s_and_b32 s%d, s%d, 7" % (sOFF, sR))
            e("s_mul_i32 s%d, s%d, 72" % (sOFF, sOFF))
            e("s_add_u32 s3, s3, s%d" % sOFF)
            e("v_add_u32 v9, s3, v9")
            e("v_mul_u32_u24 v9, 3456, v9")
            e("v_lshl_add_u32 v9, v28, 7, v9")
            e("v_add_u32 v9, 2048, v9")
            e("v_cmp_gt_u32 vcc, 54, v0")
            e("v_mov_b32 v28, 0x%x" % OOB)
            e("s_nop 0")
            e("v_cndmask_b32 v9, v28, v9, vcc")
        e("s_lshl_b32 s%d, s%d, 6" % (sOFF, sW))
        e("v_add_u32 v29, s%d, v0" % sOFF)
        for i in range(4): e("v_mov_b32 v%d, 0" % (96 + i))
        e("v_lshlrev_b32 v28, 5, v29")
        e("v_add_u32 v28, %d, v28" % TBL)
        e("ds_write_b128 v28, v[96:99]")
        e("ds_write_b128 v28, v[96:99] offset:16")
        for i in range(6):
            a = 90 + i
            e("v_add_u32 v28, %d, v29" % (256 * i))
            e("v_mul_u32_u24 v30, 7282, v28")
            e("v_lshrrev_b32 v30, 16, v30")
            e("v_mul_u32_u24 v31, 3641, v30")
            e("v_lshrrev_b32 v31, 16, v31")
            e("v_add_lshl_u32 v%d, v28, v30, 2" % a)
            e("v_mul_u32_u24 v30, 240, v31")
            e("v_add_u32 v%d, v%d, v30" % (a, a))
            e("v_and_b32 v31, 1, v31")
            e("v_mul_u32_u24 v31, 80, v31")
            e("v_add3_u32 v%d, v%d, v31, s%d" % (a, a, sT)) if False else None
            e("v_add_u32 v%d, v%d, v31" % (a, a))
            e("v_add_u32 v%d, %d, v%d" % (a, TBL, a))
        e("v_cmp_gt_u32 vcc, 16, v29")
        e("v_mov_b32 v28, 150000")
        e("s_nop 0")
        e("v_cndmask_b32 v95, v28, v95, vcc")
        e("s_lshl_b32 s3, s%d, 3" % sW)
        e("v_mov_b32 v111, 0x%x" % OOB)
        for i in range(3):
            e("v_add_u32 v28, %d, v0" % (64 * i))
            e("v_mul_u32_u24 v30, 5462, v28")
            e("v_lshrrev_b32 v30, 16, v30")
            e("v_mul_u32_u24 v31, 12, v30")
            e("v_sub_u32 v31, v28, v31")
            e("v_lshrrev_b32 v28, 3, v30")
            e("v_and_b32 v30, 7, v30")
            e("v_add_u32 v30, s3, v30")
            e("v_mul_u32_u24 v30, 3456, v30")
            e("v_lshl_add_u32 v30, v31, 4, v30")
            e("v_add_u32 v30, %d, v30" % (2048 - 1024 * i))
            e("v_lshl_add_u32 v%d, v28, 7, v30" % (4 + i))
            e("v_mul_u32_u24 v28, 1152, v28")
            e("v_add_u32 v%d, v28, v30" % (1 + i))
        e("v_mul_u32_u24 v7, 3072, v22")
        e("v_and_b32 v28, 1, v22")
        e("v_cmp_eq_u32 s[%d:%d], 1, v28" % (sODD, sODD + 1))
        e("v_lshl_add_u32 v7, v28, 4, v7")
        e("v_lshrrev_b32 v28, 1, v22")
        e("v_lshl_add_u32 v7, v28, 8, v7")
        e("v_bfe_u32 v28, v0, 2, 2")
        e("v_mul_u32_u24 v30, 192, v28")
        e("v_add_u32 v7, v7, v30")
        e("v_bfe_u32 v30, v0, 1, 1")
        e("v_mul_u32_u24 v30, 72, v30")
        e("v_add_u32 v7, v7, v30")
        e("v_and_b32 v30, 1, v0")
        e("v_lshl_add_u32 v7, v30, 5, v7")
        e("s_and_b32 s3, s%d, 63" % sQ)
        e("v_add_u32 v7, s3, v7")
        e("v_add_u32 v8, 0x10000, v7")
        e("v_mul_u32_u24 v18, 960, v22")
        e("v_mul_u32_u24 v30, 40, v28")
        e("v_add_u32 v18, v18, v30")
        e("v_add_u32 v18, %d, v18" % TBL)
        e("v_and_b32 v30, 3, v0")
        e("v_cmp_eq_u32 vcc, v30, v22")
        e("v_mov_b32 v30, %d" % ZER)
        e("v_mov_b32 v31, 320")
        e("v_cndmask_b32 v18, v30, v18, vcc")
        e("v_cndmask_b32 v19, 0, v31, vcc")
        e("v_cmp_eq_u32 vcc, 0, v29")
        e("v_lshlrev_b32 v%d, 4, v0" % VST)
        e("s_nop 0")
        e("v_cndmask_b32 v20, v111, 0, vcc") if False else None
        e("v_mov_b32 v20, 0")
        e("v_cndmask_b32 v20, v111, v20, vcc")
        e("s_lshl_b32 s3, s%d, 5" % sW)
        e("v_add_u32 v28, s3, v23")
        e("v_mul_u32_u24 v10, 112, v28")
        e("v_mul_u32_u24 v28, 14336, v22")
        e("v_add_u32 v10, v10, v28")
        e("v_add_u32 v10, %d, v10" % SCR)
        e("v_bfe_u32 v28, v0, 2, 2")
        e("v_lshl_add_u32 v28, v22, 3, v28")
        e("v_mul_u32_u24 v11, 112, v28")
        e("v_and_b32 v28, 3, v0")
        e("v_lshl_add_u32 v11, v28, 3, v11")
        e("s_mul_i32 s3, s%d, 14336" % sW)
        e("s_add_u32 s3, s3, %d" % SCR)
        e("v_add_u32 v11, s3, v11")
        e("v_lshlrev_b32 v12, 4, v0")
    def touch(sec): return "buffer_load_dword v13, v9, s[%d:%d], s%d offen offset:%d %s" % (SW1, SW1 + 3, sQ, sec * 1152, tf)
    AT = opt.get("atouch", [[1, 2], [], [0]])
    def late():
        e("s_mul_i32 s95, s%d, 5184" % sS)
        e("v_lshlrev_b32 v110, 2, v29")
        e("v_add_u32 v109, 4096, v110")
        for i in range(6):
            e("buffer_load_dword a%d, v%d, s[%d:%d], s95 offen offset:%d" % (244 + i, 110 if i < 4 else 109, SPHI, SPHI + 3, (i % 4) * 1024), "phi")
        if TOUCH:
            for sec in AT[0]: e(touch(sec))
    import re
    sv = (g.lines, list(g.vm), list(g.lg)); g.lines = []
    early()
    for i in range(6): e("v_accvgpr_write_b32 a%d, v%d" % (250 + i, 90 + i))
    fill = [re.sub(r"\bs3\b", "s96", re.sub(r"\bs%d\b" % sOFF, "s95", l.strip())) for l in g.lines]
    g.lines, g.vm, g.lg = sv
    pipe.qthr = 3
    prologue(g, pipe, afterbar=late, fill=fill, var=True, nfirst=opt.get('anfirst', 9))
    e("v_and_b32 v28, 1, v0")
    e("v_cmp_eq_u32 vcc, 1, v28")
    e("v_and_b32 v28, 2, v0")
    e("v_cmp_eq_u32 s[54:55], 2, v28")
    e("v_lshrrev_b32 v28, 2, v23")
    e("v_lshl_add_u32 v28, v28, 4, v23")
    e("v_lshlrev_b32 v28, 2, v28")
    e("s_nop 0")
    for tt in range(2):
        d = 96 + 4 * tt
        e("v_cndmask_b32 v%d, v%d, v%d, vcc" % (d, d, d + 1))
        e("v_cndmask_b32 v%d, v%d, v%d, vcc" % (d + 2, d + 2, d + 3))
        e("v_cndmask_b32 v%d, v%d, v%d, s[54:55]" % (24 + tt, d, d + 2))
        e("ds_bpermute_b32 v%d, v28, v%d" % (16 + tt, 24 + tt))
    VAR = ["s_mov_b32 s%d, 0x3ae38e39" % sT, "v_mov_b32 v26, 0x3727c5ac"]
    VAR += ["v_fma_f32 v%d, v%d, s%d, v26" % (16 + tt, 16 + tt, sT) for tt in range(2)]
    VAR += ["v_accvgpr_write_b32 a%d, v%d" % (240 + tt, 16 + tt) for tt in range(2)]
    VAR += ["v_rsq_f32 v%d, v%d" % (16 + tt, 16 + tt) for tt in range(2)] + ["s_nop 0"]
    VAR += ["v_mul_f32 v%d, 0x3fb8aa3b, v%d" % (14 + tt, 16 + tt) for tt in range(2)]
    TW = [c1(lambda: g.wait_vm("phi"))]
    for i in range(6): TW += ["v_accvgpr_read_b32 v%d, a%d" % (24 + i % 4, 250 + i), ("ds_write_b32 v%d, a%d" % (24 + i % 4, 244 + i), "tw")]
    TW += [Hook(before=lambda: g.wait_lg("tw"))]
    g.stamp()
    PKK = [112, 124]; P = [136, 156]; ROW = [176, 204]; E = 232; FA = 176
    def head(rho):
        e("s_nop 3")
        for tt in range(2):
            for i in (10, 11): e("v_mov_b32 v%d, 0" % (PKK[tt] + i))
        for tt in range(2): put(g, pack20(ACC + tt * 20, PKK[tt]))
        g.wait_lg(("phf", rho))
        V = ["v_mov_b32 v28, 0x3f80"]
        for tt in range(2):
            s = ACC + (2 + tt) * 20
            put(g, ["v_pk_mul_f32 %s, %s, v[16:17] op_sel:[0,%d] op_sel_hi:[1,%d]" % (vr(s + i, 2), vr(s + i, 2), tt, tt) for i in range(0, 20, 2)])
            V += pack20(s, ROW[tt] + 18)
            V += ["v_cndmask_b32 v%d, v%d, v28, s[%d:%d]" % (ROW[tt] + 18, ROW[tt] + 18, sODD, sODD + 1),
                  "v_cndmask_b32 v%d, v28, v%d, s[%d:%d]" % (ROW[tt] + 27, ROW[tt] + 27, sODD, sODD + 1)]
        e("s_nop 0")
        weave(g, phi_mfma(PKK, P, FA), V)
    def post(rho):
        L = []
        for tt in range(2):
            L += softmax(P[tt], ROW[tt], tt, E)
            L += [("ds_write_b128 v10, %s offset:%d" % (vr(ROW[tt] + 4 * i, 4), tt * 16 * 112 + 16 * i), ("sw", rho)) for i in range(7)]
        L += ["v_cmp_eq_u32 vcc, 0, v22", "v_cmp_gt_u32 s[54:55], 4, v23", "v_mov_b32 v28, 0x%x" % OOB,
              "s_add_u32 s%d, s%d, %d" % (sT, sKVP, rho * 4 * 16 * 2944),
              "v_cndmask_b32 v25, v28, v12, vcc", "v_lshl_add_u32 v26, v22, 2, v23", "v_lshlrev_b32 v26, 4, v26", "v_cmp_gt_u32 vcc, 2, v22",
              "v_cndmask_b32 v26, v28, v26, s[54:55]", "s_nop 0", "v_cndmask_b32 v27, v28, v26, vcc"]
        L.append(Hook(before=lambda: g.wait_lg(("sw", rho))))
        KF = 136
        for kk in range(4):
            for f in range(5):
                col = 32 * f if f < 3 else 72 + 32 * (f - 3)
                d = KF + (kk * 5 + f) * 4
                L.append(("ds_read_b64_tr_b16 %s, v11 offset:%d" % (vr(d, 2), kk * 32 * 112 + col), ("kr", rho, kk)))
                L.append(("ds_read_b64_tr_b16 %s, v11 offset:%d" % (vr(d + 2, 2), kk * 32 * 112 + col + 4 * 112), ("kr", rho, kk)))
        L.append(Delay(2))
        L.append(c1(lambda: g.wait_lg(("kr", rho, 3))))
        for kk in range(4):
            for a in range(3):
                for b in range(2):
                    L.append(mfma(vr(112 + (a * 2 + b) * 4, 4), vr(KF + (kk * 5 + a) * 4, 4), vr(KF + (kk * 5 + 3 + b) * 4, 4), "0" if kk == 0 else None))
        L.append(Delay(3)); L.append("s_nop 0")
        for a in range(3):
            for b in range(2):
                vo = {(0, 0): 12, (1, 0): 25, (0, 1): 26, (1, 1): 27}[(int(a == 2), b)]
                L.append(("buffer_store_dwordx4 %s, v%d, s[%d:%d], s%d offen offset:%d sc1" % (vr(112 + (a * 2 + b) * 4, 4), vo, SWS, SWS + 3, sT, 2304 + a * 256 if b else a * 1024), "kvst"))
        return L
    DB, DQ = opt.get("dens", [2, 6])
    APZ = opt.get("apause", 0)
    fine = {k: [g.stamp] for k in range(30, 180, 30)} if opt.get("fine") else {}
    pipe.run(0, 18, {1: VAR + xc_copies(), 90: TW + [Dens(1)] + phi_frag_reads(0, FA, ("phf", 0)) + [Mark('pA')]}, lagok=True)
    g.stamp()
    put(g, flag_lane_offsets(250, 28))
    if opt.get("fpre", 1): e(flag_load(13, 250, sCNT)); e(flag_load(13, 250, 46)); e(flag_load(13, 250, sCQ))
    flag_issue(g, 251, 250, None)
    if TOUCH: put(g, [touch(x) for x in AT[1]])
    head(0)
    g.stamp()
    pipe.run(18, 36, {2: [Dens(DB)] + post(0) + phi_frag_reads(1, FA, ("phf", 1)) + [Mark("postA")]}, lagok=False, urgent=fine, pauses=[(0, APZ)])
    g.stamp()
    flag_check(g, 251, 250, None, 0)
    if TOUCH: put(g, [touch(x) for x in AT[2]])
    head(1)
    g.stamp()
    L1 = ["s_mul_i32 s96, s%d, 25" % sW, "v_add_u32 v28, s96, v0", "v_mul_u32_u24 v31, 3277, v28", "v_lshrrev_b32 v31, 16, v31",
          "v_mul_u32_u24 v29, 20, v31", "v_sub_u32 v29, v28, v29", "s_and_b32 s96, s%d, 1" % sR, "s_mul_i32 s96, s96, 5",
          "v_add_u32 v31, s96, v31", "v_cmp_gt_u32 vcc, 25, v0", "v_cmp_gt_u32 s[54:55], 9, v31",
          "v_cmp_gt_u32 s[56:57], 16, v29", "v_lshlrev_b32 v24, 8, v31", "v_lshlrev_b32 v25, 6, v31", "v_add_u32 v25, 2048, v25",
          "v_cndmask_b32 v24, v25, v24, s[56:57]", "v_lshl_add_u32 v24, v29, 4, v24",
          "v_mul_u32_u24 v25, 160, v31", "v_lshl_add_u32 v25, v29, 3, v25",
          "v_mov_b32 v28, 0x%x" % OOB, "v_cndmask_b32 v24, v28, v24, vcc", "v_cndmask_b32 v24, v28, v24, s[54:55]", "v_cndmask_b32 v12, v28, v25, vcc",
          "s_lshl_b32 s96, s%d, 3" % sS, "s_lshr_b32 s95, s%d, 1" % sR, "s_add_u32 s96, s96, s95",
          "s_mul_i32 s%d, s96, %d" % (sT, 16 * 2944), "s_add_u32 s%d, s%d, 0x%x" % (sT, sT, WS_KVP),
          "s_mul_i32 s95, s96, 1600", "s_add_u32 s95, s95, 0x%x" % WS_KVF]
    KVL = SCR; KZ = SCR + 13312
    KS = []
    def ks_setup(e=KS.append):
        e("s_lshl_b32 s96, s%d, 6" % sW)
        e("v_add_u32 v28, s96, v0")
        e("v_lshlrev_b32 v224, 4, v28")
        e("v_lshlrev_b32 v225, 3, v28")
        e("v_add_u32 v225, %d, v225" % KZ)
        e("v_mov_b32 v226, 0"); e("v_mov_b32 v227, 0")
        e("ds_write_b64 v225, v[226:227]")
        e("v_cmp_gt_u32 vcc, 32, v28")
        e("v_mov_b32 v230, 0x%x" % OOB)
        e("s_mov_b32 s%d, %d" % (sT2, KVL))
        e("v_cndmask_b32 v230, v230, v224, vcc")
        for k in range(4):
            d = 252 + k
            e("v_add_u32 v29, %d, v28" % (256 * k))
            e("v_mul_u32_u24 v31, 6554, v29")
            e("v_lshrrev_b32 v31, 16, v31")
            e("v_mul_u32_u24 v%d, 10, v31" % d)
            e("v_sub_u32 v%d, v29, v%d" % (d, d))
            e("v_mul_u32_u24 v%d, 160, v%d" % (d, d))
            e("v_lshl_add_u32 v%d, v31, 3, v%d" % (d, d))
            e("v_mul_u32_u24 v31, 6554, v31")
            e("v_lshrrev_b32 v31, 16, v31")
            e("v_mul_u32_u24 v31, 1520, v31")
            e("v_add3_u32 v%d, v%d, v31, s%d" % (d, d, sT2))
        e("v_add_u32 v29, 8192, v255")
        e("v_cndmask_b32 v255, v29, v255, vcc")
        e("s_mul_i32 s%d, s%d, 12800" % (sT2, sS))
        e("s_add_u32 s%d, s%d, 0x%x" % (sT2, sT2, WS_KVF))
        e("v_lshrrev_b32 v28, 2, v23")
        e("v_cmp_eq_u32 s[54:55], v28, v22")
        e("v_mul_u32_u24 v228, 1600, v22")
        e("v_and_b32 v28, 3, v23")
        e("v_mul_u32_u24 v28, 80, v28")
        e("v_add_u32 v228, v228, v28")
        e("v_add_u32 v228, %d, v228" % KVL)
        e("v_add_u32 v229, 6400, v228")
        e("v_mov_b32 v28, %d" % KZ)
        e("v_cndmask_b32 v228, v28, v228, s[54:55]")
        e("v_cndmask_b32 v229, v28, v229, s[54:55]")
    ks_setup()
    L1L = []
    for p in range(16):
        L1L.append(("buffer_load_dwordx4 %s, v24, s[%d:%d], s%d offen sc1" % (vr(160 + 4 * p, 4), SWS, SWS + 3, sT), ("l1", p)))
        if p < 15: L1L.append("s_add_u32 s%d, s%d, 2944" % (sT, sT))
    Lq = [Dens(DQ)] + post(1) + [Mark("postB"), Dens(2)] + L1 + [Dens(0), Delay(opt.get("d1", 10)),
          Hook(before=lambda: g.wait_vm("kvst"), after=lambda: signal(g, 28, 20, 63, 0)), Mark("sigA"), Dens(1)] + phi_frag_reads(0, FA, ("phf", 2))
    Lq += [Delay(opt.get("d2", 8)), lambda: flag_issue(g, 251, 250, sCNT), Mark("issA"), Delay(opt.get("d3", 12)), Hook(before=lambda: flag_check(g, 251, 250, sCNT, 0xffff)), Mark("chkA"), Dens(2)] + L1L + [Mark("l1")] + KS
    pipe.run(36, 54, {2: Lq}, lagok=False, urgent=fine, pauses=[(0, APZ)])
    if opt.get("verbose"): print(pipe.when)
    g.stamp()
    PQ = [[112, 124], [136, 148]]; PHQ = ACC; E = 164
    put(g, phi_frag_reads(1, 0, ("phf", 3)))
    def packq(rho):
        L = []
        for tt in range(2):
            L += ["v_mov_b32 v%d, 0" % (PQ[rho][tt] + i) for i in (10, 11)] + pack20(ACC + (rho * 2 + tt) * 20, PQ[rho][tt])
        return L
    put(g, packq(0))
    g.wait_lg(("phf", 2))
    S = [lambda: g.wait_vm(("l1", 15))]
    for p in range(1, 16): S += ["v_add_f32 v%d, v%d, v%d" % (160 + i, 160 + i, 160 + 4 * p + i) for i in range(4)]
    S += ["v_cvt_pk_bf16_f32 v160, v160, v161", "v_cvt_pk_bf16_f32 v161, v162, v163",
          ("buffer_store_dwordx2 v[160:161], v12, s[%d:%d], s95 offen sc1" % (SWS, SWS + 3), "kvf")]
    blk = lambda rho: [ACC + (rho * 2) * 20, ACC + (rho * 2 + 1) * 20]
    weave(g, phi_mfma(PQ[0], blk(0), FA), packq(1) + [lambda: g.wait_lg(("phf", 3))])
    weave(g, phi_mfma(PQ[1], blk(1), 0), S)
    put(g, softmax(blk(0)[0], blk(0)[0], 0, E))
    g.wait_vm("kvf"); e("s_barrier"); signal(g, 28, 20, 63, 512)
    put(g, softmax(blk(0)[1], blk(0)[1], 1, E))
    flag_issue(g, 251, 250, 46)
    put(g, softmax(blk(1)[0], blk(1)[0], 0, E))
    g.stamp()
    flag_check(g, 251, 250, 46, 0xffff)
    e("s_barrier")
    g.stamp()
    for k in range(4):
        e("buffer_load_dwordx4 %s, v%d, s[%d:%d], s%d offen sc1" % (vr(232 + 4 * k, 4), 224 if k < 3 else 230, SWS, SWS + 3, sT2), ("kvl", k))
        if k < 3: e("s_add_u32 s%d, s%d, 4096" % (sT2, sT2))
    put(g, softmax(blk(1)[1], blk(1)[1], 1, E))
    for k in range(4):
        g.wait_vm(("kvl", k))
        e("ds_write_b64 v%d, %s" % (252 + k, vr(232 + 4 * k, 2)))
        e("ds_write_b64 v%d, %s offset:80" % (252 + k, vr(234 + 4 * k, 2)))
    e("s_waitcnt lgkmcnt(0)")
    e("s_barrier")
    g.stamp()
    def kva(rho, to, ks):
        i = rho * 25 + to * 5 + ks
        return 4 * i if i < 36 else 176 + 4 * (i - 36)
    NUM = 112
    grp = [(rho, to) for rho in range(2) for to in range(5)]
    def kreads(k):
        rho, to = grp[k]
        return [("ds_read_b128 %s, v%d offset:%d" % (ar(kva(rho, to, ks), 4), 228 + rho, to * 320 + ks * 16), ("kva", k)) for ks in range(5)]
    def ocalc(rho):
        L = []
        for tt in range(2):
            s = NUM + (rho * 2 + tt) * 20; o = OB + 20 * tt + 10 * rho
            L += ["v_cndmask_b32 v24, v%d, v%d, s[%d:%d]" % (s + 18, s, sODD, sODD + 1), "v_add_f32 v24, 0x358637bd, v24", "v_rcp_f32 v24, v24", "s_nop 0",
                  "v_mul_f32 v24, v24, v%d" % (26 + tt)]
            if rho: L += ["v_pk_mul_f32 %s, %s, v[24:25] op_sel_hi:[1,0]" % (vr(s + i, 2), vr(s + i, 2)) for i in range(0, 20, 2)]
            else: L += ["v_mul_f32 v%d, v%d, v24" % (s + i, s + i) for i in range(20)]
            L += pack20(s, o)
            L += ["v_cndmask_b32 v%d, v%d, 0, s[%d:%d]" % (o, o, sODD, sODD + 1), "v_cndmask_b32 v%d, 0, v%d, s[%d:%d]" % (o + 9, o + 9, sODD, sODD + 1)]
        return L
    put(g, kreads(0) + kreads(1))
    for tt in range(2): e("v_accvgpr_read_b32 v%d, a%d" % (26 + tt, 240 + tt))
    oc = ocalc(0)
    for k, (rho, to) in enumerate(grp):
        g.wait_lg(("kva", k))
        ms = [mfma(vr(NUM + (rho * 2 + tt) * 20 + 4 * to, 4), ar(kva(rho, to, ks), 4), vr(PHQ + (rho * 2 + tt) * 20 + 4 * ks, 4), "0" if ks == 0 else None)
              for ks in range(5) for tt in range(2)]
        fill = kreads(k + 2) if k + 2 < 10 else []
        if k >= 6:
            n = 20 - len(fill) - 1; fill = fill + oc[:n]; oc = oc[n:]
        weave(g, ms, fill)
    put(g, oc)
    e("s_nop 7")
    put(g, ocalc(1))
    g.stamp()
    for tt in range(2): e("v_rcp_f32 v%d, v%d" % (26 + tt, 26 + tt))
    e("s_lshl_b32 s%d, s%d, 2" % (sT, sR))
    e("s_add_u32 s%d, s%d, s%d" % (sT, sT, sS))
    e("s_lshl_b32 s%d, s%d, 2" % (sT, sT))
    e("s_add_u32 s%d, s%d, s%d" % (sT, sT, sW))
    e("s_lshl_b32 s%d, s%d, 7" % (sT, sT))
    e("s_add_u32 s%d, s%d, 0x%x" % (sT, sT, WS_RS2))
    e("v_cmp_gt_u32 vcc, 16, v0")
    e("v_lshlrev_b32 v28, 2, v0")
    e("v_mov_b32 v29, 0x%x" % OOB)
    e("v_cndmask_b32 v28, v29, v28, vcc")
    for tt in range(2): e("buffer_store_dword v%d, v28, s[%d:%d], s%d offen offset:%d sc1" % (26 + tt, SWS, SWS + 3, sT, 64 * tt))
    for u in range(5):
        if u % 2 == 0: e("s_add_u32 s%d, s%d, %d" % (sT, sOXB, u * 2048))
        for tt in range(2):
            e("buffer_store_dwordx4 %s, v%d, s[%d:%d], s%d offen offset:%d sc1" % (vr(OB + 20 * tt + 4 * u, 4), VST, SWS, SWS + 3, sT, ((u & 1) * 2 + tt) * 1024))
    e("s_waitcnt vmcnt(0)")
    e("s_barrier")
    signal(g, 28, 20, sCQ, 48)
    g.stamp()
```

```python
import sys, re, json
from asmlib import *
import hazard
BASE = "parallel_sum__linear_kernel_hedgehog__glu_gated_reglu__prompt"
K1 = BASE + "_kernel"
K2 = "reduce_kernel"

PSZ = 2048 * 576 * 2
WS_HX = 0x1000000
WS_OX = 0x2200000
WS_RS2 = 0x2500000
WS_KVP = 0xa00000
WS_KVF = 0x2700000
WS_FLG = 0x2780000
WS_TS = 0x2800000
WS_BYTES = 0x10000000
SX, SW1, SW2, SWS, SDBG, SPHI = 8, 12, 16, 20, 24, 28
sW, sR, sS, sT, sOFF, sM0W, sB1, sB2, sST, sT2 = 32, 33, 34, 35, 36, 37, 38, 39, 40, 41
sCNT = 52
OOB = 0x40000000
RING = 144
NB = 8

class G(Asm):
    def __init__(self, opt):
        super().__init__()
        self.opt = opt
        self.vm = []
        self.lg = []
        self.nts = 0
    def e(self, s, tag=None):
        if s.startswith(("buffer_", "global_")): self.vm.append(tag)
        if s.startswith("ds_"): self.lg.append(tag)
        super().e(s)
    def vm_n(self, tag):
        idx = [i for i, t in enumerate(self.vm) if t == tag]
        assert idx, tag
        return len(self.vm) - 1 - idx[-1]
    def wait_vm(self, tag):
        n = min(self.vm_n(tag), 63)
        self.e("s_waitcnt vmcnt(%d)" % n)
    def wait_lg(self, tag):
        idx = [i for i, t in enumerate(self.lg) if t == tag]
        n = min(len(self.lg) - 1 - idx[-1], 15)
        self.e("s_waitcnt lgkmcnt(%d)" % n)
    def stamp(self):
        e = self.e
        if self.opt.get("amp") is not None:
            if self.nts in (0, self.opt["amp"]):
                e("s_memrealtime s[92:93]"); e("s_waitcnt lgkmcnt(0)")
                e("s_mov_b32 s%d, s92" % (100 if self.nts == 0 else 101))
            self.nts += 1
            return
        if not self.opt.get("ts"): return
        e("s_memtime s[90:91]"); e("s_memrealtime s[92:93]")
        e("s_waitcnt lgkmcnt(0)")
        if self.opt.get("dbgts") is not None:
            sel = self.opt.get("dbgsel", list(range(15)))
            if self.nts in sel:
                e("v_mov_b32 v30, s92")
                e("buffer_store_dword v30, off, s[%d:%d], s94 offset:%d" % (SDBG, SDBG + 3, 4 + 4 * sel.index(self.nts)))
            self.nts += 1
            return
        for k, sg in enumerate((90, 92)):
            e("v_mov_b32 v30, s%d" % sg)
            e("buffer_store_dword v30, off, s[%d:%d], s94 offset:%d" % (SWS, SWS + 3, 8 * self.nts + 4 * k))
        self.nts += 1

def mfma(d, a, b, c=None):
    return "v_mfma_f32_16x16x32_bf16 %s, %s, %s, %s" % (d, a, b, d if c is None else c)

class Stage:
    def __init__(self, lo, hi, pre, dmas, frags, gate=None):
        dmas = [d if isinstance(d, list) else [d] for d in dmas]
        dmas[0] = list(pre) + dmas[0]
        self.lo, self.hi, self.dmas, self.frags, self.gate = lo, hi, dmas, frags, gate
        self.before = None; self.after = None

class Pipe:
    def __init__(self, g, stages, D=6, BE=1):
        self.g, self.st, self.D, self.BE = g, stages, D, BE
        self.next = 0
        self.safe = -1
        self.q = []
        self.open = set()
        self.fi = 0
        self.done = -1
        self.qthr = g.opt.get("qthr", 3)
        self.when = {}
    def can(self, m):
        s = self.st[m]
        if s.gate is not None and s.gate not in self.open: return False
        return all(k <= self.safe for k in range(m) if self.st[k].lo < s.hi and s.lo < self.st[k].hi)
    def refill(self):
        while self.next < len(self.st) and self.can(self.next):
            for d in self.st[self.next].dmas: self.q.append([list(d), ("st", self.next)])
            self.next += 1
    def pop(self):
        if not self.q: return []
        t, tag = self.q.pop(0)
        return [(x, tag) for x in t]
    def flush(self):
        while self.q:
            for t, tag in self.pop(): self.g.e(t, tag)
    def enter(self, n, last, hook=None):
        g = self.g
        late = 0
        while any(tag[1] <= last for _, tag in self.q):
            late += 1
            for t, tg in self.pop(): g.e(t, tg)
        if late and n > 2: print("warning: %d DMA issued late for stage %d" % (late, n))
        assert self.next > last, (n, last)
        for k in range(n, last + 1):
            if self.st[k].before: self.st[k].before()
        if hook and hook.before: hook.before()
        g.wait_vm(("st", last)); g.e("s_barrier")
        if hook and hook.after: hook.after()
        for k in range(n, last + 1):
            if self.st[k].after: self.st[k].after()
        self.safe = max(self.safe, self.done)
        self.refill()
    def run(self, s0, s1, extra=None, pauses=(), groups=None, urgent=None, lagok=True):
        g, D = self.g, self.D
        WP = g.opt.get("wp", 4)
        pend = []; urg = []; urgent = urgent or {}; cur = [0]; dens = [0]
        extra = extra or {}
        fl = [(n, k, f) for n in range(s0, s1) for k, f in enumerate(self.st[n].frags)]
        if groups is None: groups = list(range(s0, s1, self.BE))
        gend = {a: (groups[i + 1] if i + 1 < len(groups) else s1) - 1 for i, a in enumerate(groups)}
        base = self.fi
        needbar = lambda j: j < len(fl) and fl[j][1] == 0 and fl[j][0] in gend
        def reads(j):
            buf = RING + 4 * ((base + j) % NB)
            for t in fl[j][2][0](buf): g.e(t, ("fr", base + j))
        def wl(i):
            w = min(i + WP - 1, len(fl) - 1)
            g.wait_lg(("fr", base + w))
            self.done = max(self.done, fl[w][0] if fl[w][1] == len(self.st[fl[w][0]].frags) - 1 else fl[w][0] - 1)
        def cost(it):
            if isinstance(it, (Mark, Dens)): return 0
            if isinstance(it, Hook): return 99
            if isinstance(it, Delay):
                if it.until is None: it.until = cur[0] + it.n
                return 0 if cur[0] >= it.until else 99
            if callable(it): return getattr(it, "cost", 2)
            if isinstance(it, list): return min(len(it), 2)
            t = it[0] if isinstance(it, tuple) else it
            return 2 if t.startswith(("buffer_", "global_", "v_mfma", "v_exp", "v_rcp")) else 1
        def emit(it, i):
            if isinstance(it, Mark): self.when[it.name] = i
            elif isinstance(it, Dens): dens[0] = it.n
            elif isinstance(it, Delay):
                if i >= len(fl): g.e("s_nop 7")
            elif isinstance(it, Hook):
                if it.before: it.before()
                g.e("s_barrier")
                if it.after: it.after()
            elif callable(it): it()
            elif isinstance(it, list):
                for x in it: g.e(x)
            elif isinstance(it, tuple): g.e(it[0], it[1])
            else: g.e(it)
        for j in range(min(D, len(fl))):
            if needbar(j): self.enter(fl[j][0], gend[fl[j][0]])
            reads(j)
        if needbar(D): self.enter(fl[D][0], gend[fl[D][0]])
        wl(0)
        since = 9
        for i, (n, k, f) in enumerate(fl):
            ms = f[1](RING + 4 * ((base + i) % NB))
            g.e(ms[0])
            if i + D < len(fl): reads(i + D)
            g.e(ms[1])
            pend += [(i, x) for x in extra.get(i, [])]; urg += urgent.get(i, [])
            since += 1; cur[0] = i
            wdue = (i + 1) % WP == 0 and i + 1 < len(fl)
            if needbar(i + 1 + D):
                if wdue: wl(i + 1)
                hook = pend.pop(0)[1] if pend and isinstance(pend[0][1], Hook) else None
                self.enter(fl[i + 1 + D][0], gend[fl[i + 1 + D][0]], hook)
                continue
            paused = any(a <= i < b for a, b in pauses)
            if urg and not wdue:
                slots = 2
                while urg and cost(urg[0]) <= slots:
                    it = urg.pop(0); slots -= cost(it); emit(it, i)
                continue
            used = False
            if self.q and len(self.q[0][0]) > 1:
                if wdue: wl(i + 1)
                while len(self.q[0][0]) > 1: g.e(self.q[0][0].pop(0))
                used = True
            elif self.q and not wdue and not paused and since >= (2 if len(self.q) > self.qthr else self.g.opt.get("dcad", 3)):
                it = self.q.pop(0); g.e(it[0][0], it[1]); since = 0
                used = True
            if used and not dens[0]: continue
            slots = 0 if used else 2
            if wdue and not used: wl(i + 1); slots = 1
            if dens[0]: slots += dens[0]
            elif lagok and pend and i - pend[0][0] > g.opt.get("lag", 30): slots += 1
            while pend and cost(pend[0][1]) <= slots:
                it = pend.pop(0)[1]; slots -= cost(it); emit(it, i)
        for it in urg + [x[1] for x in pend]: emit(it, len(fl))
        self.fi = base + len(fl)
    def drained(self, upto):
        self.safe = max(self.safe, upto); self.refill()

class Mark:
    def __init__(self, name): self.name = name
class Hook:
    def __init__(self, before=None, after=None): self.before, self.after = before, after
class Delay:
    def __init__(self, n): self.n = n; self.until = None
class Dens:
    def __init__(self, n): self.n = n

def group_scc(ops):
    out = []
    for op in ops:
        if isinstance(op, str) and op.startswith("s_cselect"): out[-1] = [out[-1], op]
        else: out.append(op)
    return out

def spread(ops, lo, hi, extra):
    ops = group_scc(ops); n = hi - lo
    for k, op in enumerate(ops):
        extra.setdefault(lo + k * n // len(ops), []).append(op)

def lane_consts(g):
    e = g.e
    e("v_lshrrev_b32 v22, 4, v0")
    e("v_and_b32 v23, 15, v0")

def prologue(g, pipe, XV=112, early=None, afterbar=None, fill=(), var=False, nfirst=8, mid=None):
    e, opt = g.e, g.opt
    xf = opt.get("xflags", "")
    e("v_lshrrev_b32 v104, 3, v0")
    e("v_mul_u32_u24 v104, 1152, v104")
    e("v_and_b32 v105, 7, v0")
    e("v_xor_b32 v105, v105, v22")
    e("v_lshl_add_u32 v104, v105, 4, v104")
    e("v_xor_b32 v105, 64, v104")
    e("s_lshl_b32 s%d, s%d, 2" % (sT, sR))
    e("s_add_u32 s%d, s%d, s%d" % (sT, sT, sW))
    e("s_mul_i32 s%d, s%d, %d" % (sT, sT, 32 * 1152))
    e("s_mul_i32 s%d, s%d, 36864" % (sT2, sW))
    e("s_lshr_b32 s60, s2, 6") if opt.get("xrot", 1) else e("s_mov_b32 s60, 0")
    e("s_and_b32 s3, s60, 1")
    e("s_lshl_b32 s3, s3, 6")
    e("v_xor_b32 v104, s3, v104")
    e("v_xor_b32 v105, s3, v105")
    for o in range(4):
        e("s_add_u32 s3, s60, %d" % o)
        e("s_and_b32 s3, s3, 3")
        e("s_mul_i32 s3, s3, 9216")
        e("s_add_u32 s61, s%d, s3" % sT2)
        e("s_add_u32 s62, s%d, s3" % sT)
        for j in range(9):
            e("s_add_u32 m0, s61, %d" % (j * 1024))
            e("s_add_u32 s%d, s62, %d" % (sOFF, j * 128))
            e("buffer_load_dwordx4 v%d, s[%d:%d], s%d offen %s lds" % (104 + (o & 1), SX, SX + 3, sOFF, opt.get("x0flags", xf) if o == 0 else xf), ("x", j))
            if mid and o * 9 + j == mid[0]: mid[1]()
            if o * 9 + j >= 6:
                for it in fill[(o * 9 + j - 6) * len(fill) // 30:(o * 9 + j - 5) * len(fill) // 30]:
                    for x in (it if isinstance(it, list) else [it]): e(x, "fill")
    if early: early()
    e("v_lshrrev_b32 v106, 3, v23")
    e("v_mul_u32_u24 v106, 9216, v106")
    e("v_and_b32 v107, 7, v23")
    e("v_lshl_add_u32 v106, v107, 7, v106")
    e("v_lshrrev_b32 v107, 1, v23")
    e("v_xor_b32 v107, v107, v22")
    e("v_lshl_add_u32 v106, v107, 4, v106")
    e("v_add_u32 v106, s%d, v106" % sT2)
    e("v_xor_b32 v107, 64, v106")
    for i in range(4): e("v_mov_b32 v%d, 0x3f803f80" % (80 + i))
    for i in (72, 73, 76, 77): e("v_mov_b32 v%d, 0" % i)
    e("v_lshrrev_b32 v108, 2, v23")
    e("v_cmp_eq_u32 vcc, v108, v22")
    e("v_and_b32 v108, 1, v23")
    e("v_lshlrev_b32 v108, 4, v108")
    e("v_mov_b32 v78, 0x3f80")
    e("v_lshlrev_b32 v78, v108, v78")
    e("v_cndmask_b32 v78, 0, v78, vcc")
    e("v_and_b32 v108, 2, v23")
    e("v_cmp_eq_u32 vcc, 0, v108")
    e("s_nop 1")
    e("v_cndmask_b32 v74, 0, v78, vcc")
    e("v_cndmask_b32 v75, v78, 0, vcc") if False else None
    e("v_sub_u32 v75, v78, v74")
    X = lambda tt, ks: XV + (ks * 2 + tt) * 4
    g.stamp()
    for j in range(10):
        if j < 9:
            g.wait_vm(("x", j))
            for ks in (2 * j, 2 * j + 1):
                for tt in range(2):
                    e("ds_read_b128 %s, v%d offset:%d" % (vr(X(tt, ks), 4), 106 + (ks & 1), tt * 18432 + j * 1024), ("xr", j))
        if j > 0:
            g.wait_lg(("xr", j - 1))
            for ks in (2 * j - 2, 2 * j - 1):
                for tt in range(2):
                    e(mfma(vr(64 + 4 * tt, 4), vr(80, 4), vr(X(tt, ks), 4), "0" if ks == 0 else None))
    e("s_barrier")
    g.stamp()
    pipe.open.add("x"); pipe.refill()
    for _ in range(nfirst):
        for t, tag in pipe.pop(): e(t, tag)
    if afterbar: afterbar()
    e("s_nop 3")
    e("s_mov_b32 s%d, 0x%08x" % (sT, 0xbae38e39))
    for i in range(8): e("v_mul_f32 v%d, s%d, v%d" % (64 + i, sT, 64 + i))
    e("s_nop 1")
    fr = [(tt, ks) for ks in range(18) for tt in range(2)]
    LAG = 2
    for k in range(len(fr) + LAG + 1):
        cv = []
        if LAG <= k < len(fr) + LAG:
            tt, ks = fr[k - LAG]; d = 32 + 8 * ((k - LAG) % 4); x = X(tt, ks)
            cv = ["v_cvt_pk_bf16_f32 v%d, v%d, v%d" % (x + i, d + 2 * i, d + 2 * i + 1) for i in range(4)]
        if k < len(fr):
            tt, ks = fr[k]; d = 32 + 8 * (k % 4)
            e(mfma(vr(d, 4), vr(74, 4), vr(X(tt, ks), 4), vr(64 + 4 * tt, 4)))
            if k == LAG: e("s_nop 3")
            for t in cv[:2]: e(t)
            e(mfma(vr(d + 4, 4), vr(72, 4), vr(X(tt, ks), 4), vr(64 + 4 * tt, 4)))
            for t in cv[2:]: e(t)
        else:
            e("s_nop 3")
            for t in cv: e(t)
        if var and k > LAG:
            tt, ks = fr[k - LAG - 1]; x = X(tt, ks)
            e(mfma(vr(96 + 4 * tt, 4), vr(x, 4), vr(x, 4), "0" if ks == 0 else None))
    g.stamp()

def XV0(tt, ks): return vr(112 + (ks * 2 + tt) * 4, 4)
def xc_copies(): return ["v_accvgpr_write_b32 a%d, v%d" % (i, 112 + i) for i in range(144)]
def XC(tt, ks): return ar((ks * 2 + tt) * 4, 4)

def tr_bases(g, dst, rowmul):
    e = g.e
    out = []
    out.append("v_bfe_u32 v28, v0, 2, 2")
    out.append("v_mad_u32_u24 v28, v22, %d, v28" % rowmul)
    out.append("v_lshlrev_b32 v%d, 7, v28" % dst)
    out.append("v_bfe_u32 v28, v0, 3, 2")
    out.append("v_lshl_add_u32 v%d, v28, 5, v%d" % (dst, dst))
    out.append("v_and_b32 v28, 3, v0")
    out.append("v_lshl_add_u32 v%d, v28, 3, v%d" % (dst, dst))
    for t in range(1, 4): out.append("v_xor_b32 v%d, %d, v%d" % (dst + t, 32 * t, dst))
    for grp in (1, 2):
        for t in range(4): out.append("v_add_u32 v%d, 0x%x, v%d" % (dst + 4 * grp + t, grp << 16, dst + t))
    return out

def tr_reads(bases, t, off, second):
    def f(buf):
        o2 = off + second
        assert (off >> 16) == (o2 >> 16)
        b = bases + 4 * (off >> 16) + t
        return ["ds_read_b64_tr_b16 %s, v%d offset:%d" % (ar(buf, 2), b, off & 0xffff),
                "ds_read_b64_tr_b16 %s, v%d offset:%d" % (ar(buf + 2, 2), b, o2 & 0xffff)]
    return f

def store_ops(g, acc, P, c, voff):
    sf = g.opt.get("sflags", "sc1" if g.opt.get("fuse", 1) else "")
    ops = ["s_add_u32 s%d, s%d, %d" % (sT2, sST, c * 4096)]
    for tt in range(2):
        for hf in range(2):
            p = P + (tt * 2 + hf) * 4
            for k in range(2):
                s = acc + ((2 * hf + k) * 2 + tt) * 4
                ops.append("v_cvt_pk_bf16_f32 v%d, v%d, v%d" % (p + 2 * k, s, s + 1))
                ops.append("v_cvt_pk_bf16_f32 v%d, v%d, v%d" % (p + 2 * k + 1, s + 2, s + 3))
            if not g.opt.get("nostore"):
                ops.append("buffer_store_dwordx4 %s, v%d, s[%d:%d], s%d offen offset:%d %s" % (vr(p, 4), voff, SWS, SWS + 3, sT2, (tt * 2 + hf) * 1024, sf))
    return ops

sNON = 97
def flag_load(vreg, vfl, sline):
    if sline is None: return "buffer_load_dword v%d, v%d, s[%d:%d], 0 offen sc1" % (vreg, vfl, SDBG, SDBG + 3)
    return "buffer_load_dword v%d, v%d, s[%d:%d], s%d offen sc1" % (vreg, vfl, SWS, SWS + 3, sline)

def flag_issue(g, vreg, vfl, sline):
    g.e(flag_load(vreg, vfl, sline), "flag")

def flag_check(g, vreg, vfl, sline, mask, issued=True, sleep=4):
    if g.opt.get("nofl") and sline is not None: return
    e = g.e
    L = g.newlabel("L_poll"); Ld = g.newlabel("L_polld"); Lc = g.newlabel("L_pollc")
    e("s_cmp_lg_u32 s%d, 0" % sW)
    e("s_cbranch_scc1 %s" % Ld)
    e("s_mov_b32 s89, 0x20000")
    if issued:
        g.wait_vm("flag")
        e("s_branch %s" % Lc)
    g.label(L)
    Asm.e(g, flag_load(vreg, vfl, sline))
    e("s_waitcnt vmcnt(0)")
    g.label(Lc)
    if sline is None:
        e("v_readfirstlane_b32 s%d, v%d" % (sNON, vreg))
        e("s_sub_u32 s89, s89, 1")
        e("s_cmp_lg_u32 s%d, 0" % sNON)
    else:
        e("v_cmp_eq_u32 s[98:99], s%d, v%d" % (sNON, vreg))
        e("s_sub_u32 s89, s89, 1")
        e("s_and_b32 s98, s98, 0x%x" % mask)
        e("s_cmp_eq_u32 s98, 0x%x" % mask)
    e("s_cbranch_scc1 %s" % Ld)
    e("s_sleep %d" % sleep)
    e("s_cmp_lg_u32 s89, 0")
    e("s_cbranch_scc1 %s" % L)
    g.label(Ld)

def flag_lane_offsets(vfl, vtmp):
    return ["s_lshl_b32 s96, s%d, 6" % sW, "v_add_u32 v%d, s96, v0" % vtmp, "v_cmp_gt_u32 vcc, 16, v%d" % vtmp, "v_lshlrev_b32 v%d, 2, v0" % vfl,
            "v_mov_b32 v%d, 0x%x" % (vtmp, OOB), "v_cndmask_b32 v%d, v%d, v%d, vcc" % (vfl, vtmp, vfl)]

def code_pf(label, add=0):
    return "s_load_dword s88, s[86:87], @%s+%d" % (label, add)

def signal(g, vtmp, voff, sword, imm=0):
    g.e("v_mov_b32 v%d, s%d" % (vtmp, sNON))
    g.e("buffer_store_dword v%d, v%d, s[%d:%d], s%d offen offset:%d sc1" % (vtmp, voff, SWS, SWS + 3, sword, imm))

def ffn_role(g):
    e, opt = g.e, g.opt
    wf = opt.get("wflags", "")
    ACC = [32, 96]; H = 160; B1 = 9; PK = 128; VST = 21
    sI, sJ = 42, 43; sKB = 44; sHX = 47; sOX = 50; sWO = 53; sM0B = 58
    CPF = opt.get("codepf", 0)
    e("s_sub_u32 s%d, s3, 1" % sI)
    e("s_mov_b32 s%d, s%d" % (sJ, sS))
    e("s_mul_i32 s%d, s%d, 3" % (sS, sJ))
    e("s_add_u32 s%d, s%d, s%d" % (sS, sS, sI))
    e("s_cmp_ge_u32 s%d, 2" % sW)
    e("s_cselect_b32 s%d, s74, s72" % sT)
    e("s_cselect_b32 s%d, s75, s73" % sT2)
    srd(g, SW1, sT, sT2, 576 * 4608 * 2)
    e("s_lshl_b32 s%d, s%d, 12" % (sM0W, sW))
    e("s_mul_i32 s%d, s%d, %d" % (sB1, sS, 0 if opt.get("samew") else 768))
    def late_setup():
        o = []; sT = 95
        a = Asm(); srd(a, SW2, 76, 77, 4608 * 576 * 2); srd(a, SPHI, 70, 71, 576 * 576 * 2)
        o += [l.strip() for l in a.lines]
        for b in range(3):
            o += ["s_add_u32 s%d, s%d, %d" % (sT, sI, b), "s_cmp_ge_u32 s%d, 3" % sT, "s_cselect_b32 s96, 3, 0", "s_sub_u32 s%d, s%d, s96" % (sT, sT),
                  "s_mul_i32 s96, s%d, 3" % sJ, "s_add_u32 s%d, s%d, s96" % (sT, sT),
                  "s_mul_i32 s%d, s%d, %d" % (sKB + b, sT, 384 * 1152), "s_mul_i32 s96, s%d, 384" % sI, "s_add_u32 s%d, s%d, s96" % (sKB + b, sKB + b),
                  "s_mul_i32 s96, s%d, 12" % sR, "s_add_u32 s%d, s%d, s96" % (sT, sT), "s_lshl_b32 s%d, s%d, 2" % (sT, sT), "s_add_u32 s%d, s%d, s%d" % (sT, sT, sW),
                  "s_mul_i32 s%d, s%d, 24576" % (sHX + b, sT), "s_add_u32 s%d, s%d, 0x%x" % (sHX + b, sHX + b, WS_HX)]
        o += ["s_lshl_b32 s%d, s%d, 2" % (sT, sR), "s_add_u32 s%d, s%d, s%d" % (sT, sT, sJ), "s_lshl_b32 s%d, s%d, 7" % (sCNT, sT), "s_add_u32 s%d, s%d, 0x%x" % (sCNT, sCNT, WS_FLG),
              "s_lshl_b32 s63, s%d, 2" % sI, "s_add_u32 s63, s63, s%d" % sCNT,
              "s_lshl_b32 s%d, s%d, 2" % (sT, sT), "s_add_u32 s%d, s%d, s%d" % (sT, sT, sW), "s_mul_i32 s%d, s%d, 10240" % (sOX, sT), "s_add_u32 s%d, s%d, 0x%x" % (sOX, sOX, WS_OX)]
        o += ["s_mul_i32 s%d, s%d, %d" % (sST, sJ, PSZ), "s_lshl_b32 s%d, s%d, 2" % (sT, sR), "s_add_u32 s%d, s%d, s%d" % (sT, sT, sW),
              "s_mul_i32 s%d, s%d, 36864" % (sT, sT), "s_add_u32 s%d, s%d, s%d" % (sST, sST, sT),
              "s_mul_i32 s%d, s%d, 12288" % (sT, sI), "s_add_u32 s%d, s%d, s%d" % (sST, sST, sT)]
        o += ["s_mul_i32 s%d, s%d, %d" % (sB2, sJ, 144 * 1152), "s_mul_i32 s96, s%d, 384" % sI, "s_add_u32 s%d, s%d, s96" % (sB2, sB2),
              "s_lshl_b32 s%d, s%d, 10" % (sM0B, sW)]
        for i in range(5):
            d = sWO + i
            o += (["s_lshl_b32 s%d, s%d, 2" % (sT, sW), "s_add_u32 s%d, s%d, %d" % (sT, sT, i)] if i < 4 else ["s_add_u32 s%d, s%d, 16" % (sT, sW)])
            o += ["s_lshr_b32 s96, s%d, 1" % sT, "s_lshl_b32 s%d, s96, 2" % d, "s_cmp_ge_u32 s96, 5", "s_cselect_b32 s96, 52, 0",
                  "s_add_u32 s%d, s%d, s96" % (d, d), "s_and_b32 s%d, s%d, 1" % (sT, sT), "s_mul_i32 s%d, s%d, 36" % (sT, sT),
                  "s_add_u32 s%d, s%d, s%d" % (d, d, sT), "s_mul_i32 s%d, s%d, 1152" % (d, d), "s_add_u32 s%d, s%d, s%d" % (d, d, sB2)]
        return o
    stages = []
    def slot(n): return ((n + 9) % 10) * 16384
    for rho in range(6):
        acc = ACC[rho & 1]
        for st in range(9):
            n = len(stages); lo = slot(n)
            pre = ["s_add_u32 m0, s%d, %d" % (sM0W, lo), "s_add_u32 s%d, s%d, %d" % (sOFF, sB1, st * 64 * 9216 + (0 if opt.get('samew') else rho * 128))]
            dmas = ["buffer_load_dwordx4 v%d, s[%d:%d], s%d offen offset:%d %s lds" % (1 + i, SW1, SW1 + 3, sOFF, i * 1024, "nt" if n < opt.get("ntfirst", 0) else wf) for i in range(4)]
            frags = []
            for kk in range(2):
                ks = 2 * st + kk
                for t in range(4):
                    for mat in range(2):
                        def mf(buf, ks=ks, t=t, mat=mat, acc=acc, XC=(XC if rho else XV0)):
                            order = (0, 1) if mat == 0 else (1, 0)
                            return [mfma(vr(acc + ((t * 2 + mat) * 2 + tt) * 4, 4), ar(buf, 4), XC(tt, ks), "0" if ks == 0 else None) for tt in order]
                        frags.append((tr_reads(B1, t, lo + mat * 8192 + kk * 4096, 512), mf))
            stages.append(Stage(lo, lo + 16384, pre, dmas, frags, None if n == 0 else "x"))
    def hreg(b, u, tt):
        k = (u * 2 + tt) * 4
        if b == 0: return vr(H + k, 4)
        if b == 1: return ar(k, 4)
        if b == 2: return ar(176 + k, 4) if u < 8 else ar(96 + k - 64, 4)
        if u < 2: return ar(128 + k, 4)
        if u < 4: return ar(240 + k - 16, 4)
        return vr(144 + k - 32, 4)
    def g2stage(b, us, cg, first):
        n = len(stages); lo = slot(n); acc = 32 + 32 * cg
        if b < 3:
            pre = ["s_add_u32 m0, s%d, %d" % (sM0W, lo), "s_add_u32 s%d, s%d, %d" % (sOFF, sKB + b, (us[0] // 4) * 128 * 1152 + cg * 128)]
            dmas = ["buffer_load_dwordx4 v%d, s[%d:%d], s%d offen offset:%d %s lds" % (5 + i, SW2, SW2 + 3, sOFF, i * 1024, wf) for i in range(4)]
        else:
            pre = []
            sel = [(sM0W, lo + i * 1024, sWO + i) for i in range(4)] if len(us) == 4 else [(sM0B, lo, sWO + 4)]
            dmas = [["s_add_u32 m0, s%d, %d" % (m, o), "s_add_u32 s%d, s%d, %d" % (sOFF, so, cg * 128),
                     "buffer_load_dwordx4 v25, s[%d:%d], s%d offen %s lds" % (SPHI, SPHI + 3, sOFF, wf)] for m, o, so in sel]
        frags = []
        for kk, u in enumerate(us):
            for t in range(4):
                def mf(buf, u=u, t=t, z=(first and kk == 0)):
                    order = (0, 1) if t % 2 == 0 else (1, 0)
                    return [mfma(vr(acc + (t * 2 + tt) * 4, 4), ar(buf, 4), hreg(b, u, tt), "0" if z else None) for tt in order]
                frags.append((tr_reads(B1, t, lo + kk * 4096, 2048), mf))
        stages.append(Stage(lo, lo + 16384, pre, dmas, frags, "x"))
    Q = lambda q: list(range(4 * q, 4 * q + 4))
    for q, cg in ((0, 0), (0, 1), (1, 0), (1, 1), (0, 2), (1, 2)): g2stage(0, Q(q), cg, q == 0)
    G2C2 = 64
    for b, q in ((0, 2), (1, 0), (1, 1), (2, 0), (2, 1), (1, 2), (2, 2)):
        for cg in range(3): g2stage(b, Q(q), cg, False)
    for cg in range(3):
        for b, us in ((3, Q(0)), (3, [4])): g2stage(b, us, cg, False)
    pipe = Pipe(g, stages, opt.get("D", 7), opt.get("BE", 2))
    TOUCH = opt.get("touch", 1); tf = opt.get("tflags", "")
    def touch1(rho):
        return ["buffer_load_dword v31, v29, s[%d:%d], s%d offen offset:%d %s" % (SW1, SW1 + 3, sB1, rho * 128, opt.get("t0flags", tf) if rho == 0 else tf)]
    def touch2(b):
        if b < 3: return ["buffer_load_dword v31, v26, s[%d:%d], s%d offen %s" % (SW2, SW2 + 3, sKB + b, tf)]
        return ["buffer_load_dword v31, v26, s[%d:%d], s59 offen %s" % (SPHI, SPHI + 3, tf)]
    def touchh(k):
        return ["s_add_u32 s3, s%d, %d" % (sHX, k * 8192), "buffer_load_dword v31, v22, s[%d:%d], s3 offen" % (SWS, SWS + 3)]
    def early():
        e("v_lshrrev_b32 v28, 3, v0")
        e("s_and_b32 s%d, s%d, 1" % (sOFF, sW))
        e("s_lshl_b32 s%d, s%d, 5" % (sOFF, sOFF))
        e("v_add_u32 v1, s%d, v28" % sOFF)
        e("v_mul_u32_u24 v1, 9216, v1")
        e("v_and_b32 v2, 2, v28")
        e("v_and_b32 v3, 7, v0")
        e("v_xor_b32 v2, v2, v3")
        e("v_lshl_add_u32 v1, v2, 4, v1")
        e("v_xor_b32 v2, 64, v1")
        e("v_add_u32 v2, %d, v2" % (8 * 9216 - 1024))
        e("v_add_u32 v3, %d, v1" % (2 * (8 * 9216 - 1024)))
        e("v_add_u32 v4, %d, v2" % (2 * (8 * 9216 - 1024)))
        pipe.refill(); pipe.flush()
    def tsetup():
        e("s_and_b32 s98, s%d, 1" % sW)
        e("s_mul_i32 s98, s98, 36")
        e("s_and_b32 s%d, s%d, 7" % (99, sR))
        e("s_mul_i32 s%d, s%d, 72" % (99, 99))
        e("s_add_u32 s98, s98, s%d" % 99)
        e("v_add_u32 v29, s98, v0")
        e("v_mul_u32_u24 v29, 9216, v29")
        e("v_cmp_gt_u32 vcc, 36, v0")
        e("v_mov_b32 v31, 0x%x" % OOB)
        e("s_nop 0")
        e("v_cndmask_b32 v29, v31, v29, vcc")
    T0 = opt.get("t0pos", -1)
    if TOUCH: tsetup()
    vset = ["v_lshrrev_b32 v28, 3, v0", "s_lshl_b32 s96, s%d, 5" % sW, "v_add_u32 v5, s96, v28", "v_mul_u32_u24 v5, 1152, v5",
            "v_lshlrev_b32 v6, 1, v22", "v_and_b32 v7, 7, v0", "v_xor_b32 v6, v6, v7", "v_lshl_add_u32 v5, v6, 4, v5",
            "v_lshrrev_b32 v28, 5, v0", "v_bfe_u32 v7, v0, 3, 2", "v_lshl_add_u32 v28, v28, 4, v7", "v_mul_u32_u24 v25, 1152, v28", "v_lshl_add_u32 v25, v6, 4, v25"]
    vset += ["v_add_u32 v%d, %d, v5" % (5 + i, i * (8 * 1152 - 1024)) for i in range(1, 4)]
    vset += ["v_lshlrev_b32 v%d, 4, v0" % VST, "v_lshlrev_b32 v27, 9, v22", "v_add_u32 v28, s%d, v0" % sW, "v_cmp_eq_u32 vcc, 0, v28",
             "v_mov_b32 v24, 0x%x" % OOB, "v_mov_b32 v28, 0", "v_cndmask_b32 v24, v24, v28, vcc"]
    vset += ["v_mul_u32_u24 v28, 5462, v0", "v_lshrrev_b32 v28, 16, v28", "v_mul_u32_u24 v26, 12, v28", "v_sub_u32 v26, v0, v26",
             "s_mul_i32 s96, s%d, 12" % sW, "s_and_b32 s%d, s%d, 7" % (95, sR), "s_mul_i32 s%d, s%d, 48" % (95, 95), "s_add_u32 s96, s96, s95",
             "v_add_u32 v26, s96, v26", "v_mul_u32_u24 v26, 1152, v26", "v_lshl_add_u32 v26, v28, 7, v26",
             "v_cmp_gt_u32 vcc, 36, v0", "v_mov_b32 v28, 0x%x" % OOB, "s_nop 0", "v_cndmask_b32 v26, v28, v26, vcc",
             "s_cmp_ge_u32 s96, 144", "s_cselect_b32 s59, 0x%x, s%d" % (OOB, sB2)]
    prologue(g, pipe, early=early, afterbar=(lambda: [e(t) for t in (touch1(0) if T0 == -1 else []) + (touch1(1) if not opt.get('t1pos') else [])]) if TOUCH else None, mid=(T0, lambda: e(touch1(0)[0])) if TOUCH else None, nfirst=opt.get('nfirst', 8), fill=group_scc(late_setup() + vset + tr_bases(g, B1, 8)))
    hf = opt.get("hflags", "sc1")
    def epi1(rho):
        acc = ACC[rho & 1]; ops = []; sts = []
        for t in range(4):
            for tt in range(2):
                gt = acc + ((t * 2) * 2 + tt) * 4; up = acc + ((t * 2 + 1) * 2 + tt) * 4
                u = 2 * rho + t // 2
                h = H + (u * 2 + tt) * 4 + (t & 1) * 2
                for k in range(2):
                    for i in (2 * k, 2 * k + 1): ops.append("v_max_f32 v%d, 0, v%d" % (gt + i, gt + i))
                    for i in (2 * k, 2 * k + 1): ops.append("v_mul_f32 v%d, v%d, v%d" % (gt + i, gt + i, up + i))
                    ops.append("v_cvt_pk_bf16_f32 v%d, v%d, v%d" % (h + k, gt + 2 * k, gt + 2 * k + 1))
                if t & 1 and not (opt.get("nohst") and (t, tt) != (1, 0)):
                    if t == 1 and tt == 0: sts.append("s_add_u32 s%d, s%d, %d" % (sT2, sHX, rho * 4096))
                    sts.append(("buffer_store_dwordx4 %s, v%d, s[%d:%d], s%d offen offset:%d %s" % (hreg(0, u, tt), VST, SWS, SWS + 3, sT2, ((u & 1) * 2 + tt) * 1024, hf), ("hst", rho)))
        return ops + sts
    def hloads(b, us, tag):
        ops = []
        base = sOX if b == 3 else sHX + b
        if opt.get("noh"): us = list(us)[:1]
        for u in us:
            if u % 2 == 0: ops.append("s_add_u32 s%d, s%d, %d" % (sT, base, u * 2048))
            for tt in range(2):
                ops.append(("buffer_load_dwordx4 %s, v%d, s[%d:%d], s%d offen offset:%d %s" % (hreg(b, u, tt), VST, SWS, SWS + 3, sT, ((u & 1) * 2 + tt) * 1024, opt.get("hlflags", "sc1")), tag))
        return ops
    extra = {}
    urgent = {}
    add = lambda k, l: extra.setdefault(k, []).extend(l)
    addu = lambda k, l: urgent.setdefault(k, []).extend(l)
    EP = opt.get("epiw", 75)
    for rho in range(5):
        spread(epi1(rho) + [Mark("epi%d" % rho)], 144 * (rho + 1) + 3, 144 * (rho + 1) + EP, extra)
    P2 = 864; S2 = 54
    n01 = 40
    add(P2 + 3, epi1(5)[:n01] + [Mark("epi5a")] + epi1(5)[n01:] + [Mark("epi5")])
    pauses = []
    PA, PB = opt.get("pause", [0, 40])
    def event(k, ops):
        addu(k, ops); pauses.append((k + PA, k + PB))
    if TOUCH:
        T = [touch1(2), touch1(3), touch1(4), touch1(5), touch2(0), touch2(1), touch2(2), touch2(3)]
        tp = opt.get("tpos", [70, 148, 292, 436, 510, 580, 724, 724])
        if len(tp) == 4: tp = [x for x in tp for _ in range(2)]
        for k, ops in zip(tp, T): event(k, ops)
        if opt.get("t1pos"): event(opt["t1pos"], touch1(1))
    add(1, xc_copies() + [Mark("xc")])
    add(144 + 90, flag_lane_offsets(23, 28) + [Mark("flo")])
    addu(288 + 100, [lambda: flag_issue(g, 28, 23, None)])
    stages[26].before = lambda: flag_check(g, 28, 23, None, 0)
    stages[46].before = lambda: g.wait_vm(("hst", 3))
    stages[46].after = lambda: signal(g, 28, 24, 63, 0)
    addu(720 + 76, [lambda: flag_issue(g, 28, 23, sCNT)])
    stages[52].before = lambda: flag_check(g, 28, 23, sCNT, 0x7)
    HB = opt.get("hburst", 30)
    def hevent(k, ops):
        addu(k, ops); pauses.append((k, k + HB))
    if HB:
        hevent(720 + 106, hloads(1, Q(0), "h10")); hevent(P2 + opt.get("h11pos", 30), hloads(1, Q(1), "h11"))
        spread(hloads(2, Q(0), "h20") + hloads(2, Q(1), "h21"), P2 + 120, P2 + 200, urgent)
    else:
        spread(hloads(1, Q(0), "h10") + hloads(1, Q(1), "h11"), 720 + 107, P2, urgent)
        spread(hloads(2, Q(0), "h20") + hloads(2, Q(1), "h21"), P2 + 80, P2 + 150, urgent)
    def to_g2():
        for k in range(12): e("v_sub_u32 v%d, v%d, v27" % (B1 + k, B1 + k))
    stages[S2].after = to_g2
    stages[S2 + 8].before = lambda: g.wait_vm("h10")
    stages[S2 + 10].before = lambda: g.wait_vm(("hst", 5))
    stages[S2 + 10].after = lambda: signal(g, 28, 24, 63, 16)
    stages[S2 + 12].before = lambda: g.wait_vm("h11")
    addu(P2 + 16 * 14, [lambda: flag_issue(g, 28, 23, sCNT)])
    stages[S2 + 14].before = lambda: g.wait_vm("h20")
    stages[S2 + 16].before = lambda: flag_check(g, 28, 23, sCNT, 0x70)
    if HB:
        hevent(P2 + 16 * 16 - 6, hloads(1, Q(2), "h12")); spread(hloads(2, Q(2), "h22"), P2 + 16 * 20, P2 + 16 * 22 - 2, urgent)
    else:
        spread(hloads(1, Q(2), "h12") + hloads(2, Q(2), "h22"), P2 + 16 * 16 - 5, P2 + 16 * 19, urgent)
    stages[S2 + 18].before = lambda: g.wait_vm("h21")
    stages[S2 + 20].before = lambda: g.wait_vm("h12")
    addu(P2 + 16 * 22, [lambda: flag_issue(g, 28, 23, sCNT)])
    stages[S2 + 24].before = lambda: (g.wait_vm("h22"), flag_check(g, 28, 23, sCNT, 0x100))
    addu(P2 + 16 * 24 - 5, hloads(3, range(5), "oL"))
    stages[S2 + 27].before = lambda: g.wait_vm("oL")
    C0 = P2 + 16 * 27
    FUSE = opt.get("fuse", 1)
    sFL, sFW, sPL, sCOL, sRS = 64, 65, 66, 67, 68
    if FUSE:
        a2 = Asm(); srd(a2, SW1, 78, 79, PSZ)
        fin = [l.strip() for l in a2.lines]
        fin += ["s_mul_i32 s95, s%d, 3" % sR, "s_add_u32 s95, s95, s%d" % sI, "s_lshl_b32 s%d, s95, 7" % sFL, "s_add_u32 s%d, s%d, 0x%x" % (sFL, sFL, WS_FLG + 72 * 128),
                "s_lshl_b32 s%d, s%d, 2" % (sFW, sJ), "s_add_u32 s%d, s%d, s%d" % (sFW, sFW, sFL),
                "s_mul_i32 s95, s%d, %d" % (sJ, PSZ - 1024), "s_sub_u32 s%d, s%d, s95" % (sPL, sST),
                "s_mul_i32 s%d, s%d, 384" % (sCOL, sI), "s_and_b32 s95, s%d, 1" % sJ, "s_lshl_b32 s95, s95, 6", "s_add_u32 s%d, s%d, s95" % (sCOL, sCOL),
                "s_lshr_b32 s95, s%d, 1" % sJ, "s_lshl_b32 s95, s95, 4", "s_lshl_b32 s96, s%d, 5" % sW, "s_add_u32 s95, s95, s96",
                "v_and_b32 v173, 15, v0", "v_add_u32 v173, s95, v173", "v_lshlrev_b32 v174, 2, v173",
                "s_lshl_b32 s96, s%d, 7" % sR, "v_add_u32 v173, s96, v173", "v_mul_u32_u24 v173, 1152, v173",
                "v_bfe_u32 v175, v0, 4, 1", "v_lshl_add_u32 v173, v175, 5, v173", "v_lshrrev_b32 v175, 5, v0", "v_lshl_add_u32 v173, v175, 4, v173",
                "s_lshl_b32 s96, s%d, 2" % sR, "s_add_u32 s96, s96, s%d" % sJ, "s_lshl_b32 s%d, s96, 9" % sRS, "s_add_u32 s%d, s%d, 0x%x" % (sRS, sRS, WS_RS2),
                "s_mov_b32 s70, 0x3f80", "s_mov_b32 s71, 0x3f800000"]
        fin += ["v_mov_b32 v%d, 0" % (224 + i) for i in range(24)]
        addu(P2 + 16 * 27 + 2, [("buffer_load_dwordx4 %s, v173, s[%d:%d], s%d offen offset:%d" % (vr(160 + 4 * cg, 4), SX, SX + 3, sCOL, cg * 128), "fx") for cg in range(3)])
        if opt.get("fpre", 1): fin.append(flag_load(31, 23, sFL))
        add(P2 + 16 * 11, fin + [Mark("fin")])
        addu(P2 + 16 * 24 - 5, [("buffer_load_dword v172, v174, s[%d:%d], s%d offen sc1" % (SWS, SWS + 3, sRS), "rs")])
    for cg in range(2): add(C0 + 20 * (cg + 1) + 3, store_ops(g, 32 + 32 * cg, PK + 0, cg, VST))
    if opt.get("ts") or opt.get("amp") is not None:
        for k in (144, 288, 432, 576, 720, P2, P2 + 144, P2 + 288, C0): addu(k, [g.stamp])
    groups = sorted(set(list(range(0, S2 + 25, 2)) + list(range(0, opt.get('be1', 0))))) + [S2 + 27, S2 + 29, S2 + 31]
    pipe.run(0, len(stages), extra, pauses=pauses, groups=groups, urgent=urgent)
    w = pipe.when
    if opt.get("verbose"): print(w)
    assert w["xc"] < 142 and w["flo"] < 288 + 100 and all(w["epi%d" % r] < 144 * (r + 2) - 1 for r in range(5)), w
    assert w["epi5a"] < P2 + G2C2 - 1 and w["epi5"] < P2 + 96 - 1, w
    g.stamp()
    e("s_nop 7")
    for t in store_ops(g, 96, PK, 2, VST): e(t)
    if FUSE:
        assert w["fin"] < P2 + 16 * 23
        e("s_waitcnt vmcnt(0)"); e("s_barrier")
        signal(g, 28, 24, sFW, 0)
        g.stamp()
        flag_check(g, 28, 23, sFL, 0xf, issued=False, sleep=1)
        e("s_barrier")
        g.stamp()
        for p in range(4):
            for cg in range(3):
                if cg: e("s_add_u32 s95, s%d, %d" % (sPL, p * PSZ + cg * 4096))
                elif p: e("s_add_u32 s95, s%d, %d" % (sPL, p * PSZ))
                e("buffer_load_dwordx4 %s, v%d, s[%d:%d], s%d offen sc1" % (vr(176 + 4 * (p * 3 + cg), 4), VST, SWS, SWS + 3, 95 if p or cg else sPL), ("pl", p))
        for p in range(4):
            g.wait_vm(("pl", p))
            for cg in range(3):
                for i in range(4):
                    e("v_dot2c_f32_bf16 v%d, s70, v%d" % (224 + 8 * cg + 2 * i, 176 + 4 * (p * 3 + cg) + i))
                    e("v_dot2c_f32_bf16 v%d, s71, v%d" % (225 + 8 * cg + 2 * i, 176 + 4 * (p * 3 + cg) + i))
        e("s_nop 2")
        for cg in range(3):
            A = 224 + 8 * cg
            for i in range(4): e("v_permlane16_swap_b32 v%d, v%d" % (A + i, A + 4 + i))
            for i in range(4):
                e("v_lshlrev_b32 v176, 16, v%d" % (160 + 4 * cg + i))
                e("v_and_b32 v177, 0xffff0000, v%d" % (160 + 4 * cg + i))
                e("v_fma_f32 v176, v%d, v172, v176" % (A + 2 * i))
                e("v_fma_f32 v177, v%d, v172, v177" % (A + 2 * i + 1))
                e("v_cvt_pk_bf16_f32 v%d, v176, v177" % (180 + 4 * cg + i))
            e("buffer_store_dwordx4 %s, v173, s[%d:%d], s%d offen offset:%d %s" % (vr(180 + 4 * cg, 4), SW1, SW1 + 3, sCOL, cg * 128, opt.get("oflags", "nt")))
    if opt.get("ts") or opt.get("amp") is not None:
        e("s_waitcnt vmcnt(0)"); g.stamp()

def k1(g):
    e, opt = g.e, g.opt
    kernel_head(g, K1)
    e("s_getpc_b64 s[84:85]")
    e("s_cmp_ge_u32 s2, 256")
    e("s_cbranch_scc1 L_k1_end")
    e("s_load_dwordx8 s[64:71], s[0:1], 0")
    e("s_load_dwordx4 s[72:75], s[0:1], 40")
    e("s_load_dwordx4 s[76:79], s[0:1], 56")
    e("s_load_dwordx4 s[80:83], s[0:1], 72")
    if opt.get("vpf", 1):
        e("s_lshr_b32 s3, s2, 3")
        e("s_lshl_b32 s3, s3, 12")
        e("v_lshrrev_b32 v2, 3, v0")
        e("v_lshlrev_b32 v2, 7, v2")
        e("v_add_u32 v2, s3, v2")
        e("v_min_u32 v2, L_k1_end-%s, v2" % K1)
        e("global_load_dword v255, v2, s[84:85]")
    e("v_lshrrev_b32 v1, 6, v0")
    e("v_and_b32 v0, 63, v0")
    e("v_readfirstlane_b32 s%d, v1" % sW)
    lane_consts(g)
    e("s_and_b32 s%d, s2, 1" % sR)
    e("s_lshl_b32 s%d, s%d, 3" % (sR, sR))
    e("s_bfe_u32 s%d, s2, 0x30003" % sT)
    e("s_or_b32 s%d, s%d, s%d" % (sR, sR, sT))
    e("s_bfe_u32 s%d, s2, 0x20001" % sS)
    e("s_lshr_b32 s3, s2, 6")
    if opt.get("ts"):
        e("s_lshl_b32 s94, s2, 2"); e("s_add_u32 s94, s94, s%d" % sW); e("s_lshl_b32 s94, s94, 8"); e("s_add_u32 s94, s94, 0x%x" % WS_TS)
        if opt.get("dbgts") is not None:
            e("s_lshl_b32 s94, s2, 2"); e("s_add_u32 s94, s94, s%d" % sW); e("s_cmp_eq_u32 s94, %d" % (4 * opt["dbgts"])); e("s_cselect_b32 s94, 0, 0x10000")
    e("s_lshr_b32 s86, s2, 3")
    e("s_cmp_ge_u32 s86, 8")
    e("s_cselect_b32 s87, 8, 0")
    e("s_sub_u32 s86, s86, s87")
    e("s_lshl_b32 s86, s86, 2")
    e("s_add_u32 s86, s86, s%d" % sW)
    e("s_lshl_b32 s86, s86, 6")
    e("s_add_u32 s86, s84, s86")
    e("s_addc_u32 s87, s85, 0")
    e("s_waitcnt lgkmcnt(0)")
    srd(g, SX, 64, 65, PSZ)
    wb = opt.get("wsbase", 0)
    if wb:
        e("s_add_u32 s82, s82, 0x%x" % wb); e("s_addc_u32 s83, s83, 0")
    srd(g, SWS, 82, 83, WS_BYTES - wb)
    srd(g, SDBG, 80, 81, 256)
    e("s_or_b32 s%d, s2, s%d" % (sT, sW))
    e("s_cbranch_scc1 L_nonce_done")
    e("s_memrealtime s[98:99]")
    e("s_waitcnt lgkmcnt(0)")
    e("v_mov_b32 v2, s98")
    e("v_or_b32 v2, 1, v2")
    Asm.e(g, "buffer_store_dword v2, off, s[%d:%d], 0 sc1" % (SDBG, SDBG + 3))
    g.label("L_nonce_done")
    g.stamp()
    if opt.get("tlb"):
        e("s_lshr_b32 s86, s2, 3"); e("s_lshl_b32 s86, s86, 2"); e("s_add_u32 s86, s86, s%d" % sW)
        e("s_mul_i32 s87, s86, 41472")
        e("s_load_dword s88, s[72:73], s87"); e("s_load_dword s88, s[74:75], s87")
        if opt["tlb"] > 1:
            e("s_load_dword s88, s[76:77], s87")
            e("s_mul_i32 s87, s86, 15552"); e("s_load_dword s88, s[66:67], s87")
            e("s_mul_i32 s87, s86, 0x50000"); e("s_load_dword s88, s[82:83], s87")
    e("s_cmp_eq_u32 s3, 0")
    e("s_cbranch_scc1 %s" % ("L_k1_end" if opt.get("noatt") else "L_att"))
    sv = (list(g.vm), list(g.lg), g.nts)
    ffn_role(g)
    def amp(role):
        if opt.get("amp") is None or opt.get("amprole", "ffn") != role: return
        L = g.newlabel("L_amp")
        e("s_sub_u32 s101, s101, s100")
        e("s_add_u32 s101, s101, %d" % opt.get("ampadd", 0))
        if role == "ffn":
            e("s_memrealtime s[92:93]"); e("s_waitcnt lgkmcnt(0)"); e("s_mov_b32 s100, s92")
        g.label(L)
        e("s_sleep 1"); e("s_memrealtime s[92:93]"); e("s_waitcnt lgkmcnt(0)")
        e("s_sub_u32 s92, s92, s100"); e("s_cmp_lt_u32 s92, s101"); e("s_cbranch_scc1 %s" % L)
    amp("ffn")
    e("s_endpgm")
    g.vm, g.lg, g.nts = sv
    g.raw(".p2align 6")
    g.label("L_att")
    import att
    att.att_role(g)
    amp("att")
    g.label("L_k1_end")
    e("s_endpgm")

def k2(g):
    e, opt = g.e, g.opt
    g.vm = []; g.lg = []
    kernel_head(g, K2)
    lf = opt.get("k2flags", "")
    e("s_cmp_ge_u32 s2, 256")
    e("s_cbranch_scc1 L_k2_end")
    if opt.get("ts"): e("s_memrealtime s[32:33]")
    e("s_load_dwordx2 s[4:5], s[0:1], 0")
    e("s_load_dwordx2 s[6:7], s[0:1], 64")
    e("s_load_dwordx2 s[24:25], s[0:1], 80")
    e("v_lshrrev_b32 v1, 6, v0")
    e("v_and_b32 v0, 63, v0")
    e("v_readfirstlane_b32 s3, v1")
    e("s_mul_i32 s26, s2, 9")
    e("s_add_u32 s26, s26, s3")
    e("s_lshl_b32 s27, s26, 10")
    e("v_lshlrev_b32 v1, 4, v0")
    e("s_waitcnt lgkmcnt(0)")
    wb = opt.get("wsbase", 0)
    if wb:
        e("s_add_u32 s24, s24, 0x%x" % wb); e("s_addc_u32 s25, s25, 0")
    srd(g, 16, 24, 25, WS_BYTES - wb)
    for p in range(4):
        e("buffer_load_dwordx4 %s, v1, s[16:19], s27 offen %s" % (vr(16 + 4 * p, 4), lf), ("p", p))
        if p < 3: e("s_add_u32 s27, s27, %d" % PSZ)
    srd(g, 8, 4, 5, PSZ)
    srd(g, 12, 6, 7, PSZ)
    e("s_lshr_b32 s28, s26, 2")
    e("s_mul_i32 s29, s28, 7282")
    e("s_lshr_b32 s29, s29, 16")
    e("s_mul_i32 s30, s29, 9")
    e("s_sub_u32 s30, s28, s30")
    e("s_lshl_b32 s29, s29, 5")
    e("s_bfe_u32 s31, s26, 0x10001")
    e("s_lshl_b32 s31, s31, 4")
    e("s_add_u32 s29, s29, s31")
    e("s_lshl_b32 s30, s30, 7")
    e("s_and_b32 s31, s26, 1")
    e("s_lshl_b32 s31, s31, 6")
    e("s_add_u32 s30, s30, s31")
    e("v_and_b32 v2, 15, v0")
    e("v_add_u32 v2, s29, v2")
    e("v_and_b32 v3, 127, v2")
    e("v_lshlrev_b32 v3, 2, v3")
    e("s_lshr_b32 s31, s29, 7")
    e("s_lshl_b32 s31, s31, 11")
    e("s_add_u32 s31, s31, 0x%x" % WS_RS2)
    e("buffer_load_dword v5, v3, s[16:19], s31 offen", "rs")
    e("v_mul_u32_u24 v2, 1152, v2")
    e("v_bfe_u32 v3, v0, 4, 1")
    e("v_lshl_add_u32 v2, v3, 5, v2")
    e("v_lshrrev_b32 v3, 5, v0")
    e("v_lshl_add_u32 v2, v3, 4, v2")
    e("buffer_load_dwordx4 v[12:15], v2, s[8:11], s30 offen", "x")
    e("s_mov_b32 s20, 0x3f80")
    e("s_mov_b32 s21, 0x3f800000")
    for i in range(8): e("v_mov_b32 v%d, 0" % (80 + i))
    for p in range(4):
        g.wait_vm(("p", p))
        acc = 80
        for i in range(4):
            e("v_dot2c_f32_bf16 v%d, s20, v%d" % (acc + 2 * i, 16 + 4 * p + i))
            e("v_dot2c_f32_bf16 v%d, s21, v%d" % (acc + 2 * i + 1, 16 + 4 * p + i))
    e("s_waitcnt vmcnt(0)")
    e("s_nop 2")
    for i in range(8): e("v_mul_f32 v%d, v%d, v5" % (80 + i, 80 + i))
    e("s_nop 1")
    for i in range(4): e("v_permlane16_swap_b32 v%d, v%d" % (80 + i, 84 + i))
    for i in range(4):
        e("v_lshlrev_b32 v6, 16, v%d" % (12 + i))
        e("v_and_b32 v7, 0xffff0000, v%d" % (12 + i))
        e("v_add_f32 v%d, v%d, v6" % (80 + 2 * i, 80 + 2 * i))
        e("v_add_f32 v%d, v%d, v7" % (81 + 2 * i, 81 + 2 * i))
        e("v_cvt_pk_bf16_f32 v%d, v%d, v%d" % (8 + i, 80 + 2 * i, 81 + 2 * i))
    e("buffer_store_dwordx4 v[8:11], v2, s[12:15], s30 offen")
    if opt.get("ts"):
        e("s_waitcnt vmcnt(0)"); e("s_memrealtime s[34:35]"); e("s_waitcnt lgkmcnt(0)")
        e("v_mov_b32 v30, s32"); e("v_mov_b32 v31, s34"); e("v_mov_b32 v29, 0")
        e("s_lshl_b32 s26, s26, 3"); e("s_add_u32 s26, s26, 0x%x" % (WS_TS + 0x100000))
        e("buffer_store_dwordx2 v[30:31], v29, s[16:19], s26 offen")
    g.label("L_k2_end")
    e("s_endpgm")

VOP3ONLY = ("v_mfma", "v_pk_", "v_fma_f32", "v_cvt_pk_bf16", "v_accvgpr_read", "v_accvgpr_write", "v_max3", "v_min3", "v_lshl_add", "v_add_lshl", "v_mad_u32",
            "v_bfe", "v_add3", "v_mul_lo", "v_mul_hi", "v_lshl_or", "v_and_or", "v_readlane", "v_perm_b32")
NOWIDE = ("v_readfirstlane", "v_permlane", "v_dot2c", "v_nop")
def has_lit(s):
    for t in re.split(r"[ ,]+", s)[1:]:
        if re.match(r"^-?(0x[0-9a-f]+|\d+)$", t):
            v = int(t, 0)
            if not (-16 <= v <= 64) and v not in (0x3f800000, 0x3f000000, 0x40000000, 0x40800000, 0xbf800000, 0xbf000000, 0xc0000000, 0xc0800000): return True
        if t.startswith("L_"): return not s.startswith(("s_cbranch", "s_branch"))
    return False
def isize(s):
    op = s.split()[0]
    if op.startswith(("ds_", "buffer_", "global_", "s_load", "s_mem")): return 8, False
    if op.startswith("s_"):
        if op.startswith(("s_waitcnt", "s_nop", "s_barrier", "s_sleep", "s_endpgm", "s_cbranch", "s_branch", "s_setprio", "s_getreg")): return 4, False
        return (8 if has_lit(s) else 4), False
    if op.startswith(VOP3ONLY): return 8, False
    if has_lit(s): return 8, False
    ops = [x.strip() for x in re.split(r",(?![^\[]*\])", s.split(None, 1)[1])]
    if op.startswith("v_cmp") and ops[0] != "vcc": return 8, False
    if op.startswith("v_cndmask") and ops[-1] != "vcc": return 8, False
    if len(ops) >= 3 and not ops[2].startswith("v"): return 8, False
    return 4, not op.startswith(NOWIDE)
def align_pass(lines, minrun=4):
    ins = [l.strip() for l in lines]
    out = []; par = 0
    isins = lambda l: l and not l.endswith(":") and not l.startswith((".", ";"))
    n = len(ins)
    def nxt(i):
        i += 1
        while i < n and not isins(ins[i]):
            if ins[i].startswith(".p2align"): return None
            i += 1
        return i if i < n else None
    for i, l in enumerate(ins):
        if not isins(l):
            if l.startswith(".p2align"): par = 0
            out.append(l); continue
        sz, flex = isize(l)
        if sz == 8: out.append(l); continue
        if par == 1: out.append(l); par = 0; continue
        j = nxt(i)
        if j is None or isize(ins[j])[0] == 4: out.append(l); par = 1; continue
        if flex:
            op, rest = l.split(None, 1); out.append(op + "_e64 " + rest); continue
        run = 0
        while j is not None and isize(ins[j])[0] == 8 and run < minrun: run += 1; j = nxt(j)
        out.append(l)
        if run >= minrun and not l.startswith(("s_branch", "s_endpgm")): out.append("s_nop 0")
        else: par = 1
    return out

LABELS = {}
def resolve(lines):
    off = 0; LABELS.clear()
    for l in lines:
        l = l.strip()
        if l.endswith(":"): LABELS[l[:-1]] = off
        elif l.startswith(".p2align"):
            a = 1 << int(l.split()[1]); off = (off + a - 1) // a * a
        elif l and not l.startswith((".", ";")):
            off += 8 if l.split()[0].endswith("_e64") else isize(l)[0]
    end = LABELS["L_k1_end"]
    def f(m):
        span = 2048 if LABELS[m.group(1)] >= LABELS["L_att"] else 6144
        return "0x%x" % (min(LABELS[m.group(1)] + int(m.group(2)), end - span) & ~3)
    return [re.sub(r"@(\w+)\+(\d+)", f, l) if l.strip().startswith("s_load") else l for l in lines]

MACROS = """.macro MA d,a,b
v_mfma_f32_16x16x32_bf16 v[\\d:\\d+3], a[\\a:\\a+3], a[\\b:\\b+3], v[\\d:\\d+3]
.endm
.macro MV d,a,b
v_mfma_f32_16x16x32_bf16 v[\\d:\\d+3], a[\\a:\\a+3], v[\\b:\\b+3], v[\\d:\\d+3]
.endm
.macro RT d,b,o
ds_read_b64_tr_b16 a[\\d:\\d+1], v\\b offset:\\o
.endm
.macro WL n
s_waitcnt lgkmcnt(\\n)
.endm
.macro CV d,a,b
v_cvt_pk_bf16_f32 v\\d, v\\a, v\\b
.endm
"""
def compress(line):
    s = line.strip()
    m = re.match(r"v_mfma_f32_16x16x32_bf16 v\[(\d+):\d+\], a\[(\d+):\d+\], ([av])\[(\d+):\d+\], v\[(\d+):\d+\]$", s)
    if m and m.group(1) == m.group(5): return "M%s %s,%s,%s" % (m.group(3).upper(), m.group(1), m.group(2), m.group(4))
    m = re.match(r"ds_read_b64_tr_b16 a\[(\d+):\d+\], v(\d+) offset:(\d+)$", s)
    if m: return "RT %s,%s,%s" % m.groups()
    m = re.match(r"s_waitcnt lgkmcnt\((\d+)\)$", s)
    if m: return "WL %s" % m.group(1)
    m = re.match(r"v_cvt_pk_bf16_f32 v(\d+), v(\d+), v(\d+)$", s)
    if m: return "CV %s,%s,%s" % m.groups()
    return s

def gen(**opt):
    g = G(opt)
    k1(g)
    FUSE = opt.get("fuse", 1)
    if not FUSE: k2(g)
    errs = hazard.check(g.lines)
    if errs:
        print("\n".join(errs[:40])); raise SystemExit("hazards: %d" % len(errs))
    head = open("cdna_kernels/%s.s.ref" % BASE).read().split("; Override launch")[0] if not opt.get("nohead") else ""
    out = head
    if FUSE: out += "; @launch grid=(256,1,1) block=(256,1,1) lds=163840\n"
    else: out += "; @launch kernel=%s grid=(256,1,1) block=(256,1,1) lds=163840\n" % K1
    if not FUSE: out += "; @launch kernel=%s grid=(256,1,1) block=(576,1,1) lds=0\n" % K2
    out += '.amdgcn_target "amdgcn-amd-amdhsa--gfx950"\n.text\n' + MACROS
    lines = align_pass(g.lines, opt.get("minrun", 4)) if opt.get("align", 1) else g.lines
    lines = resolve(lines)
    out += "\n".join(compress(l) for l in lines) + "\n"
    out += '.section .rodata,"a"\n' + kernel_desc(K1, 512, 256) + ("" if FUSE else kernel_desc(K2, 96, 96, 40))
    return out

if __name__ == "__main__":
    kw = json.loads(sys.argv[2]) if len(sys.argv) > 2 else {}
    open(sys.argv[1], "w").write(gen(**kw))
```

```python
import sys, re, json
from asmlib import *
import hazard
BASE = "parallel_sum__linear_kernel_hedgehog__glu_gated_reglu__prompt"
K1 = BASE + "_kernel"
K2 = "reduce_kernel"

PSZ = 2048 * 576 * 2
WS_HX = 0x1000000
WS_OX = 0x2200000
WS_RS2 = 0x2500000
WS_KVP = 0xa00000
WS_KVF = 0x2700000
WS_FLG = 0x2780000
WS_TS = 0x2800000
WS_BYTES = 0x10000000
SX, SW1, SW2, SWS, SDBG, SPHI = 8, 12, 16, 20, 24, 28
sW, sR, sS, sT, sOFF, sM0W, sB1, sB2, sST, sT2 = 32, 33, 34, 35, 36, 37, 38, 39, 40, 41
sCNT = 52
OOB = 0x40000000
RING = 144
NB = 8

class G(Asm):
    def __init__(self, opt):
        super().__init__()
        self.opt = opt
        self.vm = []
        self.lg = []
        self.nts = 0
    def e(self, s, tag=None):
        if s.startswith(("buffer_", "global_")): self.vm.append(tag)
        if s.startswith("ds_"): self.lg.append(tag)
        super().e(s)
    def vm_n(self, tag):
        idx = [i for i, t in enumerate(self.vm) if t == tag]
        assert idx, tag
        return len(self.vm) - 1 - idx[-1]
    def wait_vm(self, tag):
        n = min(self.vm_n(tag), 63)
        self.e("s_waitcnt vmcnt(%d)" % n)
    def wait_lg(self, tag):
        idx = [i for i, t in enumerate(self.lg) if t == tag]
        n = min(len(self.lg) - 1 - idx[-1], 15)
        self.e("s_waitcnt lgkmcnt(%d)" % n)
    def stamp(self):
        e = self.e
        if self.opt.get("amp") is not None:
            if self.nts in (0, self.opt["amp"]):
                e("s_memrealtime s[92:93]"); e("s_waitcnt lgkmcnt(0)")
                e("s_mov_b32 s%d, s92" % (100 if self.nts == 0 else 101))
            self.nts += 1
            return
        if not self.opt.get("ts"): return
        e("s_memtime s[90:91]"); e("s_memrealtime s[92:93]")
        e("s_waitcnt lgkmcnt(0)")
        if self.opt.get("dbgts") is not None:
            sel = self.opt.get("dbgsel", list(range(15)))
            if self.nts in sel:
                e("v_mov_b32 v30, s92")
                e("buffer_store_dword v30, off, s[%d:%d], s94 offset:%d" % (SDBG, SDBG + 3, 4 + 4 * sel.index(self.nts)))
            self.nts += 1
            return
        for k, sg in enumerate((90, 92)):
            e("v_mov_b32 v30, s%d" % sg)
            e("buffer_store_dword v30, off, s[%d:%d], s94 offset:%d" % (SWS, SWS + 3, 8 * self.nts + 4 * k))
        self.nts += 1

def mfma(d, a, b, c=None):
    return "v_mfma_f32_16x16x32_bf16 %s, %s, %s, %s" % (d, a, b, d if c is None else c)

class Stage:
    def __init__(self, lo, hi, pre, dmas, frags, gate=None):
        dmas = [d if isinstance(d, list) else [d] for d in dmas]
        dmas[0] = list(pre) + dmas[0]
        self.lo, self.hi, self.dmas, self.frags, self.gate = lo, hi, dmas, frags, gate
        self.before = None; self.after = None

class Pipe:
    def __init__(self, g, stages, D=6, BE=1):
        self.g, self.st, self.D, self.BE = g, stages, D, BE
        self.next = 0
        self.safe = -1
        self.q = []
        self.open = set()
        self.fi = 0
        self.done = -1
        self.qthr = g.opt.get("qthr", 3)
        self.when = {}
    def can(self, m):
        s = self.st[m]
        if s.gate is not None and s.gate not in self.open: return False
        return all(k <= self.safe for k in range(m) if self.st[k].lo < s.hi and s.lo < self.st[k].hi)
    def refill(self):
        while self.next < len(self.st) and self.can(self.next):
            for d in self.st[self.next].dmas: self.q.append([list(d), ("st", self.next)])
            self.next += 1
    def pop(self):
        if not self.q: return []
        t, tag = self.q.pop(0)
        return [(x, tag) for x in t]
    def flush(self):
        while self.q:
            for t, tag in self.pop(): self.g.e(t, tag)
    def enter(self, n, last, hook=None):
        g = self.g
        late = 0
        while any(tag[1] <= last for _, tag in self.q):
            late += 1
            for t, tg in self.pop(): g.e(t, tg)
        if late and n > 2: print("warning: %d DMA issued late for stage %d" % (late, n))
        assert self.next > last, (n, last)
        for k in range(n, last + 1):
            if self.st[k].before: self.st[k].before()
        if hook and hook.before: hook.before()
        g.wait_vm(("st", last)); g.e("s_barrier")
        if hook and hook.after: hook.after()
        for k in range(n, last + 1):
            if self.st[k].after: self.st[k].after()
        self.safe = max(self.safe, self.done)
        self.refill()
    def run(self, s0, s1, extra=None, pauses=(), groups=None, urgent=None, lagok=True):
        g, D = self.g, self.D
        WP = g.opt.get("wp", 4)
        pend = []; urg = []; urgent = urgent or {}; cur = [0]; dens = [0]
        extra = extra or {}
        fl = [(n, k, f) for n in range(s0, s1) for k, f in enumerate(self.st[n].frags)]
        if groups is None: groups = list(range(s0, s1, self.BE))
        gend = {a: (groups[i + 1] if i + 1 < len(groups) else s1) - 1 for i, a in enumerate(groups)}
        base = self.fi
        needbar = lambda j: j < len(fl) and fl[j][1] == 0 and fl[j][0] in gend
        def reads(j):
            buf = RING + 4 * ((base + j) % NB)
            for t in fl[j][2][0](buf): g.e(t, ("fr", base + j))
        def wl(i):
            w = min(i + WP - 1, len(fl) - 1)
            g.wait_lg(("fr", base + w))
            self.done = max(self.done, fl[w][0] if fl[w][1] == len(self.st[fl[w][0]].frags) - 1 else fl[w][0] - 1)
        def cost(it):
            if isinstance(it, (Mark, Dens)): return 0
            if isinstance(it, Hook): return 99
            if isinstance(it, Delay):
                if it.until is None: it.until = cur[0] + it.n
                return 0 if cur[0] >= it.until else 99
            if callable(it): return getattr(it, "cost", 2)
            if isinstance(it, list): return min(len(it), 2)
            t = it[0] if isinstance(it, tuple) else it
            return 2 if t.startswith(("buffer_", "global_", "v_mfma", "v_exp", "v_rcp")) else 1
        def emit(it, i):
            if isinstance(it, Mark): self.when[it.name] = i
            elif isinstance(it, Dens): dens[0] = it.n
            elif isinstance(it, Delay):
                if i >= len(fl): g.e("s_nop 7")
            elif isinstance(it, Hook):
                if it.before: it.before()
                g.e("s_barrier")
                if it.after: it.after()
            elif callable(it): it()
            elif isinstance(it, list):
                for x in it: g.e(x)
            elif isinstance(it, tuple): g.e(it[0], it[1])
            else: g.e(it)
        for j in range(min(D, len(fl))):
            if needbar(j): self.enter(fl[j][0], gend[fl[j][0]])
            reads(j)
        if needbar(D): self.enter(fl[D][0], gend[fl[D][0]])
        wl(0)
        since = 9
        for i, (n, k, f) in enumerate(fl):
            ms = f[1](RING + 4 * ((base + i) % NB))
            g.e(ms[0])
            if i + D < len(fl): reads(i + D)
            g.e(ms[1])
            pend += [(i, x) for x in extra.get(i, [])]; urg += urgent.get(i, [])
            since += 1; cur[0] = i
            wdue = (i + 1) % WP == 0 and i + 1 < len(fl)
            if needbar(i + 1 + D):
                if wdue: wl(i + 1)
                hook = pend.pop(0)[1] if pend and isinstance(pend[0][1], Hook) else None
                self.enter(fl[i + 1 + D][0], gend[fl[i + 1 + D][0]], hook)
                continue
            paused = any(a <= i < b for a, b in pauses)
            if urg and not wdue:
                slots = 2
                while urg and cost(urg[0]) <= slots:
                    it = urg.pop(0); slots -= cost(it); emit(it, i)
                continue
            used = False
            if self.q and len(self.q[0][0]) > 1:
                if wdue: wl(i + 1)
                while len(self.q[0][0]) > 1: g.e(self.q[0][0].pop(0))
                used = True
            elif self.q and not wdue and not paused and since >= (2 if len(self.q) > self.qthr else self.g.opt.get("dcad", 3)):
                it = self.q.pop(0); g.e(it[0][0], it[1]); since = 0
                used = True
            if used and not dens[0]: continue
            slots = 0 if used else 2
            if wdue and not used: wl(i + 1); slots = 1
            if dens[0]: slots += dens[0]
            elif lagok and pend and i - pend[0][0] > g.opt.get("lag", 30): slots += 1
            while pend and cost(pend[0][1]) <= slots:
                it = pend.pop(0)[1]; slots -= cost(it); emit(it, i)
        for it in urg + [x[1] for x in pend]: emit(it, len(fl))
        self.fi = base + len(fl)
    def drained(self, upto):
        self.safe = max(self.safe, upto); self.refill()

class Mark:
    def __init__(self, name): self.name = name
class Hook:
    def __init__(self, before=None, after=None): self.before, self.after = before, after
class Delay:
    def __init__(self, n): self.n = n; self.until = None
class Dens:
    def __init__(self, n): self.n = n

def group_scc(ops):
    out = []
    for op in ops:
        if isinstance(op, str) and op.startswith("s_cselect"): out[-1] = [out[-1], op]
        else: out.append(op)
    return out

def spread(ops, lo, hi, extra):
    ops = group_scc(ops); n = hi - lo
    for k, op in enumerate(ops):
        extra.setdefault(lo + k * n // len(ops), []).append(op)

def lane_consts(g):
    e = g.e
    e("v_lshrrev_b32 v22, 4, v0")
    e("v_and_b32 v23, 15, v0")

def x_setup(g):
    e = g.e
    e("v_lshrrev_b32 v104, 3, v0")
    e("v_mul_u32_u24 v104, 1152, v104")
    e("v_and_b32 v105, 7, v0")
    e("v_xor_b32 v105, v105, v22")
    e("v_lshl_add_u32 v104, v105, 4, v104")
    e("s_lshl_b32 s4, s%d, 2" % sR)
    e("s_add_u32 s4, s4, s%d" % sW)
    e("s_mul_i32 s4, s4, 36864")
    e("s_mul_i32 s5, s%d, 36864" % sW)
    e("s_lshr_b32 s60, s2, 6")
    e("s_and_b32 s6, s2, 64")
    e("v_xor_b32 v104, s6, v104")
    e("v_xor_b32 v105, 64, v104")

def x_dma(g, o, j):
    e = g.e
    if j == 0:
        e("s_add_u32 s6, s60, %d" % o)
        e("s_and_b32 s6, s6, 3")
        e("s_mulk_i32 s6, 9216")
        e("s_add_u32 m0, s5, s6")
        e("s_add_u32 s7, s4, s6")
    else:
        e("s_addk_i32 m0, 1024")
        e("s_addk_i32 s7, 128")
    e("buffer_load_dwordx4 v%d, s[%d:%d], s7 offen %s lds" % (104 + (o & 1), SX, SX + 3, g.opt.get("xflags", "")), ("x", j))

def prologue(g, pipe, XV=112, early=None, afterbar=None, fill=(), var=False, nfirst=8, mid=None):
    e, opt = g.e, g.opt
    xf = opt.get("xflags", "")
    NC = opt.get("xcommon", 2)
    nf = 9 * (4 - NC)
    for o in range(NC, 4):
        for j in range(9):
            x_dma(g, o, j)
            k = (o - NC) * 9 + j
            if mid and o * 9 + j == mid[0]: mid[1]()
            for it in fill[k * len(fill) // nf:(k + 1) * len(fill) // nf]:
                for x in (it if isinstance(it, list) else [it]): e(x, "fill")
    if early: early()
    e("v_lshrrev_b32 v106, 3, v23")
    e("v_mul_u32_u24 v106, 9216, v106")
    e("v_and_b32 v107, 7, v23")
    e("v_lshl_add_u32 v106, v107, 7, v106")
    e("v_lshrrev_b32 v107, 1, v23")
    e("v_xor_b32 v107, v107, v22")
    e("v_lshl_add_u32 v106, v107, 4, v106")
    e("v_add_u32 v106, s5, v106")
    e("v_xor_b32 v107, 64, v106")
    for i in range(4): e("v_mov_b32 v%d, 0x3f803f80" % (80 + i))
    for i in (72, 73, 76, 77): e("v_mov_b32 v%d, 0" % i)
    e("v_lshrrev_b32 v108, 2, v23")
    e("v_cmp_eq_u32 vcc, v108, v22")
    e("v_and_b32 v108, 1, v23")
    e("v_lshlrev_b32 v108, 4, v108")
    e("v_mov_b32 v78, 0x3f80")
    e("v_lshlrev_b32 v78, v108, v78")
    e("v_cndmask_b32 v78, 0, v78, vcc")
    e("v_and_b32 v108, 2, v23")
    e("v_cmp_eq_u32 vcc, 0, v108")
    e("s_nop 1")
    e("v_cndmask_b32 v74, 0, v78, vcc")
    e("v_cndmask_b32 v75, v78, 0, vcc") if False else None
    e("v_sub_u32 v75, v78, v74")
    X = lambda tt, ks: XV + (ks * 2 + tt) * 4
    g.stamp()
    for j in range(10):
        if j < 9:
            g.wait_vm(("x", j))
            for ks in (2 * j, 2 * j + 1):
                for tt in range(2):
                    e("ds_read_b128 %s, v%d offset:%d" % (vr(X(tt, ks), 4), 106 + (ks & 1), tt * 18432 + j * 1024), ("xr", j))
        if j > 0:
            g.wait_lg(("xr", j - 1))
            for ks in (2 * j - 2, 2 * j - 1):
                for tt in range(2):
                    e(mfma(vr(64 + 4 * tt, 4), vr(80, 4), vr(X(tt, ks), 4), "0" if ks == 0 else None))
    e("s_barrier")
    g.stamp()
    pipe.open.add("x"); pipe.refill()
    for _ in range(nfirst):
        for t, tag in pipe.pop(): e(t, tag)
    if afterbar: afterbar()
    e("s_nop 3")
    e("s_mov_b32 s%d, 0x%08x" % (sT, 0xbae38e39))
    for i in range(8): e("v_mul_f32 v%d, s%d, v%d" % (64 + i, sT, 64 + i))
    e("s_nop 1")
    fr = [(tt, ks) for ks in range(18) for tt in range(2)]
    LAG = 2
    for k in range(len(fr) + LAG + 1):
        cv = []
        if LAG <= k < len(fr) + LAG:
            tt, ks = fr[k - LAG]; d = 32 + 8 * ((k - LAG) % 4); x = X(tt, ks)
            cv = ["v_cvt_pk_bf16_f32 v%d, v%d, v%d" % (x + i, d + 2 * i, d + 2 * i + 1) for i in range(4)]
        if k < len(fr):
            tt, ks = fr[k]; d = 32 + 8 * (k % 4)
            e(mfma(vr(d, 4), vr(74, 4), vr(X(tt, ks), 4), vr(64 + 4 * tt, 4)))
            if k == LAG: e("s_nop 3")
            for t in cv[:2]: e(t)
            e(mfma(vr(d + 4, 4), vr(72, 4), vr(X(tt, ks), 4), vr(64 + 4 * tt, 4)))
            for t in cv[2:]: e(t)
        else:
            e("s_nop 3")
            for t in cv: e(t)
        if var and k > LAG:
            tt, ks = fr[k - LAG - 1]; x = X(tt, ks)
            e(mfma(vr(96 + 4 * tt, 4), vr(x, 4), vr(x, 4), "0" if ks == 0 else None))
    g.stamp()

def XV0(tt, ks): return vr(112 + (ks * 2 + tt) * 4, 4)
def xc_copies(): return ["v_accvgpr_write_b32 a%d, v%d" % (i, 112 + i) for i in range(144)]
def XC(tt, ks): return ar((ks * 2 + tt) * 4, 4)

def tr_bases(g, dst, rowmul):
    e = g.e
    out = []
    out.append("v_bfe_u32 v28, v0, 2, 2")
    out.append("v_mad_u32_u24 v28, v22, %d, v28" % rowmul)
    out.append("v_lshlrev_b32 v%d, 7, v28" % dst)
    out.append("v_bfe_u32 v28, v0, 3, 2")
    out.append("v_lshl_add_u32 v%d, v28, 5, v%d" % (dst, dst))
    out.append("v_and_b32 v28, 3, v0")
    out.append("v_lshl_add_u32 v%d, v28, 3, v%d" % (dst, dst))
    for t in range(1, 4): out.append("v_xor_b32 v%d, %d, v%d" % (dst + t, 32 * t, dst))
    for grp in (1, 2):
        for t in range(4): out.append("v_add_u32 v%d, 0x%x, v%d" % (dst + 4 * grp + t, grp << 16, dst + t))
    return out

def tr_reads(bases, t, off, second):
    def f(buf):
        o2 = off + second
        assert (off >> 16) == (o2 >> 16)
        b = bases + 4 * (off >> 16) + t
        return ["ds_read_b64_tr_b16 %s, v%d offset:%d" % (ar(buf, 2), b, off & 0xffff),
                "ds_read_b64_tr_b16 %s, v%d offset:%d" % (ar(buf + 2, 2), b, o2 & 0xffff)]
    return f

def store_ops(g, acc, P, c, voff):
    sf = g.opt.get("sflags", "sc1" if g.opt.get("fuse", 1) else "")
    ops = ["s_add_u32 s%d, s%d, %d" % (sT2, sST, c * 4096)]
    for tt in range(2):
        for hf in range(2):
            p = P + (tt * 2 + hf) * 4
            for k in range(2):
                s = acc + ((2 * hf + k) * 2 + tt) * 4
                ops.append("v_cvt_pk_bf16_f32 v%d, v%d, v%d" % (p + 2 * k, s, s + 1))
                ops.append("v_cvt_pk_bf16_f32 v%d, v%d, v%d" % (p + 2 * k + 1, s + 2, s + 3))
            if not g.opt.get("nostore"):
                ops.append("buffer_store_dwordx4 %s, v%d, s[%d:%d], s%d offen offset:%d %s" % (vr(p, 4), voff, SWS, SWS + 3, sT2, (tt * 2 + hf) * 1024, sf))
    return ops

sNON = 97
def flag_load(vreg, vfl, sline):
    if sline is None: return "buffer_load_dword v%d, v%d, s[%d:%d], 0 offen sc1" % (vreg, vfl, SDBG, SDBG + 3)
    return "buffer_load_dword v%d, v%d, s[%d:%d], s%d offen sc1" % (vreg, vfl, SWS, SWS + 3, sline)

def flag_issue(g, vreg, vfl, sline):
    g.e(flag_load(vreg, vfl, sline), "flag")

def flag_check(g, vreg, vfl, sline, mask, issued=True, sleep=4):
    if g.opt.get("nofl") and sline is not None: return
    e = g.e
    L = g.newlabel("L_poll"); Ld = g.newlabel("L_polld"); Lc = g.newlabel("L_pollc")
    e("s_cmp_lg_u32 s%d, 0" % sW)
    e("s_cbranch_scc1 %s" % Ld)
    e("s_mov_b32 s89, 0x20000")
    if issued:
        g.wait_vm("flag")
        e("s_branch %s" % Lc)
    g.label(L)
    Asm.e(g, flag_load(vreg, vfl, sline))
    e("s_waitcnt vmcnt(0)")
    g.label(Lc)
    if sline is None:
        e("v_readfirstlane_b32 s%d, v%d" % (sNON, vreg))
        e("s_sub_u32 s89, s89, 1")
        e("s_cmp_lg_u32 s%d, 0" % sNON)
    else:
        e("v_cmp_eq_u32 s[98:99], s%d, v%d" % (sNON, vreg))
        e("s_sub_u32 s89, s89, 1")
        e("s_and_b32 s98, s98, 0x%x" % mask)
        e("s_cmp_eq_u32 s98, 0x%x" % mask)
    e("s_cbranch_scc1 %s" % Ld)
    e("s_sleep %d" % sleep)
    e("s_cmp_lg_u32 s89, 0")
    e("s_cbranch_scc1 %s" % L)
    g.label(Ld)

def flag_lane_offsets(vfl, vtmp):
    return ["s_lshl_b32 s96, s%d, 6" % sW, "v_add_u32 v%d, s96, v0" % vtmp, "v_cmp_gt_u32 vcc, 16, v%d" % vtmp, "v_lshlrev_b32 v%d, 2, v0" % vfl,
            "v_mov_b32 v%d, 0x%x" % (vtmp, OOB), "v_cndmask_b32 v%d, v%d, v%d, vcc" % (vfl, vtmp, vfl)]

def code_pf(label, add=0):
    return "s_load_dword s88, s[86:87], @%s+%d" % (label, add)

def signal(g, vtmp, voff, sword, imm=0):
    g.e("v_mov_b32 v%d, s%d" % (vtmp, sNON))
    g.e("buffer_store_dword v%d, v%d, s[%d:%d], s%d offen offset:%d sc1" % (vtmp, voff, SWS, SWS + 3, sword, imm))

def ffn_role(g):
    e, opt = g.e, g.opt
    wf = opt.get("wflags", "")
    ACC = [32, 96]; H = 160; B1 = 9; PK = 128; VST = 21
    sI, sJ = 42, 43; sKB = 44; sHX = 47; sOX = 50; sWO = 53; sM0B = 58
    CPF = opt.get("codepf", 0)
    e("s_sub_u32 s%d, s3, 1" % sI)
    e("s_mov_b32 s%d, s%d" % (sJ, sS))
    e("s_mul_i32 s%d, s%d, 3" % (sS, sJ))
    e("s_add_u32 s%d, s%d, s%d" % (sS, sS, sI))
    e("s_cmp_ge_u32 s%d, 2" % sW)
    e("s_cselect_b32 s%d, s74, s72" % sT)
    e("s_cselect_b32 s%d, s75, s73" % sT2)
    srd(g, SW1, sT, sT2, 576 * 4608 * 2)
    e("s_lshl_b32 s%d, s%d, 12" % (sM0W, sW))
    e("s_mul_i32 s%d, s%d, %d" % (sB1, sS, 0 if opt.get("samew") else 768))
    def late_setup():
        o = []; sT = 95
        a = Asm(); srd(a, SW2, 76, 77, 4608 * 576 * 2); srd(a, SPHI, 70, 71, 576 * 576 * 2)
        o += [l.strip() for l in a.lines]
        for b in range(3):
            o += ["s_add_u32 s%d, s%d, %d" % (sT, sI, b), "s_cmp_ge_u32 s%d, 3" % sT, "s_cselect_b32 s96, 3, 0", "s_sub_u32 s%d, s%d, s96" % (sT, sT),
                  "s_mul_i32 s96, s%d, 3" % sJ, "s_add_u32 s%d, s%d, s96" % (sT, sT),
                  "s_mul_i32 s%d, s%d, %d" % (sKB + b, sT, 384 * 1152), "s_mul_i32 s96, s%d, 384" % sI, "s_add_u32 s%d, s%d, s96" % (sKB + b, sKB + b),
                  "s_mul_i32 s96, s%d, 12" % sR, "s_add_u32 s%d, s%d, s96" % (sT, sT), "s_lshl_b32 s%d, s%d, 2" % (sT, sT), "s_add_u32 s%d, s%d, s%d" % (sT, sT, sW),
                  "s_mul_i32 s%d, s%d, 24576" % (sHX + b, sT), "s_add_u32 s%d, s%d, 0x%x" % (sHX + b, sHX + b, WS_HX)]
        o += ["s_lshl_b32 s%d, s%d, 2" % (sT, sR), "s_add_u32 s%d, s%d, s%d" % (sT, sT, sJ), "s_lshl_b32 s%d, s%d, 7" % (sCNT, sT), "s_add_u32 s%d, s%d, 0x%x" % (sCNT, sCNT, WS_FLG),
              "s_lshl_b32 s63, s%d, 2" % sI, "s_add_u32 s63, s63, s%d" % sCNT,
              "s_lshl_b32 s%d, s%d, 2" % (sT, sT), "s_add_u32 s%d, s%d, s%d" % (sT, sT, sW), "s_mul_i32 s%d, s%d, 10240" % (sOX, sT), "s_add_u32 s%d, s%d, 0x%x" % (sOX, sOX, WS_OX)]
        o += ["s_mul_i32 s%d, s%d, %d" % (sST, sJ, PSZ), "s_lshl_b32 s%d, s%d, 2" % (sT, sR), "s_add_u32 s%d, s%d, s%d" % (sT, sT, sW),
              "s_mul_i32 s%d, s%d, 36864" % (sT, sT), "s_add_u32 s%d, s%d, s%d" % (sST, sST, sT),
              "s_mul_i32 s%d, s%d, 12288" % (sT, sI), "s_add_u32 s%d, s%d, s%d" % (sST, sST, sT)]
        o += ["s_mul_i32 s%d, s%d, %d" % (sB2, sJ, 144 * 1152), "s_mul_i32 s96, s%d, 384" % sI, "s_add_u32 s%d, s%d, s96" % (sB2, sB2),
              "s_lshl_b32 s%d, s%d, 10" % (sM0B, sW)]
        for i in range(5):
            d = sWO + i
            o += (["s_lshl_b32 s%d, s%d, 2" % (sT, sW), "s_add_u32 s%d, s%d, %d" % (sT, sT, i)] if i < 4 else ["s_add_u32 s%d, s%d, 16" % (sT, sW)])
            o += ["s_lshr_b32 s96, s%d, 1" % sT, "s_lshl_b32 s%d, s96, 2" % d, "s_cmp_ge_u32 s96, 5", "s_cselect_b32 s96, 52, 0",
                  "s_add_u32 s%d, s%d, s96" % (d, d), "s_and_b32 s%d, s%d, 1" % (sT, sT), "s_mul_i32 s%d, s%d, 36" % (sT, sT),
                  "s_add_u32 s%d, s%d, s%d" % (d, d, sT), "s_mul_i32 s%d, s%d, 1152" % (d, d), "s_add_u32 s%d, s%d, s%d" % (d, d, sB2)]
        return o
    stages = []
    def slot(n): return ((n + 9) % 10) * 16384
    for rho in range(6):
        acc = ACC[rho & 1]
        for st in range(9):
            n = len(stages); lo = slot(n)
            pre = ["s_add_u32 m0, s%d, %d" % (sM0W, lo), "s_add_u32 s%d, s%d, %d" % (sOFF, sB1, st * 64 * 9216 + (0 if opt.get('samew') else rho * 128))]
            dmas = ["buffer_load_dwordx4 v%d, s[%d:%d], s%d offen offset:%d %s lds" % (1 + i, SW1, SW1 + 3, sOFF, i * 1024, "nt" if n < opt.get("ntfirst", 0) else wf) for i in range(4)]
            frags = []
            for kk in range(2):
                ks = 2 * st + kk
                for t in range(4):
                    for mat in range(2):
                        def mf(buf, ks=ks, t=t, mat=mat, acc=acc, XC=(XC if rho else XV0)):
                            order = (0, 1) if mat == 0 else (1, 0)
                            return [mfma(vr(acc + ((t * 2 + mat) * 2 + tt) * 4, 4), ar(buf, 4), XC(tt, ks), "0" if ks == 0 else None) for tt in order]
                        frags.append((tr_reads(B1, t, lo + mat * 8192 + kk * 4096, 512), mf))
            stages.append(Stage(lo, lo + 16384, pre, dmas, frags, None if n == 0 else "x"))
    def hreg(b, u, tt):
        k = (u * 2 + tt) * 4
        if b == 0: return vr(H + k, 4)
        if b == 1: return ar(k, 4)
        if b == 2: return ar(176 + k, 4) if u < 8 else ar(96 + k - 64, 4)
        if u < 2: return ar(128 + k, 4)
        if u < 4: return ar(240 + k - 16, 4)
        return vr(144 + k - 32, 4)
    def g2stage(b, us, cg, first):
        n = len(stages); lo = slot(n); acc = 32 + 32 * cg
        if b < 3:
            pre = ["s_add_u32 m0, s%d, %d" % (sM0W, lo), "s_add_u32 s%d, s%d, %d" % (sOFF, sKB + b, (us[0] // 4) * 128 * 1152 + cg * 128)]
            dmas = ["buffer_load_dwordx4 v%d, s[%d:%d], s%d offen offset:%d %s lds" % (5 + i, SW2, SW2 + 3, sOFF, i * 1024, wf) for i in range(4)]
        else:
            pre = []
            sel = [(sM0W, lo + i * 1024, sWO + i) for i in range(4)] if len(us) == 4 else [(sM0B, lo, sWO + 4)]
            dmas = [["s_add_u32 m0, s%d, %d" % (m, o), "s_add_u32 s%d, s%d, %d" % (sOFF, so, cg * 128),
                     "buffer_load_dwordx4 v25, s[%d:%d], s%d offen %s lds" % (SPHI, SPHI + 3, sOFF, wf)] for m, o, so in sel]
        frags = []
        for kk, u in enumerate(us):
            for t in range(4):
                def mf(buf, u=u, t=t, z=(first and kk == 0)):
                    order = (0, 1) if t % 2 == 0 else (1, 0)
                    return [mfma(vr(acc + (t * 2 + tt) * 4, 4), ar(buf, 4), hreg(b, u, tt), "0" if z else None) for tt in order]
                frags.append((tr_reads(B1, t, lo + kk * 4096, 2048), mf))
        stages.append(Stage(lo, lo + 16384, pre, dmas, frags, "x"))
    Q = lambda q: list(range(4 * q, 4 * q + 4))
    for q, cg in ((0, 0), (0, 1), (1, 0), (1, 1), (0, 2), (1, 2)): g2stage(0, Q(q), cg, q == 0)
    G2C2 = 64
    for b, q in ((0, 2), (1, 0), (1, 1), (2, 0), (2, 1), (1, 2), (2, 2)):
        for cg in range(3): g2stage(b, Q(q), cg, False)
    for cg in range(3):
        for b, us in ((3, Q(0)), (3, [4])): g2stage(b, us, cg, False)
    pipe = Pipe(g, stages, opt.get("D", 7), opt.get("BE", 2))
    TOUCH = opt.get("touch", 1); tf = opt.get("tflags", "")
    def touch1(rho):
        return ["buffer_load_dword v31, v29, s[%d:%d], s%d offen offset:%d %s" % (SW1, SW1 + 3, sB1, rho * 128, opt.get("t0flags", tf) if rho == 0 else tf)]
    def touch2(b):
        if b < 3: return ["buffer_load_dword v31, v26, s[%d:%d], s%d offen %s" % (SW2, SW2 + 3, sKB + b, tf)]
        return ["buffer_load_dword v31, v26, s[%d:%d], s59 offen %s" % (SPHI, SPHI + 3, tf)]
    def touchh(k):
        return ["s_add_u32 s3, s%d, %d" % (sHX, k * 8192), "buffer_load_dword v31, v22, s[%d:%d], s3 offen" % (SWS, SWS + 3)]
    def early():
        e("v_lshrrev_b32 v28, 3, v0")
        e("s_and_b32 s%d, s%d, 1" % (sOFF, sW))
        e("s_lshl_b32 s%d, s%d, 5" % (sOFF, sOFF))
        e("v_add_u32 v1, s%d, v28" % sOFF)
        e("v_mul_u32_u24 v1, 9216, v1")
        e("v_and_b32 v2, 2, v28")
        e("v_and_b32 v3, 7, v0")
        e("v_xor_b32 v2, v2, v3")
        e("v_lshl_add_u32 v1, v2, 4, v1")
        e("v_xor_b32 v2, 64, v1")
        e("v_add_u32 v2, %d, v2" % (8 * 9216 - 1024))
        e("v_add_u32 v3, %d, v1" % (2 * (8 * 9216 - 1024)))
        e("v_add_u32 v4, %d, v2" % (2 * (8 * 9216 - 1024)))
        pipe.refill(); pipe.flush()
    def tsetup():
        e("s_and_b32 s98, s%d, 1" % sW)
        e("s_mul_i32 s98, s98, 36")
        e("s_and_b32 s%d, s%d, 7" % (99, sR))
        e("s_mul_i32 s%d, s%d, 72" % (99, 99))
        e("s_add_u32 s98, s98, s%d" % 99)
        e("v_add_u32 v29, s98, v0")
        e("v_mul_u32_u24 v29, 9216, v29")
        e("v_cmp_gt_u32 vcc, 36, v0")
        e("v_mov_b32 v31, 0x%x" % OOB)
        e("s_nop 0")
        e("v_cndmask_b32 v29, v31, v29, vcc")
    T0 = opt.get("t0pos", -1)
    if TOUCH: tsetup()
    vset = ["v_lshrrev_b32 v28, 3, v0", "s_lshl_b32 s96, s%d, 5" % sW, "v_add_u32 v5, s96, v28", "v_mul_u32_u24 v5, 1152, v5",
            "v_lshlrev_b32 v6, 1, v22", "v_and_b32 v7, 7, v0", "v_xor_b32 v6, v6, v7", "v_lshl_add_u32 v5, v6, 4, v5",
            "v_lshrrev_b32 v28, 5, v0", "v_bfe_u32 v7, v0, 3, 2", "v_lshl_add_u32 v28, v28, 4, v7", "v_mul_u32_u24 v25, 1152, v28", "v_lshl_add_u32 v25, v6, 4, v25"]
    vset += ["v_add_u32 v%d, %d, v5" % (5 + i, i * (8 * 1152 - 1024)) for i in range(1, 4)]
    vset += ["v_lshlrev_b32 v%d, 4, v0" % VST, "v_lshlrev_b32 v27, 9, v22", "v_add_u32 v28, s%d, v0" % sW, "v_cmp_eq_u32 vcc, 0, v28",
             "v_mov_b32 v24, 0x%x" % OOB, "v_mov_b32 v28, 0", "v_cndmask_b32 v24, v24, v28, vcc"]
    vset += ["v_mul_u32_u24 v28, 5462, v0", "v_lshrrev_b32 v28, 16, v28", "v_mul_u32_u24 v26, 12, v28", "v_sub_u32 v26, v0, v26",
             "s_mul_i32 s96, s%d, 12" % sW, "s_and_b32 s%d, s%d, 7" % (95, sR), "s_mul_i32 s%d, s%d, 48" % (95, 95), "s_add_u32 s96, s96, s95",
             "v_add_u32 v26, s96, v26", "v_mul_u32_u24 v26, 1152, v26", "v_lshl_add_u32 v26, v28, 7, v26",
             "v_cmp_gt_u32 vcc, 36, v0", "v_mov_b32 v28, 0x%x" % OOB, "s_nop 0", "v_cndmask_b32 v26, v28, v26, vcc",
             "s_cmp_ge_u32 s96, 144", "s_cselect_b32 s59, 0x%x, s%d" % (OOB, sB2)]
    prologue(g, pipe, early=early, afterbar=(lambda: [e(t) for t in (touch1(0) if T0 == -1 else []) + (touch1(1) if not opt.get('t1pos') else [])]) if TOUCH else None, mid=(T0, lambda: e(touch1(0)[0])) if TOUCH else None, nfirst=opt.get('nfirst', 8), fill=group_scc(late_setup() + vset + tr_bases(g, B1, 8)))
    hf = opt.get("hflags", "sc1")
    def epi1(rho):
        acc = ACC[rho & 1]; ops = []; sts = []
        for t in range(4):
            for tt in range(2):
                gt = acc + ((t * 2) * 2 + tt) * 4; up = acc + ((t * 2 + 1) * 2 + tt) * 4
                u = 2 * rho + t // 2
                h = H + (u * 2 + tt) * 4 + (t & 1) * 2
                for k in range(2):
                    for i in (2 * k, 2 * k + 1): ops.append("v_max_f32 v%d, 0, v%d" % (gt + i, gt + i))
                    for i in (2 * k, 2 * k + 1): ops.append("v_mul_f32 v%d, v%d, v%d" % (gt + i, gt + i, up + i))
                    ops.append("v_cvt_pk_bf16_f32 v%d, v%d, v%d" % (h + k, gt + 2 * k, gt + 2 * k + 1))
                if t & 1 and not (opt.get("nohst") and (t, tt) != (1, 0)):
                    if t == 1 and tt == 0: sts.append("s_add_u32 s%d, s%d, %d" % (sT2, sHX, rho * 4096))
                    sts.append(("buffer_store_dwordx4 %s, v%d, s[%d:%d], s%d offen offset:%d %s" % (hreg(0, u, tt), VST, SWS, SWS + 3, sT2, ((u & 1) * 2 + tt) * 1024, hf), ("hst", rho)))
        return ops + sts
    def hloads(b, us, tag):
        ops = []
        base = sOX if b == 3 else sHX + b
        if opt.get("noh"): us = list(us)[:1]
        for u in us:
            if u % 2 == 0: ops.append("s_add_u32 s%d, s%d, %d" % (sT, base, u * 2048))
            for tt in range(2):
                ops.append(("buffer_load_dwordx4 %s, v%d, s[%d:%d], s%d offen offset:%d %s" % (hreg(b, u, tt), VST, SWS, SWS + 3, sT, ((u & 1) * 2 + tt) * 1024, opt.get("hlflags", "sc1")), tag))
        return ops
    extra = {}
    urgent = {}
    add = lambda k, l: extra.setdefault(k, []).extend(l)
    addu = lambda k, l: urgent.setdefault(k, []).extend(l)
    EP = opt.get("epiw", 75)
    for rho in range(5):
        spread(epi1(rho) + [Mark("epi%d" % rho)], 144 * (rho + 1) + 3, 144 * (rho + 1) + EP, extra)
    P2 = 864; S2 = 54
    n01 = 40
    add(P2 + 3, epi1(5)[:n01] + [Mark("epi5a")] + epi1(5)[n01:] + [Mark("epi5")])
    pauses = []
    PA, PB = opt.get("pause", [0, 40])
    def event(k, ops):
        addu(k, ops); pauses.append((k + PA, k + PB))
    if TOUCH:
        T = [touch1(2), touch1(3), touch1(4), touch1(5), touch2(0), touch2(1), touch2(2), touch2(3)]
        tp = opt.get("tpos", [70, 148, 292, 436, 510, 580, 724, 724])
        if len(tp) == 4: tp = [x for x in tp for _ in range(2)]
        for k, ops in zip(tp, T): event(k, ops)
        if opt.get("t1pos"): event(opt["t1pos"], touch1(1))
    add(1, xc_copies() + [Mark("xc")])
    add(144 + 90, flag_lane_offsets(23, 28) + [Mark("flo")])
    addu(288 + 100, [lambda: flag_issue(g, 28, 23, None)])
    stages[26].before = lambda: flag_check(g, 28, 23, None, 0)
    stages[46].before = lambda: g.wait_vm(("hst", 3))
    stages[46].after = lambda: signal(g, 28, 24, 63, 0)
    addu(720 + 76, [lambda: flag_issue(g, 28, 23, sCNT)])
    stages[52].before = lambda: flag_check(g, 28, 23, sCNT, 0x7)
    HB = opt.get("hburst", 30)
    def hevent(k, ops):
        addu(k, ops); pauses.append((k, k + HB))
    if HB:
        hevent(720 + 106, hloads(1, Q(0), "h10")); hevent(P2 + opt.get("h11pos", 30), hloads(1, Q(1), "h11"))
        spread(hloads(2, Q(0), "h20") + hloads(2, Q(1), "h21"), P2 + 120, P2 + 200, urgent)
    else:
        spread(hloads(1, Q(0), "h10") + hloads(1, Q(1), "h11"), 720 + 107, P2, urgent)
        spread(hloads(2, Q(0), "h20") + hloads(2, Q(1), "h21"), P2 + 80, P2 + 150, urgent)
    def to_g2():
        for k in range(12): e("v_sub_u32 v%d, v%d, v27" % (B1 + k, B1 + k))
    stages[S2].after = to_g2
    stages[S2 + 8].before = lambda: g.wait_vm("h10")
    stages[S2 + 10].before = lambda: g.wait_vm(("hst", 5))
    stages[S2 + 10].after = lambda: signal(g, 28, 24, 63, 16)
    stages[S2 + 12].before = lambda: g.wait_vm("h11")
    addu(P2 + 16 * 14, [lambda: flag_issue(g, 28, 23, sCNT)])
    stages[S2 + 14].before = lambda: g.wait_vm("h20")
    stages[S2 + 16].before = lambda: flag_check(g, 28, 23, sCNT, 0x70)
    if HB:
        hevent(P2 + 16 * 16 - 6, hloads(1, Q(2), "h12")); spread(hloads(2, Q(2), "h22"), P2 + 16 * 20, P2 + 16 * 22 - 2, urgent)
    else:
        spread(hloads(1, Q(2), "h12") + hloads(2, Q(2), "h22"), P2 + 16 * 16 - 5, P2 + 16 * 19, urgent)
    stages[S2 + 18].before = lambda: g.wait_vm("h21")
    stages[S2 + 20].before = lambda: g.wait_vm("h12")
    addu(P2 + 16 * 22, [lambda: flag_issue(g, 28, 23, sCNT)])
    stages[S2 + 24].before = lambda: (g.wait_vm("h22"), flag_check(g, 28, 23, sCNT, 0x100))
    addu(P2 + 16 * 24 - 5, hloads(3, range(5), "oL"))
    stages[S2 + 27].before = lambda: g.wait_vm("oL")
    C0 = P2 + 16 * 27
    FUSE = opt.get("fuse", 1)
    sFL, sFW, sPL, sCOL, sRS = 64, 65, 66, 67, 68
    if FUSE:
        a2 = Asm(); srd(a2, SW1, 78, 79, PSZ)
        fin = [l.strip() for l in a2.lines]
        fin += ["s_mul_i32 s95, s%d, 3" % sR, "s_add_u32 s95, s95, s%d" % sI, "s_lshl_b32 s%d, s95, 7" % sFL, "s_add_u32 s%d, s%d, 0x%x" % (sFL, sFL, WS_FLG + 72 * 128),
                "s_lshl_b32 s%d, s%d, 2" % (sFW, sJ), "s_add_u32 s%d, s%d, s%d" % (sFW, sFW, sFL),
                "s_mul_i32 s95, s%d, %d" % (sJ, PSZ), "s_sub_u32 s%d, s%d, s95" % (sPL, sST),
                "s_lshr_b32 s95, s%d, 1" % sJ, "s_lshl_b32 s95, s95, 11", "s_add_u32 s%d, s%d, s95" % (sPL, sPL),
                "s_and_b32 s95, s%d, 1" % sJ, "s_lshl_b32 s95, s95, 7", "s_add_u32 s%d, s%d, s95" % (sPL, sPL),
                "v_and_b32 v248, 0x37, v0", "v_lshlrev_b32 v248, 4, v248", "v_bfe_u32 v175, v0, 3, 1", "v_lshl_add_u32 v248, v175, 10, v248",
                "s_mul_i32 s%d, s%d, 384" % (sCOL, sI),
                "s_lshl_b32 s95, s%d, 3" % sJ, "s_lshl_b32 s96, s%d, 5" % sW, "s_add_u32 s95, s95, s96",
                "v_and_b32 v173, 7, v0", "v_add_u32 v173, s95, v173", "v_lshlrev_b32 v174, 2, v173",
                "s_lshl_b32 s96, s%d, 7" % sR, "v_add_u32 v173, s96, v173", "v_mul_u32_u24 v173, 1152, v173", "v_lshl_add_u32 v173, v175, 6, v173",
                "v_bfe_u32 v175, v0, 4, 1", "v_lshl_add_u32 v173, v175, 5, v173", "v_lshrrev_b32 v175, 5, v0", "v_lshl_add_u32 v173, v175, 4, v173",
                "s_lshl_b32 s96, s%d, 2" % sR, "s_add_u32 s96, s96, s%d" % sJ, "s_lshl_b32 s%d, s96, 9" % sRS, "s_add_u32 s%d, s%d, 0x%x" % (sRS, sRS, WS_RS2),
                "s_mov_b32 s70, 0x3f80", "s_mov_b32 s71, 0x3f800000"]
        fin += ["v_mov_b32 v%d, 0" % (224 + i) for i in range(24)]
        addu(P2 + 16 * 27 + 2, [("buffer_load_dwordx4 %s, v173, s[%d:%d], s%d offen offset:%d" % (vr(160 + 4 * cg, 4), SX, SX + 3, sCOL, cg * 128), "fx") for cg in range(3)])
        if opt.get("fpre", 1): fin.append(flag_load(31, 23, sFL))
        add(P2 + 16 * 11, fin + [Mark("fin")])
        addu(P2 + 16 * 24 - 5, [("buffer_load_dword v172, v174, s[%d:%d], s%d offen sc1" % (SWS, SWS + 3, sRS), "rs")])
    for cg in range(2): add(C0 + 20 * (cg + 1) + 3, store_ops(g, 32 + 32 * cg, PK + 0, cg, VST))
    if opt.get("ts") or opt.get("amp") is not None:
        for k in (144, 288, 432, 576, 720, P2, P2 + 144, P2 + 288, C0): addu(k, [g.stamp])
    groups = sorted(set(list(range(0, S2 + 25, 2)) + list(range(0, opt.get('be1', 0))))) + [S2 + 27, S2 + 29, S2 + 31]
    pipe.run(0, len(stages), extra, pauses=pauses, groups=groups, urgent=urgent)
    w = pipe.when
    if opt.get("verbose"): print(w)
    assert w["xc"] < 142 and w["flo"] < 288 + 100 and all(w["epi%d" % r] < 144 * (r + 2) - 1 for r in range(5)), w
    assert w["epi5a"] < P2 + G2C2 - 1 and w["epi5"] < P2 + 96 - 1, w
    g.stamp()
    e("s_nop 7")
    for t in store_ops(g, 96, PK, 2, VST): e(t)
    if FUSE:
        assert w["fin"] < P2 + 16 * 23
        e("s_waitcnt vmcnt(0)"); e("s_barrier")
        signal(g, 28, 24, sFW, 0)
        g.stamp()
        flag_check(g, 28, 23, sFL, 0xf, issued=False, sleep=1)
        e("s_barrier")
        g.stamp()
        for p in range(4):
            for cg in range(3):
                if cg: e("s_add_u32 s95, s%d, %d" % (sPL, p * PSZ + cg * 4096))
                elif p: e("s_add_u32 s95, s%d, %d" % (sPL, p * PSZ))
                e("buffer_load_dwordx4 %s, v%d, s[%d:%d], s%d offen sc1" % (vr(176 + 4 * (p * 3 + cg), 4), 248, SWS, SWS + 3, 95 if p or cg else sPL), ("pl", p))
        for p in range(4):
            g.wait_vm(("pl", p))
            for cg in range(3):
                for i in range(4):
                    e("v_dot2c_f32_bf16 v%d, s70, v%d" % (224 + 8 * cg + 2 * i, 176 + 4 * (p * 3 + cg) + i))
                    e("v_dot2c_f32_bf16 v%d, s71, v%d" % (225 + 8 * cg + 2 * i, 176 + 4 * (p * 3 + cg) + i))
        e("s_nop 2")
        for cg in range(3):
            A = 224 + 8 * cg
            for i in range(4): e("v_permlane16_swap_b32 v%d, v%d" % (A + i, A + 4 + i))
            for i in range(4):
                e("v_lshlrev_b32 v176, 16, v%d" % (160 + 4 * cg + i))
                e("v_and_b32 v177, 0xffff0000, v%d" % (160 + 4 * cg + i))
                e("v_fma_f32 v176, v%d, v172, v176" % (A + 2 * i))
                e("v_fma_f32 v177, v%d, v172, v177" % (A + 2 * i + 1))
                e("v_cvt_pk_bf16_f32 v%d, v176, v177" % (180 + 4 * cg + i))
            e("buffer_store_dwordx4 %s, v173, s[%d:%d], s%d offen offset:%d %s" % (vr(180 + 4 * cg, 4), SW1, SW1 + 3, sCOL, cg * 128, opt.get("oflags", "nt")))
    if opt.get("ts") or opt.get("amp") is not None:
        e("s_waitcnt vmcnt(0)"); g.stamp()

def k1(g):
    e, opt = g.e, g.opt
    kernel_head(g, K1)
    e("s_getpc_b64 s[84:85]")
    e("s_cmp_ge_u32 s2, 256")
    e("s_cbranch_scc1 L_k1_end")
    e("s_load_dwordx8 s[64:71], s[0:1], 0")
    e("s_load_dwordx4 s[72:75], s[0:1], 40")
    e("s_load_dwordx4 s[76:79], s[0:1], 56")
    e("s_load_dwordx4 s[80:83], s[0:1], 72")
    if opt.get("vpf", 1):
        e("s_lshr_b32 s3, s2, 3")
        e("s_lshl_b32 s3, s3, 12")
        e("v_lshrrev_b32 v2, 3, v0")
        e("v_lshlrev_b32 v2, 7, v2")
        e("v_add_u32 v2, s3, v2")
        e("v_min_u32 v2, L_k1_end-%s, v2" % K1)
        e("global_load_dword v255, v2, s[84:85]")
    e("v_lshrrev_b32 v1, 6, v0")
    e("v_and_b32 v0, 63, v0")
    e("v_readfirstlane_b32 s%d, v1" % sW)
    lane_consts(g)
    e("s_and_b32 s%d, s2, 1" % sR)
    e("s_lshl_b32 s%d, s%d, 3" % (sR, sR))
    e("s_bfe_u32 s%d, s2, 0x30003" % sT)
    e("s_or_b32 s%d, s%d, s%d" % (sR, sR, sT))
    e("s_bfe_u32 s%d, s2, 0x20001" % sS)
    e("s_lshr_b32 s3, s2, 6")
    if opt.get("ts"):
        e("s_lshl_b32 s94, s2, 2"); e("s_add_u32 s94, s94, s%d" % sW); e("s_lshl_b32 s94, s94, 8"); e("s_add_u32 s94, s94, 0x%x" % WS_TS)
        if opt.get("dbgts") is not None:
            e("s_lshl_b32 s94, s2, 2"); e("s_add_u32 s94, s94, s%d" % sW); e("s_cmp_eq_u32 s94, %d" % (4 * opt["dbgts"])); e("s_cselect_b32 s94, 0, 0x10000")
    x_setup(g)
    e("s_mov_b32 s%d, 0x%x" % (SX + 2, PSZ))
    e("s_mov_b32 s%d, 0x20000" % (SX + 3))
    e("s_waitcnt lgkmcnt(0)")
    e("s_mov_b32 s%d, s64" % SX)
    e("s_and_b32 s%d, s65, 0xffff" % (SX + 1))
    if opt.get("ts") or opt.get("amp") is not None:
        srd(g, SWS, 82, 83, WS_BYTES); srd(g, SDBG, 80, 81, 256); g.stamp()
    for o in range(opt.get("xcommon", 2)):
        for j in range(9): x_dma(g, o, j)
    wb = opt.get("wsbase", 0)
    if wb:
        e("s_add_u32 s82, s82, 0x%x" % wb); e("s_addc_u32 s83, s83, 0")
    srd(g, SWS, 82, 83, WS_BYTES - wb)
    srd(g, SDBG, 80, 81, 256)
    e("s_or_b32 s%d, s2, s%d" % (sT, sW))
    e("s_cbranch_scc1 L_nonce_done")
    e("s_memrealtime s[98:99]")
    e("s_waitcnt lgkmcnt(0)")
    e("v_mov_b32 v2, s98")
    e("v_or_b32 v2, 1, v2")
    Asm.e(g, "buffer_store_dword v2, off, s[%d:%d], 0 sc1" % (SDBG, SDBG + 3))
    g.label("L_nonce_done")
    e("s_cmp_eq_u32 s3, 0")
    e("s_cbranch_scc1 %s" % ("L_k1_end" if opt.get("noatt") else "L_att"))
    sv = (list(g.vm), list(g.lg), g.nts)
    ffn_role(g)
    def amp(role):
        if opt.get("amp") is None or opt.get("amprole", "ffn") != role: return
        L = g.newlabel("L_amp")
        e("s_sub_u32 s101, s101, s100")
        e("s_add_u32 s101, s101, %d" % opt.get("ampadd", 0))
        if role == "ffn":
            e("s_memrealtime s[92:93]"); e("s_waitcnt lgkmcnt(0)"); e("s_mov_b32 s100, s92")
        g.label(L)
        e("s_sleep 1"); e("s_memrealtime s[92:93]"); e("s_waitcnt lgkmcnt(0)")
        e("s_sub_u32 s92, s92, s100"); e("s_cmp_lt_u32 s92, s101"); e("s_cbranch_scc1 %s" % L)
    amp("ffn")
    e("s_endpgm")
    g.vm, g.lg, g.nts = sv
    g.raw(".p2align 6")
    g.label("L_att")
    import att
    att.att_role(g)
    amp("att")
    g.label("L_k1_end")
    e("s_endpgm")

def k2(g):
    e, opt = g.e, g.opt
    g.vm = []; g.lg = []
    kernel_head(g, K2)
    lf = opt.get("k2flags", "")
    e("s_cmp_ge_u32 s2, 256")
    e("s_cbranch_scc1 L_k2_end")
    if opt.get("ts"): e("s_memrealtime s[32:33]")
    e("s_load_dwordx2 s[4:5], s[0:1], 0")
    e("s_load_dwordx2 s[6:7], s[0:1], 64")
    e("s_load_dwordx2 s[24:25], s[0:1], 80")
    e("v_lshrrev_b32 v1, 6, v0")
    e("v_and_b32 v0, 63, v0")
    e("v_readfirstlane_b32 s3, v1")
    e("s_mul_i32 s26, s2, 9")
    e("s_add_u32 s26, s26, s3")
    e("s_lshl_b32 s27, s26, 10")
    e("v_lshlrev_b32 v1, 4, v0")
    e("s_waitcnt lgkmcnt(0)")
    wb = opt.get("wsbase", 0)
    if wb:
        e("s_add_u32 s24, s24, 0x%x" % wb); e("s_addc_u32 s25, s25, 0")
    srd(g, 16, 24, 25, WS_BYTES - wb)
    for p in range(4):
        e("buffer_load_dwordx4 %s, v1, s[16:19], s27 offen %s" % (vr(16 + 4 * p, 4), lf), ("p", p))
        if p < 3: e("s_add_u32 s27, s27, %d" % PSZ)
    srd(g, 8, 4, 5, PSZ)
    srd(g, 12, 6, 7, PSZ)
    e("s_lshr_b32 s28, s26, 2")
    e("s_mul_i32 s29, s28, 7282")
    e("s_lshr_b32 s29, s29, 16")
    e("s_mul_i32 s30, s29, 9")
    e("s_sub_u32 s30, s28, s30")
    e("s_lshl_b32 s29, s29, 5")
    e("s_bfe_u32 s31, s26, 0x10001")
    e("s_lshl_b32 s31, s31, 4")
    e("s_add_u32 s29, s29, s31")
    e("s_lshl_b32 s30, s30, 7")
    e("s_and_b32 s31, s26, 1")
    e("s_lshl_b32 s31, s31, 6")
    e("s_add_u32 s30, s30, s31")
    e("v_and_b32 v2, 15, v0")
    e("v_add_u32 v2, s29, v2")
    e("v_and_b32 v3, 127, v2")
    e("v_lshlrev_b32 v3, 2, v3")
    e("s_lshr_b32 s31, s29, 7")
    e("s_lshl_b32 s31, s31, 11")
    e("s_add_u32 s31, s31, 0x%x" % WS_RS2)
    e("buffer_load_dword v5, v3, s[16:19], s31 offen", "rs")
    e("v_mul_u32_u24 v2, 1152, v2")
    e("v_bfe_u32 v3, v0, 4, 1")
    e("v_lshl_add_u32 v2, v3, 5, v2")
    e("v_lshrrev_b32 v3, 5, v0")
    e("v_lshl_add_u32 v2, v3, 4, v2")
    e("buffer_load_dwordx4 v[12:15], v2, s[8:11], s30 offen", "x")
    e("s_mov_b32 s20, 0x3f80")
    e("s_mov_b32 s21, 0x3f800000")
    for i in range(8): e("v_mov_b32 v%d, 0" % (80 + i))
    for p in range(4):
        g.wait_vm(("p", p))
        acc = 80
        for i in range(4):
            e("v_dot2c_f32_bf16 v%d, s20, v%d" % (acc + 2 * i, 16 + 4 * p + i))
            e("v_dot2c_f32_bf16 v%d, s21, v%d" % (acc + 2 * i + 1, 16 + 4 * p + i))
    e("s_waitcnt vmcnt(0)")
    e("s_nop 2")
    for i in range(8): e("v_mul_f32 v%d, v%d, v5" % (80 + i, 80 + i))
    e("s_nop 1")
    for i in range(4): e("v_permlane16_swap_b32 v%d, v%d" % (80 + i, 84 + i))
    for i in range(4):
        e("v_lshlrev_b32 v6, 16, v%d" % (12 + i))
        e("v_and_b32 v7, 0xffff0000, v%d" % (12 + i))
        e("v_add_f32 v%d, v%d, v6" % (80 + 2 * i, 80 + 2 * i))
        e("v_add_f32 v%d, v%d, v7" % (81 + 2 * i, 81 + 2 * i))
        e("v_cvt_pk_bf16_f32 v%d, v%d, v%d" % (8 + i, 80 + 2 * i, 81 + 2 * i))
    e("buffer_store_dwordx4 v[8:11], v2, s[12:15], s30 offen")
    if opt.get("ts"):
        e("s_waitcnt vmcnt(0)"); e("s_memrealtime s[34:35]"); e("s_waitcnt lgkmcnt(0)")
        e("v_mov_b32 v30, s32"); e("v_mov_b32 v31, s34"); e("v_mov_b32 v29, 0")
        e("s_lshl_b32 s26, s26, 3"); e("s_add_u32 s26, s26, 0x%x" % (WS_TS + 0x100000))
        e("buffer_store_dwordx2 v[30:31], v29, s[16:19], s26 offen")
    g.label("L_k2_end")
    e("s_endpgm")

VOP3ONLY = ("v_mfma", "v_pk_", "v_fma_f32", "v_cvt_pk_bf16", "v_accvgpr_read", "v_accvgpr_write", "v_max3", "v_min3", "v_lshl_add", "v_add_lshl", "v_mad_u32",
            "v_bfe", "v_add3", "v_mul_lo", "v_mul_hi", "v_lshl_or", "v_and_or", "v_readlane", "v_perm_b32")
NOWIDE = ("v_readfirstlane", "v_permlane", "v_dot2c", "v_nop")
def has_lit(s):
    for t in re.split(r"[ ,]+", s)[1:]:
        if re.match(r"^-?(0x[0-9a-f]+|\d+)$", t):
            v = int(t, 0)
            if not (-16 <= v <= 64) and v not in (0x3f800000, 0x3f000000, 0x40000000, 0x40800000, 0xbf800000, 0xbf000000, 0xc0000000, 0xc0800000): return True
        if t.startswith("L_"): return not s.startswith(("s_cbranch", "s_branch"))
    return False
def isize(s):
    op = s.split()[0]
    if op.startswith(("ds_", "buffer_", "global_", "s_load", "s_mem")): return 8, False
    if op.startswith("s_"):
        if op.startswith(("s_waitcnt", "s_addk", "s_mulk", "s_nop", "s_barrier", "s_sleep", "s_endpgm", "s_cbranch", "s_branch", "s_setprio", "s_getreg")): return 4, False
        return (8 if has_lit(s) else 4), False
    if op.startswith(VOP3ONLY): return 8, False
    if has_lit(s): return 8, False
    ops = [x.strip() for x in re.split(r",(?![^\[]*\])", s.split(None, 1)[1])]
    if op.startswith("v_cmp") and ops[0] != "vcc": return 8, False
    if op.startswith("v_cndmask") and ops[-1] != "vcc": return 8, False
    if len(ops) >= 3 and not ops[2].startswith("v"): return 8, False
    return 4, not op.startswith(NOWIDE)
def align_pass(lines, minrun=4):
    ins = [l.strip() for l in lines]
    out = []; par = 0
    isins = lambda l: l and not l.endswith(":") and not l.startswith((".", ";"))
    n = len(ins)
    def nxt(i):
        i += 1
        while i < n and not isins(ins[i]):
            if ins[i].startswith(".p2align"): return None
            i += 1
        return i if i < n else None
    for i, l in enumerate(ins):
        if not isins(l):
            if l.startswith(".p2align"): par = 0
            out.append(l); continue
        sz, flex = isize(l)
        if sz == 8: out.append(l); continue
        if par == 1: out.append(l); par = 0; continue
        j = nxt(i)
        if j is None or isize(ins[j])[0] == 4: out.append(l); par = 1; continue
        if flex:
            op, rest = l.split(None, 1); out.append(op + "_e64 " + rest); continue
        run = 0
        while j is not None and isize(ins[j])[0] == 8 and run < minrun: run += 1; j = nxt(j)
        out.append(l)
        if run >= minrun and not l.startswith(("s_branch", "s_endpgm")): out.append("s_nop 0")
        else: par = 1
    return out

LABELS = {}
def resolve(lines):
    off = 0; LABELS.clear()
    for l in lines:
        l = l.strip()
        if l.endswith(":"): LABELS[l[:-1]] = off
        elif l.startswith(".p2align"):
            a = 1 << int(l.split()[1]); off = (off + a - 1) // a * a
        elif l and not l.startswith((".", ";")):
            off += 8 if l.split()[0].endswith("_e64") else isize(l)[0]
    end = LABELS["L_k1_end"]
    def f(m):
        span = 2048 if LABELS[m.group(1)] >= LABELS["L_att"] else 6144
        return "0x%x" % (min(LABELS[m.group(1)] + int(m.group(2)), end - span) & ~3)
    return [re.sub(r"@(\w+)\+(\d+)", f, l) if l.strip().startswith("s_load") else l for l in lines]

MACROS = """.macro MA d,a,b
v_mfma_f32_16x16x32_bf16 v[\\d:\\d+3], a[\\a:\\a+3], a[\\b:\\b+3], v[\\d:\\d+3]
.endm
.macro MV d,a,b
v_mfma_f32_16x16x32_bf16 v[\\d:\\d+3], a[\\a:\\a+3], v[\\b:\\b+3], v[\\d:\\d+3]
.endm
.macro RT d,b,o
ds_read_b64_tr_b16 a[\\d:\\d+1], v\\b offset:\\o
.endm
.macro WL n
s_waitcnt lgkmcnt(\\n)
.endm
.macro CV d,a,b
v_cvt_pk_bf16_f32 v\\d, v\\a, v\\b
.endm
"""
def compress(line):
    s = line.strip()
    m = re.match(r"v_mfma_f32_16x16x32_bf16 v\[(\d+):\d+\], a\[(\d+):\d+\], ([av])\[(\d+):\d+\], v\[(\d+):\d+\]$", s)
    if m and m.group(1) == m.group(5): return "M%s %s,%s,%s" % (m.group(3).upper(), m.group(1), m.group(2), m.group(4))
    m = re.match(r"ds_read_b64_tr_b16 a\[(\d+):\d+\], v(\d+) offset:(\d+)$", s)
    if m: return "RT %s,%s,%s" % m.groups()
    m = re.match(r"s_waitcnt lgkmcnt\((\d+)\)$", s)
    if m: return "WL %s" % m.group(1)
    m = re.match(r"v_cvt_pk_bf16_f32 v(\d+), v(\d+), v(\d+)$", s)
    if m: return "CV %s,%s,%s" % m.groups()
    return s

def gen(**opt):
    g = G(opt)
    k1(g)
    FUSE = opt.get("fuse", 1)
    if not FUSE: k2(g)
    errs = hazard.check(g.lines)
    if errs:
        print("\n".join(errs[:40])); raise SystemExit("hazards: %d" % len(errs))
    head = open("cdna_kernels/%s.s.ref" % BASE).read().split("; Override launch")[0] if not opt.get("nohead") else ""
    out = head
    if FUSE: out += "; @launch grid=(256,1,1) block=(256,1,1) lds=163840\n"
    else: out += "; @launch kernel=%s grid=(256,1,1) block=(256,1,1) lds=163840\n" % K1
    if not FUSE: out += "; @launch kernel=%s grid=(256,1,1) block=(576,1,1) lds=0\n" % K2
    out += '.amdgcn_target "amdgcn-amd-amdhsa--gfx950"\n.text\n' + MACROS
    lines = align_pass(g.lines, opt.get("minrun", 4)) if opt.get("align", 1) else g.lines
    lines = resolve(lines)
    out += "\n".join(compress(l) for l in lines) + "\n"
    out += '.section .rodata,"a"\n' + kernel_desc(K1, 512, 256) + ("" if FUSE else kernel_desc(K2, 96, 96, 40))
    return out

if __name__ == "__main__":
    kw = json.loads(sys.argv[2]) if len(sys.argv) > 2 else {}
    open(sys.argv[1], "w").write(gen(**kw))
```

```python
import sys, re, json
from asmlib import *
import hazard
BASE = "parallel_sum__linear_kernel_hedgehog__glu_gated_reglu__prompt"
K1 = BASE + "_kernel"
K2 = "reduce_kernel"

PSZ = 2048 * 576 * 2
WS_HX = 0x1000000
WS_OX = 0x2200000
WS_RS2 = 0x2500000
WS_KVP = 0x2510000
WS_KVF = 0x2700000
WS_FLG = 0x2780000
WS_TS = 0x2800000
WS_BYTES = 0x10000000
SX, SW1, SW2, SWS, SDBG, SPHI = 8, 12, 16, 20, 24, 28
sW, sR, sS, sT, sOFF, sM0W, sB1, sB2, sST, sT2 = 32, 33, 34, 35, 36, 37, 38, 39, 40, 41
sCNT = 52
OOB = 0x40000000
RING = 144
NB = 8

class G(Asm):
    def __init__(self, opt):
        super().__init__()
        self.opt = opt
        self.vm = []
        self.lg = []
        self.nts = 0
    def e(self, s, tag=None):
        if s.startswith(("buffer_", "global_")): self.vm.append(tag)
        if s.startswith("ds_"): self.lg.append(tag)
        super().e(s)
    def vm_n(self, tag):
        idx = [i for i, t in enumerate(self.vm) if t == tag]
        assert idx, tag
        return len(self.vm) - 1 - idx[-1]
    def wait_vm(self, tag):
        n = min(self.vm_n(tag), 63)
        self.e("s_waitcnt vmcnt(%d)" % n)
    def wait_lg(self, tag):
        idx = [i for i, t in enumerate(self.lg) if t == tag]
        n = min(len(self.lg) - 1 - idx[-1], 15)
        self.e("s_waitcnt lgkmcnt(%d)" % n)
    def stamp(self):
        e = self.e
        if self.opt.get("amp") is not None:
            if self.nts in (0, self.opt["amp"]):
                e("s_memrealtime s[92:93]"); e("s_waitcnt lgkmcnt(0)")
                e("s_mov_b32 s%d, s92" % (100 if self.nts == 0 else 101))
            self.nts += 1
            return
        if not self.opt.get("ts"): return
        e("s_memtime s[90:91]"); e("s_memrealtime s[92:93]")
        e("s_waitcnt lgkmcnt(0)")
        if self.opt.get("dbgts") is not None:
            sel = self.opt.get("dbgsel", list(range(15)))
            if self.nts in sel:
                e("v_mov_b32 v30, s92")
                e("buffer_store_dword v30, off, s[%d:%d], s94 offset:%d" % (SDBG, SDBG + 3, 4 + 4 * sel.index(self.nts)))
            self.nts += 1
            return
        for k, sg in enumerate((90, 92)):
            e("v_mov_b32 v30, s%d" % sg)
            e("buffer_store_dword v30, off, s[%d:%d], s94 offset:%d" % (SWS, SWS + 3, 8 * self.nts + 4 * k))
        self.nts += 1

def mfma(d, a, b, c=None):
    return "v_mfma_f32_16x16x32_bf16 %s, %s, %s, %s" % (d, a, b, d if c is None else c)

class Stage:
    def __init__(self, lo, hi, pre, dmas, frags, gate=None):
        dmas = [d if isinstance(d, list) else [d] for d in dmas]
        dmas[0] = list(pre) + dmas[0]
        self.lo, self.hi, self.dmas, self.frags, self.gate = lo, hi, dmas, frags, gate
        self.before = None; self.after = None

class Pipe:
    def __init__(self, g, stages, D=6, BE=1):
        self.g, self.st, self.D, self.BE = g, stages, D, BE
        self.next = 0
        self.safe = -1
        self.q = []
        self.open = set()
        self.fi = 0
        self.done = -1
        self.qthr = g.opt.get("qthr", 3)
        self.when = {}
    def can(self, m):
        s = self.st[m]
        if s.gate is not None and s.gate not in self.open: return False
        return all(k <= self.safe for k in range(m) if self.st[k].lo < s.hi and s.lo < self.st[k].hi)
    def refill(self):
        while self.next < len(self.st) and self.can(self.next):
            for d in self.st[self.next].dmas: self.q.append([list(d), ("st", self.next)])
            self.next += 1
    def pop(self):
        if not self.q: return []
        t, tag = self.q.pop(0)
        return [(x, tag) for x in t]
    def flush(self):
        while self.q:
            for t, tag in self.pop(): self.g.e(t, tag)
    def enter(self, n, last, hook=None):
        g = self.g
        late = 0
        while any(tag[1] <= last for _, tag in self.q):
            late += 1
            for t, tg in self.pop(): g.e(t, tg)
        if late and n > 2: print("warning: %d DMA issued late for stage %d" % (late, n))
        assert self.next > last, (n, last)
        for k in range(n, last + 1):
            if self.st[k].before: self.st[k].before()
        if hook and hook.before: hook.before()
        g.wait_vm(("st", last)); g.e("s_barrier")
        if hook and hook.after: hook.after()
        for k in range(n, last + 1):
            if self.st[k].after: self.st[k].after()
        self.safe = max(self.safe, self.done)
        self.refill()
    def run(self, s0, s1, extra=None, pauses=(), groups=None, urgent=None, lagok=True):
        g, D = self.g, self.D
        WP = g.opt.get("wp", 4)
        pend = []; urg = []; urgent = urgent or {}; cur = [0]; dens = [0]
        extra = extra or {}
        fl = [(n, k, f) for n in range(s0, s1) for k, f in enumerate(self.st[n].frags)]
        if groups is None: groups = list(range(s0, s1, self.BE))
        gend = {a: (groups[i + 1] if i + 1 < len(groups) else s1) - 1 for i, a in enumerate(groups)}
        base = self.fi
        needbar = lambda j: j < len(fl) and fl[j][1] == 0 and fl[j][0] in gend
        def reads(j):
            buf = RING + 4 * ((base + j) % NB)
            for t in fl[j][2][0](buf): g.e(t, ("fr", base + j))
        def wl(i):
            w = min(i + WP - 1, len(fl) - 1)
            g.wait_lg(("fr", base + w))
            self.done = max(self.done, fl[w][0] if fl[w][1] == len(self.st[fl[w][0]].frags) - 1 else fl[w][0] - 1)
        def cost(it):
            if isinstance(it, (Mark, Dens)): return 0
            if isinstance(it, Hook): return 99
            if isinstance(it, Delay):
                if it.until is None: it.until = cur[0] + it.n
                return 0 if cur[0] >= it.until else 99
            if callable(it): return getattr(it, "cost", 2)
            if isinstance(it, list): return min(len(it), 2)
            t = it[0] if isinstance(it, tuple) else it
            return 2 if t.startswith(("buffer_", "global_", "v_mfma", "v_exp", "v_rcp")) else 1
        def emit(it, i):
            if isinstance(it, Mark): self.when[it.name] = i
            elif isinstance(it, Dens): dens[0] = it.n
            elif isinstance(it, Delay):
                if i >= len(fl): g.e("s_nop 7")
            elif isinstance(it, Hook):
                if it.before: it.before()
                g.e("s_barrier")
                if it.after: it.after()
            elif callable(it): it()
            elif isinstance(it, list):
                for x in it: g.e(x)
            elif isinstance(it, tuple): g.e(it[0], it[1])
            else: g.e(it)
        for j in range(min(D, len(fl))):
            if needbar(j): self.enter(fl[j][0], gend[fl[j][0]])
            reads(j)
        if needbar(D): self.enter(fl[D][0], gend[fl[D][0]])
        wl(0)
        since = 9
        for i, (n, k, f) in enumerate(fl):
            ms = f[1](RING + 4 * ((base + i) % NB))
            g.e(ms[0])
            if i + D < len(fl): reads(i + D)
            g.e(ms[1])
            pend += [(i, x) for x in extra.get(i, [])]; urg += urgent.get(i, [])
            since += 1; cur[0] = i
            wdue = (i + 1) % WP == 0 and i + 1 < len(fl)
            if needbar(i + 1 + D):
                if wdue: wl(i + 1)
                hook = pend.pop(0)[1] if pend and isinstance(pend[0][1], Hook) else None
                self.enter(fl[i + 1 + D][0], gend[fl[i + 1 + D][0]], hook)
                continue
            paused = any(a <= i < b for a, b in pauses)
            if urg and not wdue:
                slots = 2
                while urg and cost(urg[0]) <= slots:
                    it = urg.pop(0); slots -= cost(it); emit(it, i)
                continue
            used = False
            if self.q and len(self.q[0][0]) > 1:
                if wdue: wl(i + 1)
                while len(self.q[0][0]) > 1: g.e(self.q[0][0].pop(0))
                used = True
            elif self.q and not wdue and not paused and since >= (2 if len(self.q) > self.qthr else self.g.opt.get("dcad", 3)):
                it = self.q.pop(0); g.e(it[0][0], it[1]); since = 0
                used = True
            if used and not dens[0]: continue
            slots = 0 if used else 2
            if wdue and not used: wl(i + 1); slots = 1
            if dens[0]: slots += dens[0]
            elif lagok and pend and i - pend[0][0] > g.opt.get("lag", 30): slots += 1
            while pend and cost(pend[0][1]) <= slots:
                it = pend.pop(0)[1]; slots -= cost(it); emit(it, i)
        for it in urg + [x[1] for x in pend]: emit(it, len(fl))
        self.fi = base + len(fl)
    def drained(self, upto):
        self.safe = max(self.safe, upto); self.refill()

class Mark:
    def __init__(self, name): self.name = name
class Hook:
    def __init__(self, before=None, after=None): self.before, self.after = before, after
class Delay:
    def __init__(self, n): self.n = n; self.until = None
class Dens:
    def __init__(self, n): self.n = n

def group_scc(ops):
    out = []
    for op in ops:
        if isinstance(op, str) and op.startswith("s_cselect"): out[-1] = [out[-1], op]
        else: out.append(op)
    return out

def spread(ops, lo, hi, extra):
    ops = group_scc(ops); n = hi - lo
    for k, op in enumerate(ops):
        extra.setdefault(lo + k * n // len(ops), []).append(op)

def lane_consts(g):
    e = g.e
    e("v_lshrrev_b32 v22, 4, v0")
    e("v_and_b32 v23, 15, v0")

def x_setup(g):
    e = g.e
    e("v_lshrrev_b32 v104, 3, v0")
    e("v_mul_u32_u24 v104, 1152, v104")
    e("v_and_b32 v105, 7, v0")
    e("v_xor_b32 v105, v105, v22")
    e("v_lshl_add_u32 v104, v105, 4, v104")
    e("s_lshl_b32 s4, s%d, 2" % sR)
    e("s_add_u32 s4, s4, s%d" % sW)
    e("s_mul_i32 s4, s4, 36864")
    e("s_mul_i32 s5, s%d, 36864" % sW)
    e("s_lshr_b32 s60, s2, 6")
    e("s_and_b32 s6, s2, 64")
    e("v_xor_b32 v104, s6, v104")
    e("v_xor_b32 v105, 64, v104")

def x_dma(g, o, j):
    e = g.e
    if j == 0:
        e("s_add_u32 s6, s60, %d" % o)
        e("s_and_b32 s6, s6, 3")
        e("s_mulk_i32 s6, 9216")
        e("s_add_u32 m0, s5, s6")
        e("s_add_u32 s7, s4, s6")
    else:
        e("s_addk_i32 m0, 1024")
        e("s_addk_i32 s7, 128")
    e("buffer_load_dwordx4 v%d, s[%d:%d], s7 offen %s lds" % (104 + (o & 1), SX, SX + 3, g.opt.get("xflags", "")), ("x", j))

def prologue(g, pipe, XV=112, early=None, afterbar=None, fill=(), var=False, nfirst=8, mid=None):
    e, opt = g.e, g.opt
    xf = opt.get("xflags", "")
    NC = opt.get("xcommon", 1)
    nf = 9 * (4 - NC)
    for o in range(NC, 4):
        for j in range(9):
            x_dma(g, o, j)
            k = (o - NC) * 9 + j
            if mid and o * 9 + j == mid[0]: mid[1]()
            for it in fill[k * len(fill) // nf:(k + 1) * len(fill) // nf]:
                for x in (it if isinstance(it, list) else [it]): e(x, "fill")
    if early: early()
    e("v_lshrrev_b32 v106, 3, v23")
    e("v_mul_u32_u24 v106, 9216, v106")
    e("v_and_b32 v107, 7, v23")
    e("v_lshl_add_u32 v106, v107, 7, v106")
    e("v_lshrrev_b32 v107, 1, v23")
    e("v_xor_b32 v107, v107, v22")
    e("v_lshl_add_u32 v106, v107, 4, v106")
    e("v_add_u32 v106, s5, v106")
    e("v_xor_b32 v107, 64, v106")
    for i in range(4): e("v_mov_b32 v%d, 0x3f803f80" % (80 + i))
    for i in (72, 73, 76, 77): e("v_mov_b32 v%d, 0" % i)
    e("v_lshrrev_b32 v108, 2, v23")
    e("v_cmp_eq_u32 vcc, v108, v22")
    e("v_and_b32 v108, 1, v23")
    e("v_lshlrev_b32 v108, 4, v108")
    e("v_mov_b32 v78, 0x3f80")
    e("v_lshlrev_b32 v78, v108, v78")
    e("v_cndmask_b32 v78, 0, v78, vcc")
    e("v_and_b32 v108, 2, v23")
    e("v_cmp_eq_u32 vcc, 0, v108")
    e("s_nop 1")
    e("v_cndmask_b32 v74, 0, v78, vcc")
    e("v_cndmask_b32 v75, v78, 0, vcc") if False else None
    e("v_sub_u32 v75, v78, v74")
    X = lambda tt, ks: XV + (ks * 2 + tt) * 4
    g.stamp()
    for j in range(10):
        if j < 9:
            g.wait_vm(("x", j))
            for ks in (2 * j, 2 * j + 1):
                for tt in range(2):
                    e("ds_read_b128 %s, v%d offset:%d" % (vr(X(tt, ks), 4), 106 + (ks & 1), tt * 18432 + j * 1024), ("xr", j))
        if j > 0:
            g.wait_lg(("xr", j - 1))
            for ks in (2 * j - 2, 2 * j - 1):
                for tt in range(2):
                    e(mfma(vr(64 + 4 * tt, 4), vr(80, 4), vr(X(tt, ks), 4), "0" if ks == 0 else None))
    e("s_barrier")
    g.stamp()
    pipe.open.add("x"); pipe.refill()
    for _ in range(nfirst):
        for t, tag in pipe.pop(): e(t, tag)
    if afterbar: afterbar()
    e("s_nop 3")
    e("s_mov_b32 s%d, 0x%08x" % (sT, 0xbae38e39))
    for i in range(8): e("v_mul_f32 v%d, s%d, v%d" % (64 + i, sT, 64 + i))
    e("s_nop 1")
    fr = [(tt, ks) for ks in range(18) for tt in range(2)]
    LAG = 2
    for k in range(len(fr) + LAG + 1):
        cv = []
        if LAG <= k < len(fr) + LAG:
            tt, ks = fr[k - LAG]; d = 32 + 8 * ((k - LAG) % 4); x = X(tt, ks)
            cv = ["v_cvt_pk_bf16_f32 v%d, v%d, v%d" % (x + i, d + 2 * i, d + 2 * i + 1) for i in range(4)]
        if k < len(fr):
            tt, ks = fr[k]; d = 32 + 8 * (k % 4)
            e(mfma(vr(d, 4), vr(74, 4), vr(X(tt, ks), 4), vr(64 + 4 * tt, 4)))
            if k == LAG: e("s_nop 3")
            for t in cv[:2]: e(t)
            e(mfma(vr(d + 4, 4), vr(72, 4), vr(X(tt, ks), 4), vr(64 + 4 * tt, 4)))
            for t in cv[2:]: e(t)
        else:
            e("s_nop 3")
            for t in cv: e(t)
        if var and k > LAG:
            tt, ks = fr[k - LAG - 1]; x = X(tt, ks)
            e(mfma(vr(96 + 4 * tt, 4), vr(x, 4), vr(x, 4), "0" if ks == 0 else None))
    g.stamp()

def XV0(tt, ks): return vr(112 + (ks * 2 + tt) * 4, 4)
def xc_copies(): return ["v_accvgpr_write_b32 a%d, v%d" % (i, 112 + i) for i in range(144)]
def XC(tt, ks): return ar((ks * 2 + tt) * 4, 4)

def tr_bases(g, dst, rowmul):
    e = g.e
    out = []
    out.append("v_bfe_u32 v28, v0, 2, 2")
    out.append("v_mad_u32_u24 v28, v22, %d, v28" % rowmul)
    out.append("v_lshlrev_b32 v%d, 7, v28" % dst)
    out.append("v_bfe_u32 v28, v0, 3, 2")
    out.append("v_lshl_add_u32 v%d, v28, 5, v%d" % (dst, dst))
    out.append("v_and_b32 v28, 3, v0")
    out.append("v_lshl_add_u32 v%d, v28, 3, v%d" % (dst, dst))
    for t in range(1, 4): out.append("v_xor_b32 v%d, %d, v%d" % (dst + t, 32 * t, dst))
    for grp in (1, 2):
        for t in range(4): out.append("v_add_u32 v%d, 0x%x, v%d" % (dst + 4 * grp + t, grp << 16, dst + t))
    return out

def tr_reads(bases, t, off, second):
    def f(buf):
        o2 = off + second
        assert (off >> 16) == (o2 >> 16)
        b = bases + 4 * (off >> 16) + t
        return ["ds_read_b64_tr_b16 %s, v%d offset:%d" % (ar(buf, 2), b, off & 0xffff),
                "ds_read_b64_tr_b16 %s, v%d offset:%d" % (ar(buf + 2, 2), b, o2 & 0xffff)]
    return f

def store_ops(g, acc, P, c, voff, sbase=None, ntile=4, tag=None):
    ops = ["s_add_u32 s%d, s%d, %d" % (sT2, sST if sbase is None else sbase, c * 4096)]
    for tt in range(2):
        for hf in range(ntile // 2):
            p = P + ((tt * (ntile // 2) + hf) % 2) * 4
            for k in range(2):
                s = acc + ((2 * hf + k) * 2 + tt) * 4
                ops.append("v_cvt_pk_bf16_f32 v%d, v%d, v%d" % (p + 2 * k, s, s + 1))
                ops.append("v_cvt_pk_bf16_f32 v%d, v%d, v%d" % (p + 2 * k + 1, s + 2, s + 3))
            ops.append(("buffer_store_dwordx4 %s, v%d, s[%d:%d], s%d offen offset:%d sc1" % (vr(p, 4), voff, SWS, SWS + 3, sT2, (tt * 2 + hf) * 1024), tag))
    return ops

sNON = 97
def flag_load(vreg, vfl, sline):
    if sline is None: return "buffer_load_dword v%d, v%d, s[%d:%d], 0 offen sc1" % (vreg, vfl, SDBG, SDBG + 3)
    return "buffer_load_dword v%d, v%d, s[%d:%d], s%d offen sc1" % (vreg, vfl, SWS, SWS + 3, sline)

def flag_issue(g, vreg, vfl, sline):
    g.e(flag_load(vreg, vfl, sline), "flag")

def flag_check(g, vreg, vfl, sline, mask, issued=True, sleep=4):
    if g.opt.get("nofl") and sline is not None: return
    e = g.e
    L = g.newlabel("L_poll"); Ld = g.newlabel("L_polld"); Lc = g.newlabel("L_pollc")
    e("s_cmp_lg_u32 s%d, 0" % sW)
    e("s_cbranch_scc1 %s" % Ld)
    e("s_mov_b32 s89, 0x20000")
    if issued:
        g.wait_vm("flag")
        e("s_branch %s" % Lc)
    g.label(L)
    Asm.e(g, flag_load(vreg, vfl, sline))
    e("s_waitcnt vmcnt(0)")
    g.label(Lc)
    if sline is None:
        e("v_readfirstlane_b32 s%d, v%d" % (sNON, vreg))
        e("s_sub_u32 s89, s89, 1")
        e("s_cmp_lg_u32 s%d, 0" % sNON)
    else:
        e("v_cmp_eq_u32 s[98:99], s%d, v%d" % (sNON, vreg))
        e("s_sub_u32 s89, s89, 1")
        m = mask if isinstance(mask, str) else "0x%x" % mask
        e("s_and_b32 s98, s98, %s" % m)
        e("s_cmp_eq_u32 s98, %s" % m)
    e("s_cbranch_scc1 %s" % Ld)
    e("s_sleep %d" % sleep)
    e("s_cmp_lg_u32 s89, 0")
    e("s_cbranch_scc1 %s" % L)
    g.label(Ld)

def flag_lane_offsets(vfl, vtmp):
    return ["s_lshl_b32 s96, s%d, 6" % sW, "v_add_u32 v%d, s96, v0" % vtmp, "v_cmp_gt_u32 vcc, 16, v%d" % vtmp, "v_lshlrev_b32 v%d, 2, v0" % vfl,
            "v_mov_b32 v%d, 0x%x" % (vtmp, OOB), "v_cndmask_b32 v%d, v%d, v%d, vcc" % (vfl, vtmp, vfl)]

def code_pf(label, add=0):
    return "s_load_dword s88, s[86:87], @%s+%d" % (label, add)

def signal(g, vtmp, voff, sword, imm=0):
    g.e("v_mov_b32 v%d, s%d" % (vtmp, sNON))
    g.e("buffer_store_dword v%d, v%d, s[%d:%d], s%d offen offset:%d sc1" % (vtmp, voff, SWS, SWS + 3, sword, imm))

def ffn_role(g):
    e, opt = g.e, g.opt
    wf = opt.get("wflags", "")
    ACC = [32, 96]; H = 160; B1 = 9; PK = 128; VST = 21; BH = 144
    sI, sJ = 42, 43; sKB = 44; sHX = 47; sKO = 53; sKS = 56; sKK = 86; sM0H = 50; sSO = 51; sSS = 59; sWO = 78; sOX = 83; sM0B = 84; sWT = 85
    e("s_sub_u32 s%d, s3, 1" % sI)
    e("s_mov_b32 s%d, s%d" % (sJ, sS))
    e("s_mul_i32 s%d, s%d, 3" % (sS, sJ))
    e("s_add_u32 s%d, s%d, s%d" % (sS, sS, sI))
    e("s_cmp_ge_u32 s%d, 2" % sW)
    e("s_cselect_b32 s%d, s74, s72" % sT)
    e("s_cselect_b32 s%d, s75, s73" % sT2)
    srd(g, SW1, sT, sT2, 576 * 4608 * 2)
    e("s_lshl_b32 s%d, s%d, 12" % (sM0W, sW))
    e("s_mul_i32 s%d, s%d, 768" % (sB1, sS))
    def late_setup():
        o = []; sT = 95
        a = Asm(); srd(a, SW2, 76, 77, 4608 * 576 * 2); srd(a, SPHI, 70, 71, 576 * 576 * 2); a.e('s_mov_b32 s61, s78'); a.e('s_mov_b32 s62, s79')
        o += [l.strip() for l in a.lines]
        o += ["s_lshl_b32 s98, s%d, 6" % sJ, "s_and_b32 s99, s98, 128", "s_xor_b32 s99, s99, 128"]
        for b in range(3):
            o += ["s_add_u32 s%d, s%d, %d" % (sT, sI, b), "s_cmp_ge_u32 s%d, 3" % sT, "s_cselect_b32 s96, 3, 0", "s_sub_u32 s%d, s%d, s96" % (sT, sT),
                  "s_mul_i32 s96, s%d, 3" % sJ, "s_add_u32 s%d, s%d, s96" % (sT, sT),
                  "s_mul_i32 s%d, s%d, %d" % (sKB + b, sT, 384 * 1152), "s_mul_i32 s96, s%d, 384" % sI, "s_add_u32 s%d, s%d, s96" % (sKB + b, sKB + b),
                  "s_add_u32 s%d, s%d, s99" % (sKO + b, sKB + b), "s_add_u32 s%d, s%d, s98" % (sKK + b, sKB + b), "s_xor_b32 s%d, s%d, 64" % (sKS + b, sKK + b),
                  "s_mul_i32 s96, s%d, 12" % sR, "s_add_u32 s%d, s%d, s96" % (sT, sT), "s_lshl_b32 s%d, s%d, 2" % (sT, sT), "s_add_u32 s%d, s%d, s%d" % (sT, sT, sW),
                  "s_mul_i32 s%d, s%d, 24576" % (sHX + b, sT), "s_add_u32 s%d, s%d, 0x%x" % (sHX + b, sHX + b, WS_HX)]
        o += ["s_lshl_b32 s%d, s%d, 2" % (sT, sR), "s_add_u32 s%d, s%d, s%d" % (sT, sT, sJ), "s_lshl_b32 s%d, s%d, 7" % (sCNT, sT), "s_add_u32 s%d, s%d, 0x%x" % (sCNT, sCNT, WS_FLG),
              "s_lshl_b32 s63, s%d, 2" % sI, "s_add_u32 s63, s63, s%d" % sCNT]
        o += ["s_mul_i32 s%d, s%d, %d" % (sST, sJ, PSZ), "s_mul_i32 s%d, s%d, 12288" % (sB2, sI), "s_add_u32 s%d, s%d, s4" % (sB2, sB2),
              "s_add_u32 s%d, s%d, s%d" % (sST, sST, sB2), "s_lshl_b32 s%d, s%d, 11" % (sM0H, sW),
              "s_lshl_b32 s96, s99, 5", "s_add_u32 s%d, s%d, s96" % (sSO, sST),
              "s_xor_b32 s96, s96, 4096", "s_add_u32 s%d, s%d, s96" % (sSS, sST), "s_and_b32 s96, s98, 64", "s_xor_b32 s96, s96, 64",
              "s_lshl_b32 s96, s96, 4", "s_add_u32 s%d, s%d, s96" % (sSS, sSS)]
        o += ["s_lshl_b32 s95, s%d, 2" % sR, "s_add_u32 s95, s95, s%d" % sJ, "s_lshl_b32 s95, s95, 2", "s_add_u32 s95, s95, s%d" % sW,
              "s_mul_i32 s%d, s95, 10240" % sOX, "s_add_u32 s%d, s%d, 0x%x" % (sOX, sOX, WS_OX),
              "s_mul_i32 s%d, s%d, %d" % (sWT, sJ, 144 * 1152), "s_mul_i32 s96, s%d, 384" % sI, "s_add_u32 s%d, s%d, s96" % (sWT, sWT), "s_lshl_b32 s%d, s%d, 10" % (sM0B, sW)]
        for i in range(5):
            d = sWO + i
            o += (["s_lshl_b32 s95, s%d, 2" % sW, "s_add_u32 s95, s95, %d" % i] if i < 4 else ["s_add_u32 s95, s%d, 16" % sW])
            o += ["s_lshr_b32 s96, s95, 1", "s_lshl_b32 s%d, s96, 2" % d, "s_cmp_ge_u32 s96, 5", "s_cselect_b32 s96, 52, 0",
                  "s_add_u32 s%d, s%d, s96" % (d, d), "s_and_b32 s95, s95, 1", "s_mul_i32 s95, s95, 36",
                  "s_add_u32 s%d, s%d, s95" % (d, d), "s_mul_i32 s%d, s%d, 1152" % (d, d), "s_add_u32 s%d, s%d, s%d" % (d, d, sWT)]
        return o
    stages = []; start = [0]
    def slot(n): return ((n + 9) % 10) * 16384
    def push(st): stages.append(st); start.append(start[-1] + len(st.frags))
    for rho in range(6):
        acc = ACC[rho & 1]
        for st in range(9):
            n = len(stages); lo = slot(n)
            pre = ["s_add_u32 m0, s%d, %d" % (sM0W, lo), "s_add_u32 s%d, s%d, %d" % (sOFF, sB1, st * 64 * 9216 + rho * 128)]
            dmas = ["buffer_load_dwordx4 v%d, s[%d:%d], s%d offen offset:%d %s lds" % (1 + i, SW1, SW1 + 3, sOFF, i * 1024, wf) for i in range(4)]
            frags = []
            for kk in range(2):
                ks = 2 * st + kk
                for t in range(4):
                    for mat in range(2):
                        def mf(buf, ks=ks, t=t, mat=mat, acc=acc, XC=(XC if rho else XV0)):
                            order = (0, 1) if mat == 0 else (1, 0)
                            return [mfma(vr(acc + ((t * 2 + mat) * 2 + tt) * 4, 4), ar(buf, 4), XC(tt, ks), "0" if ks == 0 else None) for tt in order]
                        frags.append((tr_reads(B1, t, lo + mat * 8192 + kk * 4096, 512), mf))
            push(Stage(lo, lo + 16384, pre, dmas, frags, None if n == 0 else "x"))
    def hreg(b, u, tt):
        k = (u * 2 + tt) * 4
        if b == 0: return vr(H + k, 4)
        if b == 2: return ar(k, 4)
        if b == 1: return ar(176 + k, 4) if u < 8 else ar(96 + k - 64, 4)
        if u < 2: return ar(128 + k, 4)
        if u < 4: return ar(240 + k - 16, 4)
        return vr(136 + k - 32, 4)
    A2, AO, AS, AK = 32, 64, 96, 112
    def mk(acc, b, u, t, z):
        def mf(buf):
            order = (0, 1) if t % 2 == 0 else (1, 0)
            return [mfma(vr(acc + (t * 2 + tt) * 4, 4), ar(buf, 4), hreg(b, u, tt), "0" if z else None) for tt in order]
        return mf
    def full(b, q, acc):
        lo = slot(len(stages))
        sb, add = (sKB + b, 256) if acc == A2 else (sKO + b, 0)
        pre = ["s_add_u32 m0, s%d, %d" % (sM0W, lo), "s_add_u32 s%d, s%d, %d" % (sOFF, sb, q * 128 * 1152 + add)]
        dmas = ["buffer_load_dwordx4 v%d, s[%d:%d], s%d offen offset:%d %s lds" % (5 + i, SW2, SW2 + 3, sOFF, i * 1024, wf) for i in range(4)]
        frags = [(tr_reads(B1, t, lo + kk * 4096, 2048), mk(acc, b, 4 * q + kk, t, (b, q, kk) == (0, 0, 0))) for kk in range(4) for t in range(4)]
        push(Stage(lo, lo + 16384, pre, dmas, frags, "x"))
    def half(bqs, acc):
        lo = slot(len(stages)); dmas = []; frags = []
        for k, (b, q) in enumerate(bqs):
            p = lo + 8192 * k
            ld = ["buffer_load_dwordx4 v%d, s[%d:%d], s%d offen offset:%d %s lds" % ((25, 22)[i], SW2, SW2 + 3, sOFF, i * 1024, wf) for i in range(2)]
            dmas += [["s_add_u32 m0, s%d, %d" % (sM0H, p), "s_add_u32 s%d, s%d, %d" % (sOFF, (sKS if acc == AS else sKK) + b, q * 128 * 1152), ld[0]], [ld[1]]]
            for kk in range(4):
                for t in range(2):
                    off = p + kk * 2048
                    def rd(buf, off=off, t=t):
                        v = BH + 2 * (off >> 16) + t
                        return ["ds_read_b64_tr_b16 %s, v%d offset:%d" % (ar(buf, 2), v, off & 0xffff), "ds_read_b64_tr_b16 %s, v%d offset:%d" % (ar(buf + 2, 2), v, (off & 0xffff) + 1024)]
                    frags.append((rd, mk(acc, b, 4 * q + kk, t, acc == AS and (b, q, kk) == (0, 0, 0))))
        push(Stage(lo, lo + 16384, [], dmas, frags, "x"))
    def wo(us, acc):
        lo = slot(len(stages)); v = {A2: 1, AO: 2, AS: 3}[acc]
        sel = [(sM0W, lo + i * 1024, sWO + i) for i in range(4)] if len(us) == 4 else [(sM0B, lo, sWO + 4)]
        dmas = [["s_add_u32 m0, s%d, %d" % (m, o), "s_nop 0", "buffer_load_dwordx4 v%d, s[%d:%d], s%d offen %s lds" % (v, SPHI, SPHI + 3, so, wf)] for m, o, so in sel]
        frags = [(tr_reads(B1, t, lo + kk * 4096, 2048), mk(acc, 3, u, t, acc == AS and u == 0 and t >= 2)) for kk, u in enumerate(us) for t in range(4)]
        push(Stage(lo, lo + 16384, [], dmas, frags, "x"))
    Q = lambda q: list(range(4 * q, 4 * q + 4))
    BQ = [(0, 0), (0, 1), (0, 2), (1, 0), (1, 1), (2, 0), (2, 1), (1, 2), (2, 2)]
    first = {}
    S2 = len(stages)
    for n, bq in enumerate(BQ):
        first[bq] = len(stages)
        full(*bq, A2); full(*bq, AO)
        if n == 3: SH0 = len(stages); half(BQ[0:2], AS); half(BQ[2:4], AS)
        if n == 6: half(BQ[4:6], AS); half(BQ[6:7], AS)
    SL = len(stages); half(BQ[7:9], AS)
    SO = len(stages)
    for acc in (A2, AO, AS): wo(Q(0), acc); wo([4], acc)
    SK = len(stages)
    for n in range(0, 9, 2): half(BQ[n:n + 2], AK)
    pipe = Pipe(g, stages, opt.get("D", 7), 2)
    TOUCH = opt.get("touch", 1); tf = opt.get("tflags", "")
    def touch1(rho): return ["buffer_load_dword v31, v29, s[%d:%d], s%d offen offset:%d %s" % (SW1, SW1 + 3, sB1, rho * 128, tf)]
    def touch2(b):
        if b == 3: return ["buffer_load_dword v31, v26, s[%d:%d], s%d offen %s" % (SPHI, SPHI + 3, sWT, tf)]
        return ["buffer_load_dword v31, v26, s[%d:%d], s%d offen %s" % (SW2, SW2 + 3, sKB + b, tf)]
    def early():
        e("v_lshrrev_b32 v28, 3, v0")
        e("s_and_b32 s%d, s%d, 1" % (sOFF, sW))
        e("s_lshl_b32 s%d, s%d, 5" % (sOFF, sOFF))
        e("v_add_u32 v1, s%d, v28" % sOFF)
        e("v_mul_u32_u24 v1, 9216, v1")
        e("v_and_b32 v2, 2, v28")
        e("v_and_b32 v3, 7, v0")
        e("v_xor_b32 v2, v2, v3")
        e("v_lshl_add_u32 v1, v2, 4, v1")
        e("v_xor_b32 v2, 64, v1")
        e("v_add_u32 v2, %d, v2" % (8 * 9216 - 1024))
        e("v_add_u32 v3, %d, v1" % (2 * (8 * 9216 - 1024)))
        e("v_add_u32 v4, %d, v2" % (2 * (8 * 9216 - 1024)))
        pipe.refill(); pipe.flush()
    vset = ["v_lshrrev_b32 v28, 3, v0", "s_lshl_b32 s96, s%d, 5" % sW, "v_add_u32 v5, s96, v28", "v_mul_u32_u24 v5, 1152, v5",
            "v_lshlrev_b32 v6, 1, v22", "v_and_b32 v7, 7, v0", "v_xor_b32 v6, v6, v7", "v_lshl_add_u32 v5, v6, 4, v5",
            "v_lshrrev_b32 v28, 2, v0", "v_add_u32 v25, s96, v28", "v_mul_u32_u24 v25, 1152, v25", "v_and_b32 v6, 3, v6", "v_lshl_add_u32 v25, v6, 4, v25"]
    vset += ["v_add_u32 v%d, %d, v5" % (5 + i, i * (8 * 1152 - 1024)) for i in range(1, 4)]
    vset += ["v_lshlrev_b32 v%d, 4, v0" % VST, "v_lshlrev_b32 v27, 9, v22", "v_add_u32 v28, s%d, v0" % sW, "v_cmp_eq_u32 vcc, 0, v28",
             "v_mov_b32 v24, 0x%x" % OOB, "v_mov_b32 v28, 0", "v_cndmask_b32 v24, v24, v28, vcc"]
    vset += ["v_mul_u32_u24 v28, 5462, v0", "v_lshrrev_b32 v28, 16, v28", "v_mul_u32_u24 v26, 12, v28", "v_sub_u32 v26, v0, v26",
             "s_mul_i32 s96, s%d, 12" % sW, "s_and_b32 s95, s%d, 7" % sR, "s_mul_i32 s95, s95, 48", "s_add_u32 s96, s96, s95",
             "v_add_u32 v26, s96, v26", "v_mul_u32_u24 v26, 1152, v26", "v_lshl_add_u32 v26, v28, 7, v26",
             "s_cmp_ge_u32 s96, 144", "s_cselect_b32 s%d, 0x%x, s%d" % (sWT, OOB, sWT),
             "s_and_b32 s96, s%d, 1" % sW, "s_mul_i32 s96, s96, 36", "s_and_b32 s95, s%d, 7" % sR, "s_mul_i32 s95, s95, 72", "s_add_u32 s96, s96, s95",
             "v_add_u32 v29, s96, v0", "v_mul_u32_u24 v29, 9216, v29",
             "v_cmp_gt_u32 vcc, 36, v0", "v_mov_b32 v28, 0x%x" % OOB, "s_nop 0", "v_cndmask_b32 v26, v28, v26, vcc", "v_cndmask_b32 v29, v28, v29, vcc"]
    prologue(g, pipe, early=early, afterbar=(lambda: [e(t) for t in touch1(0) + touch1(1)]) if TOUCH else None, nfirst=opt.get('nfirst', 8),
             fill=group_scc(late_setup() + vset + tr_bases(g, B1, 8)))
    def epi1(rho):
        acc = ACC[rho & 1]; ops = []; sts = ["s_add_u32 s%d, s%d, %d" % (sT2, sHX, rho * 4096)]
        for t in range(4):
            for tt in range(2):
                gt = acc + ((t * 2) * 2 + tt) * 4; up = acc + ((t * 2 + 1) * 2 + tt) * 4
                u = 2 * rho + t // 2
                h = H + (u * 2 + tt) * 4 + (t & 1) * 2
                for k in range(2):
                    for i in (2 * k, 2 * k + 1): ops.append("v_max_f32 v%d, 0, v%d" % (gt + i, gt + i))
                    for i in (2 * k, 2 * k + 1): ops.append("v_mul_f32 v%d, v%d, v%d" % (gt + i, gt + i, up + i))
                    ops.append("v_cvt_pk_bf16_f32 v%d, v%d, v%d" % (h + k, gt + 2 * k, gt + 2 * k + 1))
                if t & 1:
                    sts.append(("buffer_store_dwordx4 %s, v%d, s[%d:%d], s%d offen offset:%d sc1" % (hreg(0, u, tt), VST, SWS, SWS + 3, sT2, ((u & 1) * 2 + tt) * 1024), ("hst", rho)))
        return ops, sts
    def hloads(b, q):
        ops = []
        for u in (range(5) if b == 3 else Q(q)):
            if u % 2 == 0: ops.append("s_add_u32 s%d, s%d, %d" % (sT, sOX if b == 3 else sHX + b, u * 2048))
            for tt in range(2):
                ops.append(("buffer_load_dwordx4 %s, v%d, s[%d:%d], s%d offen offset:%d sc1" % (hreg(b, u, tt), VST, SWS, SWS + 3, sT, ((u & 1) * 2 + tt) * 1024), ("h", b, q)))
        return ops
    extra = {}; urgent = {}
    add = lambda k, l: extra.setdefault(k, []).extend(l)
    addu = lambda k, l: urgent.setdefault(k, []).extend(l)
    EP = opt.get("epiw", 75)
    for rho in range(5):
        spread(sum(epi1(rho), []) + [Mark("epi%d" % rho)], 144 * (rho + 1) + 3, 144 * (rho + 1) + EP, extra)
    P2 = start[S2]
    hb = ["v_bfe_u32 v144, v0, 2, 4", "v_lshlrev_b32 v144, 6, v144", "v_bfe_u32 v145, v0, 4, 1", "v_lshl_add_u32 v144, v145, 5, v144",
          "v_and_b32 v145, 3, v0", "v_lshl_add_u32 v144, v145, 3, v144", "v_xor_b32 v145, 32, v144"]
    hb += ["v_add_u32 v%d, 0x%x, v%d" % (BH + 2 * k + t, k << 16, BH + t) for k in (1, 2) for t in range(2)]
    hb += ["v_lshrrev_b32 v2, 5, v0", "v_bfe_u32 v3, v0, 3, 2", "v_lshl_add_u32 v2, v2, 4, v3", "v_mul_u32_u24 v4, 1152, v2",
           "v_bfe_u32 v2, v0, 4, 2", "v_lshlrev_b32 v2, 1, v2", "v_and_b32 v3, 7, v0", "v_xor_b32 v2, v2, v3", "v_lshl_add_u32 v4, v2, 4, v4",
           "v_add_u32 v1, 256, v4", "s_sub_u32 s96, s%d, s%d" % (sKO, sKB), "v_add_u32 v2, s96, v4",
           "s_sub_u32 s96, s%d, s%d" % (sKS, sKB), "s_and_b32 s95, s96, 64", "v_xor_b32 v3, s95, v4", "s_and_b32 s96, s96, 128", "v_add_u32 v3, s96, v3"]
    add(P2 + 3, [Dens(1)] + epi1(5)[0] + [Mark("epi5"), Dens(0)] + epi1(5)[1] + hb + [Mark("hb")])
    pauses = []
    if TOUCH:
        T = [touch1(2), touch1(3), touch1(4), touch1(5), touch2(0), touch2(1), touch2(2), touch2(3)]
        for k, ops in zip(opt.get("tpos", [70, 148, 292, 436, 510, 690, 760, 760]), T):
            addu(k, ops); pauses.append((k + opt.get("pdel", 0), k + opt.get("pause", 40)))
    add(1, xc_copies() + [Mark("xc"), "v_add_u32 v22, %d, v25" % (16 * 1152 - 1024)])
    add(144 + 90, flag_lane_offsets(23, 28) + [Mark("flo")])
    addu(288 + 100, [lambda: flag_issue(g, 28, 23, None)])
    groups = list(range(0, SL, 2)) + [SO, SO + 2, SO + 4, SK + 1, SK + 2, SK + 4]
    bar = lambda n: start[n] - pipe.D - 1
    hooks = {}
    def before(n, f):
        assert n in groups, n
        hooks.setdefault(n, []).append(f); stages[n].before = lambda n=n: [f() for f in hooks[n]]
    before(26, lambda: flag_check(g, 28, 23, None, 0))
    FLD = opt.get('fld', 50)
    HS = opt.get("hs", [[30, 36], [46, 52], [S2 + 8, S2 + 14]])
    for q, (ns, nc) in enumerate(HS):
        before(ns, lambda q=q: g.wait_vm(("hst", 2 * q + 1)))
        stages[ns].after = lambda q=q: signal(g, 28, 24, 63, 16 * q)
        addu(bar(nc) - FLD, [lambda: flag_issue(g, 28, 23, sCNT)])
        before(nc, lambda q=q: flag_check(g, 28, 23, sCNT, 0x7 << (4 * q)))
    HW = opt.get("hw", [100, 100, 20])
    HP = opt.get("hp", [0, 0, 0])
    for q in range(3):
        spread(hloads(1, q), bar(HS[q][1]) + 1, bar(HS[q][1]) + 1 + HW[q], urgent); pauses.append((bar(HS[q][1]) + 1, bar(HS[q][1]) + 1 + HP[q]))
    assert bar(HS[1][1]) + 1 + HW[1] <= P2 + opt.get("h2pos", 100)
    spread(hloads(2, 0) + hloads(2, 1), P2 + opt.get("h2pos", 100), P2 + opt.get('h2pos', 100) + 60, urgent)
    def to_g2():
        for k in range(12): e("v_sub_u32 v%d, v%d, v27" % (B1 + k, B1 + k))
    stages[S2].after = to_g2
    for bq in BQ[3:]: before(first[bq], lambda bq=bq: g.wait_vm(("h",) + bq))
    spread(hloads(2, 2), bar(first[(1, 2)]) - 14, bar(first[(1, 2)]) + 10, urgent)
    sFL, sFW, sPL, sCOL, sRS, sMSK, sP1, sCK = 64, 65, 66, 67, 68, 69, 72, 75
    a2 = Asm(); srd(a2, SW1, 61, 62, PSZ)
    fin = [l.strip() for l in a2.lines]
    fin += ["s_mul_i32 s95, s%d, 3" % sR, "s_add_u32 s95, s95, s%d" % sI, "s_lshl_b32 s%d, s95, 7" % sFL, "s_add_u32 s%d, s%d, 0x%x" % (sFL, sFL, WS_FLG + 72 * 128),
           "s_lshl_b32 s%d, s%d, 2" % (sFW, sJ), "s_add_u32 s%d, s%d, s%d" % (sFW, sFW, sFL),
           "s_lshr_b32 s95, s%d, 1" % sJ, "s_lshl_b32 s96, s95, 11", "s_add_u32 s%d, s%d, s96" % (sPL, sB2), "s_add_u32 s%d, s%d, 8192" % (sPL, sPL),
           "s_and_b32 s96, s%d, 1" % sJ, "s_lshl_b32 s76, s96, 7", "s_add_u32 s%d, s%d, s76" % (sPL, sPL),
           "s_lshl_b32 s95, s95, 12", "s_lshl_b32 s96, s96, 10", "s_add_u32 s95, s95, s96", "s_add_u32 s76, s95, s%d" % sB2]
    for k in range(3):
        fin += ["s_add_u32 s96, s%d, %d" % (sJ, k + 1), "s_and_b32 s96, s96, 3", "s_mul_i32 s96, s96, %d" % PSZ, "s_add_u32 s%d, s76, s96" % (sP1 + k)]
    fin += ["v_and_b32 v150, 0x37, v0", "v_lshlrev_b32 v150, 4, v150", "v_bfe_u32 v155, v0, 3, 1", "v_lshl_add_u32 v150, v155, 10, v150",
            "s_mul_i32 s%d, s%d, 384" % (sCOL, sI), "s_add_u32 s%d, s%d, s4" % (sCOL, sCOL), "s_lshl_b32 s96, s%d, 6" % sJ, "s_add_u32 s%d, s%d, s96" % (sCK, sCOL),
            "s_add_u32 s77, s%d, %d" % (sCK, 16 * 1152),
            "v_bfe_u32 v156, v0, 4, 1", "v_lshlrev_b32 v156, 5, v156", "v_lshrrev_b32 v157, 5, v0", "v_lshl_add_u32 v156, v157, 4, v156",
            "s_lshl_b32 s95, s%d, 3" % sJ, "v_and_b32 v151, 7, v0", "v_add_u32 v151, s95, v151", "v_lshlrev_b32 v153, 2, v151",
            "v_mul_u32_u24 v151, 1152, v151", "v_lshl_add_u32 v151, v155, 6, v151", "v_add_u32 v151, v151, v156",
            "v_and_b32 v152, 15, v0", "v_lshlrev_b32 v154, 2, v152", "v_mul_u32_u24 v152, 1152, v152", "v_add_u32 v152, v152, v156",
            "s_lshl_b32 s96, s%d, 2" % sR, "s_add_u32 s96, s96, s%d" % sJ, "s_lshl_b32 s96, s96, 2", "s_add_u32 s96, s96, s%d" % sW,
            "s_lshl_b32 s%d, s96, 7" % sRS, "s_add_u32 s%d, s%d, 0x%x" % (sRS, sRS, WS_RS2),
            "s_mov_b32 s70, 0x3f80", "s_mov_b32 s71, 0x3f800000"]
    add(P2 + 150, fin + [Mark("fin")])
    XL = [(32, 152, sCK, 0), (36, 152, 77, 0), (40, 151, sCOL, 256)]
    RL = [(155, 154, 0), (156, 154, 64), (157, 153, 0)]
    nO = first[(2, 2)]
    addu(bar(nO) - opt.get('old', 40), [lambda: flag_issue(g, 28, 23, sCNT)])
    before(nO, lambda: flag_check(g, 28, 23, sCNT, 0x1000))
    addu(bar(nO) + 1, hloads(3, 0) + ["buffer_load_dword v%d, v%d, s[%d:%d], s%d offen offset:%d sc1" % (d, v, SWS, SWS + 3, sRS, im) for d, v, im in RL])
    before(SO, lambda: g.wait_vm(("h", 3, 0)))
    add(start[SO + 2] + 3, [Dens(1)] + store_ops(g, A2, PK, 2, VST))
    add(start[SO + 4] + 3, store_ops(g, AO, PK, 0, VST, sSO))
    add(start[SK] + 3, store_ops(g, AS, PK, 0, VST, sSS, 2, "pst") + [Mark("pst"), Dens(0)] + ["v_mov_b32 v%d, 0" % (96 + i) for i in range(8)] +
        [("buffer_load_dwordx4 %s, v%d, s[%d:%d], s%d offen offset:%d" % (vr(d, 4), v, SX, SX + 3, so, im), "fx") for d, v, so, im in XL])
    INS = opt.get("insig", 1)
    if INS:
        before(SK + 4, lambda: g.wait_vm("pst")); stages[SK + 4].after = lambda: signal(g, 28, 24, sFW, 0)
    if opt.get("ts") or opt.get("amp") is not None:
        for k in ([720] + list(range(720 + 48, start[-1], 32)) if opt.get('fine2') else (144, 288, 432, 576, 720, P2, P2 + 144, P2 + 288, start[SK])): addu(k, [g.stamp])
    pipe.run(0, len(stages), extra, pauses=pauses, groups=groups, urgent=urgent)
    w = pipe.when
    if opt.get("verbose"): print(w, "P2", P2, "SK", start[SK], "end", start[-1], "barK", bar(SK + 4))
    assert w["xc"] < 142 and w["flo"] < 288 + 100 and all(w["epi%d" % r] < 144 * (r + 2) - 1 for r in range(5)), w
    assert w["epi5"] < start[first[(0, 2)]] + 7 and w["hb"] < bar(SH0) and w["fin"] < bar(nO) - 1 and w["pst"] < bar(SK + 4), w
    g.stamp()
    if not INS:
        e("s_waitcnt vmcnt(0)"); e("s_barrier"); signal(g, 28, 24, sFW, 0)
    flag_check(g, 28, 23, sFL, 0xf, issued=False, sleep=1)
    e("s_barrier")
    g.stamp()
    UA = [(AK, AK + 8), (AK + 4, AK + 12), (96, 100)]
    lds = []
    regs = list(range(48, 96, 4))
    for p in range(4):
        if p < 3:
            for tt in range(2):
                d = regs.pop(0); lds.append((d, tt))
                e("buffer_load_dwordx4 %s, v%d, s[%d:%d], s%d offen offset:%d sc1" % (vr(d, 4), VST, SWS, SWS + 3, sP1 + p, tt * 2048), ("pl", len(lds)))
        if p: e("s_add_u32 s%d, s%d, %d" % (sPL, sPL, PSZ))
        d = regs.pop(0); lds.append((d, 2))
        e("buffer_load_dwordx4 %s, v150, s[%d:%d], s%d offen sc1" % (vr(d, 4), SWS, SWS + 3, sPL), ("pl", len(lds)))
    g.wait_vm("fx")
    for k in range(12):
        e("v_lshlrev_b32 v%d, 16, v%d" % (160 + 2 * k, 32 + k))
        e("v_and_b32 v%d, 0xffff0000, v%d" % (161 + 2 * k, 32 + k))
    for n, (d, u) in enumerate(lds):
        if n % 3 == 0: g.wait_vm(("pl", min(n + 3, len(lds))))
        for i in range(4):
            a0 = UA[u][i // 2] + 2 * (i % 2)
            e("v_dot2c_f32_bf16 v%d, s70, v%d" % (a0, d + i))
            e("v_dot2c_f32_bf16 v%d, s71, v%d" % (a0 + 1, d + i))
    e("s_nop 2")
    for u in range(3):
        for i in range(4): e("v_permlane16_swap_b32 v%d, v%d" % (UA[u][0] + i, UA[u][1] + i))
        for i in range(4):
            a0 = UA[u][i // 2] + 2 * (i % 2); x = 160 + 8 * u + 2 * i
            e("v_fmac_f32 v%d, v%d, v%d" % (x, a0, 155 + u))
            e("v_fmac_f32 v%d, v%d, v%d" % (x + 1, a0 + 1, 155 + u))
            e("v_cvt_pk_bf16_f32 v%d, v%d, v%d" % (184 + 4 * u + i, x, x + 1))
        e("buffer_store_dwordx4 %s, v%d, s[%d:%d], s%d offen offset:%d %s" % (vr(184 + 4 * u, 4), XL[u][1], SW1, SW1 + 3, XL[u][2], XL[u][3], opt.get("oflags", "nt")))
    if opt.get("ts") or opt.get("amp") is not None:
        e("s_waitcnt vmcnt(0)"); g.stamp()

def k1(g):
    e, opt = g.e, g.opt
    kernel_head(g, K1)
    e("s_getpc_b64 s[84:85]")
    e("s_cmp_ge_u32 s2, 256")
    e("s_cbranch_scc1 L_k1_end")
    e("s_load_dwordx8 s[64:71], s[0:1], 0")
    e("s_load_dwordx4 s[72:75], s[0:1], 40")
    e("s_load_dwordx4 s[76:79], s[0:1], 56")
    e("s_load_dwordx4 s[80:83], s[0:1], 72")
    if opt.get("vpf", 1):
        e("s_lshr_b32 s3, s2, 3")
        e("s_lshl_b32 s3, s3, 12")
        e("v_lshrrev_b32 v2, 3, v0")
        e("v_lshlrev_b32 v2, 7, v2")
        e("v_add_u32 v2, s3, v2")
        e("v_min_u32 v2, L_k1_end-%s, v2" % K1)
        e("global_load_dword v255, v2, s[84:85]")
    e("v_lshrrev_b32 v1, 6, v0")
    e("v_and_b32 v0, 63, v0")
    e("v_readfirstlane_b32 s%d, v1" % sW)
    lane_consts(g)
    e("s_and_b32 s%d, s2, 1" % sR)
    e("s_lshl_b32 s%d, s%d, 3" % (sR, sR))
    e("s_bfe_u32 s%d, s2, 0x30003" % sT)
    e("s_or_b32 s%d, s%d, s%d" % (sR, sR, sT))
    e("s_bfe_u32 s%d, s2, 0x20001" % sS)
    e("s_lshr_b32 s3, s2, 6")
    if opt.get("ts"):
        e("s_lshl_b32 s94, s2, 2"); e("s_add_u32 s94, s94, s%d" % sW); e("s_lshl_b32 s94, s94, 8"); e("s_add_u32 s94, s94, 0x%x" % WS_TS)
        if opt.get("dbgts") is not None:
            e("s_lshl_b32 s94, s2, 2"); e("s_add_u32 s94, s94, s%d" % sW); e("s_cmp_eq_u32 s94, %d" % (4 * opt["dbgts"])); e("s_cselect_b32 s94, 0, 0x10000")
    x_setup(g)
    e("s_mov_b32 s%d, 0x%x" % (SX + 2, PSZ))
    e("s_mov_b32 s%d, 0x20000" % (SX + 3))
    e("s_waitcnt lgkmcnt(0)")
    e("s_mov_b32 s%d, s64" % SX)
    e("s_and_b32 s%d, s65, 0xffff" % (SX + 1))
    if opt.get("ts") or opt.get("amp") is not None:
        srd(g, SWS, 82, 83, WS_BYTES); srd(g, SDBG, 80, 81, 256); g.stamp()
    for o in range(opt.get("xcommon", 1)):
        for j in range(9): x_dma(g, o, j)
    wb = opt.get("wsbase", 0)
    if wb:
        e("s_add_u32 s82, s82, 0x%x" % wb); e("s_addc_u32 s83, s83, 0")
    srd(g, SWS, 82, 83, WS_BYTES - wb)
    srd(g, SDBG, 80, 81, 256)
    e("s_or_b32 s%d, s2, s%d" % (sT, sW))
    e("s_cbranch_scc1 L_nonce_done")
    e("s_memrealtime s[98:99]")
    e("s_waitcnt lgkmcnt(0)")
    e("v_mov_b32 v2, s98")
    e("v_or_b32 v2, 1, v2")
    Asm.e(g, "buffer_store_dword v2, off, s[%d:%d], 0 sc1" % (SDBG, SDBG + 3))
    g.label("L_nonce_done")
    e("s_cmp_eq_u32 s3, 0")
    e("s_cbranch_scc1 %s" % ("L_k1_end" if opt.get("noatt") else "L_att"))
    sv = (list(g.vm), list(g.lg), g.nts)
    ffn_role(g)
    def amp(role):
        if opt.get("amp") is None or opt.get("amprole", "ffn") != role: return
        L = g.newlabel("L_amp")
        e("s_sub_u32 s101, s101, s100")
        e("s_add_u32 s101, s101, %d" % opt.get("ampadd", 0))
        if role == "ffn":
            e("s_memrealtime s[92:93]"); e("s_waitcnt lgkmcnt(0)"); e("s_mov_b32 s100, s92")
        g.label(L)
        e("s_sleep 1"); e("s_memrealtime s[92:93]"); e("s_waitcnt lgkmcnt(0)")
        e("s_sub_u32 s92, s92, s100"); e("s_cmp_lt_u32 s92, s101"); e("s_cbranch_scc1 %s" % L)
    amp("ffn")
    e("s_endpgm")
    g.vm, g.lg, g.nts = sv
    g.raw(".p2align 6")
    g.label("L_att")
    import att
    att.att_role(g)
    amp("att")
    g.label("L_k1_end")
    e("s_endpgm")

VOP3ONLY = ("v_mfma", "v_pk_", "v_fma_f32", "v_cvt_pk_bf16", "v_accvgpr_read", "v_accvgpr_write", "v_max3", "v_min3", "v_lshl_add", "v_add_lshl", "v_mad_u32",
            "v_bfe", "v_add3", "v_mul_lo", "v_mul_hi", "v_lshl_or", "v_and_or", "v_readlane", "v_perm_b32")
NOWIDE = ("v_readfirstlane", "v_permlane", "v_dot2c", "v_nop")
def has_lit(s):
    for t in re.split(r"[ ,]+", s)[1:]:
        if re.match(r"^-?(0x[0-9a-f]+|\d+)$", t):
            v = int(t, 0)
            if not (-16 <= v <= 64) and v not in (0x3f800000, 0x3f000000, 0x40000000, 0x40800000, 0xbf800000, 0xbf000000, 0xc0000000, 0xc0800000): return True
        if t.startswith("L_"): return not s.startswith(("s_cbranch", "s_branch"))
    return False
def isize(s):
    op = s.split()[0]
    if op.startswith(("ds_", "buffer_", "global_", "s_load", "s_mem")): return 8, False
    if op.startswith("s_"):
        if op.startswith(("s_waitcnt", "s_addk", "s_mulk", "s_nop", "s_barrier", "s_sleep", "s_endpgm", "s_cbranch", "s_branch", "s_setprio", "s_getreg")): return 4, False
        return (8 if has_lit(s) else 4), False
    if op.startswith(VOP3ONLY): return 8, False
    if has_lit(s): return 8, False
    ops = [x.strip() for x in re.split(r",(?![^\[]*\])", s.split(None, 1)[1])]
    if op.startswith("v_cmp") and ops[0] != "vcc": return 8, False
    if op.startswith("v_cndmask") and ops[-1] != "vcc": return 8, False
    if len(ops) >= 3 and not ops[2].startswith("v"): return 8, False
    return 4, not op.startswith(NOWIDE)
def align_pass(lines, minrun=4):
    ins = [l.strip() for l in lines]
    out = []; par = 0
    isins = lambda l: l and not l.endswith(":") and not l.startswith((".", ";"))
    n = len(ins)
    def nxt(i):
        i += 1
        while i < n and not isins(ins[i]):
            if ins[i].startswith(".p2align"): return None
            i += 1
        return i if i < n else None
    for i, l in enumerate(ins):
        if not isins(l):
            if l.startswith(".p2align"): par = 0
            out.append(l); continue
        sz, flex = isize(l)
        if sz == 8: out.append(l); continue
        if par == 1: out.append(l); par = 0; continue
        j = nxt(i)
        if j is None or isize(ins[j])[0] == 4: out.append(l); par = 1; continue
        if flex:
            op, rest = l.split(None, 1); out.append(op + "_e64 " + rest); continue
        run = 0
        while j is not None and isize(ins[j])[0] == 8 and run < minrun: run += 1; j = nxt(j)
        out.append(l)
        if run >= minrun and not l.startswith(("s_branch", "s_endpgm")): out.append("s_nop 0")
        else: par = 1
    return out

LABELS = {}
def resolve(lines):
    off = 0; LABELS.clear()
    for l in lines:
        l = l.strip()
        if l.endswith(":"): LABELS[l[:-1]] = off
        elif l.startswith(".p2align"):
            a = 1 << int(l.split()[1]); off = (off + a - 1) // a * a
        elif l and not l.startswith((".", ";")):
            off += 8 if l.split()[0].endswith("_e64") else isize(l)[0]
    end = LABELS["L_k1_end"]
    def f(m):
        span = 2048 if LABELS[m.group(1)] >= LABELS["L_att"] else 6144
        return "0x%x" % (min(LABELS[m.group(1)] + int(m.group(2)), end - span) & ~3)
    return [re.sub(r"@(\w+)\+(\d+)", f, l) if l.strip().startswith("s_load") else l for l in lines]

MACROS = """.macro MA d,a,b
v_mfma_f32_16x16x32_bf16 v[\\d:\\d+3], a[\\a:\\a+3], a[\\b:\\b+3], v[\\d:\\d+3]
.endm
.macro MV d,a,b
v_mfma_f32_16x16x32_bf16 v[\\d:\\d+3], a[\\a:\\a+3], v[\\b:\\b+3], v[\\d:\\d+3]
.endm
.macro RT d,b,o
ds_read_b64_tr_b16 a[\\d:\\d+1], v\\b offset:\\o
.endm
.macro WL n
s_waitcnt lgkmcnt(\\n)
.endm
.macro CV d,a,b
v_cvt_pk_bf16_f32 v\\d, v\\a, v\\b
.endm
"""
def compress(line):
    s = line.strip()
    m = re.match(r"v_mfma_f32_16x16x32_bf16 v\[(\d+):\d+\], a\[(\d+):\d+\], ([av])\[(\d+):\d+\], v\[(\d+):\d+\]$", s)
    if m and m.group(1) == m.group(5): return "M%s %s,%s,%s" % (m.group(3).upper(), m.group(1), m.group(2), m.group(4))
    m = re.match(r"ds_read_b64_tr_b16 a\[(\d+):\d+\], v(\d+) offset:(\d+)$", s)
    if m: return "RT %s,%s,%s" % m.groups()
    m = re.match(r"s_waitcnt lgkmcnt\((\d+)\)$", s)
    if m: return "WL %s" % m.group(1)
    m = re.match(r"v_cvt_pk_bf16_f32 v(\d+), v(\d+), v(\d+)$", s)
    if m: return "CV %s,%s,%s" % m.groups()
    return s

def gen(**opt):
    g = G(opt)
    k1(g)
    FUSE = 1
    errs = hazard.check(g.lines)
    if errs:
        print("\n".join(errs[:40])); raise SystemExit("hazards: %d" % len(errs))
    head = open("cdna_kernels/%s.s.ref" % BASE).read().split("; Override launch")[0] if not opt.get("nohead") else ""
    out = head
    if FUSE: out += "; @launch grid=(256,1,1) block=(256,1,1) lds=163840\n"
    else: out += "; @launch kernel=%s grid=(256,1,1) block=(256,1,1) lds=163840\n" % K1
    if not FUSE: out += "; @launch kernel=%s grid=(256,1,1) block=(576,1,1) lds=0\n" % K2
    out += '.amdgcn_target "amdgcn-amd-amdhsa--gfx950"\n.text\n' + MACROS
    lines = align_pass(g.lines, opt.get("minrun", 4)) if opt.get("align", 1) else g.lines
    lines = resolve(lines)
    out += "\n".join(compress(l) for l in lines) + "\n"
    out += '.section .rodata,"a"\n' + kernel_desc(K1, 512, 256) + ("" if FUSE else kernel_desc(K2, 96, 96, 40))
    return out

if __name__ == "__main__":
    kw = json.loads(sys.argv[2]) if len(sys.argv) > 2 else {}
    open(sys.argv[1], "w").write(gen(**kw))
```

```python
from asmlib import *
import gen as G
from gen import *

TBL = 155648; ZER = 163328; SCR = 98304
sODD = 42
sWO = 44
sKV, sQ, sKVP, sCQ, sOXB = 49, 50, 51, 44, 45
ACC = 32

def softmax(p, o, tt, E):
    L = []; e = L.append
    e("v_max3_f32 v24, v%d, v%d, v%d" % (p, p + 1, p + 2)); e("v_min3_f32 v25, v%d, v%d, v%d" % (p, p + 1, p + 2))
    for i in range(3, 17, 2):
        e("v_max3_f32 v24, v24, v%d, v%d" % (p + i, p + i + 1)); e("v_min3_f32 v25, v25, v%d, v%d" % (p + i, p + i + 1))
    e("v_max_f32 v24, v24, v%d" % (p + 17)); e("v_min_f32 v25, v25, v%d" % (p + 17))
    e("v_pk_mul_f32 v[24:25], v[24:25], v[14:15] op_sel:[0,%d] op_sel_hi:[1,%d]" % (tt, tt))
    for i in range(0, 18, 2):
        e("v_pk_fma_f32 %s, %s, v[14:15], v[24:25] op_sel:[0,%d,0] op_sel_hi:[1,%d,0] neg_lo:[0,0,1] neg_hi:[0,0,1]" % (vr(E + i, 2), vr(p + i, 2), tt, tt))
        e("v_pk_fma_f32 %s, %s, v[14:15], v[24:25] op_sel:[0,%d,1] op_sel_hi:[1,%d,1] neg_lo:[0,1,0] neg_hi:[0,1,0]" % (vr(p + i, 2), vr(p + i, 2), tt, tt))
    for i in range(18):
        e("v_exp_f32 v%d, v%d" % (E + i, E + i))
        e("v_exp_f32 v%d, v%d" % (p + i, p + i))
    e("v_pk_add_f32 v[24:25], %s, %s" % (vr(E, 2), vr(E + 2, 2)))
    e("v_pk_add_f32 v[26:27], %s, %s" % (vr(p, 2), vr(p + 2, 2)))
    for i in range(4, 18, 2):
        e("v_pk_add_f32 v[24:25], v[24:25], %s" % vr(E + i, 2))
        e("v_pk_add_f32 v[26:27], v[26:27], %s" % vr(p + i, 2))
    e("v_add_f32 v24, v24, v25")
    e("v_add_f32 v25, v26, v27")
    e("v_rcp_f32 v24, v24")
    e("v_rcp_f32 v25, v25")
    e("s_nop 0")
    for i in range(0, 18, 2):
        e("v_pk_mul_f32 %s, %s, v[24:25] op_sel:[0,0] op_sel_hi:[1,0]" % (vr(E + i, 2), vr(E + i, 2)))
        e("v_pk_mul_f32 %s, %s, v[24:25] op_sel:[0,1] op_sel_hi:[1,1]" % (vr(p + i, 2), vr(p + i, 2)))
    for i in range(8, -1, -1): e("v_cvt_pk_bf16_f32 v%d, v%d, v%d" % (o + 9 + i, p + 2 * i, p + 2 * i + 1))
    for i in range(9): e("v_cvt_pk_bf16_f32 v%d, v%d, v%d" % (o + i, E + 2 * i, E + 2 * i + 1))
    out = []
    for x in L:
        if x.startswith("v_pk_"):
            if out and isinstance(out[-1], list): out[-1].append(x)
            else: out.append([x])
        else: out.append(x)
    for x in out:
        if isinstance(x, list): x.append("s_nop 0")
    return out

def phi_frag_reads(rho, A, tag):
    L = ["v_mov_b32 v29, v18" if rho == 0 else "v_mad_u32_u24 v29, v19, 12, v18"]
    for ks in range(3):
        for to in range(5):
            b = A + (ks * 5 + to) * 4
            L.append(("ds_read_b64_tr_b16 %s, v29 offset:%d" % (ar(b, 2), to * 8), tag))
            L.append(("ds_read_b64_tr_b16 %s, v29 offset:%d" % (ar(b + 2, 2), to * 8 + 160), tag))
        if ks < 2: L.append("v_add_u32 v29, v29, v19")
    return L

def phi_mfma(pk, P, A):
    return [mfma(vr(P[tt] + 4 * to, 4), ar(A + (ks * 5 + to) * 4, 4), vr(pk[tt] + 4 * ks, 4), "0" if ks == 0 else None)
            for ks in range(3) for to in range(5) for tt in range(2)]

def pack20(src, dst):
    return ["v_cvt_pk_bf16_f32 v%d, v%d, v%d" % (dst + i, src + 2 * i, src + 2 * i + 1) for i in range(10)]

def put(g, L):
    for it in L:
        if callable(it): it()
        elif isinstance(it, list): put(g, it)
        elif isinstance(it, tuple): g.e(it[0], it[1])
        else: g.e(it)

def weave(g, ms, fill, per=2):
    fill = list(fill)
    for m in ms:
        put(g, [m]); put(g, fill[:per]); fill = fill[per:]
    put(g, fill)

def c1(f):
    f.cost = 1
    return f

def att_role(g):
    e, opt = g.e, g.opt
    wf = opt.get("aflags", ""); TOUCH = opt.get("touch", 1); tf = opt.get("tflags", "")
    CPF = opt.get("codepf", 0)
    e("s_sub_u32 s66, s66, 2048")
    e("s_subb_u32 s67, s67, 0")
    srd(g, SW1, 66, 67, 576 * 1728 * 2 + 2048)
    srd(g, SPHI, 68, 69, 32 * 18 * 18 * 2)
    e("s_mul_i32 s%d, s%d, 3072" % (sM0W, sW))
    e("s_and_b32 s%d, s%d, 1" % (sT, sW))
    e("s_lshl_b32 s%d, s%d, 4" % (sT, sT))
    e("s_add_u32 s%d, s%d, s%d" % (sM0W, sM0W, sT))
    e("s_and_b32 s%d, s%d, 2" % (sT, sW))
    e("s_lshl_b32 s%d, s%d, 7" % (sT, sT))
    e("s_add_u32 s%d, s%d, s%d" % (sM0W, sM0W, sT))
    e("s_mul_i32 s%d, s%d, 288" % (sQ, sS))
    e("s_and_b32 s47, s%d, 0xffc0" % sQ)
    e("s_add_u32 s%d, s47, 1152" % sKV)
    e("s_lshl_b32 s%d, s%d, 7" % (sCNT, sS))
    e("s_add_u32 s%d, s%d, 0x%x" % (sCNT, sCNT, WS_FLG + 64 * 128))
    e("s_add_u32 s46, s%d, 512" % sCNT)
    e("s_lshl_b32 s63, s%d, 2" % sR)
    e("s_add_u32 s63, s63, s%d" % sCNT)
    e("s_lshl_b32 s%d, s%d, 2" % (sT, sR))
    e("s_add_u32 s%d, s%d, s%d" % (sT, sT, sS))
    e("s_lshl_b32 s%d, s%d, 7" % (sCQ, sT))
    e("s_add_u32 s%d, s%d, 0x%x" % (sCQ, sCQ, WS_FLG))
    e("s_lshl_b32 s%d, s%d, 2" % (sT, sT))
    e("s_add_u32 s%d, s%d, s%d" % (sT, sT, sW))
    e("s_mul_i32 s%d, s%d, 10240" % (sOXB, sT))
    e("s_add_u32 s%d, s%d, 0x%x" % (sOXB, sOXB, WS_OX))
    e("s_lshl_b32 s%d, s%d, 3" % (sKVP, sS))
    e("s_add_u32 s%d, s%d, s%d" % (sKVP, sKVP, sW))
    e("s_lshl_b32 s%d, s%d, 4" % (sKVP, sKVP))
    e("s_add_u32 s%d, s%d, s%d" % (sKVP, sKVP, sR))
    e("s_mul_i32 s%d, s%d, 2944" % (sKVP, sKVP))
    e("s_add_u32 s%d, s%d, 0x%x" % (sKVP, sKVP, WS_KVP))
    stages = []; SLOT = 12800; NSL = 7
    for ps in range(3):
        for ks in range(18):
            n = len(stages); lo = (n % NSL) * SLOT
            sb, add, vo = (sKV, 128 * ps, 1) if ps < 2 else (47, 0, 4)
            pre = ["s_add_u32 m0, s%d, %d" % (sM0W, lo), "s_add_u32 s%d, s%d, %d" % (sOFF, sb, ks * 32 * 3456 + add)]
            dmas = ["buffer_load_dwordx4 v%d, s[%d:%d], s%d offen offset:%d %s lds" % (vo + i, SW1, SW1 + 3, sOFF, i * 1024, wf) for i in range(3)]
            frags = []
            for sec in range(2):
                for t in range(5):
                    off = lo + sec * 1536 + 8 * t + 16 * (ps if ps < 2 else sec)
                    def rd(buf, off=off):
                        b = 7 + (off >> 16); o = off & 0xffff
                        assert o + 768 < 65536
                        return ["ds_read_b64_tr_b16 %s, v%d offset:%d" % (ar(buf, 2), b, o), "ds_read_b64_tr_b16 %s, v%d offset:%d" % (ar(buf + 2, 2), b, o + 768)]
                    def mf(buf, ks=ks, sec=sec, t=t, XC=(XC if ps else XV0)):
                        order = (0, 1) if (sec * 5 + t) % 2 == 0 else (1, 0)
                        return [mfma(vr(ACC + (sec * 2 + tt) * 20 + 4 * t, 4), ar(buf, 4), XC(tt, ks), "0" if ks == 0 else None) for tt in order]
                    frags.append((rd, mf))
            stages.append(Stage(lo, lo + SLOT, pre, dmas, frags, "x"))
    OB = 192; VST = 21
    pipe = Pipe(g, stages, opt.get("D", 7), opt.get("ABE", 2))

    def early():
        if TOUCH:
            e("v_mul_u32_u24 v28, 3641, v0")
            e("v_lshrrev_b32 v28, 16, v28")
            e("v_mul_u32_u24 v9, 18, v28")
            e("v_sub_u32 v9, v0, v9")
            e("s_mul_i32 s3, s%d, 18" % sW)
            e("s_and_b32 s%d, s%d, 7" % (sOFF, sR))
            e("s_mul_i32 s%d, s%d, 72" % (sOFF, sOFF))
            e("s_add_u32 s3, s3, s%d" % sOFF)
            e("v_add_u32 v9, s3, v9")
            e("v_mul_u32_u24 v9, 3456, v9")
            e("v_lshl_add_u32 v9, v28, 7, v9")
            e("v_add_u32 v9, 2048, v9")
            e("v_cmp_gt_u32 vcc, 54, v0")
            e("v_mov_b32 v28, 0x%x" % OOB)
            e("s_nop 0")
            e("v_cndmask_b32 v9, v28, v9, vcc")
        e("s_lshl_b32 s%d, s%d, 6" % (sOFF, sW))
        e("v_add_u32 v29, s%d, v0" % sOFF)
        for i in range(4): e("v_mov_b32 v%d, 0" % (96 + i))
        e("v_lshlrev_b32 v28, 5, v29")
        e("v_add_u32 v28, %d, v28" % TBL)
        e("ds_write_b128 v28, v[96:99]")
        e("ds_write_b128 v28, v[96:99] offset:16")
        for i in range(6):
            a = 90 + i
            e("v_add_u32 v28, %d, v29" % (256 * i))
            e("v_mul_u32_u24 v30, 7282, v28")
            e("v_lshrrev_b32 v30, 16, v30")
            e("v_mul_u32_u24 v31, 3641, v30")
            e("v_lshrrev_b32 v31, 16, v31")
            e("v_add_lshl_u32 v%d, v28, v30, 2" % a)
            e("v_mul_u32_u24 v30, 240, v31")
            e("v_add_u32 v%d, v%d, v30" % (a, a))
            e("v_and_b32 v31, 1, v31")
            e("v_mul_u32_u24 v31, 80, v31")
            e("v_add3_u32 v%d, v%d, v31, s%d" % (a, a, sT)) if False else None
            e("v_add_u32 v%d, v%d, v31" % (a, a))
            e("v_add_u32 v%d, %d, v%d" % (a, TBL, a))
        e("v_cmp_gt_u32 vcc, 16, v29")
        e("v_mov_b32 v28, 150000")
        e("s_nop 0")
        e("v_cndmask_b32 v95, v28, v95, vcc")
        e("s_lshl_b32 s3, s%d, 3" % sW)
        e("v_mov_b32 v111, 0x%x" % OOB)
        for i in range(3):
            e("v_add_u32 v28, %d, v0" % (64 * i))
            e("v_mul_u32_u24 v30, 5462, v28")
            e("v_lshrrev_b32 v30, 16, v30")
            e("v_mul_u32_u24 v31, 12, v30")
            e("v_sub_u32 v31, v28, v31")
            e("v_lshrrev_b32 v28, 3, v30")
            e("v_and_b32 v30, 7, v30")
            e("v_add_u32 v30, s3, v30")
            e("v_mul_u32_u24 v30, 3456, v30")
            e("v_lshl_add_u32 v30, v31, 4, v30")
            e("v_add_u32 v30, %d, v30" % (2048 - 1024 * i))
            e("v_lshl_add_u32 v%d, v28, 7, v30" % (4 + i))
            e("v_mul_u32_u24 v28, 1152, v28")
            e("v_add_u32 v%d, v28, v30" % (1 + i))
        e("v_mul_u32_u24 v7, 3072, v22")
        e("v_and_b32 v28, 1, v22")
        e("v_cmp_eq_u32 s[%d:%d], 1, v28" % (sODD, sODD + 1))
        e("v_lshl_add_u32 v7, v28, 4, v7")
        e("v_lshrrev_b32 v28, 1, v22")
        e("v_lshl_add_u32 v7, v28, 8, v7")
        e("v_bfe_u32 v28, v0, 2, 2")
        e("v_mul_u32_u24 v30, 192, v28")
        e("v_add_u32 v7, v7, v30")
        e("v_bfe_u32 v30, v0, 1, 1")
        e("v_mul_u32_u24 v30, 72, v30")
        e("v_add_u32 v7, v7, v30")
        e("v_and_b32 v30, 1, v0")
        e("v_lshl_add_u32 v7, v30, 5, v7")
        e("s_and_b32 s3, s%d, 63" % sQ)
        e("v_add_u32 v7, s3, v7")
        e("v_add_u32 v8, 0x10000, v7")
        e("v_mul_u32_u24 v18, 960, v22")
        e("v_mul_u32_u24 v30, 40, v28")
        e("v_add_u32 v18, v18, v30")
        e("v_add_u32 v18, %d, v18" % TBL)
        e("v_and_b32 v30, 3, v0")
        e("v_cmp_eq_u32 vcc, v30, v22")
        e("v_mov_b32 v30, %d" % ZER)
        e("v_mov_b32 v31, 320")
        e("v_cndmask_b32 v18, v30, v18, vcc")
        e("v_cndmask_b32 v19, 0, v31, vcc")
        e("v_cmp_eq_u32 vcc, 0, v29")
        e("v_lshlrev_b32 v%d, 4, v0" % VST)
        e("s_nop 0")
        e("v_cndmask_b32 v20, v111, 0, vcc") if False else None
        e("v_mov_b32 v20, 0")
        e("v_cndmask_b32 v20, v111, v20, vcc")
        e("s_lshl_b32 s3, s%d, 5" % sW)
        e("v_add_u32 v28, s3, v23")
        e("v_mul_u32_u24 v10, 112, v28")
        e("v_mul_u32_u24 v28, 14336, v22")
        e("v_add_u32 v10, v10, v28")
        e("v_add_u32 v10, %d, v10" % SCR)
        e("v_bfe_u32 v28, v0, 2, 2")
        e("v_lshl_add_u32 v28, v22, 3, v28")
        e("v_mul_u32_u24 v11, 112, v28")
        e("v_and_b32 v28, 3, v0")
        e("v_lshl_add_u32 v11, v28, 3, v11")
        e("s_mul_i32 s3, s%d, 14336" % sW)
        e("s_add_u32 s3, s3, %d" % SCR)
        e("v_add_u32 v11, s3, v11")
        e("v_lshlrev_b32 v12, 4, v0")
    def touch(sec): return "buffer_load_dword v13, v9, s[%d:%d], s%d offen offset:%d %s" % (SW1, SW1 + 3, sQ, sec * 1152, tf)
    AT = opt.get("atouch", [[1, 2], [], [0]])
    def phil():
        e("s_mul_i32 s95, s%d, 5184" % sS)
        e("v_lshlrev_b32 v110, 2, v29")
        e("v_add_u32 v109, 4096, v110")
        for i in range(6):
            e("buffer_load_dword a%d, v%d, s[%d:%d], s95 offen offset:%d" % (244 + i, 110 if i < 4 else 109, SPHI, SPHI + 3, (i % 4) * 1024), "phi")
    def late():
        if TOUCH:
            for sec in AT[0]: e(touch(sec))
    import re
    sv = (g.lines, list(g.vm), list(g.lg)); g.lines = []
    early()
    for i in range(6): e("v_accvgpr_write_b32 a%d, v%d" % (250 + i, 90 + i))
    fill = [re.sub(r"\bs3\b", "s96", re.sub(r"\bs%d\b" % sOFF, "s95", l.strip())) for l in g.lines]
    g.lines, g.vm, g.lg = sv
    pipe.qthr = 3
    prologue(g, pipe, afterbar=late, postc=phil, fill=fill, var=True, nfirst=opt.get('anfirst', 6))
    e("v_and_b32 v28, 1, v0")
    e("v_cmp_eq_u32 vcc, 1, v28")
    e("v_and_b32 v28, 2, v0")
    e("v_cmp_eq_u32 s[54:55], 2, v28")
    e("v_lshrrev_b32 v28, 2, v23")
    e("v_lshl_add_u32 v28, v28, 4, v23")
    e("v_lshlrev_b32 v28, 2, v28")
    e("s_nop 0")
    for tt in range(2):
        d = 96 + 4 * tt
        e("v_cndmask_b32 v%d, v%d, v%d, vcc" % (d, d, d + 1))
        e("v_cndmask_b32 v%d, v%d, v%d, vcc" % (d + 2, d + 2, d + 3))
        e("v_cndmask_b32 v%d, v%d, v%d, s[54:55]" % (24 + tt, d, d + 2))
        e("ds_bpermute_b32 v%d, v28, v%d" % (16 + tt, 24 + tt))
    VAR = ["s_mov_b32 s%d, 0x3ae38e39" % sT, "v_mov_b32 v26, 0x3727c5ac"]
    VAR += ["v_fma_f32 v%d, v%d, s%d, v26" % (16 + tt, 16 + tt, sT) for tt in range(2)]
    VAR += ["v_accvgpr_write_b32 a%d, v%d" % (240 + tt, 16 + tt) for tt in range(2)]
    VAR += ["v_rsq_f32 v%d, v%d" % (16 + tt, 16 + tt) for tt in range(2)] + ["s_nop 0"]
    VAR += ["v_mul_f32 v%d, 0x3fb8aa3b, v%d" % (14 + tt, 16 + tt) for tt in range(2)]
    TW = [c1(lambda: g.wait_vm("phi"))]
    for i in range(6): TW += ["v_accvgpr_read_b32 v%d, a%d" % (24 + i % 4, 250 + i), ("ds_write_b32 v%d, a%d" % (24 + i % 4, 244 + i), "tw")]
    TW += [Hook(before=lambda: g.wait_lg("tw"))]
    g.stamp()
    PKK = [112, 124]; P = [136, 156]; ROW = [176, 204]; E = 232; FA = 176
    def head(rho):
        e("s_nop 3")
        for tt in range(2):
            for i in (10, 11): e("v_mov_b32 v%d, 0" % (PKK[tt] + i))
        for tt in range(2): put(g, pack20(ACC + tt * 20, PKK[tt]))
        g.wait_lg(("phf", rho))
        V = ["v_mov_b32 v28, 0x3f80"]
        for tt in range(2):
            s = ACC + (2 + tt) * 20
            put(g, ["v_pk_mul_f32 %s, %s, v[16:17] op_sel:[0,%d] op_sel_hi:[1,%d]" % (vr(s + i, 2), vr(s + i, 2), tt, tt) for i in range(0, 20, 2)])
            V += pack20(s, ROW[tt] + 18)
            V += ["v_cndmask_b32 v%d, v%d, v28, s[%d:%d]" % (ROW[tt] + 18, ROW[tt] + 18, sODD, sODD + 1),
                  "v_cndmask_b32 v%d, v28, v%d, s[%d:%d]" % (ROW[tt] + 27, ROW[tt] + 27, sODD, sODD + 1)]
        e("s_nop 0")
        weave(g, phi_mfma(PKK, P, FA), V)
    def post(rho):
        L = []
        for tt in range(2):
            L += softmax(P[tt], ROW[tt], tt, E)
            L += [("ds_write_b128 v10, %s offset:%d" % (vr(ROW[tt] + 4 * i, 4), tt * 16 * 112 + 16 * i), ("sw", rho)) for i in range(7)]
        L += ["v_cmp_eq_u32 vcc, 0, v22", "v_cmp_gt_u32 s[54:55], 4, v23", "v_mov_b32 v28, 0x%x" % OOB,
              "s_add_u32 s%d, s%d, %d" % (sT, sKVP, rho * 4 * 16 * 2944),
              "v_cndmask_b32 v25, v28, v12, vcc", "v_lshl_add_u32 v26, v22, 2, v23", "v_lshlrev_b32 v26, 4, v26", "v_cmp_gt_u32 vcc, 2, v22",
              "v_cndmask_b32 v26, v28, v26, s[54:55]", "s_nop 0", "v_cndmask_b32 v27, v28, v26, vcc"]
        L.append(Hook(before=lambda: g.wait_lg(("sw", rho))))
        KF = 136
        for kk in range(4):
            for f in range(5):
                col = 32 * f if f < 3 else 72 + 32 * (f - 3)
                d = KF + (kk * 5 + f) * 4
                L.append(("ds_read_b64_tr_b16 %s, v11 offset:%d" % (vr(d, 2), kk * 32 * 112 + col), ("kr", rho, kk)))
                L.append(("ds_read_b64_tr_b16 %s, v11 offset:%d" % (vr(d + 2, 2), kk * 32 * 112 + col + 4 * 112), ("kr", rho, kk)))
        L.append(Delay(2))
        L.append(c1(lambda: g.wait_lg(("kr", rho, 3))))
        for kk in range(4):
            for a in range(3):
                for b in range(2):
                    L.append(mfma(vr(112 + (a * 2 + b) * 4, 4), vr(KF + (kk * 5 + a) * 4, 4), vr(KF + (kk * 5 + 3 + b) * 4, 4), "0" if kk == 0 else None))
        L.append(Delay(3)); L.append("s_nop 0")
        for a in range(3):
            for b in range(2):
                vo = {(0, 0): 12, (1, 0): 25, (0, 1): 26, (1, 1): 27}[(int(a == 2), b)]
                L.append(("buffer_store_dwordx4 %s, v%d, s[%d:%d], s%d offen offset:%d sc1" % (vr(112 + (a * 2 + b) * 4, 4), vo, SWS, SWS + 3, sT, 2304 + a * 256 if b else a * 1024), "kvst"))
        return L
    DB, DQ = opt.get("dens", [2, 12])
    APZ = opt.get("apause", 0)
    fine = {k: [g.stamp] for k in range(30, 180, 30)} if opt.get("fine") else {}
    pipe.run(0, 18, {1: VAR + xc_copies(), 90: TW + [Dens(1)] + phi_frag_reads(0, FA, ("phf", 0)) + [Mark('pA')]}, lagok=True, pauses=[(0, opt.get('ap0', 0))])
    g.stamp()
    put(g, flag_lane_offsets(250, 28))
    if opt.get("fpre", 1): e(flag_load(13, 250, sCNT)); e(flag_load(13, 250, 46)); e(flag_load(13, 250, sCQ))
    flag_issue(g, 251, 250, None)
    if TOUCH: put(g, [touch(x) for x in AT[1]])
    head(0)
    g.stamp()
    pipe.run(18, 36, {2: [Dens(DB)] + post(0) + phi_frag_reads(1, FA, ("phf", 1)) + [Mark("postA")]}, lagok=False, urgent=fine, pauses=[(0, APZ)])
    g.stamp()
    flag_check(g, 251, 250, None, 0)
    if TOUCH: put(g, [touch(x) for x in AT[2]])
    head(1)
    g.stamp()
    L1 = ["s_mul_i32 s96, s%d, 25" % sW, "v_add_u32 v28, s96, v0", "v_mul_u32_u24 v31, 3277, v28", "v_lshrrev_b32 v31, 16, v31",
          "v_mul_u32_u24 v29, 20, v31", "v_sub_u32 v29, v28, v29", "s_and_b32 s96, s%d, 1" % sR, "s_mul_i32 s96, s96, 5",
          "v_add_u32 v31, s96, v31", "v_cmp_gt_u32 vcc, 25, v0", "v_cmp_gt_u32 s[54:55], 9, v31",
          "v_cmp_gt_u32 s[56:57], 16, v29", "v_lshlrev_b32 v24, 8, v31", "v_lshlrev_b32 v25, 6, v31", "v_add_u32 v25, 2048, v25",
          "v_cndmask_b32 v24, v25, v24, s[56:57]", "v_lshl_add_u32 v24, v29, 4, v24",
          "v_mul_u32_u24 v25, 160, v31", "v_lshl_add_u32 v25, v29, 3, v25",
          "v_mov_b32 v28, 0x%x" % OOB, "v_cndmask_b32 v24, v28, v24, vcc", "v_cndmask_b32 v24, v28, v24, s[54:55]", "v_cndmask_b32 v12, v28, v25, vcc",
          "s_lshl_b32 s96, s%d, 3" % sS, "s_lshr_b32 s95, s%d, 1" % sR, "s_add_u32 s96, s96, s95",
          "s_mul_i32 s%d, s96, %d" % (sT, 16 * 2944), "s_add_u32 s%d, s%d, 0x%x" % (sT, sT, WS_KVP),
          "s_mul_i32 s95, s96, 1600", "s_add_u32 s95, s95, 0x%x" % WS_KVF]
    KVL = SCR; KZ = SCR + 13312
    KS = []
    def ks_setup(e=KS.append):
        e("s_lshl_b32 s96, s%d, 6" % sW)
        e("v_add_u32 v28, s96, v0")
        e("v_lshlrev_b32 v224, 4, v28")
        e("v_lshlrev_b32 v225, 3, v28")
        e("v_add_u32 v225, %d, v225" % KZ)
        e("v_mov_b32 v226, 0"); e("v_mov_b32 v227, 0")
        e("ds_write_b64 v225, v[226:227]")
        e("v_cmp_gt_u32 vcc, 32, v28")
        e("v_mov_b32 v230, 0x%x" % OOB)
        e("s_mov_b32 s%d, %d" % (sT2, KVL))
        e("v_cndmask_b32 v230, v230, v224, vcc")
        for k in range(4):
            d = 252 + k
            e("v_add_u32 v29, %d, v28" % (256 * k))
            e("v_mul_u32_u24 v31, 6554, v29")
            e("v_lshrrev_b32 v31, 16, v31")
            e("v_mul_u32_u24 v%d, 10, v31" % d)
            e("v_sub_u32 v%d, v29, v%d" % (d, d))
            e("v_mul_u32_u24 v%d, 160, v%d" % (d, d))
            e("v_lshl_add_u32 v%d, v31, 3, v%d" % (d, d))
            e("v_mul_u32_u24 v31, 6554, v31")
            e("v_lshrrev_b32 v31, 16, v31")
            e("v_mul_u32_u24 v31, 1520, v31")
            e("v_add3_u32 v%d, v%d, v31, s%d" % (d, d, sT2))
        e("v_add_u32 v29, 8192, v255")
        e("v_cndmask_b32 v255, v29, v255, vcc")
        e("s_mul_i32 s%d, s%d, 12800" % (sT2, sS))
        e("s_add_u32 s%d, s%d, 0x%x" % (sT2, sT2, WS_KVF))
        e("v_lshrrev_b32 v28, 2, v23")
        e("v_cmp_eq_u32 s[54:55], v28, v22")
        e("v_mul_u32_u24 v228, 1600, v22")
        e("v_and_b32 v28, 3, v23")
        e("v_mul_u32_u24 v28, 80, v28")
        e("v_add_u32 v228, v228, v28")
        e("v_add_u32 v228, %d, v228" % KVL)
        e("v_add_u32 v229, 6400, v228")
        e("v_mov_b32 v28, %d" % KZ)
        e("v_cndmask_b32 v228, v28, v228, s[54:55]")
        e("v_cndmask_b32 v229, v28, v229, s[54:55]")
    ks_setup()
    L1L = []
    for p in range(16):
        L1L.append(("buffer_load_dwordx4 %s, v24, s[%d:%d], s%d offen sc1" % (vr(160 + 4 * p, 4), SWS, SWS + 3, sT), ("l1", p)))
        if p < 15: L1L.append("s_add_u32 s%d, s%d, 2944" % (sT, sT))
    S = [lambda: g.wait_vm(("l1", 15))]
    for p in range(1, 16): S += ["v_add_f32 v%d, v%d, v%d" % (160 + i, 160 + i, 160 + 4 * p + i) for i in range(4)]
    S += ["v_cvt_pk_bf16_f32 v160, v160, v161", "v_cvt_pk_bf16_f32 v161, v162, v163",
          ("buffer_store_dwordx2 v[160:161], v12, s[%d:%d], s95 offen sc1" % (SWS, SWS + 3), "kvf")]
    INQ = opt.get('inq', 1)
    Lq = [Dens(DQ)] + post(1) + [Mark("postB"), Dens(2)] + L1 + [Dens(0), Delay(opt.get("d1", 12)),
          Hook(before=lambda: g.wait_vm("kvst"), after=lambda: signal(g, 28, 20, 63, 0)), Mark("sigA"), Dens(1)] + phi_frag_reads(0, FA, ("phf", 2))
    Lq += [Delay(opt.get("d2", 0)), lambda: flag_issue(g, 251, 250, sCNT), Mark("issA"), Delay(opt.get("d3", 20)), Hook(before=lambda: flag_check(g, 251, 250, sCNT, 0xffff)), Mark("chkA"), Dens(2)] + L1L + [Mark("l1")] + KS + ([Mark("ks")] + S + [Mark("sum")] if INQ else [])
    pipe.run(36, 54, {2: Lq}, lagok=False, urgent=fine, pauses=[(0, opt.get("apq", 0))])
    if opt.get("verbose"): print(pipe.when)
    g.stamp()
    PQ = [[112, 124], [136, 148]]; PHQ = ACC; E = 164
    put(g, phi_frag_reads(1, 0, ("phf", 3)))
    def packq(rho):
        L = []
        for tt in range(2):
            L += ["v_mov_b32 v%d, 0" % (PQ[rho][tt] + i) for i in (10, 11)] + pack20(ACC + (rho * 2 + tt) * 20, PQ[rho][tt])
        return L
    put(g, packq(0))
    g.wait_lg(("phf", 2))
    blk = lambda rho: [ACC + (rho * 2) * 20, ACC + (rho * 2 + 1) * 20]
    weave(g, phi_mfma(PQ[0], blk(0), FA), packq(1) + [lambda: g.wait_lg(("phf", 3))])
    weave(g, phi_mfma(PQ[1], blk(1), 0), [] if INQ else S)
    SM = [(0, 0), (0, 1), (1, 0), (1, 1)]
    n1, n2, n3 = opt.get("pq", [0, 2, 3])
    for n, (rho, tt) in enumerate(SM + [(None, None)]):
        if n == n1:
            g.wait_vm("kvf"); e("s_barrier"); signal(g, 28, 20, 63, 512)
        if n == n2: flag_issue(g, 251, 250, 46)
        if n == n3:
            g.stamp()
            flag_check(g, 251, 250, 46, 0xffff)
            e("s_barrier")
            g.stamp()
            for k in range(4):
                e("buffer_load_dwordx4 %s, v%d, s[%d:%d], s%d offen sc1" % (vr(232 + 4 * k, 4), 224 if k < 3 else 230, SWS, SWS + 3, sT2), ("kvl", k))
                if k < 3: e("s_add_u32 s%d, s%d, 4096" % (sT2, sT2))
        if rho is not None: put(g, softmax(blk(rho)[tt], blk(rho)[tt], tt, E))
    for k in range(4):
        g.wait_vm(("kvl", k))
        e("ds_write_b64 v%d, %s" % (252 + k, vr(232 + 4 * k, 2)))
        e("ds_write_b64 v%d, %s offset:80" % (252 + k, vr(234 + 4 * k, 2)))
    e("s_waitcnt lgkmcnt(0)")
    e("s_barrier")
    g.stamp()
    def kva(rho, to, ks):
        i = rho * 25 + to * 5 + ks
        return 4 * i if i < 36 else 176 + 4 * (i - 36)
    NUM = 112
    grp = [(rho, to) for rho in range(2) for to in range(5)]
    def kreads(k):
        rho, to = grp[k]
        return [("ds_read_b128 %s, v%d offset:%d" % (ar(kva(rho, to, ks), 4), 228 + rho, to * 320 + ks * 16), ("kva", k)) for ks in range(5)]
    def ocalc(rho):
        L = []
        for tt in range(2):
            s = NUM + (rho * 2 + tt) * 20; o = OB + 20 * tt + 10 * rho
            L += ["v_cndmask_b32 v24, v%d, v%d, s[%d:%d]" % (s + 18, s, sODD, sODD + 1), "v_add_f32 v24, 0x358637bd, v24", "v_rcp_f32 v24, v24", "s_nop 0",
                  "v_mul_f32 v24, v24, v%d" % (26 + tt)]
            if rho: L += ["v_pk_mul_f32 %s, %s, v[24:25] op_sel_hi:[1,0]" % (vr(s + i, 2), vr(s + i, 2)) for i in range(0, 20, 2)]
            else: L += ["v_mul_f32 v%d, v%d, v24" % (s + i, s + i) for i in range(20)]
            L += pack20(s, o)
            L += ["v_cndmask_b32 v%d, v%d, 0, s[%d:%d]" % (o, o, sODD, sODD + 1), "v_cndmask_b32 v%d, 0, v%d, s[%d:%d]" % (o + 9, o + 9, sODD, sODD + 1)]
        return L
    put(g, kreads(0) + kreads(1))
    for tt in range(2): e("v_accvgpr_read_b32 v%d, a%d" % (26 + tt, 240 + tt))
    oc = ocalc(0)
    for k, (rho, to) in enumerate(grp):
        g.wait_lg(("kva", k))
        ms = [mfma(vr(NUM + (rho * 2 + tt) * 20 + 4 * to, 4), ar(kva(rho, to, ks), 4), vr(PHQ + (rho * 2 + tt) * 20 + 4 * ks, 4), "0" if ks == 0 else None)
              for ks in range(5) for tt in range(2)]
        fill = kreads(k + 2) if k + 2 < 10 else []
        if k >= 6:
            n = 20 - len(fill) - 1; fill = fill + oc[:n]; oc = oc[n:]
        weave(g, ms, fill)
    put(g, oc)
    e("s_nop 7")
    put(g, ocalc(1))
    g.stamp()
    for tt in range(2): e("v_rcp_f32 v%d, v%d" % (26 + tt, 26 + tt))
    e("s_lshl_b32 s%d, s%d, 2" % (sT, sR))
    e("s_add_u32 s%d, s%d, s%d" % (sT, sT, sS))
    e("s_lshl_b32 s%d, s%d, 2" % (sT, sT))
    e("s_add_u32 s%d, s%d, s%d" % (sT, sT, sW))
    e("s_lshl_b32 s%d, s%d, 7" % (sT, sT))
    e("s_add_u32 s%d, s%d, 0x%x" % (sT, sT, WS_RS2))
    e("v_cmp_gt_u32 vcc, 16, v0")
    e("v_lshlrev_b32 v28, 2, v0")
    e("v_mov_b32 v29, 0x%x" % OOB)
    e("v_cndmask_b32 v28, v29, v28, vcc")
    for tt in range(2): e("buffer_store_dword v%d, v28, s[%d:%d], s%d offen offset:%d sc1" % (26 + tt, SWS, SWS + 3, sT, 64 * tt))
    for u in range(5):
        if u % 2 == 0: e("s_add_u32 s%d, s%d, %d" % (sT, sOXB, u * 2048))
        for tt in range(2):
            e("buffer_store_dwordx4 %s, v%d, s[%d:%d], s%d offen offset:%d sc1" % (vr(OB + 20 * tt + 4 * u, 4), VST, SWS, SWS + 3, sT, ((u & 1) * 2 + tt) * 1024))
    e("s_waitcnt vmcnt(0)")
    e("s_barrier")
    signal(g, 28, 20, sCQ, 48)
    g.stamp()
```

```python
import sys, re, json
from asmlib import *
import hazard
BASE = "parallel_sum__linear_kernel_hedgehog__glu_gated_reglu__prompt"
K1 = BASE + "_kernel"
K2 = "reduce_kernel"

PSZ = 2048 * 576 * 2
WS_HX = 0x1000000
WS_OX = 0x2200000
WS_RS2 = 0x2500000
WS_KVP = 0x2510000
WS_KVF = 0x2700000
WS_FLG = 0x2780000
WS_TS = 0x2800000
WS_BYTES = 0x10000000
SX, SW1, SW2, SWS, SDBG, SPHI = 8, 12, 16, 20, 24, 28
sW, sR, sS, sT, sOFF, sM0W, sB1, sB2, sST, sT2 = 32, 33, 34, 35, 36, 37, 38, 39, 40, 41
sCNT = 52
OOB = 0x40000000
RING = 144
NB = 8

class G(Asm):
    def __init__(self, opt):
        super().__init__()
        self.opt = opt
        self.vm = []
        self.lg = []
        self.nts = 0
        self.sv = 30
    def e(self, s, tag=None):
        if s.startswith(("buffer_", "global_")): self.vm.append(tag)
        if s.startswith("ds_"): self.lg.append(tag)
        super().e(s)
    def vm_n(self, tag):
        idx = [i for i, t in enumerate(self.vm) if t == tag]
        assert idx, tag
        return len(self.vm) - 1 - idx[-1]
    def wait_vm(self, tag):
        n = min(self.vm_n(tag), 63)
        self.e("s_waitcnt vmcnt(%d)" % n)
    def wait_lg(self, tag):
        idx = [i for i, t in enumerate(self.lg) if t == tag]
        n = min(len(self.lg) - 1 - idx[-1], 15)
        self.e("s_waitcnt lgkmcnt(%d)" % n)
    def stamp(self):
        e = self.e
        if self.opt.get("amp") is not None:
            if self.nts in (0, self.opt["amp"]):
                e("s_memrealtime s[92:93]"); e("s_waitcnt lgkmcnt(0)")
                e("s_mov_b32 s%d, s92" % (100 if self.nts == 0 else 101))
            self.nts += 1
            return
        if not self.opt.get("ts"): return
        e("s_memtime s[90:91]"); e("s_memrealtime s[92:93]")
        e("s_waitcnt lgkmcnt(0)")
        if self.opt.get("dbgts") is not None:
            sel = self.opt.get("dbgsel", list(range(15)))
            if self.nts in sel:
                e("v_mov_b32 v30, s92")
                e("buffer_store_dword v30, off, s[%d:%d], s94 offset:%d" % (SDBG, SDBG + 3, 4 + 4 * sel.index(self.nts)))
            self.nts += 1
            return
        for k, sg in enumerate((90, 92)):
            e("v_mov_b32 v%d, s%d" % (self.sv, sg))
            e(("buffer_store_dword v%d, off" % self.sv) + ", s[%d:%d], s94 offset:%d" % (SWS, SWS + 3, 8 * self.nts + 4 * k))
        self.nts += 1

def mfma(d, a, b, c=None):
    return "v_mfma_f32_16x16x32_bf16 %s, %s, %s, %s" % (d, a, b, d if c is None else c)

class Stage:
    def __init__(self, lo, hi, pre, dmas, frags, gate=None):
        dmas = [d if isinstance(d, list) else [d] for d in dmas]
        dmas[0] = list(pre) + dmas[0]
        self.lo, self.hi, self.dmas, self.frags, self.gate = lo, hi, dmas, frags, gate
        self.before = None; self.after = None

class Pipe:
    def __init__(self, g, stages, D=6, BE=1):
        self.g, self.st, self.D, self.BE = g, stages, D, BE
        self.next = 0
        self.safe = -1
        self.q = []
        self.open = set()
        self.fi = 0
        self.done = -1
        self.qthr = g.opt.get("qthr", 3)
        self.when = {}
    def can(self, m):
        s = self.st[m]
        if s.gate is not None and s.gate not in self.open: return False
        return all(k <= self.safe for k in range(m) if self.st[k].lo < s.hi and s.lo < self.st[k].hi)
    def refill(self):
        while self.next < len(self.st) and self.can(self.next):
            for d in self.st[self.next].dmas: self.q.append([list(d), ("st", self.next)])
            self.next += 1
    def pop(self):
        if not self.q: return []
        t, tag = self.q.pop(0)
        return [(x, tag) for x in t]
    def flush(self):
        while self.q:
            for t, tag in self.pop(): self.g.e(t, tag)
    def enter(self, n, last, hook=None):
        g = self.g
        late = 0
        while any(tag[1] <= last for _, tag in self.q):
            late += 1
            for t, tg in self.pop(): g.e(t, tg)
        if late and n > 2: print("warning: %d DMA issued late for stage %d" % (late, n))
        assert self.next > last, (n, last)
        for k in range(n, last + 1):
            if self.st[k].before: self.st[k].before()
        if hook and hook.before: hook.before()
        g.wait_vm(("st", last)); g.e("s_barrier")
        if hook and hook.after: hook.after()
        for k in range(n, last + 1):
            if self.st[k].after: self.st[k].after()
        self.safe = max(self.safe, self.done)
        self.refill()
    def run(self, s0, s1, extra=None, pauses=(), groups=None, urgent=None, lagok=True):
        g, D = self.g, self.D
        WP = g.opt.get("wp", 4)
        pend = []; urg = []; urgent = urgent or {}; cur = [0]; dens = [0]
        extra = extra or {}
        fl = [(n, k, f) for n in range(s0, s1) for k, f in enumerate(self.st[n].frags)]
        if groups is None: groups = list(range(s0, s1, self.BE))
        gend = {a: (groups[i + 1] if i + 1 < len(groups) else s1) - 1 for i, a in enumerate(groups)}
        base = self.fi
        needbar = lambda j: j < len(fl) and fl[j][1] == 0 and fl[j][0] in gend
        def reads(j):
            buf = RING + 4 * ((base + j) % NB)
            for t in fl[j][2][0](buf): g.e(t, ("fr", base + j))
        def wl(i):
            w = min(i + WP - 1, len(fl) - 1)
            g.wait_lg(("fr", base + w))
            self.done = max(self.done, fl[w][0] if fl[w][1] == len(self.st[fl[w][0]].frags) - 1 else fl[w][0] - 1)
        def cost(it):
            if isinstance(it, (Mark, Dens)): return 0
            if isinstance(it, Hook): return 99
            if isinstance(it, Delay):
                if it.until is None: it.until = cur[0] + it.n
                return 0 if cur[0] >= it.until else 99
            if callable(it): return getattr(it, "cost", 2)
            if isinstance(it, list): return min(len(it), 2)
            t = it[0] if isinstance(it, tuple) else it
            return 2 if t.startswith(("buffer_", "global_", "v_mfma", "v_exp", "v_rcp")) else 1
        def emit(it, i):
            if isinstance(it, Mark): self.when[it.name] = i
            elif isinstance(it, Dens): dens[0] = it.n
            elif isinstance(it, Delay):
                if i >= len(fl): g.e("s_nop 7")
            elif isinstance(it, Hook):
                if it.before: it.before()
                g.e("s_barrier")
                if it.after: it.after()
            elif callable(it): it()
            elif isinstance(it, list):
                for x in it: g.e(x)
            elif isinstance(it, tuple): g.e(it[0], it[1])
            else: g.e(it)
        for j in range(min(D, len(fl))):
            if needbar(j): self.enter(fl[j][0], gend[fl[j][0]])
            reads(j)
        if needbar(D): self.enter(fl[D][0], gend[fl[D][0]])
        wl(0)
        since = 9
        for i, (n, k, f) in enumerate(fl):
            ms = f[1](RING + 4 * ((base + i) % NB))
            g.e(ms[0])
            if i + D < len(fl): reads(i + D)
            g.e(ms[1])
            pend += [(i, x) for x in extra.get(i, [])]; urg += urgent.get(i, [])
            since += 1; cur[0] = i
            wdue = (i + 1) % WP == 0 and i + 1 < len(fl)
            if needbar(i + 1 + D):
                if wdue: wl(i + 1)
                hook = pend.pop(0)[1] if pend and isinstance(pend[0][1], Hook) else None
                self.enter(fl[i + 1 + D][0], gend[fl[i + 1 + D][0]], hook)
                continue
            paused = any(a <= i < b for a, b in pauses)
            if urg and not wdue:
                slots = 2
                while urg and cost(urg[0]) <= slots:
                    it = urg.pop(0); slots -= cost(it); emit(it, i)
                continue
            used = False
            if self.q and len(self.q[0][0]) > 1:
                if wdue: wl(i + 1)
                while len(self.q[0][0]) > 1: g.e(self.q[0][0].pop(0))
                used = True
            elif self.q and not wdue and not paused and since >= (2 if len(self.q) > self.qthr and not any(b <= i < b + g.opt.get("slow", 0) for a, b in pauses if b > a) else self.g.opt.get("dcad", 3)):
                it = self.q.pop(0); g.e(it[0][0], it[1]); since = 0
                used = True
            if used and not dens[0]: continue
            slots = 0 if used else 2
            if wdue and not used: wl(i + 1); slots = 1
            if dens[0]: slots += dens[0]
            elif lagok and pend and i - pend[0][0] > g.opt.get("lag", 30): slots += 1
            while pend and cost(pend[0][1]) <= slots:
                it = pend.pop(0)[1]; slots -= cost(it); emit(it, i)
        for it in urg + [x[1] for x in pend]: emit(it, len(fl))
        self.fi = base + len(fl)
    def drained(self, upto):
        self.safe = max(self.safe, upto); self.refill()

class Mark:
    def __init__(self, name): self.name = name
class Hook:
    def __init__(self, before=None, after=None): self.before, self.after = before, after
class Delay:
    def __init__(self, n): self.n = n; self.until = None
class Dens:
    def __init__(self, n): self.n = n

def group_scc(ops):
    out = []
    for op in ops:
        if isinstance(op, str) and op.startswith("s_cselect"): out[-1] = [out[-1], op]
        else: out.append(op)
    return out

def spread(ops, lo, hi, extra):
    ops = group_scc(ops); n = hi - lo
    for k, op in enumerate(ops):
        extra.setdefault(lo + k * n // len(ops), []).append(op)

def lane_consts(g):
    e = g.e
    e("v_lshrrev_b32 v22, 4, v0")
    e("v_and_b32 v23, 15, v0")

def x_setup(g):
    e = g.e
    e("v_lshrrev_b32 v104, 3, v0")
    e("v_mul_u32_u24 v104, 1152, v104")
    e("v_and_b32 v105, 7, v0")
    e("v_xor_b32 v105, v105, v22")
    e("v_lshl_add_u32 v104, v105, 4, v104")
    e("s_lshl_b32 s4, s%d, 2" % sR)
    e("s_add_u32 s4, s4, s%d" % sW)
    e("s_mul_i32 s4, s4, 36864")
    e("s_mul_i32 s5, s%d, 36864" % sW)
    e("s_lshr_b32 s60, s2, 6")
    e("s_and_b32 s6, s2, 64")
    e("v_xor_b32 v104, s6, v104")
    e("v_xor_b32 v105, 64, v104")

def x_dma(g, o, j):
    e = g.e
    if j == 0:
        e("s_add_u32 s6, s60, %d" % o)
        e("s_and_b32 s6, s6, 3")
        e("s_mulk_i32 s6, 9216")
        e("s_add_u32 m0, s5, s6")
        e("s_add_u32 s7, s4, s6")
    else:
        e("s_addk_i32 m0, 1024")
        e("s_addk_i32 s7, 128")
    e("buffer_load_dwordx4 v%d, s[%d:%d], s7 offen %s lds" % (104 + (o & 1), SX, SX + 3, g.opt.get("xflags", "")), ("x", j))

def prologue(g, pipe, XV=112, early=None, afterbar=None, fill=(), var=False, nfirst=8, mid=None, postc=None):
    e, opt = g.e, g.opt
    xf = opt.get("xflags", "")
    NC = opt.get("xcommon", 1)
    nf = 9 * (4 - NC)
    for o in range(NC, 4):
        for j in range(9):
            x_dma(g, o, j)
            k = (o - NC) * 9 + j
            if mid and o * 9 + j == mid[0]: mid[1]()
            for it in fill[k * len(fill) // nf:(k + 1) * len(fill) // nf]:
                for x in (it if isinstance(it, list) else [it]): e(x, "fill")
    if early: early()
    e("v_lshrrev_b32 v106, 3, v23")
    e("v_mul_u32_u24 v106, 9216, v106")
    e("v_and_b32 v107, 7, v23")
    e("v_lshl_add_u32 v106, v107, 7, v106")
    e("v_lshrrev_b32 v107, 1, v23")
    e("v_xor_b32 v107, v107, v22")
    e("v_lshl_add_u32 v106, v107, 4, v106")
    e("v_add_u32 v106, s5, v106")
    e("v_xor_b32 v107, 64, v106")
    for i in range(4): e("v_mov_b32 v%d, 0x3f803f80" % (80 + i))
    for i in (72, 73, 76, 77): e("v_mov_b32 v%d, 0" % i)
    e("v_lshrrev_b32 v108, 2, v23")
    e("v_cmp_eq_u32 vcc, v108, v22")
    e("v_and_b32 v108, 1, v23")
    e("v_lshlrev_b32 v108, 4, v108")
    e("v_mov_b32 v78, 0x3f80")
    e("v_lshlrev_b32 v78, v108, v78")
    e("v_cndmask_b32 v78, 0, v78, vcc")
    e("v_and_b32 v108, 2, v23")
    e("v_cmp_eq_u32 vcc, 0, v108")
    e("s_nop 1")
    e("v_cndmask_b32 v74, 0, v78, vcc")
    e("v_cndmask_b32 v75, v78, 0, vcc") if False else None
    e("v_sub_u32 v75, v78, v74")
    X = lambda tt, ks: XV + (ks * 2 + tt) * 4
    g.stamp()
    for j in range(10):
        if j < 9:
            g.wait_vm(("x", j))
            for ks in (2 * j, 2 * j + 1):
                for tt in range(2):
                    e("ds_read_b128 %s, v%d offset:%d" % (vr(X(tt, ks), 4), 106 + (ks & 1), tt * 18432 + j * 1024), ("xr", j))
        if j > 0:
            g.wait_lg(("xr", j - 1))
            for ks in (2 * j - 2, 2 * j - 1):
                for tt in range(2):
                    e(mfma(vr(64 + 4 * tt, 4), vr(80, 4), vr(X(tt, ks), 4), "0" if ks == 0 else None))
    e("s_barrier")
    g.stamp()
    pipe.open.add("x"); pipe.refill()
    for _ in range(nfirst):
        for t, tag in pipe.pop(): e(t, tag)
    if afterbar: afterbar()
    e("s_nop 3")
    e("s_mov_b32 s%d, 0x%08x" % (sT, 0xbae38e39))
    for i in range(8): e("v_mul_f32 v%d, s%d, v%d" % (64 + i, sT, 64 + i))
    e("s_nop 1")
    for _ in range(opt.get("delay", 0)): e("s_sleep 32")
    fr = [(tt, ks) for ks in range(18) for tt in range(2)]
    LAG = 2
    for k in range(len(fr) + LAG + 1):
        cv = []
        if LAG <= k < len(fr) + LAG:
            tt, ks = fr[k - LAG]; d = 32 + 8 * ((k - LAG) % 4); x = X(tt, ks)
            cv = ["v_cvt_pk_bf16_f32 v%d, v%d, v%d" % (x + i, d + 2 * i, d + 2 * i + 1) for i in range(4)]
        if k < len(fr):
            tt, ks = fr[k]; d = 32 + 8 * (k % 4)
            e(mfma(vr(d, 4), vr(74, 4), vr(X(tt, ks), 4), vr(64 + 4 * tt, 4)))
            if k == LAG: e("s_nop 3")
            for t in cv[:2]: e(t)
            e(mfma(vr(d + 4, 4), vr(72, 4), vr(X(tt, ks), 4), vr(64 + 4 * tt, 4)))
            for t in cv[2:]: e(t)
        else:
            e("s_nop 3")
            for t in cv: e(t)
        if var and k > LAG:
            tt, ks = fr[k - LAG - 1]; x = X(tt, ks)
            e(mfma(vr(96 + 4 * tt, 4), vr(x, 4), vr(x, 4), "0" if ks == 0 else None))
    if postc: postc()
    g.stamp()

def XV0(tt, ks): return vr(112 + (ks * 2 + tt) * 4, 4)
def xc_copies(): return ["v_accvgpr_write_b32 a%d, v%d" % (i, 112 + i) for i in range(144)]
def XC(tt, ks): return ar((ks * 2 + tt) * 4, 4)

def tr_bases(g, dst, rowmul):
    e = g.e
    out = []
    out.append("v_bfe_u32 v28, v0, 2, 2")
    out.append("v_mad_u32_u24 v28, v22, %d, v28" % rowmul)
    out.append("v_lshlrev_b32 v%d, 7, v28" % dst)
    out.append("v_bfe_u32 v28, v0, 3, 2")
    out.append("v_lshl_add_u32 v%d, v28, 5, v%d" % (dst, dst))
    out.append("v_and_b32 v28, 3, v0")
    out.append("v_lshl_add_u32 v%d, v28, 3, v%d" % (dst, dst))
    for t in range(1, 4): out.append("v_xor_b32 v%d, %d, v%d" % (dst + t, 32 * t, dst))
    for grp in (1, 2):
        for t in range(4): out.append("v_add_u32 v%d, 0x%x, v%d" % (dst + 4 * grp + t, grp << 16, dst + t))
    return out

def tr_reads(bases, t, off, second):
    def f(buf):
        o2 = off + second
        assert (off >> 16) == (o2 >> 16)
        b = bases + 4 * (off >> 16) + t
        return ["ds_read_b64_tr_b16 %s, v%d offset:%d" % (ar(buf, 2), b, off & 0xffff),
                "ds_read_b64_tr_b16 %s, v%d offset:%d" % (ar(buf + 2, 2), b, o2 & 0xffff)]
    return f

def store_ops(g, acc, P, c, voff, sbase=None, ntile=4, tag=None):
    ops = ["s_add_u32 s%d, s%d, %d" % (sT2, sST if sbase is None else sbase, c * 4096)]
    for tt in range(2):
        for hf in range(ntile // 2):
            p = P + ((tt * (ntile // 2) + hf) % 2) * 4
            for k in range(2):
                s = acc + ((2 * hf + k) * 2 + tt) * 4
                ops.append("v_cvt_pk_bf16_f32 v%d, v%d, v%d" % (p + 2 * k, s, s + 1))
                ops.append("v_cvt_pk_bf16_f32 v%d, v%d, v%d" % (p + 2 * k + 1, s + 2, s + 3))
            ops.append(("buffer_store_dwordx4 %s, v%d, s[%d:%d], s%d offen offset:%d sc1" % (vr(p, 4), voff, SWS, SWS + 3, sT2, (tt * 2 + hf) * 1024), tag))
    return ops

sNON = 97
def flag_load(vreg, vfl, sline):
    if sline is None: return "buffer_load_dword v%d, v%d, s[%d:%d], 0 offen sc1" % (vreg, vfl, SDBG, SDBG + 3)
    return "buffer_load_dword v%d, v%d, s[%d:%d], s%d offen sc1" % (vreg, vfl, SWS, SWS + 3, sline)

def flag_issue(g, vreg, vfl, sline):
    g.e(flag_load(vreg, vfl, sline), "flag")

def flag_check(g, vreg, vfl, sline, mask, issued=True, sleep=4):
    if g.opt.get("nofl") and sline is not None: return
    e = g.e
    L = g.newlabel("L_poll"); Ld = g.newlabel("L_polld"); Lc = g.newlabel("L_pollc")
    e("s_cmp_lg_u32 s%d, 0" % sW)
    e("s_cbranch_scc1 %s" % Ld)
    e("s_mov_b32 s89, 0x20000")
    if issued:
        g.wait_vm("flag")
        e("s_branch %s" % Lc)
    g.label(L)
    Asm.e(g, flag_load(vreg, vfl, sline))
    e("s_waitcnt vmcnt(0)")
    g.label(Lc)
    if sline is None:
        e("v_readfirstlane_b32 s%d, v%d" % (sNON, vreg))
        e("s_sub_u32 s89, s89, 1")
        e("s_cmp_lg_u32 s%d, 0" % sNON)
    else:
        e("v_cmp_eq_u32 s[98:99], s%d, v%d" % (sNON, vreg))
        e("s_sub_u32 s89, s89, 1")
        m = mask if isinstance(mask, str) else "0x%x" % mask
        e("s_and_b32 s98, s98, %s" % m)
        e("s_cmp_eq_u32 s98, %s" % m)
    e("s_cbranch_scc1 %s" % Ld)
    e("s_sleep %d" % sleep)
    e("s_cmp_lg_u32 s89, 0")
    e("s_cbranch_scc1 %s" % L)
    g.label(Ld)

def flag_lane_offsets(vfl, vtmp):
    return ["s_lshl_b32 s96, s%d, 6" % sW, "v_add_u32 v%d, s96, v0" % vtmp, "v_cmp_gt_u32 vcc, 16, v%d" % vtmp, "v_lshlrev_b32 v%d, 2, v0" % vfl,
            "v_mov_b32 v%d, 0x%x" % (vtmp, OOB), "v_cndmask_b32 v%d, v%d, v%d, vcc" % (vfl, vtmp, vfl)]

def code_pf(label, add=0):
    return "s_load_dword s88, s[86:87], @%s+%d" % (label, add)

def signal(g, vtmp, voff, sword, imm=0):
    g.e("v_mov_b32 v%d, s%d" % (vtmp, sNON))
    g.e("buffer_store_dword v%d, v%d, s[%d:%d], s%d offen offset:%d sc1" % (vtmp, voff, SWS, SWS + 3, sword, imm))

def ffn_role(g):
    e, opt = g.e, g.opt
    wf = opt.get("wflags", "")
    ACC = [32, 96]; H = 160; B1 = 9; PK = 128; VST = 21; BH = 144
    sI, sJ = 42, 43; sKB = 44; sHX = 47; sKO = 53; sKS = 56; sKK = 86; sM0H = 50; sSO = 51; sSS = 59; sWO = 78; sOX = 83; sM0B = 84; sWT = 85
    e("s_sub_u32 s%d, s3, 1" % sI)
    e("s_mov_b32 s%d, s%d" % (sJ, sS))
    e("s_mul_i32 s%d, s%d, 3" % (sS, sJ))
    e("s_add_u32 s%d, s%d, s%d" % (sS, sS, sI))
    e("s_cmp_ge_u32 s%d, 2" % sW)
    e("s_cselect_b32 s%d, s74, s72" % sT)
    e("s_cselect_b32 s%d, s75, s73" % sT2)
    srd(g, SW1, sT, sT2, 576 * 4608 * 2)
    e("s_lshl_b32 s%d, s%d, 12" % (sM0W, sW))
    e("s_mul_i32 s%d, s%d, 768" % (sB1, sS))
    def late_setup():
        o = []; sT = 95
        a = Asm(); srd(a, SW2, 76, 77, 4608 * 576 * 2); srd(a, SPHI, 70, 71, 576 * 576 * 2); a.e('s_mov_b32 s61, s78'); a.e('s_mov_b32 s62, s79')
        o += [l.strip() for l in a.lines]
        o += ["s_lshl_b32 s98, s%d, 6" % sJ, "s_and_b32 s99, s98, 128", "s_xor_b32 s99, s99, 128"]
        for b in range(3):
            o += ["s_add_u32 s%d, s%d, %d" % (sT, sI, b), "s_cmp_ge_u32 s%d, 3" % sT, "s_cselect_b32 s96, 3, 0", "s_sub_u32 s%d, s%d, s96" % (sT, sT),
                  "s_mul_i32 s96, s%d, 3" % sJ, "s_add_u32 s%d, s%d, s96" % (sT, sT),
                  "s_mul_i32 s%d, s%d, %d" % (sKB + b, sT, 384 * 1152), "s_mul_i32 s96, s%d, 384" % sI, "s_add_u32 s%d, s%d, s96" % (sKB + b, sKB + b),
                  "s_add_u32 s%d, s%d, s99" % (sKO + b, sKB + b), "s_add_u32 s%d, s%d, s98" % (sKK + b, sKB + b), "s_xor_b32 s%d, s%d, 64" % (sKS + b, sKK + b),
                  "s_mul_i32 s96, s%d, 12" % sR, "s_add_u32 s%d, s%d, s96" % (sT, sT), "s_lshl_b32 s%d, s%d, 2" % (sT, sT), "s_add_u32 s%d, s%d, s%d" % (sT, sT, sW),
                  "s_mul_i32 s%d, s%d, 24576" % (sHX + b, sT), "s_add_u32 s%d, s%d, 0x%x" % (sHX + b, sHX + b, WS_HX)]
        o += ["s_lshl_b32 s%d, s%d, 2" % (sT, sR), "s_add_u32 s%d, s%d, s%d" % (sT, sT, sJ), "s_lshl_b32 s%d, s%d, 7" % (sCNT, sT), "s_add_u32 s%d, s%d, 0x%x" % (sCNT, sCNT, WS_FLG),
              "s_lshl_b32 s63, s%d, 2" % sI, "s_add_u32 s63, s63, s%d" % sCNT]
        o += ["s_mul_i32 s%d, s%d, %d" % (sST, sJ, PSZ), "s_mul_i32 s%d, s%d, 12288" % (sB2, sI), "s_add_u32 s%d, s%d, s4" % (sB2, sB2),
              "s_add_u32 s%d, s%d, s%d" % (sST, sST, sB2), "s_lshl_b32 s%d, s%d, 11" % (sM0H, sW),
              "s_lshl_b32 s96, s99, 5", "s_add_u32 s%d, s%d, s96" % (sSO, sST),
              "s_xor_b32 s96, s96, 4096", "s_add_u32 s%d, s%d, s96" % (sSS, sST), "s_and_b32 s96, s98, 64", "s_xor_b32 s96, s96, 64",
              "s_lshl_b32 s96, s96, 4", "s_add_u32 s%d, s%d, s96" % (sSS, sSS)]
        o += ["s_lshl_b32 s95, s%d, 2" % sR, "s_add_u32 s95, s95, s%d" % sJ, "s_lshl_b32 s95, s95, 2", "s_add_u32 s95, s95, s%d" % sW,
              "s_mul_i32 s%d, s95, 10240" % sOX, "s_add_u32 s%d, s%d, 0x%x" % (sOX, sOX, WS_OX),
              "s_mul_i32 s%d, s%d, %d" % (sWT, sJ, 144 * 1152), "s_mul_i32 s96, s%d, 384" % sI, "s_add_u32 s%d, s%d, s96" % (sWT, sWT), "s_lshl_b32 s%d, s%d, 10" % (sM0B, sW)]
        for i in range(5):
            d = sWO + i
            o += (["s_lshl_b32 s95, s%d, 2" % sW, "s_add_u32 s95, s95, %d" % i] if i < 4 else ["s_add_u32 s95, s%d, 16" % sW])
            o += ["s_lshr_b32 s96, s95, 1", "s_lshl_b32 s%d, s96, 2" % d, "s_cmp_ge_u32 s96, 5", "s_cselect_b32 s96, 52, 0",
                  "s_add_u32 s%d, s%d, s96" % (d, d), "s_and_b32 s95, s95, 1", "s_mul_i32 s95, s95, 36",
                  "s_add_u32 s%d, s%d, s95" % (d, d), "s_mul_i32 s%d, s%d, 1152" % (d, d), "s_add_u32 s%d, s%d, s%d" % (d, d, sWT)]
        return o
    stages = []; start = [0]
    def slot(n): return ((n + 9) % 10) * 16384
    def push(st): stages.append(st); start.append(start[-1] + len(st.frags))
    for rho in range(6):
        acc = ACC[rho & 1]
        for st in range(9):
            n = len(stages); lo = slot(n)
            pre = ["s_add_u32 m0, s%d, %d" % (sM0W, lo), "s_add_u32 s%d, s%d, %d" % (sOFF, sB1, st * 64 * 9216 + rho * 128)]
            dmas = ["buffer_load_dwordx4 v%d, s[%d:%d], s%d offen offset:%d %s lds" % (1 + i, SW1, SW1 + 3, sOFF, i * 1024, wf) for i in range(4)]
            frags = []
            for kk in range(2):
                ks = 2 * st + kk
                for t in range(4):
                    for mat in range(2):
                        def mf(buf, ks=ks, t=t, mat=mat, acc=acc, XC=(XC if rho else XV0)):
                            order = (0, 1) if mat == 0 else (1, 0)
                            return [mfma(vr(acc + ((t * 2 + mat) * 2 + tt) * 4, 4), ar(buf, 4), XC(tt, ks), "0" if ks == 0 else None) for tt in order]
                        frags.append((tr_reads(B1, t, lo + mat * 8192 + kk * 4096, 512), mf))
            push(Stage(lo, lo + 16384, pre, dmas, frags, None if n == 0 else "x"))
    def hreg(b, u, tt):
        k = (u * 2 + tt) * 4
        if b == 0: return vr(H + k, 4)
        if b == 2: return ar(k, 4)
        if b == 1: return ar(176 + k, 4) if u < 8 else ar(96 + k - 64, 4)
        if u < 2: return ar(128 + k, 4)
        if u < 4: return ar(240 + k - 16, 4)
        return vr(136 + k - 32, 4)
    A2, AO, AS, AK = 32, 64, 96, 112
    def mk(acc, b, u, t, z):
        def mf(buf):
            order = (0, 1) if t % 2 == 0 else (1, 0)
            return [mfma(vr(acc + (t * 2 + tt) * 4, 4), ar(buf, 4), hreg(b, u, tt), "0" if z else None) for tt in order]
        return mf
    def full(b, q, acc):
        lo = slot(len(stages))
        sb, add = (sKB + b, 256) if acc == A2 else (sKO + b, 0)
        pre = ["s_add_u32 m0, s%d, %d" % (sM0W, lo), "s_add_u32 s%d, s%d, %d" % (sOFF, sb, q * 128 * 1152 + add)]
        dmas = ["buffer_load_dwordx4 v%d, s[%d:%d], s%d offen offset:%d %s lds" % (5 + i, SW2, SW2 + 3, sOFF, i * 1024, wf) for i in range(4)]
        frags = [(tr_reads(B1, t, lo + kk * 4096, 2048), mk(acc, b, 4 * q + kk, t, (b, q, kk) == (0, 0, 0))) for kk in range(4) for t in range(4)]
        push(Stage(lo, lo + 16384, pre, dmas, frags, "x"))
    def half(bqs, acc):
        lo = slot(len(stages)); dmas = []; frags = []
        for k, (b, q) in enumerate(bqs):
            p = lo + 8192 * k
            ld = ["buffer_load_dwordx4 v%d, s[%d:%d], s%d offen offset:%d %s lds" % ((25, 22)[i], SW2, SW2 + 3, sOFF, i * 1024, wf) for i in range(2)]
            dmas += [["s_add_u32 m0, s%d, %d" % (sM0H, p), "s_add_u32 s%d, s%d, %d" % (sOFF, (sKS if acc == AS else sKK) + b, q * 128 * 1152), ld[0]], [ld[1]]]
            for kk in range(4):
                for t in range(2):
                    off = p + kk * 2048
                    def rd(buf, off=off, t=t):
                        v = BH + 2 * (off >> 16) + t
                        return ["ds_read_b64_tr_b16 %s, v%d offset:%d" % (ar(buf, 2), v, off & 0xffff), "ds_read_b64_tr_b16 %s, v%d offset:%d" % (ar(buf + 2, 2), v, (off & 0xffff) + 1024)]
                    frags.append((rd, mk(acc, b, 4 * q + kk, t, acc == AS and (b, q, kk) == (0, 0, 0))))
        push(Stage(lo, lo + 16384, [], dmas, frags, "x"))
    def wo(us, acc):
        lo = slot(len(stages)); v = {A2: 1, AO: 2, AS: 3}[acc]
        sel = [(sM0W, lo + i * 1024, sWO + i) for i in range(4)] if len(us) == 4 else [(sM0B, lo, sWO + 4)]
        dmas = [["s_add_u32 m0, s%d, %d" % (m, o), "s_nop 0", "buffer_load_dwordx4 v%d, s[%d:%d], s%d offen %s lds" % (v, SPHI, SPHI + 3, so, wf)] for m, o, so in sel]
        frags = [(tr_reads(B1, t, lo + kk * 4096, 2048), mk(acc, 3, u, t, acc == AS and u == 0 and t >= 2)) for kk, u in enumerate(us) for t in range(4)]
        push(Stage(lo, lo + 16384, [], dmas, frags, "x"))
    Q = lambda q: list(range(4 * q, 4 * q + 4))
    BQ = [(0, 0), (0, 1), (0, 2), (1, 0), (1, 1), (2, 0), (2, 1), (1, 2), (2, 2)]
    first = {}
    S2 = len(stages)
    for n, bq in enumerate(BQ[:7]):
        first[bq] = len(stages)
        full(*bq, A2); full(*bq, AO)
        if n == 3: SH0 = len(stages); half(BQ[0:2], AS); half(BQ[2:4], AS)
        if n == 6: half(BQ[4:6], AS); half(BQ[6:7], AS)
    SL = len(stages); first[(1, 2)] = SL; first[(2, 2)] = SL + 1; SO = SL + 2
    for acc in (A2, AO):
        full(1, 2, acc); full(2, 2, acc); wo(Q(0), acc); wo([4], acc)
    half(BQ[7:9], AS); wo(Q(0), AS); wo([4], AS)
    SK = len(stages)
    for n in range(0, 9, 2): half(BQ[n:n + 2], AK)
    pipe = Pipe(g, stages, opt.get("D", 7), 2)
    TOUCH = opt.get("touch", 1); tf = opt.get("tflags", "")
    def touch1(rho): return ["buffer_load_dword v31, v29, s[%d:%d], s%d offen offset:%d %s" % (SW1, SW1 + 3, sB1, rho * 128, tf)]
    def touch2(b):
        if b == 3: return ["buffer_load_dword v31, v26, s[%d:%d], s%d offen %s" % (SPHI, SPHI + 3, sWT, tf)]
        if opt.get("t2c", 0):
            return [["s_add_u32 s3, s60, %d" % (b * 96 * 4608), "buffer_load_dword v31, v30, s[%d:%d], s3 offen %s" % (SW2, SW2 + 3, tf)]]
        return ["buffer_load_dword v31, v26, s[%d:%d], s%d offen %s" % (SW2, SW2 + 3, sKB + b, tf)]
    def early():
        e("v_lshrrev_b32 v28, 3, v0")
        e("s_and_b32 s%d, s%d, 1" % (sOFF, sW))
        e("s_lshl_b32 s%d, s%d, 5" % (sOFF, sOFF))
        e("v_add_u32 v1, s%d, v28" % sOFF)
        e("v_mul_u32_u24 v1, 9216, v1")
        e("v_and_b32 v2, 2, v28")
        e("v_and_b32 v3, 7, v0")
        e("v_xor_b32 v2, v2, v3")
        e("v_lshl_add_u32 v1, v2, 4, v1")
        e("v_xor_b32 v2, 64, v1")
        e("v_add_u32 v2, %d, v2" % (8 * 9216 - 1024))
        e("v_add_u32 v3, %d, v1" % (2 * (8 * 9216 - 1024)))
        e("v_add_u32 v4, %d, v2" % (2 * (8 * 9216 - 1024)))
        pipe.refill(); pipe.flush()
    vset = ["v_lshrrev_b32 v28, 3, v0", "s_lshl_b32 s96, s%d, 5" % sW, "v_add_u32 v5, s96, v28", "v_mul_u32_u24 v5, 1152, v5",
            "v_lshlrev_b32 v6, 1, v22", "v_and_b32 v7, 7, v0", "v_xor_b32 v6, v6, v7", "v_lshl_add_u32 v5, v6, 4, v5",
            "v_lshrrev_b32 v28, 2, v0", "v_add_u32 v25, s96, v28", "v_mul_u32_u24 v25, 1152, v25", "v_and_b32 v6, 3, v6", "v_lshl_add_u32 v25, v6, 4, v25"]
    vset += ["v_add_u32 v%d, %d, v5" % (5 + i, i * (8 * 1152 - 1024)) for i in range(1, 4)]
    vset += ["v_lshlrev_b32 v%d, 4, v0" % VST, "v_lshlrev_b32 v27, 9, v22", "v_add_u32 v28, s%d, v0" % sW, "v_cmp_eq_u32 vcc, 0, v28",
             "v_mov_b32 v24, 0x%x" % OOB, "v_mov_b32 v28, 0", "v_cndmask_b32 v24, v24, v28, vcc"]
    vset += ["v_mul_u32_u24 v28, 5462, v0", "v_lshrrev_b32 v28, 16, v28", "v_mul_u32_u24 v26, 12, v28", "v_sub_u32 v26, v0, v26",
             "s_mul_i32 s96, s%d, 12" % sW, "s_and_b32 s95, s%d, 7" % sR, "s_mul_i32 s95, s95, 48", "s_add_u32 s96, s96, s95",
             "v_add_u32 v26, s96, v26", "v_mul_u32_u24 v26, 1152, v26", "v_lshl_add_u32 v26, v28, 7, v26",
             "s_cmp_ge_u32 s96, 144", "s_cselect_b32 s%d, 0x%x, s%d" % (sWT, OOB, sWT),
             "s_and_b32 s96, s%d, 1" % sW, "s_mul_i32 s96, s96, 36", "s_and_b32 s95, s%d, 7" % sR, "s_mul_i32 s95, s95, 72", "s_add_u32 s96, s96, s95",
             "v_add_u32 v29, s96, v0", "v_mul_u32_u24 v29, 9216, v29",
             "v_cmp_gt_u32 vcc, 36, v0", "v_mov_b32 v28, 0x%x" % OOB, "s_nop 0", "v_cndmask_b32 v26, v28, v26, vcc", "v_cndmask_b32 v29, v28, v29, vcc"]
    sp = []
    NSP = opt.get("nsp", 0)
    if NSP:
        e("s_and_b32 s6, s%d, 7" % sR); e("s_lshl_b32 s6, s6, 1"); e("s_and_b32 s7, s%d, 1" % sW); e("s_add_u32 s6, s6, s7")
        e("s_mul_i32 s6, s6, %d" % (NSP * 9216)); e("s_add_u32 s6, s6, s%d" % sB1); e("s_add_u32 s6, s6, %d" % (opt.get("sp0", 64) * 9216))
        e("s_add_u32 s90, s%d, s6" % sT); e("s_addc_u32 s91, s%d, 0" % sT2)
        sp = ["s_load_dword s92, s[90:91], 0x%x" % (i * 9216 + h * 64) for i in range(NSP) for h in range(2)]
    prologue(g, pipe, early=early, afterbar=(lambda: [e(t) for t in touch1(0) + (touch1(1) if not opt.get('t1pos', 70) else [])]) if TOUCH else None, nfirst=opt.get('nfirst', 8),
             fill=sp + group_scc(late_setup() + vset + tr_bases(g, B1, 8)))
    def epi1(rho):
        acc = ACC[rho & 1]; ops = []; sts = ["s_add_u32 s%d, s%d, %d" % (sT2, sHX, rho * 4096)]
        for t in range(4):
            for tt in range(2):
                gt = acc + ((t * 2) * 2 + tt) * 4; up = acc + ((t * 2 + 1) * 2 + tt) * 4
                u = 2 * rho + t // 2
                h = H + (u * 2 + tt) * 4 + (t & 1) * 2
                for k in range(2):
                    for i in (2 * k, 2 * k + 1): ops.append("v_max_f32 v%d, 0, v%d" % (gt + i, gt + i))
                    for i in (2 * k, 2 * k + 1): ops.append("v_mul_f32 v%d, v%d, v%d" % (gt + i, gt + i, up + i))
                    ops.append("v_cvt_pk_bf16_f32 v%d, v%d, v%d" % (h + k, gt + 2 * k, gt + 2 * k + 1))
                if t & 1:
                    sts.append(("buffer_store_dwordx4 %s, v%d, s[%d:%d], s%d offen offset:%d sc1" % (hreg(0, u, tt), VST, SWS, SWS + 3, sT2, ((u & 1) * 2 + tt) * 1024), ("hst", rho)))
        return ops, sts
    def hloads(b, q):
        ops = []
        for u in (range(5) if b == 3 else Q(q)):
            if u % 2 == 0: ops.append("s_add_u32 s%d, s%d, %d" % (sT, sOX if b == 3 else sHX + b, u * 2048))
            for tt in range(2):
                ops.append(("buffer_load_dwordx4 %s, v%d, s[%d:%d], s%d offen offset:%d sc1" % (hreg(b, u, tt), VST, SWS, SWS + 3, sT, ((u & 1) * 2 + tt) * 1024), ("h", b, q)))
        return ops
    extra = {}; urgent = {}
    add = lambda k, l: extra.setdefault(k, []).extend(l)
    addu = lambda k, l: urgent.setdefault(k, []).extend(l)
    EP = opt.get("epiw", 75)
    for rho in range(5):
        spread(sum(epi1(rho), []) + [Mark("epi%d" % rho)], 144 * (rho + 1) + 3, 144 * (rho + 1) + EP, extra)
    P2 = start[S2]
    hb = ["v_bfe_u32 v144, v0, 2, 4", "v_lshlrev_b32 v144, 6, v144", "v_bfe_u32 v145, v0, 4, 1", "v_lshl_add_u32 v144, v145, 5, v144",
          "v_and_b32 v145, 3, v0", "v_lshl_add_u32 v144, v145, 3, v144", "v_xor_b32 v145, 32, v144"]
    hb += ["v_add_u32 v%d, 0x%x, v%d" % (BH + 2 * k + t, k << 16, BH + t) for k in (1, 2) for t in range(2)]
    hb += ["v_lshrrev_b32 v2, 5, v0", "v_bfe_u32 v3, v0, 3, 2", "v_lshl_add_u32 v2, v2, 4, v3", "v_mul_u32_u24 v4, 1152, v2",
           "v_bfe_u32 v2, v0, 4, 2", "v_lshlrev_b32 v2, 1, v2", "v_and_b32 v3, 7, v0", "v_xor_b32 v2, v2, v3", "v_lshl_add_u32 v4, v2, 4, v4",
           "v_add_u32 v1, 256, v4", "s_sub_u32 s96, s%d, s%d" % (sKO, sKB), "v_add_u32 v2, s96, v4",
           "s_sub_u32 s96, s%d, s%d" % (sKS, sKB), "s_and_b32 s95, s96, 64", "v_xor_b32 v3, s95, v4", "s_and_b32 s96, s96, 128", "v_add_u32 v3, s96, v3"]
    add(P2 + 3, [Dens(1)] + epi1(5)[0] + [Mark("epi5"), Dens(0)] + epi1(5)[1] + hb + [Mark("hb")])
    pauses = [(0, opt.get('p0', 0))]
    if TOUCH:
        T = [touch1(2), touch1(3), touch1(4), touch1(5), touch2(0), touch2(1), touch2(2), touch2(3)]
        for k, ops in zip(opt.get("tpos", [70, 148, 292, 436, 510, 690, 760, 760]), T):
            addu(k, ops); pauses.append((k + opt.get("pdel", 0), k + opt.get("pause", 40)))
    if opt.get("t1pos", 70): addu(opt.get("t1pos", 70), touch1(1))
    add(150, ["s_lshl_b32 s60, s%d, 3" % sI, "s_and_b32 s96, s%d, 7" % sR, "s_add_u32 s60, s60, s96", "s_lshl_b32 s60, s60, 2", "s_add_u32 s60, s60, s%d" % sW,
              "s_mul_i32 s60, s60, 4608", "s_mul_i32 s96, s%d, %d" % (sJ, 1152 * 1152), "s_add_u32 s60, s60, s96",
              "v_min_u32 v30, 35, v0", "v_lshlrev_b32 v30, 7, v30"])
    add(1, xc_copies() + [Mark("xc"), "v_add_u32 v22, %d, v25" % (16 * 1152 - 1024)])
    add(144 + 90, flag_lane_offsets(23, 28) + [Mark("flo")])
    addu(288 + 100, [lambda: flag_issue(g, 28, 23, None)])
    groups = list(range(0, SL, 2)) + [SL + k for k in opt.get('eg', [0, 1, 2, 4, 6, 8, 11, 13, 15])]
    bar = lambda n: start[n] - pipe.D - 1
    hooks = {}
    def before(n, f):
        assert n in groups, n
        hooks.setdefault(n, []).append(f); stages[n].before = lambda n=n: [f() for f in hooks[n]]
    before(26, lambda: flag_check(g, 28, 23, None, 0))
    FLD = opt.get('fld', 50); CMB = opt.get('cmb', 0)
    HS = opt.get("hs", [[30, 36], [46, 52], [S2 + 8, S2 + 14]])
    for q, (ns, nc) in enumerate(HS):
        before(ns, lambda q=q: g.wait_vm(("hst", 2 * q + 1)))
        stages[ns].after = lambda q=q: signal(g, 28, 24, 63, 16 * q)
        addu(bar(nc) - FLD, [lambda: flag_issue(g, 28, 23, sCNT)])
        before(nc, lambda q=q: flag_check(g, 28, 23, sCNT, (0x7 << (4 * q)) | (0x1000 if q == 2 and CMB else 0)))
    HW = opt.get("hw", [100, 100, 20])
    HP = opt.get("hp", [0, 0, 0])
    for q in range(3):
        spread(hloads(1, q), bar(HS[q][1]) + 1, bar(HS[q][1]) + 1 + HW[q], urgent); pauses.append((bar(HS[q][1]) + 1, bar(HS[q][1]) + 1 + HP[q]))
    assert bar(HS[1][1]) + 1 + HW[1] <= P2 + opt.get("h2pos", 100)
    spread(hloads(2, 0) + hloads(2, 1), P2 + opt.get("h2pos", 100), P2 + opt.get('h2pos', 100) + 60, urgent)
    def to_g2():
        for k in range(12): e("v_sub_u32 v%d, v%d, v27" % (B1 + k, B1 + k))
    stages[S2].after = to_g2
    for bq in BQ[3:]: before(first[bq], lambda bq=bq: g.wait_vm(("h",) + bq))
    spread(hloads(2, 2), bar(SL) - opt.get('h22', 30), bar(SL) - opt.get('h22', 30) + 10, urgent)
    sFL, sFW, sPL, sCOL, sRS, sMSK, sP1, sCK = 64, 65, 66, 67, 68, 69, 72, 75
    a2 = Asm(); srd(a2, SW1, 61, 62, PSZ)
    fin = [l.strip() for l in a2.lines]
    fin += ["s_mul_i32 s95, s%d, 3" % sR, "s_add_u32 s95, s95, s%d" % sI, "s_lshl_b32 s%d, s95, 7" % sFL, "s_add_u32 s%d, s%d, 0x%x" % (sFL, sFL, WS_FLG + 72 * 128),
           "s_lshl_b32 s%d, s%d, 2" % (sFW, sJ), "s_add_u32 s%d, s%d, s%d" % (sFW, sFW, sFL),
           "s_lshr_b32 s95, s%d, 1" % sJ, "s_lshl_b32 s96, s95, 11", "s_add_u32 s%d, s%d, s96" % (sPL, sB2), "s_add_u32 s%d, s%d, 8192" % (sPL, sPL),
           "s_and_b32 s96, s%d, 1" % sJ, "s_lshl_b32 s76, s96, 7", "s_add_u32 s%d, s%d, s76" % (sPL, sPL),
           "s_lshl_b32 s95, s95, 12", "s_lshl_b32 s96, s96, 10", "s_add_u32 s95, s95, s96", "s_add_u32 s76, s95, s%d" % sB2]
    for k in range(3):
        fin += ["s_add_u32 s96, s%d, %d" % (sJ, k + 1), "s_and_b32 s96, s96, 3", "s_mul_i32 s96, s96, %d" % PSZ, "s_add_u32 s%d, s76, s96" % (sP1 + k)]
    fin += ["v_and_b32 v150, 0x37, v0", "v_lshlrev_b32 v150, 4, v150", "v_bfe_u32 v155, v0, 3, 1", "v_lshl_add_u32 v150, v155, 10, v150",
            "s_mul_i32 s%d, s%d, 384" % (sCOL, sI), "s_add_u32 s%d, s%d, s4" % (sCOL, sCOL), "s_lshl_b32 s96, s%d, 6" % sJ, "s_add_u32 s%d, s%d, s96" % (sCK, sCOL),
            "s_add_u32 s77, s%d, %d" % (sCK, 16 * 1152),
            "v_bfe_u32 v156, v0, 4, 1", "v_lshlrev_b32 v156, 5, v156", "v_lshrrev_b32 v157, 5, v0", "v_lshl_add_u32 v156, v157, 4, v156",
            "s_lshl_b32 s95, s%d, 3" % sJ, "v_and_b32 v151, 7, v0", "v_add_u32 v151, s95, v151", "v_lshlrev_b32 v153, 2, v151",
            "v_mul_u32_u24 v151, 1152, v151", "v_lshl_add_u32 v151, v155, 6, v151", "v_add_u32 v151, v151, v156",
            "v_and_b32 v152, 15, v0", "v_lshlrev_b32 v154, 2, v152", "v_mul_u32_u24 v152, 1152, v152", "v_add_u32 v152, v152, v156",
            "s_lshl_b32 s96, s%d, 2" % sR, "s_add_u32 s96, s96, s%d" % sJ, "s_lshl_b32 s96, s96, 2", "s_add_u32 s96, s96, s%d" % sW,
            "s_lshl_b32 s%d, s96, 7" % sRS, "s_add_u32 s%d, s%d, 0x%x" % (sRS, sRS, WS_RS2),
            "s_mov_b32 s70, 0x3f80", "s_mov_b32 s71, 0x3f800000"]
    add(P2 + 150, fin + [Mark("fin")])
    XL = [(32, 152, sCK, 0), (36, 152, 77, 0), (40, 151, sCOL, 256)]
    RL = [(155, 154, 0), (156, 154, 64), (157, 153, 0)]
    nO = SL - opt.get('oearly', 0)
    if not CMB:
        addu(bar(nO) - opt.get('old', 30), [lambda: flag_issue(g, 28, 23, sCNT)])
        before(nO, lambda: flag_check(g, 28, 23, sCNT, 0x1000))
    spread(hloads(3, 0) + ["buffer_load_dword v%d, v%d, s[%d:%d], s%d offen offset:%d sc1" % (d, v, SWS, SWS + 3, sRS, im) for d, v, im in RL], bar(nO) + opt.get('o0', 1), bar(nO) + opt.get('o1', 5), urgent)
    before(SO, lambda: g.wait_vm(("h", 3, 0)))
    add(start[SL + 4] + 3, store_ops(g, A2, PK, 2, VST))
    add(start[SL + 8] + 3, store_ops(g, AO, PK, 0, VST, sSO))
    add(start[SK] + 3, [Dens(1)] + store_ops(g, AS, PK, 0, VST, sSS, 2, "pst") + [Mark("pst"), Dens(0)] + ["v_mov_b32 v%d, 0" % (96 + i) for i in range(8)] +
        [("buffer_load_dwordx4 %s, v%d, s[%d:%d], s%d offen offset:%d" % (vr(d, 4), v, SX, SX + 3, so, im), "fx") for d, v, so, im in XL])
    INS = opt.get("insig", 1)
    if INS:
        before(SK + 4, lambda: g.wait_vm("pst")); stages[SK + 4].after = lambda: signal(g, 28, 24, sFW, 0)
    if opt.get("ts") or opt.get("amp") is not None:
        for k in ([720] + list(range(720 + 48, start[-1], 32)) if opt.get('fine2') else (144, 288, 432, 576, 720, P2, P2 + 144, P2 + 288, start[SK])): addu(k, [g.stamp])
    pipe.run(0, len(stages), extra, pauses=pauses, groups=groups, urgent=urgent)
    w = pipe.when
    if opt.get("verbose"): print(w, "P2", P2, "SK", start[SK], "end", start[-1], "barK", bar(SK + 4))
    assert w["xc"] < 142 and w["flo"] < 288 + 100 and all(w["epi%d" % r] < 144 * (r + 2) - 1 for r in range(5)), w
    assert w["epi5"] < start[first[(0, 2)]] + 7 and w["hb"] < bar(SH0) and w["fin"] < bar(nO) - 1 and w["pst"] < bar(SK + 4), w
    g.stamp()
    if not INS:
        e("s_waitcnt vmcnt(0)"); e("s_barrier"); signal(g, 28, 24, sFW, 0)
    flag_check(g, 28, 23, sFL, 0xf, issued=False, sleep=1)
    e("s_barrier")
    g.stamp()
    UA = [(AK, AK + 8), (AK + 4, AK + 12), (96, 100)]
    lds = []
    regs = list(range(48, 96, 4))
    for p in range(4):
        if p < 3:
            for tt in range(2):
                d = regs.pop(0); lds.append((d, tt))
                e("buffer_load_dwordx4 %s, v%d, s[%d:%d], s%d offen offset:%d sc1" % (vr(d, 4), VST, SWS, SWS + 3, sP1 + p, tt * 2048), ("pl", len(lds)))
        if p: e("s_add_u32 s%d, s%d, %d" % (sPL, sPL, PSZ))
        d = regs.pop(0); lds.append((d, 2))
        e("buffer_load_dwordx4 %s, v150, s[%d:%d], s%d offen sc1" % (vr(d, 4), SWS, SWS + 3, sPL), ("pl", len(lds)))
    g.wait_vm("fx")
    for k in range(12):
        e("v_lshlrev_b32 v%d, 16, v%d" % (160 + 2 * k, 32 + k))
        e("v_and_b32 v%d, 0xffff0000, v%d" % (161 + 2 * k, 32 + k))
    for n, (d, u) in enumerate(lds):
        if n % 3 == 0: g.wait_vm(("pl", min(n + 3, len(lds))))
        for i in range(4):
            a0 = UA[u][i // 2] + 2 * (i % 2)
            e("v_dot2c_f32_bf16 v%d, s70, v%d" % (a0, d + i))
            e("v_dot2c_f32_bf16 v%d, s71, v%d" % (a0 + 1, d + i))
    e("s_nop 2")
    for u in range(3):
        for i in range(4): e("v_permlane16_swap_b32 v%d, v%d" % (UA[u][0] + i, UA[u][1] + i))
        for i in range(4):
            a0 = UA[u][i // 2] + 2 * (i % 2); x = 160 + 8 * u + 2 * i
            e("v_fmac_f32 v%d, v%d, v%d" % (x, a0, 155 + u))
            e("v_fmac_f32 v%d, v%d, v%d" % (x + 1, a0 + 1, 155 + u))
            e("v_cvt_pk_bf16_f32 v%d, v%d, v%d" % (184 + 4 * u + i, x, x + 1))
        e("buffer_store_dwordx4 %s, v%d, s[%d:%d], s%d offen offset:%d %s" % (vr(184 + 4 * u, 4), XL[u][1], SW1, SW1 + 3, XL[u][2], XL[u][3], opt.get("oflags", "nt")))
    if opt.get("ts") or opt.get("amp") is not None:
        e("s_waitcnt vmcnt(0)"); g.stamp()

def k1(g):
    e, opt = g.e, g.opt
    kernel_head(g, K1)
    e("s_getpc_b64 s[84:85]")
    e("s_cmp_ge_u32 s2, 256")
    e("s_cbranch_scc1 L_k1_end")
    e("s_load_dwordx8 s[64:71], s[0:1], 0")
    e("s_load_dwordx4 s[72:75], s[0:1], 40")
    e("s_load_dwordx4 s[76:79], s[0:1], 56")
    e("s_load_dwordx4 s[80:83], s[0:1], 72")
    if opt.get("vpf", 1):
        e("s_lshr_b32 s3, s2, 3")
        e("s_lshl_b32 s3, s3, 12")
        e("v_lshrrev_b32 v2, 3, v0")
        e("v_lshlrev_b32 v2, 7, v2")
        e("v_add_u32 v2, s3, v2")
        e("v_min_u32 v2, L_k1_end-%s, v2" % K1)
        e("global_load_dword v255, v2, s[84:85]")
    e("v_lshrrev_b32 v1, 6, v0")
    e("v_and_b32 v0, 63, v0")
    e("v_readfirstlane_b32 s%d, v1" % sW)
    lane_consts(g)
    e("s_and_b32 s%d, s2, 1" % sR)
    e("s_lshl_b32 s%d, s%d, 3" % (sR, sR))
    e("s_bfe_u32 s%d, s2, 0x30003" % sT)
    e("s_or_b32 s%d, s%d, s%d" % (sR, sR, sT))
    e("s_bfe_u32 s%d, s2, 0x20001" % sS)
    e("s_lshr_b32 s3, s2, 6")
    if opt.get("ts"):
        e("s_lshl_b32 s94, s2, 2"); e("s_add_u32 s94, s94, s%d" % sW); e("s_lshl_b32 s94, s94, 8"); e("s_add_u32 s94, s94, 0x%x" % WS_TS)
        if opt.get("dbgts") is not None:
            e("s_lshl_b32 s94, s2, 2"); e("s_add_u32 s94, s94, s%d" % sW); e("s_cmp_eq_u32 s94, %d" % (4 * opt["dbgts"])); e("s_cselect_b32 s94, 0, 0x10000")
    x_setup(g)
    e("s_mov_b32 s%d, 0x%x" % (SX + 2, PSZ))
    e("s_mov_b32 s%d, 0x20000" % (SX + 3))
    e("s_waitcnt lgkmcnt(0)")
    e("s_mov_b32 s%d, s64" % SX)
    e("s_and_b32 s%d, s65, 0xffff" % (SX + 1))
    if opt.get("ts") or opt.get("amp") is not None:
        srd(g, SWS, 82, 83, WS_BYTES); srd(g, SDBG, 80, 81, 256); g.stamp()
    for o in range(opt.get("xcommon", 1)):
        for j in range(9): x_dma(g, o, j)
    wb = opt.get("wsbase", 0)
    if wb:
        e("s_add_u32 s82, s82, 0x%x" % wb); e("s_addc_u32 s83, s83, 0")
    srd(g, SWS, 82, 83, WS_BYTES - wb)
    srd(g, SDBG, 80, 81, 256)
    e("s_or_b32 s%d, s2, s%d" % (sT, sW))
    e("s_cbranch_scc1 L_nonce_done")
    e("s_memrealtime s[98:99]")
    e("s_waitcnt lgkmcnt(0)")
    e("v_mov_b32 v2, s98")
    e("v_or_b32 v2, 1, v2")
    Asm.e(g, "buffer_store_dword v2, off, s[%d:%d], 0 sc1" % (SDBG, SDBG + 3))
    g.label("L_nonce_done")
    e("s_cmp_eq_u32 s3, 0")
    e("s_cbranch_scc1 %s" % ("L_k1_end" if opt.get("noatt") else "L_att"))
    sv = (list(g.vm), list(g.lg), g.nts)
    g.sv = 31
    ffn_role(g)
    g.sv = 30
    def amp(role):
        if opt.get("amp") is None or opt.get("amprole", "ffn") != role: return
        L = g.newlabel("L_amp")
        e("s_sub_u32 s101, s101, s100")
        e("s_add_u32 s101, s101, %d" % opt.get("ampadd", 0))
        if role == "ffn":
            e("s_memrealtime s[92:93]"); e("s_waitcnt lgkmcnt(0)"); e("s_mov_b32 s100, s92")
        g.label(L)
        e("s_sleep 1"); e("s_memrealtime s[92:93]"); e("s_waitcnt lgkmcnt(0)")
        e("s_sub_u32 s92, s92, s100"); e("s_cmp_lt_u32 s92, s101"); e("s_cbranch_scc1 %s" % L)
    amp("ffn")
    e("s_endpgm")
    g.vm, g.lg, g.nts = sv
    g.raw(".p2align 6")
    g.label("L_att")
    import att
    att.att_role(g)
    amp("att")
    g.label("L_k1_end")
    e("s_endpgm")

VOP3ONLY = ("v_mfma", "v_pk_", "v_fma_f32", "v_cvt_pk_bf16", "v_accvgpr_read", "v_accvgpr_write", "v_max3", "v_min3", "v_lshl_add", "v_add_lshl", "v_mad_u32",
            "v_bfe", "v_add3", "v_mul_lo", "v_mul_hi", "v_lshl_or", "v_and_or", "v_readlane", "v_perm_b32")
NOWIDE = ("v_readfirstlane", "v_permlane", "v_dot2c", "v_nop")
def has_lit(s):
    for t in re.split(r"[ ,]+", s)[1:]:
        if re.match(r"^-?(0x[0-9a-f]+|\d+)$", t):
            v = int(t, 0)
            if not (-16 <= v <= 64) and v not in (0x3f800000, 0x3f000000, 0x40000000, 0x40800000, 0xbf800000, 0xbf000000, 0xc0000000, 0xc0800000): return True
        if t.startswith("L_"): return not s.startswith(("s_cbranch", "s_branch"))
    return False
def isize(s):
    op = s.split()[0]
    if op.startswith(("ds_", "buffer_", "global_", "s_load", "s_mem")): return 8, False
    if op.startswith("s_"):
        if op.startswith(("s_waitcnt", "s_addk", "s_mulk", "s_nop", "s_barrier", "s_sleep", "s_endpgm", "s_cbranch", "s_branch", "s_setprio", "s_getreg")): return 4, False
        return (8 if has_lit(s) else 4), False
    if op.startswith(VOP3ONLY): return 8, False
    if has_lit(s): return 8, False
    ops = [x.strip() for x in re.split(r",(?![^\[]*\])", s.split(None, 1)[1])]
    if op.startswith("v_cmp") and ops[0] != "vcc": return 8, False
    if op.startswith("v_cndmask") and ops[-1] != "vcc": return 8, False
    if len(ops) >= 3 and not ops[2].startswith("v"): return 8, False
    return 4, not op.startswith(NOWIDE)
def align_pass(lines, minrun=4):
    ins = [l.strip() for l in lines]
    out = []; par = 0
    isins = lambda l: l and not l.endswith(":") and not l.startswith((".", ";"))
    n = len(ins)
    def nxt(i):
        i += 1
        while i < n and not isins(ins[i]):
            if ins[i].startswith(".p2align"): return None
            i += 1
        return i if i < n else None
    for i, l in enumerate(ins):
        if not isins(l):
            if l.startswith(".p2align"): par = 0
            out.append(l); continue
        sz, flex = isize(l)
        if sz == 8: out.append(l); continue
        if par == 1: out.append(l); par = 0; continue
        j = nxt(i)
        if j is None or isize(ins[j])[0] == 4: out.append(l); par = 1; continue
        if flex:
            op, rest = l.split(None, 1); out.append(op + "_e64 " + rest); continue
        run = 0
        while j is not None and isize(ins[j])[0] == 8 and run < minrun: run += 1; j = nxt(j)
        out.append(l)
        if run >= minrun and not l.startswith(("s_branch", "s_endpgm")): out.append("s_nop 0")
        else: par = 1
    return out

LABELS = {}
def resolve(lines):
    off = 0; LABELS.clear()
    for l in lines:
        l = l.strip()
        if l.endswith(":"): LABELS[l[:-1]] = off
        elif l.startswith(".p2align"):
            a = 1 << int(l.split()[1]); off = (off + a - 1) // a * a
        elif l and not l.startswith((".", ";")):
            off += 8 if l.split()[0].endswith("_e64") else isize(l)[0]
    end = LABELS["L_k1_end"]
    def f(m):
        span = 2048 if LABELS[m.group(1)] >= LABELS["L_att"] else 6144
        return "0x%x" % (min(LABELS[m.group(1)] + int(m.group(2)), end - span) & ~3)
    return [re.sub(r"@(\w+)\+(\d+)", f, l) if l.strip().startswith("s_load") else l for l in lines]

MACROS = """.macro MA d,a,b
v_mfma_f32_16x16x32_bf16 v[\\d:\\d+3], a[\\a:\\a+3], a[\\b:\\b+3], v[\\d:\\d+3]
.endm
.macro MV d,a,b
v_mfma_f32_16x16x32_bf16 v[\\d:\\d+3], a[\\a:\\a+3], v[\\b:\\b+3], v[\\d:\\d+3]
.endm
.macro RT d,b,o
ds_read_b64_tr_b16 a[\\d:\\d+1], v\\b offset:\\o
.endm
.macro WL n
s_waitcnt lgkmcnt(\\n)
.endm
.macro CV d,a,b
v_cvt_pk_bf16_f32 v\\d, v\\a, v\\b
.endm
"""
def compress(line):
    s = line.strip()
    m = re.match(r"v_mfma_f32_16x16x32_bf16 v\[(\d+):\d+\], a\[(\d+):\d+\], ([av])\[(\d+):\d+\], v\[(\d+):\d+\]$", s)
    if m and m.group(1) == m.group(5): return "M%s %s,%s,%s" % (m.group(3).upper(), m.group(1), m.group(2), m.group(4))
    m = re.match(r"ds_read_b64_tr_b16 a\[(\d+):\d+\], v(\d+) offset:(\d+)$", s)
    if m: return "RT %s,%s,%s" % m.groups()
    m = re.match(r"s_waitcnt lgkmcnt\((\d+)\)$", s)
    if m: return "WL %s" % m.group(1)
    m = re.match(r"v_cvt_pk_bf16_f32 v(\d+), v(\d+), v(\d+)$", s)
    if m: return "CV %s,%s,%s" % m.groups()
    return s

def gen(**opt):
    g = G(opt)
    k1(g)
    FUSE = 1
    errs = hazard.check(g.lines)
    if errs:
        print("\n".join(errs[:40])); raise SystemExit("hazards: %d" % len(errs))
    head = open("cdna_kernels/%s.s.ref" % BASE).read().split("; Override launch")[0] if not opt.get("nohead") else ""
    out = head
    if FUSE: out += "; @launch grid=(256,1,1) block=(256,1,1) lds=163840\n"
    else: out += "; @launch kernel=%s grid=(256,1,1) block=(256,1,1) lds=163840\n" % K1
    if not FUSE: out += "; @launch kernel=%s grid=(256,1,1) block=(576,1,1) lds=0\n" % K2
    out += '.amdgcn_target "amdgcn-amd-amdhsa--gfx950"\n.text\n' + MACROS
    lines = align_pass(g.lines, opt.get("minrun", 4)) if opt.get("align", 1) else g.lines
    lines = resolve(lines)
    out += "\n".join(compress(l) for l in lines) + "\n"
    out += '.section .rodata,"a"\n' + kernel_desc(K1, 512, 256) + ("" if FUSE else kernel_desc(K2, 96, 96, 40))
    return out

if __name__ == "__main__":
    kw = json.loads(sys.argv[2]) if len(sys.argv) > 2 else {}
    open(sys.argv[1], "w").write(gen(**kw))
```

```python
import sys, re, json
from asmlib import *
import hazard
BASE = "parallel_sum__linear_kernel_hedgehog__glu_gated_reglu__prompt"
K1 = BASE + "_kernel"
K2 = "reduce_kernel"

PSZ = 2048 * 576 * 2
WS_HX = 0x1000000
WS_OX = 0x2200000
WS_RS2 = 0x2500000
WS_KVP = 0x2510000
WS_KVF = 0x2700000
WS_FLG = 0x2780000
WS_TS = 0x2800000
WS_BYTES = 0x10000000
SX, SW1, SW2, SWS, SDBG, SPHI = 8, 12, 16, 20, 24, 28
sW, sR, sS, sT, sOFF, sM0W, sB1, sB2, sST, sT2 = 32, 33, 34, 35, 36, 37, 38, 39, 40, 41
sCNT = 52
OOB = 0x40000000
RING = 144
NB = 8

class G(Asm):
    def __init__(self, opt):
        super().__init__()
        self.opt = opt
        self.vm = []
        self.lg = []
        self.nts = 0
        self.sv = 30
    def e(self, s, tag=None):
        if s.startswith(("buffer_", "global_")): self.vm.append(tag)
        if s.startswith("ds_"): self.lg.append(tag)
        super().e(s)
    def vm_n(self, tag):
        idx = [i for i, t in enumerate(self.vm) if t == tag]
        assert idx, tag
        return len(self.vm) - 1 - idx[-1]
    def wait_vm(self, tag):
        n = min(self.vm_n(tag), 63)
        self.e("s_waitcnt vmcnt(%d)" % n)
    def wait_lg(self, tag):
        idx = [i for i, t in enumerate(self.lg) if t == tag]
        n = min(len(self.lg) - 1 - idx[-1], 15)
        self.e("s_waitcnt lgkmcnt(%d)" % n)
    def stamp(self):
        e = self.e
        if self.opt.get("amp") is not None:
            if self.nts in (0, self.opt["amp"]):
                e("s_memrealtime s[92:93]"); e("s_waitcnt lgkmcnt(0)")
                e("s_mov_b32 s%d, s92" % (100 if self.nts == 0 else 101))
            self.nts += 1
            return
        if not self.opt.get("ts"): return
        e("s_memtime s[90:91]"); e("s_memrealtime s[92:93]")
        e("s_waitcnt lgkmcnt(0)")
        if self.opt.get("dbgts") is not None:
            sel = self.opt.get("dbgsel", list(range(15)))
            if self.nts in sel:
                e("v_mov_b32 v30, s92")
                e("buffer_store_dword v30, off, s[%d:%d], s94 offset:%d" % (SDBG, SDBG + 3, 4 + 4 * sel.index(self.nts)))
            self.nts += 1
            return
        for k, sg in enumerate((90, 92)):
            e("v_mov_b32 v%d, s%d" % (self.sv, sg))
            e(("buffer_store_dword v%d, off" % self.sv) + ", s[%d:%d], s94 offset:%d" % (SWS, SWS + 3, 8 * self.nts + 4 * k))
        self.nts += 1

def mfma(d, a, b, c=None):
    return "v_mfma_f32_16x16x32_bf16 %s, %s, %s, %s" % (d, a, b, d if c is None else c)

class Stage:
    def __init__(self, lo, hi, pre, dmas, frags, gate=None):
        dmas = [d if isinstance(d, list) else [d] for d in dmas]
        dmas[0] = list(pre) + dmas[0]
        self.lo, self.hi, self.dmas, self.frags, self.gate = lo, hi, dmas, frags, gate
        self.before = None; self.after = None

class Pipe:
    def __init__(self, g, stages, D=6, BE=1):
        self.g, self.st, self.D, self.BE = g, stages, D, BE
        self.next = 0
        self.safe = -1
        self.q = []
        self.open = set()
        self.fi = 0
        self.done = -1
        self.qthr = g.opt.get("qthr", 3)
        self.when = {}
    def can(self, m):
        s = self.st[m]
        if s.gate is not None and s.gate not in self.open: return False
        return all(k <= self.safe for k in range(m) if self.st[k].lo < s.hi and s.lo < self.st[k].hi)
    def refill(self):
        while self.next < len(self.st) and self.can(self.next):
            for d in self.st[self.next].dmas: self.q.append([list(d), ("st", self.next)])
            self.next += 1
    def pop(self):
        if not self.q: return []
        t, tag = self.q.pop(0)
        return [(x, tag) for x in t]
    def flush(self):
        while self.q:
            for t, tag in self.pop(): self.g.e(t, tag)
    def enter(self, n, last, hook=None):
        g = self.g
        late = 0
        while any(tag[1] <= last for _, tag in self.q):
            late += 1
            for t, tg in self.pop(): g.e(t, tg)
        if late and n > 2: print("warning: %d DMA issued late for stage %d" % (late, n))
        assert self.next > last, (n, last)
        for k in range(n, last + 1):
            if self.st[k].before: self.st[k].before()
        if hook and hook.before: hook.before()
        g.wait_vm(("st", last)); g.e("s_barrier")
        if hook and hook.after: hook.after()
        for k in range(n, last + 1):
            if self.st[k].after: self.st[k].after()
        self.safe = max(self.safe, self.done)
        self.refill()
    def run(self, s0, s1, extra=None, pauses=(), groups=None, urgent=None, lagok=True):
        g, D = self.g, self.D
        WP = g.opt.get("wp", 4)
        pend = []; urg = []; urgent = urgent or {}; cur = [0]; dens = [0]
        extra = extra or {}
        fl = [(n, k, f) for n in range(s0, s1) for k, f in enumerate(self.st[n].frags)]
        if groups is None: groups = list(range(s0, s1, self.BE))
        gend = {a: (groups[i + 1] if i + 1 < len(groups) else s1) - 1 for i, a in enumerate(groups)}
        base = self.fi
        needbar = lambda j: j < len(fl) and fl[j][1] == 0 and fl[j][0] in gend
        def reads(j):
            buf = RING + 4 * ((base + j) % NB)
            for t in fl[j][2][0](buf): g.e(t, ("fr", base + j))
        def wl(i):
            w = min(i + WP - 1, len(fl) - 1)
            g.wait_lg(("fr", base + w))
            self.done = max(self.done, fl[w][0] if fl[w][1] == len(self.st[fl[w][0]].frags) - 1 else fl[w][0] - 1)
        def cost(it):
            if isinstance(it, (Mark, Dens)): return 0
            if isinstance(it, Hook): return 99
            if isinstance(it, Delay):
                if it.until is None: it.until = cur[0] + it.n
                return 0 if cur[0] >= it.until else 99
            if callable(it): return getattr(it, "cost", 2)
            if isinstance(it, list): return min(len(it), 2)
            t = it[0] if isinstance(it, tuple) else it
            return 2 if t.startswith(("buffer_", "global_", "v_mfma", "v_exp", "v_rcp")) else 1
        def emit(it, i):
            if isinstance(it, Mark): self.when[it.name] = i
            elif isinstance(it, Dens): dens[0] = it.n
            elif isinstance(it, Delay):
                if i >= len(fl): g.e("s_nop 7")
            elif isinstance(it, Hook):
                if it.before: it.before()
                g.e("s_barrier")
                if it.after: it.after()
            elif callable(it): it()
            elif isinstance(it, list):
                for x in it: g.e(x)
            elif isinstance(it, tuple): g.e(it[0], it[1])
            else: g.e(it)
        for j in range(min(D, len(fl))):
            if needbar(j): self.enter(fl[j][0], gend[fl[j][0]])
            reads(j)
        if needbar(D): self.enter(fl[D][0], gend[fl[D][0]])
        wl(0)
        since = 9
        for i, (n, k, f) in enumerate(fl):
            ms = f[1](RING + 4 * ((base + i) % NB))
            g.e(ms[0])
            if i + D < len(fl): reads(i + D)
            g.e(ms[1])
            pend += [(i, x) for x in extra.get(i, [])]; urg += urgent.get(i, [])
            since += 1; cur[0] = i
            wdue = (i + 1) % WP == 0 and i + 1 < len(fl)
            if needbar(i + 1 + D):
                if wdue: wl(i + 1)
                hook = pend.pop(0)[1] if pend and isinstance(pend[0][1], Hook) else None
                self.enter(fl[i + 1 + D][0], gend[fl[i + 1 + D][0]], hook)
                continue
            paused = any(a <= i < b for a, b in pauses)
            if urg and not wdue:
                slots = 2
                while urg and cost(urg[0]) <= slots:
                    it = urg.pop(0); slots -= cost(it); emit(it, i)
                continue
            used = False
            if self.q and len(self.q[0][0]) > 1:
                if wdue: wl(i + 1)
                while len(self.q[0][0]) > 1: g.e(self.q[0][0].pop(0))
                used = True
            elif self.q and not wdue and not paused and since >= (2 if len(self.q) > self.qthr and not any(b <= i < b + g.opt.get("slow", 0) for a, b in pauses if b > a) else self.g.opt.get("dcad", 3)):
                it = self.q.pop(0); g.e(it[0][0], it[1]); since = 0
                used = True
            if used and not dens[0]: continue
            slots = 0 if used else 2
            if wdue and not used: wl(i + 1); slots = 1
            if dens[0]: slots += dens[0]
            elif lagok and pend and i - pend[0][0] > g.opt.get("lag", 30): slots += 1
            while pend and cost(pend[0][1]) <= slots:
                it = pend.pop(0)[1]; slots -= cost(it); emit(it, i)
        for it in urg + [x[1] for x in pend]: emit(it, len(fl))
        self.fi = base + len(fl)
    def drained(self, upto):
        self.safe = max(self.safe, upto); self.refill()

class Mark:
    def __init__(self, name): self.name = name
class Hook:
    def __init__(self, before=None, after=None): self.before, self.after = before, after
class Delay:
    def __init__(self, n): self.n = n; self.until = None
class Dens:
    def __init__(self, n): self.n = n

def group_scc(ops):
    out = []
    for op in ops:
        if isinstance(op, str) and op.startswith("s_cselect"): out[-1] = [out[-1], op]
        else: out.append(op)
    return out

def spread(ops, lo, hi, extra):
    ops = group_scc(ops); n = hi - lo
    for k, op in enumerate(ops):
        extra.setdefault(lo + k * n // len(ops), []).append(op)

def lane_consts(g):
    e = g.e
    e("v_lshrrev_b32 v22, 4, v0")
    e("v_and_b32 v23, 15, v0")

def x_setup(g):
    e = g.e
    e("v_lshrrev_b32 v104, 3, v0")
    e("v_mul_u32_u24 v104, 1152, v104")
    e("v_and_b32 v105, 7, v0")
    e("v_xor_b32 v105, v105, v22")
    e("v_lshl_add_u32 v104, v105, 4, v104")
    e("s_lshl_b32 s4, s%d, 2" % sR)
    e("s_add_u32 s4, s4, s%d" % sW)
    e("s_mul_i32 s4, s4, 36864")
    e("s_mul_i32 s5, s%d, 36864" % sW)
    e("s_lshr_b32 s60, s2, 6")
    e("s_and_b32 s6, s2, 64")
    e("v_xor_b32 v104, s6, v104")
    e("v_xor_b32 v105, 64, v104")

def x_dma(g, o, j):
    e = g.e
    if j == 0:
        e("s_add_u32 s6, s60, %d" % o)
        e("s_and_b32 s6, s6, 3")
        e("s_mulk_i32 s6, 9216")
        e("s_add_u32 m0, s5, s6")
        e("s_add_u32 s7, s4, s6")
    else:
        e("s_addk_i32 m0, 1024")
        e("s_addk_i32 s7, 128")
    e("buffer_load_dwordx4 v%d, s[%d:%d], s7 offen %s lds" % (104 + (o & 1), SX, SX + 3, g.opt.get("xflags", "")), ("x", j))

def prologue(g, pipe, XV=112, early=None, afterbar=None, fill=(), var=False, nfirst=8, mid=None, postc=None):
    e, opt = g.e, g.opt
    xf = opt.get("xflags", "")
    NC = opt.get("xcommon", 1)
    nf = 9 * (4 - NC)
    for o in range(NC, 4):
        for j in range(9):
            x_dma(g, o, j)
            k = (o - NC) * 9 + j
            if mid and o * 9 + j == mid[0]: mid[1]()
            for it in fill[k * len(fill) // nf:(k + 1) * len(fill) // nf]:
                for x in (it if isinstance(it, list) else [it]): e(x, "fill")
    if early: early()
    e("v_lshrrev_b32 v106, 3, v23")
    e("v_mul_u32_u24 v106, 9216, v106")
    e("v_and_b32 v107, 7, v23")
    e("v_lshl_add_u32 v106, v107, 7, v106")
    e("v_lshrrev_b32 v107, 1, v23")
    e("v_xor_b32 v107, v107, v22")
    e("v_lshl_add_u32 v106, v107, 4, v106")
    e("v_add_u32 v106, s5, v106")
    e("v_xor_b32 v107, 64, v106")
    for i in range(4): e("v_mov_b32 v%d, 0x3f803f80" % (80 + i))
    for i in (72, 73, 76, 77): e("v_mov_b32 v%d, 0" % i)
    e("v_lshrrev_b32 v108, 2, v23")
    e("v_cmp_eq_u32 vcc, v108, v22")
    e("v_and_b32 v108, 1, v23")
    e("v_lshlrev_b32 v108, 4, v108")
    e("v_mov_b32 v78, 0x3f80")
    e("v_lshlrev_b32 v78, v108, v78")
    e("v_cndmask_b32 v78, 0, v78, vcc")
    e("v_and_b32 v108, 2, v23")
    e("v_cmp_eq_u32 vcc, 0, v108")
    e("s_nop 1")
    e("v_cndmask_b32 v74, 0, v78, vcc")
    e("v_cndmask_b32 v75, v78, 0, vcc") if False else None
    e("v_sub_u32 v75, v78, v74")
    X = lambda tt, ks: XV + (ks * 2 + tt) * 4
    g.stamp()
    for j in range(10):
        if j < 9:
            g.wait_vm(("x", j))
            for ks in (2 * j, 2 * j + 1):
                for tt in range(2):
                    e("ds_read_b128 %s, v%d offset:%d" % (vr(X(tt, ks), 4), 106 + (ks & 1), tt * 18432 + j * 1024), ("xr", j))
        if j > 0:
            g.wait_lg(("xr", j - 1))
            for ks in (2 * j - 2, 2 * j - 1):
                for tt in range(2):
                    e(mfma(vr(64 + 4 * tt, 4), vr(80, 4), vr(X(tt, ks), 4), "0" if ks == 0 else None))
    e("s_barrier")
    g.stamp()
    pipe.open.add("x"); pipe.refill()
    for _ in range(nfirst):
        for t, tag in pipe.pop(): e(t, tag)
    if afterbar: afterbar()
    e("s_nop 3")
    e("s_mov_b32 s%d, 0x%08x" % (sT, 0xbae38e39))
    for i in range(8): e("v_mul_f32 v%d, s%d, v%d" % (64 + i, sT, 64 + i))
    e("s_nop 1")
    for _ in range(opt.get("delay", 0)): e("s_sleep 32")
    fr = [(tt, ks) for ks in range(18) for tt in range(2)]
    LAG = 2
    for k in range(len(fr) + LAG + 1):
        cv = []
        if LAG <= k < len(fr) + LAG:
            tt, ks = fr[k - LAG]; d = 32 + 8 * ((k - LAG) % 4); x = X(tt, ks)
            cv = ["v_cvt_pk_bf16_f32 v%d, v%d, v%d" % (x + i, d + 2 * i, d + 2 * i + 1) for i in range(4)]
        if k < len(fr):
            tt, ks = fr[k]; d = 32 + 8 * (k % 4)
            e(mfma(vr(d, 4), vr(74, 4), vr(X(tt, ks), 4), vr(64 + 4 * tt, 4)))
            if k == LAG: e("s_nop 3")
            for t in cv[:2]: e(t)
            e(mfma(vr(d + 4, 4), vr(72, 4), vr(X(tt, ks), 4), vr(64 + 4 * tt, 4)))
            for t in cv[2:]: e(t)
        else:
            e("s_nop 3")
            for t in cv: e(t)
        if var and k > LAG:
            tt, ks = fr[k - LAG - 1]; x = X(tt, ks)
            e(mfma(vr(96 + 4 * tt, 4), vr(x, 4), vr(x, 4), "0" if ks == 0 else None))
    if postc: postc()
    g.stamp()

def XV0(tt, ks): return vr(112 + (ks * 2 + tt) * 4, 4)
def xc_copies(): return ["v_accvgpr_write_b32 a%d, v%d" % (i, 112 + i) for i in range(144)]
def XC(tt, ks): return ar((ks * 2 + tt) * 4, 4)

def tr_bases(g, dst, rowmul):
    e = g.e
    out = []
    out.append("v_bfe_u32 v28, v0, 2, 2")
    out.append("v_mad_u32_u24 v28, v22, %d, v28" % rowmul)
    out.append("v_lshlrev_b32 v%d, 7, v28" % dst)
    out.append("v_bfe_u32 v28, v0, 3, 2")
    out.append("v_lshl_add_u32 v%d, v28, 5, v%d" % (dst, dst))
    out.append("v_and_b32 v28, 3, v0")
    out.append("v_lshl_add_u32 v%d, v28, 3, v%d" % (dst, dst))
    for t in range(1, 4): out.append("v_xor_b32 v%d, %d, v%d" % (dst + t, 32 * t, dst))
    for grp in (1, 2):
        for t in range(4): out.append("v_add_u32 v%d, 0x%x, v%d" % (dst + 4 * grp + t, grp << 16, dst + t))
    return out

def tr_reads(bases, t, off, second):
    def f(buf):
        o2 = off + second
        assert (off >> 16) == (o2 >> 16)
        b = bases + 4 * (off >> 16) + t
        return ["ds_read_b64_tr_b16 %s, v%d offset:%d" % (ar(buf, 2), b, off & 0xffff),
                "ds_read_b64_tr_b16 %s, v%d offset:%d" % (ar(buf + 2, 2), b, o2 & 0xffff)]
    return f

def store_ops(g, acc, P, c, voff, sbase=None, ntile=4, tag=None):
    ops = ["s_add_u32 s%d, s%d, %d" % (sT2, sST if sbase is None else sbase, c * 4096)]
    for tt in range(2):
        for hf in range(ntile // 2):
            p = P + ((tt * (ntile // 2) + hf) % 2) * 4
            for k in range(2):
                s = acc + ((2 * hf + k) * 2 + tt) * 4
                ops.append("v_cvt_pk_bf16_f32 v%d, v%d, v%d" % (p + 2 * k, s, s + 1))
                ops.append("v_cvt_pk_bf16_f32 v%d, v%d, v%d" % (p + 2 * k + 1, s + 2, s + 3))
            ops.append(("buffer_store_dwordx4 %s, v%d, s[%d:%d], s%d offen offset:%d sc1" % (vr(p, 4), voff, SWS, SWS + 3, sT2, (tt * 2 + hf) * 1024), tag))
    return ops

sNON = 97
def flag_load(vreg, vfl, sline):
    if sline is None: return "buffer_load_dword v%d, v%d, s[%d:%d], 0 offen sc1" % (vreg, vfl, SDBG, SDBG + 3)
    return "buffer_load_dword v%d, v%d, s[%d:%d], s%d offen sc1" % (vreg, vfl, SWS, SWS + 3, sline)

def flag_issue(g, vreg, vfl, sline):
    g.e(flag_load(vreg, vfl, sline), "flag")

def flag_check(g, vreg, vfl, sline, mask, issued=True, sleep=4):
    if g.opt.get("nofl") and sline is not None: return
    e = g.e
    L = g.newlabel("L_poll"); Ld = g.newlabel("L_polld"); Lc = g.newlabel("L_pollc")
    e("s_cmp_lg_u32 s%d, 0" % sW)
    e("s_cbranch_scc1 %s" % Ld)
    e("s_mov_b32 s89, 0x20000")
    if issued:
        g.wait_vm("flag")
        e("s_branch %s" % Lc)
    g.label(L)
    Asm.e(g, flag_load(vreg, vfl, sline))
    e("s_waitcnt vmcnt(0)")
    g.label(Lc)
    if sline is None:
        e("v_readfirstlane_b32 s%d, v%d" % (sNON, vreg))
        e("s_sub_u32 s89, s89, 1")
        e("s_cmp_lg_u32 s%d, 0" % sNON)
    else:
        e("v_cmp_eq_u32 s[98:99], s%d, v%d" % (sNON, vreg))
        e("s_sub_u32 s89, s89, 1")
        m = mask if isinstance(mask, str) else "0x%x" % mask
        e("s_and_b32 s98, s98, %s" % m)
        e("s_cmp_eq_u32 s98, %s" % m)
    e("s_cbranch_scc1 %s" % Ld)
    e("s_sleep %d" % sleep)
    e("s_cmp_lg_u32 s89, 0")
    e("s_cbranch_scc1 %s" % L)
    g.label(Ld)

def flag_lane_offsets(vfl, vtmp):
    return ["s_lshl_b32 s96, s%d, 6" % sW, "v_add_u32 v%d, s96, v0" % vtmp, "v_cmp_gt_u32 vcc, 16, v%d" % vtmp, "v_lshlrev_b32 v%d, 2, v0" % vfl,
            "v_mov_b32 v%d, 0x%x" % (vtmp, OOB), "v_cndmask_b32 v%d, v%d, v%d, vcc" % (vfl, vtmp, vfl)]

def code_pf():
    return ["s_getpc_b64 s[90:91]", "s_load_dword s92, s[90:91], s100"]

def signal(g, vtmp, voff, sword, imm=0):
    g.e("v_mov_b32 v%d, s%d" % (vtmp, sNON))
    g.e("buffer_store_dword v%d, v%d, s[%d:%d], s%d offen offset:%d sc1" % (vtmp, voff, SWS, SWS + 3, sword, imm))

def ffn_role(g):
    e, opt = g.e, g.opt
    wf = opt.get("wflags", "")
    ACC = [32, 96]; H = 160; B1 = 9; PK = 128; VST = 21; BH = 144
    sI, sJ = 42, 43; sKB = 44; sHX = 47; sKO = 53; sKS = 56; sKK = 86; sM0H = 50; sSO = 51; sSS = 59; sWO = 78; sOX = 83; sM0B = 84; sWT = 85
    e("s_sub_u32 s%d, s3, 1" % sI)
    e("s_mov_b32 s%d, s%d" % (sJ, sS))
    e("s_mul_i32 s%d, s%d, 3" % (sS, sJ))
    e("s_add_u32 s%d, s%d, s%d" % (sS, sS, sI))
    e("s_cmp_ge_u32 s%d, 2" % sW)
    e("s_cselect_b32 s%d, s74, s72" % sT)
    e("s_cselect_b32 s%d, s75, s73" % sT2)
    srd(g, SW1, sT, sT2, 576 * 4608 * 2)
    e("s_lshl_b32 s%d, s%d, 12" % (sM0W, sW))
    e("s_mul_i32 s%d, s%d, 768" % (sB1, sS))
    def late_setup():
        o = []; sT = 95
        a = Asm(); srd(a, SW2, 76, 77, 4608 * 576 * 2); srd(a, SPHI, 70, 71, 576 * 576 * 2); a.e('s_mov_b32 s61, s78'); a.e('s_mov_b32 s62, s79')
        o += [l.strip() for l in a.lines]
        o += ["s_lshl_b32 s98, s%d, 6" % sJ, "s_and_b32 s99, s98, 128", "s_xor_b32 s99, s99, 128"]
        for b in range(3):
            o += ["s_add_u32 s%d, s%d, %d" % (sT, sI, b), "s_cmp_ge_u32 s%d, 3" % sT, "s_cselect_b32 s96, 3, 0", "s_sub_u32 s%d, s%d, s96" % (sT, sT),
                  "s_mul_i32 s96, s%d, 3" % sJ, "s_add_u32 s%d, s%d, s96" % (sT, sT),
                  "s_mul_i32 s%d, s%d, %d" % (sKB + b, sT, 384 * 1152), "s_mul_i32 s96, s%d, 384" % sI, "s_add_u32 s%d, s%d, s96" % (sKB + b, sKB + b),
                  "s_add_u32 s%d, s%d, s99" % (sKO + b, sKB + b), "s_add_u32 s%d, s%d, s98" % (sKK + b, sKB + b), "s_xor_b32 s%d, s%d, 64" % (sKS + b, sKK + b),
                  "s_mul_i32 s96, s%d, 12" % sR, "s_add_u32 s%d, s%d, s96" % (sT, sT), "s_lshl_b32 s%d, s%d, 2" % (sT, sT), "s_add_u32 s%d, s%d, s%d" % (sT, sT, sW),
                  "s_mul_i32 s%d, s%d, 24576" % (sHX + b, sT), "s_add_u32 s%d, s%d, 0x%x" % (sHX + b, sHX + b, WS_HX)]
        o += ["s_lshl_b32 s%d, s%d, 2" % (sT, sR), "s_add_u32 s%d, s%d, s%d" % (sT, sT, sJ), "s_lshl_b32 s%d, s%d, 7" % (sCNT, sT), "s_add_u32 s%d, s%d, 0x%x" % (sCNT, sCNT, WS_FLG),
              "s_lshl_b32 s63, s%d, 2" % sI, "s_add_u32 s63, s63, s%d" % sCNT]
        o += ["s_mul_i32 s%d, s%d, %d" % (sST, sJ, PSZ), "s_mul_i32 s%d, s%d, 12288" % (sB2, sI), "s_add_u32 s%d, s%d, s4" % (sB2, sB2),
              "s_add_u32 s%d, s%d, s%d" % (sST, sST, sB2), "s_lshl_b32 s%d, s%d, 11" % (sM0H, sW),
              "s_lshl_b32 s96, s99, 5", "s_add_u32 s%d, s%d, s96" % (sSO, sST),
              "s_xor_b32 s96, s96, 4096", "s_add_u32 s%d, s%d, s96" % (sSS, sST), "s_and_b32 s96, s98, 64", "s_xor_b32 s96, s96, 64",
              "s_lshl_b32 s96, s96, 4", "s_add_u32 s%d, s%d, s96" % (sSS, sSS)]
        o += ["s_lshl_b32 s95, s%d, 2" % sR, "s_add_u32 s95, s95, s%d" % sJ, "s_lshl_b32 s95, s95, 2", "s_add_u32 s95, s95, s%d" % sW,
              "s_mul_i32 s%d, s95, 10240" % sOX, "s_add_u32 s%d, s%d, 0x%x" % (sOX, sOX, WS_OX),
              "s_mul_i32 s%d, s%d, %d" % (sWT, sJ, 144 * 1152), "s_mul_i32 s96, s%d, 384" % sI, "s_add_u32 s%d, s%d, s96" % (sWT, sWT), "s_lshl_b32 s%d, s%d, 10" % (sM0B, sW)]
        for i in range(5):
            d = sWO + i
            o += (["s_lshl_b32 s95, s%d, 2" % sW, "s_add_u32 s95, s95, %d" % i] if i < 4 else ["s_add_u32 s95, s%d, 16" % sW])
            o += ["s_lshr_b32 s96, s95, 1", "s_lshl_b32 s%d, s96, 2" % d, "s_cmp_ge_u32 s96, 5", "s_cselect_b32 s96, 52, 0",
                  "s_add_u32 s%d, s%d, s96" % (d, d), "s_and_b32 s95, s95, 1", "s_mul_i32 s95, s95, 36",
                  "s_add_u32 s%d, s%d, s95" % (d, d), "s_mul_i32 s%d, s%d, 1152" % (d, d), "s_add_u32 s%d, s%d, s%d" % (d, d, sWT)]
        return o
    stages = []; start = [0]
    def slot(n): return ((n + 9) % 10) * 16384
    def push(st): stages.append(st); start.append(start[-1] + len(st.frags))
    for rho in range(6):
        acc = ACC[rho & 1]
        for st in range(9):
            n = len(stages); lo = slot(n)
            pre = ["s_add_u32 m0, s%d, %d" % (sM0W, lo), "s_add_u32 s%d, s%d, %d" % (sOFF, sB1, st * 64 * 9216 + rho * 128)]
            dmas = ["buffer_load_dwordx4 v%d, s[%d:%d], s%d offen offset:%d %s lds" % (1 + i, SW1, SW1 + 3, sOFF, i * 1024, wf) for i in range(4)]
            frags = []
            for kk in range(2):
                ks = 2 * st + kk
                for t in range(4):
                    for mat in range(2):
                        def mf(buf, ks=ks, t=t, mat=mat, acc=acc, XC=(XC if rho else XV0)):
                            order = (0, 1) if mat == 0 else (1, 0)
                            return [mfma(vr(acc + ((t * 2 + mat) * 2 + tt) * 4, 4), ar(buf, 4), XC(tt, ks), "0" if ks == 0 else None) for tt in order]
                        frags.append((tr_reads(B1, t, lo + mat * 8192 + kk * 4096, 512), mf))
            push(Stage(lo, lo + 16384, pre, dmas, frags, None if n == 0 else "x"))
    def hreg(b, u, tt):
        k = (u * 2 + tt) * 4
        if b == 0: return vr(H + k, 4)
        if b == 2: return ar(k, 4)
        if b == 1: return ar(176 + k, 4) if u < 8 else ar(96 + k - 64, 4)
        if u < 2: return ar(128 + k, 4)
        if u < 4: return ar(240 + k - 16, 4)
        return vr(136 + k - 32, 4)
    A2, AO, AS, AK = 32, 64, 96, 112
    def mk(acc, b, u, t, z):
        def mf(buf):
            order = (0, 1) if t % 2 == 0 else (1, 0)
            return [mfma(vr(acc + (t * 2 + tt) * 4, 4), ar(buf, 4), hreg(b, u, tt), "0" if z else None) for tt in order]
        return mf
    def full(b, q, acc):
        lo = slot(len(stages))
        sb, add = (sKB + b, 256) if acc == A2 else (sKO + b, 0)
        pre = ["s_add_u32 m0, s%d, %d" % (sM0W, lo), "s_add_u32 s%d, s%d, %d" % (sOFF, sb, q * 128 * 1152 + add)]
        dmas = ["buffer_load_dwordx4 v%d, s[%d:%d], s%d offen offset:%d %s lds" % (5 + i, SW2, SW2 + 3, sOFF, i * 1024, wf) for i in range(4)]
        frags = [(tr_reads(B1, t, lo + kk * 4096, 2048), mk(acc, b, 4 * q + kk, t, (b, q, kk) == (0, 0, 0))) for kk in range(4) for t in range(4)]
        push(Stage(lo, lo + 16384, pre, dmas, frags, "x"))
    def half(bqs, acc):
        lo = slot(len(stages)); dmas = []; frags = []
        for k, (b, q) in enumerate(bqs):
            p = lo + 8192 * k
            ld = ["buffer_load_dwordx4 v%d, s[%d:%d], s%d offen offset:%d %s lds" % ((25, 22)[i], SW2, SW2 + 3, sOFF, i * 1024, wf) for i in range(2)]
            dmas += [["s_add_u32 m0, s%d, %d" % (sM0H, p), "s_add_u32 s%d, s%d, %d" % (sOFF, (sKS if acc == AS else sKK) + b, q * 128 * 1152), ld[0]], [ld[1]]]
            for kk in range(4):
                for t in range(2):
                    off = p + kk * 2048
                    def rd(buf, off=off, t=t):
                        v = BH + 2 * (off >> 16) + t
                        return ["ds_read_b64_tr_b16 %s, v%d offset:%d" % (ar(buf, 2), v, off & 0xffff), "ds_read_b64_tr_b16 %s, v%d offset:%d" % (ar(buf + 2, 2), v, (off & 0xffff) + 1024)]
                    frags.append((rd, mk(acc, b, 4 * q + kk, t, acc == AS and (b, q, kk) == (0, 0, 0))))
        push(Stage(lo, lo + 16384, [], dmas, frags, "x"))
    def wo(us, acc):
        lo = slot(len(stages)); v = {A2: 1, AO: 2, AS: 3}[acc]
        sel = [(sM0W, lo + i * 1024, sWO + i) for i in range(4)] if len(us) == 4 else [(sM0B, lo, sWO + 4)]
        dmas = [["s_add_u32 m0, s%d, %d" % (m, o), "s_nop 0", "buffer_load_dwordx4 v%d, s[%d:%d], s%d offen %s lds" % (v, SPHI, SPHI + 3, so, wf)] for m, o, so in sel]
        frags = [(tr_reads(B1, t, lo + kk * 4096, 2048), mk(acc, 3, u, t, acc == AS and u == 0 and t >= 2)) for kk, u in enumerate(us) for t in range(4)]
        push(Stage(lo, lo + 16384, [], dmas, frags, "x"))
    Q = lambda q: list(range(4 * q, 4 * q + 4))
    BQ = [(0, 0), (0, 1), (0, 2), (1, 0), (1, 1), (2, 0), (2, 1), (1, 2), (2, 2)]
    first = {}
    S2 = len(stages)
    for n, bq in enumerate(BQ[:7]):
        first[bq] = len(stages)
        full(*bq, A2); full(*bq, AO)
        if n == 3: SH0 = len(stages); half(BQ[0:2], AS); half(BQ[2:4], AS)
        if n == 6: half(BQ[4:6], AS); half(BQ[6:7], AS)
    SL = len(stages); first[(1, 2)] = SL; first[(2, 2)] = SL + 1; SO = SL + 2
    for acc in (A2, AO):
        full(1, 2, acc); full(2, 2, acc); wo(Q(0), acc); wo([4], acc)
    half(BQ[7:9], AS); wo(Q(0), AS); wo([4], AS)
    SK = len(stages)
    for n in range(0, 9, 2): half(BQ[n:n + 2], AK)
    pipe = Pipe(g, stages, opt.get("D", 7), 2)
    TOUCH = opt.get("touch", 1); tf = opt.get("tflags", "")
    def touch1(rho): return ["buffer_load_dword v31, v29, s[%d:%d], s%d offen offset:%d %s" % (SW1, SW1 + 3, sB1, rho * 128, tf)]
    def touch2(b):
        if b == 3: return ["buffer_load_dword v31, v26, s[%d:%d], s%d offen %s" % (SPHI, SPHI + 3, sWT, tf)]
        if opt.get("t2c", 0):
            return [["s_add_u32 s3, s60, %d" % (b * 96 * 4608), "buffer_load_dword v31, v30, s[%d:%d], s3 offen %s" % (SW2, SW2 + 3, tf)]]
        return ["buffer_load_dword v31, v26, s[%d:%d], s%d offen %s" % (SW2, SW2 + 3, sKB + b, tf)]
    def early():
        e("v_lshrrev_b32 v28, 3, v0")
        e("s_and_b32 s%d, s%d, 1" % (sOFF, sW))
        e("s_lshl_b32 s%d, s%d, 5" % (sOFF, sOFF))
        e("v_add_u32 v1, s%d, v28" % sOFF)
        e("v_mul_u32_u24 v1, 9216, v1")
        e("v_and_b32 v2, 2, v28")
        e("v_and_b32 v3, 7, v0")
        e("v_xor_b32 v2, v2, v3")
        e("v_lshl_add_u32 v1, v2, 4, v1")
        e("v_xor_b32 v2, 64, v1")
        e("v_add_u32 v2, %d, v2" % (8 * 9216 - 1024))
        e("v_add_u32 v3, %d, v1" % (2 * (8 * 9216 - 1024)))
        e("v_add_u32 v4, %d, v2" % (2 * (8 * 9216 - 1024)))
        pipe.refill(); pipe.flush()
    vset = ["v_lshrrev_b32 v28, 3, v0", "s_lshl_b32 s96, s%d, 5" % sW, "v_add_u32 v5, s96, v28", "v_mul_u32_u24 v5, 1152, v5",
            "v_lshlrev_b32 v6, 1, v22", "v_and_b32 v7, 7, v0", "v_xor_b32 v6, v6, v7", "v_lshl_add_u32 v5, v6, 4, v5",
            "v_lshrrev_b32 v28, 2, v0", "v_add_u32 v25, s96, v28", "v_mul_u32_u24 v25, 1152, v25", "v_and_b32 v6, 3, v6", "v_lshl_add_u32 v25, v6, 4, v25"]
    vset += ["v_add_u32 v%d, %d, v5" % (5 + i, i * (8 * 1152 - 1024)) for i in range(1, 4)]
    vset += ["v_lshlrev_b32 v%d, 4, v0" % VST, "v_lshlrev_b32 v27, 9, v22", "v_add_u32 v28, s%d, v0" % sW, "v_cmp_eq_u32 vcc, 0, v28",
             "v_mov_b32 v24, 0x%x" % OOB, "v_mov_b32 v28, 0", "v_cndmask_b32 v24, v24, v28, vcc"]
    vset += ["v_mul_u32_u24 v28, 5462, v0", "v_lshrrev_b32 v28, 16, v28", "v_mul_u32_u24 v26, 12, v28", "v_sub_u32 v26, v0, v26",
             "s_mul_i32 s96, s%d, 12" % sW, "s_and_b32 s95, s%d, 7" % sR, "s_mul_i32 s95, s95, 48", "s_add_u32 s96, s96, s95",
             "v_add_u32 v26, s96, v26", "v_mul_u32_u24 v26, 1152, v26", "v_lshl_add_u32 v26, v28, 7, v26",
             "s_cmp_ge_u32 s96, 144", "s_cselect_b32 s%d, 0x%x, s%d" % (sWT, OOB, sWT),
             "s_and_b32 s96, s%d, 1" % sW, "s_mul_i32 s96, s96, 36", "s_and_b32 s95, s%d, 7" % sR, "s_mul_i32 s95, s95, 72", "s_add_u32 s96, s96, s95",
             "v_add_u32 v29, s96, v0", "v_mul_u32_u24 v29, 9216, v29",
             "v_cmp_gt_u32 vcc, 36, v0", "v_mov_b32 v28, 0x%x" % OOB, "s_nop 0", "v_cndmask_b32 v26, v28, v26, vcc", "v_cndmask_b32 v29, v28, v29, vcc"]
    sp = []
    NSP = opt.get("nsp", 0)
    if NSP:
        e("s_and_b32 s6, s%d, 7" % sR); e("s_lshl_b32 s6, s6, 1"); e("s_and_b32 s7, s%d, 1" % sW); e("s_add_u32 s6, s6, s7")
        e("s_mul_i32 s6, s6, %d" % (NSP * 9216)); e("s_add_u32 s6, s6, s%d" % sB1); e("s_add_u32 s6, s6, %d" % (opt.get("sp0", 64) * 9216))
        e("s_add_u32 s90, s%d, s6" % sT); e("s_addc_u32 s91, s%d, 0" % sT2)
        sp = ["s_load_dword s92, s[90:91], 0x%x" % (i * 9216 + h * 64) for i in range(NSP) for h in range(2)]
    prologue(g, pipe, early=early, afterbar=(lambda: [e(t) for t in touch1(0) + (touch1(1) if not opt.get('t1pos', 70) else [])]) if TOUCH else None, nfirst=opt.get('nfirst', 8),
             fill=sp + group_scc(late_setup() + vset + tr_bases(g, B1, 8)))
    def epi1(rho):
        acc = ACC[rho & 1]; ops = []; sts = ["s_add_u32 s%d, s%d, %d" % (sT2, sHX, rho * 4096)]
        for t in range(4):
            for tt in range(2):
                gt = acc + ((t * 2) * 2 + tt) * 4; up = acc + ((t * 2 + 1) * 2 + tt) * 4
                u = 2 * rho + t // 2
                h = H + (u * 2 + tt) * 4 + (t & 1) * 2
                for k in range(2):
                    for i in (2 * k, 2 * k + 1): ops.append("v_max_f32 v%d, 0, v%d" % (gt + i, gt + i))
                    for i in (2 * k, 2 * k + 1): ops.append("v_mul_f32 v%d, v%d, v%d" % (gt + i, gt + i, up + i))
                    ops.append("v_cvt_pk_bf16_f32 v%d, v%d, v%d" % (h + k, gt + 2 * k, gt + 2 * k + 1))
                if t & 1:
                    sts.append(("buffer_store_dwordx4 %s, v%d, s[%d:%d], s%d offen offset:%d sc1" % (hreg(0, u, tt), VST, SWS, SWS + 3, sT2, ((u & 1) * 2 + tt) * 1024), ("hst", rho)))
        return ops, sts
    def hloads(b, q):
        ops = []
        for u in (range(5) if b == 3 else Q(q)):
            if u % 2 == 0: ops.append("s_add_u32 s%d, s%d, %d" % (sT, sOX if b == 3 else sHX + b, u * 2048))
            for tt in range(2):
                ops.append(("buffer_load_dwordx4 %s, v%d, s[%d:%d], s%d offen offset:%d sc1" % (hreg(b, u, tt), VST, SWS, SWS + 3, sT, ((u & 1) * 2 + tt) * 1024), ("h", b, q)))
        return ops
    extra = {}; urgent = {}
    add = lambda k, l: extra.setdefault(k, []).extend(l)
    addu = lambda k, l: urgent.setdefault(k, []).extend(l)
    EP = opt.get("epiw", 75)
    for rho in range(5):
        spread(sum(epi1(rho), []) + [Mark("epi%d" % rho)], 144 * (rho + 1) + 3, 144 * (rho + 1) + EP, extra)
    P2 = start[S2]
    hb = ["v_bfe_u32 v144, v0, 2, 4", "v_lshlrev_b32 v144, 6, v144", "v_bfe_u32 v145, v0, 4, 1", "v_lshl_add_u32 v144, v145, 5, v144",
          "v_and_b32 v145, 3, v0", "v_lshl_add_u32 v144, v145, 3, v144", "v_xor_b32 v145, 32, v144"]
    hb += ["v_add_u32 v%d, 0x%x, v%d" % (BH + 2 * k + t, k << 16, BH + t) for k in (1, 2) for t in range(2)]
    hb += ["v_lshrrev_b32 v2, 5, v0", "v_bfe_u32 v3, v0, 3, 2", "v_lshl_add_u32 v2, v2, 4, v3", "v_mul_u32_u24 v4, 1152, v2",
           "v_bfe_u32 v2, v0, 4, 2", "v_lshlrev_b32 v2, 1, v2", "v_and_b32 v3, 7, v0", "v_xor_b32 v2, v2, v3", "v_lshl_add_u32 v4, v2, 4, v4",
           "v_add_u32 v1, 256, v4", "s_sub_u32 s96, s%d, s%d" % (sKO, sKB), "v_add_u32 v2, s96, v4",
           "s_sub_u32 s96, s%d, s%d" % (sKS, sKB), "s_and_b32 s95, s96, 64", "v_xor_b32 v3, s95, v4", "s_and_b32 s96, s96, 128", "v_add_u32 v3, s96, v3"]
    add(P2 + 3, [Dens(1)] + epi1(5)[0] + [Mark("epi5"), Dens(0)] + epi1(5)[1] + hb + [Mark("hb")])
    pauses = [(0, opt.get('p0', 0))]
    if TOUCH:
        T = [touch1(2), touch1(3), touch1(4), touch1(5), touch2(0), touch2(1), touch2(2), touch2(3)]
        for k, ops in zip(opt.get("tpos", [70, 148, 292, 436, 510, 690, 760, 760]), T):
            addu(k, ops); pauses.append((k + opt.get("pdel", 0), k + opt.get("pause", 40)))
    if opt.get("t1pos", 70): addu(opt.get("t1pos", 70), touch1(1))
    add(150, ["s_lshl_b32 s60, s%d, 3" % sI, "s_and_b32 s96, s%d, 7" % sR, "s_add_u32 s60, s60, s96", "s_lshl_b32 s60, s60, 2", "s_add_u32 s60, s60, s%d" % sW,
              "s_mul_i32 s60, s60, 4608", "s_mul_i32 s96, s%d, %d" % (sJ, 1152 * 1152), "s_add_u32 s60, s60, s96",
              "v_min_u32 v30, 35, v0", "v_lshlrev_b32 v30, 7, v30"])
    if opt.get("cpf"):
        e("s_lshr_b32 s100, s2, 3"); e("s_sub_u32 s100, s100, 8"); e("s_lshl_b32 s100, s100, 2"); e("s_add_u32 s100, s100, s%d" % sW)
        e("s_lshl_b32 s100, s100, 6"); e("s_add_u32 s100, s100, %d" % opt["cpf"])
        for k in range(140, start[-1], 140): addu(k, [code_pf()])
    add(1, xc_copies() + [Mark("xc"), "v_add_u32 v22, %d, v25" % (16 * 1152 - 1024)])
    add(144 + 90, flag_lane_offsets(23, 28) + [Mark("flo")])
    addu(288 + 100, [lambda: flag_issue(g, 28, 23, None)])
    groups = list(range(0, SL, 2)) + [SL + k for k in opt.get('eg', [0, 1, 2, 4, 6, 8, 11, 13, 15])]
    bar = lambda n: start[n] - pipe.D - 1
    hooks = {}
    def before(n, f):
        assert n in groups, n
        hooks.setdefault(n, []).append(f); stages[n].before = lambda n=n: [f() for f in hooks[n]]
    before(26, lambda: flag_check(g, 28, 23, None, 0))
    FLD = opt.get('fld', 50); CMB = opt.get('cmb', 0)
    HS = opt.get("hs", [[30, 36], [46, 52], [S2 + 8, S2 + 14]])
    for q, (ns, nc) in enumerate(HS):
        before(ns, lambda q=q: g.wait_vm(("hst", 2 * q + 1)))
        stages[ns].after = lambda q=q: signal(g, 28, 24, 63, 16 * q)
        addu(bar(nc) - FLD, [lambda: flag_issue(g, 28, 23, sCNT)])
        before(nc, lambda q=q: flag_check(g, 28, 23, sCNT, (0x7 << (4 * q)) | (0x1000 if q == 2 and CMB else 0)))
    HW = opt.get("hw", [100, 100, 20])
    HP = opt.get("hp", [0, 0, 0])
    for q in range(3):
        spread(hloads(1, q), bar(HS[q][1]) + 1, bar(HS[q][1]) + 1 + HW[q], urgent); pauses.append((bar(HS[q][1]) + 1, bar(HS[q][1]) + 1 + HP[q]))
    assert bar(HS[1][1]) + 1 + HW[1] <= P2 + opt.get("h2pos", 100)
    spread(hloads(2, 0) + hloads(2, 1), P2 + opt.get("h2pos", 100), P2 + opt.get('h2pos', 100) + 60, urgent)
    def to_g2():
        for k in range(12): e("v_sub_u32 v%d, v%d, v27" % (B1 + k, B1 + k))
    stages[S2].after = to_g2
    for bq in BQ[3:]: before(first[bq], lambda bq=bq: g.wait_vm(("h",) + bq))
    spread(hloads(2, 2), bar(SL) - opt.get('h22', 30), bar(SL) - opt.get('h22', 30) + 10, urgent)
    sFL, sFW, sPL, sCOL, sRS, sMSK, sP1, sCK = 64, 65, 66, 67, 68, 69, 72, 75
    a2 = Asm(); srd(a2, SW1, 61, 62, PSZ)
    fin = [l.strip() for l in a2.lines]
    fin += ["s_mul_i32 s95, s%d, 3" % sR, "s_add_u32 s95, s95, s%d" % sI, "s_lshl_b32 s%d, s95, 7" % sFL, "s_add_u32 s%d, s%d, 0x%x" % (sFL, sFL, WS_FLG + 72 * 128),
           "s_lshl_b32 s%d, s%d, 2" % (sFW, sJ), "s_add_u32 s%d, s%d, s%d" % (sFW, sFW, sFL),
           "s_lshr_b32 s95, s%d, 1" % sJ, "s_lshl_b32 s96, s95, 11", "s_add_u32 s%d, s%d, s96" % (sPL, sB2), "s_add_u32 s%d, s%d, 8192" % (sPL, sPL),
           "s_and_b32 s96, s%d, 1" % sJ, "s_lshl_b32 s76, s96, 7", "s_add_u32 s%d, s%d, s76" % (sPL, sPL),
           "s_lshl_b32 s95, s95, 12", "s_lshl_b32 s96, s96, 10", "s_add_u32 s95, s95, s96", "s_add_u32 s76, s95, s%d" % sB2]
    for k in range(3):
        fin += ["s_add_u32 s96, s%d, %d" % (sJ, k + 1), "s_and_b32 s96, s96, 3", "s_mul_i32 s96, s96, %d" % PSZ, "s_add_u32 s%d, s76, s96" % (sP1 + k)]
    fin += ["v_and_b32 v150, 0x37, v0", "v_lshlrev_b32 v150, 4, v150", "v_bfe_u32 v155, v0, 3, 1", "v_lshl_add_u32 v150, v155, 10, v150",
            "s_mul_i32 s%d, s%d, 384" % (sCOL, sI), "s_add_u32 s%d, s%d, s4" % (sCOL, sCOL), "s_lshl_b32 s96, s%d, 6" % sJ, "s_add_u32 s%d, s%d, s96" % (sCK, sCOL),
            "s_add_u32 s77, s%d, %d" % (sCK, 16 * 1152),
            "v_bfe_u32 v156, v0, 4, 1", "v_lshlrev_b32 v156, 5, v156", "v_lshrrev_b32 v157, 5, v0", "v_lshl_add_u32 v156, v157, 4, v156",
            "s_lshl_b32 s95, s%d, 3" % sJ, "v_and_b32 v151, 7, v0", "v_add_u32 v151, s95, v151", "v_lshlrev_b32 v153, 2, v151",
            "v_mul_u32_u24 v151, 1152, v151", "v_lshl_add_u32 v151, v155, 6, v151", "v_add_u32 v151, v151, v156",
            "v_and_b32 v152, 15, v0", "v_lshlrev_b32 v154, 2, v152", "v_mul_u32_u24 v152, 1152, v152", "v_add_u32 v152, v152, v156",
            "s_lshl_b32 s96, s%d, 2" % sR, "s_add_u32 s96, s96, s%d" % sJ, "s_lshl_b32 s96, s96, 2", "s_add_u32 s96, s96, s%d" % sW,
            "s_lshl_b32 s%d, s96, 7" % sRS, "s_add_u32 s%d, s%d, 0x%x" % (sRS, sRS, WS_RS2),
            "s_mov_b32 s70, 0x3f80", "s_mov_b32 s71, 0x3f800000"]
    add(P2 + 150, fin + [Mark("fin")])
    XL = [(32, 152, sCK, 0), (36, 152, 77, 0), (40, 151, sCOL, 256)]
    RL = [(155, 154, 0), (156, 154, 64), (157, 153, 0)]
    nO = SL - opt.get('oearly', 0)
    if not CMB:
        addu(bar(nO) - opt.get('old', 30), [lambda: flag_issue(g, 28, 23, sCNT)])
        before(nO, lambda: flag_check(g, 28, 23, sCNT, 0x1000))
    spread(hloads(3, 0) + ["buffer_load_dword v%d, v%d, s[%d:%d], s%d offen offset:%d sc1" % (d, v, SWS, SWS + 3, sRS, im) for d, v, im in RL], bar(nO) + opt.get('o0', 1), bar(nO) + opt.get('o1', 5), urgent)
    before(SO, lambda: g.wait_vm(("h", 3, 0)))
    add(start[SL + 4] + 3, store_ops(g, A2, PK, 2, VST))
    add(start[SL + 8] + 3, store_ops(g, AO, PK, 0, VST, sSO))
    add(start[SK] + 3, [Dens(1)] + store_ops(g, AS, PK, 0, VST, sSS, 2, "pst") + [Mark("pst"), Dens(0)] + ["v_mov_b32 v%d, 0" % (96 + i) for i in range(8)] +
        [("buffer_load_dwordx4 %s, v%d, s[%d:%d], s%d offen offset:%d" % (vr(d, 4), v, SX, SX + 3, so, im), "fx") for d, v, so, im in XL])
    INS = opt.get("insig", 1)
    if INS:
        before(SK + 4, lambda: g.wait_vm("pst")); stages[SK + 4].after = lambda: signal(g, 28, 24, sFW, 0)
    if opt.get("ts") or opt.get("amp") is not None:
        for k in ([720] + list(range(720 + 48, start[-1], 32)) if opt.get('fine2') else (144, 288, 432, 576, 720, P2, P2 + 144, P2 + 288, start[SK])): addu(k, [g.stamp])
    pipe.run(0, len(stages), extra, pauses=pauses, groups=groups, urgent=urgent)
    w = pipe.when
    if opt.get("verbose"): print(w, "P2", P2, "SK", start[SK], "end", start[-1], "barK", bar(SK + 4))
    assert w["xc"] < 142 and w["flo"] < 288 + 100 and all(w["epi%d" % r] < 144 * (r + 2) - 1 for r in range(5)), w
    assert w["epi5"] < start[first[(0, 2)]] + 7 and w["hb"] < bar(SH0) and w["fin"] < bar(nO) - 1 and w["pst"] < bar(SK + 4), w
    g.stamp()
    if not INS:
        e("s_waitcnt vmcnt(0)"); e("s_barrier"); signal(g, 28, 24, sFW, 0)
    flag_check(g, 28, 23, sFL, 0xf, issued=False, sleep=1)
    e("s_barrier")
    g.stamp()
    UA = [(AK, AK + 8), (AK + 4, AK + 12), (96, 100)]
    lds = []
    regs = list(range(48, 96, 4))
    for p in range(4):
        if p < 3:
            for tt in range(2):
                d = regs.pop(0); lds.append((d, tt))
                e("buffer_load_dwordx4 %s, v%d, s[%d:%d], s%d offen offset:%d sc1" % (vr(d, 4), VST, SWS, SWS + 3, sP1 + p, tt * 2048), ("pl", len(lds)))
        if p: e("s_add_u32 s%d, s%d, %d" % (sPL, sPL, PSZ))
        d = regs.pop(0); lds.append((d, 2))
        e("buffer_load_dwordx4 %s, v150, s[%d:%d], s%d offen sc1" % (vr(d, 4), SWS, SWS + 3, sPL), ("pl", len(lds)))
    g.wait_vm("fx")
    for k in range(12):
        e("v_lshlrev_b32 v%d, 16, v%d" % (160 + 2 * k, 32 + k))
        e("v_and_b32 v%d, 0xffff0000, v%d" % (161 + 2 * k, 32 + k))
    for n, (d, u) in enumerate(lds):
        if n % 3 == 0: g.wait_vm(("pl", min(n + 3, len(lds))))
        for i in range(4):
            a0 = UA[u][i // 2] + 2 * (i % 2)
            e("v_dot2c_f32_bf16 v%d, s70, v%d" % (a0, d + i))
            e("v_dot2c_f32_bf16 v%d, s71, v%d" % (a0 + 1, d + i))
    e("s_nop 2")
    for u in range(3):
        for i in range(4): e("v_permlane16_swap_b32 v%d, v%d" % (UA[u][0] + i, UA[u][1] + i))
        for i in range(4):
            a0 = UA[u][i // 2] + 2 * (i % 2); x = 160 + 8 * u + 2 * i
            e("v_fmac_f32 v%d, v%d, v%d" % (x, a0, 155 + u))
            e("v_fmac_f32 v%d, v%d, v%d" % (x + 1, a0 + 1, 155 + u))
            e("v_cvt_pk_bf16_f32 v%d, v%d, v%d" % (184 + 4 * u + i, x, x + 1))
        e("buffer_store_dwordx4 %s, v%d, s[%d:%d], s%d offen offset:%d %s" % (vr(184 + 4 * u, 4), XL[u][1], SW1, SW1 + 3, XL[u][2], XL[u][3], opt.get("oflags", "nt")))
    if opt.get("ts") or opt.get("amp") is not None:
        e("s_waitcnt vmcnt(0)"); g.stamp()

def k1(g):
    e, opt = g.e, g.opt
    kernel_head(g, K1)
    e("s_getpc_b64 s[84:85]")
    for _ in range(opt.get("pad", 0)): e("s_mov_b32 s99, 0x12345")
    e("s_cmp_ge_u32 s2, 256")
    e("s_cbranch_scc1 L_k1_end")
    e("s_load_dwordx8 s[64:71], s[0:1], 0")
    e("s_load_dwordx4 s[72:75], s[0:1], 40")
    e("s_load_dwordx4 s[76:79], s[0:1], 56")
    e("s_load_dwordx4 s[80:83], s[0:1], 72")
    if opt.get("vpf", 1):
        e("s_bitcmp1_b32 s2, 3")
        e("s_cselect_b32 s3, L_att-%s, 0" % K1)
        e("s_lshl_b32 s4, s2, 8")
        e("s_and_b32 s4, s4, 0xf000")
        e("s_add_u32 s3, s3, s4")
        e("v_lshlrev_b32 v2, 4, v0")
        e("v_add_u32 v2, s3, v2")
        e("global_load_dword v255, v2, s[84:85]")
    e("v_lshrrev_b32 v1, 6, v0")
    e("v_and_b32 v0, 63, v0")
    e("v_readfirstlane_b32 s%d, v1" % sW)
    lane_consts(g)
    e("s_and_b32 s%d, s2, 1" % sR)
    e("s_lshl_b32 s%d, s%d, 3" % (sR, sR))
    e("s_bfe_u32 s%d, s2, 0x30003" % sT)
    e("s_or_b32 s%d, s%d, s%d" % (sR, sR, sT))
    e("s_bfe_u32 s%d, s2, 0x20001" % sS)
    e("s_lshr_b32 s3, s2, 6")
    if opt.get("ts"):
        e("s_lshl_b32 s94, s2, 2"); e("s_add_u32 s94, s94, s%d" % sW); e("s_lshl_b32 s94, s94, 8"); e("s_add_u32 s94, s94, 0x%x" % WS_TS)
        if opt.get("dbgts") is not None:
            e("s_lshl_b32 s94, s2, 2"); e("s_add_u32 s94, s94, s%d" % sW); e("s_cmp_eq_u32 s94, %d" % (4 * opt["dbgts"])); e("s_cselect_b32 s94, 0, 0x10000")
    x_setup(g)
    e("s_mov_b32 s%d, 0x%x" % (SX + 2, PSZ))
    e("s_mov_b32 s%d, 0x20000" % (SX + 3))
    e("s_waitcnt lgkmcnt(0)")
    e("s_mov_b32 s%d, s64" % SX)
    e("s_and_b32 s%d, s65, 0xffff" % (SX + 1))
    if opt.get("ts") or opt.get("amp") is not None:
        srd(g, SWS, 82, 83, WS_BYTES); srd(g, SDBG, 80, 81, 256); g.stamp()
    for o in range(opt.get("xcommon", 1)):
        for j in range(9): x_dma(g, o, j)
    wb = opt.get("wsbase", 0)
    if wb:
        e("s_add_u32 s82, s82, 0x%x" % wb); e("s_addc_u32 s83, s83, 0")
    srd(g, SWS, 82, 83, WS_BYTES - wb)
    srd(g, SDBG, 80, 81, 256)
    e("s_or_b32 s%d, s2, s%d" % (sT, sW))
    e("s_cbranch_scc1 L_nonce_done")
    e("s_memrealtime s[98:99]")
    e("s_waitcnt lgkmcnt(0)")
    e("v_mov_b32 v2, s98")
    e("v_or_b32 v2, 1, v2")
    Asm.e(g, "buffer_store_dword v2, off, s[%d:%d], 0 sc1" % (SDBG, SDBG + 3))
    g.label("L_nonce_done")
    e("s_cmp_eq_u32 s3, 0")
    e("s_cbranch_scc1 %s" % ("L_k1_end" if opt.get("noatt") else "L_att"))
    sv = (list(g.vm), list(g.lg), g.nts)
    g.sv = 31
    ffn_role(g)
    g.sv = 30
    def amp(role):
        if opt.get("amp") is None or opt.get("amprole", "ffn") != role: return
        L = g.newlabel("L_amp")
        e("s_sub_u32 s101, s101, s100")
        e("s_add_u32 s101, s101, %d" % opt.get("ampadd", 0))
        if role == "ffn":
            e("s_memrealtime s[92:93]"); e("s_waitcnt lgkmcnt(0)"); e("s_mov_b32 s100, s92")
        g.label(L)
        e("s_sleep 1"); e("s_memrealtime s[92:93]"); e("s_waitcnt lgkmcnt(0)")
        e("s_sub_u32 s92, s92, s100"); e("s_cmp_lt_u32 s92, s101"); e("s_cbranch_scc1 %s" % L)
    amp("ffn")
    e("s_endpgm")
    g.vm, g.lg, g.nts = sv
    g.raw(".p2align 6")
    g.label("L_att")
    import att
    att.att_role(g)
    amp("att")
    g.label("L_k1_end")
    e("s_endpgm")
    g.raw(".fill (L_att-%s+65536+8192-(L_k1_end-%s))/4, 4, 0xbf810000" % (K1, K1))

VOP3ONLY = ("v_mfma", "v_pk_", "v_fma_f32", "v_cvt_pk_bf16", "v_accvgpr_read", "v_accvgpr_write", "v_max3", "v_min3", "v_lshl_add", "v_add_lshl", "v_mad_u32",
            "v_bfe", "v_add3", "v_mul_lo", "v_mul_hi", "v_lshl_or", "v_and_or", "v_readlane", "v_perm_b32")
NOWIDE = ("v_readfirstlane", "v_permlane", "v_dot2c", "v_nop")
def has_lit(s):
    for t in re.split(r"[ ,]+", s)[1:]:
        if re.match(r"^-?(0x[0-9a-f]+|\d+)$", t):
            v = int(t, 0)
            if not (-16 <= v <= 64) and v not in (0x3f800000, 0x3f000000, 0x40000000, 0x40800000, 0xbf800000, 0xbf000000, 0xc0000000, 0xc0800000): return True
        if t.startswith("L_"): return not s.startswith(("s_cbranch", "s_branch"))
    return False
def isize(s):
    op = s.split()[0]
    if op.startswith(("ds_", "buffer_", "global_", "s_load", "s_mem")): return 8, False
    if op.startswith("s_"):
        if op.startswith(("s_waitcnt", "s_addk", "s_mulk", "s_nop", "s_barrier", "s_sleep", "s_endpgm", "s_cbranch", "s_branch", "s_setprio", "s_getreg")): return 4, False
        return (8 if has_lit(s) else 4), False
    if op.startswith(VOP3ONLY): return 8, False
    if has_lit(s): return 8, False
    ops = [x.strip() for x in re.split(r",(?![^\[]*\])", s.split(None, 1)[1])]
    if op.startswith("v_cmp") and ops[0] != "vcc": return 8, False
    if op.startswith("v_cndmask") and ops[-1] != "vcc": return 8, False
    if len(ops) >= 3 and not ops[2].startswith("v"): return 8, False
    return 4, not op.startswith(NOWIDE)
def align_pass(lines, minrun=4):
    ins = [l.strip() for l in lines]
    out = []; par = 0
    isins = lambda l: l and not l.endswith(":") and not l.startswith((".", ";"))
    n = len(ins)
    def nxt(i):
        i += 1
        while i < n and not isins(ins[i]):
            if ins[i].startswith(".p2align"): return None
            i += 1
        return i if i < n else None
    for i, l in enumerate(ins):
        if not isins(l):
            if l.startswith(".p2align"): par = 0
            out.append(l); continue
        sz, flex = isize(l)
        if sz == 8: out.append(l); continue
        if par == 1: out.append(l); par = 0; continue
        j = nxt(i)
        if j is None or isize(ins[j])[0] == 4: out.append(l); par = 1; continue
        if flex:
            op, rest = l.split(None, 1); out.append(op + "_e64 " + rest); continue
        run = 0
        while j is not None and isize(ins[j])[0] == 8 and run < minrun: run += 1; j = nxt(j)
        out.append(l)
        if run >= minrun and not l.startswith(("s_branch", "s_endpgm")): out.append("s_nop 0")
        else: par = 1
    return out

LABELS = {}
def resolve(lines):
    off = 0; LABELS.clear()
    for l in lines:
        l = l.strip()
        if l.endswith(":"): LABELS[l[:-1]] = off
        elif l.startswith(".p2align"):
            a = 1 << int(l.split()[1]); off = (off + a - 1) // a * a
        elif l and not l.startswith((".", ";")):
            off += 8 if l.split()[0].endswith("_e64") else isize(l)[0]
    end = LABELS["L_k1_end"]
    def f(m):
        span = 2048 if LABELS[m.group(1)] >= LABELS["L_att"] else 6144
        return "0x%x" % (min(LABELS[m.group(1)] + int(m.group(2)), end - span) & ~3)
    return [re.sub(r"@(\w+)\+(\d+)", f, l) if l.strip().startswith("s_load") else l for l in lines]

MACROS = """.macro MA d,a,b
v_mfma_f32_16x16x32_bf16 v[\\d:\\d+3], a[\\a:\\a+3], a[\\b:\\b+3], v[\\d:\\d+3]
.endm
.macro MV d,a,b
v_mfma_f32_16x16x32_bf16 v[\\d:\\d+3], a[\\a:\\a+3], v[\\b:\\b+3], v[\\d:\\d+3]
.endm
.macro RT d,b,o
ds_read_b64_tr_b16 a[\\d:\\d+1], v\\b offset:\\o
.endm
.macro WL n
s_waitcnt lgkmcnt(\\n)
.endm
.macro CV d,a,b
v_cvt_pk_bf16_f32 v\\d, v\\a, v\\b
.endm
"""
def compress(line):
    s = line.strip()
    m = re.match(r"v_mfma_f32_16x16x32_bf16 v\[(\d+):\d+\], a\[(\d+):\d+\], ([av])\[(\d+):\d+\], v\[(\d+):\d+\]$", s)
    if m and m.group(1) == m.group(5): return "M%s %s,%s,%s" % (m.group(3).upper(), m.group(1), m.group(2), m.group(4))
    m = re.match(r"ds_read_b64_tr_b16 a\[(\d+):\d+\], v(\d+) offset:(\d+)$", s)
    if m: return "RT %s,%s,%s" % m.groups()
    m = re.match(r"s_waitcnt lgkmcnt\((\d+)\)$", s)
    if m: return "WL %s" % m.group(1)
    m = re.match(r"v_cvt_pk_bf16_f32 v(\d+), v(\d+), v(\d+)$", s)
    if m: return "CV %s,%s,%s" % m.groups()
    return s

def gen(**opt):
    g = G(opt)
    k1(g)
    FUSE = 1
    errs = hazard.check(g.lines)
    if errs:
        print("\n".join(errs[:40])); raise SystemExit("hazards: %d" % len(errs))
    head = open("cdna_kernels/%s.s.ref" % BASE).read().split("; Override launch")[0] if not opt.get("nohead") else ""
    out = head
    if FUSE: out += "; @launch grid=(256,1,1) block=(256,1,1) lds=163840\n"
    else: out += "; @launch kernel=%s grid=(256,1,1) block=(256,1,1) lds=163840\n" % K1
    if not FUSE: out += "; @launch kernel=%s grid=(256,1,1) block=(576,1,1) lds=0\n" % K2
    out += '.amdgcn_target "amdgcn-amd-amdhsa--gfx950"\n.text\n' + MACROS
    lines = align_pass(g.lines, opt.get("minrun", 4)) if opt.get("align", 1) else g.lines
    lines = resolve(lines)
    out += "\n".join(compress(l) for l in lines) + "\n"
    out += '.section .rodata,"a"\n' + kernel_desc(K1, 512, 256) + ("" if FUSE else kernel_desc(K2, 96, 96, 40))
    return out

if __name__ == "__main__":
    kw = json.loads(sys.argv[2]) if len(sys.argv) > 2 else {}
    open(sys.argv[1], "w").write(gen(**kw))
```

```python
from asmlib import *
import gen as G
from gen import *

TBL = 155648; ZER = 163328; SCR = 98304
sODD = 42
sWO = 44
sKV, sQ, sKVP, sCQ, sOXB = 49, 50, 51, 44, 45
ACC = 32

def softmax(p, o, tt, E):
    L = []; e = L.append
    e("v_max3_f32 v24, v%d, v%d, v%d" % (p, p + 1, p + 2)); e("v_min3_f32 v25, v%d, v%d, v%d" % (p, p + 1, p + 2))
    for i in range(3, 17, 2):
        e("v_max3_f32 v24, v24, v%d, v%d" % (p + i, p + i + 1)); e("v_min3_f32 v25, v25, v%d, v%d" % (p + i, p + i + 1))
    e("v_max_f32 v24, v24, v%d" % (p + 17)); e("v_min_f32 v25, v25, v%d" % (p + 17))
    e("v_pk_mul_f32 v[24:25], v[24:25], v[14:15] op_sel:[0,%d] op_sel_hi:[1,%d]" % (tt, tt))
    for i in range(0, 18, 2):
        e("v_pk_fma_f32 %s, %s, v[14:15], v[24:25] op_sel:[0,%d,0] op_sel_hi:[1,%d,0] neg_lo:[0,0,1] neg_hi:[0,0,1]" % (vr(E + i, 2), vr(p + i, 2), tt, tt))
        e("v_pk_fma_f32 %s, %s, v[14:15], v[24:25] op_sel:[0,%d,1] op_sel_hi:[1,%d,1] neg_lo:[0,1,0] neg_hi:[0,1,0]" % (vr(p + i, 2), vr(p + i, 2), tt, tt))
    for i in range(18):
        e("v_exp_f32 v%d, v%d" % (E + i, E + i))
        e("v_exp_f32 v%d, v%d" % (p + i, p + i))
    e("v_pk_add_f32 v[24:25], %s, %s" % (vr(E, 2), vr(E + 2, 2)))
    e("v_pk_add_f32 v[26:27], %s, %s" % (vr(p, 2), vr(p + 2, 2)))
    for i in range(4, 18, 2):
        e("v_pk_add_f32 v[24:25], v[24:25], %s" % vr(E + i, 2))
        e("v_pk_add_f32 v[26:27], v[26:27], %s" % vr(p + i, 2))
    e("v_add_f32 v24, v24, v25")
    e("v_add_f32 v25, v26, v27")
    e("v_rcp_f32 v24, v24")
    e("v_rcp_f32 v25, v25")
    e("s_nop 0")
    for i in range(0, 18, 2):
        e("v_pk_mul_f32 %s, %s, v[24:25] op_sel:[0,0] op_sel_hi:[1,0]" % (vr(E + i, 2), vr(E + i, 2)))
        e("v_pk_mul_f32 %s, %s, v[24:25] op_sel:[0,1] op_sel_hi:[1,1]" % (vr(p + i, 2), vr(p + i, 2)))
    for i in range(8, -1, -1): e("v_cvt_pk_bf16_f32 v%d, v%d, v%d" % (o + 9 + i, p + 2 * i, p + 2 * i + 1))
    for i in range(9): e("v_cvt_pk_bf16_f32 v%d, v%d, v%d" % (o + i, E + 2 * i, E + 2 * i + 1))
    out = []
    for x in L:
        if x.startswith("v_pk_"):
            if out and isinstance(out[-1], list): out[-1].append(x)
            else: out.append([x])
        else: out.append(x)
    for x in out:
        if isinstance(x, list): x.append("s_nop 0")
    return out

def phi_frag_reads(rho, A, tag):
    L = ["v_mov_b32 v29, v18" if rho == 0 else "v_mad_u32_u24 v29, v19, 12, v18"]
    for ks in range(3):
        for to in range(5):
            b = A + (ks * 5 + to) * 4
            L.append(("ds_read_b64_tr_b16 %s, v29 offset:%d" % (ar(b, 2), to * 8), tag))
            L.append(("ds_read_b64_tr_b16 %s, v29 offset:%d" % (ar(b + 2, 2), to * 8 + 160), tag))
        if ks < 2: L.append("v_add_u32 v29, v29, v19")
    return L

def phi_mfma(pk, P, A):
    return [mfma(vr(P[tt] + 4 * to, 4), ar(A + (ks * 5 + to) * 4, 4), vr(pk[tt] + 4 * ks, 4), "0" if ks == 0 else None)
            for ks in range(3) for to in range(5) for tt in range(2)]

def pack20(src, dst):
    return ["v_cvt_pk_bf16_f32 v%d, v%d, v%d" % (dst + i, src + 2 * i, src + 2 * i + 1) for i in range(10)]

def put(g, L):
    for it in L:
        if callable(it): it()
        elif isinstance(it, list): put(g, it)
        elif isinstance(it, tuple): g.e(it[0], it[1])
        else: g.e(it)

def weave(g, ms, fill, per=2):
    fill = list(fill)
    for m in ms:
        put(g, [m]); put(g, fill[:per]); fill = fill[per:]
    put(g, fill)

def c1(f):
    f.cost = 1
    return f

def att_role(g):
    e, opt = g.e, g.opt
    wf = opt.get("aflags", ""); TOUCH = opt.get("touch", 1); tf = opt.get("tflags", "")
    CPF = opt.get("codepf", 0)
    e("s_sub_u32 s66, s66, 2048")
    e("s_subb_u32 s67, s67, 0")
    srd(g, SW1, 66, 67, 576 * 1728 * 2 + 2048)
    srd(g, SPHI, 68, 69, 32 * 18 * 18 * 2)
    e("s_mul_i32 s%d, s%d, 3072" % (sM0W, sW))
    e("s_and_b32 s%d, s%d, 1" % (sT, sW))
    e("s_lshl_b32 s%d, s%d, 4" % (sT, sT))
    e("s_add_u32 s%d, s%d, s%d" % (sM0W, sM0W, sT))
    e("s_and_b32 s%d, s%d, 2" % (sT, sW))
    e("s_lshl_b32 s%d, s%d, 7" % (sT, sT))
    e("s_add_u32 s%d, s%d, s%d" % (sM0W, sM0W, sT))
    e("s_mul_i32 s%d, s%d, 288" % (sQ, sS))
    e("s_and_b32 s47, s%d, 0xffc0" % sQ)
    e("s_add_u32 s%d, s47, 1152" % sKV)
    e("s_lshl_b32 s%d, s%d, 7" % (sCNT, sS))
    e("s_add_u32 s%d, s%d, 0x%x" % (sCNT, sCNT, WS_FLG + 64 * 128))
    e("s_add_u32 s46, s%d, 512" % sCNT)
    e("s_lshl_b32 s63, s%d, 2" % sR)
    e("s_add_u32 s63, s63, s%d" % sCNT)
    e("s_lshl_b32 s%d, s%d, 2" % (sT, sR))
    e("s_add_u32 s%d, s%d, s%d" % (sT, sT, sS))
    e("s_lshl_b32 s%d, s%d, 7" % (sCQ, sT))
    e("s_add_u32 s%d, s%d, 0x%x" % (sCQ, sCQ, WS_FLG))
    e("s_lshl_b32 s%d, s%d, 2" % (sT, sT))
    e("s_add_u32 s%d, s%d, s%d" % (sT, sT, sW))
    e("s_mul_i32 s%d, s%d, 10240" % (sOXB, sT))
    e("s_add_u32 s%d, s%d, 0x%x" % (sOXB, sOXB, WS_OX))
    e("s_lshl_b32 s%d, s%d, 3" % (sKVP, sS))
    e("s_add_u32 s%d, s%d, s%d" % (sKVP, sKVP, sW))
    e("s_lshl_b32 s%d, s%d, 4" % (sKVP, sKVP))
    e("s_add_u32 s%d, s%d, s%d" % (sKVP, sKVP, sR))
    e("s_mul_i32 s%d, s%d, 2944" % (sKVP, sKVP))
    e("s_add_u32 s%d, s%d, 0x%x" % (sKVP, sKVP, WS_KVP))
    stages = []; SLOT = 12800; NSL = 7
    for ps in range(3):
        for ks in range(18):
            n = len(stages); lo = (n % NSL) * SLOT
            sb, add, vo = (sKV, 128 * ps, 1) if ps < 2 else (47, 0, 4)
            pre = ["s_add_u32 m0, s%d, %d" % (sM0W, lo), "s_add_u32 s%d, s%d, %d" % (sOFF, sb, ks * 32 * 3456 + add)]
            dmas = ["buffer_load_dwordx4 v%d, s[%d:%d], s%d offen offset:%d %s lds" % (vo + i, SW1, SW1 + 3, sOFF, i * 1024, wf) for i in range(3)]
            frags = []
            for sec in range(2):
                for t in range(5):
                    off = lo + sec * 1536 + 8 * t + 16 * (ps if ps < 2 else sec)
                    def rd(buf, off=off):
                        b = 7 + (off >> 16); o = off & 0xffff
                        assert o + 768 < 65536
                        return ["ds_read_b64_tr_b16 %s, v%d offset:%d" % (ar(buf, 2), b, o), "ds_read_b64_tr_b16 %s, v%d offset:%d" % (ar(buf + 2, 2), b, o + 768)]
                    def mf(buf, ks=ks, sec=sec, t=t, XC=(XC if ps else XV0)):
                        order = (0, 1) if (sec * 5 + t) % 2 == 0 else (1, 0)
                        return [mfma(vr(ACC + (sec * 2 + tt) * 20 + 4 * t, 4), ar(buf, 4), XC(tt, ks), "0" if ks == 0 else None) for tt in order]
                    frags.append((rd, mf))
            stages.append(Stage(lo, lo + SLOT, pre, dmas, frags, "x"))
    OB = 192; VST = 21
    pipe = Pipe(g, stages, opt.get("D", 7), opt.get("ABE", 2))

    def early():
        if TOUCH:
            e("v_mul_u32_u24 v28, 3641, v0")
            e("v_lshrrev_b32 v28, 16, v28")
            e("v_mul_u32_u24 v9, 18, v28")
            e("v_sub_u32 v9, v0, v9")
            e("s_mul_i32 s3, s%d, 18" % sW)
            e("s_and_b32 s%d, s%d, 7" % (sOFF, sR))
            e("s_mul_i32 s%d, s%d, 72" % (sOFF, sOFF))
            e("s_add_u32 s3, s3, s%d" % sOFF)
            e("v_add_u32 v9, s3, v9")
            e("v_mul_u32_u24 v9, 3456, v9")
            e("v_lshl_add_u32 v9, v28, 7, v9")
            e("v_add_u32 v9, 2048, v9")
            e("v_cmp_gt_u32 vcc, 54, v0")
            e("v_mov_b32 v28, 0x%x" % OOB)
            e("s_nop 0")
            e("v_cndmask_b32 v9, v28, v9, vcc")
        e("s_lshl_b32 s%d, s%d, 6" % (sOFF, sW))
        e("v_add_u32 v29, s%d, v0" % sOFF)
        for i in range(4): e("v_mov_b32 v%d, 0" % (96 + i))
        e("v_lshlrev_b32 v28, 5, v29")
        e("v_add_u32 v28, %d, v28" % TBL)
        e("ds_write_b128 v28, v[96:99]")
        e("ds_write_b128 v28, v[96:99] offset:16")
        for i in range(6):
            a = 90 + i
            e("v_add_u32 v28, %d, v29" % (256 * i))
            e("v_mul_u32_u24 v30, 7282, v28")
            e("v_lshrrev_b32 v30, 16, v30")
            e("v_mul_u32_u24 v31, 3641, v30")
            e("v_lshrrev_b32 v31, 16, v31")
            e("v_add_lshl_u32 v%d, v28, v30, 2" % a)
            e("v_mul_u32_u24 v30, 240, v31")
            e("v_add_u32 v%d, v%d, v30" % (a, a))
            e("v_and_b32 v31, 1, v31")
            e("v_mul_u32_u24 v31, 80, v31")
            e("v_add3_u32 v%d, v%d, v31, s%d" % (a, a, sT)) if False else None
            e("v_add_u32 v%d, v%d, v31" % (a, a))
            e("v_add_u32 v%d, %d, v%d" % (a, TBL, a))
        e("v_cmp_gt_u32 vcc, 16, v29")
        e("v_mov_b32 v28, 150000")
        e("s_nop 0")
        e("v_cndmask_b32 v95, v28, v95, vcc")
        e("s_lshl_b32 s3, s%d, 3" % sW)
        e("v_mov_b32 v111, 0x%x" % OOB)
        for i in range(3):
            e("v_add_u32 v28, %d, v0" % (64 * i))
            e("v_mul_u32_u24 v30, 5462, v28")
            e("v_lshrrev_b32 v30, 16, v30")
            e("v_mul_u32_u24 v31, 12, v30")
            e("v_sub_u32 v31, v28, v31")
            e("v_lshrrev_b32 v28, 3, v30")
            e("v_and_b32 v30, 7, v30")
            e("v_add_u32 v30, s3, v30")
            e("v_mul_u32_u24 v30, 3456, v30")
            e("v_lshl_add_u32 v30, v31, 4, v30")
            e("v_add_u32 v30, %d, v30" % (2048 - 1024 * i))
            e("v_lshl_add_u32 v%d, v28, 7, v30" % (4 + i))
            e("v_mul_u32_u24 v28, 1152, v28")
            e("v_add_u32 v%d, v28, v30" % (1 + i))
        e("v_mul_u32_u24 v7, 3072, v22")
        e("v_and_b32 v28, 1, v22")
        e("v_cmp_eq_u32 s[%d:%d], 1, v28" % (sODD, sODD + 1))
        e("v_lshl_add_u32 v7, v28, 4, v7")
        e("v_lshrrev_b32 v28, 1, v22")
        e("v_lshl_add_u32 v7, v28, 8, v7")
        e("v_bfe_u32 v28, v0, 2, 2")
        e("v_mul_u32_u24 v30, 192, v28")
        e("v_add_u32 v7, v7, v30")
        e("v_bfe_u32 v30, v0, 1, 1")
        e("v_mul_u32_u24 v30, 72, v30")
        e("v_add_u32 v7, v7, v30")
        e("v_and_b32 v30, 1, v0")
        e("v_lshl_add_u32 v7, v30, 5, v7")
        e("s_and_b32 s3, s%d, 63" % sQ)
        e("v_add_u32 v7, s3, v7")
        e("v_add_u32 v8, 0x10000, v7")
        e("v_mul_u32_u24 v18, 960, v22")
        e("v_mul_u32_u24 v30, 40, v28")
        e("v_add_u32 v18, v18, v30")
        e("v_add_u32 v18, %d, v18" % TBL)
        e("v_and_b32 v30, 3, v0")
        e("v_cmp_eq_u32 vcc, v30, v22")
        e("v_mov_b32 v30, %d" % ZER)
        e("v_mov_b32 v31, 320")
        e("v_cndmask_b32 v18, v30, v18, vcc")
        e("v_cndmask_b32 v19, 0, v31, vcc")
        e("v_cmp_eq_u32 vcc, 0, v29")
        e("v_lshlrev_b32 v%d, 4, v0" % VST)
        e("s_nop 0")
        e("v_cndmask_b32 v20, v111, 0, vcc") if False else None
        e("v_mov_b32 v20, 0")
        e("v_cndmask_b32 v20, v111, v20, vcc")
        e("s_lshl_b32 s3, s%d, 5" % sW)
        e("v_add_u32 v28, s3, v23")
        e("v_mul_u32_u24 v10, 112, v28")
        e("v_mul_u32_u24 v28, 14336, v22")
        e("v_add_u32 v10, v10, v28")
        e("v_add_u32 v10, %d, v10" % SCR)
        e("v_bfe_u32 v28, v0, 2, 2")
        e("v_lshl_add_u32 v28, v22, 3, v28")
        e("v_mul_u32_u24 v11, 112, v28")
        e("v_and_b32 v28, 3, v0")
        e("v_lshl_add_u32 v11, v28, 3, v11")
        e("s_mul_i32 s3, s%d, 14336" % sW)
        e("s_add_u32 s3, s3, %d" % SCR)
        e("v_add_u32 v11, s3, v11")
        e("v_lshlrev_b32 v12, 4, v0")
    def touch(sec): return "buffer_load_dword v13, v9, s[%d:%d], s%d offen offset:%d %s" % (SW1, SW1 + 3, sQ, sec * 1152, tf)
    AT = opt.get("atouch", [[1, 2], [], [0]])
    def phil():
        e("s_mul_i32 s95, s%d, 5184" % sS)
        e("v_lshlrev_b32 v110, 2, v29")
        e("v_add_u32 v109, 4096, v110")
        for i in range(6):
            e("buffer_load_dword a%d, v%d, s[%d:%d], s95 offen offset:%d" % (244 + i, 110 if i < 4 else 109, SPHI, SPHI + 3, (i % 4) * 1024), "phi")
    def late():
        if TOUCH:
            for sec in AT[0]: e(touch(sec))
    import re
    sv = (g.lines, list(g.vm), list(g.lg)); g.lines = []
    early()
    for i in range(6): e("v_accvgpr_write_b32 a%d, v%d" % (250 + i, 90 + i))
    fill = [re.sub(r"\bs3\b", "s96", re.sub(r"\bs%d\b" % sOFF, "s95", l.strip())) for l in g.lines]
    g.lines, g.vm, g.lg = sv
    pipe.qthr = 3
    prologue(g, pipe, afterbar=late, postc=phil, fill=fill, var=True, nfirst=opt.get('anfirst', 6))
    e("v_and_b32 v28, 1, v0")
    e("v_cmp_eq_u32 vcc, 1, v28")
    e("v_and_b32 v28, 2, v0")
    e("v_cmp_eq_u32 s[54:55], 2, v28")
    e("v_lshrrev_b32 v28, 2, v23")
    e("v_lshl_add_u32 v28, v28, 4, v23")
    e("v_lshlrev_b32 v28, 2, v28")
    e("s_nop 0")
    for tt in range(2):
        d = 96 + 4 * tt
        e("v_cndmask_b32 v%d, v%d, v%d, vcc" % (d, d, d + 1))
        e("v_cndmask_b32 v%d, v%d, v%d, vcc" % (d + 2, d + 2, d + 3))
        e("v_cndmask_b32 v%d, v%d, v%d, s[54:55]" % (24 + tt, d, d + 2))
        e("ds_bpermute_b32 v%d, v28, v%d" % (16 + tt, 24 + tt))
    VAR = ["s_mov_b32 s%d, 0x3ae38e39" % sT, "v_mov_b32 v26, 0x3727c5ac"]
    VAR += ["v_fma_f32 v%d, v%d, s%d, v26" % (16 + tt, 16 + tt, sT) for tt in range(2)]
    VAR += ["v_accvgpr_write_b32 a%d, v%d" % (240 + tt, 16 + tt) for tt in range(2)]
    VAR += ["v_rsq_f32 v%d, v%d" % (16 + tt, 16 + tt) for tt in range(2)] + ["s_nop 0"]
    VAR += ["v_mul_f32 v%d, 0x3fb8aa3b, v%d" % (14 + tt, 16 + tt) for tt in range(2)]
    TW = [c1(lambda: g.wait_vm("phi"))]
    for i in range(6): TW += ["v_accvgpr_read_b32 v%d, a%d" % (24 + i % 4, 250 + i), ("ds_write_b32 v%d, a%d" % (24 + i % 4, 244 + i), "tw")]
    TW += [Hook(before=lambda: g.wait_lg("tw"))]
    g.stamp()
    PKK = [112, 124]; P = [136, 156]; ROW = [176, 204]; E = 232; FA = 176
    def head(rho):
        e("s_nop 3")
        for tt in range(2):
            for i in (10, 11): e("v_mov_b32 v%d, 0" % (PKK[tt] + i))
        for tt in range(2): put(g, pack20(ACC + tt * 20, PKK[tt]))
        g.wait_lg(("phf", rho))
        V = ["v_mov_b32 v28, 0x3f80"]
        for tt in range(2):
            s = ACC + (2 + tt) * 20
            put(g, ["v_pk_mul_f32 %s, %s, v[16:17] op_sel:[0,%d] op_sel_hi:[1,%d]" % (vr(s + i, 2), vr(s + i, 2), tt, tt) for i in range(0, 20, 2)])
            V += pack20(s, ROW[tt] + 18)
            V += ["v_cndmask_b32 v%d, v%d, v28, s[%d:%d]" % (ROW[tt] + 18, ROW[tt] + 18, sODD, sODD + 1),
                  "v_cndmask_b32 v%d, v28, v%d, s[%d:%d]" % (ROW[tt] + 27, ROW[tt] + 27, sODD, sODD + 1)]
        e("s_nop 0")
        weave(g, phi_mfma(PKK, P, FA), V)
    def post(rho):
        L = []
        for tt in range(2):
            L += softmax(P[tt], ROW[tt], tt, E)
            L += [("ds_write_b128 v10, %s offset:%d" % (vr(ROW[tt] + 4 * i, 4), tt * 16 * 112 + 16 * i), ("sw", rho)) for i in range(7)]
        L += ["v_cmp_eq_u32 vcc, 0, v22", "v_cmp_gt_u32 s[54:55], 4, v23", "v_mov_b32 v28, 0x%x" % OOB,
              "s_add_u32 s%d, s%d, %d" % (sT, sKVP, rho * 4 * 16 * 2944),
              "v_cndmask_b32 v25, v28, v12, vcc", "v_lshl_add_u32 v26, v22, 2, v23", "v_lshlrev_b32 v26, 4, v26", "v_cmp_gt_u32 vcc, 2, v22",
              "v_cndmask_b32 v26, v28, v26, s[54:55]", "s_nop 0", "v_cndmask_b32 v27, v28, v26, vcc"]
        L.append(Hook(before=lambda: g.wait_lg(("sw", rho))))
        KF = 136
        for kk in range(4):
            for f in range(5):
                col = 32 * f if f < 3 else 72 + 32 * (f - 3)
                d = KF + (kk * 5 + f) * 4
                L.append(("ds_read_b64_tr_b16 %s, v11 offset:%d" % (vr(d, 2), kk * 32 * 112 + col), ("kr", rho, kk)))
                L.append(("ds_read_b64_tr_b16 %s, v11 offset:%d" % (vr(d + 2, 2), kk * 32 * 112 + col + 4 * 112), ("kr", rho, kk)))
        L.append(Delay(2))
        L.append(c1(lambda: g.wait_lg(("kr", rho, 3))))
        for kk in range(4):
            for a in range(3):
                for b in range(2):
                    L.append(mfma(vr(112 + (a * 2 + b) * 4, 4), vr(KF + (kk * 5 + a) * 4, 4), vr(KF + (kk * 5 + 3 + b) * 4, 4), "0" if kk == 0 else None))
        L.append(Delay(3)); L.append("s_nop 0")
        for a in range(3):
            for b in range(2):
                vo = {(0, 0): 12, (1, 0): 25, (0, 1): 26, (1, 1): 27}[(int(a == 2), b)]
                L.append(("buffer_store_dwordx4 %s, v%d, s[%d:%d], s%d offen offset:%d sc1" % (vr(112 + (a * 2 + b) * 4, 4), vo, SWS, SWS + 3, sT, 2304 + a * 256 if b else a * 1024), "kvst"))
        return L
    DB, DQ = opt.get("dens", [2, 12])
    APZ = opt.get("apause", 0)
    fine = {k: [g.stamp] for k in range(30, 180, 30)} if opt.get("fine") else {}
    ACP = opt.get("acpf", 8192)
    def cpf(step, extra=0):
        d = dict(fine)
        if ACP:
            for k in range(5, 160, step): d.setdefault(k, []).append(code_pf())
            for n in range(extra): d.setdefault(176, []).extend(["s_add_u32 s100, s100, 2048", code_pf()])
        return d
    if ACP:
        e("s_lshr_b32 s100, s2, 3"); e("s_lshl_b32 s100, s100, 2"); e("s_add_u32 s100, s100, s%d" % sW)
        e("s_lshl_b32 s100, s100, 6"); e("s_add_u32 s100, s100, %d" % ACP)
    pipe.run(0, 18, {1: VAR + xc_copies(), 90: TW + [Dens(1)] + phi_frag_reads(0, FA, ("phf", 0)) + [Mark('pA')]}, lagok=True, pauses=[(0, opt.get('ap0', 0))], urgent=cpf(34))
    g.stamp()
    put(g, flag_lane_offsets(250, 28))
    if opt.get("fpre", 1): e(flag_load(13, 250, sCNT)); e(flag_load(13, 250, 46)); e(flag_load(13, 250, sCQ))
    flag_issue(g, 251, 250, None)
    if TOUCH: put(g, [touch(x) for x in AT[1]])
    head(0)
    g.stamp()
    pipe.run(18, 36, {2: [Dens(DB)] + post(0) + phi_frag_reads(1, FA, ("phf", 1)) + [Mark("postA")]}, lagok=False, urgent=cpf(26), pauses=[(0, APZ)])
    g.stamp()
    flag_check(g, 251, 250, None, 0)
    if TOUCH: put(g, [touch(x) for x in AT[2]])
    head(1)
    g.stamp()
    L1 = ["s_mul_i32 s96, s%d, 25" % sW, "v_add_u32 v28, s96, v0", "v_mul_u32_u24 v31, 3277, v28", "v_lshrrev_b32 v31, 16, v31",
          "v_mul_u32_u24 v29, 20, v31", "v_sub_u32 v29, v28, v29", "s_and_b32 s96, s%d, 1" % sR, "s_mul_i32 s96, s96, 5",
          "v_add_u32 v31, s96, v31", "v_cmp_gt_u32 vcc, 25, v0", "v_cmp_gt_u32 s[54:55], 9, v31",
          "v_cmp_gt_u32 s[56:57], 16, v29", "v_lshlrev_b32 v24, 8, v31", "v_lshlrev_b32 v25, 6, v31", "v_add_u32 v25, 2048, v25",
          "v_cndmask_b32 v24, v25, v24, s[56:57]", "v_lshl_add_u32 v24, v29, 4, v24",
          "v_mul_u32_u24 v25, 160, v31", "v_lshl_add_u32 v25, v29, 3, v25",
          "v_mov_b32 v28, 0x%x" % OOB, "v_cndmask_b32 v24, v28, v24, vcc", "v_cndmask_b32 v24, v28, v24, s[54:55]", "v_cndmask_b32 v12, v28, v25, vcc",
          "s_lshl_b32 s96, s%d, 3" % sS, "s_lshr_b32 s95, s%d, 1" % sR, "s_add_u32 s96, s96, s95",
          "s_mul_i32 s%d, s96, %d" % (sT, 16 * 2944), "s_add_u32 s%d, s%d, 0x%x" % (sT, sT, WS_KVP),
          "s_mul_i32 s95, s96, 1600", "s_add_u32 s95, s95, 0x%x" % WS_KVF]
    KVL = SCR; KZ = SCR + 13312
    KS = []
    def ks_setup(e=KS.append):
        e("s_lshl_b32 s96, s%d, 6" % sW)
        e("v_add_u32 v28, s96, v0")
        e("v_lshlrev_b32 v224, 4, v28")
        e("v_lshlrev_b32 v225, 3, v28")
        e("v_add_u32 v225, %d, v225" % KZ)
        e("v_mov_b32 v226, 0"); e("v_mov_b32 v227, 0")
        e("ds_write_b64 v225, v[226:227]")
        e("v_cmp_gt_u32 vcc, 32, v28")
        e("v_mov_b32 v230, 0x%x" % OOB)
        e("s_mov_b32 s%d, %d" % (sT2, KVL))
        e("v_cndmask_b32 v230, v230, v224, vcc")
        for k in range(4):
            d = 252 + k
            e("v_add_u32 v29, %d, v28" % (256 * k))
            e("v_mul_u32_u24 v31, 6554, v29")
            e("v_lshrrev_b32 v31, 16, v31")
            e("v_mul_u32_u24 v%d, 10, v31" % d)
            e("v_sub_u32 v%d, v29, v%d" % (d, d))
            e("v_mul_u32_u24 v%d, 160, v%d" % (d, d))
            e("v_lshl_add_u32 v%d, v31, 3, v%d" % (d, d))
            e("v_mul_u32_u24 v31, 6554, v31")
            e("v_lshrrev_b32 v31, 16, v31")
            e("v_mul_u32_u24 v31, 1520, v31")
            e("v_add3_u32 v%d, v%d, v31, s%d" % (d, d, sT2))
        e("v_add_u32 v29, 8192, v255")
        e("v_cndmask_b32 v255, v29, v255, vcc")
        e("s_mul_i32 s%d, s%d, 12800" % (sT2, sS))
        e("s_add_u32 s%d, s%d, 0x%x" % (sT2, sT2, WS_KVF))
        e("v_lshrrev_b32 v28, 2, v23")
        e("v_cmp_eq_u32 s[54:55], v28, v22")
        e("v_mul_u32_u24 v228, 1600, v22")
        e("v_and_b32 v28, 3, v23")
        e("v_mul_u32_u24 v28, 80, v28")
        e("v_add_u32 v228, v228, v28")
        e("v_add_u32 v228, %d, v228" % KVL)
        e("v_add_u32 v229, 6400, v228")
        e("v_mov_b32 v28, %d" % KZ)
        e("v_cndmask_b32 v228, v28, v228, s[54:55]")
        e("v_cndmask_b32 v229, v28, v229, s[54:55]")
    ks_setup()
    L1L = []
    for p in range(16):
        L1L.append(("buffer_load_dwordx4 %s, v24, s[%d:%d], s%d offen sc1" % (vr(160 + 4 * p, 4), SWS, SWS + 3, sT), ("l1", p)))
        if p < 15: L1L.append("s_add_u32 s%d, s%d, 2944" % (sT, sT))
    S = [lambda: g.wait_vm(("l1", 15))]
    for p in range(1, 16): S += ["v_add_f32 v%d, v%d, v%d" % (160 + i, 160 + i, 160 + 4 * p + i) for i in range(4)]
    S += ["v_cvt_pk_bf16_f32 v160, v160, v161", "v_cvt_pk_bf16_f32 v161, v162, v163",
          ("buffer_store_dwordx2 v[160:161], v12, s[%d:%d], s95 offen sc1" % (SWS, SWS + 3), "kvf")]
    INQ = opt.get('inq', 1)
    Lq = [Dens(DQ)] + post(1) + [Mark("postB"), Dens(2)] + L1 + [Dens(0), Delay(opt.get("d1", 12)),
          Hook(before=lambda: g.wait_vm("kvst"), after=lambda: signal(g, 28, 20, 63, 0)), Mark("sigA"), Dens(1)] + phi_frag_reads(0, FA, ("phf", 2))
    Lq += [Delay(opt.get("d2", 0)), lambda: flag_issue(g, 251, 250, sCNT), Mark("issA"), Delay(opt.get("d3", 20)), Hook(before=lambda: flag_check(g, 251, 250, sCNT, 0xffff)), Mark("chkA"), Dens(2)] + L1L + [Mark("l1")] + KS + ([Mark("ks")] + S + [Mark("sum")] if INQ else [])
    pipe.run(36, 54, {2: Lq}, lagok=False, urgent=cpf(12), pauses=[(0, opt.get("apq", 0))])
    if opt.get("verbose"): print(pipe.when)
    g.stamp()
    PQ = [[112, 124], [136, 148]]; PHQ = ACC; E = 164
    put(g, phi_frag_reads(1, 0, ("phf", 3)))
    def packq(rho):
        L = []
        for tt in range(2):
            L += ["v_mov_b32 v%d, 0" % (PQ[rho][tt] + i) for i in (10, 11)] + pack20(ACC + (rho * 2 + tt) * 20, PQ[rho][tt])
        return L
    put(g, packq(0))
    g.wait_lg(("phf", 2))
    blk = lambda rho: [ACC + (rho * 2) * 20, ACC + (rho * 2 + 1) * 20]
    weave(g, phi_mfma(PQ[0], blk(0), FA), packq(1) + [lambda: g.wait_lg(("phf", 3))])
    weave(g, phi_mfma(PQ[1], blk(1), 0), [] if INQ else S)
    SM = [(0, 0), (0, 1), (1, 0), (1, 1)]
    n1, n2, n3 = opt.get("pq", [0, 2, 3])
    for n, (rho, tt) in enumerate(SM + [(None, None)]):
        if n == n1:
            g.wait_vm("kvf"); e("s_barrier"); signal(g, 28, 20, 63, 512)
        if n == n2: flag_issue(g, 251, 250, 46)
        if n == n3:
            g.stamp()
            flag_check(g, 251, 250, 46, 0xffff)
            e("s_barrier")
            g.stamp()
            for k in range(4):
                e("buffer_load_dwordx4 %s, v%d, s[%d:%d], s%d offen sc1" % (vr(232 + 4 * k, 4), 224 if k < 3 else 230, SWS, SWS + 3, sT2), ("kvl", k))
                if k < 3: e("s_add_u32 s%d, s%d, 4096" % (sT2, sT2))
        if rho is not None: put(g, softmax(blk(rho)[tt], blk(rho)[tt], tt, E))
    for k in range(4):
        g.wait_vm(("kvl", k))
        e("ds_write_b64 v%d, %s" % (252 + k, vr(232 + 4 * k, 2)))
        e("ds_write_b64 v%d, %s offset:80" % (252 + k, vr(234 + 4 * k, 2)))
    e("s_waitcnt lgkmcnt(0)")
    e("s_barrier")
    g.stamp()
    def kva(rho, to, ks):
        i = rho * 25 + to * 5 + ks
        return 4 * i if i < 36 else 176 + 4 * (i - 36)
    NUM = 112
    grp = [(rho, to) for rho in range(2) for to in range(5)]
    def kreads(k):
        rho, to = grp[k]
        return [("ds_read_b128 %s, v%d offset:%d" % (ar(kva(rho, to, ks), 4), 228 + rho, to * 320 + ks * 16), ("kva", k)) for ks in range(5)]
    def ocalc(rho):
        L = []
        for tt in range(2):
            s = NUM + (rho * 2 + tt) * 20; o = OB + 20 * tt + 10 * rho
            L += ["v_cndmask_b32 v24, v%d, v%d, s[%d:%d]" % (s + 18, s, sODD, sODD + 1), "v_add_f32 v24, 0x358637bd, v24", "v_rcp_f32 v24, v24", "s_nop 0",
                  "v_mul_f32 v24, v24, v%d" % (26 + tt)]
            if rho: L += ["v_pk_mul_f32 %s, %s, v[24:25] op_sel_hi:[1,0]" % (vr(s + i, 2), vr(s + i, 2)) for i in range(0, 20, 2)]
            else: L += ["v_mul_f32 v%d, v%d, v24" % (s + i, s + i) for i in range(20)]
            L += pack20(s, o)
            L += ["v_cndmask_b32 v%d, v%d, 0, s[%d:%d]" % (o, o, sODD, sODD + 1), "v_cndmask_b32 v%d, 0, v%d, s[%d:%d]" % (o + 9, o + 9, sODD, sODD + 1)]
        return L
    put(g, kreads(0) + kreads(1))
    for tt in range(2): e("v_accvgpr_read_b32 v%d, a%d" % (26 + tt, 240 + tt))
    oc = ocalc(0)
    for k, (rho, to) in enumerate(grp):
        g.wait_lg(("kva", k))
        ms = [mfma(vr(NUM + (rho * 2 + tt) * 20 + 4 * to, 4), ar(kva(rho, to, ks), 4), vr(PHQ + (rho * 2 + tt) * 20 + 4 * ks, 4), "0" if ks == 0 else None)
              for ks in range(5) for tt in range(2)]
        fill = kreads(k + 2) if k + 2 < 10 else []
        if k >= 6:
            n = 20 - len(fill) - 1; fill = fill + oc[:n]; oc = oc[n:]
        weave(g, ms, fill)
    put(g, oc)
    e("s_nop 7")
    put(g, ocalc(1))
    g.stamp()
    for tt in range(2): e("v_rcp_f32 v%d, v%d" % (26 + tt, 26 + tt))
    e("s_lshl_b32 s%d, s%d, 2" % (sT, sR))
    e("s_add_u32 s%d, s%d, s%d" % (sT, sT, sS))
    e("s_lshl_b32 s%d, s%d, 2" % (sT, sT))
    e("s_add_u32 s%d, s%d, s%d" % (sT, sT, sW))
    e("s_lshl_b32 s%d, s%d, 7" % (sT, sT))
    e("s_add_u32 s%d, s%d, 0x%x" % (sT, sT, WS_RS2))
    e("v_cmp_gt_u32 vcc, 16, v0")
    e("v_lshlrev_b32 v28, 2, v0")
    e("v_mov_b32 v29, 0x%x" % OOB)
    e("v_cndmask_b32 v28, v29, v28, vcc")
    for tt in range(2): e("buffer_store_dword v%d, v28, s[%d:%d], s%d offen offset:%d sc1" % (26 + tt, SWS, SWS + 3, sT, 64 * tt))
    for u in range(5):
        if u % 2 == 0: e("s_add_u32 s%d, s%d, %d" % (sT, sOXB, u * 2048))
        for tt in range(2):
            e("buffer_store_dwordx4 %s, v%d, s[%d:%d], s%d offen offset:%d sc1" % (vr(OB + 20 * tt + 4 * u, 4), VST, SWS, SWS + 3, sT, ((u & 1) * 2 + tt) * 1024))
    e("s_waitcnt vmcnt(0)")
    e("s_barrier")
    signal(g, 28, 20, sCQ, 48)
    g.stamp()
```

```python
import sys, re, json
from asmlib import *
import hazard
BASE = "parallel_sum__linear_kernel_hedgehog__glu_gated_reglu__prompt"
K1 = BASE + "_kernel"
K2 = "reduce_kernel"

PSZ = 2048 * 576 * 2
WS_HX = 0x1000000
WS_OX = 0x2200000
WS_RS2 = 0x2500000
WS_KVP = 0x2510000
WS_KVF = 0x2700000
WS_FLG = 0x2780000
WS_TS = 0x2800000
WS_BYTES = 0x10000000
SX, SW1, SW2, SWS, SDBG, SPHI = 8, 12, 16, 20, 24, 28
sW, sR, sS, sT, sOFF, sM0W, sB1, sB2, sST, sT2 = 32, 33, 34, 35, 36, 37, 38, 39, 40, 41
sCNT = 52
OOB = 0x40000000
RING = 144
NB = 8

class G(Asm):
    def __init__(self, opt):
        super().__init__()
        self.opt = opt
        self.vm = []
        self.lg = []
        self.nts = 0
        self.sv = 30
    def e(self, s, tag=None):
        if s.startswith(("buffer_", "global_")): self.vm.append(tag)
        if s.startswith("ds_"): self.lg.append(tag)
        super().e(s)
    def vm_n(self, tag):
        idx = [i for i, t in enumerate(self.vm) if t == tag]
        assert idx, tag
        return len(self.vm) - 1 - idx[-1]
    def wait_vm(self, tag):
        n = min(self.vm_n(tag), 63)
        self.e("s_waitcnt vmcnt(%d)" % n)
    def wait_lg(self, tag):
        idx = [i for i, t in enumerate(self.lg) if t == tag]
        n = min(len(self.lg) - 1 - idx[-1], 15)
        self.e("s_waitcnt lgkmcnt(%d)" % n)
    def stamp(self):
        e = self.e
        if self.opt.get("amp") is not None:
            if self.nts in (0, self.opt["amp"]):
                e("s_memrealtime s[92:93]"); e("s_waitcnt lgkmcnt(0)")
                e("s_mov_b32 s%d, s92" % (100 if self.nts == 0 else 101))
            self.nts += 1
            return
        if not self.opt.get("ts"): return
        e("s_memtime s[90:91]"); e("s_memrealtime s[92:93]")
        e("s_waitcnt lgkmcnt(0)")
        if self.opt.get("dbgts") is not None:
            sel = self.opt.get("dbgsel", list(range(15)))
            if self.nts in sel:
                e("v_mov_b32 v30, s92")
                e("buffer_store_dword v30, off, s[%d:%d], s94 offset:%d" % (SDBG, SDBG + 3, 4 + 4 * sel.index(self.nts)))
            self.nts += 1
            return
        for k, sg in enumerate((90, 92)):
            e("v_mov_b32 v%d, s%d" % (self.sv, sg))
            e(("buffer_store_dword v%d, off" % self.sv) + ", s[%d:%d], s94 offset:%d" % (SWS, SWS + 3, 8 * self.nts + 4 * k))
        self.nts += 1

def mfma(d, a, b, c=None):
    return "v_mfma_f32_16x16x32_bf16 %s, %s, %s, %s" % (d, a, b, d if c is None else c)

class Stage:
    def __init__(self, lo, hi, pre, dmas, frags, gate=None):
        dmas = [d if isinstance(d, list) else [d] for d in dmas]
        dmas[0] = list(pre) + dmas[0]
        self.lo, self.hi, self.dmas, self.frags, self.gate = lo, hi, dmas, frags, gate
        self.before = None; self.after = None

class Pipe:
    def __init__(self, g, stages, D=6, BE=1):
        self.g, self.st, self.D, self.BE = g, stages, D, BE
        self.next = 0
        self.safe = -1
        self.q = []
        self.open = set()
        self.fi = 0
        self.done = -1
        self.qthr = g.opt.get("qthr", 3)
        self.when = {}
    def can(self, m):
        s = self.st[m]
        if s.gate is not None and s.gate not in self.open: return False
        return all(k <= self.safe for k in range(m) if self.st[k].lo < s.hi and s.lo < self.st[k].hi)
    def refill(self):
        while self.next < len(self.st) and self.can(self.next):
            for d in self.st[self.next].dmas: self.q.append([list(d), ("st", self.next)])
            self.next += 1
    def pop(self):
        if not self.q: return []
        t, tag = self.q.pop(0)
        return [(x, tag) for x in t]
    def flush(self):
        while self.q:
            for t, tag in self.pop(): self.g.e(t, tag)
    def enter(self, n, last, hook=None):
        g = self.g
        late = 0
        while any(tag[1] <= last for _, tag in self.q):
            late += 1
            for t, tg in self.pop(): g.e(t, tg)
        if late and n > 2: print("warning: %d DMA issued late for stage %d" % (late, n))
        assert self.next > last, (n, last)
        for k in range(n, last + 1):
            if self.st[k].before: self.st[k].before()
        if hook and hook.before: hook.before()
        g.wait_vm(("st", last)); g.e("s_barrier")
        if hook and hook.after: hook.after()
        for k in range(n, last + 1):
            if self.st[k].after: self.st[k].after()
        self.safe = max(self.safe, self.done)
        self.refill()
    def run(self, s0, s1, extra=None, pauses=(), groups=None, urgent=None, lagok=True):
        g, D = self.g, self.D
        WP = g.opt.get("wp", 4)
        pend = []; urg = []; urgent = urgent or {}; cur = [0]; dens = [0]
        extra = extra or {}
        fl = [(n, k, f) for n in range(s0, s1) for k, f in enumerate(self.st[n].frags)]
        if groups is None: groups = list(range(s0, s1, self.BE))
        gend = {a: (groups[i + 1] if i + 1 < len(groups) else s1) - 1 for i, a in enumerate(groups)}
        base = self.fi
        needbar = lambda j: j < len(fl) and fl[j][1] == 0 and fl[j][0] in gend
        def reads(j):
            buf = RING + 4 * ((base + j) % NB)
            for t in fl[j][2][0](buf): g.e(t, ("fr", base + j))
        def wl(i):
            w = min(i + WP - 1, len(fl) - 1)
            g.wait_lg(("fr", base + w))
            self.done = max(self.done, fl[w][0] if fl[w][1] == len(self.st[fl[w][0]].frags) - 1 else fl[w][0] - 1)
        def cost(it):
            if isinstance(it, (Mark, Dens)): return 0
            if isinstance(it, Hook): return 99
            if isinstance(it, Delay):
                if it.until is None: it.until = cur[0] + it.n
                return 0 if cur[0] >= it.until else 99
            if callable(it): return getattr(it, "cost", 2)
            if isinstance(it, list): return min(len(it), 2)
            t = it[0] if isinstance(it, tuple) else it
            return 2 if t.startswith(("buffer_", "global_", "v_mfma", "v_exp", "v_rcp")) else 1
        def emit(it, i):
            if isinstance(it, Mark): self.when[it.name] = i
            elif isinstance(it, Dens): dens[0] = it.n
            elif isinstance(it, Delay):
                if i >= len(fl): g.e("s_nop 7")
            elif isinstance(it, Hook):
                if it.before: it.before()
                g.e("s_barrier")
                if it.after: it.after()
            elif callable(it): it()
            elif isinstance(it, list):
                for x in it: g.e(x)
            elif isinstance(it, tuple): g.e(it[0], it[1])
            else: g.e(it)
        for j in range(min(D, len(fl))):
            if needbar(j): self.enter(fl[j][0], gend[fl[j][0]])
            reads(j)
        if needbar(D): self.enter(fl[D][0], gend[fl[D][0]])
        wl(0)
        since = 9
        for i, (n, k, f) in enumerate(fl):
            ms = f[1](RING + 4 * ((base + i) % NB))
            g.e(ms[0])
            if i + D < len(fl): reads(i + D)
            g.e(ms[1])
            pend += [(i, x) for x in extra.get(i, [])]; urg += urgent.get(i, [])
            since += 1; cur[0] = i
            wdue = (i + 1) % WP == 0 and i + 1 < len(fl)
            if needbar(i + 1 + D):
                if wdue: wl(i + 1)
                hook = pend.pop(0)[1] if pend and isinstance(pend[0][1], Hook) else None
                self.enter(fl[i + 1 + D][0], gend[fl[i + 1 + D][0]], hook)
                continue
            paused = any(a <= i < b for a, b in pauses)
            if urg and not wdue:
                slots = 2
                while urg and cost(urg[0]) <= slots:
                    it = urg.pop(0); slots -= cost(it); emit(it, i)
                continue
            used = False
            if self.q and len(self.q[0][0]) > 1:
                if wdue: wl(i + 1)
                while len(self.q[0][0]) > 1: g.e(self.q[0][0].pop(0))
                used = True
            elif self.q and not wdue and not paused and since >= (2 if len(self.q) > self.qthr and not any(b <= i < b + g.opt.get("slow", 0) for a, b in pauses if b > a) else self.g.opt.get("dcad", 3)):
                it = self.q.pop(0); g.e(it[0][0], it[1]); since = 0
                used = True
            if used and not dens[0]: continue
            slots = 0 if used else 2
            if wdue and not used: wl(i + 1); slots = 1
            if dens[0]: slots += dens[0]
            elif lagok and pend and i - pend[0][0] > g.opt.get("lag", 30): slots += 1
            while pend and cost(pend[0][1]) <= slots:
                it = pend.pop(0)[1]; slots -= cost(it); emit(it, i)
        for it in urg + [x[1] for x in pend]: emit(it, len(fl))
        self.fi = base + len(fl)
    def drained(self, upto):
        self.safe = max(self.safe, upto); self.refill()

class Mark:
    def __init__(self, name): self.name = name
class Hook:
    def __init__(self, before=None, after=None): self.before, self.after = before, after
class Delay:
    def __init__(self, n): self.n = n; self.until = None
class Dens:
    def __init__(self, n): self.n = n

def group_scc(ops):
    out = []
    for op in ops:
        if isinstance(op, str) and op.startswith("s_cselect"): out[-1] = [out[-1], op]
        else: out.append(op)
    return out

def spread(ops, lo, hi, extra):
    ops = group_scc(ops); n = hi - lo
    for k, op in enumerate(ops):
        extra.setdefault(lo + k * n // len(ops), []).append(op)

def lane_consts(g):
    e = g.e
    e("v_lshrrev_b32 v22, 4, v0")
    e("v_and_b32 v23, 15, v0")

def x_setup(g):
    e = g.e
    e("v_lshrrev_b32 v104, 3, v0")
    e("v_mul_u32_u24 v104, 1152, v104")
    e("v_and_b32 v105, 7, v0")
    e("v_xor_b32 v105, v105, v22")
    e("v_lshl_add_u32 v104, v105, 4, v104")
    e("s_lshl_b32 s4, s%d, 2" % sR)
    e("s_add_u32 s4, s4, s%d" % sW)
    e("s_mul_i32 s4, s4, 36864")
    e("s_mul_i32 s5, s%d, 36864" % sW)
    e("s_lshr_b32 s60, s2, 6")
    e("s_and_b32 s6, s2, 64")
    e("v_xor_b32 v104, s6, v104")
    e("v_xor_b32 v105, 64, v104")

def x_dma(g, o, j):
    e = g.e
    if j == 0:
        e("s_add_u32 s6, s60, %d" % o)
        e("s_and_b32 s6, s6, 3")
        e("s_mulk_i32 s6, 9216")
        e("s_add_u32 m0, s5, s6")
        e("s_add_u32 s7, s4, s6")
    else:
        e("s_addk_i32 m0, 1024")
        e("s_addk_i32 s7, 128")
    e("buffer_load_dwordx4 v%d, s[%d:%d], s7 offen %s lds" % (104 + (o & 1), SX, SX + 3, g.opt.get("xflags", "")), ("x", j))

def prologue(g, pipe, XV=112, early=None, afterbar=None, fill=(), var=False, nfirst=8, mid=None, postc=None):
    e, opt = g.e, g.opt
    xf = opt.get("xflags", "")
    NC = opt.get("xcommon", 1)
    nf = 9 * (4 - NC)
    for o in range(NC, 4):
        for j in range(9):
            x_dma(g, o, j)
            k = (o - NC) * 9 + j
            if mid and o * 9 + j == mid[0]: mid[1]()
            for it in fill[k * len(fill) // nf:(k + 1) * len(fill) // nf]:
                for x in (it if isinstance(it, list) else [it]): e(x, "fill")
    if early: early()
    e("v_lshrrev_b32 v106, 3, v23")
    e("v_mul_u32_u24 v106, 9216, v106")
    e("v_and_b32 v107, 7, v23")
    e("v_lshl_add_u32 v106, v107, 7, v106")
    e("v_lshrrev_b32 v107, 1, v23")
    e("v_xor_b32 v107, v107, v22")
    e("v_lshl_add_u32 v106, v107, 4, v106")
    e("v_add_u32 v106, s5, v106")
    e("v_xor_b32 v107, 64, v106")
    for i in range(4): e("v_mov_b32 v%d, 0x3f803f80" % (80 + i))
    for i in (72, 73, 76, 77): e("v_mov_b32 v%d, 0" % i)
    e("v_lshrrev_b32 v108, 2, v23")
    e("v_cmp_eq_u32 vcc, v108, v22")
    e("v_and_b32 v108, 1, v23")
    e("v_lshlrev_b32 v108, 4, v108")
    e("v_mov_b32 v78, 0x3f80")
    e("v_lshlrev_b32 v78, v108, v78")
    e("v_cndmask_b32 v78, 0, v78, vcc")
    e("v_and_b32 v108, 2, v23")
    e("v_cmp_eq_u32 vcc, 0, v108")
    e("s_nop 1")
    e("v_cndmask_b32 v74, 0, v78, vcc")
    e("v_cndmask_b32 v75, v78, 0, vcc") if False else None
    e("v_sub_u32 v75, v78, v74")
    X = lambda tt, ks: XV + (ks * 2 + tt) * 4
    g.stamp()
    for j in range(10):
        if j < 9:
            g.wait_vm(("x", j))
            for ks in (2 * j, 2 * j + 1):
                for tt in range(2):
                    e("ds_read_b128 %s, v%d offset:%d" % (vr(X(tt, ks), 4), 106 + (ks & 1), tt * 18432 + j * 1024), ("xr", j))
        if j > 0:
            g.wait_lg(("xr", j - 1))
            for ks in (2 * j - 2, 2 * j - 1):
                for tt in range(2):
                    e(mfma(vr(64 + 4 * tt, 4), vr(80, 4), vr(X(tt, ks), 4), "0" if ks == 0 else None))
    e("s_barrier")
    g.stamp()
    pipe.open.add("x"); pipe.refill()
    for _ in range(nfirst):
        for t, tag in pipe.pop(): e(t, tag)
    if afterbar: afterbar()
    e("s_nop 3")
    e("s_mov_b32 s%d, 0x%08x" % (sT, 0xbae38e39))
    for i in range(8): e("v_mul_f32 v%d, s%d, v%d" % (64 + i, sT, 64 + i))
    e("s_nop 1")
    for _ in range(opt.get("delay", 0)): e("s_sleep 32")
    fr = [(tt, ks) for ks in range(18) for tt in range(2)]
    LAG = 2
    for k in range(len(fr) + LAG + 1):
        cv = []
        if LAG <= k < len(fr) + LAG:
            tt, ks = fr[k - LAG]; d = 32 + 8 * ((k - LAG) % 4); x = X(tt, ks)
            cv = ["v_cvt_pk_bf16_f32 v%d, v%d, v%d" % (x + i, d + 2 * i, d + 2 * i + 1) for i in range(4)]
        if k < len(fr):
            tt, ks = fr[k]; d = 32 + 8 * (k % 4)
            e(mfma(vr(d, 4), vr(74, 4), vr(X(tt, ks), 4), vr(64 + 4 * tt, 4)))
            if k == LAG: e("s_nop 3")
            for t in cv[:2]: e(t)
            e(mfma(vr(d + 4, 4), vr(72, 4), vr(X(tt, ks), 4), vr(64 + 4 * tt, 4)))
            for t in cv[2:]: e(t)
        else:
            e("s_nop 3")
            for t in cv: e(t)
        if var and k > LAG:
            tt, ks = fr[k - LAG - 1]; x = X(tt, ks)
            e(mfma(vr(96 + 4 * tt, 4), vr(x, 4), vr(x, 4), "0" if ks == 0 else None))
    if postc: postc()
    g.stamp()

def XV0(tt, ks): return vr(112 + (ks * 2 + tt) * 4, 4)
def xc_copies(): return ["v_accvgpr_write_b32 a%d, v%d" % (i, 112 + i) for i in range(144)]
def XC(tt, ks): return ar((ks * 2 + tt) * 4, 4)

def tr_bases(g, dst, rowmul):
    e = g.e
    out = []
    out.append("v_bfe_u32 v28, v0, 2, 2")
    out.append("v_mad_u32_u24 v28, v22, %d, v28" % rowmul)
    out.append("v_lshlrev_b32 v%d, 7, v28" % dst)
    out.append("v_bfe_u32 v28, v0, 3, 2")
    out.append("v_lshl_add_u32 v%d, v28, 5, v%d" % (dst, dst))
    out.append("v_and_b32 v28, 3, v0")
    out.append("v_lshl_add_u32 v%d, v28, 3, v%d" % (dst, dst))
    for t in range(1, 4): out.append("v_xor_b32 v%d, %d, v%d" % (dst + t, 32 * t, dst))
    for grp in (1, 2):
        for t in range(4): out.append("v_add_u32 v%d, 0x%x, v%d" % (dst + 4 * grp + t, grp << 16, dst + t))
    return out

def tr_reads(bases, t, off, second):
    def f(buf):
        o2 = off + second
        assert (off >> 16) == (o2 >> 16)
        b = bases + 4 * (off >> 16) + t
        return ["ds_read_b64_tr_b16 %s, v%d offset:%d" % (ar(buf, 2), b, off & 0xffff),
                "ds_read_b64_tr_b16 %s, v%d offset:%d" % (ar(buf + 2, 2), b, o2 & 0xffff)]
    return f

def store_ops(g, acc, P, c, voff, sbase=None, ntile=4, tag=None):
    ops = ["s_add_u32 s%d, s%d, %d" % (sT2, sST if sbase is None else sbase, c * 4096)]
    for tt in range(2):
        for hf in range(ntile // 2):
            p = P + ((tt * (ntile // 2) + hf) % 2) * 4
            for k in range(2):
                s = acc + ((2 * hf + k) * 2 + tt) * 4
                ops.append("v_cvt_pk_bf16_f32 v%d, v%d, v%d" % (p + 2 * k, s, s + 1))
                ops.append("v_cvt_pk_bf16_f32 v%d, v%d, v%d" % (p + 2 * k + 1, s + 2, s + 3))
            ops.append(("buffer_store_dwordx4 %s, v%d, s[%d:%d], s%d offen offset:%d sc1" % (vr(p, 4), voff, SWS, SWS + 3, sT2, (tt * 2 + hf) * 1024), tag))
    return ops

sNON = 97
def flag_load(vreg, vfl, sline):
    if sline is None: return "buffer_load_dword v%d, v%d, s[%d:%d], 0 offen sc1" % (vreg, vfl, SDBG, SDBG + 3)
    return "buffer_load_dword v%d, v%d, s[%d:%d], s%d offen sc1" % (vreg, vfl, SWS, SWS + 3, sline)

def flag_issue(g, vreg, vfl, sline):
    g.e(flag_load(vreg, vfl, sline), "flag")

def flag_check(g, vreg, vfl, sline, mask, issued=True, sleep=4):
    if g.opt.get("nofl") and sline is not None: return
    e = g.e
    L = g.newlabel("L_poll"); Ld = g.newlabel("L_polld"); Lc = g.newlabel("L_pollc")
    e("s_cmp_lg_u32 s%d, 0" % sW)
    e("s_cbranch_scc1 %s" % Ld)
    e("s_mov_b32 s89, 0x20000")
    if issued:
        g.wait_vm("flag")
        e("s_branch %s" % Lc)
    g.label(L)
    Asm.e(g, flag_load(vreg, vfl, sline))
    e("s_waitcnt vmcnt(0)")
    g.label(Lc)
    if sline is None:
        e("v_readfirstlane_b32 s%d, v%d" % (sNON, vreg))
        e("s_sub_u32 s89, s89, 1")
        e("s_cmp_lg_u32 s%d, 0" % sNON)
    else:
        e("v_cmp_eq_u32 s[98:99], s%d, v%d" % (sNON, vreg))
        e("s_sub_u32 s89, s89, 1")
        m = mask if isinstance(mask, str) else "0x%x" % mask
        e("s_and_b32 s98, s98, %s" % m)
        e("s_cmp_eq_u32 s98, %s" % m)
    e("s_cbranch_scc1 %s" % Ld)
    e("s_sleep %d" % sleep)
    e("s_cmp_lg_u32 s89, 0")
    e("s_cbranch_scc1 %s" % L)
    g.label(Ld)

def flag_lane_offsets(vfl, vtmp):
    return ["s_lshl_b32 s96, s%d, 6" % sW, "v_add_u32 v%d, s96, v0" % vtmp, "v_cmp_gt_u32 vcc, 16, v%d" % vtmp, "v_lshlrev_b32 v%d, 2, v0" % vfl,
            "v_mov_b32 v%d, 0x%x" % (vtmp, OOB), "v_cndmask_b32 v%d, v%d, v%d, vcc" % (vfl, vtmp, vfl)]

def code_pf():
    return ["s_getpc_b64 s[90:91]", "s_load_dword s92, s[90:91], s100"]

def signal(g, vtmp, voff, sword, imm=0):
    g.e("v_mov_b32 v%d, s%d" % (vtmp, sNON))
    g.e("buffer_store_dword v%d, v%d, s[%d:%d], s%d offen offset:%d sc1" % (vtmp, voff, SWS, SWS + 3, sword, imm))

def ffn_role(g):
    e, opt = g.e, g.opt
    wf = opt.get("wflags", "")
    ACC = [32, 96]; H = 160; B1 = 9; PK = 128; VST = 21; BH = 144
    sI, sJ = 42, 43; sKB = 44; sHX = 47; sKO = 53; sKS = 56; sKK = 86; sM0H = 50; sSO = 51; sSS = 59; sWO = 78; sOX = 83; sM0B = 84; sWT = 85
    e("s_sub_u32 s%d, s3, 1" % sI)
    e("s_mov_b32 s%d, s%d" % (sJ, sS))
    e("s_mul_i32 s%d, s%d, 3" % (sS, sJ))
    e("s_add_u32 s%d, s%d, s%d" % (sS, sS, sI))
    e("s_cmp_ge_u32 s%d, 2" % sW)
    e("s_cselect_b32 s%d, s74, s72" % sT)
    e("s_cselect_b32 s%d, s75, s73" % sT2)
    srd(g, SW1, sT, sT2, 576 * 4608 * 2)
    e("s_lshl_b32 s%d, s%d, 12" % (sM0W, sW))
    e("s_mul_i32 s%d, s%d, 768" % (sB1, sS))
    def late_setup():
        o = []; sT = 95
        a = Asm(); srd(a, SW2, 76, 77, 4608 * 576 * 2); srd(a, SPHI, 70, 71, 576 * 576 * 2); a.e('s_mov_b32 s61, s78'); a.e('s_mov_b32 s62, s79')
        o += [l.strip() for l in a.lines]
        o += ["s_lshl_b32 s98, s%d, 6" % sJ, "s_and_b32 s99, s98, 128", "s_xor_b32 s99, s99, 128"]
        for b in range(3):
            o += ["s_add_u32 s%d, s%d, %d" % (sT, sI, b), "s_cmp_ge_u32 s%d, 3" % sT, "s_cselect_b32 s96, 3, 0", "s_sub_u32 s%d, s%d, s96" % (sT, sT),
                  "s_mul_i32 s96, s%d, 3" % sJ, "s_add_u32 s%d, s%d, s96" % (sT, sT),
                  "s_mul_i32 s%d, s%d, %d" % (sKB + b, sT, 384 * 1152), "s_mul_i32 s96, s%d, 384" % sI, "s_add_u32 s%d, s%d, s96" % (sKB + b, sKB + b),
                  "s_add_u32 s%d, s%d, s99" % (sKO + b, sKB + b), "s_add_u32 s%d, s%d, s98" % (sKK + b, sKB + b), "s_xor_b32 s%d, s%d, 64" % (sKS + b, sKK + b),
                  "s_mul_i32 s96, s%d, 12" % sR, "s_add_u32 s%d, s%d, s96" % (sT, sT), "s_lshl_b32 s%d, s%d, 2" % (sT, sT), "s_add_u32 s%d, s%d, s%d" % (sT, sT, sW),
                  "s_mul_i32 s%d, s%d, 24576" % (sHX + b, sT), "s_add_u32 s%d, s%d, 0x%x" % (sHX + b, sHX + b, WS_HX)]
        o += ["s_lshl_b32 s%d, s%d, 2" % (sT, sR), "s_add_u32 s%d, s%d, s%d" % (sT, sT, sJ), "s_lshl_b32 s%d, s%d, 7" % (sCNT, sT), "s_add_u32 s%d, s%d, 0x%x" % (sCNT, sCNT, WS_FLG),
              "s_lshl_b32 s63, s%d, 2" % sI, "s_add_u32 s63, s63, s%d" % sCNT]
        o += ["s_mul_i32 s%d, s%d, %d" % (sST, sJ, PSZ), "s_mul_i32 s%d, s%d, 12288" % (sB2, sI), "s_add_u32 s%d, s%d, s4" % (sB2, sB2),
              "s_add_u32 s%d, s%d, s%d" % (sST, sST, sB2), "s_lshl_b32 s%d, s%d, 11" % (sM0H, sW),
              "s_lshl_b32 s96, s99, 5", "s_add_u32 s%d, s%d, s96" % (sSO, sST),
              "s_xor_b32 s96, s96, 4096", "s_add_u32 s%d, s%d, s96" % (sSS, sST), "s_and_b32 s96, s98, 64", "s_xor_b32 s96, s96, 64",
              "s_lshl_b32 s96, s96, 4", "s_add_u32 s%d, s%d, s96" % (sSS, sSS)]
        o += ["s_lshl_b32 s95, s%d, 2" % sR, "s_add_u32 s95, s95, s%d" % sJ, "s_lshl_b32 s95, s95, 2", "s_add_u32 s95, s95, s%d" % sW,
              "s_mul_i32 s%d, s95, 10240" % sOX, "s_add_u32 s%d, s%d, 0x%x" % (sOX, sOX, WS_OX),
              "s_mul_i32 s%d, s%d, %d" % (sWT, sJ, 144 * 1152), "s_mul_i32 s96, s%d, 384" % sI, "s_add_u32 s%d, s%d, s96" % (sWT, sWT), "s_lshl_b32 s%d, s%d, 10" % (sM0B, sW)]
        for i in range(5):
            d = sWO + i
            o += (["s_lshl_b32 s95, s%d, 2" % sW, "s_add_u32 s95, s95, %d" % i] if i < 4 else ["s_add_u32 s95, s%d, 16" % sW])
            o += ["s_lshr_b32 s96, s95, 1", "s_lshl_b32 s%d, s96, 2" % d, "s_cmp_ge_u32 s96, 5", "s_cselect_b32 s96, 52, 0",
                  "s_add_u32 s%d, s%d, s96" % (d, d), "s_and_b32 s95, s95, 1", "s_mul_i32 s95, s95, 36",
                  "s_add_u32 s%d, s%d, s95" % (d, d), "s_mul_i32 s%d, s%d, 1152" % (d, d), "s_add_u32 s%d, s%d, s%d" % (d, d, sWT)]
        return o
    stages = []; start = [0]
    def slot(n): return ((n + 9) % 10) * 16384
    def push(st): stages.append(st); start.append(start[-1] + len(st.frags))
    for rho in range(6):
        acc = ACC[rho & 1]
        for st in range(9):
            n = len(stages); lo = slot(n)
            pre = ["s_add_u32 m0, s%d, %d" % (sM0W, lo), "s_add_u32 s%d, s%d, %d" % (sOFF, sB1, st * 64 * 9216 + rho * 128)]
            dmas = ["buffer_load_dwordx4 v%d, s[%d:%d], s%d offen offset:%d %s lds" % (1 + i, SW1, SW1 + 3, sOFF, i * 1024, wf) for i in range(4)]
            frags = []
            for kk in range(2):
                ks = 2 * st + kk
                for t in range(4):
                    for mat in range(2):
                        def mf(buf, ks=ks, t=t, mat=mat, acc=acc, XC=(XC if rho else XV0)):
                            order = (0, 1) if mat == 0 else (1, 0)
                            return [mfma(vr(acc + ((t * 2 + mat) * 2 + tt) * 4, 4), ar(buf, 4), XC(tt, ks), "0" if ks == 0 else None) for tt in order]
                        frags.append((tr_reads(B1, t, lo + mat * 8192 + kk * 4096, 512), mf))
            push(Stage(lo, lo + 16384, pre, dmas, frags, None if n == 0 else "x"))
    def hreg(b, u, tt):
        k = (u * 2 + tt) * 4
        if b == 0: return vr(H + k, 4)
        if b == 2: return ar(k, 4)
        if b == 1: return ar(176 + k, 4) if u < 8 else ar(96 + k - 64, 4)
        if u < 2: return ar(128 + k, 4)
        if u < 4: return ar(240 + k - 16, 4)
        return vr(136 + k - 32, 4)
    A2, AO, AS, AK = 32, 64, 96, 112
    def mk(acc, b, u, t, z):
        def mf(buf):
            order = (0, 1) if t % 2 == 0 else (1, 0)
            return [mfma(vr(acc + (t * 2 + tt) * 4, 4), ar(buf, 4), hreg(b, u, tt), "0" if z else None) for tt in order]
        return mf
    def full(b, q, acc):
        lo = slot(len(stages))
        sb, add = (sKB + b, 256) if acc == A2 else (sKO + b, 0)
        pre = ["s_add_u32 m0, s%d, %d" % (sM0W, lo), "s_add_u32 s%d, s%d, %d" % (sOFF, sb, q * 128 * 1152 + add)]
        dmas = ["buffer_load_dwordx4 v%d, s[%d:%d], s%d offen offset:%d %s lds" % (5 + i, SW2, SW2 + 3, sOFF, i * 1024, wf) for i in range(4)]
        frags = [(tr_reads(B1, t, lo + kk * 4096, 2048), mk(acc, b, 4 * q + kk, t, (b, q, kk) == (0, 0, 0))) for kk in range(4) for t in range(4)]
        push(Stage(lo, lo + 16384, pre, dmas, frags, "x"))
    def half(bqs, acc):
        lo = slot(len(stages)); dmas = []; frags = []
        for k, (b, q) in enumerate(bqs):
            p = lo + 8192 * k
            ld = ["buffer_load_dwordx4 v%d, s[%d:%d], s%d offen offset:%d %s lds" % ((25, 22)[i], SW2, SW2 + 3, sOFF, i * 1024, wf) for i in range(2)]
            dmas += [["s_add_u32 m0, s%d, %d" % (sM0H, p), "s_add_u32 s%d, s%d, %d" % (sOFF, (sKS if acc == AS else sKK) + b, q * 128 * 1152), ld[0]], [ld[1]]]
            for kk in range(4):
                for t in range(2):
                    off = p + kk * 2048
                    def rd(buf, off=off, t=t):
                        v = BH + 2 * (off >> 16) + t
                        return ["ds_read_b64_tr_b16 %s, v%d offset:%d" % (ar(buf, 2), v, off & 0xffff), "ds_read_b64_tr_b16 %s, v%d offset:%d" % (ar(buf + 2, 2), v, (off & 0xffff) + 1024)]
                    frags.append((rd, mk(acc, b, 4 * q + kk, t, acc == AS and (b, q, kk) == (0, 0, 0))))
        push(Stage(lo, lo + 16384, [], dmas, frags, "x"))
    def wo(us, acc):
        lo = slot(len(stages)); v = {A2: 1, AO: 2, AS: 3}[acc]
        sel = [(sM0W, lo + i * 1024, sWO + i) for i in range(4)] if len(us) == 4 else [(sM0B, lo, sWO + 4)]
        dmas = [["s_add_u32 m0, s%d, %d" % (m, o), "s_nop 0", "buffer_load_dwordx4 v%d, s[%d:%d], s%d offen %s lds" % (v, SPHI, SPHI + 3, so, wf)] for m, o, so in sel]
        frags = [(tr_reads(B1, t, lo + kk * 4096, 2048), mk(acc, 3, u, t, acc == AS and u == 0 and t >= 2)) for kk, u in enumerate(us) for t in range(4)]
        push(Stage(lo, lo + 16384, [], dmas, frags, "x"))
    Q = lambda q: list(range(4 * q, 4 * q + 4))
    BQ = [(0, 0), (0, 1), (0, 2), (1, 0), (1, 1), (2, 0), (2, 1), (1, 2), (2, 2)]
    first = {}
    S2 = len(stages)
    for n, bq in enumerate(BQ[:7]):
        first[bq] = len(stages)
        full(*bq, A2); full(*bq, AO)
        if n == 3: SH0 = len(stages); half(BQ[0:2], AS); half(BQ[2:4], AS)
        if n == 6: half(BQ[4:6], AS); half(BQ[6:7], AS)
    SL = len(stages); first[(1, 2)] = SL; first[(2, 2)] = SL + 1; SO = SL + 2
    for acc in (A2, AO):
        full(1, 2, acc); full(2, 2, acc); wo(Q(0), acc); wo([4], acc)
    half(BQ[7:9], AS); wo(Q(0), AS); wo([4], AS)
    SK = len(stages)
    for n in range(0, 9, 2): half(BQ[n:n + 2], AK)
    pipe = Pipe(g, stages, opt.get("D", 7), 2)
    TOUCH = opt.get("touch", 1); tf = opt.get("tflags", "")
    def touch1(rho): return ["buffer_load_dword v31, v29, s[%d:%d], s%d offen offset:%d %s" % (SW1, SW1 + 3, sB1, rho * 128, tf)]
    def touch2(b):
        if b == 3: return ["buffer_load_dword v31, v26, s[%d:%d], s%d offen %s" % (SPHI, SPHI + 3, sWT, tf)]
        if opt.get("t2c", 0):
            return [["s_add_u32 s3, s60, %d" % (b * 96 * 4608), "buffer_load_dword v31, v30, s[%d:%d], s3 offen %s" % (SW2, SW2 + 3, tf)]]
        return ["buffer_load_dword v31, v26, s[%d:%d], s%d offen %s" % (SW2, SW2 + 3, sKB + b, tf)]
    def early():
        e("v_lshrrev_b32 v28, 3, v0")
        e("s_and_b32 s%d, s%d, 1" % (sOFF, sW))
        e("s_lshl_b32 s%d, s%d, 5" % (sOFF, sOFF))
        e("v_add_u32 v1, s%d, v28" % sOFF)
        e("v_mul_u32_u24 v1, 9216, v1")
        e("v_and_b32 v2, 2, v28")
        e("v_and_b32 v3, 7, v0")
        e("v_xor_b32 v2, v2, v3")
        e("v_lshl_add_u32 v1, v2, 4, v1")
        e("v_xor_b32 v2, 64, v1")
        e("v_add_u32 v2, %d, v2" % (8 * 9216 - 1024))
        e("v_add_u32 v3, %d, v1" % (2 * (8 * 9216 - 1024)))
        e("v_add_u32 v4, %d, v2" % (2 * (8 * 9216 - 1024)))
        pipe.refill(); pipe.flush()
    vset = ["v_lshrrev_b32 v28, 3, v0", "s_lshl_b32 s96, s%d, 5" % sW, "v_add_u32 v5, s96, v28", "v_mul_u32_u24 v5, 1152, v5",
            "v_lshlrev_b32 v6, 1, v22", "v_and_b32 v7, 7, v0", "v_xor_b32 v6, v6, v7", "v_lshl_add_u32 v5, v6, 4, v5",
            "v_lshrrev_b32 v28, 2, v0", "v_add_u32 v25, s96, v28", "v_mul_u32_u24 v25, 1152, v25", "v_and_b32 v6, 3, v6", "v_lshl_add_u32 v25, v6, 4, v25"]
    vset += ["v_add_u32 v%d, %d, v5" % (5 + i, i * (8 * 1152 - 1024)) for i in range(1, 4)]
    vset += ["v_lshlrev_b32 v%d, 4, v0" % VST, "v_lshlrev_b32 v27, 9, v22", "v_add_u32 v28, s%d, v0" % sW, "v_cmp_eq_u32 vcc, 0, v28",
             "v_mov_b32 v24, 0x%x" % OOB, "v_mov_b32 v28, 0", "v_cndmask_b32 v24, v24, v28, vcc"]
    vset += ["v_mul_u32_u24 v28, 5462, v0", "v_lshrrev_b32 v28, 16, v28", "v_mul_u32_u24 v26, 12, v28", "v_sub_u32 v26, v0, v26",
             "s_mul_i32 s96, s%d, 12" % sW, "s_and_b32 s95, s%d, 7" % sR, "s_mul_i32 s95, s95, 48", "s_add_u32 s96, s96, s95",
             "v_add_u32 v26, s96, v26", "v_mul_u32_u24 v26, 1152, v26", "v_lshl_add_u32 v26, v28, 7, v26",
             "s_cmp_ge_u32 s96, 144", "s_cselect_b32 s%d, 0x%x, s%d" % (sWT, OOB, sWT),
             "s_and_b32 s96, s%d, 1" % sW, "s_mul_i32 s96, s96, 36", "s_and_b32 s95, s%d, 7" % sR, "s_mul_i32 s95, s95, 72", "s_add_u32 s96, s96, s95",
             "v_add_u32 v29, s96, v0", "v_mul_u32_u24 v29, 9216, v29",
             "v_cmp_gt_u32 vcc, 36, v0", "v_mov_b32 v28, 0x%x" % OOB, "s_nop 0", "v_cndmask_b32 v26, v28, v26, vcc", "v_cndmask_b32 v29, v28, v29, vcc"]
    sp = []
    NSP = opt.get("nsp", 0)
    if NSP:
        e("s_and_b32 s6, s%d, 7" % sR); e("s_lshl_b32 s6, s6, 1"); e("s_and_b32 s7, s%d, 1" % sW); e("s_add_u32 s6, s6, s7")
        e("s_mul_i32 s6, s6, %d" % (NSP * 9216)); e("s_add_u32 s6, s6, s%d" % sB1); e("s_add_u32 s6, s6, %d" % (opt.get("sp0", 64) * 9216))
        e("s_add_u32 s90, s%d, s6" % sT); e("s_addc_u32 s91, s%d, 0" % sT2)
        sp = ["s_load_dword s92, s[90:91], 0x%x" % (i * 9216 + h * 64) for i in range(NSP) for h in range(2)]
    prologue(g, pipe, early=early, afterbar=(lambda: [e(t) for t in touch1(0) + (touch1(1) if not opt.get('t1pos', 70) else [])]) if TOUCH else None, nfirst=opt.get('nfirst', 8),
             fill=sp + group_scc(late_setup() + vset + tr_bases(g, B1, 8)))
    def epi1(rho):
        acc = ACC[rho & 1]; ops = []; sts = ["s_add_u32 s%d, s%d, %d" % (sT2, sHX, rho * 4096)]
        for t in range(4):
            for tt in range(2):
                gt = acc + ((t * 2) * 2 + tt) * 4; up = acc + ((t * 2 + 1) * 2 + tt) * 4
                u = 2 * rho + t // 2
                h = H + (u * 2 + tt) * 4 + (t & 1) * 2
                for k in range(2):
                    for i in (2 * k, 2 * k + 1): ops.append("v_max_f32 v%d, 0, v%d" % (gt + i, gt + i))
                    for i in (2 * k, 2 * k + 1): ops.append("v_mul_f32 v%d, v%d, v%d" % (gt + i, gt + i, up + i))
                    ops.append("v_cvt_pk_bf16_f32 v%d, v%d, v%d" % (h + k, gt + 2 * k, gt + 2 * k + 1))
                if t & 1:
                    sts.append(("buffer_store_dwordx4 %s, v%d, s[%d:%d], s%d offen offset:%d sc1" % (hreg(0, u, tt), VST, SWS, SWS + 3, sT2, ((u & 1) * 2 + tt) * 1024), ("hst", rho)))
        return ops, sts
    def hloads(b, q):
        ops = []
        for u in (range(5) if b == 3 else Q(q)):
            if u % 2 == 0: ops.append("s_add_u32 s%d, s%d, %d" % (sT, sOX if b == 3 else sHX + b, u * 2048))
            for tt in range(2):
                ops.append(("buffer_load_dwordx4 %s, v%d, s[%d:%d], s%d offen offset:%d sc1" % (hreg(b, u, tt), VST, SWS, SWS + 3, sT, ((u & 1) * 2 + tt) * 1024), ("h", b, q)))
        return ops
    extra = {}; urgent = {}
    add = lambda k, l: extra.setdefault(k, []).extend(l)
    addu = lambda k, l: urgent.setdefault(k, []).extend(l)
    EP = opt.get("epiw", 75)
    for rho in range(5):
        spread(sum(epi1(rho), []) + [Mark("epi%d" % rho)], 144 * (rho + 1) + 3, 144 * (rho + 1) + EP, extra)
    P2 = start[S2]
    hb = ["v_bfe_u32 v144, v0, 2, 4", "v_lshlrev_b32 v144, 6, v144", "v_bfe_u32 v145, v0, 4, 1", "v_lshl_add_u32 v144, v145, 5, v144",
          "v_and_b32 v145, 3, v0", "v_lshl_add_u32 v144, v145, 3, v144", "v_xor_b32 v145, 32, v144"]
    hb += ["v_add_u32 v%d, 0x%x, v%d" % (BH + 2 * k + t, k << 16, BH + t) for k in (1, 2) for t in range(2)]
    hb += ["v_lshrrev_b32 v2, 5, v0", "v_bfe_u32 v3, v0, 3, 2", "v_lshl_add_u32 v2, v2, 4, v3", "v_mul_u32_u24 v4, 1152, v2",
           "v_bfe_u32 v2, v0, 4, 2", "v_lshlrev_b32 v2, 1, v2", "v_and_b32 v3, 7, v0", "v_xor_b32 v2, v2, v3", "v_lshl_add_u32 v4, v2, 4, v4",
           "v_add_u32 v1, 256, v4", "s_sub_u32 s96, s%d, s%d" % (sKO, sKB), "v_add_u32 v2, s96, v4",
           "s_sub_u32 s96, s%d, s%d" % (sKS, sKB), "s_and_b32 s95, s96, 64", "v_xor_b32 v3, s95, v4", "s_and_b32 s96, s96, 128", "v_add_u32 v3, s96, v3"]
    add(P2 + 3, [Dens(1)] + epi1(5)[0] + [Mark("epi5"), Dens(0)] + epi1(5)[1] + hb + [Mark("hb")])
    pauses = [(0, opt.get('p0', 0))]
    if TOUCH:
        T = [touch1(2), touch1(3), touch1(4), touch1(5), touch2(0), touch2(1), touch2(2), touch2(3)]
        for k, ops in zip(opt.get("tpos", [70, 148, 292, 436, 510, 690, 760, 760]), T):
            addu(k, ops); pauses.append((k + opt.get("pdel", 0), k + opt.get("pause", 40)))
    if opt.get("t1pos", 70): addu(opt.get("t1pos", 70), touch1(1))
    add(150, ["s_lshl_b32 s60, s%d, 3" % sI, "s_and_b32 s96, s%d, 7" % sR, "s_add_u32 s60, s60, s96", "s_lshl_b32 s60, s60, 2", "s_add_u32 s60, s60, s%d" % sW,
              "s_mul_i32 s60, s60, 4608", "s_mul_i32 s96, s%d, %d" % (sJ, 1152 * 1152), "s_add_u32 s60, s60, s96",
              "v_min_u32 v30, 35, v0", "v_lshlrev_b32 v30, 7, v30"])
    if opt.get("cpf", 6144):
        e("s_lshr_b32 s100, s2, 3"); e("s_sub_u32 s100, s100, 8"); e("s_lshl_b32 s100, s100, 2"); e("s_add_u32 s100, s100, s%d" % sW)
        e("s_lshl_b32 s100, s100, 6"); e("s_add_u32 s100, s100, %d" % opt.get("cpf", 6144))
        for k in range(opt.get('cp0', 20), start[-1], opt.get('cpp', 125)): addu(k, [code_pf()])
    add(1, xc_copies() + [Mark("xc"), "v_add_u32 v22, %d, v25" % (16 * 1152 - 1024)])
    add(144 + 90, flag_lane_offsets(23, 28) + [Mark("flo")])
    addu(288 + 100, [lambda: flag_issue(g, 28, 23, None)])
    groups = list(range(0, SL, 2)) + [SL + k for k in opt.get('eg', [0, 1, 2, 4, 6, 8, 11, 13, 15])]
    bar = lambda n: start[n] - pipe.D - 1
    hooks = {}
    def before(n, f):
        assert n in groups, n
        hooks.setdefault(n, []).append(f); stages[n].before = lambda n=n: [f() for f in hooks[n]]
    before(26, lambda: flag_check(g, 28, 23, None, 0))
    FLD = opt.get('fld', 50); CMB = opt.get('cmb', 0)
    HS = opt.get("hs", [[30, 36], [46, 52], [S2 + 8, S2 + 14]])
    for q, (ns, nc) in enumerate(HS):
        before(ns, lambda q=q: g.wait_vm(("hst", 2 * q + 1)))
        stages[ns].after = lambda q=q: signal(g, 28, 24, 63, 16 * q)
        addu(bar(nc) - FLD, [lambda: flag_issue(g, 28, 23, sCNT)])
        before(nc, lambda q=q: flag_check(g, 28, 23, sCNT, (0x7 << (4 * q)) | (0x1000 if q == 2 and CMB else 0)))
    HW = opt.get("hw", [100, 100, 20])
    HP = opt.get("hp", [0, 0, 0])
    for q in range(3):
        spread(hloads(1, q), bar(HS[q][1]) + 1, bar(HS[q][1]) + 1 + HW[q], urgent); pauses.append((bar(HS[q][1]) + 1, bar(HS[q][1]) + 1 + HP[q]))
    assert bar(HS[1][1]) + 1 + HW[1] <= P2 + opt.get("h2pos", 100)
    spread(hloads(2, 0) + hloads(2, 1), P2 + opt.get("h2pos", 100), P2 + opt.get('h2pos', 100) + 60, urgent)
    def to_g2():
        for k in range(12): e("v_sub_u32 v%d, v%d, v27" % (B1 + k, B1 + k))
    stages[S2].after = to_g2
    for bq in BQ[3:]: before(first[bq], lambda bq=bq: g.wait_vm(("h",) + bq))
    spread(hloads(2, 2), bar(SL) - opt.get('h22', 30), bar(SL) - opt.get('h22', 30) + 10, urgent)
    sFL, sFW, sPL, sCOL, sRS, sMSK, sP1, sCK = 64, 65, 66, 67, 68, 69, 72, 75
    a2 = Asm(); srd(a2, SW1, 61, 62, PSZ)
    fin = [l.strip() for l in a2.lines]
    fin += ["s_mul_i32 s95, s%d, 3" % sR, "s_add_u32 s95, s95, s%d" % sI, "s_lshl_b32 s%d, s95, 7" % sFL, "s_add_u32 s%d, s%d, 0x%x" % (sFL, sFL, WS_FLG + 72 * 128),
           "s_lshl_b32 s%d, s%d, 2" % (sFW, sJ), "s_add_u32 s%d, s%d, s%d" % (sFW, sFW, sFL),
           "s_lshr_b32 s95, s%d, 1" % sJ, "s_lshl_b32 s96, s95, 11", "s_add_u32 s%d, s%d, s96" % (sPL, sB2), "s_add_u32 s%d, s%d, 8192" % (sPL, sPL),
           "s_and_b32 s96, s%d, 1" % sJ, "s_lshl_b32 s76, s96, 7", "s_add_u32 s%d, s%d, s76" % (sPL, sPL),
           "s_lshl_b32 s95, s95, 12", "s_lshl_b32 s96, s96, 10", "s_add_u32 s95, s95, s96", "s_add_u32 s76, s95, s%d" % sB2]
    for k in range(3):
        fin += ["s_add_u32 s96, s%d, %d" % (sJ, k + 1), "s_and_b32 s96, s96, 3", "s_mul_i32 s96, s96, %d" % PSZ, "s_add_u32 s%d, s76, s96" % (sP1 + k)]
    fin += ["v_and_b32 v150, 0x37, v0", "v_lshlrev_b32 v150, 4, v150", "v_bfe_u32 v155, v0, 3, 1", "v_lshl_add_u32 v150, v155, 10, v150",
            "s_mul_i32 s%d, s%d, 384" % (sCOL, sI), "s_add_u32 s%d, s%d, s4" % (sCOL, sCOL), "s_lshl_b32 s96, s%d, 6" % sJ, "s_add_u32 s%d, s%d, s96" % (sCK, sCOL),
            "s_add_u32 s77, s%d, %d" % (sCK, 16 * 1152),
            "v_bfe_u32 v156, v0, 4, 1", "v_lshlrev_b32 v156, 5, v156", "v_lshrrev_b32 v157, 5, v0", "v_lshl_add_u32 v156, v157, 4, v156",
            "s_lshl_b32 s95, s%d, 3" % sJ, "v_and_b32 v151, 7, v0", "v_add_u32 v151, s95, v151", "v_lshlrev_b32 v153, 2, v151",
            "v_mul_u32_u24 v151, 1152, v151", "v_lshl_add_u32 v151, v155, 6, v151", "v_add_u32 v151, v151, v156",
            "v_and_b32 v152, 15, v0", "v_lshlrev_b32 v154, 2, v152", "v_mul_u32_u24 v152, 1152, v152", "v_add_u32 v152, v152, v156",
            "s_lshl_b32 s96, s%d, 2" % sR, "s_add_u32 s96, s96, s%d" % sJ, "s_lshl_b32 s96, s96, 2", "s_add_u32 s96, s96, s%d" % sW,
            "s_lshl_b32 s%d, s96, 7" % sRS, "s_add_u32 s%d, s%d, 0x%x" % (sRS, sRS, WS_RS2),
            "s_mov_b32 s70, 0x3f80", "s_mov_b32 s71, 0x3f800000"]
    add(P2 + 150, fin + [Mark("fin")])
    XL = [(32, 152, sCK, 0), (36, 152, 77, 0), (40, 151, sCOL, 256)]
    RL = [(155, 154, 0), (156, 154, 64), (157, 153, 0)]
    nO = SL - opt.get('oearly', 0)
    if not CMB:
        addu(bar(nO) - opt.get('old', 30), [lambda: flag_issue(g, 28, 23, sCNT)])
        before(nO, lambda: flag_check(g, 28, 23, sCNT, 0x1000))
    spread(hloads(3, 0) + ["buffer_load_dword v%d, v%d, s[%d:%d], s%d offen offset:%d sc1" % (d, v, SWS, SWS + 3, sRS, im) for d, v, im in RL], bar(nO) + opt.get('o0', 1), bar(nO) + opt.get('o1', 5), urgent)
    before(SO, lambda: g.wait_vm(("h", 3, 0)))
    add(start[SL + 4] + 3, store_ops(g, A2, PK, 2, VST))
    add(start[SL + 8] + 3, store_ops(g, AO, PK, 0, VST, sSO))
    add(start[SK] + 3, [Dens(1)] + store_ops(g, AS, PK, 0, VST, sSS, 2, "pst") + [Mark("pst"), Dens(0)] + ["v_mov_b32 v%d, 0" % (96 + i) for i in range(8)] +
        [("buffer_load_dwordx4 %s, v%d, s[%d:%d], s%d offen offset:%d" % (vr(d, 4), v, SX, SX + 3, so, im), "fx") for d, v, so, im in XL])
    INS = opt.get("insig", 1)
    if INS:
        before(SK + 4, lambda: g.wait_vm("pst")); stages[SK + 4].after = lambda: signal(g, 28, 24, sFW, 0)
    if opt.get("ts") or opt.get("amp") is not None:
        for k in ([720] + list(range(720 + 48, start[-1], 32)) if opt.get('fine2') else (144, 288, 432, 576, 720, P2, P2 + 144, P2 + 288, start[SK])): addu(k, [g.stamp])
    pipe.run(0, len(stages), extra, pauses=pauses, groups=groups, urgent=urgent)
    w = pipe.when
    if opt.get("verbose"): print(w, "P2", P2, "SK", start[SK], "end", start[-1], "barK", bar(SK + 4))
    assert w["xc"] < 142 and w["flo"] < 288 + 100 and all(w["epi%d" % r] < 144 * (r + 2) - 1 for r in range(5)), w
    assert w["epi5"] < start[first[(0, 2)]] + 7 and w["hb"] < bar(SH0) and w["fin"] < bar(nO) - 1 and w["pst"] < bar(SK + 4), w
    g.stamp()
    if not INS:
        e("s_waitcnt vmcnt(0)"); e("s_barrier"); signal(g, 28, 24, sFW, 0)
    flag_check(g, 28, 23, sFL, 0xf, issued=False, sleep=1)
    e("s_barrier")
    g.stamp()
    UA = [(AK, AK + 8), (AK + 4, AK + 12), (96, 100)]
    lds = []
    regs = list(range(48, 96, 4))
    for p in range(4):
        if p < 3:
            for tt in range(2):
                d = regs.pop(0); lds.append((d, tt))
                e("buffer_load_dwordx4 %s, v%d, s[%d:%d], s%d offen offset:%d sc1" % (vr(d, 4), VST, SWS, SWS + 3, sP1 + p, tt * 2048), ("pl", len(lds)))
        if p: e("s_add_u32 s%d, s%d, %d" % (sPL, sPL, PSZ))
        d = regs.pop(0); lds.append((d, 2))
        e("buffer_load_dwordx4 %s, v150, s[%d:%d], s%d offen sc1" % (vr(d, 4), SWS, SWS + 3, sPL), ("pl", len(lds)))
    g.wait_vm("fx")
    for k in range(12):
        e("v_lshlrev_b32 v%d, 16, v%d" % (160 + 2 * k, 32 + k))
        e("v_and_b32 v%d, 0xffff0000, v%d" % (161 + 2 * k, 32 + k))
    for n, (d, u) in enumerate(lds):
        if n % 3 == 0: g.wait_vm(("pl", min(n + 3, len(lds))))
        for i in range(4):
            a0 = UA[u][i // 2] + 2 * (i % 2)
            e("v_dot2c_f32_bf16 v%d, s70, v%d" % (a0, d + i))
            e("v_dot2c_f32_bf16 v%d, s71, v%d" % (a0 + 1, d + i))
    e("s_nop 2")
    for u in range(3):
        for i in range(4): e("v_permlane16_swap_b32 v%d, v%d" % (UA[u][0] + i, UA[u][1] + i))
        for i in range(4):
            a0 = UA[u][i // 2] + 2 * (i % 2); x = 160 + 8 * u + 2 * i
            e("v_fmac_f32 v%d, v%d, v%d" % (x, a0, 155 + u))
            e("v_fmac_f32 v%d, v%d, v%d" % (x + 1, a0 + 1, 155 + u))
            e("v_cvt_pk_bf16_f32 v%d, v%d, v%d" % (184 + 4 * u + i, x, x + 1))
        e("buffer_store_dwordx4 %s, v%d, s[%d:%d], s%d offen offset:%d %s" % (vr(184 + 4 * u, 4), XL[u][1], SW1, SW1 + 3, XL[u][2], XL[u][3], opt.get("oflags", "nt")))
    if opt.get("ts") or opt.get("amp") is not None:
        e("s_waitcnt vmcnt(0)"); g.stamp()

def k1(g):
    e, opt = g.e, g.opt
    kernel_head(g, K1)
    e("s_getpc_b64 s[84:85]")
    for _ in range(opt.get("pad", 0)): e("s_mov_b32 s99, 0x12345")
    e("s_cmp_ge_u32 s2, 256")
    e("s_cbranch_scc1 L_k1_end")
    e("s_load_dwordx8 s[64:71], s[0:1], 0")
    e("s_load_dwordx4 s[72:75], s[0:1], 40")
    e("s_load_dwordx4 s[76:79], s[0:1], 56")
    e("s_load_dwordx4 s[80:83], s[0:1], 72")
    if opt.get("vpf", 1):
        e("s_bitcmp1_b32 s2, 3")
        e("s_cselect_b32 s3, L_att-%s, 0" % K1)
        sh = opt.get("vsh", 2)
        e("s_lshr_b32 s4, s2, 4")
        e("s_lshl_b32 s4, s4, %d" % (8 + sh))
        e("s_add_u32 s3, s3, s4")
        e("v_lshlrev_b32 v2, %d, v0" % sh)
        e("v_add_u32 v2, s3, v2")
        e("global_load_dword v255, v2, s[84:85]")
    e("v_lshrrev_b32 v1, 6, v0")
    e("v_and_b32 v0, 63, v0")
    e("v_readfirstlane_b32 s%d, v1" % sW)
    lane_consts(g)
    e("s_and_b32 s%d, s2, 1" % sR)
    e("s_lshl_b32 s%d, s%d, 3" % (sR, sR))
    e("s_bfe_u32 s%d, s2, 0x30003" % sT)
    e("s_or_b32 s%d, s%d, s%d" % (sR, sR, sT))
    e("s_bfe_u32 s%d, s2, 0x20001" % sS)
    e("s_lshr_b32 s3, s2, 6")
    if opt.get("ts"):
        e("s_lshl_b32 s94, s2, 2"); e("s_add_u32 s94, s94, s%d" % sW); e("s_lshl_b32 s94, s94, 8"); e("s_add_u32 s94, s94, 0x%x" % WS_TS)
        if opt.get("dbgts") is not None:
            e("s_lshl_b32 s94, s2, 2"); e("s_add_u32 s94, s94, s%d" % sW); e("s_cmp_eq_u32 s94, %d" % (4 * opt["dbgts"])); e("s_cselect_b32 s94, 0, 0x10000")
    x_setup(g)
    e("s_mov_b32 s%d, 0x%x" % (SX + 2, PSZ))
    e("s_mov_b32 s%d, 0x20000" % (SX + 3))
    e("s_waitcnt lgkmcnt(0)")
    e("s_mov_b32 s%d, s64" % SX)
    e("s_and_b32 s%d, s65, 0xffff" % (SX + 1))
    if opt.get("ts") or opt.get("amp") is not None:
        srd(g, SWS, 82, 83, WS_BYTES); srd(g, SDBG, 80, 81, 256); g.stamp()
    for o in range(opt.get("xcommon", 1)):
        for j in range(9): x_dma(g, o, j)
    wb = opt.get("wsbase", 0)
    if wb:
        e("s_add_u32 s82, s82, 0x%x" % wb); e("s_addc_u32 s83, s83, 0")
    srd(g, SWS, 82, 83, WS_BYTES - wb)
    srd(g, SDBG, 80, 81, 256)
    e("s_or_b32 s%d, s2, s%d" % (sT, sW))
    e("s_cbranch_scc1 L_nonce_done")
    e("s_memrealtime s[98:99]")
    e("s_waitcnt lgkmcnt(0)")
    e("v_mov_b32 v2, s98")
    e("v_or_b32 v2, 1, v2")
    Asm.e(g, "buffer_store_dword v2, off, s[%d:%d], 0 sc1" % (SDBG, SDBG + 3))
    g.label("L_nonce_done")
    e("s_cmp_eq_u32 s3, 0")
    e("s_cbranch_scc1 %s" % ("L_k1_end" if opt.get("noatt") else "L_att"))
    sv = (list(g.vm), list(g.lg), g.nts)
    g.sv = 31
    ffn_role(g)
    g.sv = 30
    def amp(role):
        if opt.get("amp") is None or opt.get("amprole", "ffn") != role: return
        L = g.newlabel("L_amp")
        e("s_sub_u32 s101, s101, s100")
        e("s_add_u32 s101, s101, %d" % opt.get("ampadd", 0))
        if role == "ffn":
            e("s_memrealtime s[92:93]"); e("s_waitcnt lgkmcnt(0)"); e("s_mov_b32 s100, s92")
        g.label(L)
        e("s_sleep 1"); e("s_memrealtime s[92:93]"); e("s_waitcnt lgkmcnt(0)")
        e("s_sub_u32 s92, s92, s100"); e("s_cmp_lt_u32 s92, s101"); e("s_cbranch_scc1 %s" % L)
    amp("ffn")
    e("s_endpgm")
    g.vm, g.lg, g.nts = sv
    g.raw(".p2align 6")
    g.label("L_att")
    import att
    att.att_role(g)
    amp("att")
    g.label("L_k1_end")
    e("s_endpgm")
    g.raw(".fill %d, 4, 0xbf810000" % (8192 if opt.get("vsh", 2) == 4 else 4096))

VOP3ONLY = ("v_mfma", "v_pk_", "v_fma_f32", "v_cvt_pk_bf16", "v_accvgpr_read", "v_accvgpr_write", "v_max3", "v_min3", "v_lshl_add", "v_add_lshl", "v_mad_u32",
            "v_bfe", "v_add3", "v_mul_lo", "v_mul_hi", "v_lshl_or", "v_and_or", "v_readlane", "v_perm_b32")
NOWIDE = ("v_readfirstlane", "v_permlane", "v_dot2c", "v_nop")
def has_lit(s):
    for t in re.split(r"[ ,]+", s)[1:]:
        if re.match(r"^-?(0x[0-9a-f]+|\d+)$", t):
            v = int(t, 0)
            if not (-16 <= v <= 64) and v not in (0x3f800000, 0x3f000000, 0x40000000, 0x40800000, 0xbf800000, 0xbf000000, 0xc0000000, 0xc0800000): return True
        if t.startswith("L_"): return not s.startswith(("s_cbranch", "s_branch"))
    return False
def isize(s):
    op = s.split()[0]
    if op.startswith(("ds_", "buffer_", "global_", "s_load", "s_mem")): return 8, False
    if op.startswith("s_"):
        if op.startswith(("s_waitcnt", "s_addk", "s_mulk", "s_nop", "s_barrier", "s_sleep", "s_endpgm", "s_cbranch", "s_branch", "s_setprio", "s_getreg")): return 4, False
        return (8 if has_lit(s) else 4), False
    if op.startswith(VOP3ONLY): return 8, False
    if has_lit(s): return 8, False
    ops = [x.strip() for x in re.split(r",(?![^\[]*\])", s.split(None, 1)[1])]
    if op.startswith("v_cmp") and ops[0] != "vcc": return 8, False
    if op.startswith("v_cndmask") and ops[-1] != "vcc": return 8, False
    if len(ops) >= 3 and not ops[2].startswith("v"): return 8, False
    return 4, not op.startswith(NOWIDE)
def align_pass(lines, minrun=4):
    ins = [l.strip() for l in lines]
    out = []; par = 0
    isins = lambda l: l and not l.endswith(":") and not l.startswith((".", ";"))
    n = len(ins)
    def nxt(i):
        i += 1
        while i < n and not isins(ins[i]):
            if ins[i].startswith(".p2align"): return None
            i += 1
        return i if i < n else None
    for i, l in enumerate(ins):
        if not isins(l):
            if l.startswith(".p2align"): par = 0
            out.append(l); continue
        sz, flex = isize(l)
        if sz == 8: out.append(l); continue
        if par == 1: out.append(l); par = 0; continue
        j = nxt(i)
        if j is None or isize(ins[j])[0] == 4: out.append(l); par = 1; continue
        if flex:
            op, rest = l.split(None, 1); out.append(op + "_e64 " + rest); continue
        run = 0
        while j is not None and isize(ins[j])[0] == 8 and run < minrun: run += 1; j = nxt(j)
        out.append(l)
        if run >= minrun and not l.startswith(("s_branch", "s_endpgm")): out.append("s_nop 0")
        else: par = 1
    return out

LABELS = {}
def resolve(lines):
    off = 0; LABELS.clear()
    for l in lines:
        l = l.strip()
        if l.endswith(":"): LABELS[l[:-1]] = off
        elif l.startswith(".p2align"):
            a = 1 << int(l.split()[1]); off = (off + a - 1) // a * a
        elif l and not l.startswith((".", ";")):
            off += 8 if l.split()[0].endswith("_e64") else isize(l)[0]
    end = LABELS["L_k1_end"]
    def f(m):
        span = 2048 if LABELS[m.group(1)] >= LABELS["L_att"] else 6144
        return "0x%x" % (min(LABELS[m.group(1)] + int(m.group(2)), end - span) & ~3)
    return [re.sub(r"@(\w+)\+(\d+)", f, l) if l.strip().startswith("s_load") else l for l in lines]

MACROS = """.macro MA d,a,b
v_mfma_f32_16x16x32_bf16 v[\\d:\\d+3], a[\\a:\\a+3], a[\\b:\\b+3], v[\\d:\\d+3]
.endm
.macro MV d,a,b
v_mfma_f32_16x16x32_bf16 v[\\d:\\d+3], a[\\a:\\a+3], v[\\b:\\b+3], v[\\d:\\d+3]
.endm
.macro RT d,b,o
ds_read_b64_tr_b16 a[\\d:\\d+1], v\\b offset:\\o
.endm
.macro WL n
s_waitcnt lgkmcnt(\\n)
.endm
.macro CV d,a,b
v_cvt_pk_bf16_f32 v\\d, v\\a, v\\b
.endm
"""
def compress(line):
    s = line.strip()
    m = re.match(r"v_mfma_f32_16x16x32_bf16 v\[(\d+):\d+\], a\[(\d+):\d+\], ([av])\[(\d+):\d+\], v\[(\d+):\d+\]$", s)
    if m and m.group(1) == m.group(5): return "M%s %s,%s,%s" % (m.group(3).upper(), m.group(1), m.group(2), m.group(4))
    m = re.match(r"ds_read_b64_tr_b16 a\[(\d+):\d+\], v(\d+) offset:(\d+)$", s)
    if m: return "RT %s,%s,%s" % m.groups()
    m = re.match(r"s_waitcnt lgkmcnt\((\d+)\)$", s)
    if m: return "WL %s" % m.group(1)
    m = re.match(r"v_cvt_pk_bf16_f32 v(\d+), v(\d+), v(\d+)$", s)
    if m: return "CV %s,%s,%s" % m.groups()
    return s

def gen(**opt):
    g = G(opt)
    k1(g)
    FUSE = 1
    errs = hazard.check(g.lines)
    if errs:
        print("\n".join(errs[:40])); raise SystemExit("hazards: %d" % len(errs))
    head = open("cdna_kernels/%s.s.ref" % BASE).read().split("; Override launch")[0] if not opt.get("nohead") else ""
    out = head
    if FUSE: out += "; @launch grid=(256,1,1) block=(256,1,1) lds=163840\n"
    else: out += "; @launch kernel=%s grid=(256,1,1) block=(256,1,1) lds=163840\n" % K1
    if not FUSE: out += "; @launch kernel=%s grid=(256,1,1) block=(576,1,1) lds=0\n" % K2
    out += '.amdgcn_target "amdgcn-amd-amdhsa--gfx950"\n.text\n' + MACROS
    lines = align_pass(g.lines, opt.get("minrun", 4)) if opt.get("align", 1) else g.lines
    lines = resolve(lines)
    out += "\n".join(compress(l) for l in lines) + "\n"
    out += '.section .rodata,"a"\n' + kernel_desc(K1, 512, 256) + ("" if FUSE else kernel_desc(K2, 96, 96, 40))
    return out

if __name__ == "__main__":
    kw = json.loads(sys.argv[2]) if len(sys.argv) > 2 else {}
    open(sys.argv[1], "w").write(gen(**kw))
```

```python
from asmlib import *
import gen as G
from gen import *

TBL = 155648; ZER = 163328; SCR = 98304
sODD = 42
sWO = 44
sKV, sQ, sKVP, sCQ, sOXB = 49, 50, 51, 44, 45
ACC = 32

def softmax(p, o, tt, E):
    L = []; e = L.append
    e("v_max3_f32 v24, v%d, v%d, v%d" % (p, p + 1, p + 2)); e("v_min3_f32 v25, v%d, v%d, v%d" % (p, p + 1, p + 2))
    for i in range(3, 17, 2):
        e("v_max3_f32 v24, v24, v%d, v%d" % (p + i, p + i + 1)); e("v_min3_f32 v25, v25, v%d, v%d" % (p + i, p + i + 1))
    e("v_max_f32 v24, v24, v%d" % (p + 17)); e("v_min_f32 v25, v25, v%d" % (p + 17))
    e("v_pk_mul_f32 v[24:25], v[24:25], v[14:15] op_sel:[0,%d] op_sel_hi:[1,%d]" % (tt, tt))
    for i in range(0, 18, 2):
        e("v_pk_fma_f32 %s, %s, v[14:15], v[24:25] op_sel:[0,%d,0] op_sel_hi:[1,%d,0] neg_lo:[0,0,1] neg_hi:[0,0,1]" % (vr(E + i, 2), vr(p + i, 2), tt, tt))
        e("v_pk_fma_f32 %s, %s, v[14:15], v[24:25] op_sel:[0,%d,1] op_sel_hi:[1,%d,1] neg_lo:[0,1,0] neg_hi:[0,1,0]" % (vr(p + i, 2), vr(p + i, 2), tt, tt))
    for i in range(18):
        e("v_exp_f32 v%d, v%d" % (E + i, E + i))
        e("v_exp_f32 v%d, v%d" % (p + i, p + i))
    e("v_pk_add_f32 v[24:25], %s, %s" % (vr(E, 2), vr(E + 2, 2)))
    e("v_pk_add_f32 v[26:27], %s, %s" % (vr(p, 2), vr(p + 2, 2)))
    for i in range(4, 18, 2):
        e("v_pk_add_f32 v[24:25], v[24:25], %s" % vr(E + i, 2))
        e("v_pk_add_f32 v[26:27], v[26:27], %s" % vr(p + i, 2))
    e("v_add_f32 v24, v24, v25")
    e("v_add_f32 v25, v26, v27")
    e("v_rcp_f32 v24, v24")
    e("v_rcp_f32 v25, v25")
    e("s_nop 0")
    for i in range(0, 18, 2):
        e("v_pk_mul_f32 %s, %s, v[24:25] op_sel:[0,0] op_sel_hi:[1,0]" % (vr(E + i, 2), vr(E + i, 2)))
        e("v_pk_mul_f32 %s, %s, v[24:25] op_sel:[0,1] op_sel_hi:[1,1]" % (vr(p + i, 2), vr(p + i, 2)))
    for i in range(8, -1, -1): e("v_cvt_pk_bf16_f32 v%d, v%d, v%d" % (o + 9 + i, p + 2 * i, p + 2 * i + 1))
    for i in range(9): e("v_cvt_pk_bf16_f32 v%d, v%d, v%d" % (o + i, E + 2 * i, E + 2 * i + 1))
    out = []
    for x in L:
        if x.startswith("v_pk_"):
            if out and isinstance(out[-1], list): out[-1].append(x)
            else: out.append([x])
        else: out.append(x)
    for x in out:
        if isinstance(x, list): x.append("s_nop 0")
    return out

def phi_frag_reads(rho, A, tag):
    L = ["v_mov_b32 v29, v18" if rho == 0 else "v_mad_u32_u24 v29, v19, 12, v18"]
    for ks in range(3):
        for to in range(5):
            b = A + (ks * 5 + to) * 4
            L.append(("ds_read_b64_tr_b16 %s, v29 offset:%d" % (ar(b, 2), to * 8), tag))
            L.append(("ds_read_b64_tr_b16 %s, v29 offset:%d" % (ar(b + 2, 2), to * 8 + 160), tag))
        if ks < 2: L.append("v_add_u32 v29, v29, v19")
    return L

def phi_mfma(pk, P, A):
    return [mfma(vr(P[tt] + 4 * to, 4), ar(A + (ks * 5 + to) * 4, 4), vr(pk[tt] + 4 * ks, 4), "0" if ks == 0 else None)
            for ks in range(3) for to in range(5) for tt in range(2)]

def pack20(src, dst):
    return ["v_cvt_pk_bf16_f32 v%d, v%d, v%d" % (dst + i, src + 2 * i, src + 2 * i + 1) for i in range(10)]

def put(g, L):
    for it in L:
        if callable(it): it()
        elif isinstance(it, list): put(g, it)
        elif isinstance(it, tuple): g.e(it[0], it[1])
        else: g.e(it)

def weave(g, ms, fill, per=2):
    fill = list(fill)
    for m in ms:
        put(g, [m]); put(g, fill[:per]); fill = fill[per:]
    put(g, fill)

def c1(f):
    f.cost = 1
    return f

def att_role(g):
    e, opt = g.e, g.opt
    wf = opt.get("aflags", ""); TOUCH = opt.get("touch", 1); tf = opt.get("tflags", "")
    CPF = opt.get("codepf", 0)
    e("s_sub_u32 s66, s66, 2048")
    e("s_subb_u32 s67, s67, 0")
    srd(g, SW1, 66, 67, 576 * 1728 * 2 + 2048)
    srd(g, SPHI, 68, 69, 32 * 18 * 18 * 2)
    e("s_mul_i32 s%d, s%d, 3072" % (sM0W, sW))
    e("s_and_b32 s%d, s%d, 1" % (sT, sW))
    e("s_lshl_b32 s%d, s%d, 4" % (sT, sT))
    e("s_add_u32 s%d, s%d, s%d" % (sM0W, sM0W, sT))
    e("s_and_b32 s%d, s%d, 2" % (sT, sW))
    e("s_lshl_b32 s%d, s%d, 7" % (sT, sT))
    e("s_add_u32 s%d, s%d, s%d" % (sM0W, sM0W, sT))
    e("s_mul_i32 s%d, s%d, 288" % (sQ, sS))
    e("s_and_b32 s47, s%d, 0xffc0" % sQ)
    e("s_add_u32 s%d, s47, 1152" % sKV)
    e("s_lshl_b32 s%d, s%d, 7" % (sCNT, sS))
    e("s_add_u32 s%d, s%d, 0x%x" % (sCNT, sCNT, WS_FLG + 64 * 128))
    e("s_add_u32 s46, s%d, 512" % sCNT)
    e("s_lshl_b32 s63, s%d, 2" % sR)
    e("s_add_u32 s63, s63, s%d" % sCNT)
    e("s_lshl_b32 s%d, s%d, 2" % (sT, sR))
    e("s_add_u32 s%d, s%d, s%d" % (sT, sT, sS))
    e("s_lshl_b32 s%d, s%d, 7" % (sCQ, sT))
    e("s_add_u32 s%d, s%d, 0x%x" % (sCQ, sCQ, WS_FLG))
    e("s_lshl_b32 s%d, s%d, 2" % (sT, sT))
    e("s_add_u32 s%d, s%d, s%d" % (sT, sT, sW))
    e("s_mul_i32 s%d, s%d, 10240" % (sOXB, sT))
    e("s_add_u32 s%d, s%d, 0x%x" % (sOXB, sOXB, WS_OX))
    e("s_lshl_b32 s%d, s%d, 3" % (sKVP, sS))
    e("s_add_u32 s%d, s%d, s%d" % (sKVP, sKVP, sW))
    e("s_lshl_b32 s%d, s%d, 4" % (sKVP, sKVP))
    e("s_add_u32 s%d, s%d, s%d" % (sKVP, sKVP, sR))
    e("s_mul_i32 s%d, s%d, 2944" % (sKVP, sKVP))
    e("s_add_u32 s%d, s%d, 0x%x" % (sKVP, sKVP, WS_KVP))
    stages = []; SLOT = 12800; NSL = 7
    for ps in range(3):
        for ks in range(18):
            n = len(stages); lo = (n % NSL) * SLOT
            sb, add, vo = (sKV, 128 * ps, 1) if ps < 2 else (47, 0, 4)
            pre = ["s_add_u32 m0, s%d, %d" % (sM0W, lo), "s_add_u32 s%d, s%d, %d" % (sOFF, sb, ks * 32 * 3456 + add)]
            dmas = ["buffer_load_dwordx4 v%d, s[%d:%d], s%d offen offset:%d %s lds" % (vo + i, SW1, SW1 + 3, sOFF, i * 1024, wf) for i in range(3)]
            frags = []
            for sec in range(2):
                for t in range(5):
                    off = lo + sec * 1536 + 8 * t + 16 * (ps if ps < 2 else sec)
                    def rd(buf, off=off):
                        b = 7 + (off >> 16); o = off & 0xffff
                        assert o + 768 < 65536
                        return ["ds_read_b64_tr_b16 %s, v%d offset:%d" % (ar(buf, 2), b, o), "ds_read_b64_tr_b16 %s, v%d offset:%d" % (ar(buf + 2, 2), b, o + 768)]
                    def mf(buf, ks=ks, sec=sec, t=t, XC=(XC if ps else XV0)):
                        order = (0, 1) if (sec * 5 + t) % 2 == 0 else (1, 0)
                        return [mfma(vr(ACC + (sec * 2 + tt) * 20 + 4 * t, 4), ar(buf, 4), XC(tt, ks), "0" if ks == 0 else None) for tt in order]
                    frags.append((rd, mf))
            stages.append(Stage(lo, lo + SLOT, pre, dmas, frags, "x"))
    OB = 192; VST = 21
    pipe = Pipe(g, stages, opt.get("D", 7), opt.get("ABE", 2))

    def early():
        if TOUCH:
            e("v_mul_u32_u24 v28, 3641, v0")
            e("v_lshrrev_b32 v28, 16, v28")
            e("v_mul_u32_u24 v9, 18, v28")
            e("v_sub_u32 v9, v0, v9")
            e("s_mul_i32 s3, s%d, 18" % sW)
            e("s_and_b32 s%d, s%d, 7" % (sOFF, sR))
            e("s_mul_i32 s%d, s%d, 72" % (sOFF, sOFF))
            e("s_add_u32 s3, s3, s%d" % sOFF)
            e("v_add_u32 v9, s3, v9")
            e("v_mul_u32_u24 v9, 3456, v9")
            e("v_lshl_add_u32 v9, v28, 7, v9")
            e("v_add_u32 v9, 2048, v9")
            e("v_cmp_gt_u32 vcc, 54, v0")
            e("v_mov_b32 v28, 0x%x" % OOB)
            e("s_nop 0")
            e("v_cndmask_b32 v9, v28, v9, vcc")
        e("s_lshl_b32 s%d, s%d, 6" % (sOFF, sW))
        e("v_add_u32 v29, s%d, v0" % sOFF)
        for i in range(4): e("v_mov_b32 v%d, 0" % (96 + i))
        e("v_lshlrev_b32 v28, 5, v29")
        e("v_add_u32 v28, %d, v28" % TBL)
        e("ds_write_b128 v28, v[96:99]")
        e("ds_write_b128 v28, v[96:99] offset:16")
        for i in range(6):
            a = 90 + i
            e("v_add_u32 v28, %d, v29" % (256 * i))
            e("v_mul_u32_u24 v30, 7282, v28")
            e("v_lshrrev_b32 v30, 16, v30")
            e("v_mul_u32_u24 v31, 3641, v30")
            e("v_lshrrev_b32 v31, 16, v31")
            e("v_add_lshl_u32 v%d, v28, v30, 2" % a)
            e("v_mul_u32_u24 v30, 240, v31")
            e("v_add_u32 v%d, v%d, v30" % (a, a))
            e("v_and_b32 v31, 1, v31")
            e("v_mul_u32_u24 v31, 80, v31")
            e("v_add3_u32 v%d, v%d, v31, s%d" % (a, a, sT)) if False else None
            e("v_add_u32 v%d, v%d, v31" % (a, a))
            e("v_add_u32 v%d, %d, v%d" % (a, TBL, a))
        e("v_cmp_gt_u32 vcc, 16, v29")
        e("v_mov_b32 v28, 150000")
        e("s_nop 0")
        e("v_cndmask_b32 v95, v28, v95, vcc")
        e("s_lshl_b32 s3, s%d, 3" % sW)
        e("v_mov_b32 v111, 0x%x" % OOB)
        for i in range(3):
            e("v_add_u32 v28, %d, v0" % (64 * i))
            e("v_mul_u32_u24 v30, 5462, v28")
            e("v_lshrrev_b32 v30, 16, v30")
            e("v_mul_u32_u24 v31, 12, v30")
            e("v_sub_u32 v31, v28, v31")
            e("v_lshrrev_b32 v28, 3, v30")
            e("v_and_b32 v30, 7, v30")
            e("v_add_u32 v30, s3, v30")
            e("v_mul_u32_u24 v30, 3456, v30")
            e("v_lshl_add_u32 v30, v31, 4, v30")
            e("v_add_u32 v30, %d, v30" % (2048 - 1024 * i))
            e("v_lshl_add_u32 v%d, v28, 7, v30" % (4 + i))
            e("v_mul_u32_u24 v28, 1152, v28")
            e("v_add_u32 v%d, v28, v30" % (1 + i))
        e("v_mul_u32_u24 v7, 3072, v22")
        e("v_and_b32 v28, 1, v22")
        e("v_cmp_eq_u32 s[%d:%d], 1, v28" % (sODD, sODD + 1))
        e("v_lshl_add_u32 v7, v28, 4, v7")
        e("v_lshrrev_b32 v28, 1, v22")
        e("v_lshl_add_u32 v7, v28, 8, v7")
        e("v_bfe_u32 v28, v0, 2, 2")
        e("v_mul_u32_u24 v30, 192, v28")
        e("v_add_u32 v7, v7, v30")
        e("v_bfe_u32 v30, v0, 1, 1")
        e("v_mul_u32_u24 v30, 72, v30")
        e("v_add_u32 v7, v7, v30")
        e("v_and_b32 v30, 1, v0")
        e("v_lshl_add_u32 v7, v30, 5, v7")
        e("s_and_b32 s3, s%d, 63" % sQ)
        e("v_add_u32 v7, s3, v7")
        e("v_add_u32 v8, 0x10000, v7")
        e("v_mul_u32_u24 v18, 960, v22")
        e("v_mul_u32_u24 v30, 40, v28")
        e("v_add_u32 v18, v18, v30")
        e("v_add_u32 v18, %d, v18" % TBL)
        e("v_and_b32 v30, 3, v0")
        e("v_cmp_eq_u32 vcc, v30, v22")
        e("v_mov_b32 v30, %d" % ZER)
        e("v_mov_b32 v31, 320")
        e("v_cndmask_b32 v18, v30, v18, vcc")
        e("v_cndmask_b32 v19, 0, v31, vcc")
        e("v_cmp_eq_u32 vcc, 0, v29")
        e("v_lshlrev_b32 v%d, 4, v0" % VST)
        e("s_nop 0")
        e("v_cndmask_b32 v20, v111, 0, vcc") if False else None
        e("v_mov_b32 v20, 0")
        e("v_cndmask_b32 v20, v111, v20, vcc")
        e("s_lshl_b32 s3, s%d, 5" % sW)
        e("v_add_u32 v28, s3, v23")
        e("v_mul_u32_u24 v10, 112, v28")
        e("v_mul_u32_u24 v28, 14336, v22")
        e("v_add_u32 v10, v10, v28")
        e("v_add_u32 v10, %d, v10" % SCR)
        e("v_bfe_u32 v28, v0, 2, 2")
        e("v_lshl_add_u32 v28, v22, 3, v28")
        e("v_mul_u32_u24 v11, 112, v28")
        e("v_and_b32 v28, 3, v0")
        e("v_lshl_add_u32 v11, v28, 3, v11")
        e("s_mul_i32 s3, s%d, 14336" % sW)
        e("s_add_u32 s3, s3, %d" % SCR)
        e("v_add_u32 v11, s3, v11")
        e("v_lshlrev_b32 v12, 4, v0")
    def touch(sec): return "buffer_load_dword v13, v9, s[%d:%d], s%d offen offset:%d %s" % (SW1, SW1 + 3, sQ, sec * 1152, tf)
    AT = opt.get("atouch", [[1, 2], [0], []])
    def phil():
        e("s_mul_i32 s95, s%d, 5184" % sS)
        e("v_lshlrev_b32 v110, 2, v29")
        e("v_add_u32 v109, 4096, v110")
        for i in range(6):
            e("buffer_load_dword a%d, v%d, s[%d:%d], s95 offen offset:%d" % (244 + i, 110 if i < 4 else 109, SPHI, SPHI + 3, (i % 4) * 1024), "phi")
    def late():
        if TOUCH:
            for sec in AT[0]: e(touch(sec))
    import re
    sv = (g.lines, list(g.vm), list(g.lg)); g.lines = []
    early()
    for i in range(6): e("v_accvgpr_write_b32 a%d, v%d" % (250 + i, 90 + i))
    fill = [re.sub(r"\bs3\b", "s96", re.sub(r"\bs%d\b" % sOFF, "s95", l.strip())) for l in g.lines]
    g.lines, g.vm, g.lg = sv
    pipe.qthr = 3
    prologue(g, pipe, afterbar=late, postc=phil, fill=fill, var=True, nfirst=opt.get('anfirst', 6))
    e("v_and_b32 v28, 1, v0")
    e("v_cmp_eq_u32 vcc, 1, v28")
    e("v_and_b32 v28, 2, v0")
    e("v_cmp_eq_u32 s[54:55], 2, v28")
    e("v_lshrrev_b32 v28, 2, v23")
    e("v_lshl_add_u32 v28, v28, 4, v23")
    e("v_lshlrev_b32 v28, 2, v28")
    e("s_nop 0")
    for tt in range(2):
        d = 96 + 4 * tt
        e("v_cndmask_b32 v%d, v%d, v%d, vcc" % (d, d, d + 1))
        e("v_cndmask_b32 v%d, v%d, v%d, vcc" % (d + 2, d + 2, d + 3))
        e("v_cndmask_b32 v%d, v%d, v%d, s[54:55]" % (24 + tt, d, d + 2))
        e("ds_bpermute_b32 v%d, v28, v%d" % (16 + tt, 24 + tt))
    rnd = ["v_cvt_pk_bf16_f32 v26, v16, v17", "v_lshlrev_b32 v16, 16, v26", "v_and_b32 v17, 0xffff0000, v26"]
    VAR = ["s_mov_b32 s%d, 0x3ae38e39" % sT]
    VAR += ["v_mul_f32 v%d, v%d, v%d" % (14 + tt, 14 + tt, 14 + tt) for tt in range(2)]
    VAR += ["v_fma_f32 v%d, v%d, s%d, -v%d" % (16 + tt, 16 + tt, sT, 14 + tt) for tt in range(2)]
    VAR += ["v_max_f32 v%d, 0, v%d" % (16 + tt, 16 + tt) for tt in range(2)] + rnd
    VAR += ["v_add_f32 v%d, 0x3727c5ac, v%d" % (16 + tt, 16 + tt) for tt in range(2)] + rnd
    VAR += ["v_sqrt_f32 v%d, v%d" % (16 + tt, 16 + tt) for tt in range(2)] + ["s_nop 0"] + rnd
    VAR += ["v_mul_f32 v%d, v%d, v%d" % (14 + tt, 16 + tt, 16 + tt) for tt in range(2)]
    VAR += ["v_accvgpr_write_b32 a%d, v%d" % (240 + tt, 14 + tt) for tt in range(2)]
    VAR += ["v_rcp_f32 v%d, v%d" % (16 + tt, 16 + tt) for tt in range(2)] + ["s_nop 0"]
    VAR += ["v_mul_f32 v%d, 0x3fb8aa3b, v%d" % (14 + tt, 16 + tt) for tt in range(2)]
    TW = [c1(lambda: g.wait_vm("phi"))]
    for i in range(6): TW += ["v_accvgpr_read_b32 v%d, a%d" % (24 + i % 4, 250 + i), ("ds_write_b32 v%d, a%d" % (24 + i % 4, 244 + i), "tw")]
    TW += [Hook(before=lambda: g.wait_lg("tw"))]
    g.stamp()
    PKK = [112, 124]; P = [136, 156]; ROW = [176, 204]; E = 232; FA = 176
    def head(rho):
        e("s_nop 3")
        for tt in range(2):
            for i in (10, 11): e("v_mov_b32 v%d, 0" % (PKK[tt] + i))
        for tt in range(2): put(g, pack20(ACC + tt * 20, PKK[tt]))
        g.wait_lg(("phf", rho))
        V = ["v_mov_b32 v28, 0x3f80"]
        for tt in range(2):
            s = ACC + (2 + tt) * 20
            put(g, ["v_pk_mul_f32 %s, %s, v[16:17] op_sel:[0,%d] op_sel_hi:[1,%d]" % (vr(s + i, 2), vr(s + i, 2), tt, tt) for i in range(0, 20, 2)])
            V += pack20(s, ROW[tt] + 18)
            V += ["v_cndmask_b32 v%d, v%d, v28, s[%d:%d]" % (ROW[tt] + 18, ROW[tt] + 18, sODD, sODD + 1),
                  "v_cndmask_b32 v%d, v28, v%d, s[%d:%d]" % (ROW[tt] + 27, ROW[tt] + 27, sODD, sODD + 1)]
        e("s_nop 0")
        weave(g, phi_mfma(PKK, P, FA), V)
    def post(rho):
        L = []
        for tt in range(2):
            L += softmax(P[tt], ROW[tt], tt, E)
            L += [("ds_write_b128 v10, %s offset:%d" % (vr(ROW[tt] + 4 * i, 4), tt * 16 * 112 + 16 * i), ("sw", rho)) for i in range(7)]
        L += ["v_cmp_eq_u32 vcc, 0, v22", "v_cmp_gt_u32 s[54:55], 4, v23", "v_mov_b32 v28, 0x%x" % OOB,
              "s_add_u32 s%d, s%d, %d" % (sT, sKVP, rho * 4 * 16 * 2944),
              "v_cndmask_b32 v25, v28, v12, vcc", "v_lshl_add_u32 v26, v22, 2, v23", "v_lshlrev_b32 v26, 4, v26", "v_cmp_gt_u32 vcc, 2, v22",
              "v_cndmask_b32 v26, v28, v26, s[54:55]", "s_nop 0", "v_cndmask_b32 v27, v28, v26, vcc"]
        L.append(Hook(before=lambda: g.wait_lg(("sw", rho))))
        KF = 136
        for kk in range(4):
            for f in range(5):
                col = 32 * f if f < 3 else 72 + 32 * (f - 3)
                d = KF + (kk * 5 + f) * 4
                L.append(("ds_read_b64_tr_b16 %s, v11 offset:%d" % (vr(d, 2), kk * 32 * 112 + col), ("kr", rho, kk)))
                L.append(("ds_read_b64_tr_b16 %s, v11 offset:%d" % (vr(d + 2, 2), kk * 32 * 112 + col + 4 * 112), ("kr", rho, kk)))
        L.append(Delay(2))
        L.append(c1(lambda: g.wait_lg(("kr", rho, 3))))
        for kk in range(4):
            for a in range(3):
                for b in range(2):
                    L.append(mfma(vr(112 + (a * 2 + b) * 4, 4), vr(KF + (kk * 5 + a) * 4, 4), vr(KF + (kk * 5 + 3 + b) * 4, 4), "0" if kk == 0 else None))
        L.append(Delay(3)); L.append("s_nop 0")
        for a in range(3):
            for b in range(2):
                vo = {(0, 0): 12, (1, 0): 25, (0, 1): 26, (1, 1): 27}[(int(a == 2), b)]
                L.append(("buffer_store_dwordx4 %s, v%d, s[%d:%d], s%d offen offset:%d sc1" % (vr(112 + (a * 2 + b) * 4, 4), vo, SWS, SWS + 3, sT, 2304 + a * 256 if b else a * 1024), "kvst"))
        return L
    DB, DQ = opt.get("dens", [2, 12])
    APZ = opt.get("apause", 25)
    fine = {k: [g.stamp] for k in range(30, 180, 30)} if opt.get("fine") else {}
    ACP = opt.get("acpf", 8192)
    def cpf(step, extra=0):
        d = dict(fine)
        if ACP:
            for k in range(5, 160, step): d.setdefault(k, []).append(code_pf())
            for n in range(extra): d.setdefault(176, []).extend(["s_add_u32 s101, s101, 2048", code_pf()])
        return d
    if ACP:
        e("s_lshr_b32 s101, s2, 3"); e("s_lshl_b32 s101, s101, 2"); e("s_add_u32 s101, s101, s%d" % sW)
        e("s_lshl_b32 s101, s101, 6"); e("s_add_u32 s101, s101, %d" % ACP)
    pipe.run(0, 18, {1: VAR + xc_copies(), 90: TW + [Dens(1)] + phi_frag_reads(0, FA, ("phf", 0)) + [Mark('pA')]}, lagok=True, pauses=[(0, opt.get('ap0', 0))], urgent=cpf(34))
    g.stamp()
    put(g, flag_lane_offsets(250, 28))
    if opt.get("fpre", 1): e(flag_load(13, 250, sCNT)); e(flag_load(13, 250, 46)); e(flag_load(13, 250, sCQ))
    flag_issue(g, 251, 250, None)
    if TOUCH: put(g, [touch(x) for x in AT[1]])
    head(0)
    g.stamp()
    pipe.run(18, 36, {2: [Dens(DB)] + post(0) + phi_frag_reads(1, FA, ("phf", 1)) + [Mark("postA")]}, lagok=False, urgent=cpf(26), pauses=[(0, APZ)])
    g.stamp()
    flag_check(g, 251, 250, None, 0)
    if TOUCH: put(g, [touch(x) for x in AT[2]])
    head(1)
    g.stamp()
    L1 = ["s_mul_i32 s96, s%d, 25" % sW, "v_add_u32 v28, s96, v0", "v_mul_u32_u24 v31, 3277, v28", "v_lshrrev_b32 v31, 16, v31",
          "v_mul_u32_u24 v29, 20, v31", "v_sub_u32 v29, v28, v29", "s_and_b32 s96, s%d, 1" % sR, "s_mul_i32 s96, s96, 5",
          "v_add_u32 v31, s96, v31", "v_cmp_gt_u32 vcc, 25, v0", "v_cmp_gt_u32 s[54:55], 9, v31",
          "v_cmp_gt_u32 s[56:57], 16, v29", "v_lshlrev_b32 v24, 8, v31", "v_lshlrev_b32 v25, 6, v31", "v_add_u32 v25, 2048, v25",
          "v_cndmask_b32 v24, v25, v24, s[56:57]", "v_lshl_add_u32 v24, v29, 4, v24",
          "v_mul_u32_u24 v25, 160, v31", "v_lshl_add_u32 v25, v29, 3, v25",
          "v_mov_b32 v28, 0x%x" % OOB, "v_cndmask_b32 v24, v28, v24, vcc", "v_cndmask_b32 v24, v28, v24, s[54:55]", "v_cndmask_b32 v12, v28, v25, vcc",
          "s_lshl_b32 s96, s%d, 3" % sS, "s_lshr_b32 s95, s%d, 1" % sR, "s_add_u32 s96, s96, s95",
          "s_mul_i32 s%d, s96, %d" % (sT, 16 * 2944), "s_add_u32 s%d, s%d, 0x%x" % (sT, sT, WS_KVP),
          "s_mul_i32 s95, s96, 1600", "s_add_u32 s95, s95, 0x%x" % WS_KVF]
    KVL = SCR; KZ = SCR + 13312
    KS = []
    def ks_setup(e=KS.append):
        e("s_lshl_b32 s96, s%d, 6" % sW)
        e("v_add_u32 v28, s96, v0")
        e("v_lshlrev_b32 v224, 4, v28")
        e("v_lshlrev_b32 v225, 3, v28")
        e("v_add_u32 v225, %d, v225" % KZ)
        e("v_mov_b32 v226, 0"); e("v_mov_b32 v227, 0")
        e("ds_write_b64 v225, v[226:227]")
        e("v_cmp_gt_u32 vcc, 32, v28")
        e("v_mov_b32 v230, 0x%x" % OOB)
        e("s_mov_b32 s%d, %d" % (sT2, KVL))
        e("v_cndmask_b32 v230, v230, v224, vcc")
        for k in range(4):
            d = 252 + k
            e("v_add_u32 v29, %d, v28" % (256 * k))
            e("v_mul_u32_u24 v31, 6554, v29")
            e("v_lshrrev_b32 v31, 16, v31")
            e("v_mul_u32_u24 v%d, 10, v31" % d)
            e("v_sub_u32 v%d, v29, v%d" % (d, d))
            e("v_mul_u32_u24 v%d, 160, v%d" % (d, d))
            e("v_lshl_add_u32 v%d, v31, 3, v%d" % (d, d))
            e("v_mul_u32_u24 v31, 6554, v31")
            e("v_lshrrev_b32 v31, 16, v31")
            e("v_mul_u32_u24 v31, 1520, v31")
            e("v_add3_u32 v%d, v%d, v31, s%d" % (d, d, sT2))
        e("v_add_u32 v29, 8192, v255")
        e("v_cndmask_b32 v255, v29, v255, vcc")
        e("s_mul_i32 s%d, s%d, 12800" % (sT2, sS))
        e("s_add_u32 s%d, s%d, 0x%x" % (sT2, sT2, WS_KVF))
        e("v_lshrrev_b32 v28, 2, v23")
        e("v_cmp_eq_u32 s[54:55], v28, v22")
        e("v_mul_u32_u24 v228, 1600, v22")
        e("v_and_b32 v28, 3, v23")
        e("v_mul_u32_u24 v28, 80, v28")
        e("v_add_u32 v228, v228, v28")
        e("v_add_u32 v228, %d, v228" % KVL)
        e("v_add_u32 v229, 6400, v228")
        e("v_mov_b32 v28, %d" % KZ)
        e("v_cndmask_b32 v228, v28, v228, s[54:55]")
        e("v_cndmask_b32 v229, v28, v229, s[54:55]")
    ks_setup()
    L1L = []
    for p in range(16):
        L1L.append(("buffer_load_dwordx4 %s, v24, s[%d:%d], s%d offen sc1" % (vr(160 + 4 * p, 4), SWS, SWS + 3, sT), ("l1", p)))
        if p < 15: L1L.append("s_add_u32 s%d, s%d, 2944" % (sT, sT))
    S = [lambda: g.wait_vm(("l1", 15))]
    for p in range(1, 16): S += ["v_add_f32 v%d, v%d, v%d" % (160 + i, 160 + i, 160 + 4 * p + i) for i in range(4)]
    S += ["v_cvt_pk_bf16_f32 v160, v160, v161", "v_cvt_pk_bf16_f32 v161, v162, v163",
          ("buffer_store_dwordx2 v[160:161], v12, s[%d:%d], s95 offen sc1" % (SWS, SWS + 3), "kvf")]
    INQ = opt.get('inq', 1)
    Lq = [Dens(DQ)] + post(1) + [Mark("postB"), Dens(2)] + L1 + [Dens(0), Delay(opt.get("d1", 12)),
          Hook(before=lambda: g.wait_vm("kvst"), after=lambda: signal(g, 28, 20, 63, 0)), Mark("sigA"), Dens(1)] + phi_frag_reads(0, FA, ("phf", 2))
    Lq += [Delay(opt.get("d2", 0)), lambda: flag_issue(g, 251, 250, sCNT), Mark("issA"), Delay(opt.get("d3", 20)), Hook(before=lambda: flag_check(g, 251, 250, sCNT, 0xffff)), Mark("chkA"), Dens(2)] + L1L + [Mark("l1")] + KS + ([Mark("ks")] + S + [Mark("sum")] if INQ else [])
    pipe.run(36, 54, {2: Lq}, lagok=False, urgent=cpf(12), pauses=[(0, opt.get("apq", 0))])
    if opt.get("verbose"): print(pipe.when)
    g.stamp()
    PQ = [[112, 124], [136, 148]]; PHQ = ACC; E = 164
    put(g, phi_frag_reads(1, 0, ("phf", 3)))
    def packq(rho):
        L = []
        for tt in range(2):
            L += ["v_mov_b32 v%d, 0" % (PQ[rho][tt] + i) for i in (10, 11)] + pack20(ACC + (rho * 2 + tt) * 20, PQ[rho][tt])
        return L
    put(g, packq(0))
    g.wait_lg(("phf", 2))
    blk = lambda rho: [ACC + (rho * 2) * 20, ACC + (rho * 2 + 1) * 20]
    weave(g, phi_mfma(PQ[0], blk(0), FA), packq(1) + [lambda: g.wait_lg(("phf", 3))])
    weave(g, phi_mfma(PQ[1], blk(1), 0), [] if INQ else S)
    SM = [(0, 0), (0, 1), (1, 0), (1, 1)]
    n1, n2, n3 = opt.get("pq", [0, 2, 3])
    for n, (rho, tt) in enumerate(SM + [(None, None)]):
        if n == n1:
            g.wait_vm("kvf"); e("s_barrier"); signal(g, 28, 20, 63, 512)
        if n == n2: flag_issue(g, 251, 250, 46)
        if n == n3:
            g.stamp()
            flag_check(g, 251, 250, 46, 0xffff)
            e("s_barrier")
            g.stamp()
            for k in range(4):
                e("buffer_load_dwordx4 %s, v%d, s[%d:%d], s%d offen sc1" % (vr(232 + 4 * k, 4), 224 if k < 3 else 230, SWS, SWS + 3, sT2), ("kvl", k))
                if k < 3: e("s_add_u32 s%d, s%d, 4096" % (sT2, sT2))
        if rho is not None: put(g, softmax(blk(rho)[tt], blk(rho)[tt], tt, E))
    for k in range(4):
        g.wait_vm(("kvl", k))
        e("ds_write_b64 v%d, %s" % (252 + k, vr(232 + 4 * k, 2)))
        e("ds_write_b64 v%d, %s offset:80" % (252 + k, vr(234 + 4 * k, 2)))
    e("s_waitcnt lgkmcnt(0)")
    e("s_barrier")
    g.stamp()
    def kva(rho, to, ks):
        i = rho * 25 + to * 5 + ks
        return 4 * i if i < 36 else 176 + 4 * (i - 36)
    NUM = 112
    grp = [(rho, to) for rho in range(2) for to in range(5)]
    def kreads(k):
        rho, to = grp[k]
        return [("ds_read_b128 %s, v%d offset:%d" % (ar(kva(rho, to, ks), 4), 228 + rho, to * 320 + ks * 16), ("kva", k)) for ks in range(5)]
    def ocalc(rho):
        L = []
        for tt in range(2):
            s = NUM + (rho * 2 + tt) * 20; o = OB + 20 * tt + 10 * rho
            L += ["v_cndmask_b32 v24, v%d, v%d, s[%d:%d]" % (s + 18, s, sODD, sODD + 1), "v_add_f32 v24, 0x358637bd, v24", "v_rcp_f32 v24, v24", "s_nop 0",
                  "v_mul_f32 v24, v24, v%d" % (26 + tt)]
            if rho: L += ["v_pk_mul_f32 %s, %s, v[24:25] op_sel_hi:[1,0]" % (vr(s + i, 2), vr(s + i, 2)) for i in range(0, 20, 2)]
            else: L += ["v_mul_f32 v%d, v%d, v24" % (s + i, s + i) for i in range(20)]
            L += pack20(s, o)
            L += ["v_cndmask_b32 v%d, v%d, 0, s[%d:%d]" % (o, o, sODD, sODD + 1), "v_cndmask_b32 v%d, 0, v%d, s[%d:%d]" % (o + 9, o + 9, sODD, sODD + 1)]
        return L
    put(g, kreads(0) + kreads(1))
    for tt in range(2): e("v_accvgpr_read_b32 v%d, a%d" % (26 + tt, 240 + tt))
    oc = ocalc(0)
    for k, (rho, to) in enumerate(grp):
        g.wait_lg(("kva", k))
        ms = [mfma(vr(NUM + (rho * 2 + tt) * 20 + 4 * to, 4), ar(kva(rho, to, ks), 4), vr(PHQ + (rho * 2 + tt) * 20 + 4 * ks, 4), "0" if ks == 0 else None)
              for ks in range(5) for tt in range(2)]
        fill = kreads(k + 2) if k + 2 < 10 else []
        if k >= 6:
            n = 20 - len(fill) - 1; fill = fill + oc[:n]; oc = oc[n:]
        weave(g, ms, fill)
    put(g, oc)
    e("s_nop 7")
    put(g, ocalc(1))
    g.stamp()
    for tt in range(2): e("v_rcp_f32 v%d, v%d" % (26 + tt, 26 + tt))
    e("s_lshl_b32 s%d, s%d, 2" % (sT, sR))
    e("s_add_u32 s%d, s%d, s%d" % (sT, sT, sS))
    e("s_lshl_b32 s%d, s%d, 2" % (sT, sT))
    e("s_add_u32 s%d, s%d, s%d" % (sT, sT, sW))
    e("s_lshl_b32 s%d, s%d, 7" % (sT, sT))
    e("s_add_u32 s%d, s%d, 0x%x" % (sT, sT, WS_RS2))
    e("v_cmp_gt_u32 vcc, 16, v0")
    e("v_lshlrev_b32 v28, 2, v0")
    e("v_mov_b32 v29, 0x%x" % OOB)
    e("v_cndmask_b32 v28, v29, v28, vcc")
    for tt in range(2): e("buffer_store_dword v%d, v28, s[%d:%d], s%d offen offset:%d sc1" % (26 + tt, SWS, SWS + 3, sT, 64 * tt))
    for u in range(5):
        if u % 2 == 0: e("s_add_u32 s%d, s%d, %d" % (sT, sOXB, u * 2048))
        for tt in range(2):
            e("buffer_store_dwordx4 %s, v%d, s[%d:%d], s%d offen offset:%d sc1" % (vr(OB + 20 * tt + 4 * u, 4), VST, SWS, SWS + 3, sT, ((u & 1) * 2 + tt) * 1024))
    e("s_waitcnt vmcnt(0)")
    e("s_barrier")
    signal(g, 28, 20, sCQ, 48)
    g.stamp()
```

```python
import sys, re, json
from asmlib import *
import hazard
BASE = "parallel_sum__linear_kernel_hedgehog__glu_gated_reglu__prompt"
K1 = BASE + "_kernel"
K2 = "reduce_kernel"

PSZ = 2048 * 576 * 2
WS_HX = 0x1000000
WS_OX = 0x2200000
WS_RS2 = 0x2500000
WS_KVP = 0x2510000
WS_KVF = 0x2700000
WS_FLG = 0x2780000
WS_TS = 0x2800000
WS_BYTES = 0x10000000
SX, SW1, SW2, SWS, SDBG, SPHI = 8, 12, 16, 20, 24, 28
sW, sR, sS, sT, sOFF, sM0W, sB1, sB2, sST, sT2 = 32, 33, 34, 35, 36, 37, 38, 39, 40, 41
sCNT = 52
OOB = 0x40000000
RING = 144
NB = 8

class G(Asm):
    def __init__(self, opt):
        super().__init__()
        self.opt = opt
        self.vm = []
        self.lg = []
        self.nts = 0
        self.sv = 30
    def e(self, s, tag=None):
        if s.startswith(("buffer_", "global_")): self.vm.append(tag)
        if s.startswith("ds_"): self.lg.append(tag)
        super().e(s)
    def vm_n(self, tag):
        idx = [i for i, t in enumerate(self.vm) if t == tag]
        assert idx, tag
        return len(self.vm) - 1 - idx[-1]
    def wait_vm(self, tag):
        n = min(self.vm_n(tag), 63)
        self.e("s_waitcnt vmcnt(%d)" % n)
    def wait_lg(self, tag):
        idx = [i for i, t in enumerate(self.lg) if t == tag]
        n = min(len(self.lg) - 1 - idx[-1], 15)
        self.e("s_waitcnt lgkmcnt(%d)" % n)
    def stamp(self):
        e = self.e
        if self.opt.get("amp") is not None:
            if self.nts in (0, self.opt["amp"]):
                e("s_memrealtime s[92:93]"); e("s_waitcnt lgkmcnt(0)")
                e("s_mov_b32 s%d, s92" % (100 if self.nts == 0 else 94))
            self.nts += 1
            return
        if not self.opt.get("ts"): return
        e("s_memtime s[90:91]"); e("s_memrealtime s[92:93]")
        e("s_waitcnt lgkmcnt(0)")
        if self.opt.get("dbgts") is not None:
            sel = self.opt.get("dbgsel", list(range(15)))
            if self.nts in sel:
                e("v_mov_b32 v30, s92")
                e("buffer_store_dword v30, off, s[%d:%d], s94 offset:%d" % (SDBG, SDBG + 3, 4 + 4 * sel.index(self.nts)))
            self.nts += 1
            return
        for k, sg in enumerate((90, 92)):
            e("v_mov_b32 v%d, s%d" % (self.sv, sg))
            e(("buffer_store_dword v%d, off" % self.sv) + ", s[%d:%d], s94 offset:%d" % (SWS, SWS + 3, 8 * self.nts + 4 * k))
        self.nts += 1

def mfma(d, a, b, c=None):
    return "v_mfma_f32_16x16x32_bf16 %s, %s, %s, %s" % (d, a, b, d if c is None else c)

class Stage:
    def __init__(self, lo, hi, pre, dmas, frags, gate=None):
        dmas = [d if isinstance(d, list) else [d] for d in dmas]
        dmas[0] = list(pre) + dmas[0]
        self.lo, self.hi, self.dmas, self.frags, self.gate = lo, hi, dmas, frags, gate
        self.before = None; self.after = None

class Pipe:
    def __init__(self, g, stages, D=6, BE=1):
        self.g, self.st, self.D, self.BE = g, stages, D, BE
        self.next = 0
        self.safe = -1
        self.q = []
        self.open = set()
        self.fi = 0
        self.done = -1
        self.qthr = g.opt.get("qthr", 3)
        self.when = {}
    def can(self, m):
        s = self.st[m]
        if s.gate is not None and s.gate not in self.open: return False
        return all(k <= self.safe for k in range(m) if self.st[k].lo < s.hi and s.lo < self.st[k].hi)
    def refill(self):
        while self.next < len(self.st) and self.can(self.next):
            for d in self.st[self.next].dmas: self.q.append([list(d), ("st", self.next)])
            self.next += 1
    def pop(self):
        if not self.q: return []
        t, tag = self.q.pop(0)
        return [(x, tag) for x in t]
    def flush(self):
        while self.q:
            for t, tag in self.pop(): self.g.e(t, tag)
    def enter(self, n, last, hook=None):
        g = self.g
        late = 0
        while any(tag[1] <= last for _, tag in self.q):
            late += 1
            for t, tg in self.pop(): g.e(t, tg)
        if late and n > 2: print("warning: %d DMA issued late for stage %d" % (late, n))
        assert self.next > last, (n, last)
        for k in range(n, last + 1):
            if self.st[k].before: self.st[k].before()
        if hook and hook.before: hook.before()
        g.wait_vm(("st", last)); g.e("s_barrier")
        if hook and hook.after: hook.after()
        for k in range(n, last + 1):
            if self.st[k].after: self.st[k].after()
        self.safe = max(self.safe, self.done)
        self.refill()
    def run(self, s0, s1, extra=None, pauses=(), groups=None, urgent=None, lagok=True):
        g, D = self.g, self.D
        WP = g.opt.get("wp", 4)
        pend = []; urg = []; urgent = urgent or {}; cur = [0]; dens = [0]
        extra = extra or {}
        fl = [(n, k, f) for n in range(s0, s1) for k, f in enumerate(self.st[n].frags)]
        if groups is None: groups = list(range(s0, s1, self.BE))
        gend = {a: (groups[i + 1] if i + 1 < len(groups) else s1) - 1 for i, a in enumerate(groups)}
        base = self.fi
        needbar = lambda j: j < len(fl) and fl[j][1] == 0 and fl[j][0] in gend
        def reads(j):
            buf = RING + 4 * ((base + j) % NB)
            for t in fl[j][2][0](buf): g.e(t, ("fr", base + j))
        def wl(i):
            w = min(i + WP - 1, len(fl) - 1)
            g.wait_lg(("fr", base + w))
            self.done = max(self.done, fl[w][0] if fl[w][1] == len(self.st[fl[w][0]].frags) - 1 else fl[w][0] - 1)
        def cost(it):
            if isinstance(it, (Mark, Dens)): return 0
            if isinstance(it, Hook): return 99
            if isinstance(it, Delay):
                if it.until is None: it.until = cur[0] + it.n
                return 0 if cur[0] >= it.until else 99
            if callable(it): return getattr(it, "cost", 2)
            if isinstance(it, list): return min(len(it), 2)
            t = it[0] if isinstance(it, tuple) else it
            return 2 if t.startswith(("buffer_", "global_", "v_mfma", "v_exp", "v_rcp")) else 1
        def emit(it, i):
            if isinstance(it, Mark): self.when[it.name] = i
            elif isinstance(it, Dens): dens[0] = it.n
            elif isinstance(it, Delay):
                if i >= len(fl): g.e("s_nop 7")
            elif isinstance(it, Hook):
                if it.before: it.before()
                g.e("s_barrier")
                if it.after: it.after()
            elif callable(it): it()
            elif isinstance(it, list):
                for x in it: g.e(x)
            elif isinstance(it, tuple): g.e(it[0], it[1])
            else: g.e(it)
        for j in range(min(D, len(fl))):
            if needbar(j): self.enter(fl[j][0], gend[fl[j][0]])
            reads(j)
        if needbar(D): self.enter(fl[D][0], gend[fl[D][0]])
        wl(0)
        since = 9
        for i, (n, k, f) in enumerate(fl):
            ms = f[1](RING + 4 * ((base + i) % NB))
            g.e(ms[0])
            if i + D < len(fl): reads(i + D)
            g.e(ms[1])
            pend += [(i, x) for x in extra.get(i, [])]; urg += urgent.get(i, [])
            since += 1; cur[0] = i
            wdue = (i + 1) % WP == 0 and i + 1 < len(fl)
            if needbar(i + 1 + D):
                if wdue: wl(i + 1)
                hook = pend.pop(0)[1] if pend and isinstance(pend[0][1], Hook) else None
                self.enter(fl[i + 1 + D][0], gend[fl[i + 1 + D][0]], hook)
                continue
            paused = any(a <= i < b for a, b in pauses)
            if urg and not wdue:
                slots = 2
                while urg and cost(urg[0]) <= slots:
                    it = urg.pop(0); slots -= cost(it); emit(it, i)
                continue
            used = False
            if self.q and len(self.q[0][0]) > 1:
                if wdue: wl(i + 1)
                while len(self.q[0][0]) > 1: g.e(self.q[0][0].pop(0))
                used = True
            elif self.q and not wdue and not paused and since >= (2 if len(self.q) > self.qthr and not any(b <= i < b + g.opt.get("slow", 0) for a, b in pauses if b > a) else self.g.opt.get("dcad", 3)):
                it = self.q.pop(0); g.e(it[0][0], it[1]); since = 0
                used = True
            if used and not dens[0]: continue
            slots = 0 if used else 2
            if wdue and not used: wl(i + 1); slots = 1
            if dens[0]: slots += dens[0]
            elif lagok and pend and i - pend[0][0] > g.opt.get("lag", 30): slots += 1
            while pend and cost(pend[0][1]) <= slots:
                it = pend.pop(0)[1]; slots -= cost(it); emit(it, i)
        for it in urg + [x[1] for x in pend]: emit(it, len(fl))
        self.fi = base + len(fl)
    def drained(self, upto):
        self.safe = max(self.safe, upto); self.refill()

class Mark:
    def __init__(self, name): self.name = name
class Hook:
    def __init__(self, before=None, after=None): self.before, self.after = before, after
class Delay:
    def __init__(self, n): self.n = n; self.until = None
class Dens:
    def __init__(self, n): self.n = n

def group_scc(ops):
    out = []
    for op in ops:
        if isinstance(op, str) and op.startswith("s_cselect"): out[-1] = [out[-1], op]
        else: out.append(op)
    return out

def spread(ops, lo, hi, extra):
    ops = group_scc(ops); n = hi - lo
    for k, op in enumerate(ops):
        extra.setdefault(lo + k * n // len(ops), []).append(op)

def lane_consts(g):
    e = g.e
    e("v_lshrrev_b32 v22, 4, v0")
    e("v_and_b32 v23, 15, v0")

def x_setup(g):
    e = g.e
    e("v_lshrrev_b32 v104, 3, v0")
    e("v_mul_u32_u24 v104, 1152, v104")
    e("v_and_b32 v105, 7, v0")
    e("v_xor_b32 v105, v105, v22")
    e("v_lshl_add_u32 v104, v105, 4, v104")
    e("s_lshl_b32 s4, s%d, 2" % sR)
    e("s_add_u32 s4, s4, s%d" % sW)
    e("s_mul_i32 s4, s4, 36864")
    e("s_mul_i32 s5, s%d, 36864" % sW)
    e("s_lshr_b32 s60, s2, 6")
    e("s_and_b32 s6, s2, 64")
    e("v_xor_b32 v104, s6, v104")
    e("v_xor_b32 v105, 64, v104")

def x_dma(g, o, j):
    e = g.e
    if j == 0:
        e("s_add_u32 s6, s60, %d" % o)
        e("s_and_b32 s6, s6, 3")
        e("s_mulk_i32 s6, 9216")
        e("s_add_u32 m0, s5, s6")
        e("s_add_u32 s7, s4, s6")
    else:
        e("s_addk_i32 m0, 1024")
        e("s_addk_i32 s7, 128")
    e("buffer_load_dwordx4 v%d, s[%d:%d], s7 offen %s lds" % (104 + (o & 1), SX, SX + 3, g.opt.get("xflags", "")), ("x", j))

def prologue(g, pipe, XV=112, early=None, afterbar=None, fill=(), var=False, nfirst=8, mid=None, postc=None):
    e, opt = g.e, g.opt
    xf = opt.get("xflags", "")
    NC = opt.get("xcommon", 1)
    nf = 9 * (4 - NC)
    for o in range(NC, 4):
        for j in range(9):
            x_dma(g, o, j)
            k = (o - NC) * 9 + j
            if mid and o * 9 + j == mid[0]: mid[1]()
            for it in fill[k * len(fill) // nf:(k + 1) * len(fill) // nf]:
                for x in (it if isinstance(it, list) else [it]): e(x, "fill")
    if early: early()
    e("v_lshrrev_b32 v106, 3, v23")
    e("v_mul_u32_u24 v106, 9216, v106")
    e("v_and_b32 v107, 7, v23")
    e("v_lshl_add_u32 v106, v107, 7, v106")
    e("v_lshrrev_b32 v107, 1, v23")
    e("v_xor_b32 v107, v107, v22")
    e("v_lshl_add_u32 v106, v107, 4, v106")
    e("v_add_u32 v106, s5, v106")
    e("v_xor_b32 v107, 64, v106")
    for i in range(4): e("v_mov_b32 v%d, 0x3f803f80" % (80 + i))
    for i in (72, 73, 76, 77): e("v_mov_b32 v%d, 0" % i)
    e("v_lshrrev_b32 v108, 2, v23")
    e("v_cmp_eq_u32 vcc, v108, v22")
    e("v_and_b32 v108, 1, v23")
    e("v_lshlrev_b32 v108, 4, v108")
    e("v_mov_b32 v78, 0x3f80")
    e("v_lshlrev_b32 v78, v108, v78")
    e("v_cndmask_b32 v78, 0, v78, vcc")
    e("v_and_b32 v108, 2, v23")
    e("v_cmp_eq_u32 vcc, 0, v108")
    e("s_nop 1")
    e("v_cndmask_b32 v74, 0, v78, vcc")
    e("v_cndmask_b32 v75, v78, 0, vcc") if False else None
    e("v_sub_u32 v75, v78, v74")
    X = lambda tt, ks: XV + (ks * 2 + tt) * 4
    g.stamp()
    for j in range(10):
        if j < 9:
            g.wait_vm(("x", j))
            for ks in (2 * j, 2 * j + 1):
                for tt in range(2):
                    e("ds_read_b128 %s, v%d offset:%d" % (vr(X(tt, ks), 4), 106 + (ks & 1), tt * 18432 + j * 1024), ("xr", j))
        if j > 0:
            g.wait_lg(("xr", j - 1))
            for ks in (2 * j - 2, 2 * j - 1):
                for tt in range(2):
                    e(mfma(vr(64 + 4 * tt, 4), vr(80, 4), vr(X(tt, ks), 4), "0" if ks == 0 else None))
    e("s_barrier")
    g.stamp()
    pipe.open.add("x"); pipe.refill()
    for _ in range(nfirst):
        for t, tag in pipe.pop(): e(t, tag)
    if afterbar: afterbar()
    e("s_nop 3")
    e("s_mov_b32 s%d, 0x%08x" % (sT, 0xbae38e39))
    for tt in range(2): e("v_mul_f32 v%d, s%d, v%d" % (78 + tt, sT, 64 + 4 * tt))
    e("v_cvt_pk_bf16_f32 v108, v78, v79")
    for i in range(4): e("v_lshlrev_b32 v%d, 16, v108" % (64 + i))
    for i in range(4): e("v_and_b32 v%d, 0xffff0000, v108" % (68 + i))
    if var:
        for tt in range(2): e("v_sub_f32 v%d, v%d, v%d" % (14 + tt, 78 + tt, 64 + 4 * tt))
    else: e("s_nop 1")
    for _ in range(opt.get("delay", 0)): e("s_sleep 32")
    fr = [(tt, ks) for ks in range(18) for tt in range(2)]
    LAG = 2
    for k in range(len(fr) + LAG + 1):
        cv = []
        if LAG <= k < len(fr) + LAG:
            tt, ks = fr[k - LAG]; d = 32 + 8 * ((k - LAG) % 4); x = X(tt, ks)
            cv = ["v_cvt_pk_bf16_f32 v%d, v%d, v%d" % (x + i, d + 2 * i, d + 2 * i + 1) for i in range(4)]
        if k < len(fr):
            tt, ks = fr[k]; d = 32 + 8 * (k % 4)
            e(mfma(vr(d, 4), vr(74, 4), vr(X(tt, ks), 4), vr(64 + 4 * tt, 4)))
            if k == LAG: e("s_nop 3")
            for t in cv[:2]: e(t)
            e(mfma(vr(d + 4, 4), vr(72, 4), vr(X(tt, ks), 4), vr(64 + 4 * tt, 4)))
            for t in cv[2:]: e(t)
        else:
            e("s_nop 3")
            for t in cv: e(t)
        if var and k > LAG:
            tt, ks = fr[k - LAG - 1]; x = X(tt, ks)
            e(mfma(vr(96 + 4 * tt, 4), vr(x, 4), vr(x, 4), "0" if ks == 0 else None))
    if postc: postc()
    g.stamp()

def XV0(tt, ks): return vr(112 + (ks * 2 + tt) * 4, 4)
def xc_copies(): return ["v_accvgpr_write_b32 a%d, v%d" % (i, 112 + i) for i in range(144)]
def XC(tt, ks): return ar((ks * 2 + tt) * 4, 4)

def tr_bases(g, dst, rowmul):
    e = g.e
    out = []
    out.append("v_bfe_u32 v28, v0, 2, 2")
    out.append("v_mad_u32_u24 v28, v22, %d, v28" % rowmul)
    out.append("v_lshlrev_b32 v%d, 7, v28" % dst)
    out.append("v_bfe_u32 v28, v0, 3, 2")
    out.append("v_lshl_add_u32 v%d, v28, 5, v%d" % (dst, dst))
    out.append("v_and_b32 v28, 3, v0")
    out.append("v_lshl_add_u32 v%d, v28, 3, v%d" % (dst, dst))
    for t in range(1, 4): out.append("v_xor_b32 v%d, %d, v%d" % (dst + t, 32 * t, dst))
    for grp in (1, 2):
        for t in range(4): out.append("v_add_u32 v%d, 0x%x, v%d" % (dst + 4 * grp + t, grp << 16, dst + t))
    return out

def tr_reads(bases, t, off, second):
    def f(buf):
        o2 = off + second
        assert (off >> 16) == (o2 >> 16)
        b = bases + 4 * (off >> 16) + t
        return ["ds_read_b64_tr_b16 %s, v%d offset:%d" % (ar(buf, 2), b, off & 0xffff),
                "ds_read_b64_tr_b16 %s, v%d offset:%d" % (ar(buf + 2, 2), b, o2 & 0xffff)]
    return f

def store_ops(g, acc, P, c, voff, sbase=None, ntile=4, tag=None):
    ops = ["s_add_u32 s%d, s%d, %d" % (sT2, sST if sbase is None else sbase, c * 4096)]
    for tt in range(2):
        for hf in range(ntile // 2):
            p = P + ((tt * (ntile // 2) + hf) % 2) * 4
            for k in range(2):
                s = acc + ((2 * hf + k) * 2 + tt) * 4
                ops.append("v_cvt_pk_bf16_f32 v%d, v%d, v%d" % (p + 2 * k, s, s + 1))
                ops.append("v_cvt_pk_bf16_f32 v%d, v%d, v%d" % (p + 2 * k + 1, s + 2, s + 3))
            ops.append(("buffer_store_dwordx4 %s, v%d, s[%d:%d], s%d offen offset:%d sc1" % (vr(p, 4), voff, SWS, SWS + 3, sT2, (tt * 2 + hf) * 1024), tag))
    return ops

sNON = 97
def flag_load(vreg, vfl, sline):
    if sline is None: return "buffer_load_dword v%d, v%d, s[%d:%d], 0 offen sc1" % (vreg, vfl, SDBG, SDBG + 3)
    return "buffer_load_dword v%d, v%d, s[%d:%d], s%d offen sc1" % (vreg, vfl, SWS, SWS + 3, sline)

def flag_issue(g, vreg, vfl, sline):
    g.e(flag_load(vreg, vfl, sline), "flag")

def flag_check(g, vreg, vfl, sline, mask, issued=True, sleep=4):
    if g.opt.get("nofl") and sline is not None: return
    e = g.e
    L = g.newlabel("L_poll"); Ld = g.newlabel("L_polld"); Lc = g.newlabel("L_pollc")
    e("s_cmp_lg_u32 s%d, 0" % sW)
    e("s_cbranch_scc1 %s" % Ld)
    e("s_mov_b32 s89, 0x20000")
    if issued:
        g.wait_vm("flag")
        e("s_branch %s" % Lc)
    g.label(L)
    Asm.e(g, flag_load(vreg, vfl, sline))
    e("s_waitcnt vmcnt(0)")
    g.label(Lc)
    if sline is None:
        e("v_readfirstlane_b32 s%d, v%d" % (sNON, vreg))
        e("s_sub_u32 s89, s89, 1")
        e("s_cmp_lg_u32 s%d, 0" % sNON)
    else:
        e("v_cmp_eq_u32 s[98:99], s%d, v%d" % (sNON, vreg))
        e("s_sub_u32 s89, s89, 1")
        m = mask if isinstance(mask, str) else "0x%x" % mask
        e("s_and_b32 s98, s98, %s" % m)
        e("s_cmp_eq_u32 s98, %s" % m)
    e("s_cbranch_scc1 %s" % Ld)
    e("s_sleep %d" % sleep)
    e("s_cmp_lg_u32 s89, 0")
    e("s_cbranch_scc1 %s" % L)
    g.label(Ld)

def flag_lane_offsets(vfl, vtmp):
    return ["s_lshl_b32 s96, s%d, 6" % sW, "v_add_u32 v%d, s96, v0" % vtmp, "v_cmp_gt_u32 vcc, 16, v%d" % vtmp, "v_lshlrev_b32 v%d, 2, v0" % vfl,
            "v_mov_b32 v%d, 0x%x" % (vtmp, OOB), "v_cndmask_b32 v%d, v%d, v%d, vcc" % (vfl, vtmp, vfl)]

def code_pf():
    return ["s_getpc_b64 s[6:7]", "s_load_dword s5, s[6:7], s101"]

def signal(g, vtmp, voff, sword, imm=0):
    g.e("v_mov_b32 v%d, s%d" % (vtmp, sNON))
    g.e("buffer_store_dword v%d, v%d, s[%d:%d], s%d offen offset:%d sc1" % (vtmp, voff, SWS, SWS + 3, sword, imm))

def ffn_role(g):
    e, opt = g.e, g.opt
    wf = opt.get("wflags", "")
    ACC = [32, 96]; H = 160; B1 = 9; PK = 128; VST = 21; BH = 144
    sI, sJ = 42, 43; sKB = 44; sHX = 47; sKO = 53; sKS = 56; sKK = 86; sM0H = 50; sSO = 51; sSS = 59; sWO = 78; sOX = 83; sM0B = 84; sWT = 85
    e("s_sub_u32 s%d, s3, 1" % sI)
    e("s_mov_b32 s%d, s%d" % (sJ, sS))
    e("s_mul_i32 s%d, s%d, 3" % (sS, sJ))
    e("s_add_u32 s%d, s%d, s%d" % (sS, sS, sI))
    e("s_cmp_ge_u32 s%d, 2" % sW)
    e("s_cselect_b32 s%d, s74, s72" % sT)
    e("s_cselect_b32 s%d, s75, s73" % sT2)
    srd(g, SW1, sT, sT2, 576 * 4608 * 2)
    e("s_lshl_b32 s%d, s%d, 12" % (sM0W, sW))
    e("s_mul_i32 s%d, s%d, 768" % (sB1, sS))
    def late_setup():
        o = []; sT = 95
        a = Asm(); srd(a, SW2, 76, 77, 4608 * 576 * 2); srd(a, SPHI, 70, 71, 576 * 576 * 2); a.e('s_mov_b32 s61, s78'); a.e('s_mov_b32 s62, s79')
        o += [l.strip() for l in a.lines]
        o += ["s_lshl_b32 s98, s%d, 6" % sJ, "s_and_b32 s99, s98, 128", "s_xor_b32 s99, s99, 128"]
        for b in range(3):
            o += ["s_add_u32 s%d, s%d, %d" % (sT, sI, b), "s_cmp_ge_u32 s%d, 3" % sT, "s_cselect_b32 s96, 3, 0", "s_sub_u32 s%d, s%d, s96" % (sT, sT),
                  "s_mul_i32 s96, s%d, 3" % sJ, "s_add_u32 s%d, s%d, s96" % (sT, sT),
                  "s_mul_i32 s%d, s%d, %d" % (sKB + b, sT, 384 * 1152), "s_mul_i32 s96, s%d, 384" % sI, "s_add_u32 s%d, s%d, s96" % (sKB + b, sKB + b),
                  "s_add_u32 s%d, s%d, s99" % (sKO + b, sKB + b), "s_add_u32 s%d, s%d, s98" % (sKK + b, sKB + b), "s_xor_b32 s%d, s%d, 64" % (sKS + b, sKK + b),
                  "s_mul_i32 s96, s%d, 12" % sR, "s_add_u32 s%d, s%d, s96" % (sT, sT), "s_lshl_b32 s%d, s%d, 2" % (sT, sT), "s_add_u32 s%d, s%d, s%d" % (sT, sT, sW),
                  "s_mul_i32 s%d, s%d, 24576" % (sHX + b, sT), "s_add_u32 s%d, s%d, 0x%x" % (sHX + b, sHX + b, WS_HX)]
        o += ["s_lshl_b32 s%d, s%d, 2" % (sT, sR), "s_add_u32 s%d, s%d, s%d" % (sT, sT, sJ), "s_lshl_b32 s%d, s%d, 7" % (sCNT, sT), "s_add_u32 s%d, s%d, 0x%x" % (sCNT, sCNT, WS_FLG),
              "s_lshl_b32 s63, s%d, 2" % sI, "s_add_u32 s63, s63, s%d" % sCNT]
        o += ["s_mul_i32 s%d, s%d, %d" % (sST, sJ, PSZ), "s_mul_i32 s%d, s%d, 12288" % (sB2, sI), "s_add_u32 s%d, s%d, s4" % (sB2, sB2),
              "s_add_u32 s%d, s%d, s%d" % (sST, sST, sB2), "s_lshl_b32 s%d, s%d, 11" % (sM0H, sW),
              "s_lshl_b32 s96, s99, 5", "s_add_u32 s%d, s%d, s96" % (sSO, sST),
              "s_xor_b32 s96, s96, 4096", "s_add_u32 s%d, s%d, s96" % (sSS, sST), "s_and_b32 s96, s98, 64", "s_xor_b32 s96, s96, 64",
              "s_lshl_b32 s96, s96, 4", "s_add_u32 s%d, s%d, s96" % (sSS, sSS)]
        o += ["s_lshl_b32 s95, s%d, 2" % sR, "s_add_u32 s95, s95, s%d" % sJ, "s_lshl_b32 s95, s95, 2", "s_add_u32 s95, s95, s%d" % sW,
              "s_mul_i32 s%d, s95, 10240" % sOX, "s_add_u32 s%d, s%d, 0x%x" % (sOX, sOX, WS_OX),
              "s_mul_i32 s%d, s%d, %d" % (sWT, sJ, 144 * 1152), "s_mul_i32 s96, s%d, 384" % sI, "s_add_u32 s%d, s%d, s96" % (sWT, sWT), "s_lshl_b32 s%d, s%d, 10" % (sM0B, sW)]
        for i in range(5):
            d = sWO + i
            o += (["s_lshl_b32 s95, s%d, 2" % sW, "s_add_u32 s95, s95, %d" % i] if i < 4 else ["s_add_u32 s95, s%d, 16" % sW])
            o += ["s_lshr_b32 s96, s95, 1", "s_lshl_b32 s%d, s96, 2" % d, "s_cmp_ge_u32 s96, 5", "s_cselect_b32 s96, 52, 0",
                  "s_add_u32 s%d, s%d, s96" % (d, d), "s_and_b32 s95, s95, 1", "s_mul_i32 s95, s95, 36",
                  "s_add_u32 s%d, s%d, s95" % (d, d), "s_mul_i32 s%d, s%d, 1152" % (d, d), "s_add_u32 s%d, s%d, s%d" % (d, d, sWT)]
        return o
    stages = []; start = [0]
    def slot(n): return ((n + 9) % 10) * 16384
    def push(st): stages.append(st); start.append(start[-1] + len(st.frags))
    for rho in range(6):
        acc = ACC[rho & 1]
        for st in range(9):
            n = len(stages); lo = slot(n)
            pre = ["s_add_u32 m0, s%d, %d" % (sM0W, lo), "s_add_u32 s%d, s%d, %d" % (sOFF, sB1, st * 64 * 9216 + rho * 128)]
            dmas = ["buffer_load_dwordx4 v%d, s[%d:%d], s%d offen offset:%d %s lds" % (1 + i, SW1, SW1 + 3, sOFF, i * 1024, wf) for i in range(4)]
            frags = []
            for kk in range(2):
                ks = 2 * st + kk
                for t in range(4):
                    for mat in range(2):
                        def mf(buf, ks=ks, t=t, mat=mat, acc=acc, XC=(XC if rho else XV0)):
                            order = (0, 1) if mat == 0 else (1, 0)
                            return [mfma(vr(acc + ((t * 2 + mat) * 2 + tt) * 4, 4), ar(buf, 4), XC(tt, ks), "0" if ks == 0 else None) for tt in order]
                        frags.append((tr_reads(B1, t, lo + mat * 8192 + kk * 4096, 512), mf))
            push(Stage(lo, lo + 16384, pre, dmas, frags, None if n == 0 else "x"))
    def hreg(b, u, tt):
        k = (u * 2 + tt) * 4
        if b == 0: return vr(H + k, 4)
        if b == 2: return ar(k, 4)
        if b == 1: return ar(176 + k, 4) if u < 8 else ar(96 + k - 64, 4)
        if u < 2: return ar(128 + k, 4)
        if u < 4: return ar(240 + k - 16, 4)
        return vr(136 + k - 32, 4)
    A2, AO, AS, AK = 32, 64, 96, 112
    def mk(acc, b, u, t, z):
        def mf(buf):
            order = (0, 1) if t % 2 == 0 else (1, 0)
            return [mfma(vr(acc + (t * 2 + tt) * 4, 4), ar(buf, 4), hreg(b, u, tt), "0" if z else None) for tt in order]
        return mf
    def full(b, q, acc):
        lo = slot(len(stages))
        sb, add = (sKB + b, 256) if acc == A2 else (sKO + b, 0)
        pre = ["s_add_u32 m0, s%d, %d" % (sM0W, lo), "s_add_u32 s%d, s%d, %d" % (sOFF, sb, q * 128 * 1152 + add)]
        dmas = ["buffer_load_dwordx4 v%d, s[%d:%d], s%d offen offset:%d %s lds" % (5 + i, SW2, SW2 + 3, sOFF, i * 1024, wf) for i in range(4)]
        frags = [(tr_reads(B1, t, lo + kk * 4096, 2048), mk(acc, b, 4 * q + kk, t, (b, q, kk) == (0, 0, 0))) for kk in range(4) for t in range(4)]
        push(Stage(lo, lo + 16384, pre, dmas, frags, "x"))
    def half(bqs, acc):
        lo = slot(len(stages)); dmas = []; frags = []
        for k, (b, q) in enumerate(bqs):
            p = lo + 8192 * k
            ld = ["buffer_load_dwordx4 v%d, s[%d:%d], s%d offen offset:%d %s lds" % ((25, 22)[i], SW2, SW2 + 3, sOFF, i * 1024, wf) for i in range(2)]
            dmas += [["s_add_u32 m0, s%d, %d" % (sM0H, p), "s_add_u32 s%d, s%d, %d" % (sOFF, (sKS if acc == AS else sKK) + b, q * 128 * 1152), ld[0]], [ld[1]]]
            for kk in range(4):
                for t in range(2):
                    off = p + kk * 2048
                    def rd(buf, off=off, t=t):
                        v = BH + 2 * (off >> 16) + t
                        return ["ds_read_b64_tr_b16 %s, v%d offset:%d" % (ar(buf, 2), v, off & 0xffff), "ds_read_b64_tr_b16 %s, v%d offset:%d" % (ar(buf + 2, 2), v, (off & 0xffff) + 1024)]
                    frags.append((rd, mk(acc, b, 4 * q + kk, t, acc == AS and (b, q, kk) == (0, 0, 0))))
        push(Stage(lo, lo + 16384, [], dmas, frags, "x"))
    def wo(us, acc):
        lo = slot(len(stages)); v = {A2: 1, AO: 2, AS: 3}[acc]
        sel = [(sM0W, lo + i * 1024, sWO + i) for i in range(4)] if len(us) == 4 else [(sM0B, lo, sWO + 4)]
        dmas = [["s_add_u32 m0, s%d, %d" % (m, o), "s_nop 0", "buffer_load_dwordx4 v%d, s[%d:%d], s%d offen %s lds" % (v, SPHI, SPHI + 3, so, wf)] for m, o, so in sel]
        frags = [(tr_reads(B1, t, lo + kk * 4096, 2048), mk(acc, 3, u, t, acc == AS and u == 0 and t >= 2)) for kk, u in enumerate(us) for t in range(4)]
        push(Stage(lo, lo + 16384, [], dmas, frags, "x"))
    Q = lambda q: list(range(4 * q, 4 * q + 4))
    BQ = [(0, 0), (0, 1), (0, 2), (1, 0), (1, 1), (2, 0), (2, 1), (1, 2), (2, 2)]
    first = {}
    S2 = len(stages)
    for n, bq in enumerate(BQ[:7]):
        first[bq] = len(stages)
        full(*bq, A2); full(*bq, AO)
        if n == 3: SH0 = len(stages); half(BQ[0:2], AS); half(BQ[2:4], AS)
        if n == 6: half(BQ[4:6], AS); half(BQ[6:7], AS)
    SL = len(stages); first[(1, 2)] = SL; first[(2, 2)] = SL + 1; SO = SL + 2
    for acc in (A2, AO):
        full(1, 2, acc); full(2, 2, acc); wo(Q(0), acc); wo([4], acc)
    half(BQ[7:9], AS); wo(Q(0), AS); wo([4], AS)
    SK = len(stages)
    for n in range(0, 9, 2): half(BQ[n:n + 2], AK)
    pipe = Pipe(g, stages, opt.get("D", 7), 2)
    TOUCH = opt.get("touch", 1); tf = opt.get("tflags", "")
    def touch1(rho): return ["buffer_load_dword v31, v29, s[%d:%d], s%d offen offset:%d %s" % (SW1, SW1 + 3, sB1, rho * 128, tf)]
    def touch2(b):
        if b == 3: return ["buffer_load_dword v31, v26, s[%d:%d], s%d offen %s" % (SPHI, SPHI + 3, sWT, tf)]
        if opt.get("t2c", 0):
            return [["s_add_u32 s3, s60, %d" % (b * 96 * 4608), "buffer_load_dword v31, v30, s[%d:%d], s3 offen %s" % (SW2, SW2 + 3, tf)]]
        return ["buffer_load_dword v31, v26, s[%d:%d], s%d offen %s" % (SW2, SW2 + 3, sKB + b, tf)]
    def early():
        e("v_lshrrev_b32 v28, 3, v0")
        e("s_and_b32 s%d, s%d, 1" % (sOFF, sW))
        e("s_lshl_b32 s%d, s%d, 5" % (sOFF, sOFF))
        e("v_add_u32 v1, s%d, v28" % sOFF)
        e("v_mul_u32_u24 v1, 9216, v1")
        e("v_and_b32 v2, 2, v28")
        e("v_and_b32 v3, 7, v0")
        e("v_xor_b32 v2, v2, v3")
        e("v_lshl_add_u32 v1, v2, 4, v1")
        e("v_xor_b32 v2, 64, v1")
        e("v_add_u32 v2, %d, v2" % (8 * 9216 - 1024))
        e("v_add_u32 v3, %d, v1" % (2 * (8 * 9216 - 1024)))
        e("v_add_u32 v4, %d, v2" % (2 * (8 * 9216 - 1024)))
        pipe.refill(); pipe.flush()
    vset = ["v_lshrrev_b32 v28, 3, v0", "s_lshl_b32 s96, s%d, 5" % sW, "v_add_u32 v5, s96, v28", "v_mul_u32_u24 v5, 1152, v5",
            "v_lshlrev_b32 v6, 1, v22", "v_and_b32 v7, 7, v0", "v_xor_b32 v6, v6, v7", "v_lshl_add_u32 v5, v6, 4, v5",
            "v_lshrrev_b32 v28, 2, v0", "v_add_u32 v25, s96, v28", "v_mul_u32_u24 v25, 1152, v25", "v_and_b32 v6, 3, v6", "v_lshl_add_u32 v25, v6, 4, v25"]
    vset += ["v_add_u32 v%d, %d, v5" % (5 + i, i * (8 * 1152 - 1024)) for i in range(1, 4)]
    vset += ["v_lshlrev_b32 v%d, 4, v0" % VST, "v_lshlrev_b32 v27, 9, v22", "v_add_u32 v28, s%d, v0" % sW, "v_cmp_eq_u32 vcc, 0, v28",
             "v_mov_b32 v24, 0x%x" % OOB, "v_mov_b32 v28, 0", "v_cndmask_b32 v24, v24, v28, vcc"]
    vset += ["v_mul_u32_u24 v28, 5462, v0", "v_lshrrev_b32 v28, 16, v28", "v_mul_u32_u24 v26, 12, v28", "v_sub_u32 v26, v0, v26",
             "s_mul_i32 s96, s%d, 12" % sW, "s_and_b32 s95, s%d, 7" % sR, "s_mul_i32 s95, s95, 48", "s_add_u32 s96, s96, s95",
             "v_add_u32 v26, s96, v26", "v_mul_u32_u24 v26, 1152, v26", "v_lshl_add_u32 v26, v28, 7, v26",
             "s_cmp_ge_u32 s96, 144", "s_cselect_b32 s%d, 0x%x, s%d" % (sWT, OOB, sWT),
             "s_and_b32 s96, s%d, 1" % sW, "s_mul_i32 s96, s96, 36", "s_and_b32 s95, s%d, 7" % sR, "s_mul_i32 s95, s95, 72", "s_add_u32 s96, s96, s95",
             "v_add_u32 v29, s96, v0", "v_mul_u32_u24 v29, 9216, v29",
             "v_cmp_gt_u32 vcc, 36, v0", "v_mov_b32 v28, 0x%x" % OOB, "s_nop 0", "v_cndmask_b32 v26, v28, v26, vcc", "v_cndmask_b32 v29, v28, v29, vcc"]
    sp = []
    NSP = opt.get("nsp", 0)
    if NSP:
        e("s_and_b32 s6, s%d, 7" % sR); e("s_lshl_b32 s6, s6, 1"); e("s_and_b32 s7, s%d, 1" % sW); e("s_add_u32 s6, s6, s7")
        e("s_mul_i32 s6, s6, %d" % (NSP * 9216)); e("s_add_u32 s6, s6, s%d" % sB1); e("s_add_u32 s6, s6, %d" % (opt.get("sp0", 64) * 9216))
        e("s_add_u32 s90, s%d, s6" % sT); e("s_addc_u32 s91, s%d, 0" % sT2)
        sp = ["s_load_dword s92, s[90:91], 0x%x" % (i * 9216 + h * 64) for i in range(NSP) for h in range(2)]
    prologue(g, pipe, early=early, afterbar=(lambda: [e(t) for t in touch1(0) + (touch1(1) if not opt.get('t1pos', 70) else [])]) if TOUCH else None, nfirst=opt.get('nfirst', 8),
             fill=sp + group_scc(late_setup() + vset + tr_bases(g, B1, 8)))
    def epi1(rho):
        acc = ACC[rho & 1]; ops = []; sts = ["s_add_u32 s%d, s%d, %d" % (sT2, sHX, rho * 4096)]
        for t in range(4):
            for tt in range(2):
                gt = acc + ((t * 2) * 2 + tt) * 4; up = acc + ((t * 2 + 1) * 2 + tt) * 4
                u = 2 * rho + t // 2
                h = H + (u * 2 + tt) * 4 + (t & 1) * 2
                for k in range(2):
                    for i in (2 * k, 2 * k + 1): ops.append("v_max_f32 v%d, 0, v%d" % (gt + i, gt + i))
                    for i in (2 * k, 2 * k + 1): ops.append("v_mul_f32 v%d, v%d, v%d" % (gt + i, gt + i, up + i))
                    ops.append("v_cvt_pk_bf16_f32 v%d, v%d, v%d" % (h + k, gt + 2 * k, gt + 2 * k + 1))
                if t & 1:
                    sts.append(("buffer_store_dwordx4 %s, v%d, s[%d:%d], s%d offen offset:%d sc1" % (hreg(0, u, tt), VST, SWS, SWS + 3, sT2, ((u & 1) * 2 + tt) * 1024), ("hst", rho)))
        return ops, sts
    def hloads(b, q):
        ops = []
        for u in (range(5) if b == 3 else Q(q)):
            if u % 2 == 0: ops.append("s_add_u32 s%d, s%d, %d" % (sT, sOX if b == 3 else sHX + b, u * 2048))
            for tt in range(2):
                ops.append(("buffer_load_dwordx4 %s, v%d, s[%d:%d], s%d offen offset:%d sc1" % (hreg(b, u, tt), VST, SWS, SWS + 3, sT, ((u & 1) * 2 + tt) * 1024), ("h", b, q)))
        return ops
    extra = {}; urgent = {}
    add = lambda k, l: extra.setdefault(k, []).extend(l)
    addu = lambda k, l: urgent.setdefault(k, []).extend(l)
    EP = opt.get("epiw", 75)
    for rho in range(5):
        spread(sum(epi1(rho), []) + [Mark("epi%d" % rho)], 144 * (rho + 1) + 3, 144 * (rho + 1) + EP, extra)
    P2 = start[S2]
    hb = ["v_bfe_u32 v144, v0, 2, 4", "v_lshlrev_b32 v144, 6, v144", "v_bfe_u32 v145, v0, 4, 1", "v_lshl_add_u32 v144, v145, 5, v144",
          "v_and_b32 v145, 3, v0", "v_lshl_add_u32 v144, v145, 3, v144", "v_xor_b32 v145, 32, v144"]
    hb += ["v_add_u32 v%d, 0x%x, v%d" % (BH + 2 * k + t, k << 16, BH + t) for k in (1, 2) for t in range(2)]
    hb += ["v_lshrrev_b32 v2, 5, v0", "v_bfe_u32 v3, v0, 3, 2", "v_lshl_add_u32 v2, v2, 4, v3", "v_mul_u32_u24 v4, 1152, v2",
           "v_bfe_u32 v2, v0, 4, 2", "v_lshlrev_b32 v2, 1, v2", "v_and_b32 v3, 7, v0", "v_xor_b32 v2, v2, v3", "v_lshl_add_u32 v4, v2, 4, v4",
           "v_add_u32 v1, 256, v4", "s_sub_u32 s96, s%d, s%d" % (sKO, sKB), "v_add_u32 v2, s96, v4",
           "s_sub_u32 s96, s%d, s%d" % (sKS, sKB), "s_and_b32 s95, s96, 64", "v_xor_b32 v3, s95, v4", "s_and_b32 s96, s96, 128", "v_add_u32 v3, s96, v3"]
    add(P2 + 3, [Dens(1)] + epi1(5)[0] + [Mark("epi5"), Dens(0)] + epi1(5)[1] + hb + [Mark("hb")])
    pauses = [(0, opt.get('p0', 0))]
    if TOUCH:
        T = [touch1(2), touch1(3), touch1(4), touch1(5), touch2(0), touch2(1), touch2(2), touch2(3)]
        for n, (k, ops) in enumerate(zip(opt.get("tpos", [70, 148, 292, 436, 510, 690, 760, 760]), T)):
            addu(k, ops); pauses.append((k, k + opt.get("pl", [40] * 8)[n]))
    if opt.get("t1pos", 70): addu(opt.get("t1pos", 70), touch1(1))
    add(150, ["s_lshl_b32 s60, s%d, 3" % sI, "s_and_b32 s96, s%d, 7" % sR, "s_add_u32 s60, s60, s96", "s_lshl_b32 s60, s60, 2", "s_add_u32 s60, s60, s%d" % sW,
              "s_mul_i32 s60, s60, 4608", "s_mul_i32 s96, s%d, %d" % (sJ, 1152 * 1152), "s_add_u32 s60, s60, s96",
              "v_min_u32 v30, 35, v0", "v_lshlrev_b32 v30, 7, v30"])
    if opt.get("cpf", 6144):
        e("s_lshr_b32 s101, s2, 3"); e("s_sub_u32 s101, s101, 8"); e("s_lshl_b32 s101, s101, 2"); e("s_add_u32 s101, s101, s%d" % sW)
        e("s_lshl_b32 s101, s101, 6"); e("s_add_u32 s101, s101, %d" % opt.get("cpf", 9216))
        for k in range(opt.get('cp0', 20), start[-1], opt.get('cpp', 125)): addu(k, [code_pf()])
    add(1, xc_copies() + [Mark("xc"), "v_add_u32 v22, %d, v25" % (16 * 1152 - 1024)])
    add(144 + 90, flag_lane_offsets(23, 28) + [Mark("flo")])
    addu(288 + 100, [lambda: flag_issue(g, 28, 23, None)])
    groups = list(range(0, SL, 2)) + [SL + k for k in opt.get('eg', [0, 1, 2, 4, 6, 8, 11, 14])]
    bar = lambda n: start[n] - pipe.D - 1
    hooks = {}
    def before(n, f):
        assert n in groups, n
        hooks.setdefault(n, []).append(f); stages[n].before = lambda n=n: [f() for f in hooks[n]]
    before(26, lambda: flag_check(g, 28, 23, None, 0))
    FLD = opt.get('fld', 50); CMB = opt.get('cmb', 0)
    HS = opt.get("hs", [[30, 36], [46, 52], [S2 + 8, S2 + 14]])
    for q, (ns, nc) in enumerate(HS):
        before(ns, lambda q=q: g.wait_vm(("hst", 2 * q + 1)))
        stages[ns].after = lambda q=q: signal(g, 28, 24, 63, 16 * q)
        addu(bar(nc) - FLD, [lambda: flag_issue(g, 28, 23, sCNT)])
        before(nc, lambda q=q: flag_check(g, 28, 23, sCNT, (0x7 << (4 * q)) | (0x1000 if q == 2 and CMB else 0)))
    HW = opt.get("hw", [100, 100, 20])
    HP = opt.get("hp", [0, 0, 0])
    for q in range(3):
        spread(hloads(1, q), bar(HS[q][1]) + 1, bar(HS[q][1]) + 1 + HW[q], urgent); pauses.append((bar(HS[q][1]) + 1, bar(HS[q][1]) + 1 + HP[q]))
    assert bar(HS[1][1]) + 1 + HW[1] <= P2 + opt.get("h2pos", 100)
    spread(hloads(2, 0) + hloads(2, 1), P2 + opt.get("h2pos", 100), P2 + opt.get('h2pos', 100) + 60, urgent)
    def to_g2():
        for k in range(12): e("v_sub_u32 v%d, v%d, v27" % (B1 + k, B1 + k))
    stages[S2].after = to_g2
    for bq in BQ[3:]: before(first[bq], lambda bq=bq: g.wait_vm(("h",) + bq))
    spread(hloads(2, 2), bar(SL) - opt.get('h22', 30), bar(SL) - opt.get('h22', 30) + 10, urgent)
    sFL, sFW, sPL, sCOL, sRS, sMSK, sP1, sCK = 64, 65, 66, 67, 68, 69, 72, 75
    a2 = Asm(); srd(a2, SW1, 61, 62, PSZ)
    fin = [l.strip() for l in a2.lines]
    fin += ["s_mul_i32 s95, s%d, 3" % sR, "s_add_u32 s95, s95, s%d" % sI, "s_lshl_b32 s%d, s95, 7" % sFL, "s_add_u32 s%d, s%d, 0x%x" % (sFL, sFL, WS_FLG + 72 * 128),
           "s_lshl_b32 s%d, s%d, 2" % (sFW, sJ), "s_add_u32 s%d, s%d, s%d" % (sFW, sFW, sFL),
           "s_lshr_b32 s95, s%d, 1" % sJ, "s_lshl_b32 s96, s95, 11", "s_add_u32 s%d, s%d, s96" % (sPL, sB2), "s_add_u32 s%d, s%d, 8192" % (sPL, sPL),
           "s_and_b32 s96, s%d, 1" % sJ, "s_lshl_b32 s76, s96, 7", "s_add_u32 s%d, s%d, s76" % (sPL, sPL),
           "s_lshl_b32 s95, s95, 12", "s_lshl_b32 s96, s96, 10", "s_add_u32 s95, s95, s96", "s_add_u32 s76, s95, s%d" % sB2]
    for k in range(3):
        fin += ["s_add_u32 s96, s%d, %d" % (sJ, k + 1), "s_and_b32 s96, s96, 3", "s_mul_i32 s96, s96, %d" % PSZ, "s_add_u32 s%d, s76, s96" % (sP1 + k)]
    fin += ["v_and_b32 v150, 0x37, v0", "v_lshlrev_b32 v150, 4, v150", "v_bfe_u32 v155, v0, 3, 1", "v_lshl_add_u32 v150, v155, 10, v150",
            "s_mul_i32 s%d, s%d, 384" % (sCOL, sI), "s_add_u32 s%d, s%d, s4" % (sCOL, sCOL), "s_lshl_b32 s96, s%d, 6" % sJ, "s_add_u32 s%d, s%d, s96" % (sCK, sCOL),
            "s_add_u32 s77, s%d, %d" % (sCK, 16 * 1152),
            "v_bfe_u32 v156, v0, 4, 1", "v_lshlrev_b32 v156, 5, v156", "v_lshrrev_b32 v157, 5, v0", "v_lshl_add_u32 v156, v157, 4, v156",
            "s_lshl_b32 s95, s%d, 3" % sJ, "v_and_b32 v151, 7, v0", "v_add_u32 v151, s95, v151", "v_lshlrev_b32 v153, 2, v151",
            "v_mul_u32_u24 v151, 1152, v151", "v_lshl_add_u32 v151, v155, 6, v151", "v_add_u32 v151, v151, v156",
            "v_and_b32 v152, 15, v0", "v_lshlrev_b32 v154, 2, v152", "v_mul_u32_u24 v152, 1152, v152", "v_add_u32 v152, v152, v156",
            "s_lshl_b32 s96, s%d, 2" % sR, "s_add_u32 s96, s96, s%d" % sJ, "s_lshl_b32 s96, s96, 2", "s_add_u32 s96, s96, s%d" % sW,
            "s_lshl_b32 s%d, s96, 7" % sRS, "s_add_u32 s%d, s%d, 0x%x" % (sRS, sRS, WS_RS2),
            "s_mov_b32 s70, 0x3f80", "s_mov_b32 s71, 0x3f800000"]
    add(P2 + 150, fin + [Mark("fin")])
    XL = [(32, 152, sCK, 0), (36, 152, 77, 0), (40, 151, sCOL, 256)]
    RL = [(155, 154, 0), (156, 154, 64), (157, 153, 0)]
    nO = SL - opt.get('oearly', 0)
    if not CMB:
        addu(bar(nO) - opt.get('old', 30), [lambda: flag_issue(g, 28, 23, sCNT)])
        before(nO, lambda: flag_check(g, 28, 23, sCNT, 0x1000))
    spread(hloads(3, 0) + ["buffer_load_dword v%d, v%d, s[%d:%d], s%d offen offset:%d sc1" % (d, v, SWS, SWS + 3, sRS, im) for d, v, im in RL], bar(nO) + opt.get('o0', 1), bar(nO) + opt.get('o1', 5), urgent)
    before(SO, lambda: g.wait_vm(("h", 3, 0)))
    add(start[SL + 4] + 3, store_ops(g, A2, PK, 2, VST))
    add(start[SL + 8] + 3, store_ops(g, AO, PK, 0, VST, sSO))
    add(start[SK] + 3, [Dens(1)] + store_ops(g, AS, PK, 0, VST, sSS, 2, "pst") + [Mark("pst"), Dens(0)] + ["v_mov_b32 v%d, 0" % (96 + i) for i in range(8)] +
        [("buffer_load_dwordx4 %s, v%d, s[%d:%d], s%d offen offset:%d" % (vr(d, 4), v, SX, SX + 3, so, im), "fx") for d, v, so, im in XL])
    INS = opt.get("insig", 1); SG = SK + opt.get('sg', 3); FI = opt.get('fi', 0)
    if FI: addu(start[-1] - FI, [lambda: flag_issue(g, 28, 23, sFL)])
    if INS:
        before(SG, lambda: g.wait_vm("pst")); stages[SG].after = lambda: signal(g, 28, 24, sFW, 0)
    if opt.get("ts") or opt.get("amp") is not None:
        for k in ([720] + list(range(720 + 48, start[-1], 32)) if opt.get('fine2') else (144, 288, 432, 576, 720, P2, P2 + 144, P2 + 288, start[SK])): addu(k, [g.stamp])
    pipe.run(0, len(stages), extra, pauses=pauses, groups=groups, urgent=urgent)
    w = pipe.when
    if opt.get("verbose"): print(w, "P2", P2, "SK", start[SK], "end", start[-1], "barK", bar(SK + 4))
    assert w["xc"] < 142 and w["flo"] < 288 + 100 and all(w["epi%d" % r] < 144 * (r + 2) - 1 for r in range(5)), w
    assert w["epi5"] < start[first[(0, 2)]] + 7 and w["hb"] < bar(SH0) and w["fin"] < bar(nO) - 1 and w["pst"] < bar(SG), w
    g.stamp()
    if not INS:
        e("s_waitcnt vmcnt(0)"); e("s_barrier"); signal(g, 28, 24, sFW, 0)
    flag_check(g, 28, 23, sFL, 0xf, issued=bool(FI), sleep=1)
    e("s_barrier")
    g.stamp()
    UA = [(AK, AK + 8), (AK + 4, AK + 12), (96, 100)]
    lds = []
    regs = list(range(48, 96, 4))
    for p in range(4):
        if p < 3:
            for tt in range(2):
                d = regs.pop(0); lds.append((d, tt))
                e("buffer_load_dwordx4 %s, v%d, s[%d:%d], s%d offen offset:%d sc1" % (vr(d, 4), VST, SWS, SWS + 3, sP1 + p, tt * 2048), ("pl", len(lds)))
        if p: e("s_add_u32 s%d, s%d, %d" % (sPL, sPL, PSZ))
        d = regs.pop(0); lds.append((d, 2))
        e("buffer_load_dwordx4 %s, v150, s[%d:%d], s%d offen sc1" % (vr(d, 4), SWS, SWS + 3, sPL), ("pl", len(lds)))
    g.wait_vm("fx")
    for k in range(12):
        e("v_lshlrev_b32 v%d, 16, v%d" % (160 + 2 * k, 32 + k))
        e("v_and_b32 v%d, 0xffff0000, v%d" % (161 + 2 * k, 32 + k))
    for n, (d, u) in enumerate(lds):
        if n % 3 == 0: g.wait_vm(("pl", min(n + 3, len(lds))))
        for i in range(4):
            a0 = UA[u][i // 2] + 2 * (i % 2)
            e("v_dot2c_f32_bf16 v%d, s70, v%d" % (a0, d + i))
            e("v_dot2c_f32_bf16 v%d, s71, v%d" % (a0 + 1, d + i))
    e("s_nop 2")
    for u in range(3):
        for i in range(4): e("v_permlane16_swap_b32 v%d, v%d" % (UA[u][0] + i, UA[u][1] + i))
        for i in range(4):
            a0 = UA[u][i // 2] + 2 * (i % 2); x = 160 + 8 * u + 2 * i
            e("v_fmac_f32 v%d, v%d, v%d" % (x, a0, 155 + u))
            e("v_fmac_f32 v%d, v%d, v%d" % (x + 1, a0 + 1, 155 + u))
            e("v_cvt_pk_bf16_f32 v%d, v%d, v%d" % (184 + 4 * u + i, x, x + 1))
        e("buffer_store_dwordx4 %s, v%d, s[%d:%d], s%d offen offset:%d %s" % (vr(184 + 4 * u, 4), XL[u][1], SW1, SW1 + 3, XL[u][2], XL[u][3], opt.get("oflags", "nt")))
    if opt.get("ts") or opt.get("amp") is not None:
        e("s_waitcnt vmcnt(0)"); g.stamp()

def k1(g):
    e, opt = g.e, g.opt
    kernel_head(g, K1)
    e("s_getpc_b64 s[84:85]")
    for _ in range(opt.get("pad", 0)): e("s_mov_b32 s99, 0x12345")
    e("s_cmp_ge_u32 s2, 256")
    e("s_cbranch_scc1 L_k1_end")
    e("s_load_dwordx8 s[64:71], s[0:1], 0")
    e("s_load_dwordx4 s[72:75], s[0:1], 40")
    e("s_load_dwordx4 s[76:79], s[0:1], 56")
    e("s_load_dwordx4 s[80:83], s[0:1], 72")
    if opt.get("vpf", 1):
        e("s_bitcmp1_b32 s2, 3")
        e("s_cselect_b32 s3, L_att-%s, 0" % K1)
        sh = opt.get("vsh", 2)
        e("s_lshr_b32 s4, s2, 4")
        e("s_lshl_b32 s4, s4, %d" % (8 + sh))
        e("s_add_u32 s3, s3, s4")
        e("v_lshlrev_b32 v2, %d, v0" % sh)
        e("v_add_u32 v2, s3, v2")
        e("global_load_dword v255, v2, s[84:85]")
    e("v_lshrrev_b32 v1, 6, v0")
    e("v_and_b32 v0, 63, v0")
    e("v_readfirstlane_b32 s%d, v1" % sW)
    lane_consts(g)
    e("s_and_b32 s%d, s2, 1" % sR)
    e("s_lshl_b32 s%d, s%d, 3" % (sR, sR))
    e("s_bfe_u32 s%d, s2, 0x30003" % sT)
    e("s_or_b32 s%d, s%d, s%d" % (sR, sR, sT))
    e("s_bfe_u32 s%d, s2, 0x20001" % sS)
    e("s_lshr_b32 s3, s2, 6")
    if opt.get("ts"):
        e("s_lshl_b32 s94, s2, 2"); e("s_add_u32 s94, s94, s%d" % sW); e("s_lshl_b32 s94, s94, 8"); e("s_add_u32 s94, s94, 0x%x" % WS_TS)
        if opt.get("dbgts") is not None:
            e("s_lshl_b32 s94, s2, 2"); e("s_add_u32 s94, s94, s%d" % sW); e("s_cmp_eq_u32 s94, %d" % (4 * opt["dbgts"])); e("s_cselect_b32 s94, 0, 0x10000")
    x_setup(g)
    e("s_mov_b32 s%d, 0x%x" % (SX + 2, PSZ))
    e("s_mov_b32 s%d, 0x20000" % (SX + 3))
    e("s_waitcnt lgkmcnt(0)")
    e("s_mov_b32 s%d, s64" % SX)
    e("s_and_b32 s%d, s65, 0xffff" % (SX + 1))
    if opt.get("ts") or opt.get("amp") is not None:
        srd(g, SWS, 82, 83, WS_BYTES); srd(g, SDBG, 80, 81, 256); g.stamp()
    for o in range(opt.get("xcommon", 1)):
        for j in range(9): x_dma(g, o, j)
    wb = opt.get("wsbase", 0)
    if wb:
        e("s_add_u32 s82, s82, 0x%x" % wb); e("s_addc_u32 s83, s83, 0")
    srd(g, SWS, 82, 83, WS_BYTES - wb)
    srd(g, SDBG, 80, 81, 256)
    e("s_or_b32 s%d, s2, s%d" % (sT, sW))
    e("s_cbranch_scc1 L_nonce_done")
    e("s_memrealtime s[98:99]")
    e("s_waitcnt lgkmcnt(0)")
    e("v_mov_b32 v2, s98")
    e("v_or_b32 v2, 1, v2")
    Asm.e(g, "buffer_store_dword v2, off, s[%d:%d], 0 sc1" % (SDBG, SDBG + 3))
    g.label("L_nonce_done")
    e("s_cmp_eq_u32 s3, 0")
    e("s_cbranch_scc1 %s" % ("L_k1_end" if opt.get("noatt") else "L_att"))
    sv = (list(g.vm), list(g.lg), g.nts)
    g.sv = 31
    ffn_role(g)
    g.sv = 30
    def amp(role):
        if opt.get("amp") is None or opt.get("amprole", "ffn") != role: return
        L = g.newlabel("L_amp")
        e("s_sub_u32 s101, s94, s100")
        e("s_add_u32 s101, s101, %d" % opt.get("ampadd", 0))
        if role == "ffn":
            e("s_memrealtime s[92:93]"); e("s_waitcnt lgkmcnt(0)"); e("s_mov_b32 s100, s92")
        g.label(L)
        e("s_sleep 1"); e("s_memrealtime s[92:93]"); e("s_waitcnt lgkmcnt(0)")
        e("s_sub_u32 s92, s92, s100"); e("s_cmp_lt_u32 s92, s101"); e("s_cbranch_scc1 %s" % L)
    amp("ffn")
    e("s_endpgm")
    g.vm, g.lg, g.nts = sv
    g.raw(".p2align 6")
    g.label("L_att")
    import att
    att.att_role(g)
    amp("att")
    g.label("L_k1_end")
    e("s_endpgm")
    g.raw(".fill %d, 4, 0xbf810000" % (8192 if opt.get("vsh", 2) == 4 else 4096))

VOP3ONLY = ("v_mfma", "v_pk_", "v_fma_f32", "v_cvt_pk_bf16", "v_accvgpr_read", "v_accvgpr_write", "v_max3", "v_min3", "v_lshl_add", "v_add_lshl", "v_mad_u32",
            "v_bfe", "v_add3", "v_mul_lo", "v_mul_hi", "v_lshl_or", "v_and_or", "v_readlane", "v_perm_b32")
NOWIDE = ("v_readfirstlane", "v_permlane", "v_dot2c", "v_nop")
def has_lit(s):
    for t in re.split(r"[ ,]+", s)[1:]:
        if re.match(r"^-?(0x[0-9a-f]+|\d+)$", t):
            v = int(t, 0)
            if not (-16 <= v <= 64) and v not in (0x3f800000, 0x3f000000, 0x40000000, 0x40800000, 0xbf800000, 0xbf000000, 0xc0000000, 0xc0800000): return True
        if t.startswith("L_"): return not s.startswith(("s_cbranch", "s_branch"))
    return False
def isize(s):
    op = s.split()[0]
    if op.startswith(("ds_", "buffer_", "global_", "s_load", "s_mem")): return 8, False
    if op.startswith("s_"):
        if op.startswith(("s_waitcnt", "s_addk", "s_mulk", "s_nop", "s_barrier", "s_sleep", "s_endpgm", "s_cbranch", "s_branch", "s_setprio", "s_getreg")): return 4, False
        return (8 if has_lit(s) else 4), False
    if op.startswith(VOP3ONLY): return 8, False
    if has_lit(s): return 8, False
    ops = [x.strip() for x in re.split(r",(?![^\[]*\])", s.split(None, 1)[1])]
    if op.startswith("v_cmp") and ops[0] != "vcc": return 8, False
    if op.startswith("v_cndmask") and ops[-1] != "vcc": return 8, False
    if len(ops) >= 3 and not ops[2].startswith("v"): return 8, False
    return 4, not op.startswith(NOWIDE)
def align_pass(lines, minrun=4):
    ins = [l.strip() for l in lines]
    out = []; par = 0
    isins = lambda l: l and not l.endswith(":") and not l.startswith((".", ";"))
    n = len(ins)
    def nxt(i):
        i += 1
        while i < n and not isins(ins[i]):
            if ins[i].startswith(".p2align"): return None
            i += 1
        return i if i < n else None
    for i, l in enumerate(ins):
        if not isins(l):
            if l.startswith(".p2align"): par = 0
            out.append(l); continue
        sz, flex = isize(l)
        if sz == 8: out.append(l); continue
        if par == 1: out.append(l); par = 0; continue
        j = nxt(i)
        if j is None or isize(ins[j])[0] == 4: out.append(l); par = 1; continue
        if flex:
            op, rest = l.split(None, 1); out.append(op + "_e64 " + rest); continue
        run = 0
        while j is not None and isize(ins[j])[0] == 8 and run < minrun: run += 1; j = nxt(j)
        out.append(l)
        if run >= minrun and not l.startswith(("s_branch", "s_endpgm")): out.append("s_nop 0")
        else: par = 1
    return out

LABELS = {}
def resolve(lines):
    off = 0; LABELS.clear()
    for l in lines:
        l = l.strip()
        if l.endswith(":"): LABELS[l[:-1]] = off
        elif l.startswith(".p2align"):
            a = 1 << int(l.split()[1]); off = (off + a - 1) // a * a
        elif l and not l.startswith((".", ";")):
            off += 8 if l.split()[0].endswith("_e64") else isize(l)[0]
    end = LABELS["L_k1_end"]
    def f(m):
        span = 2048 if LABELS[m.group(1)] >= LABELS["L_att"] else 6144
        return "0x%x" % (min(LABELS[m.group(1)] + int(m.group(2)), end - span) & ~3)
    return [re.sub(r"@(\w+)\+(\d+)", f, l) if l.strip().startswith("s_load") else l for l in lines]

MACROS = """.macro MA d,a,b
v_mfma_f32_16x16x32_bf16 v[\\d:\\d+3], a[\\a:\\a+3], a[\\b:\\b+3], v[\\d:\\d+3]
.endm
.macro MV d,a,b
v_mfma_f32_16x16x32_bf16 v[\\d:\\d+3], a[\\a:\\a+3], v[\\b:\\b+3], v[\\d:\\d+3]
.endm
.macro RT d,b,o
ds_read_b64_tr_b16 a[\\d:\\d+1], v\\b offset:\\o
.endm
.macro WL n
s_waitcnt lgkmcnt(\\n)
.endm
.macro CV d,a,b
v_cvt_pk_bf16_f32 v\\d, v\\a, v\\b
.endm
"""
def compress(line):
    s = line.strip()
    m = re.match(r"v_mfma_f32_16x16x32_bf16 v\[(\d+):\d+\], a\[(\d+):\d+\], ([av])\[(\d+):\d+\], v\[(\d+):\d+\]$", s)
    if m and m.group(1) == m.group(5): return "M%s %s,%s,%s" % (m.group(3).upper(), m.group(1), m.group(2), m.group(4))
    m = re.match(r"ds_read_b64_tr_b16 a\[(\d+):\d+\], v(\d+) offset:(\d+)$", s)
    if m: return "RT %s,%s,%s" % m.groups()
    m = re.match(r"s_waitcnt lgkmcnt\((\d+)\)$", s)
    if m: return "WL %s" % m.group(1)
    m = re.match(r"v_cvt_pk_bf16_f32 v(\d+), v(\d+), v(\d+)$", s)
    if m: return "CV %s,%s,%s" % m.groups()
    return s

def gen(**opt):
    g = G(opt)
    k1(g)
    FUSE = 1
    errs = hazard.check(g.lines)
    if errs:
        print("\n".join(errs[:40])); raise SystemExit("hazards: %d" % len(errs))
    head = open("cdna_kernels/%s.s.ref" % BASE).read().split("; Override launch")[0] if not opt.get("nohead") else ""
    out = head
    if FUSE: out += "; @launch grid=(256,1,1) block=(256,1,1) lds=163840\n"
    else: out += "; @launch kernel=%s grid=(256,1,1) block=(256,1,1) lds=163840\n" % K1
    if not FUSE: out += "; @launch kernel=%s grid=(256,1,1) block=(576,1,1) lds=0\n" % K2
    out += '.amdgcn_target "amdgcn-amd-amdhsa--gfx950"\n.text\n' + MACROS
    lines = align_pass(g.lines, opt.get("minrun", 4)) if opt.get("align", 1) else g.lines
    lines = resolve(lines)
    out += "\n".join(compress(l) for l in lines) + "\n"
    out += '.section .rodata,"a"\n' + kernel_desc(K1, 512, 256) + ("" if FUSE else kernel_desc(K2, 96, 96, 40))
    return out

if __name__ == "__main__":
    kw = json.loads(sys.argv[2]) if len(sys.argv) > 2 else {}
    open(sys.argv[1], "w").write(gen(**kw))
```

```python
import sys, re, json
from asmlib import *
import hazard
BASE = "parallel_sum__linear_kernel_hedgehog__glu_gated_reglu__prompt"
K1 = BASE + "_kernel"
K2 = "reduce_kernel"

PSZ = 2048 * 576 * 2
WS_HX = 0x1000000
WS_OX = 0x2200000
WS_RS2 = 0x2500000
WS_KVP = 0x2510000
WS_KVF = 0x2700000
WS_FLG = 0x2780000
WS_TS = 0x2800000
WS_BYTES = 0x10000000
SX, SW1, SW2, SWS, SDBG, SPHI = 8, 12, 16, 20, 24, 28
sW, sR, sS, sT, sOFF, sM0W, sB1, sB2, sST, sT2 = 32, 33, 34, 35, 36, 37, 38, 39, 40, 41
sCNT = 52
OOB = 0x40000000
RING = 144
NB = 8

class G(Asm):
    def __init__(self, opt):
        super().__init__()
        self.opt = opt
        self.vm = []
        self.lg = []
        self.nts = 0
        self.sv = 30
    def e(self, s, tag=None):
        if s.startswith(("buffer_", "global_")): self.vm.append(tag)
        if s.startswith("ds_"): self.lg.append(tag)
        super().e(s)
    def vm_n(self, tag):
        idx = [i for i, t in enumerate(self.vm) if t == tag]
        assert idx, tag
        return len(self.vm) - 1 - idx[-1]
    def wait_vm(self, tag):
        n = min(self.vm_n(tag), 63)
        self.e("s_waitcnt vmcnt(%d)" % n)
    def wait_lg(self, tag):
        idx = [i for i, t in enumerate(self.lg) if t == tag]
        n = min(len(self.lg) - 1 - idx[-1], 15)
        self.e("s_waitcnt lgkmcnt(%d)" % n)
    def stamp(self):
        e = self.e
        if self.opt.get("amp") is not None:
            if self.nts in (0, self.opt["amp"]):
                e("s_memrealtime s[92:93]"); e("s_waitcnt lgkmcnt(0)")
                e("s_mov_b32 s%d, s92" % (100 if self.nts == 0 else 94))
            self.nts += 1
            return
        if not self.opt.get("ts"): return
        e("s_memtime s[90:91]"); e("s_memrealtime s[92:93]")
        e("s_waitcnt lgkmcnt(0)")
        if self.opt.get("dbgts") is not None:
            sel = self.opt.get("dbgsel", list(range(15)))
            if self.nts in sel:
                e("v_mov_b32 v30, s92")
                e("buffer_store_dword v30, off, s[%d:%d], s94 offset:%d" % (SDBG, SDBG + 3, 4 + 4 * sel.index(self.nts)))
            self.nts += 1
            return
        for k, sg in enumerate((90, 92)):
            e("v_mov_b32 v%d, s%d" % (self.sv, sg))
            e(("buffer_store_dword v%d, off" % self.sv) + ", s[%d:%d], s94 offset:%d" % (SWS, SWS + 3, 8 * self.nts + 4 * k))
        self.nts += 1

def mfma(d, a, b, c=None):
    return "v_mfma_f32_16x16x32_bf16 %s, %s, %s, %s" % (d, a, b, d if c is None else c)

class Stage:
    def __init__(self, lo, hi, pre, dmas, frags, gate=None):
        dmas = [d if isinstance(d, list) else [d] for d in dmas]
        dmas[0] = list(pre) + dmas[0]
        self.lo, self.hi, self.dmas, self.frags, self.gate = lo, hi, dmas, frags, gate
        self.before = None; self.after = None

class Pipe:
    def __init__(self, g, stages, D=6, BE=1):
        self.g, self.st, self.D, self.BE = g, stages, D, BE
        self.next = 0
        self.safe = -1
        self.q = []
        self.open = set()
        self.fi = 0
        self.done = -1
        self.qthr = g.opt.get("qthr", 3)
        self.when = {}
    def can(self, m):
        s = self.st[m]
        if s.gate is not None and s.gate not in self.open: return False
        return all(k <= self.safe for k in range(m) if self.st[k].lo < s.hi and s.lo < self.st[k].hi)
    def refill(self):
        while self.next < len(self.st) and self.can(self.next):
            for d in self.st[self.next].dmas: self.q.append([list(d), ("st", self.next)])
            self.next += 1
    def pop(self):
        if not self.q: return []
        t, tag = self.q.pop(0)
        return [(x, tag) for x in t]
    def flush(self):
        while self.q:
            for t, tag in self.pop(): self.g.e(t, tag)
    def enter(self, n, last, hook=None):
        g = self.g
        late = 0
        while any(tag[1] <= last for _, tag in self.q):
            late += 1
            for t, tg in self.pop(): g.e(t, tg)
        if late and n > 2: print("warning: %d DMA issued late for stage %d" % (late, n))
        assert self.next > last, (n, last)
        for k in range(n, last + 1):
            if self.st[k].before: self.st[k].before()
        if hook and hook.before: hook.before()
        g.wait_vm(("st", last)); g.e("s_barrier")
        if hook and hook.after: hook.after()
        for k in range(n, last + 1):
            if self.st[k].after: self.st[k].after()
        self.safe = max(self.safe, self.done)
        self.refill()
    def run(self, s0, s1, extra=None, pauses=(), groups=None, urgent=None, lagok=True):
        g, D = self.g, self.D
        WP = g.opt.get("wp", 4)
        pend = []; urg = []; urgent = urgent or {}; cur = [0]; dens = [0]
        extra = extra or {}
        fl = [(n, k, f) for n in range(s0, s1) for k, f in enumerate(self.st[n].frags)]
        if groups is None: groups = list(range(s0, s1, self.BE))
        gend = {a: (groups[i + 1] if i + 1 < len(groups) else s1) - 1 for i, a in enumerate(groups)}
        base = self.fi
        needbar = lambda j: j < len(fl) and fl[j][1] == 0 and fl[j][0] in gend
        def reads(j):
            buf = RING + 4 * ((base + j) % NB)
            for t in fl[j][2][0](buf): g.e(t, ("fr", base + j))
        def wl(i):
            w = min(i + WP - 1, len(fl) - 1)
            g.wait_lg(("fr", base + w))
            self.done = max(self.done, fl[w][0] if fl[w][1] == len(self.st[fl[w][0]].frags) - 1 else fl[w][0] - 1)
        def cost(it):
            if isinstance(it, (Mark, Dens)): return 0
            if isinstance(it, Hook): return 99
            if isinstance(it, Delay):
                if it.until is None: it.until = cur[0] + it.n
                return 0 if cur[0] >= it.until else 99
            if callable(it): return getattr(it, "cost", 2)
            if isinstance(it, list): return min(len(it), 2)
            t = it[0] if isinstance(it, tuple) else it
            return 2 if t.startswith(("buffer_", "global_", "v_mfma", "v_exp", "v_rcp")) else 1
        def emit(it, i):
            if isinstance(it, Mark): self.when[it.name] = i
            elif isinstance(it, Dens): dens[0] = it.n
            elif isinstance(it, Delay):
                if i >= len(fl): g.e("s_nop 7")
            elif isinstance(it, Hook):
                if it.before: it.before()
                g.e("s_barrier")
                if it.after: it.after()
            elif callable(it): it()
            elif isinstance(it, list):
                for x in it: g.e(x)
            elif isinstance(it, tuple): g.e(it[0], it[1])
            else: g.e(it)
        for j in range(min(D, len(fl))):
            if needbar(j): self.enter(fl[j][0], gend[fl[j][0]])
            reads(j)
        if needbar(D): self.enter(fl[D][0], gend[fl[D][0]])
        wl(0)
        since = 9
        for i, (n, k, f) in enumerate(fl):
            ms = f[1](RING + 4 * ((base + i) % NB))
            g.e(ms[0])
            if i + D < len(fl): reads(i + D)
            g.e(ms[1])
            pend += [(i, x) for x in extra.get(i, [])]; urg += urgent.get(i, [])
            since += 1; cur[0] = i
            wdue = (i + 1) % WP == 0 and i + 1 < len(fl)
            if needbar(i + 1 + D):
                if wdue: wl(i + 1)
                hook = pend.pop(0)[1] if pend and isinstance(pend[0][1], Hook) else None
                self.enter(fl[i + 1 + D][0], gend[fl[i + 1 + D][0]], hook)
                continue
            paused = any(a <= i < b for a, b in pauses)
            if urg and not wdue:
                slots = 2
                while urg and cost(urg[0]) <= slots:
                    it = urg.pop(0); slots -= cost(it); emit(it, i)
                continue
            used = False
            if self.q and len(self.q[0][0]) > 1:
                if wdue: wl(i + 1)
                while len(self.q[0][0]) > 1: g.e(self.q[0][0].pop(0))
                used = True
            elif self.q and not wdue and not paused and since >= (2 if len(self.q) > self.qthr and not any(b <= i < b + g.opt.get("slow", 0) for a, b in pauses if b > a) else self.g.opt.get("dcad", 3)):
                it = self.q.pop(0); g.e(it[0][0], it[1]); since = 0
                used = True
            if used and not dens[0]: continue
            slots = 0 if used else 2
            if wdue and not used: wl(i + 1); slots = 1
            if dens[0]: slots += dens[0]
            elif lagok and pend and i - pend[0][0] > g.opt.get("lag", 30): slots += 1
            while pend and cost(pend[0][1]) <= slots:
                it = pend.pop(0)[1]; slots -= cost(it); emit(it, i)
        for it in urg + [x[1] for x in pend]: emit(it, len(fl))
        self.fi = base + len(fl)
    def drained(self, upto):
        self.safe = max(self.safe, upto); self.refill()

class Mark:
    def __init__(self, name): self.name = name
class Hook:
    def __init__(self, before=None, after=None): self.before, self.after = before, after
class Delay:
    def __init__(self, n): self.n = n; self.until = None
class Dens:
    def __init__(self, n): self.n = n

def group_scc(ops):
    out = []
    for op in ops:
        if isinstance(op, str) and op.startswith("s_cselect"): out[-1] = [out[-1], op]
        else: out.append(op)
    return out

def spread(ops, lo, hi, extra):
    ops = group_scc(ops); n = hi - lo
    for k, op in enumerate(ops):
        extra.setdefault(lo + k * n // len(ops), []).append(op)

def lane_consts(g):
    e = g.e
    e("v_lshrrev_b32 v22, 4, v0")
    e("v_and_b32 v23, 15, v0")

def x_dma(g, o, j):
    e = g.e
    if j == 0:
        if o:
            e("s_add_u32 s6, s60, %d" % o)
            e("s_and_b32 s6, s6, 3")
            e("s_mulk_i32 s6, 9216")
            e("s_add_u32 m0, s5, s6")
            e("s_add_u32 s7, s4, s6")
    else:
        e("s_addk_i32 m0, 1024")
        e("s_addk_i32 s7, 128")
    e("buffer_load_dwordx4 v%d, s[%d:%d], s7 offen %s lds" % (104 + (o & 1), SX, SX + 3, g.opt.get("xflags", "")), ("x", j))

def prologue(g, pipe, XV=112, early=None, afterbar=None, fill=(), var=False, nfirst=8, mid=None, postc=None):
    e, opt = g.e, g.opt
    xf = opt.get("xflags", "")
    NC = opt.get("xcommon", 2)
    nf = 9 * (4 - NC)
    for o in range(NC, 4):
        for j in range(9):
            x_dma(g, o, j)
            k = (o - NC) * 9 + j
            if mid and o * 9 + j == mid[0]: mid[1]()
            for it in fill[k * len(fill) // nf:(k + 1) * len(fill) // nf]:
                for x in (it if isinstance(it, list) else [it]): e(x, "fill")
    if early: early()
    e("v_lshrrev_b32 v106, 3, v23")
    e("v_mul_u32_u24 v106, 9216, v106")
    e("v_and_b32 v107, 7, v23")
    e("v_lshl_add_u32 v106, v107, 7, v106")
    e("v_lshrrev_b32 v107, 1, v23")
    e("v_xor_b32 v107, v107, v22")
    e("v_lshl_add_u32 v106, v107, 4, v106")
    e("v_add_u32 v106, s5, v106")
    e("v_xor_b32 v107, 64, v106")
    for i in range(4): e("v_mov_b32 v%d, 0x3f803f80" % (80 + i))
    for i in (72, 73, 76, 77): e("v_mov_b32 v%d, 0" % i)
    e("v_lshrrev_b32 v108, 2, v23")
    e("v_cmp_eq_u32 vcc, v108, v22")
    e("v_and_b32 v108, 1, v23")
    e("v_lshlrev_b32 v108, 4, v108")
    e("v_mov_b32 v78, 0x3f80")
    e("v_lshlrev_b32 v78, v108, v78")
    e("v_cndmask_b32 v78, 0, v78, vcc")
    e("v_and_b32 v108, 2, v23")
    e("v_cmp_eq_u32 vcc, 0, v108")
    e("s_nop 1")
    e("v_cndmask_b32 v74, 0, v78, vcc")
    e("v_cndmask_b32 v75, v78, 0, vcc") if False else None
    e("v_sub_u32 v75, v78, v74")
    X = lambda tt, ks: XV + (ks * 2 + tt) * 4
    g.stamp()
    for j in range(10):
        if j < 9:
            g.wait_vm(("x", j))
            for ks in (2 * j, 2 * j + 1):
                for tt in range(2):
                    e("ds_read_b128 %s, v%d offset:%d" % (vr(X(tt, ks), 4), 106 + (ks & 1), tt * 18432 + j * 1024), ("xr", j))
        if j > 0:
            g.wait_lg(("xr", j - 1))
            for ks in (2 * j - 2, 2 * j - 1):
                for tt in range(2):
                    e(mfma(vr(64 + 4 * tt, 4), vr(80, 4), vr(X(tt, ks), 4), "0" if ks == 0 else None))
    e("s_barrier")
    g.stamp()
    pipe.open.add("x"); pipe.refill()
    for _ in range(nfirst):
        for t, tag in pipe.pop(): e(t, tag)
    if afterbar: afterbar()
    e("s_nop 3")
    e("s_mov_b32 s%d, 0x%08x" % (sT, 0xbae38e39))
    for tt in range(2): e("v_mul_f32 v%d, s%d, v%d" % (78 + tt, sT, 64 + 4 * tt))
    e("v_cvt_pk_bf16_f32 v108, v78, v79")
    for i in range(4): e("v_lshlrev_b32 v%d, 16, v108" % (64 + i))
    for i in range(4): e("v_and_b32 v%d, 0xffff0000, v108" % (68 + i))
    if var:
        for tt in range(2): e("v_sub_f32 v%d, v%d, v%d" % (14 + tt, 78 + tt, 64 + 4 * tt))
    else: e("s_nop 1")
    for _ in range(opt.get("delay", 0)): e("s_sleep 32")
    fr = [(tt, ks) for ks in range(18) for tt in range(2)]
    LAG = 2
    for k in range(len(fr) + LAG + 1):
        cv = []
        if LAG <= k < len(fr) + LAG:
            tt, ks = fr[k - LAG]; d = 32 + 8 * ((k - LAG) % 4); x = X(tt, ks)
            cv = ["v_cvt_pk_bf16_f32 v%d, v%d, v%d" % (x + i, d + 2 * i, d + 2 * i + 1) for i in range(4)]
        if k < len(fr):
            tt, ks = fr[k]; d = 32 + 8 * (k % 4)
            e(mfma(vr(d, 4), vr(74, 4), vr(X(tt, ks), 4), vr(64 + 4 * tt, 4)))
            if k == LAG: e("s_nop 3")
            for t in cv[:2]: e(t)
            e(mfma(vr(d + 4, 4), vr(72, 4), vr(X(tt, ks), 4), vr(64 + 4 * tt, 4)))
            for t in cv[2:]: e(t)
        else:
            e("s_nop 3")
            for t in cv: e(t)
        if var and k > LAG:
            tt, ks = fr[k - LAG - 1]; x = X(tt, ks)
            e(mfma(vr(96 + 4 * tt, 4), vr(x, 4), vr(x, 4), "0" if ks == 0 else None))
    if postc: postc()
    g.stamp()

def XV0(tt, ks): return vr(112 + (ks * 2 + tt) * 4, 4)
def xc_copies(): return ["v_accvgpr_write_b32 a%d, v%d" % (i, 112 + i) for i in range(144)]
def XC(tt, ks): return ar((ks * 2 + tt) * 4, 4)

def tr_bases(g, dst, rowmul):
    e = g.e
    out = []
    out.append("v_bfe_u32 v28, v0, 2, 2")
    out.append("v_mad_u32_u24 v28, v22, %d, v28" % rowmul)
    out.append("v_lshlrev_b32 v%d, 7, v28" % dst)
    out.append("v_bfe_u32 v28, v0, 3, 2")
    out.append("v_lshl_add_u32 v%d, v28, 5, v%d" % (dst, dst))
    out.append("v_and_b32 v28, 3, v0")
    out.append("v_lshl_add_u32 v%d, v28, 3, v%d" % (dst, dst))
    for t in range(1, 4): out.append("v_xor_b32 v%d, %d, v%d" % (dst + t, 32 * t, dst))
    for grp in (1, 2):
        for t in range(4): out.append("v_add_u32 v%d, 0x%x, v%d" % (dst + 4 * grp + t, grp << 16, dst + t))
    return out

def tr_reads(bases, t, off, second):
    def f(buf):
        o2 = off + second
        assert (off >> 16) == (o2 >> 16)
        b = bases + 4 * (off >> 16) + t
        return ["ds_read_b64_tr_b16 %s, v%d offset:%d" % (ar(buf, 2), b, off & 0xffff),
                "ds_read_b64_tr_b16 %s, v%d offset:%d" % (ar(buf + 2, 2), b, o2 & 0xffff)]
    return f

def store_ops(g, acc, P, c, voff, sbase=None, ntile=4, tag=None):
    ops = ["s_add_u32 s%d, s%d, %d" % (sT2, sST if sbase is None else sbase, c * 4096)]
    for tt in range(2):
        for hf in range(ntile // 2):
            p = P + ((tt * (ntile // 2) + hf) % 2) * 4
            for k in range(2):
                s = acc + ((2 * hf + k) * 2 + tt) * 4
                ops.append("v_cvt_pk_bf16_f32 v%d, v%d, v%d" % (p + 2 * k, s, s + 1))
                ops.append("v_cvt_pk_bf16_f32 v%d, v%d, v%d" % (p + 2 * k + 1, s + 2, s + 3))
            ops.append(("buffer_store_dwordx4 %s, v%d, s[%d:%d], s%d offen offset:%d sc1" % (vr(p, 4), voff, SWS, SWS + 3, sT2, (tt * 2 + hf) * 1024), tag))
    return ops

sNON = 97
def flag_load(vreg, vfl, sline):
    if sline is None: return "buffer_load_dword v%d, v%d, s[%d:%d], 0 offen sc1" % (vreg, vfl, SDBG, SDBG + 3)
    return "buffer_load_dword v%d, v%d, s[%d:%d], s%d offen sc1" % (vreg, vfl, SWS, SWS + 3, sline)

def flag_issue(g, vreg, vfl, sline):
    g.e(flag_load(vreg, vfl, sline), "flag")

def flag_check(g, vreg, vfl, sline, mask, issued=True, sleep=4):
    if g.opt.get("nofl") and sline is not None: return
    e = g.e
    L = g.newlabel("L_poll"); Ld = g.newlabel("L_polld"); Lc = g.newlabel("L_pollc")
    e("s_cmp_lg_u32 s%d, 0" % sW)
    e("s_cbranch_scc1 %s" % Ld)
    e("s_mov_b32 s89, 0x20000")
    if issued:
        g.wait_vm("flag")
        e("s_branch %s" % Lc)
    g.label(L)
    Asm.e(g, flag_load(vreg, vfl, sline))
    e("s_waitcnt vmcnt(0)")
    g.label(Lc)
    if sline is None:
        e("v_readfirstlane_b32 s%d, v%d" % (sNON, vreg))
        e("s_sub_u32 s89, s89, 1")
        e("s_cmp_lg_u32 s%d, 0" % sNON)
    else:
        e("v_cmp_eq_u32 s[98:99], s%d, v%d" % (sNON, vreg))
        e("s_sub_u32 s89, s89, 1")
        m = mask if isinstance(mask, str) else "0x%x" % mask
        e("s_and_b32 s98, s98, %s" % m)
        e("s_cmp_eq_u32 s98, %s" % m)
    e("s_cbranch_scc1 %s" % Ld)
    e("s_sleep %d" % sleep)
    e("s_cmp_lg_u32 s89, 0")
    e("s_cbranch_scc1 %s" % L)
    g.label(Ld)

def flag_lane_offsets(vfl, vtmp):
    return ["s_lshl_b32 s96, s%d, 6" % sW, "v_add_u32 v%d, s96, v0" % vtmp, "v_cmp_gt_u32 vcc, 16, v%d" % vtmp, "v_lshlrev_b32 v%d, 2, v0" % vfl,
            "v_mov_b32 v%d, 0x%x" % (vtmp, OOB), "v_cndmask_b32 v%d, v%d, v%d, vcc" % (vfl, vtmp, vfl)]

def code_pf():
    return ["s_getpc_b64 s[6:7]", "s_load_dword s5, s[6:7], s101"]

def signal(g, vtmp, voff, sword, imm=0):
    g.e("v_mov_b32 v%d, s%d" % (vtmp, sNON))
    g.e("buffer_store_dword v%d, v%d, s[%d:%d], s%d offen offset:%d sc1" % (vtmp, voff, SWS, SWS + 3, sword, imm))

def ffn_role(g):
    e, opt = g.e, g.opt
    wf = opt.get("wflags", "")
    ACC = [32, 96]; H = 160; B1 = 9; PK = 128; VST = 21; BH = 144
    sI, sJ = 42, 43; sKB = 44; sHX = 47; sKO = 53; sKS = 56; sKK = 86; sM0H = 50; sSO = 51; sSS = 59; sWO = 78; sOX = 83; sM0B = 84; sWT = 85
    e("s_sub_u32 s%d, s3, 1" % sI)
    e("s_mov_b32 s%d, s%d" % (sJ, sS))
    e("s_mul_i32 s%d, s%d, 3" % (sS, sJ))
    e("s_add_u32 s%d, s%d, s%d" % (sS, sS, sI))
    e("s_cmp_ge_u32 s%d, 2" % sW)
    e("s_cselect_b32 s%d, s74, s72" % sT)
    e("s_cselect_b32 s%d, s75, s73" % sT2)
    srd(g, SW1, sT, sT2, 576 * 4608 * 2)
    e("s_lshl_b32 s%d, s%d, 12" % (sM0W, sW))
    e("s_mul_i32 s%d, s%d, 768" % (sB1, sS))
    def late_setup():
        o = []; sT = 95
        a = Asm(); srd(a, SW2, 76, 77, 4608 * 576 * 2); srd(a, SPHI, 70, 71, 576 * 576 * 2); a.e('s_mov_b32 s61, s78'); a.e('s_mov_b32 s62, s79')
        o += [l.strip() for l in a.lines]
        o += ["s_lshl_b32 s98, s%d, 6" % sJ, "s_and_b32 s99, s98, 128", "s_xor_b32 s99, s99, 128"]
        for b in range(3):
            o += ["s_add_u32 s%d, s%d, %d" % (sT, sI, b), "s_cmp_ge_u32 s%d, 3" % sT, "s_cselect_b32 s96, 3, 0", "s_sub_u32 s%d, s%d, s96" % (sT, sT),
                  "s_mul_i32 s96, s%d, 3" % sJ, "s_add_u32 s%d, s%d, s96" % (sT, sT),
                  "s_mul_i32 s%d, s%d, %d" % (sKB + b, sT, 384 * 1152), "s_mul_i32 s96, s%d, 384" % sI, "s_add_u32 s%d, s%d, s96" % (sKB + b, sKB + b),
                  "s_add_u32 s%d, s%d, s99" % (sKO + b, sKB + b), "s_add_u32 s%d, s%d, s98" % (sKK + b, sKB + b), "s_xor_b32 s%d, s%d, 64" % (sKS + b, sKK + b),
                  "s_mul_i32 s96, s%d, 12" % sR, "s_add_u32 s%d, s%d, s96" % (sT, sT), "s_lshl_b32 s%d, s%d, 2" % (sT, sT), "s_add_u32 s%d, s%d, s%d" % (sT, sT, sW),
                  "s_mul_i32 s%d, s%d, 24576" % (sHX + b, sT), "s_add_u32 s%d, s%d, 0x%x" % (sHX + b, sHX + b, WS_HX)]
        o += ["s_lshl_b32 s%d, s%d, 2" % (sT, sR), "s_add_u32 s%d, s%d, s%d" % (sT, sT, sJ), "s_lshl_b32 s%d, s%d, 7" % (sCNT, sT), "s_add_u32 s%d, s%d, 0x%x" % (sCNT, sCNT, WS_FLG),
              "s_lshl_b32 s63, s%d, 2" % sI, "s_add_u32 s63, s63, s%d" % sCNT]
        o += ["s_mul_i32 s%d, s%d, %d" % (sST, sJ, PSZ), "s_mul_i32 s%d, s%d, 12288" % (sB2, sI), "s_add_u32 s%d, s%d, s4" % (sB2, sB2),
              "s_add_u32 s%d, s%d, s%d" % (sST, sST, sB2), "s_lshl_b32 s%d, s%d, 11" % (sM0H, sW),
              "s_lshl_b32 s96, s99, 5", "s_add_u32 s%d, s%d, s96" % (sSO, sST),
              "s_xor_b32 s96, s96, 4096", "s_add_u32 s%d, s%d, s96" % (sSS, sST), "s_and_b32 s96, s98, 64", "s_xor_b32 s96, s96, 64",
              "s_lshl_b32 s96, s96, 4", "s_add_u32 s%d, s%d, s96" % (sSS, sSS)]
        o += ["s_lshl_b32 s95, s%d, 2" % sR, "s_add_u32 s95, s95, s%d" % sJ, "s_lshl_b32 s95, s95, 2", "s_add_u32 s95, s95, s%d" % sW,
              "s_mul_i32 s%d, s95, 10240" % sOX, "s_add_u32 s%d, s%d, 0x%x" % (sOX, sOX, WS_OX),
              "s_mul_i32 s%d, s%d, %d" % (sWT, sJ, 144 * 1152), "s_mul_i32 s96, s%d, 384" % sI, "s_add_u32 s%d, s%d, s96" % (sWT, sWT), "s_lshl_b32 s%d, s%d, 10" % (sM0B, sW)]
        for i in range(5):
            d = sWO + i
            o += (["s_lshl_b32 s95, s%d, 2" % sW, "s_add_u32 s95, s95, %d" % i] if i < 4 else ["s_add_u32 s95, s%d, 16" % sW])
            o += ["s_lshr_b32 s96, s95, 1", "s_lshl_b32 s%d, s96, 2" % d, "s_cmp_ge_u32 s96, 5", "s_cselect_b32 s96, 52, 0",
                  "s_add_u32 s%d, s%d, s96" % (d, d), "s_and_b32 s95, s95, 1", "s_mul_i32 s95, s95, 36",
                  "s_add_u32 s%d, s%d, s95" % (d, d), "s_mul_i32 s%d, s%d, 1152" % (d, d), "s_add_u32 s%d, s%d, s%d" % (d, d, sWT)]
        return o
    stages = []; start = [0]
    def slot(n): return ((n + 9) % 10) * 16384
    def push(st): stages.append(st); start.append(start[-1] + len(st.frags))
    for rho in range(6):
        acc = ACC[rho & 1]
        for st in range(9):
            n = len(stages); lo = slot(n)
            pre = ["s_add_u32 m0, s%d, %d" % (sM0W, lo), "s_add_u32 s%d, s%d, %d" % (sOFF, sB1, st * 64 * 9216 + rho * 128)]
            dmas = ["buffer_load_dwordx4 v%d, s[%d:%d], s%d offen offset:%d %s lds" % (1 + i, SW1, SW1 + 3, sOFF, i * 1024, wf) for i in range(4)]
            frags = []
            for kk in range(2):
                ks = 2 * st + kk
                for t in range(4):
                    for mat in range(2):
                        def mf(buf, ks=ks, t=t, mat=mat, acc=acc, XC=(XC if rho else XV0)):
                            order = (0, 1) if mat == 0 else (1, 0)
                            return [mfma(vr(acc + ((t * 2 + mat) * 2 + tt) * 4, 4), ar(buf, 4), XC(tt, ks), "0" if ks == 0 else None) for tt in order]
                        frags.append((tr_reads(B1, t, lo + mat * 8192 + kk * 4096, 512), mf))
            push(Stage(lo, lo + 16384, pre, dmas, frags, None if n == 0 else "x"))
    def hreg(b, u, tt):
        k = (u * 2 + tt) * 4
        if b == 0: return vr(H + k, 4)
        if b == 2: return ar(k, 4)
        if b == 1: return ar(176 + k, 4) if u < 8 else ar(96 + k - 64, 4)
        if u < 2: return ar(128 + k, 4)
        if u < 4: return ar(240 + k - 16, 4)
        return vr(136 + k - 32, 4)
    A2, AO, AS, AK = 32, 64, 96, 112
    def mk(acc, b, u, t, z):
        def mf(buf):
            order = (0, 1) if t % 2 == 0 else (1, 0)
            return [mfma(vr(acc + (t * 2 + tt) * 4, 4), ar(buf, 4), hreg(b, u, tt), "0" if z else None) for tt in order]
        return mf
    def full(b, q, acc):
        lo = slot(len(stages))
        sb, add = (sKB + b, 256) if acc == A2 else (sKO + b, 0)
        pre = ["s_add_u32 m0, s%d, %d" % (sM0W, lo), "s_add_u32 s%d, s%d, %d" % (sOFF, sb, q * 128 * 1152 + add)]
        dmas = ["buffer_load_dwordx4 v%d, s[%d:%d], s%d offen offset:%d %s lds" % (5 + i, SW2, SW2 + 3, sOFF, i * 1024, wf) for i in range(4)]
        frags = [(tr_reads(B1, t, lo + kk * 4096, 2048), mk(acc, b, 4 * q + kk, t, (b, q, kk) == (0, 0, 0))) for kk in range(4) for t in range(4)]
        push(Stage(lo, lo + 16384, pre, dmas, frags, "x"))
    def half(bqs, acc):
        lo = slot(len(stages)); dmas = []; frags = []
        for k, (b, q) in enumerate(bqs):
            p = lo + 8192 * k
            ld = ["buffer_load_dwordx4 v%d, s[%d:%d], s%d offen offset:%d %s lds" % ((25, 22)[i], SW2, SW2 + 3, sOFF, i * 1024, wf) for i in range(2)]
            dmas += [["s_add_u32 m0, s%d, %d" % (sM0H, p), "s_add_u32 s%d, s%d, %d" % (sOFF, (sKS if acc == AS else sKK) + b, q * 128 * 1152), ld[0]], [ld[1]]]
            for kk in range(4):
                for t in range(2):
                    off = p + kk * 2048
                    def rd(buf, off=off, t=t):
                        v = BH + 2 * (off >> 16) + t
                        return ["ds_read_b64_tr_b16 %s, v%d offset:%d" % (ar(buf, 2), v, off & 0xffff), "ds_read_b64_tr_b16 %s, v%d offset:%d" % (ar(buf + 2, 2), v, (off & 0xffff) + 1024)]
                    frags.append((rd, mk(acc, b, 4 * q + kk, t, acc == AS and (b, q, kk) == (0, 0, 0))))
        push(Stage(lo, lo + 16384, [], dmas, frags, "x"))
    def wo(us, acc):
        lo = slot(len(stages)); v = {A2: 1, AO: 2, AS: 3}[acc]
        sel = [(sM0W, lo + i * 1024, sWO + i) for i in range(4)] if len(us) == 4 else [(sM0B, lo, sWO + 4)]
        dmas = [["s_add_u32 m0, s%d, %d" % (m, o), "s_nop 0", "buffer_load_dwordx4 v%d, s[%d:%d], s%d offen %s lds" % (v, SPHI, SPHI + 3, so, wf)] for m, o, so in sel]
        frags = [(tr_reads(B1, t, lo + kk * 4096, 2048), mk(acc, 3, u, t, acc == AS and u == 0 and t >= 2)) for kk, u in enumerate(us) for t in range(4)]
        push(Stage(lo, lo + 16384, [], dmas, frags, "x"))
    Q = lambda q: list(range(4 * q, 4 * q + 4))
    BQ = [(0, 0), (0, 1), (0, 2), (1, 0), (1, 1), (2, 0), (2, 1), (1, 2), (2, 2)]
    first = {}
    S2 = len(stages)
    for n, bq in enumerate(BQ[:7]):
        first[bq] = len(stages)
        full(*bq, A2); full(*bq, AO)
        if n == 3: SH0 = len(stages); half(BQ[0:2], AS); half(BQ[2:4], AS)
        if n == 6: half(BQ[4:6], AS); half(BQ[6:7], AS)
    SL = len(stages); first[(1, 2)] = SL; first[(2, 2)] = SL + 1; SO = SL + 2
    for acc in (A2, AO):
        full(1, 2, acc); full(2, 2, acc); wo(Q(0), acc); wo([4], acc)
    half(BQ[7:9], AS); wo(Q(0), AS); wo([4], AS)
    SK = len(stages)
    for n in range(0, 9, 2): half(BQ[n:n + 2], AK)
    pipe = Pipe(g, stages, opt.get("D", 7), 2)
    TOUCH = opt.get("touch", 1); tf = opt.get("tflags", "")
    def touch1(rho): return ["buffer_load_dword v31, v29, s[%d:%d], s%d offen offset:%d %s" % (SW1, SW1 + 3, sB1, rho * 128, tf)]
    def touch2(b):
        if b == 3: return ["buffer_load_dword v31, v26, s[%d:%d], s%d offen %s" % (SPHI, SPHI + 3, sWT, tf)]
        if opt.get("t2c", 0):
            return [["s_add_u32 s3, s60, %d" % (b * 96 * 4608), "buffer_load_dword v31, v30, s[%d:%d], s3 offen %s" % (SW2, SW2 + 3, tf)]]
        return ["buffer_load_dword v31, v26, s[%d:%d], s%d offen %s" % (SW2, SW2 + 3, sKB + b, tf)]
    def early():
        e("v_lshrrev_b32 v28, 3, v0")
        e("s_and_b32 s%d, s%d, 1" % (sOFF, sW))
        e("s_lshl_b32 s%d, s%d, 5" % (sOFF, sOFF))
        e("v_add_u32 v1, s%d, v28" % sOFF)
        e("v_mul_u32_u24 v1, 9216, v1")
        e("v_and_b32 v2, 2, v28")
        e("v_and_b32 v3, 7, v0")
        e("v_xor_b32 v2, v2, v3")
        e("v_lshl_add_u32 v1, v2, 4, v1")
        e("v_xor_b32 v2, 64, v1")
        e("v_add_u32 v2, %d, v2" % (8 * 9216 - 1024))
        e("v_add_u32 v3, %d, v1" % (2 * (8 * 9216 - 1024)))
        e("v_add_u32 v4, %d, v2" % (2 * (8 * 9216 - 1024)))
        pipe.refill(); pipe.flush()
    vset = ["v_lshrrev_b32 v28, 3, v0", "s_lshl_b32 s96, s%d, 5" % sW, "v_add_u32 v5, s96, v28", "v_mul_u32_u24 v5, 1152, v5",
            "v_lshlrev_b32 v6, 1, v22", "v_and_b32 v7, 7, v0", "v_xor_b32 v6, v6, v7", "v_lshl_add_u32 v5, v6, 4, v5",
            "v_lshrrev_b32 v28, 2, v0", "v_add_u32 v25, s96, v28", "v_mul_u32_u24 v25, 1152, v25", "v_and_b32 v6, 3, v6", "v_lshl_add_u32 v25, v6, 4, v25"]
    vset += ["v_add_u32 v%d, %d, v5" % (5 + i, i * (8 * 1152 - 1024)) for i in range(1, 4)]
    vset += ["v_lshlrev_b32 v%d, 4, v0" % VST, "v_lshlrev_b32 v27, 9, v22", "v_add_u32 v28, s%d, v0" % sW, "v_cmp_eq_u32 vcc, 0, v28",
             "v_mov_b32 v24, 0x%x" % OOB, "v_mov_b32 v28, 0", "v_cndmask_b32 v24, v24, v28, vcc"]
    vset += ["v_mul_u32_u24 v28, 5462, v0", "v_lshrrev_b32 v28, 16, v28", "v_mul_u32_u24 v26, 12, v28", "v_sub_u32 v26, v0, v26",
             "s_mul_i32 s96, s%d, 12" % sW, "s_and_b32 s95, s%d, 7" % sR, "s_mul_i32 s95, s95, 48", "s_add_u32 s96, s96, s95",
             "v_add_u32 v26, s96, v26", "v_mul_u32_u24 v26, 1152, v26", "v_lshl_add_u32 v26, v28, 7, v26",
             "s_cmp_ge_u32 s96, 144", "s_cselect_b32 s%d, 0x%x, s%d" % (sWT, OOB, sWT),
             "s_and_b32 s96, s%d, 1" % sW, "s_mul_i32 s96, s96, 36", "s_and_b32 s95, s%d, 7" % sR, "s_mul_i32 s95, s95, 72", "s_add_u32 s96, s96, s95",
             "v_add_u32 v29, s96, v0", "v_mul_u32_u24 v29, 9216, v29",
             "v_cmp_gt_u32 vcc, 36, v0", "v_mov_b32 v28, 0x%x" % OOB, "s_nop 0", "v_cndmask_b32 v26, v28, v26, vcc", "v_cndmask_b32 v29, v28, v29, vcc"]
    sp = []
    NSP = opt.get("nsp", 0)
    if NSP:
        e("s_and_b32 s6, s%d, 7" % sR); e("s_lshl_b32 s6, s6, 1"); e("s_and_b32 s7, s%d, 1" % sW); e("s_add_u32 s6, s6, s7")
        e("s_mul_i32 s6, s6, %d" % (NSP * 9216)); e("s_add_u32 s6, s6, s%d" % sB1); e("s_add_u32 s6, s6, %d" % (opt.get("sp0", 64) * 9216))
        e("s_add_u32 s90, s%d, s6" % sT); e("s_addc_u32 s91, s%d, 0" % sT2)
        sp = ["s_load_dword s92, s[90:91], 0x%x" % (i * 9216 + h * 64) for i in range(NSP) for h in range(2)]
    prologue(g, pipe, early=early, afterbar=(lambda: [e(t) for t in touch1(0) + (touch1(1) if not opt.get('t1pos', 70) else [])]) if TOUCH else None, nfirst=opt.get('nfirst', 8),
             fill=sp + group_scc(late_setup() + vset + tr_bases(g, B1, 8)))
    def epi1(rho):
        acc = ACC[rho & 1]; ops = []; sts = ["s_add_u32 s%d, s%d, %d" % (sT2, sHX, rho * 4096)]
        for t in range(4):
            for tt in range(2):
                gt = acc + ((t * 2) * 2 + tt) * 4; up = acc + ((t * 2 + 1) * 2 + tt) * 4
                u = 2 * rho + t // 2
                h = H + (u * 2 + tt) * 4 + (t & 1) * 2
                for k in range(2):
                    for i in (2 * k, 2 * k + 1): ops.append("v_max_f32 v%d, 0, v%d" % (gt + i, gt + i))
                    for i in (2 * k, 2 * k + 1): ops.append("v_mul_f32 v%d, v%d, v%d" % (gt + i, gt + i, up + i))
                    ops.append("v_cvt_pk_bf16_f32 v%d, v%d, v%d" % (h + k, gt + 2 * k, gt + 2 * k + 1))
                if t & 1:
                    sts.append(("buffer_store_dwordx4 %s, v%d, s[%d:%d], s%d offen offset:%d sc1" % (hreg(0, u, tt), VST, SWS, SWS + 3, sT2, ((u & 1) * 2 + tt) * 1024), ("hst", rho)))
        return ops, sts
    def hloads(b, q):
        ops = []
        for u in (range(5) if b == 3 else Q(q)):
            if u % 2 == 0: ops.append("s_add_u32 s%d, s%d, %d" % (sT, sOX if b == 3 else sHX + b, u * 2048))
            for tt in range(2):
                ops.append(("buffer_load_dwordx4 %s, v%d, s[%d:%d], s%d offen offset:%d sc1" % (hreg(b, u, tt), VST, SWS, SWS + 3, sT, ((u & 1) * 2 + tt) * 1024), ("h", b, q)))
        return ops
    extra = {}; urgent = {}
    add = lambda k, l: extra.setdefault(k, []).extend(l)
    addu = lambda k, l: urgent.setdefault(k, []).extend(l)
    EP = opt.get("epiw", 75)
    for rho in range(5):
        spread(sum(epi1(rho), []) + [Mark("epi%d" % rho)], 144 * (rho + 1) + 3, 144 * (rho + 1) + EP, extra)
    P2 = start[S2]
    hb = ["v_bfe_u32 v144, v0, 2, 4", "v_lshlrev_b32 v144, 6, v144", "v_bfe_u32 v145, v0, 4, 1", "v_lshl_add_u32 v144, v145, 5, v144",
          "v_and_b32 v145, 3, v0", "v_lshl_add_u32 v144, v145, 3, v144", "v_xor_b32 v145, 32, v144"]
    hb += ["v_add_u32 v%d, 0x%x, v%d" % (BH + 2 * k + t, k << 16, BH + t) for k in (1, 2) for t in range(2)]
    hb += ["v_lshrrev_b32 v2, 5, v0", "v_bfe_u32 v3, v0, 3, 2", "v_lshl_add_u32 v2, v2, 4, v3", "v_mul_u32_u24 v4, 1152, v2",
           "v_bfe_u32 v2, v0, 4, 2", "v_lshlrev_b32 v2, 1, v2", "v_and_b32 v3, 7, v0", "v_xor_b32 v2, v2, v3", "v_lshl_add_u32 v4, v2, 4, v4",
           "v_add_u32 v1, 256, v4", "s_sub_u32 s96, s%d, s%d" % (sKO, sKB), "v_add_u32 v2, s96, v4",
           "s_sub_u32 s96, s%d, s%d" % (sKS, sKB), "s_and_b32 s95, s96, 64", "v_xor_b32 v3, s95, v4", "s_and_b32 s96, s96, 128", "v_add_u32 v3, s96, v3"]
    add(P2 + 3, [Dens(1)] + epi1(5)[0] + [Mark("epi5"), Dens(0)] + epi1(5)[1] + hb + [Mark("hb")])
    pauses = [(0, opt.get('p0', 0))]
    if TOUCH:
        T = [touch1(2), touch1(3), touch1(4), touch1(5), touch2(0), touch2(1), touch2(2), touch2(3)]
        for n, (k, ops) in enumerate(zip(opt.get("tpos", [70, 148, 292, 436, 510, 690, 760, 760]), T)):
            addu(k, ops); pauses.append((k, k + opt.get("pl", [40] * 8)[n]))
    if opt.get("t1pos", 70): addu(opt.get("t1pos", 70), touch1(1))
    add(150, ["s_lshl_b32 s60, s%d, 3" % sI, "s_and_b32 s96, s%d, 7" % sR, "s_add_u32 s60, s60, s96", "s_lshl_b32 s60, s60, 2", "s_add_u32 s60, s60, s%d" % sW,
              "s_mul_i32 s60, s60, 4608", "s_mul_i32 s96, s%d, %d" % (sJ, 1152 * 1152), "s_add_u32 s60, s60, s96",
              "v_min_u32 v30, 35, v0", "v_lshlrev_b32 v30, 7, v30"])
    if opt.get("cpf", 6144):
        e("s_lshr_b32 s101, s2, 3"); e("s_sub_u32 s101, s101, 8"); e("s_lshl_b32 s101, s101, 2"); e("s_add_u32 s101, s101, s%d" % sW)
        e("s_lshl_b32 s101, s101, 6"); e("s_add_u32 s101, s101, %d" % opt.get("cpf", 9216))
        for k in range(opt.get('cp0', 20), start[-1], opt.get('cpp', 125)): addu(k, [code_pf()])
    add(1, xc_copies() + [Mark("xc"), "v_add_u32 v22, %d, v25" % (16 * 1152 - 1024)])
    add(144 + 90, flag_lane_offsets(23, 28) + [Mark("flo")])
    addu(288 + 100, [lambda: flag_issue(g, 28, 23, None)])
    groups = list(range(0, SL, 2)) + [SL + k for k in opt.get('eg', [0, 1, 2, 4, 6, 8, 11, 14])]
    bar = lambda n: start[n] - pipe.D - 1
    hooks = {}
    def before(n, f):
        assert n in groups, n
        hooks.setdefault(n, []).append(f); stages[n].before = lambda n=n: [f() for f in hooks[n]]
    before(26, lambda: flag_check(g, 28, 23, None, 0))
    FLD = opt.get('fld', 50); CMB = opt.get('cmb', 0)
    HS = opt.get("hs", [[30, 36], [46, 52], [S2 + 8, S2 + 14]])
    for q, (ns, nc) in enumerate(HS):
        before(ns, lambda q=q: g.wait_vm(("hst", 2 * q + 1)))
        stages[ns].after = lambda q=q: signal(g, 28, 24, 63, 16 * q)
        addu(bar(nc) - FLD, [lambda: flag_issue(g, 28, 23, sCNT)])
        before(nc, lambda q=q: flag_check(g, 28, 23, sCNT, (0x7 << (4 * q)) | (0x1000 if q == 2 and CMB else 0)))
    HW = opt.get("hw", [100, 100, 20])
    HP = opt.get("hp", [0, 0, 0])
    for q in range(3):
        spread(hloads(1, q), bar(HS[q][1]) + 1, bar(HS[q][1]) + 1 + HW[q], urgent); pauses.append((bar(HS[q][1]) + 1, bar(HS[q][1]) + 1 + HP[q]))
    assert bar(HS[1][1]) + 1 + HW[1] <= P2 + opt.get("h2pos", 100)
    spread(hloads(2, 0) + hloads(2, 1), P2 + opt.get("h2pos", 100), P2 + opt.get('h2pos', 100) + 60, urgent)
    def to_g2():
        for k in range(12): e("v_sub_u32 v%d, v%d, v27" % (B1 + k, B1 + k))
    stages[S2].after = to_g2
    for bq in BQ[3:]: before(first[bq], lambda bq=bq: g.wait_vm(("h",) + bq))
    spread(hloads(2, 2), bar(SL) - opt.get('h22', 30), bar(SL) - opt.get('h22', 30) + 10, urgent)
    sFL, sFW, sPL, sCOL, sRS, sMSK, sP1, sCK = 64, 65, 66, 67, 68, 69, 72, 75
    a2 = Asm(); srd(a2, SW1, 61, 62, PSZ)
    fin = [l.strip() for l in a2.lines]
    fin += ["s_mul_i32 s95, s%d, 3" % sR, "s_add_u32 s95, s95, s%d" % sI, "s_lshl_b32 s%d, s95, 7" % sFL, "s_add_u32 s%d, s%d, 0x%x" % (sFL, sFL, WS_FLG + 72 * 128),
           "s_lshl_b32 s%d, s%d, 2" % (sFW, sJ), "s_add_u32 s%d, s%d, s%d" % (sFW, sFW, sFL),
           "s_lshr_b32 s95, s%d, 1" % sJ, "s_lshl_b32 s96, s95, 11", "s_add_u32 s%d, s%d, s96" % (sPL, sB2), "s_add_u32 s%d, s%d, 8192" % (sPL, sPL),
           "s_and_b32 s96, s%d, 1" % sJ, "s_lshl_b32 s76, s96, 7", "s_add_u32 s%d, s%d, s76" % (sPL, sPL),
           "s_lshl_b32 s95, s95, 12", "s_lshl_b32 s96, s96, 10", "s_add_u32 s95, s95, s96", "s_add_u32 s76, s95, s%d" % sB2]
    for k in range(3):
        fin += ["s_add_u32 s96, s%d, %d" % (sJ, k + 1), "s_and_b32 s96, s96, 3", "s_mul_i32 s96, s96, %d" % PSZ, "s_add_u32 s%d, s76, s96" % (sP1 + k)]
    fin += ["v_and_b32 v150, 0x37, v0", "v_lshlrev_b32 v150, 4, v150", "v_bfe_u32 v155, v0, 3, 1", "v_lshl_add_u32 v150, v155, 10, v150",
            "s_mul_i32 s%d, s%d, 384" % (sCOL, sI), "s_add_u32 s%d, s%d, s4" % (sCOL, sCOL), "s_lshl_b32 s96, s%d, 6" % sJ, "s_add_u32 s%d, s%d, s96" % (sCK, sCOL),
            "s_add_u32 s77, s%d, %d" % (sCK, 16 * 1152),
            "v_bfe_u32 v156, v0, 4, 1", "v_lshlrev_b32 v156, 5, v156", "v_lshrrev_b32 v157, 5, v0", "v_lshl_add_u32 v156, v157, 4, v156",
            "s_lshl_b32 s95, s%d, 3" % sJ, "v_and_b32 v151, 7, v0", "v_add_u32 v151, s95, v151", "v_lshlrev_b32 v153, 2, v151",
            "v_mul_u32_u24 v151, 1152, v151", "v_lshl_add_u32 v151, v155, 6, v151", "v_add_u32 v151, v151, v156",
            "v_and_b32 v152, 15, v0", "v_lshlrev_b32 v154, 2, v152", "v_mul_u32_u24 v152, 1152, v152", "v_add_u32 v152, v152, v156",
            "s_lshl_b32 s96, s%d, 2" % sR, "s_add_u32 s96, s96, s%d" % sJ, "s_lshl_b32 s96, s96, 2", "s_add_u32 s96, s96, s%d" % sW,
            "s_lshl_b32 s%d, s96, 7" % sRS, "s_add_u32 s%d, s%d, 0x%x" % (sRS, sRS, WS_RS2),
            "s_mov_b32 s70, 0x3f80", "s_mov_b32 s71, 0x3f800000"]
    add(P2 + 150, fin + [Mark("fin")])
    XL = [(32, 152, sCK, 0), (36, 152, 77, 0), (40, 151, sCOL, 256)]
    RL = [(155, 154, 0), (156, 154, 64), (157, 153, 0)]
    nO = SL - opt.get('oearly', 0)
    if not CMB:
        addu(bar(nO) - opt.get('old', 30), [lambda: flag_issue(g, 28, 23, sCNT)])
        before(nO, lambda: flag_check(g, 28, 23, sCNT, 0x1000))
    spread(hloads(3, 0) + ["buffer_load_dword v%d, v%d, s[%d:%d], s%d offen offset:%d sc1" % (d, v, SWS, SWS + 3, sRS, im) for d, v, im in RL], bar(nO) + opt.get('o0', 1), bar(nO) + opt.get('o1', 5), urgent)
    before(SO, lambda: g.wait_vm(("h", 3, 0)))
    add(start[SL + 4] + 3, store_ops(g, A2, PK, 2, VST))
    add(start[SL + 8] + 3, store_ops(g, AO, PK, 0, VST, sSO))
    add(start[SK] + 3, [Dens(1)] + store_ops(g, AS, PK, 0, VST, sSS, 2, "pst") + [Mark("pst"), Dens(0)] + ["v_mov_b32 v%d, 0" % (96 + i) for i in range(8)] +
        [("buffer_load_dwordx4 %s, v%d, s[%d:%d], s%d offen offset:%d" % (vr(d, 4), v, SX, SX + 3, so, im), "fx") for d, v, so, im in XL])
    INS = opt.get("insig", 1); SG = SK + opt.get('sg', 3); FI = opt.get('fi', 0)
    if FI: addu(start[-1] - FI, [lambda: flag_issue(g, 28, 23, sFL)])
    if INS:
        before(SG, lambda: g.wait_vm("pst")); stages[SG].after = lambda: signal(g, 28, 24, sFW, 0)
    if opt.get("ts") or opt.get("amp") is not None:
        for k in ([720] + list(range(720 + 48, start[-1], 32)) if opt.get('fine2') else (144, 288, 432, 576, 720, P2, P2 + 144, P2 + 288, start[SK])): addu(k, [g.stamp])
    pipe.run(0, len(stages), extra, pauses=pauses, groups=groups, urgent=urgent)
    w = pipe.when
    if opt.get("verbose"): print(w, "P2", P2, "SK", start[SK], "end", start[-1], "barK", bar(SK + 4))
    assert w["xc"] < 142 and w["flo"] < 288 + 100 and all(w["epi%d" % r] < 144 * (r + 2) - 1 for r in range(5)), w
    assert w["epi5"] < start[first[(0, 2)]] + 7 and w["hb"] < bar(SH0) and w["fin"] < bar(nO) - 1 and w["pst"] < bar(SG), w
    g.stamp()
    if not INS:
        e("s_waitcnt vmcnt(0)"); e("s_barrier"); signal(g, 28, 24, sFW, 0)
    flag_check(g, 28, 23, sFL, 0xf, issued=bool(FI), sleep=1)
    e("s_barrier")
    g.stamp()
    UA = [(AK, AK + 8), (AK + 4, AK + 12), (96, 100)]
    lds = []
    regs = list(range(48, 96, 4))
    for p in range(4):
        if p < 3:
            for tt in range(2):
                d = regs.pop(0); lds.append((d, tt))
                e("buffer_load_dwordx4 %s, v%d, s[%d:%d], s%d offen offset:%d sc1" % (vr(d, 4), VST, SWS, SWS + 3, sP1 + p, tt * 2048), ("pl", len(lds)))
        if p: e("s_add_u32 s%d, s%d, %d" % (sPL, sPL, PSZ))
        d = regs.pop(0); lds.append((d, 2))
        e("buffer_load_dwordx4 %s, v150, s[%d:%d], s%d offen sc1" % (vr(d, 4), SWS, SWS + 3, sPL), ("pl", len(lds)))
    g.wait_vm("fx")
    for k in range(12):
        e("v_lshlrev_b32 v%d, 16, v%d" % (160 + 2 * k, 32 + k))
        e("v_and_b32 v%d, 0xffff0000, v%d" % (161 + 2 * k, 32 + k))
    for n, (d, u) in enumerate(lds):
        if n % 3 == 0: g.wait_vm(("pl", min(n + 3, len(lds))))
        for i in range(4):
            a0 = UA[u][i // 2] + 2 * (i % 2)
            e("v_dot2c_f32_bf16 v%d, s70, v%d" % (a0, d + i))
            e("v_dot2c_f32_bf16 v%d, s71, v%d" % (a0 + 1, d + i))
    e("s_nop 2")
    for u in range(3):
        for i in range(4): e("v_permlane16_swap_b32 v%d, v%d" % (UA[u][0] + i, UA[u][1] + i))
        for i in range(4):
            a0 = UA[u][i // 2] + 2 * (i % 2); x = 160 + 8 * u + 2 * i
            e("v_fmac_f32 v%d, v%d, v%d" % (x, a0, 155 + u))
            e("v_fmac_f32 v%d, v%d, v%d" % (x + 1, a0 + 1, 155 + u))
            e("v_cvt_pk_bf16_f32 v%d, v%d, v%d" % (184 + 4 * u + i, x, x + 1))
        e("buffer_store_dwordx4 %s, v%d, s[%d:%d], s%d offen offset:%d %s" % (vr(184 + 4 * u, 4), XL[u][1], SW1, SW1 + 3, XL[u][2], XL[u][3], opt.get("oflags", "nt")))
    if opt.get("ts") or opt.get("amp") is not None:
        e("s_waitcnt vmcnt(0)"); g.stamp()

def k1(g):
    e, opt = g.e, g.opt
    kernel_head(g, K1)
    e("s_load_dwordx2 s[%d:%d], s[0:1], 0" % (SX, SX + 1))
    e("s_lshr_b32 s3, s2, 8")
    e("s_cbranch_scc1 L_k1_end")
    sh = opt.get("vsh", 2)
    e("s_getpc_b64 s[84:85]")
    e("s_bitcmp1_b32 s2, 3")
    e("s_cselect_b32 s3, L_att-%s, 0" % K1)
    e("s_lshr_b32 s4, s2, 4")
    e("s_lshl_b32 s4, s4, %d" % (8 + sh))
    e("s_add_u32 s3, s3, s4")
    e("v_lshrrev_b32 v1, 6, v0")
    e("v_lshl_add_u32 v2, v0, %d, s3" % sh)
    e("global_load_dword v255, v2, s[84:85]")
    e("v_readfirstlane_b32 s%d, v1" % sW)
    e("v_and_b32 v0, 63, v0")
    e("v_lshrrev_b32 v104, 3, v0")
    e("v_lshrrev_b32 v22, 4, v0")
    e("v_mul_u32_u24 v104, 1152, v104")
    e("v_and_b32 v105, 7, v0")
    e("v_xor_b32 v105, v105, v22")
    e("v_lshl_add_u32 v104, v105, 4, v104")
    e("s_and_b32 s6, s2, 64")
    e("v_xor_b32 v104, s6, v104")
    e("s_bfe_u32 s%d, s2, 0x30003" % sT)
    e("s_and_b32 s%d, s2, 1" % sR)
    e("s_lshl3_add_u32 s%d, s%d, s%d" % (sR, sR, sT))
    e("s_lshr_b32 s60, s2, 6")
    e("s_lshl2_add_u32 s6, s%d, s60" % sW)
    e("s_lshl4_add_u32 s7, s%d, s6" % sR)
    e("s_mulk_i32 s6, 9216")
    e("s_mulk_i32 s7, 9216")
    e("s_mov_b32 m0, s6")
    e("s_mov_b32 s%d, 0x%x" % (SX + 2, PSZ))
    e("s_mov_b32 s%d, 0x20000" % (SX + 3))
    e("s_waitcnt lgkmcnt(0)")
    rest = ["s_load_dwordx8 s[64:71], s[0:1], 0", "s_load_dwordx4 s[72:75], s[0:1], 40", "s_load_dwordx4 s[76:79], s[0:1], 56", "s_load_dwordx4 s[80:83], s[0:1], 72"]
    if opt.get("ts") or opt.get("amp") is not None:
        for t in rest: e(t)
        rest = []
        e("s_waitcnt lgkmcnt(0)")
        e("s_lshl_b32 s94, s2, 2"); e("s_add_u32 s94, s94, s%d" % sW); e("s_lshl_b32 s94, s94, 8"); e("s_add_u32 s94, s94, 0x%x" % WS_TS)
        srd(g, SWS, 82, 83, WS_BYTES); srd(g, SDBG, 80, 81, 256); g.stamp()
    for j in range(9): x_dma(g, 0, j)
    for t in rest: e(t)
    e("v_xor_b32 v105, 64, v104")
    e("v_and_b32 v23, 15, v0")
    e("s_lshl2_add_u32 s4, s%d, s%d" % (sR, sW))
    e("s_mul_i32 s4, s4, 36864")
    e("s_mul_i32 s5, s%d, 36864" % sW)
    e("s_bfe_u32 s%d, s2, 0x20001" % sS)
    e("s_lshr_b32 s3, s2, 6")
    for o in range(1, opt.get("xcommon", 2)):
        for j in range(9): x_dma(g, o, j)
    e("s_waitcnt lgkmcnt(0)")
    wb = opt.get("wsbase", 0)
    if wb:
        e("s_add_u32 s82, s82, 0x%x" % wb); e("s_addc_u32 s83, s83, 0")
    srd(g, SWS, 82, 83, WS_BYTES - wb)
    srd(g, SDBG, 80, 81, 256)
    e("s_or_b32 s%d, s2, s%d" % (sT, sW))
    e("s_cbranch_scc1 L_nonce_done")
    e("s_memrealtime s[98:99]")
    e("s_waitcnt lgkmcnt(0)")
    e("v_mov_b32 v2, s98")
    e("v_or_b32 v2, 1, v2")
    Asm.e(g, "buffer_store_dword v2, off, s[%d:%d], 0 sc1" % (SDBG, SDBG + 3))
    g.label("L_nonce_done")
    e("s_cmp_eq_u32 s3, 0")
    e("s_cbranch_scc1 %s" % ("L_k1_end" if opt.get("noatt") else "L_att"))
    sv = (list(g.vm), list(g.lg), g.nts)
    g.sv = 31
    ffn_role(g)
    g.sv = 30
    def amp(role):
        if opt.get("amp") is None or opt.get("amprole", "ffn") != role: return
        L = g.newlabel("L_amp")
        e("s_sub_u32 s101, s94, s100")
        e("s_add_u32 s101, s101, %d" % opt.get("ampadd", 0))
        if role == "ffn":
            e("s_memrealtime s[92:93]"); e("s_waitcnt lgkmcnt(0)"); e("s_mov_b32 s100, s92")
        g.label(L)
        e("s_sleep 1"); e("s_memrealtime s[92:93]"); e("s_waitcnt lgkmcnt(0)")
        e("s_sub_u32 s92, s92, s100"); e("s_cmp_lt_u32 s92, s101"); e("s_cbranch_scc1 %s" % L)
    amp("ffn")
    e("s_endpgm")
    g.vm, g.lg, g.nts = sv
    g.raw(".p2align 6")
    g.label("L_att")
    import att
    att.att_role(g)
    amp("att")
    g.label("L_k1_end")
    e("s_endpgm")
    g.raw(".fill %d, 4, 0xbf810000" % (8192 if opt.get("vsh", 2) == 4 else 4096))

VOP3ONLY = ("v_mfma", "v_pk_", "v_fma_f32", "v_cvt_pk_bf16", "v_accvgpr_read", "v_accvgpr_write", "v_max3", "v_min3", "v_lshl_add", "v_add_lshl", "v_mad_u32",
            "v_bfe", "v_add3", "v_mul_lo", "v_mul_hi", "v_lshl_or", "v_and_or", "v_readlane", "v_perm_b32")
NOWIDE = ("v_readfirstlane", "v_permlane", "v_dot2c", "v_nop")
def has_lit(s):
    for t in re.split(r"[ ,]+", s)[1:]:
        if re.match(r"^-?(0x[0-9a-f]+|\d+)$", t):
            v = int(t, 0)
            if not (-16 <= v <= 64) and v not in (0x3f800000, 0x3f000000, 0x40000000, 0x40800000, 0xbf800000, 0xbf000000, 0xc0000000, 0xc0800000): return True
        if t.startswith("L_"): return not s.startswith(("s_cbranch", "s_branch"))
    return False
def isize(s):
    op = s.split()[0]
    if op.startswith(("ds_", "buffer_", "global_", "s_load", "s_mem")): return 8, False
    if op.startswith("s_"):
        if op.startswith(("s_waitcnt", "s_addk", "s_mulk", "s_nop", "s_barrier", "s_sleep", "s_endpgm", "s_cbranch", "s_branch", "s_setprio", "s_getreg")): return 4, False
        return (8 if has_lit(s) else 4), False
    if op.startswith(VOP3ONLY): return 8, False
    if has_lit(s): return 8, False
    ops = [x.strip() for x in re.split(r",(?![^\[]*\])", s.split(None, 1)[1])]
    if op.startswith("v_cmp") and ops[0] != "vcc": return 8, False
    if op.startswith("v_cndmask") and ops[-1] != "vcc": return 8, False
    if len(ops) >= 3 and not ops[2].startswith("v"): return 8, False
    return 4, not op.startswith(NOWIDE)
def align_pass(lines, minrun=4):
    ins = [l.strip() for l in lines]
    out = []; par = 0
    isins = lambda l: l and not l.endswith(":") and not l.startswith((".", ";"))
    n = len(ins)
    def nxt(i):
        i += 1
        while i < n and not isins(ins[i]):
            if ins[i].startswith(".p2align"): return None
            i += 1
        return i if i < n else None
    for i, l in enumerate(ins):
        if not isins(l):
            if l.startswith(".p2align"): par = 0
            out.append(l); continue
        sz, flex = isize(l)
        if sz == 8: out.append(l); continue
        if par == 1: out.append(l); par = 0; continue
        j = nxt(i)
        if j is None or isize(ins[j])[0] == 4: out.append(l); par = 1; continue
        if flex:
            op, rest = l.split(None, 1); out.append(op + "_e64 " + rest); continue
        run = 0
        while j is not None and isize(ins[j])[0] == 8 and run < minrun: run += 1; j = nxt(j)
        out.append(l)
        if run >= minrun and not l.startswith(("s_branch", "s_endpgm")): out.append("s_nop 0")
        else: par = 1
    return out

LABELS = {}
def resolve(lines):
    off = 0; LABELS.clear()
    for l in lines:
        l = l.strip()
        if l.endswith(":"): LABELS[l[:-1]] = off
        elif l.startswith(".p2align"):
            a = 1 << int(l.split()[1]); off = (off + a - 1) // a * a
        elif l and not l.startswith((".", ";")):
            off += 8 if l.split()[0].endswith("_e64") else isize(l)[0]
    end = LABELS["L_k1_end"]
    def f(m):
        span = 2048 if LABELS[m.group(1)] >= LABELS["L_att"] else 6144
        return "0x%x" % (min(LABELS[m.group(1)] + int(m.group(2)), end - span) & ~3)
    return [re.sub(r"@(\w+)\+(\d+)", f, l) if l.strip().startswith("s_load") else l for l in lines]

MACROS = """.macro MA d,a,b
v_mfma_f32_16x16x32_bf16 v[\\d:\\d+3], a[\\a:\\a+3], a[\\b:\\b+3], v[\\d:\\d+3]
.endm
.macro MV d,a,b
v_mfma_f32_16x16x32_bf16 v[\\d:\\d+3], a[\\a:\\a+3], v[\\b:\\b+3], v[\\d:\\d+3]
.endm
.macro RT d,b,o
ds_read_b64_tr_b16 a[\\d:\\d+1], v\\b offset:\\o
.endm
.macro WL n
s_waitcnt lgkmcnt(\\n)
.endm
.macro CV d,a,b
v_cvt_pk_bf16_f32 v\\d, v\\a, v\\b
.endm
"""
def compress(line):
    s = line.strip()
    m = re.match(r"v_mfma_f32_16x16x32_bf16 v\[(\d+):\d+\], a\[(\d+):\d+\], ([av])\[(\d+):\d+\], v\[(\d+):\d+\]$", s)
    if m and m.group(1) == m.group(5): return "M%s %s,%s,%s" % (m.group(3).upper(), m.group(1), m.group(2), m.group(4))
    m = re.match(r"ds_read_b64_tr_b16 a\[(\d+):\d+\], v(\d+) offset:(\d+)$", s)
    if m: return "RT %s,%s,%s" % m.groups()
    m = re.match(r"s_waitcnt lgkmcnt\((\d+)\)$", s)
    if m: return "WL %s" % m.group(1)
    m = re.match(r"v_cvt_pk_bf16_f32 v(\d+), v(\d+), v(\d+)$", s)
    if m: return "CV %s,%s,%s" % m.groups()
    return s

def gen(**opt):
    g = G(opt)
    k1(g)
    FUSE = 1
    errs = hazard.check(g.lines)
    if errs:
        print("\n".join(errs[:40])); raise SystemExit("hazards: %d" % len(errs))
    head = open("cdna_kernels/%s.s.ref" % BASE).read().split("; Override launch")[0] if not opt.get("nohead") else ""
    out = head
    if FUSE: out += "; @launch grid=(256,1,1) block=(256,1,1) lds=163840\n"
    else: out += "; @launch kernel=%s grid=(256,1,1) block=(256,1,1) lds=163840\n" % K1
    if not FUSE: out += "; @launch kernel=%s grid=(256,1,1) block=(576,1,1) lds=0\n" % K2
    out += '.amdgcn_target "amdgcn-amd-amdhsa--gfx950"\n.text\n' + MACROS
    lines = align_pass(g.lines, opt.get("minrun", 4)) if opt.get("align", 1) else g.lines
    lines = resolve(lines)
    out += "\n".join(compress(l) for l in lines) + "\n"
    out += '.section .rodata,"a"\n' + kernel_desc(K1, 512, 256) + ("" if FUSE else kernel_desc(K2, 96, 96, 40))
    return out

if __name__ == "__main__":
    kw = json.loads(sys.argv[2]) if len(sys.argv) > 2 else {}
    open(sys.argv[1], "w").write(gen(**kw))
```

```python
import sys, re, json
from asmlib import *
import hazard
BASE = "parallel_sum__linear_kernel_hedgehog__glu_gated_reglu__prompt"
K1 = BASE + "_kernel"
K2 = "reduce_kernel"

PSZ = 2048 * 576 * 2
WS_HX = 0x1000000
WS_OX = 0x2200000
WS_RS2 = 0x2500000
WS_KVP = 0x2510000
WS_KVF = 0x2700000
WS_FLG = 0x2780000
WS_TS = 0x2800000
WS_BYTES = 0x10000000
SX, SW1, SW2, SWS, SDBG, SPHI = 8, 12, 16, 20, 24, 28
sW, sR, sS, sT, sOFF, sM0W, sB1, sB2, sST, sT2 = 32, 33, 34, 35, 36, 37, 38, 39, 40, 41
sCNT = 52
OOB = 0x40000000
RING = 144
NB = 8

class G(Asm):
    def __init__(self, opt):
        super().__init__()
        self.opt = opt
        self.vm = []
        self.lg = []
        self.nts = 0
        self.sv = 30
    def e(self, s, tag=None):
        if s.startswith(("buffer_", "global_")): self.vm.append(tag)
        if s.startswith("ds_"): self.lg.append(tag)
        super().e(s)
    def vm_n(self, tag):
        idx = [i for i, t in enumerate(self.vm) if t == tag]
        assert idx, tag
        return len(self.vm) - 1 - idx[-1]
    def wait_vm(self, tag):
        n = min(self.vm_n(tag), 63)
        self.e("s_waitcnt vmcnt(%d)" % n)
    def wait_lg(self, tag):
        idx = [i for i, t in enumerate(self.lg) if t == tag]
        n = min(len(self.lg) - 1 - idx[-1], 15)
        self.e("s_waitcnt lgkmcnt(%d)" % n)
    def stamp(self):
        e = self.e
        if self.opt.get("amp") is not None:
            if self.nts in (0, self.opt["amp"]):
                e("s_memrealtime s[92:93]"); e("s_waitcnt lgkmcnt(0)")
                e("s_mov_b32 s%d, s92" % (100 if self.nts == 0 else 94))
            self.nts += 1
            return
        if not self.opt.get("ts"): return
        e("s_memtime s[90:91]"); e("s_memrealtime s[92:93]")
        e("s_waitcnt lgkmcnt(0)")
        if self.opt.get("dbgts") is not None:
            sel = self.opt.get("dbgsel", list(range(15)))
            if self.nts in sel:
                e("v_mov_b32 v30, s92")
                e("buffer_store_dword v30, off, s[%d:%d], s94 offset:%d" % (SDBG, SDBG + 3, 4 + 4 * sel.index(self.nts)))
            self.nts += 1
            return
        for k, sg in enumerate((90, 92)):
            e("v_mov_b32 v%d, s%d" % (self.sv, sg))
            e(("buffer_store_dword v%d, off" % self.sv) + ", s[%d:%d], s94 offset:%d" % (SWS, SWS + 3, 8 * self.nts + 4 * k))
        self.nts += 1

def mfma(d, a, b, c=None):
    return "v_mfma_f32_16x16x32_bf16 %s, %s, %s, %s" % (d, a, b, d if c is None else c)

class Stage:
    def __init__(self, lo, hi, pre, dmas, frags, gate=None):
        dmas = [d if isinstance(d, list) else [d] for d in dmas]
        dmas[0] = list(pre) + dmas[0]
        self.lo, self.hi, self.dmas, self.frags, self.gate = lo, hi, dmas, frags, gate
        self.before = None; self.after = None

class Pipe:
    def __init__(self, g, stages, D=6, BE=1):
        self.g, self.st, self.D, self.BE = g, stages, D, BE
        self.next = 0
        self.safe = -1
        self.q = []
        self.open = set()
        self.fi = 0
        self.done = -1
        self.qthr = g.opt.get("qthr", 3)
        self.when = {}
    def can(self, m):
        s = self.st[m]
        if s.gate is not None and s.gate not in self.open: return False
        return all(k <= self.safe for k in range(m) if self.st[k].lo < s.hi and s.lo < self.st[k].hi)
    def refill(self):
        while self.next < len(self.st) and self.can(self.next):
            for d in self.st[self.next].dmas: self.q.append([list(d), ("st", self.next)])
            self.next += 1
    def pop(self):
        if not self.q: return []
        t, tag = self.q.pop(0)
        return [(x, tag) for x in t]
    def flush(self):
        while self.q:
            for t, tag in self.pop(): self.g.e(t, tag)
    def enter(self, n, last, hook=None):
        g = self.g
        late = 0
        while any(tag[1] <= last for _, tag in self.q):
            late += 1
            for t, tg in self.pop(): g.e(t, tg)
        if late and n > 2: print("warning: %d DMA issued late for stage %d" % (late, n))
        assert self.next > last, (n, last)
        for k in range(n, last + 1):
            if self.st[k].before: self.st[k].before()
        if hook and hook.before: hook.before()
        g.wait_vm(("st", last)); g.e("s_barrier")
        if hook and hook.after: hook.after()
        for k in range(n, last + 1):
            if self.st[k].after: self.st[k].after()
        self.safe = max(self.safe, self.done)
        self.refill()
    def run(self, s0, s1, extra=None, pauses=(), groups=None, urgent=None, lagok=True):
        g, D = self.g, self.D
        WP = g.opt.get("wp", 4)
        pend = []; urg = []; urgent = urgent or {}; cur = [0]; dens = [0]
        extra = extra or {}
        fl = [(n, k, f) for n in range(s0, s1) for k, f in enumerate(self.st[n].frags)]
        if groups is None: groups = list(range(s0, s1, self.BE))
        gend = {a: (groups[i + 1] if i + 1 < len(groups) else s1) - 1 for i, a in enumerate(groups)}
        base = self.fi
        needbar = lambda j: j < len(fl) and fl[j][1] == 0 and fl[j][0] in gend
        def reads(j):
            buf = RING + 4 * ((base + j) % NB)
            for t in fl[j][2][0](buf): g.e(t, ("fr", base + j))
        def wl(i):
            w = min(i + WP - 1, len(fl) - 1)
            g.wait_lg(("fr", base + w))
            self.done = max(self.done, fl[w][0] if fl[w][1] == len(self.st[fl[w][0]].frags) - 1 else fl[w][0] - 1)
        def cost(it):
            if isinstance(it, (Mark, Dens)): return 0
            if isinstance(it, Hook): return 99
            if isinstance(it, Delay):
                if it.until is None: it.until = cur[0] + it.n
                return 0 if cur[0] >= it.until else 99
            if callable(it): return getattr(it, "cost", 2)
            if isinstance(it, list): return min(len(it), 2)
            t = it[0] if isinstance(it, tuple) else it
            return 2 if t.startswith(("buffer_", "global_", "v_mfma", "v_exp", "v_rcp")) else 1
        def emit(it, i):
            if isinstance(it, Mark): self.when[it.name] = i
            elif isinstance(it, Dens): dens[0] = it.n
            elif isinstance(it, Delay):
                if i >= len(fl): g.e("s_nop 7")
            elif isinstance(it, Hook):
                if it.before: it.before()
                g.e("s_barrier")
                if it.after: it.after()
            elif callable(it): it()
            elif isinstance(it, list):
                for x in it: g.e(x)
            elif isinstance(it, tuple): g.e(it[0], it[1])
            else: g.e(it)
        for j in range(min(D, len(fl))):
            if needbar(j): self.enter(fl[j][0], gend[fl[j][0]])
            reads(j)
        if needbar(D): self.enter(fl[D][0], gend[fl[D][0]])
        wl(0)
        since = 9
        for i, (n, k, f) in enumerate(fl):
            ms = f[1](RING + 4 * ((base + i) % NB))
            g.e(ms[0])
            if i + D < len(fl): reads(i + D)
            g.e(ms[1])
            pend += [(i, x) for x in extra.get(i, [])]; urg += urgent.get(i, [])
            since += 1; cur[0] = i
            wdue = (i + 1) % WP == 0 and i + 1 < len(fl)
            if needbar(i + 1 + D):
                if wdue: wl(i + 1)
                hook = pend.pop(0)[1] if pend and isinstance(pend[0][1], Hook) else None
                self.enter(fl[i + 1 + D][0], gend[fl[i + 1 + D][0]], hook)
                continue
            paused = any(a <= i < b for a, b in pauses)
            if urg and not wdue:
                slots = 2
                while urg and cost(urg[0]) <= slots:
                    it = urg.pop(0); slots -= cost(it); emit(it, i)
                continue
            used = False
            if self.q and len(self.q[0][0]) > 1:
                if wdue: wl(i + 1)
                while len(self.q[0][0]) > 1: g.e(self.q[0][0].pop(0))
                used = True
            elif self.q and not wdue and not paused and since >= (2 if len(self.q) > self.qthr and not any(b <= i < b + g.opt.get("slow", 0) for a, b in pauses if b > a) else self.g.opt.get("dcad", 3)):
                it = self.q.pop(0); g.e(it[0][0], it[1]); since = 0
                used = True
            if used and not dens[0]: continue
            slots = 0 if used else 2
            if wdue and not used: wl(i + 1); slots = 1
            if dens[0]: slots += dens[0]
            elif lagok and pend and i - pend[0][0] > g.opt.get("lag", 30): slots += 1
            while pend and cost(pend[0][1]) <= slots:
                it = pend.pop(0)[1]; slots -= cost(it); emit(it, i)
        for it in urg + [x[1] for x in pend]: emit(it, len(fl))
        self.fi = base + len(fl)
    def drained(self, upto):
        self.safe = max(self.safe, upto); self.refill()

class Mark:
    def __init__(self, name): self.name = name
class Hook:
    def __init__(self, before=None, after=None): self.before, self.after = before, after
class Delay:
    def __init__(self, n): self.n = n; self.until = None
class Dens:
    def __init__(self, n): self.n = n

def group_scc(ops):
    out = []
    for op in ops:
        if isinstance(op, str) and op.startswith("s_cselect"): out[-1] = [out[-1], op]
        else: out.append(op)
    return out

def spread(ops, lo, hi, extra):
    ops = group_scc(ops); n = hi - lo
    for k, op in enumerate(ops):
        extra.setdefault(lo + k * n // len(ops), []).append(op)

def lane_consts(g):
    e = g.e
    e("v_lshrrev_b32 v22, 4, v0")
    e("v_and_b32 v23, 15, v0")

def x_dma(g, o, j):
    e = g.e
    if j == 0:
        if o:
            e("s_add_u32 s6, s60, %d" % o)
            e("s_and_b32 s6, s6, 3")
            e("s_mulk_i32 s6, 9216")
            e("s_add_u32 m0, s5, s6")
            e("s_add_u32 s7, s4, s6")
    else:
        e("s_addk_i32 m0, 1024")
        e("s_addk_i32 s7, 128")
    e("buffer_load_dwordx4 v%d, s[%d:%d], s7 offen %s lds" % (104 + (o & 1), SX, SX + 3, g.opt.get("xflags", "")), ("x", j))

def prologue(g, pipe, XV=112, early=None, afterbar=None, fill=(), var=False, nfirst=8, mid=None, postc=None):
    e, opt = g.e, g.opt
    xf = opt.get("xflags", "")
    NC = opt.get("xcommon", 2)
    nf = 9 * (4 - NC)
    for o in range(NC, 4):
        for j in range(9):
            x_dma(g, o, j)
            k = (o - NC) * 9 + j
            if mid and o * 9 + j == mid[0]: mid[1]()
            for it in fill[k * len(fill) // nf:(k + 1) * len(fill) // nf]:
                for x in (it if isinstance(it, list) else [it]): e(x, "fill")
    if early: early()
    e("v_lshrrev_b32 v106, 3, v23")
    e("v_mul_u32_u24 v106, 9216, v106")
    e("v_and_b32 v107, 7, v23")
    e("v_lshl_add_u32 v106, v107, 7, v106")
    e("v_lshrrev_b32 v107, 1, v23")
    e("v_xor_b32 v107, v107, v22")
    e("v_lshl_add_u32 v106, v107, 4, v106")
    e("v_add_u32 v106, s5, v106")
    e("v_xor_b32 v107, 64, v106")
    for i in range(4): e("v_mov_b32 v%d, 0x3f803f80" % (80 + i))
    for i in (72, 73, 76, 77): e("v_mov_b32 v%d, 0" % i)
    e("v_lshrrev_b32 v108, 2, v23")
    e("v_cmp_eq_u32 vcc, v108, v22")
    e("v_and_b32 v108, 1, v23")
    e("v_lshlrev_b32 v108, 4, v108")
    e("v_mov_b32 v78, 0x3f80")
    e("v_lshlrev_b32 v78, v108, v78")
    e("v_cndmask_b32 v78, 0, v78, vcc")
    e("v_and_b32 v108, 2, v23")
    e("v_cmp_eq_u32 vcc, 0, v108")
    e("s_nop 1")
    e("v_cndmask_b32 v74, 0, v78, vcc")
    e("v_cndmask_b32 v75, v78, 0, vcc") if False else None
    e("v_sub_u32 v75, v78, v74")
    X = lambda tt, ks: XV + (ks * 2 + tt) * 4
    g.stamp()
    for j in range(10):
        if j < 9:
            g.wait_vm(("x", j))
            for ks in (2 * j, 2 * j + 1):
                for tt in range(2):
                    e("ds_read_b128 %s, v%d offset:%d" % (vr(X(tt, ks), 4), 106 + (ks & 1), tt * 18432 + j * 1024), ("xr", j))
        if j > 0:
            g.wait_lg(("xr", j - 1))
            for ks in (2 * j - 2, 2 * j - 1):
                for tt in range(2):
                    e(mfma(vr(64 + 4 * tt, 4), vr(80, 4), vr(X(tt, ks), 4), "0" if ks == 0 else None))
    e("s_barrier")
    g.stamp()
    pipe.open.add("x"); pipe.refill()
    for _ in range(nfirst):
        for t, tag in pipe.pop(): e(t, tag)
    if afterbar: afterbar()
    e("s_nop 3")
    e("s_mov_b32 s%d, 0x%08x" % (sT, 0xbae38e39))
    for tt in range(2): e("v_mul_f32 v%d, s%d, v%d" % (78 + tt, sT, 64 + 4 * tt))
    e("v_cvt_pk_bf16_f32 v108, v78, v79")
    for i in range(4): e("v_lshlrev_b32 v%d, 16, v108" % (64 + i))
    for i in range(4): e("v_and_b32 v%d, 0xffff0000, v108" % (68 + i))
    if var:
        for tt in range(2): e("v_sub_f32 v%d, v%d, v%d" % (14 + tt, 78 + tt, 64 + 4 * tt))
    else: e("s_nop 1")
    for _ in range(opt.get("delay", 0)): e("s_sleep 32")
    fr = [(tt, ks) for ks in range(18) for tt in range(2)]
    LAG = 2
    for k in range(len(fr) + LAG + 1):
        cv = []
        if LAG <= k < len(fr) + LAG:
            tt, ks = fr[k - LAG]; d = 32 + 8 * ((k - LAG) % 4); x = X(tt, ks)
            cv = ["v_cvt_pk_bf16_f32 v%d, v%d, v%d" % (x + i, d + 2 * i, d + 2 * i + 1) for i in range(4)]
        if k < len(fr):
            tt, ks = fr[k]; d = 32 + 8 * (k % 4)
            e(mfma(vr(d, 4), vr(74, 4), vr(X(tt, ks), 4), vr(64 + 4 * tt, 4)))
            if k == LAG: e("s_nop 3")
            for t in cv[:2]: e(t)
            e(mfma(vr(d + 4, 4), vr(72, 4), vr(X(tt, ks), 4), vr(64 + 4 * tt, 4)))
            for t in cv[2:]: e(t)
        else:
            e("s_nop 3")
            for t in cv: e(t)
        if var and k > LAG:
            tt, ks = fr[k - LAG - 1]; x = X(tt, ks)
            e(mfma(vr(96 + 4 * tt, 4), vr(x, 4), vr(x, 4), "0" if ks == 0 else None))
    if postc: postc()
    g.stamp()

def XV0(tt, ks): return vr(112 + (ks * 2 + tt) * 4, 4)
def xc_copies(): return ["v_accvgpr_write_b32 a%d, v%d" % (i, 112 + i) for i in range(144)]
def XC(tt, ks): return ar((ks * 2 + tt) * 4, 4)

def tr_bases(g, dst, rowmul):
    e = g.e
    out = []
    out.append("v_bfe_u32 v28, v0, 2, 2")
    out.append("v_mad_u32_u24 v28, v22, %d, v28" % rowmul)
    out.append("v_lshlrev_b32 v%d, 7, v28" % dst)
    out.append("v_bfe_u32 v28, v0, 3, 2")
    out.append("v_lshl_add_u32 v%d, v28, 5, v%d" % (dst, dst))
    out.append("v_and_b32 v28, 3, v0")
    out.append("v_lshl_add_u32 v%d, v28, 3, v%d" % (dst, dst))
    for t in range(1, 4): out.append("v_xor_b32 v%d, %d, v%d" % (dst + t, 32 * t, dst))
    for grp in (1, 2):
        for t in range(4): out.append("v_add_u32 v%d, 0x%x, v%d" % (dst + 4 * grp + t, grp << 16, dst + t))
    return out

def tr_reads(bases, t, off, second):
    def f(buf):
        o2 = off + second
        assert (off >> 16) == (o2 >> 16)
        b = bases + 4 * (off >> 16) + t
        return ["ds_read_b64_tr_b16 %s, v%d offset:%d" % (ar(buf, 2), b, off & 0xffff),
                "ds_read_b64_tr_b16 %s, v%d offset:%d" % (ar(buf + 2, 2), b, o2 & 0xffff)]
    return f

def store_ops(g, acc, P, c, voff, sbase=None, ntile=4, tag=None):
    ops = ["s_add_u32 s%d, s%d, %d" % (sT2, sST if sbase is None else sbase, c * 4096)]
    for tt in range(2):
        for hf in range(ntile // 2):
            p = P + ((tt * (ntile // 2) + hf) % 2) * 4
            for k in range(2):
                s = acc + ((2 * hf + k) * 2 + tt) * 4
                ops.append("v_cvt_pk_bf16_f32 v%d, v%d, v%d" % (p + 2 * k, s, s + 1))
                ops.append("v_cvt_pk_bf16_f32 v%d, v%d, v%d" % (p + 2 * k + 1, s + 2, s + 3))
            ops.append(("buffer_store_dwordx4 %s, v%d, s[%d:%d], s%d offen offset:%d sc1" % (vr(p, 4), voff, SWS, SWS + 3, sT2, (tt * 2 + hf) * 1024), tag))
    return ops

sNON = 97
def flag_load(vreg, vfl, sline):
    if sline is None: return "buffer_load_dword v%d, v%d, s[%d:%d], 0 offen sc1" % (vreg, vfl, SDBG, SDBG + 3)
    return "buffer_load_dword v%d, v%d, s[%d:%d], s%d offen sc1" % (vreg, vfl, SWS, SWS + 3, sline)

def flag_issue(g, vreg, vfl, sline):
    g.e(flag_load(vreg, vfl, sline), "flag")

def flag_check(g, vreg, vfl, sline, mask, issued=True, sleep=4):
    if g.opt.get("nofl") and sline is not None: return
    e = g.e
    L = g.newlabel("L_poll"); Ld = g.newlabel("L_polld"); Lc = g.newlabel("L_pollc")
    e("s_cmp_lg_u32 s%d, 0" % sW)
    e("s_cbranch_scc1 %s" % Ld)
    e("s_mov_b32 s89, 0x20000")
    if issued:
        g.wait_vm("flag")
        e("s_branch %s" % Lc)
    g.label(L)
    Asm.e(g, flag_load(vreg, vfl, sline))
    e("s_waitcnt vmcnt(0)")
    g.label(Lc)
    if sline is None:
        e("v_readfirstlane_b32 s%d, v%d" % (sNON, vreg))
        e("s_sub_u32 s89, s89, 1")
        e("s_cmp_lg_u32 s%d, 0" % sNON)
    else:
        e("v_cmp_eq_u32 s[98:99], s%d, v%d" % (sNON, vreg))
        e("s_sub_u32 s89, s89, 1")
        m = mask if isinstance(mask, str) else "0x%x" % mask
        e("s_and_b32 s98, s98, %s" % m)
        e("s_cmp_eq_u32 s98, %s" % m)
    e("s_cbranch_scc1 %s" % Ld)
    e("s_sleep %d" % sleep)
    e("s_cmp_lg_u32 s89, 0")
    e("s_cbranch_scc1 %s" % L)
    g.label(Ld)

def flag_lane_offsets(vfl, vtmp):
    return ["s_lshl_b32 s96, s%d, 6" % sW, "v_add_u32 v%d, s96, v0" % vtmp, "v_cmp_gt_u32 vcc, 16, v%d" % vtmp, "v_lshlrev_b32 v%d, 2, v0" % vfl,
            "v_mov_b32 v%d, 0x%x" % (vtmp, OOB), "v_cndmask_b32 v%d, v%d, v%d, vcc" % (vfl, vtmp, vfl)]

def code_pf():
    return ["s_getpc_b64 s[6:7]", "s_load_dword s5, s[6:7], s101"]

def signal(g, vtmp, voff, sword, imm=0):
    g.e("v_mov_b32 v%d, s%d" % (vtmp, sNON))
    g.e("buffer_store_dword v%d, v%d, s[%d:%d], s%d offen offset:%d sc1" % (vtmp, voff, SWS, SWS + 3, sword, imm))

def ffn_role(g):
    e, opt = g.e, g.opt
    wf = opt.get("wflags", "")
    ACC = [32, 96]; H = 160; B1 = 9; PK = 128; VST = 21; BH = 144
    sI, sJ = 42, 43; sKB = 44; sHX = 47; sKO = 53; sKS = 56; sKK = 86; sM0H = 50; sSO = 51; sSS = 59; sWO = 78; sOX = 83; sM0B = 84; sWT = 85
    e("s_sub_u32 s%d, s3, 1" % sI)
    e("s_mov_b32 s%d, s%d" % (sJ, sS))
    e("s_mul_i32 s%d, s%d, 3" % (sS, sJ))
    e("s_add_u32 s%d, s%d, s%d" % (sS, sS, sI))
    e("s_cmp_ge_u32 s%d, 2" % sW)
    e("s_cselect_b32 s%d, s74, s72" % sT)
    e("s_cselect_b32 s%d, s75, s73" % sT2)
    srd(g, SW1, sT, sT2, 576 * 4608 * 2)
    e("s_lshl_b32 s%d, s%d, 12" % (sM0W, sW))
    e("s_mul_i32 s%d, s%d, 768" % (sB1, sS))
    def late_setup():
        o = []; sT = 95
        a = Asm(); srd(a, SW2, 76, 77, 4608 * 576 * 2); srd(a, SPHI, 70, 71, 576 * 576 * 2); a.e('s_mov_b32 s61, s78'); a.e('s_mov_b32 s62, s79')
        o += [l.strip() for l in a.lines]
        o += ["s_lshl_b32 s98, s%d, 6" % sJ, "s_and_b32 s99, s98, 128", "s_xor_b32 s99, s99, 128"]
        for b in range(3):
            o += ["s_add_u32 s%d, s%d, %d" % (sT, sI, b), "s_cmp_ge_u32 s%d, 3" % sT, "s_cselect_b32 s96, 3, 0", "s_sub_u32 s%d, s%d, s96" % (sT, sT),
                  "s_mul_i32 s96, s%d, 3" % sJ, "s_add_u32 s%d, s%d, s96" % (sT, sT),
                  "s_mul_i32 s%d, s%d, %d" % (sKB + b, sT, 384 * 1152), "s_mul_i32 s96, s%d, 384" % sI, "s_add_u32 s%d, s%d, s96" % (sKB + b, sKB + b),
                  "s_add_u32 s%d, s%d, s99" % (sKO + b, sKB + b), "s_add_u32 s%d, s%d, s98" % (sKK + b, sKB + b), "s_xor_b32 s%d, s%d, 64" % (sKS + b, sKK + b),
                  "s_mul_i32 s96, s%d, 12" % sR, "s_add_u32 s%d, s%d, s96" % (sT, sT), "s_lshl_b32 s%d, s%d, 2" % (sT, sT), "s_add_u32 s%d, s%d, s%d" % (sT, sT, sW),
                  "s_mul_i32 s%d, s%d, 24576" % (sHX + b, sT), "s_add_u32 s%d, s%d, 0x%x" % (sHX + b, sHX + b, WS_HX)]
        o += ["s_lshl_b32 s%d, s%d, 2" % (sT, sR), "s_add_u32 s%d, s%d, s%d" % (sT, sT, sJ), "s_lshl_b32 s%d, s%d, 7" % (sCNT, sT), "s_add_u32 s%d, s%d, 0x%x" % (sCNT, sCNT, WS_FLG),
              "s_lshl_b32 s63, s%d, 2" % sI, "s_add_u32 s63, s63, s%d" % sCNT]
        o += ["s_mul_i32 s%d, s%d, %d" % (sST, sJ, PSZ), "s_mul_i32 s%d, s%d, 12288" % (sB2, sI), "s_add_u32 s%d, s%d, s4" % (sB2, sB2),
              "s_add_u32 s%d, s%d, s%d" % (sST, sST, sB2), "s_lshl_b32 s%d, s%d, 11" % (sM0H, sW),
              "s_lshl_b32 s96, s99, 5", "s_add_u32 s%d, s%d, s96" % (sSO, sST),
              "s_xor_b32 s96, s96, 4096", "s_add_u32 s%d, s%d, s96" % (sSS, sST), "s_and_b32 s96, s98, 64", "s_xor_b32 s96, s96, 64",
              "s_lshl_b32 s96, s96, 4", "s_add_u32 s%d, s%d, s96" % (sSS, sSS)]
        o += ["s_lshl_b32 s95, s%d, 2" % sR, "s_add_u32 s95, s95, s%d" % sJ, "s_lshl_b32 s95, s95, 2", "s_add_u32 s95, s95, s%d" % sW,
              "s_mul_i32 s%d, s95, 10240" % sOX, "s_add_u32 s%d, s%d, 0x%x" % (sOX, sOX, WS_OX),
              "s_mul_i32 s%d, s%d, %d" % (sWT, sJ, 144 * 1152), "s_mul_i32 s96, s%d, 384" % sI, "s_add_u32 s%d, s%d, s96" % (sWT, sWT), "s_lshl_b32 s%d, s%d, 10" % (sM0B, sW)]
        for i in range(5):
            d = sWO + i
            o += (["s_lshl_b32 s95, s%d, 2" % sW, "s_add_u32 s95, s95, %d" % i] if i < 4 else ["s_add_u32 s95, s%d, 16" % sW])
            o += ["s_lshr_b32 s96, s95, 1", "s_lshl_b32 s%d, s96, 2" % d, "s_cmp_ge_u32 s96, 5", "s_cselect_b32 s96, 52, 0",
                  "s_add_u32 s%d, s%d, s96" % (d, d), "s_and_b32 s95, s95, 1", "s_mul_i32 s95, s95, 36",
                  "s_add_u32 s%d, s%d, s95" % (d, d), "s_mul_i32 s%d, s%d, 1152" % (d, d), "s_add_u32 s%d, s%d, s%d" % (d, d, sWT)]
        return o
    stages = []; start = [0]
    def slot(n): return ((n + 9) % 10) * 16384
    def push(st): stages.append(st); start.append(start[-1] + len(st.frags))
    for rho in range(6):
        acc = ACC[rho & 1]
        for st in range(9):
            n = len(stages); lo = slot(n)
            pre = ["s_add_u32 m0, s%d, %d" % (sM0W, lo), "s_add_u32 s%d, s%d, %d" % (sOFF, sB1, st * 64 * 9216 + rho * 128)]
            dmas = ["buffer_load_dwordx4 v%d, s[%d:%d], s%d offen offset:%d %s lds" % (1 + i, SW1, SW1 + 3, sOFF, i * 1024, wf) for i in range(4)]
            frags = []
            for kk in range(2):
                ks = 2 * st + kk
                for t in range(4):
                    for mat in range(2):
                        def mf(buf, ks=ks, t=t, mat=mat, acc=acc, XC=(XC if rho else XV0)):
                            order = (0, 1) if mat == 0 else (1, 0)
                            return [mfma(vr(acc + ((t * 2 + mat) * 2 + tt) * 4, 4), ar(buf, 4), XC(tt, ks), "0" if ks == 0 else None) for tt in order]
                        rdf = tr_reads(B1, t, lo + mat * 8192 + kk * 4096, 512)
                        if opt.get("halfrd"): rdf = (lambda buf, f=rdf: f(buf)[:1])
                        frags.append((rdf, mf))
            push(Stage(lo, lo + 16384, pre, dmas, frags, None if n == 0 else "x"))
    def hreg(b, u, tt):
        k = (u * 2 + tt) * 4
        if b == 0: return vr(H + k, 4)
        if b == 2: return ar(k, 4)
        if b == 1: return ar(176 + k, 4) if u < 8 else ar(96 + k - 64, 4)
        if u < 2: return ar(128 + k, 4)
        if u < 4: return ar(240 + k - 16, 4)
        return vr(136 + k - 32, 4)
    A2, AO, AS, AK = 32, 64, 96, 112
    def mk(acc, b, u, t, z):
        def mf(buf):
            order = (0, 1) if t % 2 == 0 else (1, 0)
            return [mfma(vr(acc + (t * 2 + tt) * 4, 4), ar(buf, 4), hreg(b, u, tt), "0" if z else None) for tt in order]
        return mf
    def full(b, q, acc):
        lo = slot(len(stages))
        sb, add = (sKB + b, 256) if acc == A2 else (sKO + b, 0)
        pre = ["s_add_u32 m0, s%d, %d" % (sM0W, lo), "s_add_u32 s%d, s%d, %d" % (sOFF, sb, q * 128 * 1152 + add)]
        dmas = ["buffer_load_dwordx4 v%d, s[%d:%d], s%d offen offset:%d %s lds" % (5 + i, SW2, SW2 + 3, sOFF, i * 1024, wf) for i in range(4)]
        frags = [(tr_reads(B1, t, lo + kk * 4096, 2048), mk(acc, b, 4 * q + kk, t, (b, q, kk) == (0, 0, 0))) for kk in range(4) for t in range(4)]
        push(Stage(lo, lo + 16384, pre, dmas, frags, "x"))
    def half(bqs, acc):
        lo = slot(len(stages)); dmas = []; frags = []
        for k, (b, q) in enumerate(bqs):
            p = lo + 8192 * k
            ld = ["buffer_load_dwordx4 v%d, s[%d:%d], s%d offen offset:%d %s lds" % ((25, 22)[i], SW2, SW2 + 3, sOFF, i * 1024, wf) for i in range(2)]
            dmas += [["s_add_u32 m0, s%d, %d" % (sM0H, p), "s_add_u32 s%d, s%d, %d" % (sOFF, (sKS if acc == AS else sKK) + b, q * 128 * 1152), ld[0]], [ld[1]]]
            for kk in range(4):
                for t in range(2):
                    off = p + kk * 2048
                    def rd(buf, off=off, t=t):
                        v = BH + 2 * (off >> 16) + t
                        return ["ds_read_b64_tr_b16 %s, v%d offset:%d" % (ar(buf, 2), v, off & 0xffff), "ds_read_b64_tr_b16 %s, v%d offset:%d" % (ar(buf + 2, 2), v, (off & 0xffff) + 1024)]
                    frags.append((rd, mk(acc, b, 4 * q + kk, t, acc == AS and (b, q, kk) == (0, 0, 0))))
        push(Stage(lo, lo + 16384, [], dmas, frags, "x"))
    def wo(us, acc):
        lo = slot(len(stages)); v = {A2: 1, AO: 2, AS: 3}[acc]
        sel = [(sM0W, lo + i * 1024, sWO + i) for i in range(4)] if len(us) == 4 else [(sM0B, lo, sWO + 4)]
        dmas = [["s_add_u32 m0, s%d, %d" % (m, o), "s_nop 0", "buffer_load_dwordx4 v%d, s[%d:%d], s%d offen %s lds" % (v, SPHI, SPHI + 3, so, wf)] for m, o, so in sel]
        frags = [(tr_reads(B1, t, lo + kk * 4096, 2048), mk(acc, 3, u, t, acc == AS and u == 0 and t >= 2)) for kk, u in enumerate(us) for t in range(4)]
        push(Stage(lo, lo + 16384, [], dmas, frags, "x"))
    Q = lambda q: list(range(4 * q, 4 * q + 4))
    BQ = [(0, 0), (0, 1), (0, 2), (1, 0), (1, 1), (2, 0), (2, 1), (1, 2), (2, 2)]
    first = {}
    S2 = len(stages)
    for n, bq in enumerate(BQ[:7]):
        first[bq] = len(stages)
        full(*bq, A2); full(*bq, AO)
        if n == 3: SH0 = len(stages); half(BQ[0:2], AS); half(BQ[2:4], AS)
        if n == 6: half(BQ[4:6], AS); half(BQ[6:7], AS)
    SL = len(stages); first[(1, 2)] = SL; first[(2, 2)] = SL + 1; SO = SL + 2
    for acc in (A2, AO):
        full(1, 2, acc); full(2, 2, acc); wo(Q(0), acc); wo([4], acc)
    half(BQ[7:9], AS); wo(Q(0), AS); wo([4], AS)
    SK = len(stages)
    for n in range(0, 9, 2): half(BQ[n:n + 2], AK)
    pipe = Pipe(g, stages, opt.get("D", 7), 2)
    TOUCH = opt.get("touch", 1); tf = opt.get("tflags", "")
    def touch1(rho): return ["buffer_load_dword v31, v29, s[%d:%d], s%d offen offset:%d %s" % (SW1, SW1 + 3, sB1, rho * 128, tf)]
    def touch2(b):
        if b == 3: return ["buffer_load_dword v31, v26, s[%d:%d], s%d offen %s" % (SPHI, SPHI + 3, sWT, tf)]
        if opt.get("t2c", 0):
            return [["s_add_u32 s3, s60, %d" % (b * 96 * 4608), "buffer_load_dword v31, v30, s[%d:%d], s3 offen %s" % (SW2, SW2 + 3, tf)]]
        return ["buffer_load_dword v31, v26, s[%d:%d], s%d offen %s" % (SW2, SW2 + 3, sKB + b, tf)]
    def early():
        e("v_lshrrev_b32 v28, 3, v0")
        e("s_and_b32 s%d, s%d, 1" % (sOFF, sW))
        e("s_lshl_b32 s%d, s%d, 5" % (sOFF, sOFF))
        e("v_add_u32 v1, s%d, v28" % sOFF)
        e("v_mul_u32_u24 v1, 9216, v1")
        e("v_and_b32 v2, 2, v28")
        e("v_and_b32 v3, 7, v0")
        e("v_xor_b32 v2, v2, v3")
        e("v_lshl_add_u32 v1, v2, 4, v1")
        e("v_xor_b32 v2, 64, v1")
        e("v_add_u32 v2, %d, v2" % (8 * 9216 - 1024))
        e("v_add_u32 v3, %d, v1" % (2 * (8 * 9216 - 1024)))
        e("v_add_u32 v4, %d, v2" % (2 * (8 * 9216 - 1024)))
        pipe.refill(); pipe.flush()
    vset = ["v_lshrrev_b32 v28, 3, v0", "s_lshl_b32 s96, s%d, 5" % sW, "v_add_u32 v5, s96, v28", "v_mul_u32_u24 v5, 1152, v5",
            "v_lshlrev_b32 v6, 1, v22", "v_and_b32 v7, 7, v0", "v_xor_b32 v6, v6, v7", "v_lshl_add_u32 v5, v6, 4, v5",
            "v_lshrrev_b32 v28, 2, v0", "v_add_u32 v25, s96, v28", "v_mul_u32_u24 v25, 1152, v25", "v_and_b32 v6, 3, v6", "v_lshl_add_u32 v25, v6, 4, v25"]
    vset += ["v_add_u32 v%d, %d, v5" % (5 + i, i * (8 * 1152 - 1024)) for i in range(1, 4)]
    vset += ["v_lshlrev_b32 v%d, 4, v0" % VST, "v_lshlrev_b32 v27, 9, v22", "v_add_u32 v28, s%d, v0" % sW, "v_cmp_eq_u32 vcc, 0, v28",
             "v_mov_b32 v24, 0x%x" % OOB, "v_mov_b32 v28, 0", "v_cndmask_b32 v24, v24, v28, vcc"]
    vset += ["v_mul_u32_u24 v28, 5462, v0", "v_lshrrev_b32 v28, 16, v28", "v_mul_u32_u24 v26, 12, v28", "v_sub_u32 v26, v0, v26",
             "s_mul_i32 s96, s%d, 12" % sW, "s_and_b32 s95, s%d, 7" % sR, "s_mul_i32 s95, s95, 48", "s_add_u32 s96, s96, s95",
             "v_add_u32 v26, s96, v26", "v_mul_u32_u24 v26, 1152, v26", "v_lshl_add_u32 v26, v28, 7, v26",
             "s_cmp_ge_u32 s96, 144", "s_cselect_b32 s%d, 0x%x, s%d" % (sWT, OOB, sWT),
             "s_and_b32 s96, s%d, 1" % sW, "s_mul_i32 s96, s96, 36", "s_and_b32 s95, s%d, 7" % sR, "s_mul_i32 s95, s95, 72", "s_add_u32 s96, s96, s95",
             "v_add_u32 v29, s96, v0", "v_mul_u32_u24 v29, 9216, v29",
             "v_cmp_gt_u32 vcc, 36, v0", "v_mov_b32 v28, 0x%x" % OOB, "s_nop 0", "v_cndmask_b32 v26, v28, v26, vcc", "v_cndmask_b32 v29, v28, v29, vcc"]
    sp = []
    NSP = opt.get("nsp", 0)
    if NSP:
        e("s_and_b32 s6, s%d, 7" % sR); e("s_lshl_b32 s6, s6, 1"); e("s_and_b32 s7, s%d, 1" % sW); e("s_add_u32 s6, s6, s7")
        e("s_mul_i32 s6, s6, %d" % (NSP * 9216)); e("s_add_u32 s6, s6, s%d" % sB1); e("s_add_u32 s6, s6, %d" % (opt.get("sp0", 64) * 9216))
        e("s_add_u32 s90, s%d, s6" % sT); e("s_addc_u32 s91, s%d, 0" % sT2)
        sp = ["s_load_dword s92, s[90:91], 0x%x" % (i * 9216 + h * 64) for i in range(NSP) for h in range(2)]
    prologue(g, pipe, early=early, afterbar=(lambda: [e(t) for t in touch1(0) + (touch1(1) if not opt.get('t1pos', 70) else [])]) if TOUCH else None, nfirst=opt.get('nfirst', 8),
             fill=sp + group_scc(late_setup() + vset + tr_bases(g, B1, 8)))
    def epi1(rho):
        acc = ACC[rho & 1]; ops = []; sts = ["s_add_u32 s%d, s%d, %d" % (sT2, sHX, rho * 4096)]
        for t in range(4):
            for tt in range(2):
                gt = acc + ((t * 2) * 2 + tt) * 4; up = acc + ((t * 2 + 1) * 2 + tt) * 4
                u = 2 * rho + t // 2
                h = H + (u * 2 + tt) * 4 + (t & 1) * 2
                for k in range(2):
                    for i in (2 * k, 2 * k + 1): ops.append("v_max_f32 v%d, 0, v%d" % (gt + i, gt + i))
                    for i in (2 * k, 2 * k + 1): ops.append("v_mul_f32 v%d, v%d, v%d" % (gt + i, gt + i, up + i))
                    ops.append("v_cvt_pk_bf16_f32 v%d, v%d, v%d" % (h + k, gt + 2 * k, gt + 2 * k + 1))
                if t & 1:
                    sts.append(("buffer_store_dwordx4 %s, v%d, s[%d:%d], s%d offen offset:%d sc1" % (hreg(0, u, tt), VST, SWS, SWS + 3, sT2, ((u & 1) * 2 + tt) * 1024), ("hst", rho)))
        return ops, sts
    def hloads(b, q):
        ops = []
        for u in (range(5) if b == 3 else Q(q)):
            if u % 2 == 0: ops.append("s_add_u32 s%d, s%d, %d" % (sT, sOX if b == 3 else sHX + b, u * 2048))
            for tt in range(2):
                ops.append(("buffer_load_dwordx4 %s, v%d, s[%d:%d], s%d offen offset:%d sc1" % (hreg(b, u, tt), VST, SWS, SWS + 3, sT, ((u & 1) * 2 + tt) * 1024), ("h", b, q)))
        return ops
    extra = {}; urgent = {}
    add = lambda k, l: extra.setdefault(k, []).extend(l)
    addu = lambda k, l: urgent.setdefault(k, []).extend(l)
    EP = opt.get("epiw", 75)
    for rho in range(5):
        spread(sum(epi1(rho), []) + [Mark("epi%d" % rho)], 144 * (rho + 1) + 3, 144 * (rho + 1) + EP, extra)
    P2 = start[S2]
    hb = ["v_bfe_u32 v144, v0, 2, 4", "v_lshlrev_b32 v144, 6, v144", "v_bfe_u32 v145, v0, 4, 1", "v_lshl_add_u32 v144, v145, 5, v144",
          "v_and_b32 v145, 3, v0", "v_lshl_add_u32 v144, v145, 3, v144", "v_xor_b32 v145, 32, v144"]
    hb += ["v_add_u32 v%d, 0x%x, v%d" % (BH + 2 * k + t, k << 16, BH + t) for k in (1, 2) for t in range(2)]
    hb += ["v_lshrrev_b32 v2, 5, v0", "v_bfe_u32 v3, v0, 3, 2", "v_lshl_add_u32 v2, v2, 4, v3", "v_mul_u32_u24 v4, 1152, v2",
           "v_bfe_u32 v2, v0, 4, 2", "v_lshlrev_b32 v2, 1, v2", "v_and_b32 v3, 7, v0", "v_xor_b32 v2, v2, v3", "v_lshl_add_u32 v4, v2, 4, v4",
           "v_add_u32 v1, 256, v4", "s_sub_u32 s96, s%d, s%d" % (sKO, sKB), "v_add_u32 v2, s96, v4",
           "s_sub_u32 s96, s%d, s%d" % (sKS, sKB), "s_and_b32 s95, s96, 64", "v_xor_b32 v3, s95, v4", "s_and_b32 s96, s96, 128", "v_add_u32 v3, s96, v3"]
    add(P2 + 3, [Dens(1)] + epi1(5)[0] + [Mark("epi5"), Dens(0)] + epi1(5)[1] + hb + [Mark("hb")])
    pauses = [(0, opt.get('p0', 0))]
    if TOUCH:
        T = [touch1(2), touch1(3), touch1(4), touch1(5), touch2(0), touch2(1), touch2(2), touch2(3)]
        for n, (k, ops) in enumerate(zip(opt.get("tpos", [70, 148, 292, 436, 510, 690, 760, 760]), T)):
            addu(k, ops); pauses.append((k, k + opt.get("pl", [40] * 8)[n]))
    if opt.get("t1pos", 70): addu(opt.get("t1pos", 70), touch1(1))
    add(150, ["s_lshl_b32 s60, s%d, 3" % sI, "s_and_b32 s96, s%d, 7" % sR, "s_add_u32 s60, s60, s96", "s_lshl_b32 s60, s60, 2", "s_add_u32 s60, s60, s%d" % sW,
              "s_mul_i32 s60, s60, 4608", "s_mul_i32 s96, s%d, %d" % (sJ, 1152 * 1152), "s_add_u32 s60, s60, s96",
              "v_min_u32 v30, 35, v0", "v_lshlrev_b32 v30, 7, v30"])
    if opt.get("cpf", 6144):
        e("s_lshr_b32 s101, s2, 3"); e("s_sub_u32 s101, s101, 8"); e("s_lshl_b32 s101, s101, 2"); e("s_add_u32 s101, s101, s%d" % sW)
        e("s_lshl_b32 s101, s101, 6"); e("s_add_u32 s101, s101, %d" % opt.get("cpf", 9216))
        for k in range(opt.get('cp0', 20), start[-1], opt.get('cpp', 125)): addu(k, [code_pf()])
    add(1, xc_copies() + [Mark("xc"), "v_add_u32 v22, %d, v25" % (16 * 1152 - 1024)])
    add(144 + 90, flag_lane_offsets(23, 28) + [Mark("flo")])
    addu(288 + 100, [lambda: flag_issue(g, 28, 23, None)])
    groups = list(range(0, SL, 2)) + [SL + k for k in opt.get('eg', [0, 1, 2, 4, 6, 8, 11, 14])]
    bar = lambda n: start[n] - pipe.D - 1
    hooks = {}
    def before(n, f):
        assert n in groups, n
        hooks.setdefault(n, []).append(f); stages[n].before = lambda n=n: [f() for f in hooks[n]]
    before(26, lambda: flag_check(g, 28, 23, None, 0))
    FLD = opt.get('fld', 50); CMB = opt.get('cmb', 0)
    HS = opt.get("hs", [[30, 36], [46, 52], [S2 + 8, S2 + 14]])
    for q, (ns, nc) in enumerate(HS):
        before(ns, lambda q=q: g.wait_vm(("hst", 2 * q + 1)))
        stages[ns].after = lambda q=q: signal(g, 28, 24, 63, 16 * q)
        addu(bar(nc) - FLD, [lambda: flag_issue(g, 28, 23, sCNT)])
        before(nc, lambda q=q: flag_check(g, 28, 23, sCNT, (0x7 << (4 * q)) | (0x1000 if q == 2 and CMB else 0)))
    HW = opt.get("hw", [100, 100, 20])
    HP = opt.get("hp", [0, 0, 0])
    for q in range(3):
        spread(hloads(1, q), bar(HS[q][1]) + 1, bar(HS[q][1]) + 1 + HW[q], urgent); pauses.append((bar(HS[q][1]) + 1, bar(HS[q][1]) + 1 + HP[q]))
    assert bar(HS[1][1]) + 1 + HW[1] <= P2 + opt.get("h2pos", 100)
    spread(hloads(2, 0) + hloads(2, 1), P2 + opt.get("h2pos", 100), P2 + opt.get('h2pos', 100) + 60, urgent)
    def to_g2():
        for k in range(12): e("v_sub_u32 v%d, v%d, v27" % (B1 + k, B1 + k))
    stages[S2].after = to_g2
    for bq in BQ[3:]: before(first[bq], lambda bq=bq: g.wait_vm(("h",) + bq))
    spread(hloads(2, 2), bar(SL) - opt.get('h22', 30), bar(SL) - opt.get('h22', 30) + 10, urgent)
    sFL, sFW, sPL, sCOL, sRS, sMSK, sP1, sCK = 64, 65, 66, 67, 68, 69, 72, 75
    a2 = Asm(); srd(a2, SW1, 61, 62, PSZ)
    fin = [l.strip() for l in a2.lines]
    fin += ["s_mul_i32 s95, s%d, 3" % sR, "s_add_u32 s95, s95, s%d" % sI, "s_lshl_b32 s%d, s95, 7" % sFL, "s_add_u32 s%d, s%d, 0x%x" % (sFL, sFL, WS_FLG + 72 * 128),
           "s_lshl_b32 s%d, s%d, 2" % (sFW, sJ), "s_add_u32 s%d, s%d, s%d" % (sFW, sFW, sFL),
           "s_lshr_b32 s95, s%d, 1" % sJ, "s_lshl_b32 s96, s95, 11", "s_add_u32 s%d, s%d, s96" % (sPL, sB2), "s_add_u32 s%d, s%d, 8192" % (sPL, sPL),
           "s_and_b32 s96, s%d, 1" % sJ, "s_lshl_b32 s76, s96, 7", "s_add_u32 s%d, s%d, s76" % (sPL, sPL),
           "s_lshl_b32 s95, s95, 12", "s_lshl_b32 s96, s96, 10", "s_add_u32 s95, s95, s96", "s_add_u32 s76, s95, s%d" % sB2]
    for k in range(3):
        fin += ["s_add_u32 s96, s%d, %d" % (sJ, k + 1), "s_and_b32 s96, s96, 3", "s_mul_i32 s96, s96, %d" % PSZ, "s_add_u32 s%d, s76, s96" % (sP1 + k)]
    fin += ["v_and_b32 v150, 0x37, v0", "v_lshlrev_b32 v150, 4, v150", "v_bfe_u32 v155, v0, 3, 1", "v_lshl_add_u32 v150, v155, 10, v150",
            "s_mul_i32 s%d, s%d, 384" % (sCOL, sI), "s_add_u32 s%d, s%d, s4" % (sCOL, sCOL), "s_lshl_b32 s96, s%d, 6" % sJ, "s_add_u32 s%d, s%d, s96" % (sCK, sCOL),
            "s_add_u32 s77, s%d, %d" % (sCK, 16 * 1152),
            "v_bfe_u32 v156, v0, 4, 1", "v_lshlrev_b32 v156, 5, v156", "v_lshrrev_b32 v157, 5, v0", "v_lshl_add_u32 v156, v157, 4, v156",
            "s_lshl_b32 s95, s%d, 3" % sJ, "v_and_b32 v151, 7, v0", "v_add_u32 v151, s95, v151", "v_lshlrev_b32 v153, 2, v151",
            "v_mul_u32_u24 v151, 1152, v151", "v_lshl_add_u32 v151, v155, 6, v151", "v_add_u32 v151, v151, v156",
            "v_and_b32 v152, 15, v0", "v_lshlrev_b32 v154, 2, v152", "v_mul_u32_u24 v152, 1152, v152", "v_add_u32 v152, v152, v156",
            "s_lshl_b32 s96, s%d, 2" % sR, "s_add_u32 s96, s96, s%d" % sJ, "s_lshl_b32 s96, s96, 2", "s_add_u32 s96, s96, s%d" % sW,
            "s_lshl_b32 s%d, s96, 7" % sRS, "s_add_u32 s%d, s%d, 0x%x" % (sRS, sRS, WS_RS2),
            "s_mov_b32 s70, 0x3f80", "s_mov_b32 s71, 0x3f800000"]
    add(P2 + 150, fin + [Mark("fin")])
    XL = [(32, 152, sCK, 0), (36, 152, 77, 0), (40, 151, sCOL, 256)]
    RL = [(155, 154, 0), (156, 154, 64), (157, 153, 0)]
    nO = SL - opt.get('oearly', 0)
    if not CMB:
        addu(bar(nO) - opt.get('old', 30), [lambda: flag_issue(g, 28, 23, sCNT)])
        before(nO, lambda: flag_check(g, 28, 23, sCNT, 0x1000))
    spread(hloads(3, 0) + ["buffer_load_dword v%d, v%d, s[%d:%d], s%d offen offset:%d sc1" % (d, v, SWS, SWS + 3, sRS, im) for d, v, im in RL], bar(nO) + opt.get('o0', 1), bar(nO) + opt.get('o1', 5), urgent)
    before(SO, lambda: g.wait_vm(("h", 3, 0)))
    add(start[SL + 4] + 3, store_ops(g, A2, PK, 2, VST))
    add(start[SL + 8] + 3, store_ops(g, AO, PK, 0, VST, sSO))
    add(start[SK] + 3, [Dens(1)] + store_ops(g, AS, PK, 0, VST, sSS, 2, "pst") + [Mark("pst"), Dens(0)] + ["v_mov_b32 v%d, 0" % (96 + i) for i in range(8)] +
        [("buffer_load_dwordx4 %s, v%d, s[%d:%d], s%d offen offset:%d" % (vr(d, 4), v, SX, SX + 3, so, im), "fx") for d, v, so, im in XL])
    INS = opt.get("insig", 1); SG = SK + opt.get('sg', 3); FI = opt.get('fi', 0)
    if FI: addu(start[-1] - FI, [lambda: flag_issue(g, 28, 23, sFL)])
    if INS:
        before(SG, lambda: g.wait_vm("pst")); stages[SG].after = lambda: signal(g, 28, 24, sFW, 0)
    if opt.get("ts") or opt.get("amp") is not None:
        for k in ([720] + list(range(720 + 48, start[-1], 32)) if opt.get('fine2') else (144, 288, 432, 576, 720, P2, P2 + 144, P2 + 288, start[SK])): addu(k, [g.stamp])
    pipe.run(0, len(stages), extra, pauses=pauses, groups=groups, urgent=urgent)
    w = pipe.when
    if opt.get("verbose"): print(w, "P2", P2, "SK", start[SK], "end", start[-1], "barK", bar(SK + 4))
    assert w["xc"] < 142 and w["flo"] < 288 + 100 and all(w["epi%d" % r] < 144 * (r + 2) - 1 for r in range(5)), w
    assert w["epi5"] < start[first[(0, 2)]] + 7 and w["hb"] < bar(SH0) and w["fin"] < bar(nO) - 1 and w["pst"] < bar(SG), w
    g.stamp()
    if not INS:
        e("s_waitcnt vmcnt(0)"); e("s_barrier"); signal(g, 28, 24, sFW, 0)
    flag_check(g, 28, 23, sFL, 0xf, issued=bool(FI), sleep=1)
    e("s_barrier")
    g.stamp()
    UA = [(AK, AK + 8), (AK + 4, AK + 12), (96, 100)]
    lds = []
    regs = list(range(48, 96, 4))
    for p in range(4):
        if p < 3:
            for tt in range(2):
                d = regs.pop(0); lds.append((d, tt))
                e("buffer_load_dwordx4 %s, v%d, s[%d:%d], s%d offen offset:%d sc1" % (vr(d, 4), VST, SWS, SWS + 3, sP1 + p, tt * 2048), ("pl", len(lds)))
        if p: e("s_add_u32 s%d, s%d, %d" % (sPL, sPL, PSZ))
        d = regs.pop(0); lds.append((d, 2))
        e("buffer_load_dwordx4 %s, v150, s[%d:%d], s%d offen sc1" % (vr(d, 4), SWS, SWS + 3, sPL), ("pl", len(lds)))
    g.wait_vm("fx")
    for k in range(12):
        e("v_lshlrev_b32 v%d, 16, v%d" % (160 + 2 * k, 32 + k))
        e("v_and_b32 v%d, 0xffff0000, v%d" % (161 + 2 * k, 32 + k))
    for n, (d, u) in enumerate(lds):
        if n % 3 == 0: g.wait_vm(("pl", min(n + 3, len(lds))))
        for i in range(4):
            a0 = UA[u][i // 2] + 2 * (i % 2)
            e("v_dot2c_f32_bf16 v%d, s70, v%d" % (a0, d + i))
            e("v_dot2c_f32_bf16 v%d, s71, v%d" % (a0 + 1, d + i))
    e("s_nop 2")
    for u in range(3):
        for i in range(4): e("v_permlane16_swap_b32 v%d, v%d" % (UA[u][0] + i, UA[u][1] + i))
        for i in range(4):
            a0 = UA[u][i // 2] + 2 * (i % 2); x = 160 + 8 * u + 2 * i
            e("v_fmac_f32 v%d, v%d, v%d" % (x, a0, 155 + u))
            e("v_fmac_f32 v%d, v%d, v%d" % (x + 1, a0 + 1, 155 + u))
            e("v_cvt_pk_bf16_f32 v%d, v%d, v%d" % (184 + 4 * u + i, x, x + 1))
        e("buffer_store_dwordx4 %s, v%d, s[%d:%d], s%d offen offset:%d %s" % (vr(184 + 4 * u, 4), XL[u][1], SW1, SW1 + 3, XL[u][2], XL[u][3], opt.get("oflags", "sc1")))
    if opt.get("ts") or opt.get("amp") is not None:
        e("s_waitcnt vmcnt(0)"); g.stamp()

def k1(g):
    e, opt = g.e, g.opt
    kernel_head(g, K1)
    e("s_load_dwordx2 s[%d:%d], s[0:1], 0" % (SX, SX + 1))
    e("s_lshr_b32 s3, s2, 8")
    e("s_cbranch_scc1 L_k1_end")
    sh = opt.get("vsh", 2)
    e("s_getpc_b64 s[84:85]")
    e("s_bitcmp1_b32 s2, 3")
    e("s_cselect_b32 s3, L_att-%s, 0" % K1)
    e("s_lshr_b32 s4, s2, 4")
    e("s_lshl_b32 s4, s4, %d" % (8 + sh))
    e("s_add_u32 s3, s3, s4")
    e("v_lshrrev_b32 v1, 6, v0")
    e("v_lshl_add_u32 v2, v0, %d, s3" % sh)
    e("global_load_dword v255, v2, s[84:85]")
    e("v_readfirstlane_b32 s%d, v1" % sW)
    e("v_and_b32 v0, 63, v0")
    e("v_lshrrev_b32 v104, 3, v0")
    e("v_lshrrev_b32 v22, 4, v0")
    e("v_mul_u32_u24 v104, 1152, v104")
    e("v_and_b32 v105, 7, v0")
    e("v_xor_b32 v105, v105, v22")
    e("v_lshl_add_u32 v104, v105, 4, v104")
    e("s_and_b32 s6, s2, 64")
    e("v_xor_b32 v104, s6, v104")
    e("s_bfe_u32 s%d, s2, 0x30003" % sT)
    e("s_and_b32 s%d, s2, 1" % sR)
    e("s_lshl3_add_u32 s%d, s%d, s%d" % (sR, sR, sT))
    e("s_lshr_b32 s60, s2, 6")
    e("s_lshl2_add_u32 s6, s%d, s60" % sW)
    e("s_lshl4_add_u32 s7, s%d, s6" % sR)
    e("s_mulk_i32 s6, 9216")
    e("s_mulk_i32 s7, 9216")
    e("s_mov_b32 m0, s6")
    e("s_mov_b32 s5, 9")
    e("s_mov_b32 s%d, 0x%x" % (SX + 2, PSZ))
    e("s_mov_b32 s%d, 0x20000" % (SX + 3))
    e("s_waitcnt lgkmcnt(0)")
    rest = ["s_load_dwordx8 s[64:71], s[0:1], 0", "s_load_dwordx4 s[72:75], s[0:1], 40", "s_load_dwordx4 s[76:79], s[0:1], 56", "s_load_dwordx4 s[80:83], s[0:1], 72"]
    if opt.get("ts") or opt.get("amp") is not None:
        for t in rest: e(t)
        rest = []
        e("s_waitcnt lgkmcnt(0)")
        e("s_lshl_b32 s94, s2, 2"); e("s_add_u32 s94, s94, s%d" % sW); e("s_lshl_b32 s94, s94, 8"); e("s_add_u32 s94, s94, 0x%x" % WS_TS)
        srd(g, SWS, 82, 83, WS_BYTES); srd(g, SDBG, 80, 81, 256); g.stamp()
    if opt.get("xloop", 0):
        g.label("L_x0")
        x_dma(g, 0, 0)
        g.vm += [("x", j) for j in range(1, 9)]
        e("s_addk_i32 m0, 1024"); e("s_addk_i32 s7, 128"); e("s_addk_i32 s5, -1"); e("s_cmp_lg_u32 s5, 0"); e("s_cbranch_scc1 L_x0")
    else:
        for j in range(9): x_dma(g, 0, j)
    for t in rest: e(t)
    e("v_xor_b32 v105, 64, v104")
    e("v_and_b32 v23, 15, v0")
    e("s_lshl2_add_u32 s4, s%d, s%d" % (sR, sW))
    e("s_mul_i32 s4, s4, 36864")
    e("s_mul_i32 s5, s%d, 36864" % sW)
    e("s_bfe_u32 s%d, s2, 0x20001" % sS)
    e("s_lshr_b32 s3, s2, 6")
    for o in range(1, opt.get("xcommon", 2)):
        for j in range(9): x_dma(g, o, j)
    e("s_waitcnt lgkmcnt(0)")
    wb = opt.get("wsbase", 0)
    if wb:
        e("s_add_u32 s82, s82, 0x%x" % wb); e("s_addc_u32 s83, s83, 0")
    srd(g, SWS, 82, 83, WS_BYTES - wb)
    srd(g, SDBG, 80, 81, 256)
    e("s_or_b32 s%d, s2, s%d" % (sT, sW))
    e("s_cbranch_scc1 L_nonce_done")
    e("s_memrealtime s[98:99]")
    e("s_waitcnt lgkmcnt(0)")
    e("v_mov_b32 v2, s98")
    e("v_or_b32 v2, 1, v2")
    Asm.e(g, "buffer_store_dword v2, off, s[%d:%d], 0 sc1" % (SDBG, SDBG + 3))
    g.label("L_nonce_done")
    e("s_cmp_eq_u32 s3, 0")
    e("s_cbranch_scc1 %s" % ("L_k1_end" if opt.get("noatt") else "L_att"))
    sv = (list(g.vm), list(g.lg), g.nts)
    g.sv = 31
    ffn_role(g)
    g.sv = 30
    def amp(role):
        if opt.get("amp") is None or opt.get("amprole", "ffn") != role: return
        L = g.newlabel("L_amp")
        e("s_sub_u32 s101, s94, s100")
        e("s_add_u32 s101, s101, %d" % opt.get("ampadd", 0))
        if role == "ffn":
            e("s_memrealtime s[92:93]"); e("s_waitcnt lgkmcnt(0)"); e("s_mov_b32 s100, s92")
        g.label(L)
        e("s_sleep 1"); e("s_memrealtime s[92:93]"); e("s_waitcnt lgkmcnt(0)")
        e("s_sub_u32 s92, s92, s100"); e("s_cmp_lt_u32 s92, s101"); e("s_cbranch_scc1 %s" % L)
    amp("ffn")
    e("s_endpgm")
    g.vm, g.lg, g.nts = sv
    g.raw(".p2align 6")
    g.label("L_att")
    import att
    att.att_role(g)
    amp("att")
    g.label("L_k1_end")
    e("s_endpgm")
    g.raw(".fill %d, 4, 0xbf810000" % (8192 if opt.get("vsh", 2) == 4 else 4096))

VOP3ONLY = ("v_mfma", "v_pk_", "v_fma_f32", "v_cvt_pk_bf16", "v_accvgpr_read", "v_accvgpr_write", "v_max3", "v_min3", "v_lshl_add", "v_add_lshl", "v_mad_u32",
            "v_bfe", "v_add3", "v_mul_lo", "v_mul_hi", "v_lshl_or", "v_and_or", "v_readlane", "v_perm_b32")
NOWIDE = ("v_readfirstlane", "v_permlane", "v_dot2c", "v_nop")
def has_lit(s):
    for t in re.split(r"[ ,]+", s)[1:]:
        if re.match(r"^-?(0x[0-9a-f]+|\d+)$", t):
            v = int(t, 0)
            if not (-16 <= v <= 64) and v not in (0x3f800000, 0x3f000000, 0x40000000, 0x40800000, 0xbf800000, 0xbf000000, 0xc0000000, 0xc0800000): return True
        if t.startswith("L_"): return not s.startswith(("s_cbranch", "s_branch"))
    return False
def isize(s):
    op = s.split()[0]
    if op.startswith(("ds_", "buffer_", "global_", "s_load", "s_mem")): return 8, False
    if op.startswith("s_"):
        if op.startswith(("s_waitcnt", "s_addk", "s_mulk", "s_nop", "s_barrier", "s_sleep", "s_endpgm", "s_cbranch", "s_branch", "s_setprio", "s_getreg")): return 4, False
        return (8 if has_lit(s) else 4), False
    if op.startswith(VOP3ONLY): return 8, False
    if has_lit(s): return 8, False
    ops = [x.strip() for x in re.split(r",(?![^\[]*\])", s.split(None, 1)[1])]
    if op.startswith("v_cmp") and ops[0] != "vcc": return 8, False
    if op.startswith("v_cndmask") and ops[-1] != "vcc": return 8, False
    if len(ops) >= 3 and not ops[2].startswith("v"): return 8, False
    return 4, not op.startswith(NOWIDE)
def align_pass(lines, minrun=4):
    ins = [l.strip() for l in lines]
    out = []; par = 0
    isins = lambda l: l and not l.endswith(":") and not l.startswith((".", ";"))
    n = len(ins)
    def nxt(i):
        i += 1
        while i < n and not isins(ins[i]):
            if ins[i].startswith(".p2align"): return None
            i += 1
        return i if i < n else None
    for i, l in enumerate(ins):
        if not isins(l):
            if l.startswith(".p2align"): par = 0
            out.append(l); continue
        sz, flex = isize(l)
        if sz == 8: out.append(l); continue
        if par == 1: out.append(l); par = 0; continue
        j = nxt(i)
        if j is None or isize(ins[j])[0] == 4: out.append(l); par = 1; continue
        if flex:
            op, rest = l.split(None, 1); out.append(op + "_e64 " + rest); continue
        run = 0
        while j is not None and isize(ins[j])[0] == 8 and run < minrun: run += 1; j = nxt(j)
        out.append(l)
        if run >= minrun and not l.startswith(("s_branch", "s_endpgm")): out.append("s_nop 0")
        else: par = 1
    return out

LABELS = {}
def resolve(lines):
    off = 0; LABELS.clear()
    for l in lines:
        l = l.strip()
        if l.endswith(":"): LABELS[l[:-1]] = off
        elif l.startswith(".p2align"):
            a = 1 << int(l.split()[1]); off = (off + a - 1) // a * a
        elif l and not l.startswith((".", ";")):
            off += 8 if l.split()[0].endswith("_e64") else isize(l)[0]
    end = LABELS["L_k1_end"]
    def f(m):
        span = 2048 if LABELS[m.group(1)] >= LABELS["L_att"] else 6144
        return "0x%x" % (min(LABELS[m.group(1)] + int(m.group(2)), end - span) & ~3)
    return [re.sub(r"@(\w+)\+(\d+)", f, l) if l.strip().startswith("s_load") else l for l in lines]

DOC = """; One launch, 256 workgroups of 4 waves (one per CU), generated by a script (straight-line software pipeline).
;  FFN : gate/up GEMM (weights by LDS-DMA ring + transposing LDS reads, 16x16x32 MFMA), h = relu(g)*u, h exchanged
;        partial sums exchanged between the 4 quads, out = x + sum / std^2.
"""
MACROS = """.macro MA d,a,b
v_mfma_f32_16x16x32_bf16 v[\\d:\\d+3], a[\\a:\\a+3], a[\\b:\\b+3], v[\\d:\\d+3]
.endm
.macro MV d,a,b
v_mfma_f32_16x16x32_bf16 v[\\d:\\d+3], a[\\a:\\a+3], v[\\b:\\b+3], v[\\d:\\d+3]
.endm
.macro RT d,b,o
ds_read_b64_tr_b16 a[\\d:\\d+1], v\\b offset:\\o
.endm
.macro WL n
s_waitcnt lgkmcnt(\\n)
.endm
.macro CV d,a,b
v_cvt_pk_bf16_f32 v\\d, v\\a, v\\b
.endm
"""
def compress(line):
    s = line.strip()
    m = re.match(r"v_mfma_f32_16x16x32_bf16 v\[(\d+):\d+\], a\[(\d+):\d+\], ([av])\[(\d+):\d+\], v\[(\d+):\d+\]$", s)
    if m and m.group(1) == m.group(5): return "M%s %s,%s,%s" % (m.group(3).upper(), m.group(1), m.group(2), m.group(4))
    m = re.match(r"ds_read_b64_tr_b16 a\[(\d+):\d+\], v(\d+) offset:(\d+)$", s)
    if m: return "RT %s,%s,%s" % m.groups()
    m = re.match(r"s_waitcnt lgkmcnt\((\d+)\)$", s)
    if m: return "WL %s" % m.group(1)
    m = re.match(r"v_cvt_pk_bf16_f32 v(\d+), v(\d+), v(\d+)$", s)
    if m: return "CV %s,%s,%s" % m.groups()
    return s

def gen(**opt):
    g = G(opt)
    k1(g)
    FUSE = 1
    errs = hazard.check(g.lines)
    if errs:
        print("\n".join(errs[:40])); raise SystemExit("hazards: %d" % len(errs))
    head = open("cdna_kernels/%s.s.ref" % BASE).read().split("; Override launch")[0] if not opt.get("nohead") else ""
    out = head
    if FUSE: out += "; @launch grid=(256,1,1) block=(256,1,1) lds=163840\n"
    else: out += "; @launch kernel=%s grid=(256,1,1) block=(256,1,1) lds=163840\n" % K1
    if not FUSE: out += "; @launch kernel=%s grid=(256,1,1) block=(576,1,1) lds=0\n" % K2
    out += '.amdgcn_target "amdgcn-amd-amdhsa--gfx950"\n' + DOC + '.text\n' + MACROS
    lines = align_pass(g.lines, opt.get("minrun", 4)) if opt.get("align", 1) else g.lines
    lines = resolve(lines)
    out += "\n".join(compress(l) for l in lines) + "\n"
    out += '.section .rodata,"a"\n' + kernel_desc(K1, 512, 256) + ("" if FUSE else kernel_desc(K2, 96, 96, 40))
    return out

if __name__ == "__main__":
    kw = json.loads(sys.argv[2]) if len(sys.argv) > 2 else {}
    open(sys.argv[1], "w").write(gen(**kw))
```

```python
from asmlib import *
import gen as G
from gen import *

TBL = 155648; ZER = 163328; SCR = 98304
sODD = 42
sWO = 44
sKV, sQ, sKVP, sCQ, sOXB = 49, 50, 51, 44, 45
ACC = 32

def softmax(p, o, tt, E):
    L = []; e = L.append
    e("v_max3_f32 v24, v%d, v%d, v%d" % (p, p + 1, p + 2)); e("v_min3_f32 v25, v%d, v%d, v%d" % (p, p + 1, p + 2))
    for i in range(3, 17, 2):
        e("v_max3_f32 v24, v24, v%d, v%d" % (p + i, p + i + 1)); e("v_min3_f32 v25, v25, v%d, v%d" % (p + i, p + i + 1))
    e("v_max_f32 v24, v24, v%d" % (p + 17)); e("v_min_f32 v25, v25, v%d" % (p + 17))
    e("v_pk_mul_f32 v[24:25], v[24:25], v[14:15] op_sel:[0,%d] op_sel_hi:[1,%d]" % (tt, tt))
    for i in range(0, 18, 2):
        e("v_pk_fma_f32 %s, %s, v[14:15], v[24:25] op_sel:[0,%d,0] op_sel_hi:[1,%d,0] neg_lo:[0,0,1] neg_hi:[0,0,1]" % (vr(E + i, 2), vr(p + i, 2), tt, tt))
        e("v_pk_fma_f32 %s, %s, v[14:15], v[24:25] op_sel:[0,%d,1] op_sel_hi:[1,%d,1] neg_lo:[0,1,0] neg_hi:[0,1,0]" % (vr(p + i, 2), vr(p + i, 2), tt, tt))
    for i in range(18):
        e("v_exp_f32 v%d, v%d" % (E + i, E + i))
        e("v_exp_f32 v%d, v%d" % (p + i, p + i))
    e("v_pk_add_f32 v[24:25], %s, %s" % (vr(E, 2), vr(E + 2, 2)))
    e("v_pk_add_f32 v[26:27], %s, %s" % (vr(p, 2), vr(p + 2, 2)))
    for i in range(4, 18, 2):
        e("v_pk_add_f32 v[24:25], v[24:25], %s" % vr(E + i, 2))
        e("v_pk_add_f32 v[26:27], v[26:27], %s" % vr(p + i, 2))
    e("v_add_f32 v24, v24, v25")
    e("v_add_f32 v25, v26, v27")
    e("v_rcp_f32 v24, v24")
    e("v_rcp_f32 v25, v25")
    e("s_nop 0")
    for i in range(0, 18, 2):
        e("v_pk_mul_f32 %s, %s, v[24:25] op_sel:[0,0] op_sel_hi:[1,0]" % (vr(E + i, 2), vr(E + i, 2)))
        e("v_pk_mul_f32 %s, %s, v[24:25] op_sel:[0,1] op_sel_hi:[1,1]" % (vr(p + i, 2), vr(p + i, 2)))
    for i in range(8, -1, -1): e("v_cvt_pk_bf16_f32 v%d, v%d, v%d" % (o + 9 + i, p + 2 * i, p + 2 * i + 1))
    for i in range(9): e("v_cvt_pk_bf16_f32 v%d, v%d, v%d" % (o + i, E + 2 * i, E + 2 * i + 1))
    out = []
    for x in L:
        if x.startswith("v_pk_"):
            if out and isinstance(out[-1], list): out[-1].append(x)
            else: out.append([x])
        else: out.append(x)
    for x in out:
        if isinstance(x, list): x.append("s_nop 0")
    return out

def phi_frag_reads(rho, A, tag):
    L = ["v_mov_b32 v29, v18" if rho == 0 else "v_mad_u32_u24 v29, v19, 12, v18"]
    for ks in range(3):
        for to in range(5):
            b = A + (ks * 5 + to) * 4
            L.append(("ds_read_b64_tr_b16 %s, v29 offset:%d" % (ar(b, 2), to * 8), tag))
            L.append(("ds_read_b64_tr_b16 %s, v29 offset:%d" % (ar(b + 2, 2), to * 8 + 160), tag))
        if ks < 2: L.append("v_add_u32 v29, v29, v19")
    return L

def phi_mfma(pk, P, A):
    return [mfma(vr(P[tt] + 4 * to, 4), ar(A + (ks * 5 + to) * 4, 4), vr(pk[tt] + 4 * ks, 4), "0" if ks == 0 else None)
            for ks in range(3) for to in range(5) for tt in range(2)]

def pack20(src, dst):
    return ["v_cvt_pk_bf16_f32 v%d, v%d, v%d" % (dst + i, src + 2 * i, src + 2 * i + 1) for i in range(10)]

def put(g, L):
    for it in L:
        if callable(it): it()
        elif isinstance(it, list): put(g, it)
        elif isinstance(it, tuple): g.e(it[0], it[1])
        else: g.e(it)

def weave(g, ms, fill, per=2):
    fill = list(fill)
    for m in ms:
        put(g, [m]); put(g, fill[:per]); fill = fill[per:]
    put(g, fill)

def c1(f):
    f.cost = 1
    return f

def att_role(g):
    e, opt = g.e, g.opt
    wf = opt.get("aflags", ""); TOUCH = opt.get("touch", 1); tf = opt.get("tflags", "")
    CPF = opt.get("codepf", 0)
    e("s_sub_u32 s66, s66, 2048")
    e("s_subb_u32 s67, s67, 0")
    srd(g, SW1, 66, 67, 576 * 1728 * 2 + 2048)
    srd(g, SPHI, 68, 69, 32 * 18 * 18 * 2)
    e("s_mul_i32 s%d, s%d, 3072" % (sM0W, sW))
    e("s_and_b32 s%d, s%d, 1" % (sT, sW))
    e("s_lshl_b32 s%d, s%d, 4" % (sT, sT))
    e("s_add_u32 s%d, s%d, s%d" % (sM0W, sM0W, sT))
    e("s_and_b32 s%d, s%d, 2" % (sT, sW))
    e("s_lshl_b32 s%d, s%d, 7" % (sT, sT))
    e("s_add_u32 s%d, s%d, s%d" % (sM0W, sM0W, sT))
    e("s_mul_i32 s%d, s%d, 288" % (sQ, sS))
    e("s_and_b32 s47, s%d, 0xffc0" % sQ)
    e("s_add_u32 s%d, s47, 1152" % sKV)
    e("s_lshl_b32 s%d, s%d, 7" % (sCNT, sS))
    e("s_add_u32 s%d, s%d, 0x%x" % (sCNT, sCNT, WS_FLG + 64 * 128))
    e("s_add_u32 s46, s%d, 512" % sCNT)
    e("s_lshl_b32 s63, s%d, 2" % sR)
    e("s_add_u32 s63, s63, s%d" % sCNT)
    e("s_lshl_b32 s%d, s%d, 2" % (sT, sR))
    e("s_add_u32 s%d, s%d, s%d" % (sT, sT, sS))
    e("s_lshl_b32 s%d, s%d, 7" % (sCQ, sT))
    e("s_add_u32 s%d, s%d, 0x%x" % (sCQ, sCQ, WS_FLG))
    e("s_lshl_b32 s%d, s%d, 2" % (sT, sT))
    e("s_add_u32 s%d, s%d, s%d" % (sT, sT, sW))
    e("s_mul_i32 s%d, s%d, 10240" % (sOXB, sT))
    e("s_add_u32 s%d, s%d, 0x%x" % (sOXB, sOXB, WS_OX))
    e("s_lshl_b32 s%d, s%d, 3" % (sKVP, sS))
    e("s_add_u32 s%d, s%d, s%d" % (sKVP, sKVP, sW))
    e("s_lshl_b32 s%d, s%d, 4" % (sKVP, sKVP))
    e("s_add_u32 s%d, s%d, s%d" % (sKVP, sKVP, sR))
    e("s_mul_i32 s%d, s%d, 2944" % (sKVP, sKVP))
    e("s_add_u32 s%d, s%d, 0x%x" % (sKVP, sKVP, WS_KVP))
    stages = []; SLOT = 12800; NSL = 7
    for ps in range(3):
        for ks in range(18):
            n = len(stages); lo = (n % NSL) * SLOT
            sb, add, vo = (sKV, 128 * ps, 1) if ps < 2 else (47, 0, 4)
            pre = ["s_add_u32 m0, s%d, %d" % (sM0W, lo), "s_add_u32 s%d, s%d, %d" % (sOFF, sb, ks * 32 * 3456 + add)]
            dmas = ["buffer_load_dwordx4 v%d, s[%d:%d], s%d offen offset:%d %s lds" % (vo + i, SW1, SW1 + 3, sOFF, i * 1024, wf) for i in range(3)]
            frags = []
            for sec in range(2):
                for t in range(5):
                    off = lo + sec * 1536 + 8 * t + 16 * (ps if ps < 2 else sec)
                    def rd(buf, off=off):
                        b = 7 + (off >> 16); o = off & 0xffff
                        assert o + 768 < 65536
                        return ["ds_read_b64_tr_b16 %s, v%d offset:%d" % (ar(buf, 2), b, o), "ds_read_b64_tr_b16 %s, v%d offset:%d" % (ar(buf + 2, 2), b, o + 768)]
                    def mf(buf, ks=ks, sec=sec, t=t, XC=(XC if ps else XV0)):
                        order = (0, 1) if (sec * 5 + t) % 2 == 0 else (1, 0)
                        return [mfma(vr(ACC + (sec * 2 + tt) * 20 + 4 * t, 4), ar(buf, 4), XC(tt, ks), "0" if ks == 0 else None) for tt in order]
                    frags.append((rd, mf))
            stages.append(Stage(lo, lo + SLOT, pre, dmas, frags, "x"))
    OB = 192; VST = 21
    pipe = Pipe(g, stages, opt.get("D", 7), opt.get("ABE", 2))

    def early():
        if TOUCH:
            e("v_mul_u32_u24 v28, 3641, v0")
            e("v_lshrrev_b32 v28, 16, v28")
            e("v_mul_u32_u24 v9, 18, v28")
            e("v_sub_u32 v9, v0, v9")
            e("s_mul_i32 s3, s%d, 18" % sW)
            e("s_and_b32 s%d, s%d, 7" % (sOFF, sR))
            e("s_mul_i32 s%d, s%d, 72" % (sOFF, sOFF))
            e("s_add_u32 s3, s3, s%d" % sOFF)
            e("v_add_u32 v9, s3, v9")
            e("v_mul_u32_u24 v9, 3456, v9")
            e("v_lshl_add_u32 v9, v28, 7, v9")
            e("v_add_u32 v9, 2048, v9")
            e("v_cmp_gt_u32 vcc, 54, v0")
            e("v_mov_b32 v28, 0x%x" % OOB)
            e("s_nop 0")
            e("v_cndmask_b32 v9, v28, v9, vcc")
        e("s_lshl_b32 s%d, s%d, 6" % (sOFF, sW))
        e("v_add_u32 v29, s%d, v0" % sOFF)
        for i in range(4): e("v_mov_b32 v%d, 0" % (96 + i))
        e("v_lshlrev_b32 v28, 5, v29")
        e("v_add_u32 v28, %d, v28" % TBL)
        e("ds_write_b128 v28, v[96:99]")
        e("ds_write_b128 v28, v[96:99] offset:16")
        for i in range(6):
            a = 90 + i
            e("v_add_u32 v28, %d, v29" % (256 * i))
            e("v_mul_u32_u24 v30, 7282, v28")
            e("v_lshrrev_b32 v30, 16, v30")
            e("v_mul_u32_u24 v31, 3641, v30")
            e("v_lshrrev_b32 v31, 16, v31")
            e("v_add_lshl_u32 v%d, v28, v30, 2" % a)
            e("v_mul_u32_u24 v30, 240, v31")
            e("v_add_u32 v%d, v%d, v30" % (a, a))
            e("v_and_b32 v31, 1, v31")
            e("v_mul_u32_u24 v31, 80, v31")
            e("v_add3_u32 v%d, v%d, v31, s%d" % (a, a, sT)) if False else None
            e("v_add_u32 v%d, v%d, v31" % (a, a))
            e("v_add_u32 v%d, %d, v%d" % (a, TBL, a))
        e("v_cmp_gt_u32 vcc, 16, v29")
        e("v_mov_b32 v28, 150000")
        e("s_nop 0")
        e("v_cndmask_b32 v95, v28, v95, vcc")
        e("s_lshl_b32 s3, s%d, 3" % sW)
        e("v_mov_b32 v111, 0x%x" % OOB)
        for i in range(3):
            e("v_add_u32 v28, %d, v0" % (64 * i))
            e("v_mul_u32_u24 v30, 5462, v28")
            e("v_lshrrev_b32 v30, 16, v30")
            e("v_mul_u32_u24 v31, 12, v30")
            e("v_sub_u32 v31, v28, v31")
            e("v_lshrrev_b32 v28, 3, v30")
            e("v_and_b32 v30, 7, v30")
            e("v_add_u32 v30, s3, v30")
            e("v_mul_u32_u24 v30, 3456, v30")
            e("v_lshl_add_u32 v30, v31, 4, v30")
            e("v_add_u32 v30, %d, v30" % (2048 - 1024 * i))
            e("v_lshl_add_u32 v%d, v28, 7, v30" % (4 + i))
            e("v_mul_u32_u24 v28, 1152, v28")
            e("v_add_u32 v%d, v28, v30" % (1 + i))
        e("v_mul_u32_u24 v7, 3072, v22")
        e("v_and_b32 v28, 1, v22")
        e("v_cmp_eq_u32 s[%d:%d], 1, v28" % (sODD, sODD + 1))
        e("v_lshl_add_u32 v7, v28, 4, v7")
        e("v_lshrrev_b32 v28, 1, v22")
        e("v_lshl_add_u32 v7, v28, 8, v7")
        e("v_bfe_u32 v28, v0, 2, 2")
        e("v_mul_u32_u24 v30, 192, v28")
        e("v_add_u32 v7, v7, v30")
        e("v_bfe_u32 v30, v0, 1, 1")
        e("v_mul_u32_u24 v30, 72, v30")
        e("v_add_u32 v7, v7, v30")
        e("v_and_b32 v30, 1, v0")
        e("v_lshl_add_u32 v7, v30, 5, v7")
        e("s_and_b32 s3, s%d, 63" % sQ)
        e("v_add_u32 v7, s3, v7")
        e("v_add_u32 v8, 0x10000, v7")
        e("v_mul_u32_u24 v18, 960, v22")
        e("v_mul_u32_u24 v30, 40, v28")
        e("v_add_u32 v18, v18, v30")
        e("v_add_u32 v18, %d, v18" % TBL)
        e("v_and_b32 v30, 3, v0")
        e("v_cmp_eq_u32 vcc, v30, v22")
        e("v_mov_b32 v30, %d" % ZER)
        e("v_mov_b32 v31, 320")
        e("v_cndmask_b32 v18, v30, v18, vcc")
        e("v_cndmask_b32 v19, 0, v31, vcc")
        e("v_cmp_eq_u32 vcc, 0, v29")
        e("v_lshlrev_b32 v%d, 4, v0" % VST)
        e("s_nop 0")
        e("v_cndmask_b32 v20, v111, 0, vcc") if False else None
        e("v_mov_b32 v20, 0")
        e("v_cndmask_b32 v20, v111, v20, vcc")
        e("s_lshl_b32 s3, s%d, 5" % sW)
        e("v_add_u32 v28, s3, v23")
        e("v_mul_u32_u24 v10, 112, v28")
        e("v_mul_u32_u24 v28, 14336, v22")
        e("v_add_u32 v10, v10, v28")
        e("v_add_u32 v10, %d, v10" % SCR)
        e("v_bfe_u32 v28, v0, 2, 2")
        e("v_lshl_add_u32 v28, v22, 3, v28")
        e("v_mul_u32_u24 v11, 112, v28")
        e("v_and_b32 v28, 3, v0")
        e("v_lshl_add_u32 v11, v28, 3, v11")
        e("s_mul_i32 s3, s%d, 14336" % sW)
        e("s_add_u32 s3, s3, %d" % SCR)
        e("v_add_u32 v11, s3, v11")
        e("v_lshlrev_b32 v12, 4, v0")
    def touch(sec): return "buffer_load_dword v13, v9, s[%d:%d], s%d offen offset:%d %s" % (SW1, SW1 + 3, sQ, sec * 1152, tf)
    AT = opt.get("atouch", [[1, 2], [0], []])
    def phil():
        e("s_mul_i32 s95, s%d, 5184" % sS)
        e("v_lshlrev_b32 v110, 2, v29")
        e("v_add_u32 v109, 4096, v110")
        for i in range(6):
            e("buffer_load_dword a%d, v%d, s[%d:%d], s95 offen offset:%d" % (244 + i, 110 if i < 4 else 109, SPHI, SPHI + 3, (i % 4) * 1024), "phi")
    def late():
        if TOUCH:
            for sec in AT[0]: e(touch(sec))
    import re
    sv = (g.lines, list(g.vm), list(g.lg)); g.lines = []
    early()
    for i in range(6): e("v_accvgpr_write_b32 a%d, v%d" % (250 + i, 90 + i))
    fill = [re.sub(r"\bs3\b", "s96", re.sub(r"\bs%d\b" % sOFF, "s95", l.strip())) for l in g.lines]
    g.lines, g.vm, g.lg = sv
    pipe.qthr = 3
    prologue(g, pipe, afterbar=late, postc=phil, fill=fill, var=True, nfirst=opt.get('anfirst', 6))
    e("v_and_b32 v28, 1, v0")
    e("v_cmp_eq_u32 vcc, 1, v28")
    e("v_and_b32 v28, 2, v0")
    e("v_cmp_eq_u32 s[54:55], 2, v28")
    e("v_lshrrev_b32 v28, 2, v23")
    e("v_lshl_add_u32 v28, v28, 4, v23")
    e("v_lshlrev_b32 v28, 2, v28")
    e("s_nop 0")
    for tt in range(2):
        d = 96 + 4 * tt
        e("v_cndmask_b32 v%d, v%d, v%d, vcc" % (d, d, d + 1))
        e("v_cndmask_b32 v%d, v%d, v%d, vcc" % (d + 2, d + 2, d + 3))
        e("v_cndmask_b32 v%d, v%d, v%d, s[54:55]" % (24 + tt, d, d + 2))
        e("ds_bpermute_b32 v%d, v28, v%d" % (16 + tt, 24 + tt))
    rnd = ["v_cvt_pk_bf16_f32 v26, v16, v17", "v_lshlrev_b32 v16, 16, v26", "v_and_b32 v17, 0xffff0000, v26"]
    VAR = ["s_mov_b32 s%d, 0x3ae38e39" % sT]
    VAR += ["v_mul_f32 v%d, v%d, v%d" % (14 + tt, 14 + tt, 14 + tt) for tt in range(2)]
    VAR += ["v_fma_f32 v%d, v%d, s%d, -v%d" % (16 + tt, 16 + tt, sT, 14 + tt) for tt in range(2)]
    VAR += ["v_max_f32 v%d, 0, v%d" % (16 + tt, 16 + tt) for tt in range(2)] + rnd
    VAR += ["v_add_f32 v%d, 0x3727c5ac, v%d" % (16 + tt, 16 + tt) for tt in range(2)] + rnd
    VAR += ["v_sqrt_f32 v%d, v%d" % (16 + tt, 16 + tt) for tt in range(2)] + ["s_nop 0"] + rnd
    VAR += ["v_mul_f32 v%d, v%d, v%d" % (14 + tt, 16 + tt, 16 + tt) for tt in range(2)]
    VAR += ["v_accvgpr_write_b32 a%d, v%d" % (240 + tt, 14 + tt) for tt in range(2)]
    VAR += ["v_rcp_f32 v%d, v%d" % (16 + tt, 16 + tt) for tt in range(2)] + ["s_nop 0"]
    VAR += ["v_mul_f32 v%d, 0x3fb8aa3b, v%d" % (14 + tt, 16 + tt) for tt in range(2)]
    TW = [c1(lambda: g.wait_vm("phi"))]
    for i in range(6): TW += ["v_accvgpr_read_b32 v%d, a%d" % (24 + i % 4, 250 + i), ("ds_write_b32 v%d, a%d" % (24 + i % 4, 244 + i), "tw")]
    TW += [Hook(before=lambda: g.wait_lg("tw"))]
    g.stamp()
    PKK = [112, 124]; P = [136, 156]; ROW = [176, 204]; E = 232; FA = 176
    def head(rho):
        e("s_nop 3")
        for tt in range(2):
            for i in (10, 11): e("v_mov_b32 v%d, 0" % (PKK[tt] + i))
        for tt in range(2): put(g, pack20(ACC + tt * 20, PKK[tt]))
        g.wait_lg(("phf", rho))
        V = ["v_mov_b32 v28, 0x3f80"]
        for tt in range(2):
            s = ACC + (2 + tt) * 20
            put(g, ["v_pk_mul_f32 %s, %s, v[16:17] op_sel:[0,%d] op_sel_hi:[1,%d]" % (vr(s + i, 2), vr(s + i, 2), tt, tt) for i in range(0, 20, 2)])
            V += pack20(s, ROW[tt] + 18)
            V += ["v_cndmask_b32 v%d, v%d, v28, s[%d:%d]" % (ROW[tt] + 18, ROW[tt] + 18, sODD, sODD + 1),
                  "v_cndmask_b32 v%d, v28, v%d, s[%d:%d]" % (ROW[tt] + 27, ROW[tt] + 27, sODD, sODD + 1)]
        e("s_nop 0")
        weave(g, phi_mfma(PKK, P, FA), V)
    def post(rho):
        L = []
        for tt in range(2):
            L += softmax(P[tt], ROW[tt], tt, E)
            L += [("ds_write_b128 v10, %s offset:%d" % (vr(ROW[tt] + 4 * i, 4), tt * 16 * 112 + 16 * i), ("sw", rho)) for i in range(7)]
        L += ["v_cmp_eq_u32 vcc, 0, v22", "v_cmp_gt_u32 s[54:55], 4, v23", "v_mov_b32 v28, 0x%x" % OOB,
              "s_add_u32 s%d, s%d, %d" % (sT, sKVP, rho * 4 * 16 * 2944),
              "v_cndmask_b32 v25, v28, v12, vcc", "v_lshl_add_u32 v26, v22, 2, v23", "v_lshlrev_b32 v26, 4, v26", "v_cmp_gt_u32 vcc, 2, v22",
              "v_cndmask_b32 v26, v28, v26, s[54:55]", "s_nop 0", "v_cndmask_b32 v27, v28, v26, vcc"]
        L.append(Hook(before=lambda: g.wait_lg(("sw", rho))))
        KF = 136
        for kk in range(4):
            for f in range(5):
                col = 32 * f if f < 3 else 72 + 32 * (f - 3)
                d = KF + (kk * 5 + f) * 4
                L.append(("ds_read_b64_tr_b16 %s, v11 offset:%d" % (vr(d, 2), kk * 32 * 112 + col), ("kr", rho, kk)))
                L.append(("ds_read_b64_tr_b16 %s, v11 offset:%d" % (vr(d + 2, 2), kk * 32 * 112 + col + 4 * 112), ("kr", rho, kk)))
        L.append(Delay(2))
        L.append(c1(lambda: g.wait_lg(("kr", rho, 3))))
        for kk in range(4):
            for a in range(3):
                for b in range(2):
                    L.append(mfma(vr(112 + (a * 2 + b) * 4, 4), vr(KF + (kk * 5 + a) * 4, 4), vr(KF + (kk * 5 + 3 + b) * 4, 4), "0" if kk == 0 else None))
        L.append(Delay(3)); L.append("s_nop 0")
        for a in range(3):
            for b in range(2):
                vo = {(0, 0): 12, (1, 0): 25, (0, 1): 26, (1, 1): 27}[(int(a == 2), b)]
                L.append(("buffer_store_dwordx4 %s, v%d, s[%d:%d], s%d offen offset:%d sc1" % (vr(112 + (a * 2 + b) * 4, 4), vo, SWS, SWS + 3, sT, 2304 + a * 256 if b else a * 1024), "kvst"))
        return L
    DB, DQ = opt.get("dens", [2, 12])
    APZ = opt.get("apause", 15)
    fine = {k: [g.stamp] for k in range(30, 180, 30)} if opt.get("fine") else {}
    ACP = opt.get("acpf", 8192)
    def cpf(step, extra=0):
        d = dict(fine)
        if ACP:
            for k in range(5, 160, step): d.setdefault(k, []).append(code_pf())
            for n in range(extra): d.setdefault(176, []).extend(["s_add_u32 s101, s101, 2048", code_pf()])
        return d
    if ACP:
        e("s_lshr_b32 s101, s2, 3"); e("s_lshl_b32 s101, s101, 2"); e("s_add_u32 s101, s101, s%d" % sW)
        e("s_lshl_b32 s101, s101, 6"); e("s_add_u32 s101, s101, %d" % ACP)
    pipe.run(0, 18, {1: VAR + xc_copies(True), 90: TW + [Dens(1)] + phi_frag_reads(0, FA, ("phf", 0)) + [Mark('pA')]}, lagok=True, pauses=[(0, opt.get('ap0', 0))], urgent=cpf(34))
    g.stamp()
    pipe.flush()
    put(g, flag_lane_offsets(250, 28))
    if opt.get("fpre", 1): e(flag_load(13, 250, sCNT)); e(flag_load(13, 250, 46)); e(flag_load(13, 250, sCQ))
    flag_issue(g, 251, 250, None)
    if TOUCH: put(g, [touch(x) for x in AT[1]])
    pipe.run(18, 36, {2: [Dens(DB)] + post(0) + phi_frag_reads(1, FA, ("phf", 1)) + [Mark("postA")]}, lagok=False, urgent=cpf(26), pauses=[(0, APZ)], between=lambda: (head(0), g.stamp()))
    g.stamp()
    flag_check(g, 251, 250, None, 0)
    if TOUCH: put(g, [touch(x) for x in AT[2]])
    L1 = ["s_mul_i32 s96, s%d, 25" % sW, "v_add_u32 v28, s96, v0", "v_mul_u32_u24 v31, 3277, v28", "v_lshrrev_b32 v31, 16, v31",
          "v_mul_u32_u24 v29, 20, v31", "v_sub_u32 v29, v28, v29", "s_and_b32 s96, s%d, 1" % sR, "s_mul_i32 s96, s96, 5",
          "v_add_u32 v31, s96, v31", "v_cmp_gt_u32 vcc, 25, v0", "v_cmp_gt_u32 s[54:55], 9, v31",
          "v_cmp_gt_u32 s[56:57], 16, v29", "v_lshlrev_b32 v24, 8, v31", "v_lshlrev_b32 v25, 6, v31", "v_add_u32 v25, 2048, v25",
          "v_cndmask_b32 v24, v25, v24, s[56:57]", "v_lshl_add_u32 v24, v29, 4, v24",
          "v_mul_u32_u24 v25, 160, v31", "v_lshl_add_u32 v25, v29, 3, v25",
          "v_mov_b32 v28, 0x%x" % OOB, "v_cndmask_b32 v24, v28, v24, vcc", "v_cndmask_b32 v24, v28, v24, s[54:55]", "v_cndmask_b32 v12, v28, v25, vcc",
          "s_lshl_b32 s96, s%d, 3" % sS, "s_lshr_b32 s95, s%d, 1" % sR, "s_add_u32 s96, s96, s95",
          "s_mul_i32 s%d, s96, %d" % (sT, 16 * 2944), "s_add_u32 s%d, s%d, 0x%x" % (sT, sT, WS_KVP),
          "s_mul_i32 s95, s96, 1600", "s_add_u32 s95, s95, 0x%x" % WS_KVF]
    KVL = SCR; KZ = SCR + 13312
    KS = []
    def ks_setup(e=KS.append):
        e("s_lshl_b32 s96, s%d, 6" % sW)
        e("v_add_u32 v28, s96, v0")
        e("v_lshlrev_b32 v224, 4, v28")
        e("v_lshlrev_b32 v225, 3, v28")
        e("v_add_u32 v225, %d, v225" % KZ)
        e("v_mov_b32 v226, 0"); e("v_mov_b32 v227, 0")
        e("ds_write_b64 v225, v[226:227]")
        e("v_cmp_gt_u32 vcc, 32, v28")
        e("v_mov_b32 v230, 0x%x" % OOB)
        e("s_mov_b32 s%d, %d" % (sT2, KVL))
        e("v_cndmask_b32 v230, v230, v224, vcc")
        for k in range(4):
            d = 252 + k
            e("v_add_u32 v29, %d, v28" % (256 * k))
            e("v_mul_u32_u24 v31, 6554, v29")
            e("v_lshrrev_b32 v31, 16, v31")
            e("v_mul_u32_u24 v%d, 10, v31" % d)
            e("v_sub_u32 v%d, v29, v%d" % (d, d))
            e("v_mul_u32_u24 v%d, 160, v%d" % (d, d))
            e("v_lshl_add_u32 v%d, v31, 3, v%d" % (d, d))
            e("v_mul_u32_u24 v31, 6554, v31")
            e("v_lshrrev_b32 v31, 16, v31")
            e("v_mul_u32_u24 v31, 1520, v31")
            e("v_add3_u32 v%d, v%d, v31, s%d" % (d, d, sT2))
        e("v_add_u32 v29, 8192, v255")
        e("v_cndmask_b32 v255, v29, v255, vcc")
        e("s_mul_i32 s%d, s%d, 12800" % (sT2, sS))
        e("s_add_u32 s%d, s%d, 0x%x" % (sT2, sT2, WS_KVF))
        e("v_lshrrev_b32 v28, 2, v23")
        e("v_cmp_eq_u32 s[54:55], v28, v22")
        e("v_mul_u32_u24 v228, 1600, v22")
        e("v_and_b32 v28, 3, v23")
        e("v_mul_u32_u24 v28, 80, v28")
        e("v_add_u32 v228, v228, v28")
        e("v_add_u32 v228, %d, v228" % KVL)
        e("v_add_u32 v229, 6400, v228")
        e("v_mov_b32 v28, %d" % KZ)
        e("v_cndmask_b32 v228, v28, v228, s[54:55]")
        e("v_cndmask_b32 v229, v28, v229, s[54:55]")
    ks_setup()
    L1L = []
    for p in range(16):
        L1L.append(("buffer_load_dwordx4 %s, v24, s[%d:%d], s%d offen sc1" % (vr(160 + 4 * p, 4), SWS, SWS + 3, sT), ("l1", p)))
        if p < 15: L1L.append("s_add_u32 s%d, s%d, 2944" % (sT, sT))
    S = [lambda: g.wait_vm(("l1", 15))]
    for p in range(1, 16): S += ["v_add_f32 v%d, v%d, v%d" % (160 + i, 160 + i, 160 + 4 * p + i) for i in range(4)]
    S += ["v_cvt_pk_bf16_f32 v160, v160, v161", "v_cvt_pk_bf16_f32 v161, v162, v163",
          ("buffer_store_dwordx2 v[160:161], v12, s[%d:%d], s95 offen sc1" % (SWS, SWS + 3), "kvf")]
    INQ = opt.get('inq', 1)
    Lq = [Dens(DQ)] + post(1) + [Mark("postB"), Dens(2)] + L1 + [Dens(0), Delay(opt.get("d1", 12)),
          Hook(before=lambda: g.wait_vm("kvst"), after=lambda: signal(g, 28, 20, 63, 0)), Mark("sigA"), Dens(1)] + phi_frag_reads(0, FA, ("phf", 2))
    Lq += [Delay(opt.get("d2", 0)), lambda: flag_issue(g, 251, 250, sCNT), Mark("issA"), Delay(opt.get("d3", 20)), Hook(before=lambda: flag_check(g, 251, 250, sCNT, 0xffff)), Mark("chkA"), Dens(2)] + L1L + [Mark("l1")] + KS + ([Mark("ks")] + S + [Mark("sum")] if INQ else [])
    pipe.run(36, 54, {2: Lq}, lagok=False, urgent=cpf(12), pauses=[(0, opt.get("apq", 0))], between=lambda: (head(1), g.stamp()))
    if opt.get("verbose"): print(pipe.when)
    g.stamp()
    PQ = [[112, 124], [136, 148]]; PHQ = ACC; E = 164
    put(g, phi_frag_reads(1, 0, ("phf", 3)))
    def packq(rho):
        L = []
        for tt in range(2):
            L += ["v_mov_b32 v%d, 0" % (PQ[rho][tt] + i) for i in (10, 11)] + pack20(ACC + (rho * 2 + tt) * 20, PQ[rho][tt])
        return L
    put(g, packq(0))
    g.wait_lg(("phf", 2))
    blk = lambda rho: [ACC + (rho * 2) * 20, ACC + (rho * 2 + 1) * 20]
    weave(g, phi_mfma(PQ[0], blk(0), FA), packq(1) + [lambda: g.wait_lg(("phf", 3))])
    WV1 = opt.get("wv1", 1) and INQ
    if not WV1: weave(g, phi_mfma(PQ[1], blk(1), 0), [] if INQ else S)
    SM = [(0, 0), (0, 1), (1, 0), (1, 1)]
    n1, n2, n3 = opt.get("pq", [1, 2, 3])
    for n, (rho, tt) in enumerate(SM + [(None, None)]):
        if n == n1:
            g.wait_vm("kvf"); e("s_barrier"); signal(g, 28, 20, 63, 512)
        if n == n2: flag_issue(g, 251, 250, 46)
        if n == n3:
            g.stamp()
            flag_check(g, 251, 250, 46, 0xffff)
            e("s_barrier")
            g.stamp()
            for k in range(4):
                e("buffer_load_dwordx4 %s, v%d, s[%d:%d], s%d offen sc1" % (vr(232 + 4 * k, 4), 224 if k < 3 else 230, SWS, SWS + 3, sT2), ("kvl", k))
                if k < 3: e("s_add_u32 s%d, s%d, 4096" % (sT2, sT2))
        if rho is not None:
            sm = softmax(blk(rho)[tt], blk(rho)[tt], tt, E)
            if n == 0 and WV1:
                e("s_nop 6")
                ms = phi_mfma(PQ[1], blk(1), 0); k = 0
                for it in sm:
                    put(g, [it])
                    if isinstance(it, str) and it.startswith("v_exp") and k < len(ms): e(ms[k]); k += 1
                assert k == len(ms)
            else: put(g, sm)
    for k in range(4):
        g.wait_vm(("kvl", k))
        e("ds_write_b64 v%d, %s" % (252 + k, vr(232 + 4 * k, 2)))
        e("ds_write_b64 v%d, %s offset:80" % (252 + k, vr(234 + 4 * k, 2)))
    e("s_waitcnt lgkmcnt(0)")
    e("s_barrier")
    g.stamp()
    def kva(rho, to, ks):
        i = rho * 25 + to * 5 + ks
        return 4 * i if i < 36 else 176 + 4 * (i - 36)
    NUM = 112
    grp = [(rho, to) for rho in range(2) for to in range(5)]
    def kreads(k):
        rho, to = grp[k]
        return [("ds_read_b128 %s, v%d offset:%d" % (ar(kva(rho, to, ks), 4), 228 + rho, to * 320 + ks * 16), ("kva", k)) for ks in range(5)]
    def ocalc(rho):
        L = []
        for tt in range(2):
            s = NUM + (rho * 2 + tt) * 20; o = OB + 20 * tt + 10 * rho
            L += ["v_cndmask_b32 v24, v%d, v%d, s[%d:%d]" % (s + 18, s, sODD, sODD + 1), "v_add_f32 v24, 0x358637bd, v24", "v_rcp_f32 v24, v24", "s_nop 0",
                  "v_mul_f32 v24, v24, v%d" % (26 + tt)]
            if rho: L += ["v_pk_mul_f32 %s, %s, v[24:25] op_sel_hi:[1,0]" % (vr(s + i, 2), vr(s + i, 2)) for i in range(0, 20, 2)]
            else: L += ["v_mul_f32 v%d, v%d, v24" % (s + i, s + i) for i in range(20)]
            L += pack20(s, o)
            L += ["v_cndmask_b32 v%d, v%d, 0, s[%d:%d]" % (o, o, sODD, sODD + 1), "v_cndmask_b32 v%d, 0, v%d, s[%d:%d]" % (o + 9, o + 9, sODD, sODD + 1)]
        return L
    put(g, kreads(0) + kreads(1))
    for tt in range(2): e("v_accvgpr_read_b32 v%d, a%d" % (26 + tt, 240 + tt))
    oc = ocalc(0)
    for k, (rho, to) in enumerate(grp):
        g.wait_lg(("kva", k))
        ms = [mfma(vr(NUM + (rho * 2 + tt) * 20 + 4 * to, 4), ar(kva(rho, to, ks), 4), vr(PHQ + (rho * 2 + tt) * 20 + 4 * ks, 4), "0" if ks == 0 else None)
              for ks in range(5) for tt in range(2)]
        fill = kreads(k + 2) if k + 2 < 10 else []
        if k >= 6:
            n = 20 - len(fill) - 1; fill = fill + oc[:n]; oc = oc[n:]
        weave(g, ms, fill)
    put(g, oc)
    e("s_nop 7")
    put(g, ocalc(1))
    g.stamp()
    for tt in range(2): e("v_rcp_f32 v%d, v%d" % (26 + tt, 26 + tt))
    e("s_lshl_b32 s%d, s%d, 2" % (sT, sR))
    e("s_add_u32 s%d, s%d, s%d" % (sT, sT, sS))
    e("s_lshl_b32 s%d, s%d, 2" % (sT, sT))
    e("s_add_u32 s%d, s%d, s%d" % (sT, sT, sW))
    e("s_lshl_b32 s%d, s%d, 7" % (sT, sT))
    e("s_add_u32 s%d, s%d, 0x%x" % (sT, sT, WS_RS2))
    e("v_cmp_gt_u32 vcc, 16, v0")
    e("v_lshlrev_b32 v28, 2, v0")
    e("v_mov_b32 v29, 0x%x" % OOB)
    e("v_cndmask_b32 v28, v29, v28, vcc")
    for tt in range(2): e("buffer_store_dword v%d, v28, s[%d:%d], s%d offen offset:%d sc1" % (26 + tt, SWS, SWS + 3, sT, 64 * tt))
    for u in range(5):
        if u % 2 == 0: e("s_add_u32 s%d, s%d, %d" % (sT, sOXB, u * 2048))
        for tt in range(2):
            e("buffer_store_dwordx4 %s, v%d, s[%d:%d], s%d offen offset:%d sc1" % (vr(OB + 20 * tt + 4 * u, 4), VST, SWS, SWS + 3, sT, ((u & 1) * 2 + tt) * 1024))
    e("s_waitcnt vmcnt(0)")
    e("s_barrier")
    signal(g, 28, 20, sCQ, 48)
    g.stamp()
```

```python
import sys, re, json
from asmlib import *
import hazard
BASE = "parallel_sum__linear_kernel_hedgehog__glu_gated_reglu__prompt"
K1 = BASE + "_kernel"
K2 = "reduce_kernel"

PSZ = 2048 * 576 * 2
WS_HX = 0x1000000
WS_OX = 0x2200000
WS_RS2 = 0x2500000
WS_KVP = 0x2510000
WS_KVF = 0x2700000
WS_FLG = 0x2780000
WS_TS = 0x2800000
WS_BYTES = 0x10000000
SX, SW1, SW2, SWS, SDBG, SPHI = 8, 12, 16, 20, 24, 28
sW, sR, sS, sT, sOFF, sM0W, sB1, sB2, sST, sT2 = 32, 33, 34, 35, 36, 37, 38, 39, 40, 41
sCNT = 52
OOB = 0x40000000
RING = 144
NB = 8

class G(Asm):
    def __init__(self, opt):
        super().__init__()
        self.opt = opt
        self.vm = []
        self.lg = []
        self.nts = 0
        self.sv = 30
    def e(self, s, tag=None):
        if s.startswith(("buffer_", "global_")): self.vm.append(tag)
        if s.startswith("ds_"): self.lg.append(tag)
        super().e(s)
    def vm_n(self, tag):
        idx = [i for i, t in enumerate(self.vm) if t == tag]
        assert idx, tag
        return len(self.vm) - 1 - idx[-1]
    def wait_vm(self, tag):
        n = min(self.vm_n(tag), 63)
        self.e("s_waitcnt vmcnt(%d)" % n)
    def wait_lg(self, tag):
        idx = [i for i, t in enumerate(self.lg) if t == tag]
        n = min(len(self.lg) - 1 - idx[-1], 15)
        self.e("s_waitcnt lgkmcnt(%d)" % n)
    def stamp(self):
        e = self.e
        if self.opt.get("amp") is not None:
            if self.nts in (0, self.opt["amp"]):
                e("s_memrealtime s[92:93]"); e("s_waitcnt lgkmcnt(0)")
                e("s_mov_b32 s%d, s92" % (100 if self.nts == 0 else 94))
            self.nts += 1
            return
        if not self.opt.get("ts"): return
        e("s_memtime s[90:91]"); e("s_memrealtime s[92:93]")
        e("s_waitcnt lgkmcnt(0)")
        if self.opt.get("dbgts") is not None:
            sel = self.opt.get("dbgsel", list(range(15)))
            if self.nts in sel:
                e("v_mov_b32 v30, s92")
                e("buffer_store_dword v30, off, s[%d:%d], s94 offset:%d" % (SDBG, SDBG + 3, 4 + 4 * sel.index(self.nts)))
            self.nts += 1
            return
        for k, sg in enumerate((90, 92)):
            e("v_mov_b32 v%d, s%d" % (self.sv, sg))
            e(("buffer_store_dword v%d, off" % self.sv) + ", s[%d:%d], s94 offset:%d" % (SWS, SWS + 3, 8 * self.nts + 4 * k))
        self.nts += 1

def mfma(d, a, b, c=None):
    return "v_mfma_f32_16x16x32_bf16 %s, %s, %s, %s" % (d, a, b, d if c is None else c)

class Stage:
    def __init__(self, lo, hi, pre, dmas, frags, gate=None):
        dmas = [d if isinstance(d, list) else [d] for d in dmas]
        dmas[0] = list(pre) + dmas[0]
        self.lo, self.hi, self.dmas, self.frags, self.gate = lo, hi, dmas, frags, gate
        self.before = None; self.after = None

class Pipe:
    def __init__(self, g, stages, D=6, BE=1):
        self.g, self.st, self.D, self.BE = g, stages, D, BE
        self.next = 0
        self.safe = -1
        self.q = []
        self.open = set()
        self.fi = 0
        self.done = -1
        self.qthr = g.opt.get("qthr", 3)
        self.when = {}
    def can(self, m):
        s = self.st[m]
        if s.gate is not None and s.gate not in self.open: return False
        return all(k <= self.safe for k in range(m) if self.st[k].lo < s.hi and s.lo < self.st[k].hi)
    def refill(self):
        while self.next < len(self.st) and self.can(self.next):
            for d in self.st[self.next].dmas: self.q.append([list(d), ("st", self.next)])
            self.next += 1
    def pop(self):
        if not self.q: return []
        t, tag = self.q.pop(0)
        return [(x, tag) for x in t]
    def flush(self):
        while self.q:
            for t, tag in self.pop(): self.g.e(t, tag)
    def enter(self, n, last, hook=None):
        g = self.g
        late = 0
        while any(tag[1] <= last for _, tag in self.q):
            late += 1
            for t, tg in self.pop(): g.e(t, tg)
        if late and n > 2: print("warning: %d DMA issued late for stage %d" % (late, n))
        assert self.next > last, (n, last)
        for k in range(n, last + 1):
            if self.st[k].before: self.st[k].before()
        if hook and hook.before: hook.before()
        g.wait_vm(("st", last)); g.e("s_barrier")
        if hook and hook.after: hook.after()
        for k in range(n, last + 1):
            if self.st[k].after: self.st[k].after()
        self.safe = max(self.safe, self.done)
        self.refill()
    def run(self, s0, s1, extra=None, pauses=(), groups=None, urgent=None, lagok=True, between=None):
        g, D = self.g, self.D
        WP = g.opt.get("wp", 4)
        pend = []; urg = []; urgent = urgent or {}; cur = [0]; dens = [0]
        extra = extra or {}
        fl = [(n, k, f) for n in range(s0, s1) for k, f in enumerate(self.st[n].frags)]
        if groups is None: groups = list(range(s0, s1, self.BE))
        gend = {a: (groups[i + 1] if i + 1 < len(groups) else s1) - 1 for i, a in enumerate(groups)}
        base = self.fi
        needbar = lambda j: j < len(fl) and fl[j][1] == 0 and fl[j][0] in gend
        def reads(j):
            buf = RING + 4 * ((base + j) % NB)
            for t in fl[j][2][0](buf): g.e(t, ("fr", base + j))
        def wl(i):
            w = min(i + WP - 1, len(fl) - 1)
            g.wait_lg(("fr", base + w))
            self.done = max(self.done, fl[w][0] if fl[w][1] == len(self.st[fl[w][0]].frags) - 1 else fl[w][0] - 1)
        def cost(it):
            if isinstance(it, (Mark, Dens)): return 0
            if isinstance(it, Hook): return 99
            if isinstance(it, Delay):
                if it.until is None: it.until = cur[0] + it.n
                return 0 if cur[0] >= it.until else 99
            if callable(it): return getattr(it, "cost", 2)
            if isinstance(it, list): return min(len(it), 2)
            t = it[0] if isinstance(it, tuple) else it
            return 2 if t.startswith(("buffer_", "global_", "v_mfma", "v_exp", "v_rcp")) else 1
        def emit(it, i):
            if isinstance(it, Mark): self.when[it.name] = i
            elif isinstance(it, Dens): dens[0] = it.n
            elif isinstance(it, Delay):
                if i >= len(fl): g.e("s_nop 7")
            elif isinstance(it, Hook):
                if it.before: it.before()
                g.e("s_barrier")
                if it.after: it.after()
            elif callable(it): it()
            elif isinstance(it, list):
                for x in it: g.e(x)
            elif isinstance(it, tuple): g.e(it[0], it[1])
            else: g.e(it)
        for j in range(min(D, len(fl))):
            if needbar(j): self.enter(fl[j][0], gend[fl[j][0]])
            reads(j)
        if needbar(D): self.enter(fl[D][0], gend[fl[D][0]])
        if between: between()
        wl(0)
        since = 9
        for i, (n, k, f) in enumerate(fl):
            ms = f[1](RING + 4 * ((base + i) % NB))
            g.e(ms[0])
            if i + D < len(fl): reads(i + D)
            g.e(ms[1])
            pend += [(i, x) for x in extra.get(i, [])]; urg += urgent.get(i, [])
            since += 1; cur[0] = i
            wdue = (i + 1) % WP == 0 and i + 1 < len(fl)
            if needbar(i + 1 + D):
                if wdue: wl(i + 1)
                hook = pend.pop(0)[1] if pend and isinstance(pend[0][1], Hook) else None
                self.enter(fl[i + 1 + D][0], gend[fl[i + 1 + D][0]], hook)
                continue
            paused = any(a <= i < b for a, b in pauses)
            if urg and not wdue:
                slots = 2
                while urg and cost(urg[0]) <= slots:
                    it = urg.pop(0); slots -= cost(it); emit(it, i)
                continue
            used = False
            if self.q and len(self.q[0][0]) > 1:
                if wdue: wl(i + 1)
                while len(self.q[0][0]) > 1: g.e(self.q[0][0].pop(0))
                used = True
            elif self.q and not wdue and not paused and since >= (2 if len(self.q) > self.qthr and not any(b <= i < b + g.opt.get("slow", 0) for a, b in pauses if b > a) else self.g.opt.get("dcad", 3)):
                it = self.q.pop(0); g.e(it[0][0], it[1]); since = 0
                used = True
            if used and not dens[0]: continue
            slots = 0 if used else 2
            if wdue and not used: wl(i + 1); slots = 1
            if dens[0]: slots += dens[0]
            elif lagok and pend and i - pend[0][0] > g.opt.get("lag", 30): slots += 1
            while pend and cost(pend[0][1]) <= slots:
                it = pend.pop(0)[1]; slots -= cost(it); emit(it, i)
        for it in urg + [x[1] for x in pend]: emit(it, len(fl))
        self.fi = base + len(fl)
    def drained(self, upto):
        self.safe = max(self.safe, upto); self.refill()

class Mark:
    def __init__(self, name): self.name = name
class Hook:
    def __init__(self, before=None, after=None): self.before, self.after = before, after
class Delay:
    def __init__(self, n): self.n = n; self.until = None
class Dens:
    def __init__(self, n): self.n = n

def group_scc(ops):
    out = []
    for op in ops:
        if isinstance(op, str) and op.startswith("s_cselect"): out[-1] = [out[-1], op]
        else: out.append(op)
    return out

def spread(ops, lo, hi, extra):
    ops = group_scc(ops); n = hi - lo
    for k, op in enumerate(ops):
        extra.setdefault(lo + k * n // len(ops), []).append(op)

def lane_consts(g):
    e = g.e
    e("v_lshrrev_b32 v22, 4, v0")
    e("v_and_b32 v23, 15, v0")

def x_dma(g, o, j):
    e = g.e
    if j == 0:
        if o:
            e("s_add_u32 s6, s60, %d" % o)
            e("s_and_b32 s6, s6, 3")
            e("s_mulk_i32 s6, 9216")
            e("s_add_u32 m0, s5, s6")
            e("s_add_u32 s7, s4, s6")
    else:
        e("s_addk_i32 m0, 1024")
        e("s_addk_i32 s7, 128")
    e("buffer_load_dwordx4 v%d, s[%d:%d], s7 offen %s lds" % (104 + (o & 1), SX, SX + 3, g.opt.get("xflags", "")), ("x", j))

def prologue(g, pipe, XV=112, early=None, afterbar=None, fill=(), var=False, nfirst=8, mid=None, postc=None):
    e, opt = g.e, g.opt
    xf = opt.get("xflags", "")
    NC = opt.get("xcommon", 1)
    nf = 9 * (4 - NC)
    for o in range(NC, 4):
        for j in range(9):
            x_dma(g, o, j)
            k = (o - NC) * 9 + j
            if mid and o * 9 + j == mid[0]: mid[1]()
            for it in fill[k * len(fill) // nf:(k + 1) * len(fill) // nf]:
                for x in (it if isinstance(it, list) else [it]): e(x, "fill")
    if early: early()
    e("v_lshrrev_b32 v106, 3, v23")
    e("v_mul_u32_u24 v106, 9216, v106")
    e("v_and_b32 v107, 7, v23")
    e("v_lshl_add_u32 v106, v107, 7, v106")
    e("v_lshrrev_b32 v107, 1, v23")
    e("v_xor_b32 v107, v107, v22")
    e("v_lshl_add_u32 v106, v107, 4, v106")
    e("v_add_u32 v106, s5, v106")
    e("v_xor_b32 v107, 64, v106")
    for i in range(4): e("v_mov_b32 v%d, 0x3f803f80" % (80 + i))
    for i in (72, 73, 76, 77): e("v_mov_b32 v%d, 0" % i)
    e("v_lshrrev_b32 v108, 2, v23")
    e("v_cmp_eq_u32 vcc, v108, v22")
    e("v_and_b32 v108, 1, v23")
    e("v_lshlrev_b32 v108, 4, v108")
    e("v_mov_b32 v78, 0x3f80")
    e("v_lshlrev_b32 v78, v108, v78")
    e("v_cndmask_b32 v78, 0, v78, vcc")
    e("v_and_b32 v108, 2, v23")
    e("v_cmp_eq_u32 vcc, 0, v108")
    e("s_nop 1")
    e("v_cndmask_b32 v74, 0, v78, vcc")
    e("v_cndmask_b32 v75, v78, 0, vcc") if False else None
    e("v_sub_u32 v75, v78, v74")
    X = lambda tt, ks: XV + (ks * 2 + tt) * 4
    g.stamp()
    for j in range(10):
        if j < 9:
            g.wait_vm(("x", j))
            for ks in (2 * j, 2 * j + 1):
                for tt in range(2):
                    e("ds_read_b128 %s, v%d offset:%d" % (vr(X(tt, ks), 4), 106 + (ks & 1), tt * 18432 + j * 1024), ("xr", j))
        if j > 0:
            g.wait_lg(("xr", j - 1))
            for ks in (2 * j - 2, 2 * j - 1):
                for tt in range(2):
                    e(mfma(vr(64 + 4 * tt, 4), vr(80, 4), vr(X(tt, ks), 4), "0" if ks == 0 else None))
    e("s_barrier")
    g.stamp()
    pipe.open.add("x"); pipe.refill()
    for _ in range(nfirst):
        for t, tag in pipe.pop(): e(t, tag)
    if afterbar: afterbar()
    e("s_nop 3")
    e("s_mov_b32 s%d, 0x%08x" % (sT, 0xbae38e39))
    for tt in range(2): e("v_mul_f32 v%d, s%d, v%d" % (78 + tt, sT, 64 + 4 * tt))
    e("v_cvt_pk_bf16_f32 v108, v78, v79")
    for i in range(4): e("v_lshlrev_b32 v%d, 16, v108" % (64 + i))
    for i in range(4): e("v_and_b32 v%d, 0xffff0000, v108" % (68 + i))
    if var:
        for tt in range(2): e("v_sub_f32 v%d, v%d, v%d" % (14 + tt, 78 + tt, 64 + 4 * tt))
    else: e("s_nop 1")
    for _ in range(opt.get("delay", 0)): e("s_sleep 32")
    fr = [(tt, ks) for ks in range(18) for tt in range(2)]
    LAG = 2
    for k in range(len(fr) + LAG + 1):
        cv = []
        if LAG <= k < len(fr) + LAG:
            tt, ks = fr[k - LAG]; d = 32 + 8 * ((k - LAG) % 4); x = X(tt, ks)
            cv = ["v_cvt_pk_bf16_f32 v%d, v%d, v%d" % (x + i, d + 2 * i, d + 2 * i + 1) for i in range(4)]
        if k < len(fr):
            tt, ks = fr[k]; d = 32 + 8 * (k % 4)
            e(mfma(vr(d, 4), vr(74, 4), vr(X(tt, ks), 4), vr(64 + 4 * tt, 4)))
            if k == LAG: e("s_nop 3")
            for t in cv[:2]: e(t)
            e(mfma(vr(d + 4, 4), vr(72, 4), vr(X(tt, ks), 4), vr(64 + 4 * tt, 4)))
            for t in cv[2:]: e(t)
        else:
            e("s_nop 3")
            for t in cv: e(t)
        if var and k > LAG:
            tt, ks = fr[k - LAG - 1]; x = X(tt, ks)
            e(mfma(vr(96 + 4 * tt, 4), vr(x, 4), vr(x, 4), "0" if ks == 0 else None))
            for i in range(2): e("v_accvgpr_write_b32 a%d, v%d" % (x - XV + i, x + i))
    if postc: postc()
    g.stamp()

def XV0(tt, ks): return vr(112 + (ks * 2 + tt) * 4, 4)
def xc_copies(half=False): return ["v_accvgpr_write_b32 a%d, v%d" % (i, 112 + i) for i in range(144) if not half or i % 4 >= 2]
def XC(tt, ks): return ar((ks * 2 + tt) * 4, 4)

def tr_bases(g, dst, rowmul):
    e = g.e
    out = []
    out.append("v_bfe_u32 v28, v0, 2, 2")
    out.append("v_mad_u32_u24 v28, v22, %d, v28" % rowmul)
    out.append("v_lshlrev_b32 v%d, 7, v28" % dst)
    out.append("v_bfe_u32 v28, v0, 3, 2")
    out.append("v_lshl_add_u32 v%d, v28, 5, v%d" % (dst, dst))
    out.append("v_and_b32 v28, 3, v0")
    out.append("v_lshl_add_u32 v%d, v28, 3, v%d" % (dst, dst))
    for t in range(1, 4): out.append("v_xor_b32 v%d, %d, v%d" % (dst + t, 32 * t, dst))
    for grp in (1, 2):
        for t in range(4): out.append("v_add_u32 v%d, 0x%x, v%d" % (dst + 4 * grp + t, grp << 16, dst + t))
    return out

def tr_reads(bases, t, off, second):
    def f(buf):
        o2 = off + second
        assert (off >> 16) == (o2 >> 16)
        b = bases + 4 * (off >> 16) + t
        return ["ds_read_b64_tr_b16 %s, v%d offset:%d" % (ar(buf, 2), b, off & 0xffff),
                "ds_read_b64_tr_b16 %s, v%d offset:%d" % (ar(buf + 2, 2), b, o2 & 0xffff)]
    return f

def store_ops(g, acc, P, c, voff, sbase=None, ntile=4, tag=None):
    ops = ["s_add_u32 s%d, s%d, %d" % (sT2, sST if sbase is None else sbase, c * 4096)]
    for tt in range(2):
        for hf in range(ntile // 2):
            p = P + ((tt * (ntile // 2) + hf) % 2) * 4
            for k in range(2):
                s = acc + ((2 * hf + k) * 2 + tt) * 4
                ops.append("v_cvt_pk_bf16_f32 v%d, v%d, v%d" % (p + 2 * k, s, s + 1))
                ops.append("v_cvt_pk_bf16_f32 v%d, v%d, v%d" % (p + 2 * k + 1, s + 2, s + 3))
            ops.append(("buffer_store_dwordx4 %s, v%d, s[%d:%d], s%d offen offset:%d sc1" % (vr(p, 4), voff, SWS, SWS + 3, sT2, (tt * 2 + hf) * 1024), tag))
    return ops

sNON = 97
def flag_load(vreg, vfl, sline):
    if sline is None: return "buffer_load_dword v%d, v%d, s[%d:%d], 0 offen sc1" % (vreg, vfl, SDBG, SDBG + 3)
    return "buffer_load_dword v%d, v%d, s[%d:%d], s%d offen sc1" % (vreg, vfl, SWS, SWS + 3, sline)

def flag_issue(g, vreg, vfl, sline):
    g.e(flag_load(vreg, vfl, sline), "flag")

def flag_check(g, vreg, vfl, sline, mask, issued=True, sleep=4):
    if g.opt.get("nofl") and sline is not None: return
    e = g.e
    L = g.newlabel("L_poll"); Ld = g.newlabel("L_polld"); Lc = g.newlabel("L_pollc")
    e("s_cmp_lg_u32 s%d, 0" % sW)
    e("s_cbranch_scc1 %s" % Ld)
    e("s_mov_b32 s89, 0x20000")
    if issued:
        g.wait_vm("flag")
        e("s_branch %s" % Lc)
    g.label(L)
    Asm.e(g, flag_load(vreg, vfl, sline))
    e("s_waitcnt vmcnt(0)")
    g.label(Lc)
    if sline is None:
        e("v_readfirstlane_b32 s%d, v%d" % (sNON, vreg))
        e("s_sub_u32 s89, s89, 1")
        e("s_cmp_lg_u32 s%d, 0" % sNON)
    else:
        e("v_cmp_eq_u32 s[98:99], s%d, v%d" % (sNON, vreg))
        e("s_sub_u32 s89, s89, 1")
        m = mask if isinstance(mask, str) else "0x%x" % mask
        e("s_and_b32 s98, s98, %s" % m)
        e("s_cmp_eq_u32 s98, %s" % m)
    e("s_cbranch_scc1 %s" % Ld)
    e("s_sleep %d" % sleep)
    e("s_cmp_lg_u32 s89, 0")
    e("s_cbranch_scc1 %s" % L)
    g.label(Ld)

def flag_lane_offsets(vfl, vtmp):
    return ["s_lshl_b32 s96, s%d, 6" % sW, "v_add_u32 v%d, s96, v0" % vtmp, "v_cmp_gt_u32 vcc, 16, v%d" % vtmp, "v_lshlrev_b32 v%d, 2, v0" % vfl,
            "v_mov_b32 v%d, 0x%x" % (vtmp, OOB), "v_cndmask_b32 v%d, v%d, v%d, vcc" % (vfl, vtmp, vfl)]

def code_pf():
    return ["s_getpc_b64 s[6:7]", "s_load_dword s5, s[6:7], s101"]

def signal(g, vtmp, voff, sword, imm=0):
    g.e("v_mov_b32 v%d, s%d" % (vtmp, sNON))
    g.e("buffer_store_dword v%d, v%d, s[%d:%d], s%d offen offset:%d sc1" % (vtmp, voff, SWS, SWS + 3, sword, imm))

def ffn_role(g):
    e, opt = g.e, g.opt
    wf = opt.get("wflags", "")
    ACC = [32, 96]; H = 160; B1 = 9; PK = 128; VST = 21; BH = 144
    sI, sJ = 42, 43; sKB = 44; sHX = 47; sKO = 53; sKS = 56; sKK = 86; sM0H = 50; sSO = 51; sSS = 59; sWO = 78; sOX = 83; sM0B = 84; sWT = 85
    e("s_sub_u32 s%d, s3, 1" % sI)
    e("s_mov_b32 s%d, s%d" % (sJ, sS))
    e("s_mul_i32 s%d, s%d, 3" % (sS, sJ))
    e("s_add_u32 s%d, s%d, s%d" % (sS, sS, sI))
    e("s_cmp_ge_u32 s%d, 2" % sW)
    e("s_cselect_b32 s%d, s74, s72" % sT)
    e("s_cselect_b32 s%d, s75, s73" % sT2)
    srd(g, SW1, sT, sT2, 576 * 4608 * 2)
    e("s_lshl_b32 s%d, s%d, 12" % (sM0W, sW))
    e("s_mul_i32 s%d, s%d, 768" % (sB1, sS))
    def late_setup():
        o = []; sT = 95
        a = Asm(); srd(a, SW2, 76, 77, 4608 * 576 * 2); srd(a, SPHI, 70, 71, 576 * 576 * 2); a.e('s_mov_b32 s61, s78'); a.e('s_mov_b32 s62, s79')
        o += [l.strip() for l in a.lines]
        o += ["s_lshl_b32 s98, s%d, 6" % sJ, "s_and_b32 s99, s98, 128", "s_xor_b32 s99, s99, 128"]
        for b in range(3):
            o += ["s_add_u32 s%d, s%d, %d" % (sT, sI, b), "s_cmp_ge_u32 s%d, 3" % sT, "s_cselect_b32 s96, 3, 0", "s_sub_u32 s%d, s%d, s96" % (sT, sT),
                  "s_mul_i32 s96, s%d, 3" % sJ, "s_add_u32 s%d, s%d, s96" % (sT, sT),
                  "s_mul_i32 s%d, s%d, %d" % (sKB + b, sT, 384 * 1152), "s_mul_i32 s96, s%d, 384" % sI, "s_add_u32 s%d, s%d, s96" % (sKB + b, sKB + b),
                  "s_add_u32 s%d, s%d, s99" % (sKO + b, sKB + b), "s_add_u32 s%d, s%d, s98" % (sKK + b, sKB + b), "s_xor_b32 s%d, s%d, 64" % (sKS + b, sKK + b),
                  "s_mul_i32 s96, s%d, 12" % sR, "s_add_u32 s%d, s%d, s96" % (sT, sT), "s_lshl_b32 s%d, s%d, 2" % (sT, sT), "s_add_u32 s%d, s%d, s%d" % (sT, sT, sW),
                  "s_mul_i32 s%d, s%d, 24576" % (sHX + b, sT), "s_add_u32 s%d, s%d, 0x%x" % (sHX + b, sHX + b, WS_HX)]
        o += ["s_lshl_b32 s%d, s%d, 2" % (sT, sR), "s_add_u32 s%d, s%d, s%d" % (sT, sT, sJ), "s_lshl_b32 s%d, s%d, 7" % (sCNT, sT), "s_add_u32 s%d, s%d, 0x%x" % (sCNT, sCNT, WS_FLG),
              "s_lshl_b32 s63, s%d, 2" % sI, "s_add_u32 s63, s63, s%d" % sCNT]
        o += ["s_mul_i32 s%d, s%d, %d" % (sST, sJ, PSZ), "s_mul_i32 s%d, s%d, 12288" % (sB2, sI), "s_add_u32 s%d, s%d, s4" % (sB2, sB2),
              "s_add_u32 s%d, s%d, s%d" % (sST, sST, sB2), "s_lshl_b32 s%d, s%d, 11" % (sM0H, sW),
              "s_lshl_b32 s96, s99, 5", "s_add_u32 s%d, s%d, s96" % (sSO, sST),
              "s_xor_b32 s96, s96, 4096", "s_add_u32 s%d, s%d, s96" % (sSS, sST), "s_and_b32 s96, s98, 64", "s_xor_b32 s96, s96, 64",
              "s_lshl_b32 s96, s96, 4", "s_add_u32 s%d, s%d, s96" % (sSS, sSS)]
        o += ["s_lshl_b32 s95, s%d, 2" % sR, "s_add_u32 s95, s95, s%d" % sJ, "s_lshl_b32 s95, s95, 2", "s_add_u32 s95, s95, s%d" % sW,
              "s_mul_i32 s%d, s95, 10240" % sOX, "s_add_u32 s%d, s%d, 0x%x" % (sOX, sOX, WS_OX),
              "s_mul_i32 s%d, s%d, %d" % (sWT, sJ, 144 * 1152), "s_mul_i32 s96, s%d, 384" % sI, "s_add_u32 s%d, s%d, s96" % (sWT, sWT), "s_lshl_b32 s%d, s%d, 10" % (sM0B, sW)]
        for i in range(5):
            d = sWO + i
            o += (["s_lshl_b32 s95, s%d, 2" % sW, "s_add_u32 s95, s95, %d" % i] if i < 4 else ["s_add_u32 s95, s%d, 16" % sW])
            o += ["s_lshr_b32 s96, s95, 1", "s_lshl_b32 s%d, s96, 2" % d, "s_cmp_ge_u32 s96, 5", "s_cselect_b32 s96, 52, 0",
                  "s_add_u32 s%d, s%d, s96" % (d, d), "s_and_b32 s95, s95, 1", "s_mul_i32 s95, s95, 36",
                  "s_add_u32 s%d, s%d, s95" % (d, d), "s_mul_i32 s%d, s%d, 1152" % (d, d), "s_add_u32 s%d, s%d, s%d" % (d, d, sWT)]
        return o
    stages = []; start = [0]
    def slot(n): return ((n + 9) % 10) * 16384
    def push(st): stages.append(st); start.append(start[-1] + len(st.frags))
    for rho in range(6):
        acc = ACC[rho & 1]
        for st in range(9):
            n = len(stages); lo = slot(n)
            pre = ["s_add_u32 m0, s%d, %d" % (sM0W, lo), "s_add_u32 s%d, s%d, %d" % (sOFF, sB1, st * 64 * 9216 + rho * 128)]
            dmas = ["buffer_load_dwordx4 v%d, s[%d:%d], s%d offen offset:%d %s lds" % (1 + i, SW1, SW1 + 3, sOFF, i * 1024, wf) for i in range(4)]
            frags = []
            for kk in range(2):
                ks = 2 * st + kk
                for t in range(4):
                    for mat in range(2):
                        def mf(buf, ks=ks, t=t, mat=mat, acc=acc, XC=(XC if rho else XV0)):
                            order = (0, 1) if mat == 0 else (1, 0)
                            return [mfma(vr(acc + ((t * 2 + mat) * 2 + tt) * 4, 4), ar(buf, 4), XC(tt, ks), "0" if ks == 0 else None) for tt in order]
                        rdf = tr_reads(B1, t, lo + mat * 8192 + kk * 4096, 512)
                        if opt.get("halfrd"): rdf = (lambda buf, f=rdf: f(buf)[:1])
                        frags.append((rdf, mf))
            push(Stage(lo, lo + 16384, pre, dmas, frags, None if n == 0 else "x"))
    def hreg(b, u, tt):
        k = (u * 2 + tt) * 4
        if b == 0: return vr(H + k, 4)
        if b == 2: return ar(k, 4)
        if b == 1: return ar(176 + k, 4) if u < 8 else ar(96 + k - 64, 4)
        if u < 2: return ar(128 + k, 4)
        if u < 4: return ar(240 + k - 16, 4)
        return vr(136 + k - 32, 4)
    A2, AO, AS, AK = 32, 64, 96, 112
    def mk(acc, b, u, t, z):
        def mf(buf):
            order = (0, 1) if t % 2 == 0 else (1, 0)
            return [mfma(vr(acc + (t * 2 + tt) * 4, 4), ar(buf, 4), hreg(b, u, tt), "0" if z else None) for tt in order]
        return mf
    def full(b, q, acc):
        lo = slot(len(stages))
        sb, add = (sKB + b, 256) if acc == A2 else (sKO + b, 0)
        pre = ["s_add_u32 m0, s%d, %d" % (sM0W, lo), "s_add_u32 s%d, s%d, %d" % (sOFF, sb, q * 128 * 1152 + add)]
        dmas = ["buffer_load_dwordx4 v%d, s[%d:%d], s%d offen offset:%d %s lds" % (5 + i, SW2, SW2 + 3, sOFF, i * 1024, wf) for i in range(4)]
        frags = [(tr_reads(B1, t, lo + kk * 4096, 2048), mk(acc, b, 4 * q + kk, t, (b, q, kk) == (0, 0, 0))) for kk in range(4) for t in range(4)]
        push(Stage(lo, lo + 16384, pre, dmas, frags, "x"))
    def half(bqs, acc):
        lo = slot(len(stages)); dmas = []; frags = []
        for k, (b, q) in enumerate(bqs):
            p = lo + 8192 * k
            ld = ["buffer_load_dwordx4 v%d, s[%d:%d], s%d offen offset:%d %s lds" % ((25, 22)[i], SW2, SW2 + 3, sOFF, i * 1024, wf) for i in range(2)]
            dmas += [["s_add_u32 m0, s%d, %d" % (sM0H, p), "s_add_u32 s%d, s%d, %d" % (sOFF, (sKS if acc == AS else sKK) + b, q * 128 * 1152), ld[0]], [ld[1]]]
            for kk in range(4):
                for t in range(2):
                    off = p + kk * 2048
                    def rd(buf, off=off, t=t):
                        v = BH + 2 * (off >> 16) + t
                        return ["ds_read_b64_tr_b16 %s, v%d offset:%d" % (ar(buf, 2), v, off & 0xffff), "ds_read_b64_tr_b16 %s, v%d offset:%d" % (ar(buf + 2, 2), v, (off & 0xffff) + 1024)]
                    frags.append((rd, mk(acc, b, 4 * q + kk, t, acc == AS and (b, q, kk) == (0, 0, 0))))
        push(Stage(lo, lo + 16384, [], dmas, frags, "x"))
    def wo(us, acc):
        lo = slot(len(stages)); v = {A2: 1, AO: 2, AS: 3}[acc]
        sel = [(sM0W, lo + i * 1024, sWO + i) for i in range(4)] if len(us) == 4 else [(sM0B, lo, sWO + 4)]
        dmas = [["s_add_u32 m0, s%d, %d" % (m, o), "s_nop 0", "buffer_load_dwordx4 v%d, s[%d:%d], s%d offen %s lds" % (v, SPHI, SPHI + 3, so, wf)] for m, o, so in sel]
        frags = [(tr_reads(B1, t, lo + kk * 4096, 2048), mk(acc, 3, u, t, acc == AS and u == 0 and t >= 2)) for kk, u in enumerate(us) for t in range(4)]
        push(Stage(lo, lo + 16384, [], dmas, frags, "x"))
    Q = lambda q: list(range(4 * q, 4 * q + 4))
    BQ = [(0, 0), (0, 1), (0, 2), (1, 0), (1, 1), (2, 0), (2, 1), (1, 2), (2, 2)]
    first = {}
    S2 = len(stages)
    for n, bq in enumerate(BQ[:7]):
        first[bq] = len(stages)
        full(*bq, A2); full(*bq, AO)
        if n == 3: SH0 = len(stages); half(BQ[0:2], AS); half(BQ[2:4], AS)
        if n == 6: half(BQ[4:6], AS); half(BQ[6:7], AS)
    SL = len(stages); first[(1, 2)] = SL
    ORD = opt.get("ord", 1)
    if ORD == 0:
        first[(2, 2)] = SL + 1; SO = SL + 2; ST2, STO = SL + 4, SL + 8; EG = [0, 1, 2, 4, 6, 8, 11, 14]
        for acc in (A2, AO):
            full(1, 2, acc); full(2, 2, acc); wo(Q(0), acc); wo([4], acc)
        half(BQ[7:9], AS); wo(Q(0), AS); wo([4], AS)
    else:
        first[(2, 2)] = SL + 2; SO = SL + 4; ST2, STO = SL + 6, SL + 9; EG = [0, 2, 4, 7, 11, 14]
        full(1, 2, A2); full(1, 2, AO); full(2, 2, A2); full(2, 2, AO)
        wo(Q(0), A2); wo([4], A2); half(BQ[7:9], AS); wo(Q(0), AO); wo([4], AO); wo(Q(0), AS); wo([4], AS)
    SK = len(stages)
    for n in range(0, 9, 2): half(BQ[n:n + 2], AK)
    pipe = Pipe(g, stages, opt.get("D", 7), 2)
    TOUCH = opt.get("touch", 1); tf = opt.get("tflags", "")
    def touch1(rho): return ["buffer_load_dword v31, v29, s[%d:%d], s%d offen offset:%d %s" % (SW1, SW1 + 3, sB1, rho * 128, tf)]
    def touch2(b):
        if b == 3: return ["buffer_load_dword v31, v26, s[%d:%d], s%d offen %s" % (SPHI, SPHI + 3, sWT, tf)]
        if opt.get("t2c", 0):
            return [["s_add_u32 s3, s60, %d" % (b * 96 * 4608), "buffer_load_dword v31, v30, s[%d:%d], s3 offen %s" % (SW2, SW2 + 3, tf)]]
        return ["buffer_load_dword v31, v26, s[%d:%d], s%d offen %s" % (SW2, SW2 + 3, sKB + b, tf)]
    def early():
        e("v_lshrrev_b32 v28, 3, v0")
        e("s_and_b32 s%d, s%d, 1" % (sOFF, sW))
        e("s_lshl_b32 s%d, s%d, 5" % (sOFF, sOFF))
        e("v_add_u32 v1, s%d, v28" % sOFF)
        e("v_mul_u32_u24 v1, 9216, v1")
        e("v_and_b32 v2, 2, v28")
        e("v_and_b32 v3, 7, v0")
        e("v_xor_b32 v2, v2, v3")
        e("v_lshl_add_u32 v1, v2, 4, v1")
        e("v_xor_b32 v2, 64, v1")
        e("v_add_u32 v2, %d, v2" % (8 * 9216 - 1024))
        e("v_add_u32 v3, %d, v1" % (2 * (8 * 9216 - 1024)))
        e("v_add_u32 v4, %d, v2" % (2 * (8 * 9216 - 1024)))
        pipe.refill(); pipe.flush()
    vset = ["v_lshrrev_b32 v28, 3, v0", "s_lshl_b32 s96, s%d, 5" % sW, "v_add_u32 v5, s96, v28", "v_mul_u32_u24 v5, 1152, v5",
            "v_lshlrev_b32 v6, 1, v22", "v_and_b32 v7, 7, v0", "v_xor_b32 v6, v6, v7", "v_lshl_add_u32 v5, v6, 4, v5",
            "v_lshrrev_b32 v28, 2, v0", "v_add_u32 v25, s96, v28", "v_mul_u32_u24 v25, 1152, v25", "v_and_b32 v6, 3, v6", "v_lshl_add_u32 v25, v6, 4, v25"]
    vset += ["v_add_u32 v%d, %d, v5" % (5 + i, i * (8 * 1152 - 1024)) for i in range(1, 4)]
    vset += ["v_lshlrev_b32 v%d, 4, v0" % VST, "v_lshlrev_b32 v27, 9, v22", "v_add_u32 v28, s%d, v0" % sW, "v_cmp_eq_u32 vcc, 0, v28",
             "v_mov_b32 v24, 0x%x" % OOB, "v_mov_b32 v28, 0", "v_cndmask_b32 v24, v24, v28, vcc"]
    vset += ["v_mul_u32_u24 v28, 5462, v0", "v_lshrrev_b32 v28, 16, v28", "v_mul_u32_u24 v26, 12, v28", "v_sub_u32 v26, v0, v26",
             "s_mul_i32 s96, s%d, 12" % sW, "s_and_b32 s95, s%d, 7" % sR, "s_mul_i32 s95, s95, 48", "s_add_u32 s96, s96, s95",
             "v_add_u32 v26, s96, v26", "v_mul_u32_u24 v26, 1152, v26", "v_lshl_add_u32 v26, v28, 7, v26",
             "s_cmp_ge_u32 s96, 144", "s_cselect_b32 s%d, 0x%x, s%d" % (sWT, OOB, sWT),
             "s_and_b32 s96, s%d, 1" % sW, "s_mul_i32 s96, s96, 36", "s_and_b32 s95, s%d, 7" % sR, "s_mul_i32 s95, s95, 72", "s_add_u32 s96, s96, s95",
             "v_add_u32 v29, s96, v0", "v_mul_u32_u24 v29, 9216, v29",
             "v_cmp_gt_u32 vcc, 36, v0", "v_mov_b32 v28, 0x%x" % OOB, "s_nop 0", "v_cndmask_b32 v26, v28, v26, vcc", "v_cndmask_b32 v29, v28, v29, vcc"]
    sp = []
    NSP = opt.get("nsp", 0)
    if NSP:
        e("s_and_b32 s6, s%d, 7" % sR); e("s_lshl_b32 s6, s6, 1"); e("s_and_b32 s7, s%d, 1" % sW); e("s_add_u32 s6, s6, s7")
        e("s_mul_i32 s6, s6, %d" % (NSP * 9216)); e("s_add_u32 s6, s6, s%d" % sB1); e("s_add_u32 s6, s6, %d" % (opt.get("sp0", 64) * 9216))
        e("s_add_u32 s90, s%d, s6" % sT); e("s_addc_u32 s91, s%d, 0" % sT2)
        sp = ["s_load_dword s92, s[90:91], 0x%x" % (i * 9216 + h * 64) for i in range(NSP) for h in range(2)]
    prologue(g, pipe, early=early, afterbar=(lambda: [e(t) for t in touch1(0) + (touch1(1) if not opt.get('t1pos', 70) else [])]) if TOUCH else None, nfirst=opt.get('nfirst', 8),
             fill=sp + group_scc(late_setup() + vset + tr_bases(g, B1, 8)))
    def epi1(rho):
        acc = ACC[rho & 1]; ops = []; sts = ["s_add_u32 s%d, s%d, %d" % (sT2, sHX, rho * 4096)]
        for t in range(4):
            for tt in range(2):
                gt = acc + ((t * 2) * 2 + tt) * 4; up = acc + ((t * 2 + 1) * 2 + tt) * 4
                u = 2 * rho + t // 2
                h = H + (u * 2 + tt) * 4 + (t & 1) * 2
                for k in range(2):
                    for i in (2 * k, 2 * k + 1): ops.append("v_max_f32 v%d, 0, v%d" % (gt + i, gt + i))
                    for i in (2 * k, 2 * k + 1): ops.append("v_mul_f32 v%d, v%d, v%d" % (gt + i, gt + i, up + i))
                    ops.append("v_cvt_pk_bf16_f32 v%d, v%d, v%d" % (h + k, gt + 2 * k, gt + 2 * k + 1))
                if t & 1:
                    sts.append(("buffer_store_dwordx4 %s, v%d, s[%d:%d], s%d offen offset:%d sc1" % (hreg(0, u, tt), VST, SWS, SWS + 3, sT2, ((u & 1) * 2 + tt) * 1024), ("hst", rho)))
        return ops, sts
    def hloads(b, q):
        ops = []
        for u in (range(5) if b == 3 else Q(q)):
            if u % 2 == 0: ops.append("s_add_u32 s%d, s%d, %d" % (sT, sOX if b == 3 else sHX + b, u * 2048))
            for tt in range(2):
                ops.append(("buffer_load_dwordx4 %s, v%d, s[%d:%d], s%d offen offset:%d sc1" % (hreg(b, u, tt), VST, SWS, SWS + 3, sT, ((u & 1) * 2 + tt) * 1024), ("h", b, q)))
        return ops
    extra = {}; urgent = {}
    add = lambda k, l: extra.setdefault(k, []).extend(l)
    addu = lambda k, l: urgent.setdefault(k, []).extend(l)
    EP = opt.get("epiw", 75)
    for rho in range(5):
        spread(sum(epi1(rho), []) + [Mark("epi%d" % rho)], 144 * (rho + 1) + 3, 144 * (rho + 1) + EP, extra)
    P2 = start[S2]
    hb = ["v_bfe_u32 v144, v0, 2, 4", "v_lshlrev_b32 v144, 6, v144", "v_bfe_u32 v145, v0, 4, 1", "v_lshl_add_u32 v144, v145, 5, v144",
          "v_and_b32 v145, 3, v0", "v_lshl_add_u32 v144, v145, 3, v144", "v_xor_b32 v145, 32, v144"]
    hb += ["v_add_u32 v%d, 0x%x, v%d" % (BH + 2 * k + t, k << 16, BH + t) for k in (1, 2) for t in range(2)]
    hb += ["v_lshrrev_b32 v2, 5, v0", "v_bfe_u32 v3, v0, 3, 2", "v_lshl_add_u32 v2, v2, 4, v3", "v_mul_u32_u24 v4, 1152, v2",
           "v_bfe_u32 v2, v0, 4, 2", "v_lshlrev_b32 v2, 1, v2", "v_and_b32 v3, 7, v0", "v_xor_b32 v2, v2, v3", "v_lshl_add_u32 v4, v2, 4, v4",
           "v_add_u32 v1, 256, v4", "s_sub_u32 s96, s%d, s%d" % (sKO, sKB), "v_add_u32 v2, s96, v4",
           "s_sub_u32 s96, s%d, s%d" % (sKS, sKB), "s_and_b32 s95, s96, 64", "v_xor_b32 v3, s95, v4", "s_and_b32 s96, s96, 128", "v_add_u32 v3, s96, v3"]
    add(P2 + 3, [Dens(1)] + epi1(5)[0] + [Mark("epi5"), Dens(0)] + epi1(5)[1] + hb + [Mark("hb")])
    pauses = [(0, opt.get('p0', 0))]
    if TOUCH:
        T = [touch1(2), touch1(3), touch1(4), touch1(5), touch2(0), touch2(1), touch2(2), touch2(3)]
        for n, (k, ops) in enumerate(zip(opt.get("tpos", [70, 148, 292, 436, 510, 690, 760, 760]), T)):
            addu(k, ops); pauses.append((k, k + opt.get("pl", [40] * 8)[n]))
    if opt.get("t1pos", 70): addu(opt.get("t1pos", 70), touch1(1))
    add(150, ["s_lshl_b32 s60, s%d, 3" % sI, "s_and_b32 s96, s%d, 7" % sR, "s_add_u32 s60, s60, s96", "s_lshl_b32 s60, s60, 2", "s_add_u32 s60, s60, s%d" % sW,
              "s_mul_i32 s60, s60, 4608", "s_mul_i32 s96, s%d, %d" % (sJ, 1152 * 1152), "s_add_u32 s60, s60, s96",
              "v_min_u32 v30, 35, v0", "v_lshlrev_b32 v30, 7, v30"])
    if opt.get("cpf", 6144):
        e("s_lshr_b32 s101, s2, 3"); e("s_sub_u32 s101, s101, 8"); e("s_lshl_b32 s101, s101, 2"); e("s_add_u32 s101, s101, s%d" % sW)
        e("s_lshl_b32 s101, s101, 6"); e("s_add_u32 s101, s101, %d" % opt.get("cpf", 9216))
        for k in range(opt.get('cp0', 20), start[-1], opt.get('cpp', 125)): addu(k, [code_pf()])
    add(1, xc_copies() + [Mark("xc"), "v_add_u32 v22, %d, v25" % (16 * 1152 - 1024)])
    add(144 + 90, flag_lane_offsets(23, 28) + [Mark("flo")])
    addu(288 + 100, [lambda: flag_issue(g, 28, 23, None)])
    groups = list(range(0, SL, 2)) + [SL + k for k in opt.get('eg', EG)]
    for a, b in opt.get("bw", []): groups += [n for n in range(SL) if a <= start[n] < b]
    groups = sorted(set(groups))
    bar = lambda n: start[n] - pipe.D - 1
    hooks = {}
    def before(n, f):
        assert n in groups, n
        hooks.setdefault(n, []).append(f); stages[n].before = lambda n=n: [f() for f in hooks[n]]
    before(26, lambda: flag_check(g, 28, 23, None, 0))
    FLD = opt.get('fld', 50); CMB = opt.get('cmb', 0)
    HS = opt.get("hs", [[30, 36], [46, 52], [S2 + 8, S2 + 14]])
    for q, (ns, nc) in enumerate(HS):
        before(ns, lambda q=q: g.wait_vm(("hst", 2 * q + 1)))
        stages[ns].after = lambda q=q: signal(g, 28, 24, 63, 16 * q)
        addu(bar(nc) - FLD, [lambda: flag_issue(g, 28, 23, sCNT)])
        before(nc, lambda q=q: flag_check(g, 28, 23, sCNT, (0x7 << (4 * q)) | (0x1000 if q == 2 and CMB else 0)))
    HW = opt.get("hw", [100, 100, 20])
    HP = opt.get("hp", [0, 0, 0])
    for q in range(3):
        spread(hloads(1, q), bar(HS[q][1]) + 1, bar(HS[q][1]) + 1 + HW[q], urgent); pauses.append((bar(HS[q][1]) + 1, bar(HS[q][1]) + 1 + HP[q]))
    assert bar(HS[1][1]) + 1 + HW[1] <= P2 + opt.get("h2pos", 100)
    spread(hloads(2, 0) + hloads(2, 1), P2 + opt.get("h2pos", 100), P2 + opt.get('h2pos', 100) + 60, urgent)
    def to_g2():
        for k in range(12): e("v_sub_u32 v%d, v%d, v27" % (B1 + k, B1 + k))
    stages[S2].after = to_g2
    for bq in BQ[3:]: before(first[bq], lambda bq=bq: g.wait_vm(("h",) + bq))
    spread(hloads(2, 2), bar(SL) - opt.get('h22', 10), bar(SL) - opt.get('h22', 10) + 10, urgent)
    sFL, sFW, sPL, sCOL, sRS, sMSK, sP1, sCK = 64, 65, 66, 67, 68, 69, 72, 75
    a2 = Asm(); srd(a2, SW1, 61, 62, PSZ)
    fin = [l.strip() for l in a2.lines]
    fin += ["s_mul_i32 s95, s%d, 3" % sR, "s_add_u32 s95, s95, s%d" % sI, "s_lshl_b32 s%d, s95, 7" % sFL, "s_add_u32 s%d, s%d, 0x%x" % (sFL, sFL, WS_FLG + 72 * 128),
           "s_lshl_b32 s%d, s%d, 2" % (sFW, sJ), "s_add_u32 s%d, s%d, s%d" % (sFW, sFW, sFL),
           "s_lshr_b32 s95, s%d, 1" % sJ, "s_lshl_b32 s96, s95, 11", "s_add_u32 s%d, s%d, s96" % (sPL, sB2), "s_add_u32 s%d, s%d, 8192" % (sPL, sPL),
           "s_and_b32 s96, s%d, 1" % sJ, "s_lshl_b32 s76, s96, 7", "s_add_u32 s%d, s%d, s76" % (sPL, sPL),
           "s_lshl_b32 s95, s95, 12", "s_lshl_b32 s96, s96, 10", "s_add_u32 s95, s95, s96", "s_add_u32 s76, s95, s%d" % sB2]
    for k in range(3):
        fin += ["s_add_u32 s96, s%d, %d" % (sJ, k + 1), "s_and_b32 s96, s96, 3", "s_mul_i32 s96, s96, %d" % PSZ, "s_add_u32 s%d, s76, s96" % (sP1 + k)]
    fin += ["v_and_b32 v150, 0x37, v0", "v_lshlrev_b32 v150, 4, v150", "v_bfe_u32 v155, v0, 3, 1", "v_lshl_add_u32 v150, v155, 10, v150",
            "s_mul_i32 s%d, s%d, 384" % (sCOL, sI), "s_add_u32 s%d, s%d, s4" % (sCOL, sCOL), "s_lshl_b32 s96, s%d, 6" % sJ, "s_add_u32 s%d, s%d, s96" % (sCK, sCOL),
            "s_add_u32 s77, s%d, %d" % (sCK, 16 * 1152),
            "v_bfe_u32 v156, v0, 4, 1", "v_lshlrev_b32 v156, 5, v156", "v_lshrrev_b32 v157, 5, v0", "v_lshl_add_u32 v156, v157, 4, v156",
            "s_lshl_b32 s95, s%d, 3" % sJ, "v_and_b32 v151, 7, v0", "v_add_u32 v151, s95, v151", "v_lshlrev_b32 v153, 2, v151",
            "v_mul_u32_u24 v151, 1152, v151", "v_lshl_add_u32 v151, v155, 6, v151", "v_add_u32 v151, v151, v156",
            "v_and_b32 v152, 15, v0", "v_lshlrev_b32 v154, 2, v152", "v_mul_u32_u24 v152, 1152, v152", "v_add_u32 v152, v152, v156",
            "s_lshl_b32 s96, s%d, 2" % sR, "s_add_u32 s96, s96, s%d" % sJ, "s_lshl_b32 s96, s96, 2", "s_add_u32 s96, s96, s%d" % sW,
            "s_lshl_b32 s%d, s96, 7" % sRS, "s_add_u32 s%d, s%d, 0x%x" % (sRS, sRS, WS_RS2),
            "s_mov_b32 s70, 0x3f80", "s_mov_b32 s71, 0x3f800000"]
    add(P2 + 150, fin + [Mark("fin")])
    XL = [(32, 152, sCK, 0), (36, 152, 77, 0), (40, 151, sCOL, 256)]
    RL = [(155, 154, 0), (156, 154, 64), (157, 153, 0)]
    nO = SO - 2 - opt.get('oearly', 0)
    if not CMB:
        addu(bar(nO) - opt.get('old', 30), [lambda: flag_issue(g, 28, 23, sCNT)])
        before(nO, lambda: flag_check(g, 28, 23, sCNT, 0x1000))
    spread(hloads(3, 0) + ["buffer_load_dword v%d, v%d, s[%d:%d], s%d offen offset:%d sc1" % (d, v, SWS, SWS + 3, sRS, im) for d, v, im in RL], bar(nO) + opt.get('o0', 1), bar(nO) + opt.get('o1', 5), urgent)
    before(SO, lambda: g.wait_vm(("h", 3, 0)))
    add(start[ST2] + 3, store_ops(g, A2, PK, 2, VST))
    add(start[STO] + 3, store_ops(g, AO, PK, 0, VST, sSO))
    add(start[SK] + 3, [Dens(1)] + store_ops(g, AS, PK, 0, VST, sSS, 2, "pst") + [Mark("pst"), Dens(0)] + ["v_mov_b32 v%d, 0" % (96 + i) for i in range(8)] +
        [("buffer_load_dwordx4 %s, v%d, s[%d:%d], s%d offen offset:%d" % (vr(d, 4), v, SX, SX + 3, so, im), "fx") for d, v, so, im in XL])
    INS = opt.get("insig", 1); SG = SK + opt.get('sg', 3); FI = opt.get('fi', 0)
    if FI: addu(start[-1] - FI, [lambda: flag_issue(g, 28, 23, sFL)])
    if INS:
        before(SG, lambda: g.wait_vm("pst")); stages[SG].after = lambda: signal(g, 28, 24, sFW, 0)
    if opt.get("ts") or opt.get("amp") is not None:
        for k in ([720] + list(range(720 + 48, start[-1], 32)) if opt.get('fine2') else (144, 288, 432, 576, 720, P2, P2 + 144, P2 + 288, start[SK])): addu(k, [g.stamp])
    pipe.run(0, len(stages), extra, pauses=pauses, groups=groups, urgent=urgent)
    w = pipe.when
    if opt.get("verbose"): print(w, "P2", P2, "SK", start[SK], "end", start[-1], "barK", bar(SK + 4))
    assert w["xc"] < 142 and w["flo"] < 288 + 100 and all(w["epi%d" % r] < 144 * (r + 2) - 1 for r in range(5)), w
    assert w["epi5"] < start[first[(0, 2)]] + 7 and w["hb"] < bar(SH0) and w["fin"] < bar(nO) - 1 and w["pst"] < bar(SG), w
    g.stamp()
    if not INS:
        e("s_waitcnt vmcnt(0)"); e("s_barrier"); signal(g, 28, 24, sFW, 0)
    flag_check(g, 28, 23, sFL, 0xf, issued=bool(FI), sleep=1)
    e("s_barrier")
    g.stamp()
    UA = [(AK, AK + 8), (AK + 4, AK + 12), (96, 100)]
    lds = []
    regs = list(range(48, 96, 4))
    for p in range(4):
        if p < 3:
            for tt in range(2):
                d = regs.pop(0); lds.append((d, tt))
                e("buffer_load_dwordx4 %s, v%d, s[%d:%d], s%d offen offset:%d sc1" % (vr(d, 4), VST, SWS, SWS + 3, sP1 + p, tt * 2048), ("pl", len(lds)))
        if p: e("s_add_u32 s%d, s%d, %d" % (sPL, sPL, PSZ))
        d = regs.pop(0); lds.append((d, 2))
        e("buffer_load_dwordx4 %s, v150, s[%d:%d], s%d offen sc1" % (vr(d, 4), SWS, SWS + 3, sPL), ("pl", len(lds)))
    g.wait_vm("fx")
    for k in range(12):
        e("v_lshlrev_b32 v%d, 16, v%d" % (160 + 2 * k, 32 + k))
        e("v_and_b32 v%d, 0xffff0000, v%d" % (161 + 2 * k, 32 + k))
    for n, (d, u) in enumerate(lds):
        if n % 3 == 0: g.wait_vm(("pl", min(n + 3, len(lds))))
        for i in range(4):
            a0 = UA[u][i // 2] + 2 * (i % 2)
            e("v_dot2c_f32_bf16 v%d, s70, v%d" % (a0, d + i))
            e("v_dot2c_f32_bf16 v%d, s71, v%d" % (a0 + 1, d + i))
    e("s_nop 2")
    for u in range(3):
        for i in range(4): e("v_permlane16_swap_b32 v%d, v%d" % (UA[u][0] + i, UA[u][1] + i))
        for i in range(4):
            a0 = UA[u][i // 2] + 2 * (i % 2); x = 160 + 8 * u + 2 * i
            e("v_fmac_f32 v%d, v%d, v%d" % (x, a0, 155 + u))
            e("v_fmac_f32 v%d, v%d, v%d" % (x + 1, a0 + 1, 155 + u))
            e("v_cvt_pk_bf16_f32 v%d, v%d, v%d" % (184 + 4 * u + i, x, x + 1))
        e("buffer_store_dwordx4 %s, v%d, s[%d:%d], s%d offen offset:%d %s" % (vr(184 + 4 * u, 4), XL[u][1], SW1, SW1 + 3, XL[u][2], XL[u][3], opt.get("oflags", "sc1")))
    if opt.get("ts") or opt.get("amp") is not None:
        e("s_waitcnt vmcnt(0)"); g.stamp()

def k1(g):
    e, opt = g.e, g.opt
    kernel_head(g, K1)
    e("s_load_dwordx2 s[%d:%d], s[0:1], 0" % (SX, SX + 1))
    e("s_lshr_b32 s3, s2, 8")
    e("s_cbranch_scc1 L_k1_end")
    sh = opt.get("vsh", 2)
    e("s_getpc_b64 s[84:85]")
    e("s_bitcmp1_b32 s2, 3")
    e("s_cselect_b32 s3, L_att-%s, 0" % K1)
    e("s_lshr_b32 s4, s2, 4")
    e("s_lshl_b32 s4, s4, %d" % (8 + sh))
    e("s_add_u32 s3, s3, s4")
    e("v_lshrrev_b32 v1, 6, v0")
    e("v_lshl_add_u32 v2, v0, %d, s3" % sh)
    e("global_load_dword v255, v2, s[84:85]")
    e("v_readfirstlane_b32 s%d, v1" % sW)
    e("v_and_b32 v0, 63, v0")
    e("v_lshrrev_b32 v104, 3, v0")
    e("v_lshrrev_b32 v22, 4, v0")
    e("v_mul_u32_u24 v104, 1152, v104")
    e("v_and_b32 v105, 7, v0")
    e("v_xor_b32 v105, v105, v22")
    e("v_lshl_add_u32 v104, v105, 4, v104")
    e("s_and_b32 s6, s2, 64")
    e("v_xor_b32 v104, s6, v104")
    e("s_bfe_u32 s%d, s2, 0x30003" % sT)
    e("s_and_b32 s%d, s2, 1" % sR)
    e("s_lshl3_add_u32 s%d, s%d, s%d" % (sR, sR, sT))
    e("s_lshr_b32 s60, s2, 6")
    e("s_lshl2_add_u32 s6, s%d, s60" % sW)
    e("s_lshl4_add_u32 s7, s%d, s6" % sR)
    e("s_mulk_i32 s6, 9216")
    e("s_mulk_i32 s7, 9216")
    e("s_mov_b32 m0, s6")
    e("s_mov_b32 s5, 9")
    e("s_mov_b32 s%d, 0x%x" % (SX + 2, PSZ))
    e("s_mov_b32 s%d, 0x20000" % (SX + 3))
    e("s_waitcnt lgkmcnt(0)")
    rest = ["s_load_dwordx8 s[64:71], s[0:1], 0", "s_load_dwordx4 s[72:75], s[0:1], 40", "s_load_dwordx4 s[76:79], s[0:1], 56", "s_load_dwordx4 s[80:83], s[0:1], 72"]
    if opt.get("ts") or opt.get("amp") is not None:
        for t in rest: e(t)
        rest = []
        e("s_waitcnt lgkmcnt(0)")
        e("s_lshl_b32 s94, s2, 2"); e("s_add_u32 s94, s94, s%d" % sW); e("s_lshl_b32 s94, s94, 8"); e("s_add_u32 s94, s94, 0x%x" % WS_TS)
        srd(g, SWS, 82, 83, WS_BYTES); srd(g, SDBG, 80, 81, 256); g.stamp()
    if opt.get("xloop", 0):
        g.label("L_x0")
        x_dma(g, 0, 0)
        g.vm += [("x", j) for j in range(1, 9)]
        e("s_addk_i32 m0, 1024"); e("s_addk_i32 s7, 128"); e("s_addk_i32 s5, -1"); e("s_cmp_lg_u32 s5, 0"); e("s_cbranch_scc1 L_x0")
    else:
        for j in range(9): x_dma(g, 0, j)
    for t in rest: e(t)
    e("v_xor_b32 v105, 64, v104")
    e("v_and_b32 v23, 15, v0")
    e("s_lshl2_add_u32 s4, s%d, s%d" % (sR, sW))
    e("s_mul_i32 s4, s4, 36864")
    e("s_mul_i32 s5, s%d, 36864" % sW)
    e("s_bfe_u32 s%d, s2, 0x20001" % sS)
    e("s_lshr_b32 s3, s2, 6")
    for o in range(1, opt.get("xcommon", 1)):
        for j in range(9): x_dma(g, o, j)
    e("s_waitcnt lgkmcnt(0)")
    wb = opt.get("wsbase", 0)
    if wb:
        e("s_add_u32 s82, s82, 0x%x" % wb); e("s_addc_u32 s83, s83, 0")
    srd(g, SWS, 82, 83, WS_BYTES - wb)
    srd(g, SDBG, 80, 81, 256)
    e("s_or_b32 s%d, s2, s%d" % (sT, sW))
    e("s_cbranch_scc1 L_nonce_done")
    e("s_memrealtime s[98:99]")
    e("s_waitcnt lgkmcnt(0)")
    e("v_mov_b32 v2, s98")
    e("v_or_b32 v2, 1, v2")
    Asm.e(g, "buffer_store_dword v2, off, s[%d:%d], 0 sc1" % (SDBG, SDBG + 3))
    g.label("L_nonce_done")
    e("s_cmp_eq_u32 s3, 0")
    e("s_cbranch_scc1 %s" % ("L_k1_end" if opt.get("noatt") else "L_att"))
    sv = (list(g.vm), list(g.lg), g.nts)
    g.sv = 31
    ffn_role(g)
    g.sv = 30
    def amp(role):
        if opt.get("amp") is None or opt.get("amprole", "ffn") != role: return
        L = g.newlabel("L_amp")
        e("s_sub_u32 s101, s94, s100")
        e("s_add_u32 s101, s101, %d" % opt.get("ampadd", 0))
        if role == "ffn":
            e("s_memrealtime s[92:93]"); e("s_waitcnt lgkmcnt(0)"); e("s_mov_b32 s100, s92")
        g.label(L)
        e("s_sleep 1"); e("s_memrealtime s[92:93]"); e("s_waitcnt lgkmcnt(0)")
        e("s_sub_u32 s92, s92, s100"); e("s_cmp_lt_u32 s92, s101"); e("s_cbranch_scc1 %s" % L)
    amp("ffn")
    e("s_endpgm")
    g.vm, g.lg, g.nts = sv
    g.raw(".p2align 6")
    g.label("L_att")
    import att
    att.att_role(g)
    amp("att")
    g.label("L_k1_end")
    e("s_endpgm")
    g.raw(".fill %d, 4, 0xbf810000" % (8192 if opt.get("vsh", 2) == 4 else 4096))

VOP3ONLY = ("v_mfma", "v_pk_", "v_fma_f32", "v_cvt_pk_bf16", "v_accvgpr_read", "v_accvgpr_write", "v_max3", "v_min3", "v_lshl_add", "v_add_lshl", "v_mad_u32",
            "v_bfe", "v_add3", "v_mul_lo", "v_mul_hi", "v_lshl_or", "v_and_or", "v_readlane", "v_perm_b32")
NOWIDE = ("v_readfirstlane", "v_permlane", "v_dot2c", "v_nop")
def has_lit(s):
    for t in re.split(r"[ ,]+", s)[1:]:
        if re.match(r"^-?(0x[0-9a-f]+|\d+)$", t):
            v = int(t, 0)
            if not (-16 <= v <= 64) and v not in (0x3f800000, 0x3f000000, 0x40000000, 0x40800000, 0xbf800000, 0xbf000000, 0xc0000000, 0xc0800000): return True
        if t.startswith("L_"): return not s.startswith(("s_cbranch", "s_branch"))
    return False
def isize(s):
    op = s.split()[0]
    if op.startswith(("ds_", "buffer_", "global_", "s_load", "s_mem")): return 8, False
    if op.startswith("s_"):
        if op.startswith(("s_waitcnt", "s_addk", "s_mulk", "s_nop", "s_barrier", "s_sleep", "s_endpgm", "s_cbranch", "s_branch", "s_setprio", "s_getreg")): return 4, False
        return (8 if has_lit(s) else 4), False
    if op.startswith(VOP3ONLY): return 8, False
    if has_lit(s): return 8, False
    ops = [x.strip() for x in re.split(r",(?![^\[]*\])", s.split(None, 1)[1])]
    if op.startswith("v_cmp") and ops[0] != "vcc": return 8, False
    if op.startswith("v_cndmask") and ops[-1] != "vcc": return 8, False
    if len(ops) >= 3 and not ops[2].startswith("v"): return 8, False
    return 4, not op.startswith(NOWIDE)
def align_pass(lines, minrun=4):
    ins = [l.strip() for l in lines]
    out = []; par = 0
    isins = lambda l: l and not l.endswith(":") and not l.startswith((".", ";"))
    n = len(ins)
    def nxt(i):
        i += 1
        while i < n and not isins(ins[i]):
            if ins[i].startswith(".p2align"): return None
            i += 1
        return i if i < n else None
    for i, l in enumerate(ins):
        if not isins(l):
            if l.startswith(".p2align"): par = 0
            out.append(l); continue
        sz, flex = isize(l)
        if sz == 8: out.append(l); continue
        if par == 1: out.append(l); par = 0; continue
        j = nxt(i)
        if j is None or isize(ins[j])[0] == 4: out.append(l); par = 1; continue
        if flex:
            op, rest = l.split(None, 1); out.append(op + "_e64 " + rest); continue
        run = 0
        while j is not None and isize(ins[j])[0] == 8 and run < minrun: run += 1; j = nxt(j)
        out.append(l)
        if run >= minrun and not l.startswith(("s_branch", "s_endpgm")): out.append("s_nop 0")
        else: par = 1
    return out

LABELS = {}
def resolve(lines):
    off = 0; LABELS.clear()
    for l in lines:
        l = l.strip()
        if l.endswith(":"): LABELS[l[:-1]] = off
        elif l.startswith(".p2align"):
            a = 1 << int(l.split()[1]); off = (off + a - 1) // a * a
        elif l and not l.startswith((".", ";")):
            off += 8 if l.split()[0].endswith("_e64") else isize(l)[0]
    end = LABELS["L_k1_end"]
    def f(m):
        span = 2048 if LABELS[m.group(1)] >= LABELS["L_att"] else 6144
        return "0x%x" % (min(LABELS[m.group(1)] + int(m.group(2)), end - span) & ~3)
    return [re.sub(r"@(\w+)\+(\d+)", f, l) if l.strip().startswith("s_load") else l for l in lines]

DOC = """; One launch, 256 workgroups of 4 waves (one per CU), generated by a script (straight-line software pipeline).
;  FFN : gate/up GEMM (weights by LDS-DMA ring + transposing LDS reads, 16x16x32 MFMA), h = relu(g)*u, h exchanged
;        partial sums exchanged between the 4 quads, out = x + sum / std^2.
"""
MACROS = """.macro MA d,a,b
v_mfma_f32_16x16x32_bf16 v[\\d:\\d+3], a[\\a:\\a+3], a[\\b:\\b+3], v[\\d:\\d+3]
.endm
.macro MV d,a,b
v_mfma_f32_16x16x32_bf16 v[\\d:\\d+3], a[\\a:\\a+3], v[\\b:\\b+3], v[\\d:\\d+3]
.endm
.macro RT d,b,o
ds_read_b64_tr_b16 a[\\d:\\d+1], v\\b offset:\\o
.endm
.macro WL n
s_waitcnt lgkmcnt(\\n)
.endm
.macro CV d,a,b
v_cvt_pk_bf16_f32 v\\d, v\\a, v\\b
.endm
"""
def compress(line):
    s = line.strip()
    m = re.match(r"v_mfma_f32_16x16x32_bf16 v\[(\d+):\d+\], a\[(\d+):\d+\], ([av])\[(\d+):\d+\], v\[(\d+):\d+\]$", s)
    if m and m.group(1) == m.group(5): return "M%s %s,%s,%s" % (m.group(3).upper(), m.group(1), m.group(2), m.group(4))
    m = re.match(r"ds_read_b64_tr_b16 a\[(\d+):\d+\], v(\d+) offset:(\d+)$", s)
    if m: return "RT %s,%s,%s" % m.groups()
    m = re.match(r"s_waitcnt lgkmcnt\((\d+)\)$", s)
    if m: return "WL %s" % m.group(1)
    m = re.match(r"v_cvt_pk_bf16_f32 v(\d+), v(\d+), v(\d+)$", s)
    if m: return "CV %s,%s,%s" % m.groups()
    return s

def gen(**opt):
    g = G(opt)
    k1(g)
    FUSE = 1
    errs = hazard.check(g.lines)
    if errs:
        print("\n".join(errs[:40])); raise SystemExit("hazards: %d" % len(errs))
    head = open("cdna_kernels/%s.s.ref" % BASE).read().split("; Override launch")[0] if not opt.get("nohead") else ""
    out = head
    if FUSE: out += "; @launch grid=(256,1,1) block=(256,1,1) lds=163840\n"
    else: out += "; @launch kernel=%s grid=(256,1,1) block=(256,1,1) lds=163840\n" % K1
    if not FUSE: out += "; @launch kernel=%s grid=(256,1,1) block=(576,1,1) lds=0\n" % K2
    out += '.amdgcn_target "amdgcn-amd-amdhsa--gfx950"\n' + DOC + '.text\n' + MACROS
    lines = align_pass(g.lines, opt.get("minrun", 4)) if opt.get("align", 1) else g.lines
    lines = resolve(lines)
    out += "\n".join(compress(l) for l in lines) + "\n"
    out += '.section .rodata,"a"\n' + kernel_desc(K1, 512, 256) + ("" if FUSE else kernel_desc(K2, 96, 96, 40))
    return out

if __name__ == "__main__":
    kw = json.loads(sys.argv[2]) if len(sys.argv) > 2 else {}
    open(sys.argv[1], "w").write(gen(**kw))
```

```python
import sys, re, json
from asmlib import *
import hazard
BASE = "parallel_sum__linear_kernel_hedgehog__glu_gated_reglu__prompt"
K1 = BASE + "_kernel"
K2 = "reduce_kernel"

PSZ = 2048 * 576 * 2
WS_HX = 0x1000000
WS_OX = 0x2200000
WS_RS2 = 0x2500000
WS_KVP = 0x2510000
WS_KVF = 0x2700000
WS_FLG = 0x2780000
WS_TS = 0x2800000
WS_BYTES = 0x10000000
SX, SW1, SW2, SWS, SDBG, SPHI = 8, 12, 16, 20, 24, 28
sW, sR, sS, sT, sOFF, sM0W, sB1, sB2, sST, sT2 = 32, 33, 34, 35, 36, 37, 38, 39, 40, 41
sCNT = 52
OOB = 0x40000000
RING = 144
NB = 8

class G(Asm):
    def __init__(self, opt):
        super().__init__()
        self.opt = opt
        self.vm = []
        self.lg = []
        self.nts = 0
        self.waited = set()
        self.sv = 30
    def e(self, s, tag=None):
        if s.startswith(("buffer_", "global_")):
            assert tag is None or tag in ("flag", "fill") or tag not in self.waited, ("op issued after its wait", tag)
            self.vm.append(tag)
        if s.startswith("ds_"): self.lg.append(tag)
        super().e(s)
    def vm_n(self, tag):
        idx = [i for i, t in enumerate(self.vm) if t == tag]
        assert idx, tag
        self.waited.add(tag)
        return len(self.vm) - 1 - idx[-1]
    def wait_vm(self, tag):
        n = min(self.vm_n(tag), 63)
        self.e("s_waitcnt vmcnt(%d)" % n)
    def wait_lg(self, tag):
        idx = [i for i, t in enumerate(self.lg) if t == tag]
        n = min(len(self.lg) - 1 - idx[-1], 15)
        self.e("s_waitcnt lgkmcnt(%d)" % n)
    def stamp(self):
        e = self.e
        if self.opt.get("amp") is not None:
            if self.nts in (0, self.opt["amp"]):
                e("s_memrealtime s[92:93]"); e("s_waitcnt lgkmcnt(0)")
                e("s_mov_b32 s%d, s92" % (100 if self.nts == 0 else 94))
            self.nts += 1
            return
        if not self.opt.get("ts"): return
        e("s_memtime s[90:91]"); e("s_memrealtime s[92:93]")
        e("s_waitcnt lgkmcnt(0)")
        if self.opt.get("dbgts") is not None:
            sel = self.opt.get("dbgsel", list(range(15)))
            if self.nts in sel:
                e("v_mov_b32 v30, s92")
                e("buffer_store_dword v30, off, s[%d:%d], s94 offset:%d" % (SDBG, SDBG + 3, 4 + 4 * sel.index(self.nts)))
            self.nts += 1
            return
        for k, sg in enumerate((90, 92)):
            e("v_mov_b32 v%d, s%d" % (self.sv, sg))
            e(("buffer_store_dword v%d, off" % self.sv) + ", s[%d:%d], s94 offset:%d" % (SWS, SWS + 3, 8 * self.nts + 4 * k))
        self.nts += 1

def mfma(d, a, b, c=None):
    return "v_mfma_f32_16x16x32_bf16 %s, %s, %s, %s" % (d, a, b, d if c is None else c)

class Stage:
    def __init__(self, lo, hi, pre, dmas, frags, gate=None):
        dmas = [d if isinstance(d, list) else [d] for d in dmas]
        dmas[0] = list(pre) + dmas[0]
        self.lo, self.hi, self.dmas, self.frags, self.gate = lo, hi, dmas, frags, gate
        self.before = None; self.after = None

class Pipe:
    def __init__(self, g, stages, D=6, BE=1):
        self.g, self.st, self.D, self.BE = g, stages, D, BE
        self.next = 0
        self.safe = -1
        self.q = []
        self.open = set()
        self.fi = 0
        self.done = -1
        self.qthr = g.opt.get("qthr", 3)
        self.when = {}
    def can(self, m):
        s = self.st[m]
        if s.gate is not None and s.gate not in self.open: return False
        return all(k <= self.safe for k in range(m) if self.st[k].lo < s.hi and s.lo < self.st[k].hi)
    def refill(self):
        while self.next < len(self.st) and self.can(self.next):
            for d in self.st[self.next].dmas: self.q.append([list(d), ("st", self.next)])
            self.next += 1
    def pop(self):
        if not self.q: return []
        t, tag = self.q.pop(0)
        return [(x, tag) for x in t]
    def flush(self):
        while self.q:
            for t, tag in self.pop(): self.g.e(t, tag)
    def enter(self, n, last, hook=None):
        g = self.g
        late = 0
        while any(tag[1] <= last for _, tag in self.q):
            late += 1
            for t, tg in self.pop(): g.e(t, tg)
        if late and n > 2: print("warning: %d DMA issued late for stage %d" % (late, n))
        assert self.next > last, (n, last)
        for k in range(n, last + 1):
            if self.st[k].before: self.st[k].before()
        if hook and hook.before: hook.before()
        g.wait_vm(("st", last)); g.e("s_barrier")
        if hook and hook.after: hook.after()
        for k in range(n, last + 1):
            if self.st[k].after: self.st[k].after()
        self.safe = max(self.safe, self.done)
        self.refill()
    def run(self, s0, s1, extra=None, pauses=(), groups=None, urgent=None, lagok=True, between=None, vsp=0):
        g, D = self.g, self.D
        WP = g.opt.get("wp", 4)
        pend = []; urg = []; urgent = urgent or {}; cur = [0]; dens = [0]
        extra = extra or {}
        fl = [(n, k, f) for n in range(s0, s1) for k, f in enumerate(self.st[n].frags)]
        if groups is None: groups = list(range(s0, s1, self.BE))
        gend = {a: (groups[i + 1] if i + 1 < len(groups) else s1) - 1 for i, a in enumerate(groups)}
        base = self.fi
        needbar = lambda j: j < len(fl) and fl[j][1] == 0 and fl[j][0] in gend
        def reads(j):
            buf = RING + 4 * ((base + j) % NB)
            for t in fl[j][2][0](buf): g.e(t, ("fr", base + j))
        def wl(i):
            w = min(i + WP - 1, len(fl) - 1)
            g.wait_lg(("fr", base + w))
            self.done = max(self.done, fl[w][0] if fl[w][1] == len(self.st[fl[w][0]].frags) - 1 else fl[w][0] - 1)
        def cost(it):
            if isinstance(it, (Mark, Dens)): return 0
            if isinstance(it, Hook): return 99
            if isinstance(it, Delay):
                if it.until is None: it.until = cur[0] + it.n
                return 0 if cur[0] >= it.until else 99
            if callable(it): return getattr(it, "cost", 2)
            if isinstance(it, list): return min(len(it), 2)
            t = it[0] if isinstance(it, tuple) else it
            return 2 if t.startswith(("buffer_", "global_", "v_mfma", "v_exp", "v_rcp")) else 1
        def emit(it, i):
            if isinstance(it, Mark): self.when[it.name] = i
            elif isinstance(it, Dens): dens[0] = it.n
            elif isinstance(it, Delay):
                if i >= len(fl): g.e("s_nop 7")
            elif isinstance(it, Hook):
                if it.before: it.before()
                g.e("s_barrier")
                if it.after: it.after()
            elif callable(it): it()
            elif isinstance(it, list):
                for x in it: g.e(x)
            elif isinstance(it, tuple): g.e(it[0], it[1])
            else: g.e(it)
        for j in range(min(D, len(fl))):
            if needbar(j): self.enter(fl[j][0], gend[fl[j][0]])
            reads(j)
        if needbar(D): self.enter(fl[D][0], gend[fl[D][0]])
        if between: between()
        wl(0)
        since = 9; lastvm = -9; VSP = vsp
        def isvm(it):
            t = it[0] if isinstance(it, tuple) else it
            return isinstance(t, str) and t.startswith("buffer_")
        for i, (n, k, f) in enumerate(fl):
            ms = f[1](RING + 4 * ((base + i) % NB))
            g.e(ms[0])
            if i + D < len(fl): reads(i + D)
            g.e(ms[1])
            pend += [(i, x) for x in extra.get(i, [])]; urg += urgent.get(i, [])
            since += 1; cur[0] = i
            wdue = (i + 1) % WP == 0 and i + 1 < len(fl)
            if needbar(i + 1 + D):
                if wdue: wl(i + 1)
                hook = pend.pop(0)[1] if pend and isinstance(pend[0][1], Hook) else None
                self.enter(fl[i + 1 + D][0], gend[fl[i + 1 + D][0]], hook)
                continue
            paused = any(a <= i < b for a, b in pauses)
            nvm = len(g.vm)
            vok = i - lastvm >= VSP
            if urg and not wdue and (vok or not isvm(urg[0])):
                slots = 2
                while urg and cost(urg[0]) <= slots and (vok or not isvm(urg[0])):
                    it = urg.pop(0); slots -= cost(it); emit(it, i)
                if len(g.vm) > nvm: lastvm = i
                continue
            used = False
            if self.q and len(self.q[0][0]) > 1:
                if wdue: wl(i + 1)
                while len(self.q[0][0]) > 1: g.e(self.q[0][0].pop(0))
                used = True
            elif self.q and not wdue and not paused and vok and not (VSP and pend and isvm(pend[0][1])) and since >= (2 if len(self.q) > self.qthr and not any(b <= i < b + g.opt.get("slow", 0) for a, b in pauses if b > a) else self.g.opt.get("dcad", 3)):
                it = self.q.pop(0); g.e(it[0][0], it[1]); since = 0; lastvm = i; vok = VSP == 0
                used = True
            if used and not dens[0]: continue
            slots = 0 if used else 2
            if wdue and not used: wl(i + 1); slots = 1
            if dens[0]: slots += dens[0]
            elif lagok and pend and i - pend[0][0] > g.opt.get("lag", 30): slots += 1
            while pend and cost(pend[0][1]) <= slots and (vok or not isvm(pend[0][1]) or dens[0] > 2):
                it = pend.pop(0)[1]; slots -= cost(it); emit(it, i)
                if isvm(it): lastvm = i; vok = VSP == 0
        for it in urg + [x[1] for x in pend]: emit(it, len(fl))
        self.fi = base + len(fl)
    def drained(self, upto):
        self.safe = max(self.safe, upto); self.refill()

class Mark:
    def __init__(self, name): self.name = name
class Hook:
    def __init__(self, before=None, after=None): self.before, self.after = before, after
class Delay:
    def __init__(self, n): self.n = n; self.until = None
class Dens:
    def __init__(self, n): self.n = n

def group_scc(ops):
    out = []
    for op in ops:
        if isinstance(op, str) and op.startswith("s_cselect"): out[-1] = [out[-1], op]
        else: out.append(op)
    return out

def spread(ops, lo, hi, extra):
    ops = group_scc(ops); n = hi - lo
    for k, op in enumerate(ops):
        extra.setdefault(lo + k * n // len(ops), []).append(op)

def lane_consts(g):
    e = g.e
    e("v_lshrrev_b32 v22, 4, v0")
    e("v_and_b32 v23, 15, v0")

def x_dma(g, o, j):
    e = g.e
    if j == 0:
        if o:
            e("s_add_u32 s6, s60, %d" % o)
            e("s_and_b32 s6, s6, 3")
            e("s_mulk_i32 s6, 9216")
            e("s_add_u32 m0, s5, s6")
            e("s_add_u32 s7, s4, s6")
    else:
        e("s_addk_i32 m0, 1024")
        e("s_addk_i32 s7, 128")
    e("buffer_load_dwordx4 v%d, s[%d:%d], s7 offen %s lds" % (104 + (o & 1), SX, SX + 3, g.opt.get("xflags", "")), ("x", j))

def prologue(g, pipe, XV=112, early=None, afterbar=None, fill=(), var=False, nfirst=8, mid=None, postc=None):
    e, opt = g.e, g.opt
    xf = opt.get("xflags", "")
    NC = opt.get("xcommon", 1)
    nf = 9 * (4 - NC)
    for o in range(NC, 4):
        for j in range(9):
            x_dma(g, o, j)
            k = (o - NC) * 9 + j
            if mid and o * 9 + j == mid[0]: mid[1]()
            for it in fill[k * len(fill) // nf:(k + 1) * len(fill) // nf]:
                for x in (it if isinstance(it, list) else [it]): e(x, "fill")
    if early: early()
    e("v_lshrrev_b32 v106, 3, v23")
    e("v_mul_u32_u24 v106, 9216, v106")
    e("v_and_b32 v107, 7, v23")
    e("v_lshl_add_u32 v106, v107, 7, v106")
    e("v_lshrrev_b32 v107, 1, v23")
    e("v_xor_b32 v107, v107, v22")
    e("v_lshl_add_u32 v106, v107, 4, v106")
    e("v_add_u32 v106, s5, v106")
    e("v_xor_b32 v107, 64, v106")
    for i in range(4): e("v_mov_b32 v%d, 0x3f803f80" % (80 + i))
    for i in (72, 73, 76, 77): e("v_mov_b32 v%d, 0" % i)
    e("v_lshrrev_b32 v108, 2, v23")
    e("v_cmp_eq_u32 vcc, v108, v22")
    e("v_and_b32 v108, 1, v23")
    e("v_lshlrev_b32 v108, 4, v108")
    e("v_mov_b32 v78, 0x3f80")
    e("v_lshlrev_b32 v78, v108, v78")
    e("v_cndmask_b32 v78, 0, v78, vcc")
    e("v_and_b32 v108, 2, v23")
    e("v_cmp_eq_u32 vcc, 0, v108")
    e("s_nop 1")
    e("v_cndmask_b32 v74, 0, v78, vcc")
    e("v_cndmask_b32 v75, v78, 0, vcc") if False else None
    e("v_sub_u32 v75, v78, v74")
    X = lambda tt, ks: XV + (ks * 2 + tt) * 4
    g.stamp()
    for j in range(10):
        if j < 9:
            g.wait_vm(("x", j))
            for ks in (2 * j, 2 * j + 1):
                for tt in range(2):
                    e("ds_read_b128 %s, v%d offset:%d" % (vr(X(tt, ks), 4), 106 + (ks & 1), tt * 18432 + j * 1024), ("xr", j))
        if j > 0:
            g.wait_lg(("xr", j - 1))
            for ks in (2 * j - 2, 2 * j - 1):
                for tt in range(2):
                    e(mfma(vr(64 + 4 * tt, 4), vr(80, 4), vr(X(tt, ks), 4), "0" if ks == 0 else None))
    e("s_barrier")
    g.stamp()
    pipe.open.add("x"); pipe.refill()
    for _ in range(nfirst):
        for t, tag in pipe.pop(): e(t, tag)
    if afterbar: afterbar()
    e("s_nop 3")
    e("s_mov_b32 s%d, 0x%08x" % (sT, 0xbae38e39))
    for tt in range(2): e("v_mul_f32 v%d, s%d, v%d" % (78 + tt, sT, 64 + 4 * tt))
    e("v_cvt_pk_bf16_f32 v108, v78, v79")
    for i in range(4): e("v_lshlrev_b32 v%d, 16, v108" % (64 + i))
    for i in range(4): e("v_and_b32 v%d, 0xffff0000, v108" % (68 + i))
    if var:
        for tt in range(2): e("v_sub_f32 v%d, v%d, v%d" % (14 + tt, 78 + tt, 64 + 4 * tt))
    else: e("s_nop 1")
    for _ in range(opt.get("delay", 0)): e("s_sleep 32")
    fr = [(tt, ks) for ks in range(18) for tt in range(2)]
    LAG = 2
    for k in range(len(fr) + LAG + 1):
        cv = []
        if LAG <= k < len(fr) + LAG:
            tt, ks = fr[k - LAG]; d = 32 + 8 * ((k - LAG) % 4); x = X(tt, ks)
            cv = ["v_cvt_pk_bf16_f32 v%d, v%d, v%d" % (x + i, d + 2 * i, d + 2 * i + 1) for i in range(4)]
        if k < len(fr):
            tt, ks = fr[k]; d = 32 + 8 * (k % 4)
            e(mfma(vr(d, 4), vr(74, 4), vr(X(tt, ks), 4), vr(64 + 4 * tt, 4)))
            if k == LAG: e("s_nop 3")
            for t in cv[:2]: e(t)
            e(mfma(vr(d + 4, 4), vr(72, 4), vr(X(tt, ks), 4), vr(64 + 4 * tt, 4)))
            for t in cv[2:]: e(t)
        else:
            e("s_nop 3")
            for t in cv: e(t)
        if var and k > LAG:
            tt, ks = fr[k - LAG - 1]; x = X(tt, ks)
            e(mfma(vr(96 + 4 * tt, 4), vr(x, 4), vr(x, 4), "0" if ks == 0 else None))
            for i in range(2): e("v_accvgpr_write_b32 a%d, v%d" % (x - XV + i, x + i))
    if postc: postc()
    g.stamp()

def XV0(tt, ks): return vr(112 + (ks * 2 + tt) * 4, 4)
def xc_copies(half=False): return ["v_accvgpr_write_b32 a%d, v%d" % (i, 112 + i) for i in range(144) if not half or i % 4 >= 2]
def XC(tt, ks): return ar((ks * 2 + tt) * 4, 4)

def tr_bases(g, dst, rowmul):
    e = g.e
    out = []
    out.append("v_bfe_u32 v28, v0, 2, 2")
    out.append("v_mad_u32_u24 v28, v22, %d, v28" % rowmul)
    out.append("v_lshlrev_b32 v%d, 7, v28" % dst)
    out.append("v_bfe_u32 v28, v0, 3, 2")
    out.append("v_lshl_add_u32 v%d, v28, 5, v%d" % (dst, dst))
    out.append("v_and_b32 v28, 3, v0")
    out.append("v_lshl_add_u32 v%d, v28, 3, v%d" % (dst, dst))
    for t in range(1, 4): out.append("v_xor_b32 v%d, %d, v%d" % (dst + t, 32 * t, dst))
    for grp in (1, 2):
        for t in range(4): out.append("v_add_u32 v%d, 0x%x, v%d" % (dst + 4 * grp + t, grp << 16, dst + t))
    return out

def tr_reads(bases, t, off, second):
    def f(buf):
        o2 = off + second
        assert (off >> 16) == (o2 >> 16)
        b = bases + 4 * (off >> 16) + t
        return ["ds_read_b64_tr_b16 %s, v%d offset:%d" % (ar(buf, 2), b, off & 0xffff),
                "ds_read_b64_tr_b16 %s, v%d offset:%d" % (ar(buf + 2, 2), b, o2 & 0xffff)]
    return f

def store_ops(g, acc, P, c, voff, sbase=None, ntile=4, tag=None):
    ops = ["s_add_u32 s%d, s%d, %d" % (sT2, sST if sbase is None else sbase, c * 4096)]
    for tt in range(2):
        for hf in range(ntile // 2):
            p = P + ((tt * (ntile // 2) + hf) % 2) * 4
            for k in range(2):
                s = acc + ((2 * hf + k) * 2 + tt) * 4
                ops.append("v_cvt_pk_bf16_f32 v%d, v%d, v%d" % (p + 2 * k, s, s + 1))
                ops.append("v_cvt_pk_bf16_f32 v%d, v%d, v%d" % (p + 2 * k + 1, s + 2, s + 3))
            ops.append(("buffer_store_dwordx4 %s, v%d, s[%d:%d], s%d offen offset:%d sc1" % (vr(p, 4), voff, SWS, SWS + 3, sT2, (tt * 2 + hf) * 1024), tag))
    return ops

sNON = 97
def flag_load(vreg, vfl, sline):
    if sline is None: return "buffer_load_dword v%d, v%d, s[%d:%d], 0 offen sc1" % (vreg, vfl, SDBG, SDBG + 3)
    return "buffer_load_dword v%d, v%d, s[%d:%d], s%d offen sc1" % (vreg, vfl, SWS, SWS + 3, sline)

def flag_issue(g, vreg, vfl, sline):
    g.e(flag_load(vreg, vfl, sline), "flag")

def flag_check(g, vreg, vfl, sline, mask, issued=True, sleep=4):
    if g.opt.get("nofl") and sline is not None: return
    e = g.e
    L = g.newlabel("L_poll"); Ld = g.newlabel("L_polld"); Lc = g.newlabel("L_pollc")
    e("s_cmp_lg_u32 s%d, 0" % sW)
    e("s_cbranch_scc1 %s" % Ld)
    e("s_mov_b32 s89, 0x20000")
    if issued:
        g.wait_vm("flag")
        e("s_branch %s" % Lc)
    g.label(L)
    Asm.e(g, flag_load(vreg, vfl, sline))
    e("s_waitcnt vmcnt(0)")
    g.label(Lc)
    if sline is None:
        e("v_readfirstlane_b32 s%d, v%d" % (sNON, vreg))
        e("s_sub_u32 s89, s89, 1")
        e("s_cmp_lg_u32 s%d, 0" % sNON)
    else:
        e("v_cmp_eq_u32 s[98:99], s%d, v%d" % (sNON, vreg))
        e("s_sub_u32 s89, s89, 1")
        m = mask if isinstance(mask, str) else "0x%x" % mask
        e("s_and_b32 s98, s98, %s" % m)
        e("s_cmp_eq_u32 s98, %s" % m)
    e("s_cbranch_scc1 %s" % Ld)
    e("s_sleep %d" % sleep)
    e("s_cmp_lg_u32 s89, 0")
    e("s_cbranch_scc1 %s" % L)
    g.label(Ld)

def flag_lane_offsets(vfl, vtmp):
    return ["s_lshl_b32 s96, s%d, 6" % sW, "v_add_u32 v%d, s96, v0" % vtmp, "v_cmp_gt_u32 vcc, 16, v%d" % vtmp, "v_lshlrev_b32 v%d, 2, v0" % vfl,
            "v_mov_b32 v%d, 0x%x" % (vtmp, OOB), "v_cndmask_b32 v%d, v%d, v%d, vcc" % (vfl, vtmp, vfl)]

def code_pf():
    return ["s_getpc_b64 s[6:7]", "s_load_dword s5, s[6:7], s101"]

def signal(g, vtmp, voff, sword, imm=0):
    g.e("v_mov_b32 v%d, s%d" % (vtmp, sNON))
    g.e("buffer_store_dword v%d, v%d, s[%d:%d], s%d offen offset:%d sc1" % (vtmp, voff, SWS, SWS + 3, sword, imm))

def ffn_role(g):
    e, opt = g.e, g.opt
    wf = opt.get("wflags", "")
    ACC = [32, 96]; H = 160; B1 = 9; PK = 128; VST = 21; BH = 144
    sI, sJ = 42, 43; sKB = 44; sHX = 47; sKO = 53; sKS = 56; sKK = 86; sM0H = 50; sSO = 51; sSS = 59; sWO = 78; sOX = 83; sM0B = 84; sWT = 85
    e("s_sub_u32 s%d, s3, 1" % sI)
    e("s_mov_b32 s%d, s%d" % (sJ, sS))
    e("s_mul_i32 s%d, s%d, 3" % (sS, sJ))
    e("s_add_u32 s%d, s%d, s%d" % (sS, sS, sI))
    e("s_cmp_ge_u32 s%d, 2" % sW)
    e("s_cselect_b32 s%d, s74, s72" % sT)
    e("s_cselect_b32 s%d, s75, s73" % sT2)
    srd(g, SW1, sT, sT2, 576 * 4608 * 2)
    e("s_lshl_b32 s%d, s%d, 12" % (sM0W, sW))
    e("s_mul_i32 s%d, s%d, 768" % (sB1, sS))
    def late_setup():
        o = []; sT = 95
        a = Asm(); srd(a, SW2, 76, 77, 4608 * 576 * 2); srd(a, SPHI, 70, 71, 576 * 576 * 2); a.e('s_mov_b32 s61, s78'); a.e('s_mov_b32 s62, s79')
        o += [l.strip() for l in a.lines]
        o += ["s_lshl_b32 s98, s%d, 6" % sJ, "s_and_b32 s99, s98, 128", "s_xor_b32 s99, s99, 128"]
        for b in range(3):
            o += ["s_add_u32 s%d, s%d, %d" % (sT, sI, b), "s_cmp_ge_u32 s%d, 3" % sT, "s_cselect_b32 s96, 3, 0", "s_sub_u32 s%d, s%d, s96" % (sT, sT),
                  "s_mul_i32 s96, s%d, 3" % sJ, "s_add_u32 s%d, s%d, s96" % (sT, sT),
                  "s_mul_i32 s%d, s%d, %d" % (sKB + b, sT, 384 * 1152), "s_mul_i32 s96, s%d, 384" % sI, "s_add_u32 s%d, s%d, s96" % (sKB + b, sKB + b),
                  "s_add_u32 s%d, s%d, s99" % (sKO + b, sKB + b), "s_add_u32 s%d, s%d, s98" % (sKK + b, sKB + b), "s_xor_b32 s%d, s%d, 64" % (sKS + b, sKK + b),
                  "s_mul_i32 s96, s%d, 12" % sR, "s_add_u32 s%d, s%d, s96" % (sT, sT), "s_lshl_b32 s%d, s%d, 2" % (sT, sT), "s_add_u32 s%d, s%d, s%d" % (sT, sT, sW),
                  "s_mul_i32 s%d, s%d, 24576" % (sHX + b, sT), "s_add_u32 s%d, s%d, 0x%x" % (sHX + b, sHX + b, WS_HX)]
        o += ["s_lshl_b32 s%d, s%d, 2" % (sT, sR), "s_add_u32 s%d, s%d, s%d" % (sT, sT, sJ), "s_lshl_b32 s%d, s%d, 7" % (sCNT, sT), "s_add_u32 s%d, s%d, 0x%x" % (sCNT, sCNT, WS_FLG),
              "s_lshl_b32 s63, s%d, 2" % sI, "s_add_u32 s63, s63, s%d" % sCNT]
        o += ["s_mul_i32 s%d, s%d, %d" % (sST, sJ, PSZ), "s_mul_i32 s%d, s%d, 12288" % (sB2, sI), "s_add_u32 s%d, s%d, s4" % (sB2, sB2),
              "s_add_u32 s%d, s%d, s%d" % (sST, sST, sB2), "s_lshl_b32 s%d, s%d, 11" % (sM0H, sW),
              "s_lshl_b32 s96, s99, 5", "s_add_u32 s%d, s%d, s96" % (sSO, sST),
              "s_xor_b32 s96, s96, 4096", "s_add_u32 s%d, s%d, s96" % (sSS, sST), "s_and_b32 s96, s98, 64", "s_xor_b32 s96, s96, 64",
              "s_lshl_b32 s96, s96, 4", "s_add_u32 s%d, s%d, s96" % (sSS, sSS)]
        o += ["s_lshl_b32 s95, s%d, 2" % sR, "s_add_u32 s95, s95, s%d" % sJ, "s_lshl_b32 s95, s95, 2", "s_add_u32 s95, s95, s%d" % sW,
              "s_mul_i32 s%d, s95, 10240" % sOX, "s_add_u32 s%d, s%d, 0x%x" % (sOX, sOX, WS_OX),
              "s_mul_i32 s%d, s%d, %d" % (sWT, sJ, 144 * 1152), "s_mul_i32 s96, s%d, 384" % sI, "s_add_u32 s%d, s%d, s96" % (sWT, sWT), "s_lshl_b32 s%d, s%d, 10" % (sM0B, sW)]
        for i in range(5):
            d = sWO + i
            o += (["s_lshl_b32 s95, s%d, 2" % sW, "s_add_u32 s95, s95, %d" % i] if i < 4 else ["s_add_u32 s95, s%d, 16" % sW])
            o += ["s_lshr_b32 s96, s95, 1", "s_lshl_b32 s%d, s96, 2" % d, "s_cmp_ge_u32 s96, 5", "s_cselect_b32 s96, 52, 0",
                  "s_add_u32 s%d, s%d, s96" % (d, d), "s_and_b32 s95, s95, 1", "s_mul_i32 s95, s95, 36",
                  "s_add_u32 s%d, s%d, s95" % (d, d), "s_mul_i32 s%d, s%d, 1152" % (d, d), "s_add_u32 s%d, s%d, s%d" % (d, d, sWT)]
        return o
    stages = []; start = [0]
    def slot(n): return ((n + 9) % 10) * 16384
    def push(st): stages.append(st); start.append(start[-1] + len(st.frags))
    for rho in range(6):
        acc = ACC[rho & 1]
        for st in range(9):
            n = len(stages); lo = slot(n)
            pre = ["s_add_u32 m0, s%d, %d" % (sM0W, lo), "s_add_u32 s%d, s%d, %d" % (sOFF, sB1, st * 64 * 9216 + rho * 128)]
            dmas = ["buffer_load_dwordx4 v%d, s[%d:%d], s%d offen offset:%d %s lds" % (1 + i, SW1, SW1 + 3, sOFF, i * 1024, wf) for i in range(4)]
            frags = []
            for kk in range(2):
                ks = 2 * st + kk
                for t in range(4):
                    for mat in range(2):
                        def mf(buf, ks=ks, t=t, mat=mat, acc=acc, XC=(XC if rho else XV0)):
                            order = (0, 1) if mat == 0 else (1, 0)
                            return [mfma(vr(acc + ((t * 2 + mat) * 2 + tt) * 4, 4), ar(buf, 4), XC(tt, ks), "0" if ks == 0 else None) for tt in order]
                        rdf = tr_reads(B1, t, lo + mat * 8192 + kk * 4096, 512)
                        if opt.get("halfrd"): rdf = (lambda buf, f=rdf: f(buf)[:1])
                        frags.append((rdf, mf))
            push(Stage(lo, lo + 16384, pre, dmas, frags, None if n == 0 else "x"))
    def hreg(b, u, tt):
        k = (u * 2 + tt) * 4
        if b == 0: return vr(H + k, 4)
        if b == 2: return ar(k, 4)
        if b == 1: return ar(176 + k, 4) if u < 8 else ar(96 + k - 64, 4)
        if u < 2: return ar(128 + k, 4)
        if u < 4: return ar(240 + k - 16, 4)
        return vr(136 + k - 32, 4)
    A2, AO, AS, AK = 32, 64, 96, 112
    def mk(acc, b, u, t, z):
        def mf(buf):
            order = (0, 1) if t % 2 == 0 else (1, 0)
            return [mfma(vr(acc + (t * 2 + tt) * 4, 4), ar(buf, 4), hreg(b, u, tt), "0" if z else None) for tt in order]
        return mf
    def full(b, q, acc):
        lo = slot(len(stages))
        sb, add = (sKB + b, 256) if acc == A2 else (sKO + b, 0)
        pre = ["s_add_u32 m0, s%d, %d" % (sM0W, lo), "s_add_u32 s%d, s%d, %d" % (sOFF, sb, q * 128 * 1152 + add)]
        dmas = ["buffer_load_dwordx4 v%d, s[%d:%d], s%d offen offset:%d %s lds" % (5 + i, SW2, SW2 + 3, sOFF, i * 1024, wf) for i in range(4)]
        frags = [(tr_reads(B1, t, lo + kk * 4096, 2048), mk(acc, b, 4 * q + kk, t, (b, q, kk) == (0, 0, 0))) for kk in range(4) for t in range(4)]
        push(Stage(lo, lo + 16384, pre, dmas, frags, "x"))
    def half(bqs, acc):
        lo = slot(len(stages)); dmas = []; frags = []
        for k, (b, q) in enumerate(bqs):
            p = lo + 8192 * k
            ld = ["buffer_load_dwordx4 v%d, s[%d:%d], s%d offen offset:%d %s lds" % ((25, 22)[i], SW2, SW2 + 3, sOFF, i * 1024, wf) for i in range(2)]
            dmas += [["s_add_u32 m0, s%d, %d" % (sM0H, p), "s_add_u32 s%d, s%d, %d" % (sOFF, (sKS if acc == AS else sKK) + b, q * 128 * 1152), ld[0]], [ld[1]]]
            for kk in range(4):
                for t in range(2):
                    off = p + kk * 2048
                    def rd(buf, off=off, t=t):
                        v = BH + 2 * (off >> 16) + t
                        return ["ds_read_b64_tr_b16 %s, v%d offset:%d" % (ar(buf, 2), v, off & 0xffff), "ds_read_b64_tr_b16 %s, v%d offset:%d" % (ar(buf + 2, 2), v, (off & 0xffff) + 1024)]
                    frags.append((rd, mk(acc, b, 4 * q + kk, t, acc == AS and (b, q, kk) == (0, 0, 0))))
        push(Stage(lo, lo + 16384, [], dmas, frags, "x"))
    def wo(us, acc):
        lo = slot(len(stages)); v = {A2: 1, AO: 2, AS: 3}[acc]
        sel = [(sM0W, lo + i * 1024, sWO + i) for i in range(4)] if len(us) == 4 else [(sM0B, lo, sWO + 4)]
        dmas = [["s_add_u32 m0, s%d, %d" % (m, o), "s_nop 0", "buffer_load_dwordx4 v%d, s[%d:%d], s%d offen %s lds" % (v, SPHI, SPHI + 3, so, wf)] for m, o, so in sel]
        frags = [(tr_reads(B1, t, lo + kk * 4096, 2048), mk(acc, 3, u, t, acc == AS and u == 0 and t >= 2)) for kk, u in enumerate(us) for t in range(4)]
        push(Stage(lo, lo + 16384, [], dmas, frags, "x"))
    Q = lambda q: list(range(4 * q, 4 * q + 4))
    BQ = [(0, 0), (0, 1), (0, 2), (1, 0), (1, 1), (2, 0), (2, 1), (1, 2), (2, 2)]
    first = {}
    S2 = len(stages)
    for n, bq in enumerate(BQ[:7]):
        first[bq] = len(stages)
        full(*bq, A2); full(*bq, AO)
        if n == 3: SH0 = len(stages); half(BQ[0:2], AS); half(BQ[2:4], AS)
        if n == 6: half(BQ[4:6], AS); half(BQ[6:7], AS)
    SL = len(stages); first[(1, 2)] = SL
    ORD = opt.get("ord", 1)
    if ORD == 0:
        first[(2, 2)] = SL + 1; SO = SL + 2; ST2, STO = SL + 4, SL + 8; EG = [0, 1, 2, 4, 6, 8, 11, 14]
        for acc in (A2, AO):
            full(1, 2, acc); full(2, 2, acc); wo(Q(0), acc); wo([4], acc)
        half(BQ[7:9], AS); wo(Q(0), AS); wo([4], AS)
    else:
        first[(2, 2)] = SL + 2; SO = SL + 4; ST2, STO = SL + 6, SL + 9; EG = [0, 2, 4, 7, 11, 14]
        full(1, 2, A2); full(1, 2, AO); full(2, 2, A2); full(2, 2, AO)
        wo(Q(0), A2); wo([4], A2); half(BQ[7:9], AS); wo(Q(0), AO); wo([4], AO); wo(Q(0), AS); wo([4], AS)
    SK = len(stages)
    for n in range(0, 9, 2): half(BQ[n:n + 2], AK)
    pipe = Pipe(g, stages, opt.get("D", 7), 2)
    TOUCH = opt.get("touch", 1); tf = opt.get("tflags", "")
    def touch1(rho): return ["buffer_load_dword v31, v29, s[%d:%d], s%d offen offset:%d %s" % (SW1, SW1 + 3, sB1, rho * 128, tf)]
    def touch2(b):
        if b == 3: return ["buffer_load_dword v31, v26, s[%d:%d], s%d offen %s" % (SPHI, SPHI + 3, sWT, tf)]
        if opt.get("t2c", 0):
            return [["s_add_u32 s3, s60, %d" % (b * 96 * 4608), "buffer_load_dword v31, v30, s[%d:%d], s3 offen %s" % (SW2, SW2 + 3, tf)]]
        return ["buffer_load_dword v31, v26, s[%d:%d], s%d offen %s" % (SW2, SW2 + 3, sKB + b, tf)]
    def early():
        e("v_lshrrev_b32 v28, 3, v0")
        e("s_and_b32 s%d, s%d, 1" % (sOFF, sW))
        e("s_lshl_b32 s%d, s%d, 5" % (sOFF, sOFF))
        e("v_add_u32 v1, s%d, v28" % sOFF)
        e("v_mul_u32_u24 v1, 9216, v1")
        e("v_and_b32 v2, 2, v28")
        e("v_and_b32 v3, 7, v0")
        e("v_xor_b32 v2, v2, v3")
        e("v_lshl_add_u32 v1, v2, 4, v1")
        e("v_xor_b32 v2, 64, v1")
        e("v_add_u32 v2, %d, v2" % (8 * 9216 - 1024))
        e("v_add_u32 v3, %d, v1" % (2 * (8 * 9216 - 1024)))
        e("v_add_u32 v4, %d, v2" % (2 * (8 * 9216 - 1024)))
        pipe.refill(); pipe.flush()
    vset = ["v_lshrrev_b32 v28, 3, v0", "s_lshl_b32 s96, s%d, 5" % sW, "v_add_u32 v5, s96, v28", "v_mul_u32_u24 v5, 1152, v5",
            "v_lshlrev_b32 v6, 1, v22", "v_and_b32 v7, 7, v0", "v_xor_b32 v6, v6, v7", "v_lshl_add_u32 v5, v6, 4, v5",
            "v_lshrrev_b32 v28, 2, v0", "v_add_u32 v25, s96, v28", "v_mul_u32_u24 v25, 1152, v25", "v_and_b32 v6, 3, v6", "v_lshl_add_u32 v25, v6, 4, v25"]
    vset += ["v_add_u32 v%d, %d, v5" % (5 + i, i * (8 * 1152 - 1024)) for i in range(1, 4)]
    vset += ["v_lshlrev_b32 v%d, 4, v0" % VST, "v_lshlrev_b32 v27, 9, v22", "v_add_u32 v28, s%d, v0" % sW, "v_cmp_eq_u32 vcc, 0, v28",
             "v_mov_b32 v24, 0x%x" % OOB, "v_mov_b32 v28, 0", "v_cndmask_b32 v24, v24, v28, vcc"]
    vset += ["v_mul_u32_u24 v28, 5462, v0", "v_lshrrev_b32 v28, 16, v28", "v_mul_u32_u24 v26, 12, v28", "v_sub_u32 v26, v0, v26",
             "s_mul_i32 s96, s%d, 12" % sW, "s_and_b32 s95, s%d, 7" % sR, "s_mul_i32 s95, s95, 48", "s_add_u32 s96, s96, s95",
             "v_add_u32 v26, s96, v26", "v_mul_u32_u24 v26, 1152, v26", "v_lshl_add_u32 v26, v28, 7, v26",
             "s_cmp_ge_u32 s96, 144", "s_cselect_b32 s%d, 0x%x, s%d" % (sWT, OOB, sWT),
             "s_and_b32 s96, s%d, 1" % sW, "s_mul_i32 s96, s96, 36", "s_and_b32 s95, s%d, 7" % sR, "s_mul_i32 s95, s95, 72", "s_add_u32 s96, s96, s95",
             "v_add_u32 v29, s96, v0", "v_mul_u32_u24 v29, 9216, v29",
             "v_cmp_gt_u32 vcc, 36, v0", "v_mov_b32 v28, 0x%x" % OOB, "s_nop 0", "v_cndmask_b32 v26, v28, v26, vcc", "v_cndmask_b32 v29, v28, v29, vcc"]
    sp = []
    NSP = opt.get("nsp", 0)
    if NSP:
        e("s_and_b32 s6, s%d, 7" % sR); e("s_lshl_b32 s6, s6, 1"); e("s_and_b32 s7, s%d, 1" % sW); e("s_add_u32 s6, s6, s7")
        e("s_mul_i32 s6, s6, %d" % (NSP * 9216)); e("s_add_u32 s6, s6, s%d" % sB1); e("s_add_u32 s6, s6, %d" % (opt.get("sp0", 64) * 9216))
        e("s_add_u32 s90, s%d, s6" % sT); e("s_addc_u32 s91, s%d, 0" % sT2)
        sp = ["s_load_dword s92, s[90:91], 0x%x" % (i * 9216 + h * 64) for i in range(NSP) for h in range(2)]
    prologue(g, pipe, early=early, afterbar=(lambda: [e(t) for t in touch1(0) + (touch1(1) if not opt.get('t1pos', 70) else [])]) if TOUCH else None, nfirst=opt.get('nfirst', 8),
             fill=sp + group_scc(late_setup() + vset + tr_bases(g, B1, 8)))
    def epi1(rho):
        acc = ACC[rho & 1]; ops = []; sts = ["s_add_u32 s%d, s%d, %d" % (sT2, sHX, rho * 4096)]
        for t in range(4):
            for tt in range(2):
                gt = acc + ((t * 2) * 2 + tt) * 4; up = acc + ((t * 2 + 1) * 2 + tt) * 4
                u = 2 * rho + t // 2
                h = H + (u * 2 + tt) * 4 + (t & 1) * 2
                for k in range(2):
                    for i in (2 * k, 2 * k + 1): ops.append("v_max_f32 v%d, 0, v%d" % (gt + i, gt + i))
                    for i in (2 * k, 2 * k + 1): ops.append("v_mul_f32 v%d, v%d, v%d" % (gt + i, gt + i, up + i))
                    ops.append("v_cvt_pk_bf16_f32 v%d, v%d, v%d" % (h + k, gt + 2 * k, gt + 2 * k + 1))
                if t & 1:
                    sts.append(("buffer_store_dwordx4 %s, v%d, s[%d:%d], s%d offen offset:%d sc1" % (hreg(0, u, tt), VST, SWS, SWS + 3, sT2, ((u & 1) * 2 + tt) * 1024), ("hst", rho)))
        return ops, sts
    def hloads(b, q):
        ops = []
        for u in (range(5) if b == 3 else Q(q)):
            if u % 2 == 0: ops.append("s_add_u32 s%d, s%d, %d" % (sT, sOX if b == 3 else sHX + b, u * 2048))
            for tt in range(2):
                ops.append(("buffer_load_dwordx4 %s, v%d, s[%d:%d], s%d offen offset:%d sc1" % (hreg(b, u, tt), VST, SWS, SWS + 3, sT, ((u & 1) * 2 + tt) * 1024), ("h", b, q)))
        return ops
    extra = {}; urgent = {}
    add = lambda k, l: extra.setdefault(k, []).extend(l)
    addu = lambda k, l: urgent.setdefault(k, []).extend(l)
    EP = opt.get("epiw", 75)
    for rho in range(5):
        spread(sum(epi1(rho), []) + [Mark("epi%d" % rho)], 144 * (rho + 1) + 3, 144 * (rho + 1) + EP, extra)
    P2 = start[S2]
    hb = ["v_bfe_u32 v144, v0, 2, 4", "v_lshlrev_b32 v144, 6, v144", "v_bfe_u32 v145, v0, 4, 1", "v_lshl_add_u32 v144, v145, 5, v144",
          "v_and_b32 v145, 3, v0", "v_lshl_add_u32 v144, v145, 3, v144", "v_xor_b32 v145, 32, v144"]
    hb += ["v_add_u32 v%d, 0x%x, v%d" % (BH + 2 * k + t, k << 16, BH + t) for k in (1, 2) for t in range(2)]
    hb += ["v_lshrrev_b32 v2, 5, v0", "v_bfe_u32 v3, v0, 3, 2", "v_lshl_add_u32 v2, v2, 4, v3", "v_mul_u32_u24 v4, 1152, v2",
           "v_bfe_u32 v2, v0, 4, 2", "v_lshlrev_b32 v2, 1, v2", "v_and_b32 v3, 7, v0", "v_xor_b32 v2, v2, v3", "v_lshl_add_u32 v4, v2, 4, v4",
           "v_add_u32 v1, 256, v4", "s_sub_u32 s96, s%d, s%d" % (sKO, sKB), "v_add_u32 v2, s96, v4",
           "s_sub_u32 s96, s%d, s%d" % (sKS, sKB), "s_and_b32 s95, s96, 64", "v_xor_b32 v3, s95, v4", "s_and_b32 s96, s96, 128", "v_add_u32 v3, s96, v3"]
    add(P2 + 3, [Dens(1)] + epi1(5)[0] + [Mark("epi5"), Dens(0)] + epi1(5)[1] + hb + [Mark("hb")])
    pauses = [(0, opt.get('p0', 0))]
    if TOUCH:
        T = [touch1(2), touch1(3), touch1(4), touch1(5), touch2(0), touch2(1), touch2(2), touch2(3)]
        for n, (k, ops) in enumerate(zip(opt.get("tpos", [70, 148, 292, 436, 510, 690, 760, 760]), T)):
            addu(k, ops); pauses.append((k, k + opt.get("pl", [40] * 8)[n]))
    if opt.get("t1pos", 70): addu(opt.get("t1pos", 70), touch1(1))
    add(150, ["s_lshl_b32 s60, s%d, 3" % sI, "s_and_b32 s96, s%d, 7" % sR, "s_add_u32 s60, s60, s96", "s_lshl_b32 s60, s60, 2", "s_add_u32 s60, s60, s%d" % sW,
              "s_mul_i32 s60, s60, 4608", "s_mul_i32 s96, s%d, %d" % (sJ, 1152 * 1152), "s_add_u32 s60, s60, s96",
              "v_min_u32 v30, 35, v0", "v_lshlrev_b32 v30, 7, v30"])
    if opt.get("cpf", 6144):
        e("s_lshr_b32 s101, s2, 3"); e("s_sub_u32 s101, s101, 8"); e("s_lshl_b32 s101, s101, 2"); e("s_add_u32 s101, s101, s%d" % sW)
        e("s_lshl_b32 s101, s101, 6"); e("s_add_u32 s101, s101, %d" % opt.get("cpf", 9216))
        for k in range(opt.get('cp0', 20), start[-1], opt.get('cpp', 125)): addu(k, [code_pf()])
    add(1, xc_copies() + [Mark("xc"), "v_add_u32 v22, %d, v25" % (16 * 1152 - 1024)])
    add(144 + 90, flag_lane_offsets(23, 28) + [Mark("flo")])
    addu(288 + 100, [lambda: flag_issue(g, 28, 23, None)])
    groups = list(range(0, SL, 2)) + [SL + k for k in opt.get('eg', EG)]
    for a, b in opt.get("bw", []): groups += [n for n in range(SL) if a <= start[n] < b]
    groups = sorted(set(groups))
    bar = lambda n: start[n] - pipe.D - 1
    hooks = {}
    def before(n, f):
        assert n in groups, n
        hooks.setdefault(n, []).append(f); stages[n].before = lambda n=n: [f() for f in hooks[n]]
    before(26, lambda: flag_check(g, 28, 23, None, 0))
    FLD = opt.get('fld', 50); CMB = opt.get('cmb', 0)
    HS = opt.get("hs", [[30, 36], [46, 52], [S2 + 8, S2 + 14]])
    for q, (ns, nc) in enumerate(HS):
        before(ns, lambda q=q: g.wait_vm(("hst", 2 * q + 1)))
        stages[ns].after = lambda q=q: signal(g, 28, 24, 63, 16 * q)
        addu(bar(nc) - FLD, [lambda: flag_issue(g, 28, 23, sCNT)])
        before(nc, lambda q=q: flag_check(g, 28, 23, sCNT, (0x7 << (4 * q)) | (0x1000 if q == 2 and CMB else 0)))
    HW = opt.get("hw", [100, 100, 20])
    HP = opt.get("hp", [0, 0, 0])
    for q in range(3):
        spread(hloads(1, q), bar(HS[q][1]) + 1, bar(HS[q][1]) + 1 + HW[q], urgent); pauses.append((bar(HS[q][1]) + 1, bar(HS[q][1]) + 1 + HP[q]))
    assert bar(HS[1][1]) + 1 + HW[1] <= P2 + opt.get("h2pos", 100)
    spread(hloads(2, 0) + hloads(2, 1), P2 + opt.get("h2pos", 100), P2 + opt.get('h2pos', 100) + 60, urgent)
    def to_g2():
        for k in range(12): e("v_sub_u32 v%d, v%d, v27" % (B1 + k, B1 + k))
    stages[S2].after = to_g2
    for bq in BQ[3:]: before(first[bq], lambda bq=bq: g.wait_vm(("h",) + bq))
    spread(hloads(2, 2), bar(SL) - opt.get('h22', 10), bar(SL) - opt.get('h22', 10) + 10, urgent)
    sFL, sFW, sPL, sCOL, sRS, sMSK, sP1, sCK = 64, 65, 66, 67, 68, 69, 72, 75
    a2 = Asm(); srd(a2, SW1, 61, 62, PSZ)
    fin = [l.strip() for l in a2.lines]
    fin += ["s_mul_i32 s95, s%d, 3" % sR, "s_add_u32 s95, s95, s%d" % sI, "s_lshl_b32 s%d, s95, 7" % sFL, "s_add_u32 s%d, s%d, 0x%x" % (sFL, sFL, WS_FLG + 72 * 128),
           "s_lshl_b32 s%d, s%d, 2" % (sFW, sJ), "s_add_u32 s%d, s%d, s%d" % (sFW, sFW, sFL),
           "s_lshr_b32 s95, s%d, 1" % sJ, "s_lshl_b32 s96, s95, 11", "s_add_u32 s%d, s%d, s96" % (sPL, sB2), "s_add_u32 s%d, s%d, 8192" % (sPL, sPL),
           "s_and_b32 s96, s%d, 1" % sJ, "s_lshl_b32 s76, s96, 7", "s_add_u32 s%d, s%d, s76" % (sPL, sPL),
           "s_lshl_b32 s95, s95, 12", "s_lshl_b32 s96, s96, 10", "s_add_u32 s95, s95, s96", "s_add_u32 s76, s95, s%d" % sB2]
    for k in range(3):
        fin += ["s_add_u32 s96, s%d, %d" % (sJ, k + 1), "s_and_b32 s96, s96, 3", "s_mul_i32 s96, s96, %d" % PSZ, "s_add_u32 s%d, s76, s96" % (sP1 + k)]
    fin += ["v_and_b32 v150, 0x37, v0", "v_lshlrev_b32 v150, 4, v150", "v_bfe_u32 v155, v0, 3, 1", "v_lshl_add_u32 v150, v155, 10, v150",
            "s_mul_i32 s%d, s%d, 384" % (sCOL, sI), "s_add_u32 s%d, s%d, s4" % (sCOL, sCOL), "s_lshl_b32 s96, s%d, 6" % sJ, "s_add_u32 s%d, s%d, s96" % (sCK, sCOL),
            "s_add_u32 s77, s%d, %d" % (sCK, 16 * 1152),
            "v_bfe_u32 v156, v0, 4, 1", "v_lshlrev_b32 v156, 5, v156", "v_lshrrev_b32 v157, 5, v0", "v_lshl_add_u32 v156, v157, 4, v156",
            "s_lshl_b32 s95, s%d, 3" % sJ, "v_and_b32 v151, 7, v0", "v_add_u32 v151, s95, v151", "v_lshlrev_b32 v153, 2, v151",
            "v_mul_u32_u24 v151, 1152, v151", "v_lshl_add_u32 v151, v155, 6, v151", "v_add_u32 v151, v151, v156",
            "v_and_b32 v152, 15, v0", "v_lshlrev_b32 v154, 2, v152", "v_mul_u32_u24 v152, 1152, v152", "v_add_u32 v152, v152, v156",
            "s_lshl_b32 s96, s%d, 2" % sR, "s_add_u32 s96, s96, s%d" % sJ, "s_lshl_b32 s96, s96, 2", "s_add_u32 s96, s96, s%d" % sW,
            "s_lshl_b32 s%d, s96, 7" % sRS, "s_add_u32 s%d, s%d, 0x%x" % (sRS, sRS, WS_RS2),
            "s_mov_b32 s70, 0x3f80", "s_mov_b32 s71, 0x3f800000"]
    add(P2 + 150, fin + [Mark("fin")])
    XL = [(32, 152, sCK, 0), (36, 152, 77, 0), (40, 151, sCOL, 256)]
    RL = [(155, 154, 0), (156, 154, 64), (157, 153, 0)]
    nO = SO - 2 - opt.get('oearly', 0)
    if not CMB:
        addu(bar(nO) - opt.get('old', 30), [lambda: flag_issue(g, 28, 23, sCNT)])
        before(nO, lambda: flag_check(g, 28, 23, sCNT, 0x1000))
    spread(hloads(3, 0) + ["buffer_load_dword v%d, v%d, s[%d:%d], s%d offen offset:%d sc1" % (d, v, SWS, SWS + 3, sRS, im) for d, v, im in RL], bar(nO) + opt.get('o0', 1), bar(nO) + opt.get('o1', 5), urgent)
    before(SO, lambda: g.wait_vm(("h", 3, 0)))
    add(start[ST2] + 3, store_ops(g, A2, PK, 2, VST))
    add(start[STO] + 3, store_ops(g, AO, PK, 0, VST, sSO))
    add(start[SK] + 3, [Dens(1)] + store_ops(g, AS, PK, 0, VST, sSS, 2, "pst") + [Mark("pst"), Dens(0)] + ["v_mov_b32 v%d, 0" % (96 + i) for i in range(8)] +
        [("buffer_load_dwordx4 %s, v%d, s[%d:%d], s%d offen offset:%d" % (vr(d, 4), v, SX, SX + 3, so, im), "fx") for d, v, so, im in XL])
    INS = opt.get("insig", 1); SG = SK + opt.get('sg', 3); FI = opt.get('fi', 0)
    if FI: addu(start[-1] - FI, [lambda: flag_issue(g, 28, 23, sFL)])
    if INS:
        before(SG, lambda: g.wait_vm("pst")); stages[SG].after = lambda: signal(g, 28, 24, sFW, 0)
    if opt.get("ts") or opt.get("amp") is not None:
        for k in ([720] + list(range(720 + 48, start[-1], 32)) if opt.get('fine2') else (144, 288, 432, 576, 720, P2, P2 + 144, P2 + 288, start[SK])): addu(k, [g.stamp])
    pipe.run(0, len(stages), extra, pauses=pauses, groups=groups, urgent=urgent, vsp=opt.get('vsp', 0))
    w = pipe.when
    if opt.get("verbose"): print(w, "P2", P2, "SK", start[SK], "end", start[-1], "barK", bar(SK + 4))
    assert w["xc"] < 142 and w["flo"] < 288 + 100 and all(w["epi%d" % r] < 144 * (r + 2) - 1 for r in range(5)), w
    assert w["epi5"] < start[first[(0, 2)]] + 7 and w["hb"] < bar(SH0) and w["fin"] < bar(nO) - 1 and w["pst"] < bar(SG), w
    g.stamp()
    if not INS:
        e("s_waitcnt vmcnt(0)"); e("s_barrier"); signal(g, 28, 24, sFW, 0)
    flag_check(g, 28, 23, sFL, 0xf, issued=bool(FI), sleep=1)
    e("s_barrier")
    g.stamp()
    UA = [(AK, AK + 8), (AK + 4, AK + 12), (96, 100)]
    lds = []
    regs = list(range(48, 96, 4))
    for p in range(4):
        if p < 3:
            for tt in range(2):
                d = regs.pop(0); lds.append((d, tt))
                e("buffer_load_dwordx4 %s, v%d, s[%d:%d], s%d offen offset:%d sc1" % (vr(d, 4), VST, SWS, SWS + 3, sP1 + p, tt * 2048), ("pl", len(lds)))
        if p: e("s_add_u32 s%d, s%d, %d" % (sPL, sPL, PSZ))
        d = regs.pop(0); lds.append((d, 2))
        e("buffer_load_dwordx4 %s, v150, s[%d:%d], s%d offen sc1" % (vr(d, 4), SWS, SWS + 3, sPL), ("pl", len(lds)))
    g.wait_vm("fx")
    for k in range(12):
        e("v_lshlrev_b32 v%d, 16, v%d" % (160 + 2 * k, 32 + k))
        e("v_and_b32 v%d, 0xffff0000, v%d" % (161 + 2 * k, 32 + k))
    for n, (d, u) in enumerate(lds):
        if n % 3 == 0: g.wait_vm(("pl", min(n + 3, len(lds))))
        for i in range(4):
            a0 = UA[u][i // 2] + 2 * (i % 2)
            e("v_dot2c_f32_bf16 v%d, s70, v%d" % (a0, d + i))
            e("v_dot2c_f32_bf16 v%d, s71, v%d" % (a0 + 1, d + i))
    e("s_nop 2")
    for u in range(3):
        for i in range(4): e("v_permlane16_swap_b32 v%d, v%d" % (UA[u][0] + i, UA[u][1] + i))
        for i in range(4):
            a0 = UA[u][i // 2] + 2 * (i % 2); x = 160 + 8 * u + 2 * i
            e("v_fmac_f32 v%d, v%d, v%d" % (x, a0, 155 + u))
            e("v_fmac_f32 v%d, v%d, v%d" % (x + 1, a0 + 1, 155 + u))
            e("v_cvt_pk_bf16_f32 v%d, v%d, v%d" % (184 + 4 * u + i, x, x + 1))
        e("buffer_store_dwordx4 %s, v%d, s[%d:%d], s%d offen offset:%d %s" % (vr(184 + 4 * u, 4), XL[u][1], SW1, SW1 + 3, XL[u][2], XL[u][3], opt.get("oflags", "sc1")))
    if opt.get("ts") or opt.get("amp") is not None:
        e("s_waitcnt vmcnt(0)"); g.stamp()

def k1(g):
    e, opt = g.e, g.opt
    kernel_head(g, K1)
    e("s_load_dwordx2 s[%d:%d], s[0:1], 0" % (SX, SX + 1))
    e("s_lshr_b32 s3, s2, 8")
    e("s_cbranch_scc1 L_k1_end")
    sh = opt.get("vsh", 2)
    e("s_getpc_b64 s[84:85]")
    e("s_bitcmp1_b32 s2, 3")
    e("s_cselect_b32 s3, L_att-%s, 0" % K1)
    e("s_lshr_b32 s4, s2, 4")
    e("s_lshl_b32 s4, s4, %d" % (8 + sh))
    e("s_add_u32 s3, s3, s4")
    e("v_lshrrev_b32 v1, 6, v0")
    e("v_lshl_add_u32 v2, v0, %d, s3" % sh)
    e("global_load_dword v255, v2, s[84:85]")
    e("v_readfirstlane_b32 s%d, v1" % sW)
    e("v_and_b32 v0, 63, v0")
    e("v_lshrrev_b32 v104, 3, v0")
    e("v_lshrrev_b32 v22, 4, v0")
    e("v_mul_u32_u24 v104, 1152, v104")
    e("v_and_b32 v105, 7, v0")
    e("v_xor_b32 v105, v105, v22")
    e("v_lshl_add_u32 v104, v105, 4, v104")
    e("s_and_b32 s6, s2, 64")
    e("v_xor_b32 v104, s6, v104")
    e("s_bfe_u32 s%d, s2, 0x30003" % sT)
    e("s_and_b32 s%d, s2, 1" % sR)
    e("s_lshl3_add_u32 s%d, s%d, s%d" % (sR, sR, sT))
    e("s_lshr_b32 s60, s2, 6")
    e("s_lshl2_add_u32 s6, s%d, s60" % sW)
    e("s_lshl4_add_u32 s7, s%d, s6" % sR)
    e("s_mulk_i32 s6, 9216")
    e("s_mulk_i32 s7, 9216")
    e("s_mov_b32 m0, s6")
    e("s_mov_b32 s5, 9")
    e("s_mov_b32 s%d, 0x%x" % (SX + 2, PSZ))
    e("s_mov_b32 s%d, 0x20000" % (SX + 3))
    e("s_waitcnt lgkmcnt(0)")
    rest = ["s_load_dwordx8 s[64:71], s[0:1], 0", "s_load_dwordx4 s[72:75], s[0:1], 40", "s_load_dwordx4 s[76:79], s[0:1], 56", "s_load_dwordx4 s[80:83], s[0:1], 72"]
    if opt.get("ts") or opt.get("amp") is not None:
        for t in rest: e(t)
        rest = []
        e("s_waitcnt lgkmcnt(0)")
        e("s_lshl_b32 s94, s2, 2"); e("s_add_u32 s94, s94, s%d" % sW); e("s_lshl_b32 s94, s94, 8"); e("s_add_u32 s94, s94, 0x%x" % WS_TS)
        srd(g, SWS, 82, 83, WS_BYTES); srd(g, SDBG, 80, 81, 256); g.stamp()
    if opt.get("xloop", 0):
        g.label("L_x0")
        x_dma(g, 0, 0)
        g.vm += [("x", j) for j in range(1, 9)]
        e("s_addk_i32 m0, 1024"); e("s_addk_i32 s7, 128"); e("s_addk_i32 s5, -1"); e("s_cmp_lg_u32 s5, 0"); e("s_cbranch_scc1 L_x0")
    else:
        for j in range(9): x_dma(g, 0, j)
    for t in rest: e(t)
    e("v_xor_b32 v105, 64, v104")
    e("v_and_b32 v23, 15, v0")
    e("s_lshl2_add_u32 s4, s%d, s%d" % (sR, sW))
    e("s_mul_i32 s4, s4, 36864")
    e("s_mul_i32 s5, s%d, 36864" % sW)
    e("s_bfe_u32 s%d, s2, 0x20001" % sS)
    e("s_lshr_b32 s3, s2, 6")
    for o in range(1, opt.get("xcommon", 1)):
        for j in range(9): x_dma(g, o, j)
    e("s_waitcnt lgkmcnt(0)")
    wb = opt.get("wsbase", 0)
    if wb:
        e("s_add_u32 s82, s82, 0x%x" % wb); e("s_addc_u32 s83, s83, 0")
    srd(g, SWS, 82, 83, WS_BYTES - wb)
    srd(g, SDBG, 80, 81, 256)
    e("s_or_b32 s%d, s2, s%d" % (sT, sW))
    e("s_cbranch_scc1 L_nonce_done")
    e("s_memrealtime s[98:99]")
    e("s_waitcnt lgkmcnt(0)")
    e("v_mov_b32 v2, s98")
    e("v_or_b32 v2, 1, v2")
    Asm.e(g, "buffer_store_dword v2, off, s[%d:%d], 0 sc1" % (SDBG, SDBG + 3))
    g.label("L_nonce_done")
    if opt.get("perturb"):
        e("s_mul_i32 s98, s2, %d" % opt["perturb"]); e("s_add_u32 s98, s98, s%d" % sW); e("s_bfe_u32 s98, s98, 0x30002")
        e("s_mul_i32 s98, s98, s98")
        g.label("L_pert"); e("s_cmp_eq_u32 s98, 0"); e("s_cbranch_scc1 L_pertd"); e("s_sleep 20"); e("s_sub_u32 s98, s98, 1"); e("s_branch L_pert"); g.label("L_pertd")
    e("s_cmp_eq_u32 s3, 0")
    e("s_cbranch_scc1 %s" % ("L_k1_end" if opt.get("noatt") else "L_att"))
    sv = (list(g.vm), list(g.lg), g.nts)
    g.sv = 31
    ffn_role(g)
    g.sv = 30
    def amp(role):
        if opt.get("amp") is None or opt.get("amprole", "ffn") != role: return
        L = g.newlabel("L_amp")
        e("s_sub_u32 s101, s94, s100")
        e("s_add_u32 s101, s101, %d" % opt.get("ampadd", 0))
        if role == "ffn":
            e("s_memrealtime s[92:93]"); e("s_waitcnt lgkmcnt(0)"); e("s_mov_b32 s100, s92")
        g.label(L)
        e("s_sleep 1"); e("s_memrealtime s[92:93]"); e("s_waitcnt lgkmcnt(0)")
        e("s_sub_u32 s92, s92, s100"); e("s_cmp_lt_u32 s92, s101"); e("s_cbranch_scc1 %s" % L)
    amp("ffn")
    e("s_endpgm")
    g.vm, g.lg, g.nts = sv
    g.waited = set()
    g.raw(".p2align 6")
    g.label("L_att")
    import att
    att.att_role(g)
    amp("att")
    g.label("L_k1_end")
    e("s_endpgm")
    g.raw(".fill %d, 4, 0xbf810000" % (8192 if opt.get("vsh", 2) == 4 else 4096))

VOP3ONLY = ("v_mfma", "v_pk_", "v_fma_f32", "v_cvt_pk_bf16", "v_accvgpr_read", "v_accvgpr_write", "v_max3", "v_min3", "v_lshl_add", "v_add_lshl", "v_mad_u32",
            "v_bfe", "v_add3", "v_mul_lo", "v_mul_hi", "v_lshl_or", "v_and_or", "v_readlane", "v_perm_b32")
NOWIDE = ("v_readfirstlane", "v_permlane", "v_dot2c", "v_nop")
def has_lit(s):
    for t in re.split(r"[ ,]+", s)[1:]:
        if re.match(r"^-?(0x[0-9a-f]+|\d+)$", t):
            v = int(t, 0)
            if not (-16 <= v <= 64) and v not in (0x3f800000, 0x3f000000, 0x40000000, 0x40800000, 0xbf800000, 0xbf000000, 0xc0000000, 0xc0800000): return True
        if t.startswith("L_"): return not s.startswith(("s_cbranch", "s_branch"))
    return False
def isize(s):
    op = s.split()[0]
    if op.startswith(("ds_", "buffer_", "global_", "s_load", "s_mem")): return 8, False
    if op.startswith("s_"):
        if op.startswith(("s_waitcnt", "s_addk", "s_mulk", "s_nop", "s_barrier", "s_sleep", "s_endpgm", "s_cbranch", "s_branch", "s_setprio", "s_getreg")): return 4, False
        return (8 if has_lit(s) else 4), False
    if op.startswith(VOP3ONLY): return 8, False
    if has_lit(s): return 8, False
    ops = [x.strip() for x in re.split(r",(?![^\[]*\])", s.split(None, 1)[1])]
    if op.startswith("v_cmp") and ops[0] != "vcc": return 8, False
    if op.startswith("v_cndmask") and ops[-1] != "vcc": return 8, False
    if len(ops) >= 3 and not ops[2].startswith("v"): return 8, False
    return 4, not op.startswith(NOWIDE)
def align_pass(lines, minrun=4):
    ins = [l.strip() for l in lines]
    out = []; par = 0
    isins = lambda l: l and not l.endswith(":") and not l.startswith((".", ";"))
    n = len(ins)
    def nxt(i):
        i += 1
        while i < n and not isins(ins[i]):
            if ins[i].startswith(".p2align"): return None
            i += 1
        return i if i < n else None
    for i, l in enumerate(ins):
        if not isins(l):
            if l.startswith(".p2align"): par = 0
            out.append(l); continue
        sz, flex = isize(l)
        if sz == 8: out.append(l); continue
        if par == 1: out.append(l); par = 0; continue
        j = nxt(i)
        if j is None or isize(ins[j])[0] == 4: out.append(l); par = 1; continue
        if flex:
            op, rest = l.split(None, 1); out.append(op + "_e64 " + rest); continue
        run = 0
        while j is not None and isize(ins[j])[0] == 8 and run < minrun: run += 1; j = nxt(j)
        out.append(l)
        if run >= minrun and not l.startswith(("s_branch", "s_endpgm")): out.append("s_nop 0")
        else: par = 1
    return out

LABELS = {}
def resolve(lines):
    off = 0; LABELS.clear()
    for l in lines:
        l = l.strip()
        if l.endswith(":"): LABELS[l[:-1]] = off
        elif l.startswith(".p2align"):
            a = 1 << int(l.split()[1]); off = (off + a - 1) // a * a
        elif l and not l.startswith((".", ";")):
            off += 8 if l.split()[0].endswith("_e64") else isize(l)[0]
    end = LABELS["L_k1_end"]
    def f(m):
        span = 2048 if LABELS[m.group(1)] >= LABELS["L_att"] else 6144
        return "0x%x" % (min(LABELS[m.group(1)] + int(m.group(2)), end - span) & ~3)
    return [re.sub(r"@(\w+)\+(\d+)", f, l) if l.strip().startswith("s_load") else l for l in lines]

DOC = """; One launch, 256 workgroups of 4 waves (one per CU), generated by a script (straight-line software pipeline).
;  FFN : gate/up GEMM (weights by LDS-DMA ring + transposing LDS reads, 16x16x32 MFMA), h = relu(g)*u, h exchanged
;        partial sums exchanged between the 4 quads, out = x + sum / std^2.
"""
MACROS = """.macro MA d,a,b
v_mfma_f32_16x16x32_bf16 v[\\d:\\d+3], a[\\a:\\a+3], a[\\b:\\b+3], v[\\d:\\d+3]
.endm
.macro MV d,a,b
v_mfma_f32_16x16x32_bf16 v[\\d:\\d+3], a[\\a:\\a+3], v[\\b:\\b+3], v[\\d:\\d+3]
.endm
.macro RT d,b,o
ds_read_b64_tr_b16 a[\\d:\\d+1], v\\b offset:\\o
.endm
.macro WL n
s_waitcnt lgkmcnt(\\n)
.endm
.macro CV d,a,b
v_cvt_pk_bf16_f32 v\\d, v\\a, v\\b
.endm
"""
def compress(line):
    s = line.strip()
    m = re.match(r"v_mfma_f32_16x16x32_bf16 v\[(\d+):\d+\], a\[(\d+):\d+\], ([av])\[(\d+):\d+\], v\[(\d+):\d+\]$", s)
    if m and m.group(1) == m.group(5): return "M%s %s,%s,%s" % (m.group(3).upper(), m.group(1), m.group(2), m.group(4))
    m = re.match(r"ds_read_b64_tr_b16 a\[(\d+):\d+\], v(\d+) offset:(\d+)$", s)
    if m: return "RT %s,%s,%s" % m.groups()
    m = re.match(r"s_waitcnt lgkmcnt\((\d+)\)$", s)
    if m: return "WL %s" % m.group(1)
    m = re.match(r"v_cvt_pk_bf16_f32 v(\d+), v(\d+), v(\d+)$", s)
    if m: return "CV %s,%s,%s" % m.groups()
    return s

def gen(**opt):
    g = G(opt)
    k1(g)
    FUSE = 1
    errs = hazard.check(g.lines)
    if errs:
        print("\n".join(errs[:40])); raise SystemExit("hazards: %d" % len(errs))
    head = open("cdna_kernels/%s.s.ref" % BASE).read().split("; Override launch")[0] if not opt.get("nohead") else ""
    out = head
    if FUSE: out += "; @launch grid=(256,1,1) block=(256,1,1) lds=163840\n"
    else: out += "; @launch kernel=%s grid=(256,1,1) block=(256,1,1) lds=163840\n" % K1
    if not FUSE: out += "; @launch kernel=%s grid=(256,1,1) block=(576,1,1) lds=0\n" % K2
    out += '.amdgcn_target "amdgcn-amd-amdhsa--gfx950"\n' + DOC + '.text\n' + MACROS
    lines = align_pass(g.lines, opt.get("minrun", 4)) if opt.get("align", 1) else g.lines
    lines = resolve(lines)
    out += "\n".join(compress(l) for l in lines) + "\n"
    out += '.section .rodata,"a"\n' + kernel_desc(K1, 512, 256) + ("" if FUSE else kernel_desc(K2, 96, 96, 40))
    return out

if __name__ == "__main__":
    kw = json.loads(sys.argv[2]) if len(sys.argv) > 2 else {}
    open(sys.argv[1], "w").write(gen(**kw))
```

```python
import sys, re, json
from asmlib import *
import hazard
BASE = "parallel_sum__linear_kernel_hedgehog__glu_gated_reglu__prompt"
K1 = BASE + "_kernel"
K2 = "reduce_kernel"

PSZ = 2048 * 576 * 2
WS_HX = 0x1000000
WS_OX = 0x2200000
WS_RS2 = 0x2500000
WS_KVP = 0x2510000
WS_KVF = 0x2700000
WS_FLG = 0x2780000
WS_TS = 0x2800000
WS_BYTES = 0x10000000
SX, SW1, SW2, SWS, SDBG, SPHI = 8, 12, 16, 20, 24, 28
sW, sR, sS, sT, sOFF, sM0W, sB1, sB2, sST, sT2 = 32, 33, 34, 35, 36, 37, 38, 39, 40, 41
sCNT = 52
OOB = 0x40000000
RING = 144
NB = 8

class G(Asm):
    def __init__(self, opt):
        super().__init__()
        self.opt = opt
        self.vm = []
        self.lg = []
        self.nts = 0
        self.waited = set()
        self.sv = 30
    def e(self, s, tag=None):
        if s.startswith(("buffer_", "global_")):
            assert tag is None or tag in ("flag", "fill") or tag not in self.waited, ("op issued after its wait", tag)
            self.vm.append(tag)
        if s.startswith("ds_"): self.lg.append(tag)
        super().e(s)
    def vm_n(self, tag):
        idx = [i for i, t in enumerate(self.vm) if t == tag]
        assert idx, tag
        self.waited.add(tag)
        return len(self.vm) - 1 - idx[-1]
    def wait_vm(self, tag):
        n = min(self.vm_n(tag), 63)
        self.e("s_waitcnt vmcnt(%d)" % n)
    def wait_lg(self, tag):
        idx = [i for i, t in enumerate(self.lg) if t == tag]
        n = min(len(self.lg) - 1 - idx[-1], 15)
        self.e("s_waitcnt lgkmcnt(%d)" % n)
    def stamp(self):
        e = self.e
        if self.opt.get("amp") is not None:
            if self.nts in (0, self.opt["amp"]):
                e("s_memrealtime s[92:93]"); e("s_waitcnt lgkmcnt(0)")
                e("s_mov_b32 s%d, s92" % (100 if self.nts == 0 else 94))
            self.nts += 1
            return
        if not self.opt.get("ts"): return
        e("s_memtime s[90:91]"); e("s_memrealtime s[92:93]")
        e("s_waitcnt lgkmcnt(0)")
        if self.opt.get("dbgts") is not None:
            sel = self.opt.get("dbgsel", list(range(15)))
            if self.nts in sel:
                e("v_mov_b32 v30, s92")
                e("buffer_store_dword v30, off, s[%d:%d], s94 offset:%d" % (SDBG, SDBG + 3, 4 + 4 * sel.index(self.nts)))
            self.nts += 1
            return
        for k, sg in enumerate((90, 92)):
            e("v_mov_b32 v%d, s%d" % (self.sv, sg))
            e(("buffer_store_dword v%d, off" % self.sv) + ", s[%d:%d], s94 offset:%d" % (SWS, SWS + 3, 8 * self.nts + 4 * k))
        self.nts += 1

def mfma(d, a, b, c=None):
    return "v_mfma_f32_16x16x32_bf16 %s, %s, %s, %s" % (d, a, b, d if c is None else c)

class Stage:
    def __init__(self, lo, hi, pre, dmas, frags, gate=None):
        dmas = [d if isinstance(d, list) else [d] for d in dmas]
        dmas[0] = list(pre) + dmas[0]
        self.lo, self.hi, self.dmas, self.frags, self.gate = lo, hi, dmas, frags, gate
        self.before = None; self.after = None

class Pipe:
    def __init__(self, g, stages, D=6, BE=1):
        self.g, self.st, self.D, self.BE = g, stages, D, BE
        self.next = 0
        self.safe = -1
        self.q = []
        self.open = set()
        self.fi = 0
        self.done = -1
        self.qthr = g.opt.get("qthr", 3)
        self.when = {}
    def can(self, m):
        s = self.st[m]
        if s.gate is not None and s.gate not in self.open: return False
        return all(k <= self.safe for k in range(m) if self.st[k].lo < s.hi and s.lo < self.st[k].hi)
    def refill(self):
        while self.next < len(self.st) and self.can(self.next):
            for d in self.st[self.next].dmas: self.q.append([list(d), ("st", self.next)])
            self.next += 1
    def pop(self):
        if not self.q: return []
        t, tag = self.q.pop(0)
        return [(x, tag) for x in t]
    def flush(self):
        while self.q:
            for t, tag in self.pop(): self.g.e(t, tag)
    def enter(self, n, last, hook=None):
        g = self.g
        late = 0
        while any(tag[1] <= last for _, tag in self.q):
            late += 1
            for t, tg in self.pop(): g.e(t, tg)
        if late and n > 2: print("warning: %d DMA issued late for stage %d" % (late, n))
        assert self.next > last, (n, last)
        for k in range(n, last + 1):
            if self.st[k].before: self.st[k].before()
        if hook and hook.before: hook.before()
        g.wait_vm(("st", last)); g.e("s_barrier")
        if hook and hook.after: hook.after()
        for k in range(n, last + 1):
            if self.st[k].after: self.st[k].after()
        self.safe = max(self.safe, self.done)
        self.refill()
    def run(self, s0, s1, extra=None, pauses=(), groups=None, urgent=None, lagok=True, between=None, vsp=0):
        g, D = self.g, self.D
        WP = g.opt.get("wp", 4)
        pend = []; urg = []; urgent = urgent or {}; cur = [0]; dens = [0]
        extra = extra or {}
        fl = [(n, k, f) for n in range(s0, s1) for k, f in enumerate(self.st[n].frags)]
        if groups is None: groups = list(range(s0, s1, self.BE))
        gend = {a: (groups[i + 1] if i + 1 < len(groups) else s1) - 1 for i, a in enumerate(groups)}
        base = self.fi
        needbar = lambda j: j < len(fl) and fl[j][1] == 0 and fl[j][0] in gend
        def reads(j):
            buf = RING + 4 * ((base + j) % NB)
            for t in fl[j][2][0](buf): g.e(t, ("fr", base + j))
        def wl(i):
            w = min(i + WP - 1, len(fl) - 1)
            g.wait_lg(("fr", base + w))
            self.done = max(self.done, fl[w][0] if fl[w][1] == len(self.st[fl[w][0]].frags) - 1 else fl[w][0] - 1)
        def cost(it):
            if isinstance(it, (Mark, Dens)): return 0
            if isinstance(it, Hook): return 99
            if isinstance(it, Delay):
                if it.until is None: it.until = cur[0] + it.n
                return 0 if cur[0] >= it.until else 99
            if callable(it): return getattr(it, "cost", 2)
            if isinstance(it, list): return min(len(it), 2)
            t = it[0] if isinstance(it, tuple) else it
            return 2 if t.startswith(("buffer_", "global_", "v_mfma", "v_exp", "v_rcp")) else 1
        def emit(it, i):
            if isinstance(it, Mark): self.when[it.name] = i
            elif isinstance(it, Dens): dens[0] = it.n
            elif isinstance(it, Delay):
                if i >= len(fl): g.e("s_nop 7")
            elif isinstance(it, Hook):
                if it.before: it.before()
                g.e("s_barrier")
                if it.after: it.after()
            elif callable(it): it()
            elif isinstance(it, list):
                for x in it: g.e(x)
            elif isinstance(it, tuple): g.e(it[0], it[1])
            else: g.e(it)
        for j in range(min(D, len(fl))):
            if needbar(j): self.enter(fl[j][0], gend[fl[j][0]])
            reads(j)
        if needbar(D): self.enter(fl[D][0], gend[fl[D][0]])
        if between: between()
        wl(0)
        since = 9; lastvm = -9; VSP = vsp
        def isvm(it):
            t = it[0] if isinstance(it, tuple) else it
            return isinstance(t, str) and t.startswith("buffer_")
        for i, (n, k, f) in enumerate(fl):
            ms = f[1](RING + 4 * ((base + i) % NB))
            g.e(ms[0])
            if i + D < len(fl): reads(i + D)
            g.e(ms[1])
            pend += [(i, x) for x in extra.get(i, [])]; urg += urgent.get(i, [])
            since += 1; cur[0] = i
            wdue = (i + 1) % WP == 0 and i + 1 < len(fl)
            if needbar(i + 1 + D):
                if wdue: wl(i + 1)
                hook = pend.pop(0)[1] if pend and isinstance(pend[0][1], Hook) else None
                self.enter(fl[i + 1 + D][0], gend[fl[i + 1 + D][0]], hook)
                continue
            paused = any(a <= i < b for a, b in pauses)
            nvm = len(g.vm)
            vok = i - lastvm >= VSP
            if urg and not wdue and (vok or not isvm(urg[0])):
                slots = 2
                while urg and cost(urg[0]) <= slots and (vok or not isvm(urg[0])):
                    it = urg.pop(0); slots -= cost(it); emit(it, i)
                if len(g.vm) > nvm: lastvm = i
                continue
            used = False
            if self.q and len(self.q[0][0]) > 1:
                if wdue: wl(i + 1)
                while len(self.q[0][0]) > 1: g.e(self.q[0][0].pop(0))
                used = True
            elif self.q and not wdue and not paused and vok and not (VSP and pend and isvm(pend[0][1])) and since >= (2 if len(self.q) > self.qthr and not any(b <= i < b + g.opt.get("slow", 0) for a, b in pauses if b > a) else self.g.opt.get("dcad", 3)):
                it = self.q.pop(0); g.e(it[0][0], it[1]); since = 0; lastvm = i; vok = VSP == 0
                used = True
            if used and not dens[0]: continue
            slots = 0 if used else 2
            if wdue and not used: wl(i + 1); slots = 1
            if dens[0]: slots += dens[0]
            elif lagok and pend and i - pend[0][0] > g.opt.get("lag", 30): slots += 1
            while pend and cost(pend[0][1]) <= slots and (vok or not isvm(pend[0][1]) or dens[0] > 2):
                it = pend.pop(0)[1]; slots -= cost(it); emit(it, i)
                if isvm(it): lastvm = i; vok = VSP == 0
        for it in urg + [x[1] for x in pend]: emit(it, len(fl))
        self.fi = base + len(fl)
    def drained(self, upto):
        self.safe = max(self.safe, upto); self.refill()

class Mark:
    def __init__(self, name): self.name = name
class Hook:
    def __init__(self, before=None, after=None): self.before, self.after = before, after
class Delay:
    def __init__(self, n): self.n = n; self.until = None
class Dens:
    def __init__(self, n): self.n = n

def group_scc(ops):
    out = []
    for op in ops:
        if isinstance(op, str) and op.startswith("s_cselect"): out[-1] = [out[-1], op]
        else: out.append(op)
    return out

def spread(ops, lo, hi, extra):
    ops = group_scc(ops); n = hi - lo
    for k, op in enumerate(ops):
        extra.setdefault(lo + k * n // len(ops), []).append(op)

def lane_consts(g):
    e = g.e
    e("v_lshrrev_b32 v22, 4, v0")
    e("v_and_b32 v23, 15, v0")

def x_dma(g, o, j):
    e = g.e
    if j == 0:
        if o:
            e("s_add_u32 s6, s60, %d" % o)
            e("s_and_b32 s6, s6, 3")
            e("s_mulk_i32 s6, 9216")
            e("s_add_u32 m0, s5, s6")
            e("s_add_u32 s7, s4, s6")
    else:
        e("s_addk_i32 m0, 1024")
        e("s_addk_i32 s7, 128")
    e("buffer_load_dwordx4 v%d, s[%d:%d], s7 offen %s lds" % (104 + (o & 1), SX, SX + 3, g.opt.get("xflags", "")), ("x", j))

def prologue(g, pipe, XV=112, early=None, afterbar=None, fill=(), var=False, nfirst=8, mid=None, postc=None):
    e, opt = g.e, g.opt
    xf = opt.get("xflags", "")
    NC = opt.get("xcommon", 1)
    nf = 9 * (4 - NC)
    for o in range(NC, 4):
        for j in range(9):
            x_dma(g, o, j)
            k = (o - NC) * 9 + j
            if mid and o * 9 + j == mid[0]: mid[1]()
            for it in fill[k * len(fill) // nf:(k + 1) * len(fill) // nf]:
                for x in (it if isinstance(it, list) else [it]): e(x, "fill")
    if early: early()
    e("v_lshrrev_b32 v106, 3, v23")
    e("v_mul_u32_u24 v106, 9216, v106")
    e("v_and_b32 v107, 7, v23")
    e("v_lshl_add_u32 v106, v107, 7, v106")
    e("v_lshrrev_b32 v107, 1, v23")
    e("v_xor_b32 v107, v107, v22")
    e("v_lshl_add_u32 v106, v107, 4, v106")
    e("v_add_u32 v106, s5, v106")
    e("v_xor_b32 v107, 64, v106")
    for i in range(4): e("v_mov_b32 v%d, 0x3f803f80" % (80 + i))
    for i in (72, 73, 76, 77): e("v_mov_b32 v%d, 0" % i)
    e("v_lshrrev_b32 v108, 2, v23")
    e("v_cmp_eq_u32 vcc, v108, v22")
    e("v_and_b32 v108, 1, v23")
    e("v_lshlrev_b32 v108, 4, v108")
    e("v_mov_b32 v78, 0x3f80")
    e("v_lshlrev_b32 v78, v108, v78")
    e("v_cndmask_b32 v78, 0, v78, vcc")
    e("v_and_b32 v108, 2, v23")
    e("v_cmp_eq_u32 vcc, 0, v108")
    e("s_nop 1")
    e("v_cndmask_b32 v74, 0, v78, vcc")
    e("v_cndmask_b32 v75, v78, 0, vcc") if False else None
    e("v_sub_u32 v75, v78, v74")
    X = lambda tt, ks: XV + (ks * 2 + tt) * 4
    g.stamp()
    for j in range(10):
        if j < 9:
            g.wait_vm(("x", j))
            for ks in (2 * j, 2 * j + 1):
                for tt in range(2):
                    e("ds_read_b128 %s, v%d offset:%d" % (vr(X(tt, ks), 4), 106 + (ks & 1), tt * 18432 + j * 1024), ("xr", j))
        if j > 0:
            g.wait_lg(("xr", j - 1))
            for ks in (2 * j - 2, 2 * j - 1):
                for tt in range(2):
                    e(mfma(vr(64 + 4 * tt, 4), vr(80, 4), vr(X(tt, ks), 4), "0" if ks == 0 else None))
    e("s_barrier")
    g.stamp()
    pipe.open.add("x"); pipe.refill()
    for _ in range(nfirst):
        for t, tag in pipe.pop(): e(t, tag)
    if afterbar: afterbar()
    e("s_nop 3")
    e("s_mov_b32 s%d, 0x%08x" % (sT, 0xbae38e39))
    for tt in range(2): e("v_mul_f32 v%d, s%d, v%d" % (78 + tt, sT, 64 + 4 * tt))
    e("v_cvt_pk_bf16_f32 v108, v78, v79")
    for i in range(4): e("v_lshlrev_b32 v%d, 16, v108" % (64 + i))
    for i in range(4): e("v_and_b32 v%d, 0xffff0000, v108" % (68 + i))
    if var:
        for tt in range(2): e("v_sub_f32 v%d, v%d, v%d" % (14 + tt, 78 + tt, 64 + 4 * tt))
    else: e("s_nop 1")
    for _ in range(opt.get("delay", 0)): e("s_sleep 32")
    fr = [(tt, ks) for ks in range(18) for tt in range(2)]
    LAG = 2
    for k in range(len(fr) + LAG + 1):
        cv = []
        if LAG <= k < len(fr) + LAG:
            tt, ks = fr[k - LAG]; d = 32 + 8 * ((k - LAG) % 4); x = X(tt, ks)
            cv = ["v_cvt_pk_bf16_f32 v%d, v%d, v%d" % (x + i, d + 2 * i, d + 2 * i + 1) for i in range(4)]
        if k < len(fr):
            tt, ks = fr[k]; d = 32 + 8 * (k % 4)
            e(mfma(vr(d, 4), vr(74, 4), vr(X(tt, ks), 4), vr(64 + 4 * tt, 4)))
            if k == LAG: e("s_nop 3")
            for t in cv[:2]: e(t)
            e(mfma(vr(d + 4, 4), vr(72, 4), vr(X(tt, ks), 4), vr(64 + 4 * tt, 4)))
            for t in cv[2:]: e(t)
        else:
            e("s_nop 3")
            for t in cv: e(t)
        if var and k > LAG:
            tt, ks = fr[k - LAG - 1]; x = X(tt, ks)
            e(mfma(vr(96 + 4 * tt, 4), vr(x, 4), vr(x, 4), "0" if ks == 0 else None))
            for i in range(2): e("v_accvgpr_write_b32 a%d, v%d" % (x - XV + i, x + i))
    if postc: postc()
    g.stamp()

def XV0(tt, ks): return vr(112 + (ks * 2 + tt) * 4, 4)
def xc_copies(half=False): return ["v_accvgpr_write_b32 a%d, v%d" % (i, 112 + i) for i in range(144) if not half or i % 4 >= 2]
def XC(tt, ks): return ar((ks * 2 + tt) * 4, 4)

def tr_bases(g, dst, rowmul):
    e = g.e
    out = []
    out.append("v_bfe_u32 v28, v0, 2, 2")
    out.append("v_mad_u32_u24 v28, v22, %d, v28" % rowmul)
    out.append("v_lshlrev_b32 v%d, 7, v28" % dst)
    out.append("v_bfe_u32 v28, v0, 3, 2")
    out.append("v_lshl_add_u32 v%d, v28, 5, v%d" % (dst, dst))
    out.append("v_and_b32 v28, 3, v0")
    out.append("v_lshl_add_u32 v%d, v28, 3, v%d" % (dst, dst))
    for t in range(1, 4): out.append("v_xor_b32 v%d, %d, v%d" % (dst + t, 32 * t, dst))
    for grp in (1, 2):
        for t in range(4): out.append("v_add_u32 v%d, 0x%x, v%d" % (dst + 4 * grp + t, grp << 16, dst + t))
    return out

def tr_reads(bases, t, off, second):
    def f(buf):
        o2 = off + second
        assert (off >> 16) == (o2 >> 16)
        b = bases + 4 * (off >> 16) + t
        return ["ds_read_b64_tr_b16 %s, v%d offset:%d" % (ar(buf, 2), b, off & 0xffff),
                "ds_read_b64_tr_b16 %s, v%d offset:%d" % (ar(buf + 2, 2), b, o2 & 0xffff)]
    return f

def store_ops(g, acc, P, c, voff, sbase=None, ntile=4, tag=None):
    ops = ["s_add_u32 s%d, s%d, %d" % (sT2, sST if sbase is None else sbase, c * 4096)]
    for tt in range(2):
        for hf in range(ntile // 2):
            p = P + ((tt * (ntile // 2) + hf) % 2) * 4
            for k in range(2):
                s = acc + ((2 * hf + k) * 2 + tt) * 4
                ops.append("v_cvt_pk_bf16_f32 v%d, v%d, v%d" % (p + 2 * k, s, s + 1))
                ops.append("v_cvt_pk_bf16_f32 v%d, v%d, v%d" % (p + 2 * k + 1, s + 2, s + 3))
            ops.append(("buffer_store_dwordx4 %s, v%d, s[%d:%d], s%d offen offset:%d sc1" % (vr(p, 4), voff, SWS, SWS + 3, sT2, (tt * 2 + hf) * 1024), tag))
    return ops

sNON = 97
def flag_load(vreg, vfl, sline):
    if sline is None: return "buffer_load_dword v%d, v%d, s[%d:%d], 0 offen sc1" % (vreg, vfl, SDBG, SDBG + 3)
    return "buffer_load_dword v%d, v%d, s[%d:%d], s%d offen sc1" % (vreg, vfl, SWS, SWS + 3, sline)

def flag_issue(g, vreg, vfl, sline):
    g.e(flag_load(vreg, vfl, sline), "flag")

def flag_check(g, vreg, vfl, sline, mask, issued=True, sleep=4):
    if g.opt.get("nofl") and sline is not None: return
    e = g.e
    L = g.newlabel("L_poll"); Ld = g.newlabel("L_polld"); Lc = g.newlabel("L_pollc")
    e("s_cmp_lg_u32 s%d, 0" % sW)
    e("s_cbranch_scc1 %s" % Ld)
    e("s_mov_b32 s89, 0x20000")
    if issued:
        g.wait_vm("flag")
        e("s_branch %s" % Lc)
    g.label(L)
    Asm.e(g, flag_load(vreg, vfl, sline))
    e("s_waitcnt vmcnt(0)")
    g.label(Lc)
    if sline is None:
        e("v_readfirstlane_b32 s%d, v%d" % (sNON, vreg))
        e("s_sub_u32 s89, s89, 1")
        e("s_cmp_lg_u32 s%d, 0" % sNON)
    else:
        e("v_cmp_eq_u32 s[98:99], s%d, v%d" % (sNON, vreg))
        e("s_sub_u32 s89, s89, 1")
        m = mask if isinstance(mask, str) else "0x%x" % mask
        e("s_and_b32 s98, s98, %s" % m)
        e("s_cmp_eq_u32 s98, %s" % m)
    e("s_cbranch_scc1 %s" % Ld)
    e("s_sleep %d" % sleep)
    e("s_cmp_lg_u32 s89, 0")
    e("s_cbranch_scc1 %s" % L)
    g.label(Ld)

def flag_lane_offsets(vfl, vtmp):
    return ["s_lshl_b32 s96, s%d, 6" % sW, "v_add_u32 v%d, s96, v0" % vtmp, "v_cmp_gt_u32 vcc, 16, v%d" % vtmp, "v_lshlrev_b32 v%d, 2, v0" % vfl,
            "v_mov_b32 v%d, 0x%x" % (vtmp, OOB), "v_cndmask_b32 v%d, v%d, v%d, vcc" % (vfl, vtmp, vfl)]

def code_pf():
    return ["s_getpc_b64 s[6:7]", "s_load_dword s5, s[6:7], s101"]

def signal(g, vtmp, voff, sword, imm=0):
    g.e("v_mov_b32 v%d, s%d" % (vtmp, sNON))
    g.e("buffer_store_dword v%d, v%d, s[%d:%d], s%d offen offset:%d sc1" % (vtmp, voff, SWS, SWS + 3, sword, imm))

def ffn_role(g):
    e, opt = g.e, g.opt
    wf = opt.get("wflags", "")
    ACC = [32, 96]; H = 160; B1 = 9; PK = 128; VST = 21; BH = 144
    sI, sJ = 42, 43; sKB = 44; sHX = 47; sKO = 53; sKS = 56; sKK = 86; sM0H = 50; sSO = 51; sSS = 59; sWO = 78; sOX = 83; sM0B = 84; sWT = 85
    e("s_sub_u32 s%d, s3, 1" % sI)
    e("s_mov_b32 s%d, s%d" % (sJ, sS))
    e("s_mul_i32 s%d, s%d, 3" % (sS, sJ))
    e("s_add_u32 s%d, s%d, s%d" % (sS, sS, sI))
    e("s_cmp_ge_u32 s%d, 2" % sW)
    e("s_cselect_b32 s%d, s74, s72" % sT)
    e("s_cselect_b32 s%d, s75, s73" % sT2)
    srd(g, SW1, sT, sT2, 576 * 4608 * 2)
    e("s_lshl_b32 s%d, s%d, 12" % (sM0W, sW))
    e("s_mul_i32 s%d, s%d, 768" % (sB1, sS))
    def late_setup():
        o = []; sT = 95
        a = Asm(); srd(a, SW2, 76, 77, 4608 * 576 * 2); srd(a, SPHI, 70, 71, 576 * 576 * 2); a.e('s_mov_b32 s61, s78'); a.e('s_mov_b32 s62, s79')
        o += [l.strip() for l in a.lines]
        o += ["s_lshl_b32 s98, s%d, 6" % sJ, "s_and_b32 s99, s98, 128", "s_xor_b32 s99, s99, 128"]
        for b in range(3):
            o += ["s_add_u32 s%d, s%d, %d" % (sT, sI, b), "s_cmp_ge_u32 s%d, 3" % sT, "s_cselect_b32 s96, 3, 0", "s_sub_u32 s%d, s%d, s96" % (sT, sT),
                  "s_mul_i32 s96, s%d, 3" % sJ, "s_add_u32 s%d, s%d, s96" % (sT, sT),
                  "s_mul_i32 s%d, s%d, %d" % (sKB + b, sT, 384 * 1152), "s_mul_i32 s96, s%d, 384" % sI, "s_add_u32 s%d, s%d, s96" % (sKB + b, sKB + b),
                  "s_add_u32 s%d, s%d, s99" % (sKO + b, sKB + b), "s_add_u32 s%d, s%d, s98" % (sKK + b, sKB + b), "s_xor_b32 s%d, s%d, 64" % (sKS + b, sKK + b),
                  "s_mul_i32 s96, s%d, 12" % sR, "s_add_u32 s%d, s%d, s96" % (sT, sT), "s_lshl_b32 s%d, s%d, 2" % (sT, sT), "s_add_u32 s%d, s%d, s%d" % (sT, sT, sW),
                  "s_mul_i32 s%d, s%d, 24576" % (sHX + b, sT), "s_add_u32 s%d, s%d, 0x%x" % (sHX + b, sHX + b, WS_HX)]
        o += ["s_lshl_b32 s%d, s%d, 2" % (sT, sR), "s_add_u32 s%d, s%d, s%d" % (sT, sT, sJ), "s_lshl_b32 s%d, s%d, 7" % (sCNT, sT), "s_add_u32 s%d, s%d, 0x%x" % (sCNT, sCNT, WS_FLG),
              "s_lshl_b32 s63, s%d, 2" % sI, "s_add_u32 s63, s63, s%d" % sCNT]
        o += ["s_mul_i32 s%d, s%d, %d" % (sST, sJ, PSZ), "s_mul_i32 s%d, s%d, 12288" % (sB2, sI), "s_add_u32 s%d, s%d, s4" % (sB2, sB2),
              "s_add_u32 s%d, s%d, s%d" % (sST, sST, sB2), "s_lshl_b32 s%d, s%d, 11" % (sM0H, sW),
              "s_lshl_b32 s96, s99, 5", "s_add_u32 s%d, s%d, s96" % (sSO, sST),
              "s_xor_b32 s96, s96, 4096", "s_add_u32 s%d, s%d, s96" % (sSS, sST), "s_and_b32 s96, s98, 64", "s_xor_b32 s96, s96, 64",
              "s_lshl_b32 s96, s96, 4", "s_add_u32 s%d, s%d, s96" % (sSS, sSS)]
        o += ["s_lshl_b32 s95, s%d, 2" % sR, "s_add_u32 s95, s95, s%d" % sJ, "s_lshl_b32 s95, s95, 2", "s_add_u32 s95, s95, s%d" % sW,
              "s_mul_i32 s%d, s95, 10240" % sOX, "s_add_u32 s%d, s%d, 0x%x" % (sOX, sOX, WS_OX),
              "s_mul_i32 s%d, s%d, %d" % (sWT, sJ, 144 * 1152), "s_mul_i32 s96, s%d, 384" % sI, "s_add_u32 s%d, s%d, s96" % (sWT, sWT), "s_lshl_b32 s%d, s%d, 10" % (sM0B, sW)]
        for i in range(5):
            d = sWO + i
            o += (["s_lshl_b32 s95, s%d, 2" % sW, "s_add_u32 s95, s95, %d" % i] if i < 4 else ["s_add_u32 s95, s%d, 16" % sW])
            o += ["s_lshr_b32 s96, s95, 1", "s_lshl_b32 s%d, s96, 2" % d, "s_cmp_ge_u32 s96, 5", "s_cselect_b32 s96, 52, 0",
                  "s_add_u32 s%d, s%d, s96" % (d, d), "s_and_b32 s95, s95, 1", "s_mul_i32 s95, s95, 36",
                  "s_add_u32 s%d, s%d, s95" % (d, d), "s_mul_i32 s%d, s%d, 1152" % (d, d), "s_add_u32 s%d, s%d, s%d" % (d, d, sWT)]
        return o
    stages = []; start = [0]
    def slot(n): return ((n + 9) % 10) * 16384
    def push(st): stages.append(st); start.append(start[-1] + len(st.frags))
    for rho in range(6):
        acc = ACC[rho & 1]
        for st in range(9):
            n = len(stages); lo = slot(n)
            pre = ["s_add_u32 m0, s%d, %d" % (sM0W, lo), "s_add_u32 s%d, s%d, %d" % (sOFF, sB1, st * 64 * 9216 + rho * 128)]
            dmas = ["buffer_load_dwordx4 v%d, s[%d:%d], s%d offen offset:%d %s lds" % (1 + i, SW1, SW1 + 3, sOFF, i * 1024, wf) for i in range(4)]
            frags = []
            for kk in range(2):
                ks = 2 * st + kk
                for t in range(4):
                    for mat in range(2):
                        def mf(buf, ks=ks, t=t, mat=mat, acc=acc, XC=(XC if rho else XV0)):
                            order = (0, 1) if mat == 0 else (1, 0)
                            return [mfma(vr(acc + ((t * 2 + mat) * 2 + tt) * 4, 4), ar(buf, 4), XC(tt, ks), "0" if ks == 0 else None) for tt in order]
                        rdf = tr_reads(B1, t, lo + mat * 8192 + kk * 4096, 512)
                        if opt.get("halfrd"): rdf = (lambda buf, f=rdf: f(buf)[:1])
                        frags.append((rdf, mf))
            push(Stage(lo, lo + 16384, pre, dmas, frags, None if n == 0 else "x"))
    def hreg(b, u, tt):
        k = (u * 2 + tt) * 4
        if b == 0: return vr(H + k, 4)
        if b == 2: return ar(k, 4)
        if b == 1: return ar(176 + k, 4) if u < 8 else ar(96 + k - 64, 4)
        if u < 2: return ar(128 + k, 4)
        if u < 4: return ar(240 + k - 16, 4)
        return vr(136 + k - 32, 4)
    A2, AO, AS, AK = 32, 64, 96, 112
    def mk(acc, b, u, t, z):
        def mf(buf):
            order = (0, 1) if t % 2 == 0 else (1, 0)
            return [mfma(vr(acc + (t * 2 + tt) * 4, 4), ar(buf, 4), hreg(b, u, tt), "0" if z else None) for tt in order]
        return mf
    def full(b, q, acc):
        lo = slot(len(stages))
        sb, add = (sKB + b, 256) if acc == A2 else (sKO + b, 0)
        pre = ["s_add_u32 m0, s%d, %d" % (sM0W, lo), "s_add_u32 s%d, s%d, %d" % (sOFF, sb, q * 128 * 1152 + add)]
        dmas = ["buffer_load_dwordx4 v%d, s[%d:%d], s%d offen offset:%d %s lds" % (5 + i, SW2, SW2 + 3, sOFF, i * 1024, wf) for i in range(4)]
        frags = [(tr_reads(B1, t, lo + kk * 4096, 2048), mk(acc, b, 4 * q + kk, t, (b, q, kk) == (0, 0, 0))) for kk in range(4) for t in range(4)]
        push(Stage(lo, lo + 16384, pre, dmas, frags, "x"))
    def half(bqs, acc):
        lo = slot(len(stages)); dmas = []; frags = []
        for k, (b, q) in enumerate(bqs):
            p = lo + 8192 * k
            ld = ["buffer_load_dwordx4 v%d, s[%d:%d], s%d offen offset:%d %s lds" % ((25, 22)[i], SW2, SW2 + 3, sOFF, i * 1024, wf) for i in range(2)]
            dmas += [["s_add_u32 m0, s%d, %d" % (sM0H, p), "s_add_u32 s%d, s%d, %d" % (sOFF, (sKS if acc == AS else sKK) + b, q * 128 * 1152), ld[0]], [ld[1]]]
            for kk in range(4):
                for t in range(2):
                    off = p + kk * 2048
                    def rd(buf, off=off, t=t):
                        v = BH + 2 * (off >> 16) + t
                        return ["ds_read_b64_tr_b16 %s, v%d offset:%d" % (ar(buf, 2), v, off & 0xffff), "ds_read_b64_tr_b16 %s, v%d offset:%d" % (ar(buf + 2, 2), v, (off & 0xffff) + 1024)]
                    frags.append((rd, mk(acc, b, 4 * q + kk, t, acc == AS and (b, q, kk) == (0, 0, 0))))
        push(Stage(lo, lo + 16384, [], dmas, frags, "x"))
    def wo(us, acc):
        lo = slot(len(stages)); v = {A2: 1, AO: 2, AS: 3}[acc]
        sel = [(sM0W, lo + i * 1024, sWO + i) for i in range(4)] if len(us) == 4 else [(sM0B, lo, sWO + 4)]
        dmas = [["s_add_u32 m0, s%d, %d" % (m, o), "s_nop 0", "buffer_load_dwordx4 v%d, s[%d:%d], s%d offen %s lds" % (v, SPHI, SPHI + 3, so, wf)] for m, o, so in sel]
        frags = [(tr_reads(B1, t, lo + kk * 4096, 2048), mk(acc, 3, u, t, acc == AS and u == 0 and t >= 2)) for kk, u in enumerate(us) for t in range(4)]
        push(Stage(lo, lo + 16384, [], dmas, frags, "x"))
    Q = lambda q: list(range(4 * q, 4 * q + 4))
    BQ = [(0, 0), (0, 1), (0, 2), (1, 0), (1, 1), (2, 0), (2, 1), (1, 2), (2, 2)]
    first = {}
    S2 = len(stages)
    for n, bq in enumerate(BQ[:7]):
        first[bq] = len(stages)
        full(*bq, A2); full(*bq, AO)
        if n == 3: SH0 = len(stages); half(BQ[0:2], AS); half(BQ[2:4], AS)
        if n == 6: half(BQ[4:6], AS); half(BQ[6:7], AS)
    SL = len(stages); first[(1, 2)] = SL
    ORD = opt.get("ord", 1)
    if ORD == 0:
        first[(2, 2)] = SL + 1; SO = SL + 2; ST2, STO = SL + 4, SL + 8; EG = [0, 1, 2, 4, 6, 8, 11, 14]
        for acc in (A2, AO):
            full(1, 2, acc); full(2, 2, acc); wo(Q(0), acc); wo([4], acc)
        half(BQ[7:9], AS); wo(Q(0), AS); wo([4], AS)
    else:
        first[(2, 2)] = SL + 2; SO = SL + 4; ST2, STO = SL + 6, SL + 9; EG = [0, 2, 4, 7, 11, 14]
        full(1, 2, A2); full(1, 2, AO); full(2, 2, A2); full(2, 2, AO)
        wo(Q(0), A2); wo([4], A2); half(BQ[7:9], AS); wo(Q(0), AO); wo([4], AO); wo(Q(0), AS); wo([4], AS)
    SK = len(stages)
    for n in range(0, 9, 2): half(BQ[n:n + 2], AK)
    pipe = Pipe(g, stages, opt.get("D", 7), 2)
    TOUCH = opt.get("touch", 1); tf = opt.get("tflags", "")
    def touch1(rho): return ["buffer_load_dword v31, v29, s[%d:%d], s%d offen offset:%d %s" % (SW1, SW1 + 3, sB1, rho * 128, tf)]
    def touch2(b):
        if b == 3: return ["buffer_load_dword v31, v30, s[%d:%d], s%d offen %s" % (SPHI, SPHI + 3, sWT, tf)]
        if opt.get("t2c", 0):
            return [["s_add_u32 s3, s60, %d" % (b * 96 * 4608), "buffer_load_dword v31, v30, s[%d:%d], s3 offen %s" % (SW2, SW2 + 3, tf)]]
        return ["buffer_load_dword v31, v26, s[%d:%d], s%d offen %s" % (SW2, SW2 + 3, sKB + b, tf)]
    def early():
        e("v_lshrrev_b32 v28, 3, v0")
        e("s_and_b32 s%d, s%d, 1" % (sOFF, sW))
        e("s_lshl_b32 s%d, s%d, 5" % (sOFF, sOFF))
        e("v_add_u32 v1, s%d, v28" % sOFF)
        e("v_mul_u32_u24 v1, 9216, v1")
        e("v_and_b32 v2, 2, v28")
        e("v_and_b32 v3, 7, v0")
        e("v_xor_b32 v2, v2, v3")
        e("v_lshl_add_u32 v1, v2, 4, v1")
        e("v_xor_b32 v2, 64, v1")
        e("v_add_u32 v2, %d, v2" % (8 * 9216 - 1024))
        e("v_add_u32 v3, %d, v1" % (2 * (8 * 9216 - 1024)))
        e("v_add_u32 v4, %d, v2" % (2 * (8 * 9216 - 1024)))
        pipe.refill(); pipe.flush()
    vset = ["v_lshrrev_b32 v28, 3, v0", "s_lshl_b32 s96, s%d, 5" % sW, "v_add_u32 v5, s96, v28", "v_mul_u32_u24 v5, 1152, v5",
            "v_lshlrev_b32 v6, 1, v22", "v_and_b32 v7, 7, v0", "v_xor_b32 v6, v6, v7", "v_lshl_add_u32 v5, v6, 4, v5",
            "v_lshrrev_b32 v28, 2, v0", "v_add_u32 v25, s96, v28", "v_mul_u32_u24 v25, 1152, v25", "v_and_b32 v6, 3, v6", "v_lshl_add_u32 v25, v6, 4, v25"]
    vset += ["v_add_u32 v%d, %d, v5" % (5 + i, i * (8 * 1152 - 1024)) for i in range(1, 4)]
    vset += ["v_lshlrev_b32 v%d, 4, v0" % VST, "v_lshlrev_b32 v27, 9, v22", "v_add_u32 v28, s%d, v0" % sW, "v_cmp_eq_u32 vcc, 0, v28",
             "v_mov_b32 v24, 0x%x" % OOB, "v_mov_b32 v28, 0", "v_cndmask_b32 v24, v24, v28, vcc"]
    vset += ["v_mul_u32_u24 v28, 5462, v0", "v_lshrrev_b32 v28, 16, v28", "v_mul_u32_u24 v26, 12, v28", "v_sub_u32 v26, v0, v26",
             "s_mul_i32 s96, s%d, 12" % sW, "s_and_b32 s95, s%d, 7" % sR, "s_mul_i32 s95, s95, 48", "s_add_u32 s96, s96, s95",
             "v_add_u32 v26, s96, v26", "v_mul_u32_u24 v26, 1152, v26", "v_lshl_add_u32 v26, v28, 7, v26",
             "s_and_b32 s96, s%d, 1" % sW, "s_mul_i32 s96, s96, 36", "s_and_b32 s95, s%d, 7" % sR, "s_mul_i32 s95, s95, 72", "s_add_u32 s96, s96, s95",
             "v_add_u32 v29, s96, v0", "v_mul_u32_u24 v29, 9216, v29",
             "v_cmp_gt_u32 vcc, 36, v0", "v_mov_b32 v28, 0x%x" % OOB, "s_nop 0", "v_cndmask_b32 v26, v28, v26, vcc", "v_cndmask_b32 v29, v28, v29, vcc",
             "v_mul_u32_u24 v31, 13108, v0", "v_lshrrev_b32 v31, 16, v31", "v_mul_u32_u24 v30, 5, v31", "v_sub_u32 v30, v0, v30",
             "s_mul_i32 s96, s%d, 5" % sW, "v_add_u32 v30, s96, v30", "v_min_u32 v30, 17, v30", "s_and_b32 s95, s%d, 7" % sR, "s_mul_i32 s95, s95, 18",
             "v_add_u32 v30, s95, v30", "v_mul_u32_u24 v30, 1152, v30", "v_cmp_gt_u32 vcc, 15, v0", "v_lshl_add_u32 v30, v31, 7, v30", "s_nop 0",
             "v_cndmask_b32 v30, v28, v30, vcc"]
    sp = []
    NSP = opt.get("nsp", 0)
    if NSP:
        e("s_and_b32 s6, s%d, 7" % sR); e("s_lshl_b32 s6, s6, 1"); e("s_and_b32 s7, s%d, 1" % sW); e("s_add_u32 s6, s6, s7")
        e("s_mul_i32 s6, s6, %d" % (NSP * 9216)); e("s_add_u32 s6, s6, s%d" % sB1); e("s_add_u32 s6, s6, %d" % (opt.get("sp0", 64) * 9216))
        e("s_add_u32 s90, s%d, s6" % sT); e("s_addc_u32 s91, s%d, 0" % sT2)
        sp = ["s_load_dword s92, s[90:91], 0x%x" % (i * 9216 + h * 64) for i in range(NSP) for h in range(2)]
    prologue(g, pipe, early=early, afterbar=(lambda: [e(t) for t in touch1(0) + (touch1(1) if not opt.get('t1pos', 70) else [])]) if TOUCH else None, nfirst=opt.get('nfirst', 8),
             fill=sp + group_scc(late_setup() + vset + tr_bases(g, B1, 8)))
    def epi1(rho):
        acc = ACC[rho & 1]; ops = []; sts = ["s_add_u32 s%d, s%d, %d" % (sT2, sHX, rho * 4096)]
        for t in range(4):
            for tt in range(2):
                gt = acc + ((t * 2) * 2 + tt) * 4; up = acc + ((t * 2 + 1) * 2 + tt) * 4
                u = 2 * rho + t // 2
                h = H + (u * 2 + tt) * 4 + (t & 1) * 2
                for k in range(2):
                    for i in (2 * k, 2 * k + 1): ops.append("v_max_f32 v%d, 0, v%d" % (gt + i, gt + i))
                    for i in (2 * k, 2 * k + 1): ops.append("v_mul_f32 v%d, v%d, v%d" % (gt + i, gt + i, up + i))
                    ops.append("v_cvt_pk_bf16_f32 v%d, v%d, v%d" % (h + k, gt + 2 * k, gt + 2 * k + 1))
                if t & 1:
                    sts.append(("buffer_store_dwordx4 %s, v%d, s[%d:%d], s%d offen offset:%d sc1" % (hreg(0, u, tt), VST, SWS, SWS + 3, sT2, ((u & 1) * 2 + tt) * 1024), ("hst", rho)))
        return ops, sts
    def hloads(b, q):
        ops = []
        for u in (range(5) if b == 3 else Q(q)):
            if u % 2 == 0: ops.append("s_add_u32 s%d, s%d, %d" % (sT, sOX if b == 3 else sHX + b, u * 2048))
            for tt in range(2):
                ops.append(("buffer_load_dwordx4 %s, v%d, s[%d:%d], s%d offen offset:%d sc1" % (hreg(b, u, tt), VST, SWS, SWS + 3, sT, ((u & 1) * 2 + tt) * 1024), ("h", b, q)))
        return ops
    extra = {}; urgent = {}
    add = lambda k, l: extra.setdefault(k, []).extend(l)
    addu = lambda k, l: urgent.setdefault(k, []).extend(l)
    EP = opt.get("epiw", 75)
    for rho in range(5):
        spread(sum(epi1(rho), []) + [Mark("epi%d" % rho)], 144 * (rho + 1) + 3, 144 * (rho + 1) + EP, extra)
    P2 = start[S2]
    hb = ["v_bfe_u32 v144, v0, 2, 4", "v_lshlrev_b32 v144, 6, v144", "v_bfe_u32 v145, v0, 4, 1", "v_lshl_add_u32 v144, v145, 5, v144",
          "v_and_b32 v145, 3, v0", "v_lshl_add_u32 v144, v145, 3, v144", "v_xor_b32 v145, 32, v144"]
    hb += ["v_add_u32 v%d, 0x%x, v%d" % (BH + 2 * k + t, k << 16, BH + t) for k in (1, 2) for t in range(2)]
    hb += ["v_lshrrev_b32 v2, 5, v0", "v_bfe_u32 v3, v0, 3, 2", "v_lshl_add_u32 v2, v2, 4, v3", "v_mul_u32_u24 v4, 1152, v2",
           "v_bfe_u32 v2, v0, 4, 2", "v_lshlrev_b32 v2, 1, v2", "v_and_b32 v3, 7, v0", "v_xor_b32 v2, v2, v3", "v_lshl_add_u32 v4, v2, 4, v4",
           "v_add_u32 v1, 256, v4", "s_sub_u32 s96, s%d, s%d" % (sKO, sKB), "v_add_u32 v2, s96, v4",
           "s_sub_u32 s96, s%d, s%d" % (sKS, sKB), "s_and_b32 s95, s96, 64", "v_xor_b32 v3, s95, v4", "s_and_b32 s96, s96, 128", "v_add_u32 v3, s96, v3"]
    add(P2 + 3, [Dens(1)] + epi1(5)[0] + [Mark("epi5"), Dens(0)] + epi1(5)[1] + hb + [Mark("hb")])
    pauses = [(0, opt.get('p0', 0))]
    if TOUCH:
        T = [touch1(2), touch1(3), touch1(4), touch1(5), touch2(0), touch2(1), touch2(2), touch2(3)]
        for n, (k, ops) in enumerate(zip(opt.get("tpos", [70, 148, 292, 436, 510, 690, 760, 760]), T)):
            addu(k, ops); pauses.append((k, k + opt.get("pl", [40] * 8)[n]))
    if opt.get("t1pos", 70): addu(opt.get("t1pos", 70), touch1(1))
    if opt.get("cpf", 6144):
        e("s_lshr_b32 s101, s2, 3"); e("s_sub_u32 s101, s101, 8"); e("s_lshl_b32 s101, s101, 2"); e("s_add_u32 s101, s101, s%d" % sW)
        e("s_lshl_b32 s101, s101, 6"); e("s_add_u32 s101, s101, %d" % opt.get("cpf", 9216))
        for k in range(opt.get('cp0', 20), start[-1], opt.get('cpp', 125)): addu(k, [code_pf()])
    add(1, xc_copies() + [Mark("xc"), "v_add_u32 v22, %d, v25" % (16 * 1152 - 1024)])
    add(144 + 90, flag_lane_offsets(23, 28) + [Mark("flo")])
    addu(288 + 100, [lambda: flag_issue(g, 28, 23, None)])
    groups = list(range(0, SL, 2)) + [SL + k for k in opt.get('eg', EG)]
    for a, b in opt.get("bw", []): groups += [n for n in range(SL) if a <= start[n] < b]
    groups = sorted(set(groups))
    bar = lambda n: start[n] - pipe.D - 1
    hooks = {}
    def before(n, f):
        assert n in groups, n
        hooks.setdefault(n, []).append(f); stages[n].before = lambda n=n: [f() for f in hooks[n]]
    before(26, lambda: flag_check(g, 28, 23, None, 0))
    FLD = opt.get('fld', 50); CMB = opt.get('cmb', 0)
    HS = opt.get("hs", [[30, 36], [46, 52], [S2 + 8, S2 + 14]])
    for q, (ns, nc) in enumerate(HS):
        before(ns, lambda q=q: g.wait_vm(("hst", 2 * q + 1)))
        stages[ns].after = lambda q=q: signal(g, 28, 24, 63, 16 * q)
        addu(bar(nc) - FLD, [lambda: flag_issue(g, 28, 23, sCNT)])
        before(nc, lambda q=q: flag_check(g, 28, 23, sCNT, (0x7 << (4 * q)) | (0x1000 if q == 2 and CMB else 0)))
    HW = opt.get("hw", [100, 100, 20])
    HP = opt.get("hp", [0, 0, 0])
    for q in range(3):
        spread(hloads(1, q), bar(HS[q][1]) + 1, bar(HS[q][1]) + 1 + HW[q], urgent); pauses.append((bar(HS[q][1]) + 1, bar(HS[q][1]) + 1 + HP[q]))
    assert bar(HS[1][1]) + 1 + HW[1] <= P2 + opt.get("h2pos", 100)
    spread(hloads(2, 0) + hloads(2, 1), P2 + opt.get("h2pos", 100), P2 + opt.get('h2pos', 100) + 60, urgent)
    def to_g2():
        for k in range(12): e("v_sub_u32 v%d, v%d, v27" % (B1 + k, B1 + k))
    stages[S2].after = to_g2
    for bq in BQ[3:]: before(first[bq], lambda bq=bq: g.wait_vm(("h",) + bq))
    spread(hloads(2, 2), bar(SL) - opt.get('h22', 10), bar(SL) - opt.get('h22', 10) + 10, urgent)
    sFL, sFW, sPL, sCOL, sRS, sMSK, sP1, sCK = 64, 65, 66, 67, 68, 69, 72, 75
    a2 = Asm(); srd(a2, SW1, 61, 62, PSZ)
    fin = [l.strip() for l in a2.lines]
    fin += ["s_mul_i32 s95, s%d, 3" % sR, "s_add_u32 s95, s95, s%d" % sI, "s_lshl_b32 s%d, s95, 7" % sFL, "s_add_u32 s%d, s%d, 0x%x" % (sFL, sFL, WS_FLG + 72 * 128),
           "s_lshl_b32 s%d, s%d, 2" % (sFW, sJ), "s_add_u32 s%d, s%d, s%d" % (sFW, sFW, sFL),
           "s_lshr_b32 s95, s%d, 1" % sJ, "s_lshl_b32 s96, s95, 11", "s_add_u32 s%d, s%d, s96" % (sPL, sB2), "s_add_u32 s%d, s%d, 8192" % (sPL, sPL),
           "s_and_b32 s96, s%d, 1" % sJ, "s_lshl_b32 s76, s96, 7", "s_add_u32 s%d, s%d, s76" % (sPL, sPL),
           "s_lshl_b32 s95, s95, 12", "s_lshl_b32 s96, s96, 10", "s_add_u32 s95, s95, s96", "s_add_u32 s76, s95, s%d" % sB2]
    for k in range(3):
        fin += ["s_add_u32 s96, s%d, %d" % (sJ, k + 1), "s_and_b32 s96, s96, 3", "s_mul_i32 s96, s96, %d" % PSZ, "s_add_u32 s%d, s76, s96" % (sP1 + k)]
    fin += ["v_and_b32 v150, 0x37, v0", "v_lshlrev_b32 v150, 4, v150", "v_bfe_u32 v155, v0, 3, 1", "v_lshl_add_u32 v150, v155, 10, v150",
            "s_mul_i32 s%d, s%d, 384" % (sCOL, sI), "s_add_u32 s%d, s%d, s4" % (sCOL, sCOL), "s_lshl_b32 s96, s%d, 6" % sJ, "s_add_u32 s%d, s%d, s96" % (sCK, sCOL),
            "s_add_u32 s77, s%d, %d" % (sCK, 16 * 1152),
            "v_bfe_u32 v156, v0, 4, 1", "v_lshlrev_b32 v156, 5, v156", "v_lshrrev_b32 v157, 5, v0", "v_lshl_add_u32 v156, v157, 4, v156",
            "s_lshl_b32 s95, s%d, 3" % sJ, "v_and_b32 v151, 7, v0", "v_add_u32 v151, s95, v151", "v_lshlrev_b32 v153, 2, v151",
            "v_mul_u32_u24 v151, 1152, v151", "v_lshl_add_u32 v151, v155, 6, v151", "v_add_u32 v151, v151, v156",
            "v_and_b32 v152, 15, v0", "v_lshlrev_b32 v154, 2, v152", "v_mul_u32_u24 v152, 1152, v152", "v_add_u32 v152, v152, v156",
            "s_lshl_b32 s96, s%d, 2" % sR, "s_add_u32 s96, s96, s%d" % sJ, "s_lshl_b32 s96, s96, 2", "s_add_u32 s96, s96, s%d" % sW,
            "s_lshl_b32 s%d, s96, 7" % sRS, "s_add_u32 s%d, s%d, 0x%x" % (sRS, sRS, WS_RS2),
            "s_mov_b32 s70, 0x3f80", "s_mov_b32 s71, 0x3f800000"]
    add(P2 + 150, fin + [Mark("fin")])
    XL = [(32, 152, sCK, 0), (36, 152, 77, 0), (40, 151, sCOL, 256)]
    RL = [(155, 154, 0), (156, 154, 64), (157, 153, 0)]
    nO = SO - 2 - opt.get('oearly', 0)
    if not CMB:
        addu(bar(nO) - opt.get('old', 30), [lambda: flag_issue(g, 28, 23, sCNT)])
        before(nO, lambda: flag_check(g, 28, 23, sCNT, 0x1000))
    spread(hloads(3, 0) + ["buffer_load_dword v%d, v%d, s[%d:%d], s%d offen offset:%d sc1" % (d, v, SWS, SWS + 3, sRS, im) for d, v, im in RL], bar(nO) + opt.get('o0', 1), bar(nO) + opt.get('o1', 5), urgent)
    before(SO, lambda: g.wait_vm(("h", 3, 0)))
    add(start[ST2] + 3, store_ops(g, A2, PK, 2, VST))
    add(start[STO] + 3, store_ops(g, AO, PK, 0, VST, sSO))
    add(start[SK] + 3, [Dens(1)] + store_ops(g, AS, PK, 0, VST, sSS, 2, "pst") + [Mark("pst"), Dens(0)] + ["v_mov_b32 v%d, 0" % (96 + i) for i in range(8)] +
        [("buffer_load_dwordx4 %s, v%d, s[%d:%d], s%d offen offset:%d" % (vr(d, 4), v, SX, SX + 3, so, im), "fx") for d, v, so, im in XL])
    INS = opt.get("insig", 1); SG = SK + opt.get('sg', 3); FI = opt.get('fi', 0)
    if FI: addu(start[-1] - FI, [lambda: flag_issue(g, 28, 23, sFL)])
    if INS:
        before(SG, lambda: g.wait_vm("pst")); stages[SG].after = lambda: signal(g, 28, 24, sFW, 0)
    if opt.get("ts") or opt.get("amp") is not None:
        for k in ([720] + list(range(720 + 48, start[-1], 32)) if opt.get('fine2') else (144, 288, 432, 576, 720, P2, P2 + 144, P2 + 288, start[SK])): addu(k, [g.stamp])
    pipe.run(0, len(stages), extra, pauses=pauses, groups=groups, urgent=urgent, vsp=opt.get('vsp', 0))
    w = pipe.when
    if opt.get("verbose"): print(w, "P2", P2, "SK", start[SK], "end", start[-1], "barK", bar(SK + 4))
    assert w["xc"] < 142 and w["flo"] < 288 + 100 and all(w["epi%d" % r] < 144 * (r + 2) - 1 for r in range(5)), w
    assert w["epi5"] < start[first[(0, 2)]] + 7 and w["hb"] < bar(SH0) and w["fin"] < bar(nO) - 1 and w["pst"] < bar(SG), w
    g.stamp()
    if not INS:
        e("s_waitcnt vmcnt(0)"); e("s_barrier"); signal(g, 28, 24, sFW, 0)
    flag_check(g, 28, 23, sFL, 0xf, issued=bool(FI), sleep=1)
    e("s_barrier")
    g.stamp()
    UA = [(AK, AK + 8), (AK + 4, AK + 12), (96, 100)]
    lds = []
    regs = list(range(48, 96, 4))
    for p in range(4):
        if p < 3:
            for tt in range(2):
                d = regs.pop(0); lds.append((d, tt))
                e("buffer_load_dwordx4 %s, v%d, s[%d:%d], s%d offen offset:%d sc1" % (vr(d, 4), VST, SWS, SWS + 3, sP1 + p, tt * 2048), ("pl", len(lds)))
        if p: e("s_add_u32 s%d, s%d, %d" % (sPL, sPL, PSZ))
        d = regs.pop(0); lds.append((d, 2))
        e("buffer_load_dwordx4 %s, v150, s[%d:%d], s%d offen sc1" % (vr(d, 4), SWS, SWS + 3, sPL), ("pl", len(lds)))
    g.wait_vm("fx")
    for k in range(12):
        e("v_lshlrev_b32 v%d, 16, v%d" % (160 + 2 * k, 32 + k))
        e("v_and_b32 v%d, 0xffff0000, v%d" % (161 + 2 * k, 32 + k))
    for n, (d, u) in enumerate(lds):
        if n % 3 == 0: g.wait_vm(("pl", min(n + 3, len(lds))))
        for i in range(4):
            a0 = UA[u][i // 2] + 2 * (i % 2)
            e("v_dot2c_f32_bf16 v%d, s70, v%d" % (a0, d + i))
            e("v_dot2c_f32_bf16 v%d, s71, v%d" % (a0 + 1, d + i))
    e("s_nop 2")
    for u in range(3):
        for i in range(4): e("v_permlane16_swap_b32 v%d, v%d" % (UA[u][0] + i, UA[u][1] + i))
        for i in range(4):
            a0 = UA[u][i // 2] + 2 * (i % 2); x = 160 + 8 * u + 2 * i
            e("v_fmac_f32 v%d, v%d, v%d" % (x, a0, 155 + u))
            e("v_fmac_f32 v%d, v%d, v%d" % (x + 1, a0 + 1, 155 + u))
            e("v_cvt_pk_bf16_f32 v%d, v%d, v%d" % (184 + 4 * u + i, x, x + 1))
        e("buffer_store_dwordx4 %s, v%d, s[%d:%d], s%d offen offset:%d %s" % (vr(184 + 4 * u, 4), XL[u][1], SW1, SW1 + 3, XL[u][2], XL[u][3], opt.get("oflags", "sc1")))
    if opt.get("ts") or opt.get("amp") is not None:
        e("s_waitcnt vmcnt(0)"); g.stamp()

def k1(g):
    e, opt = g.e, g.opt
    kernel_head(g, K1)
    e("s_load_dwordx2 s[%d:%d], s[0:1], 0" % (SX, SX + 1))
    e("s_lshr_b32 s3, s2, 8")
    e("s_cbranch_scc1 L_k1_end")
    sh = opt.get("vsh", 2)
    e("s_getpc_b64 s[84:85]")
    e("s_bitcmp1_b32 s2, 3")
    e("s_cselect_b32 s3, L_att-%s, 0" % K1)
    e("s_lshr_b32 s4, s2, 4")
    e("s_lshl_b32 s4, s4, %d" % (8 + sh))
    e("s_add_u32 s3, s3, s4")
    e("v_lshrrev_b32 v1, 6, v0")
    e("v_lshl_add_u32 v2, v0, %d, s3" % sh)
    e("global_load_dword v255, v2, s[84:85]")
    e("v_readfirstlane_b32 s%d, v1" % sW)
    e("v_and_b32 v0, 63, v0")
    e("v_lshrrev_b32 v104, 3, v0")
    e("v_lshrrev_b32 v22, 4, v0")
    e("v_mul_u32_u24 v104, 1152, v104")
    e("v_and_b32 v105, 7, v0")
    e("v_xor_b32 v105, v105, v22")
    e("v_lshl_add_u32 v104, v105, 4, v104")
    e("s_and_b32 s6, s2, 64")
    e("v_xor_b32 v104, s6, v104")
    e("s_bfe_u32 s%d, s2, 0x30003" % sT)
    e("s_and_b32 s%d, s2, 1" % sR)
    e("s_lshl3_add_u32 s%d, s%d, s%d" % (sR, sR, sT))
    e("s_lshr_b32 s60, s2, 6")
    e("s_lshl2_add_u32 s6, s%d, s60" % sW)
    e("s_lshl4_add_u32 s7, s%d, s6" % sR)
    e("s_mulk_i32 s6, 9216")
    e("s_mulk_i32 s7, 9216")
    e("s_mov_b32 m0, s6")
    e("s_mov_b32 s5, 9")
    e("s_mov_b32 s%d, 0x%x" % (SX + 2, PSZ))
    e("s_mov_b32 s%d, 0x20000" % (SX + 3))
    e("s_waitcnt lgkmcnt(0)")
    rest = ["s_load_dwordx8 s[64:71], s[0:1], 0", "s_load_dwordx4 s[72:75], s[0:1], 40", "s_load_dwordx4 s[76:79], s[0:1], 56", "s_load_dwordx4 s[80:83], s[0:1], 72"]
    if opt.get("ts") or opt.get("amp") is not None:
        for t in rest: e(t)
        rest = []
        e("s_waitcnt lgkmcnt(0)")
        e("s_lshl_b32 s94, s2, 2"); e("s_add_u32 s94, s94, s%d" % sW); e("s_lshl_b32 s94, s94, 8"); e("s_add_u32 s94, s94, 0x%x" % WS_TS)
        srd(g, SWS, 82, 83, WS_BYTES); srd(g, SDBG, 80, 81, 256); g.stamp()
    if opt.get("xloop", 0):
        g.label("L_x0")
        x_dma(g, 0, 0)
        g.vm += [("x", j) for j in range(1, 9)]
        e("s_addk_i32 m0, 1024"); e("s_addk_i32 s7, 128"); e("s_addk_i32 s5, -1"); e("s_cmp_lg_u32 s5, 0"); e("s_cbranch_scc1 L_x0")
    else:
        for j in range(9): x_dma(g, 0, j)
    for t in rest: e(t)
    e("v_xor_b32 v105, 64, v104")
    e("v_and_b32 v23, 15, v0")
    e("s_lshl2_add_u32 s4, s%d, s%d" % (sR, sW))
    e("s_mul_i32 s4, s4, 36864")
    e("s_mul_i32 s5, s%d, 36864" % sW)
    e("s_bfe_u32 s%d, s2, 0x20001" % sS)
    e("s_lshr_b32 s3, s2, 6")
    for o in range(1, opt.get("xcommon", 1)):
        for j in range(9): x_dma(g, o, j)
    e("s_waitcnt lgkmcnt(0)")
    wb = opt.get("wsbase", 0)
    if wb:
        e("s_add_u32 s82, s82, 0x%x" % wb); e("s_addc_u32 s83, s83, 0")
    srd(g, SWS, 82, 83, WS_BYTES - wb)
    srd(g, SDBG, 80, 81, 256)
    e("s_or_b32 s%d, s2, s%d" % (sT, sW))
    e("s_cbranch_scc1 L_nonce_done")
    e("s_memrealtime s[98:99]")
    e("s_waitcnt lgkmcnt(0)")
    e("v_mov_b32 v2, s98")
    e("v_or_b32 v2, 1, v2")
    Asm.e(g, "buffer_store_dword v2, off, s[%d:%d], 0 sc1" % (SDBG, SDBG + 3))
    g.label("L_nonce_done")
    if opt.get("perturb"):
        e("s_mul_i32 s98, s2, %d" % opt["perturb"]); e("s_add_u32 s98, s98, s%d" % sW); e("s_bfe_u32 s98, s98, 0x30002")
        e("s_mul_i32 s98, s98, s98")
        g.label("L_pert"); e("s_cmp_eq_u32 s98, 0"); e("s_cbranch_scc1 L_pertd"); e("s_sleep 20"); e("s_sub_u32 s98, s98, 1"); e("s_branch L_pert"); g.label("L_pertd")
    e("s_cmp_eq_u32 s3, 0")
    e("s_cbranch_scc1 %s" % ("L_k1_end" if opt.get("noatt") else "L_att"))
    sv = (list(g.vm), list(g.lg), g.nts)
    g.sv = 31
    ffn_role(g)
    g.sv = 30
    def amp(role):
        if opt.get("amp") is None or opt.get("amprole", "ffn") != role: return
        L = g.newlabel("L_amp")
        e("s_sub_u32 s101, s94, s100")
        e("s_add_u32 s101, s101, %d" % opt.get("ampadd", 0))
        if role == "ffn":
            e("s_memrealtime s[92:93]"); e("s_waitcnt lgkmcnt(0)"); e("s_mov_b32 s100, s92")
        g.label(L)
        e("s_sleep 1"); e("s_memrealtime s[92:93]"); e("s_waitcnt lgkmcnt(0)")
        e("s_sub_u32 s92, s92, s100"); e("s_cmp_lt_u32 s92, s101"); e("s_cbranch_scc1 %s" % L)
    amp("ffn")
    e("s_endpgm")
    g.vm, g.lg, g.nts = sv
    g.waited = set()
    g.raw(".p2align 6")
    g.label("L_att")
    import att
    att.att_role(g)
    amp("att")
    g.label("L_k1_end")
    e("s_endpgm")
    g.raw(".fill %d, 4, 0xbf810000" % (8192 if opt.get("vsh", 2) == 4 else 4096))

VOP3ONLY = ("v_mfma", "v_pk_", "v_fma_f32", "v_cvt_pk_bf16", "v_accvgpr_read", "v_accvgpr_write", "v_max3", "v_min3", "v_lshl_add", "v_add_lshl", "v_mad_u32",
            "v_bfe", "v_add3", "v_mul_lo", "v_mul_hi", "v_lshl_or", "v_and_or", "v_readlane", "v_perm_b32")
NOWIDE = ("v_readfirstlane", "v_permlane", "v_dot2c", "v_nop")
def has_lit(s):
    for t in re.split(r"[ ,]+", s)[1:]:
        if re.match(r"^-?(0x[0-9a-f]+|\d+)$", t):
            v = int(t, 0)
            if not (-16 <= v <= 64) and v not in (0x3f800000, 0x3f000000, 0x40000000, 0x40800000, 0xbf800000, 0xbf000000, 0xc0000000, 0xc0800000): return True
        if t.startswith("L_"): return not s.startswith(("s_cbranch", "s_branch"))
    return False
def isize(s):
    op = s.split()[0]
    if op.startswith(("ds_", "buffer_", "global_", "s_load", "s_mem")): return 8, False
    if op.startswith("s_"):
        if op.startswith(("s_waitcnt", "s_addk", "s_mulk", "s_nop", "s_barrier", "s_sleep", "s_endpgm", "s_cbranch", "s_branch", "s_setprio", "s_getreg")): return 4, False
        return (8 if has_lit(s) else 4), False
    if op.startswith(VOP3ONLY): return 8, False
    if has_lit(s): return 8, False
    ops = [x.strip() for x in re.split(r",(?![^\[]*\])", s.split(None, 1)[1])]
    if op.startswith("v_cmp") and ops[0] != "vcc": return 8, False
    if op.startswith("v_cndmask") and ops[-1] != "vcc": return 8, False
    if len(ops) >= 3 and not ops[2].startswith("v"): return 8, False
    return 4, not op.startswith(NOWIDE)
def align_pass(lines, minrun=4):
    ins = [l.strip() for l in lines]
    out = []; par = 0
    isins = lambda l: l and not l.endswith(":") and not l.startswith((".", ";"))
    n = len(ins)
    def nxt(i):
        i += 1
        while i < n and not isins(ins[i]):
            if ins[i].startswith(".p2align"): return None
            i += 1
        return i if i < n else None
    for i, l in enumerate(ins):
        if not isins(l):
            if l.startswith(".p2align"): par = 0
            out.append(l); continue
        sz, flex = isize(l)
        if sz == 8: out.append(l); continue
        if par == 1: out.append(l); par = 0; continue
        j = nxt(i)
        if j is None or isize(ins[j])[0] == 4: out.append(l); par = 1; continue
        if flex:
            op, rest = l.split(None, 1); out.append(op + "_e64 " + rest); continue
        run = 0
        while j is not None and isize(ins[j])[0] == 8 and run < minrun: run += 1; j = nxt(j)
        out.append(l)
        if run >= minrun and not l.startswith(("s_branch", "s_endpgm")): out.append("s_nop 0")
        else: par = 1
    return out

LABELS = {}
def resolve(lines):
    off = 0; LABELS.clear()
    for l in lines:
        l = l.strip()
        if l.endswith(":"): LABELS[l[:-1]] = off
        elif l.startswith(".p2align"):
            a = 1 << int(l.split()[1]); off = (off + a - 1) // a * a
        elif l and not l.startswith((".", ";")):
            off += 8 if l.split()[0].endswith("_e64") else isize(l)[0]
    end = LABELS["L_k1_end"]
    def f(m):
        span = 2048 if LABELS[m.group(1)] >= LABELS["L_att"] else 6144
        return "0x%x" % (min(LABELS[m.group(1)] + int(m.group(2)), end - span) & ~3)
    return [re.sub(r"@(\w+)\+(\d+)", f, l) if l.strip().startswith("s_load") else l for l in lines]

DOC = """; One launch, 256 workgroups of 4 waves (one per CU), generated by a script (straight-line software pipeline).
;  FFN : gate/up GEMM (weights by LDS-DMA ring + transposing LDS reads, 16x16x32 MFMA), h = relu(g)*u, h exchanged
;        partial sums exchanged between the 4 quads, out = x + sum / std^2.
"""
MACROS = """.macro MA d,a,b
v_mfma_f32_16x16x32_bf16 v[\\d:\\d+3], a[\\a:\\a+3], a[\\b:\\b+3], v[\\d:\\d+3]
.endm
.macro MV d,a,b
v_mfma_f32_16x16x32_bf16 v[\\d:\\d+3], a[\\a:\\a+3], v[\\b:\\b+3], v[\\d:\\d+3]
.endm
.macro RT d,b,o
ds_read_b64_tr_b16 a[\\d:\\d+1], v\\b offset:\\o
.endm
.macro WL n
s_waitcnt lgkmcnt(\\n)
.endm
.macro CV d,a,b
v_cvt_pk_bf16_f32 v\\d, v\\a, v\\b
.endm
"""
def compress(line):
    s = line.strip()
    m = re.match(r"v_mfma_f32_16x16x32_bf16 v\[(\d+):\d+\], a\[(\d+):\d+\], ([av])\[(\d+):\d+\], v\[(\d+):\d+\]$", s)
    if m and m.group(1) == m.group(5): return "M%s %s,%s,%s" % (m.group(3).upper(), m.group(1), m.group(2), m.group(4))
    m = re.match(r"ds_read_b64_tr_b16 a\[(\d+):\d+\], v(\d+) offset:(\d+)$", s)
    if m: return "RT %s,%s,%s" % m.groups()
    m = re.match(r"s_waitcnt lgkmcnt\((\d+)\)$", s)
    if m: return "WL %s" % m.group(1)
    m = re.match(r"v_cvt_pk_bf16_f32 v(\d+), v(\d+), v(\d+)$", s)
    if m: return "CV %s,%s,%s" % m.groups()
    return s

def gen(**opt):
    g = G(opt)
    k1(g)
    FUSE = 1
    errs = hazard.check(g.lines)
    if errs:
        print("\n".join(errs[:40])); raise SystemExit("hazards: %d" % len(errs))
    head = open("cdna_kernels/%s.s.ref" % BASE).read().split("; Override launch")[0] if not opt.get("nohead") else ""
    out = head
    if FUSE: out += "; @launch grid=(256,1,1) block=(256,1,1) lds=163840\n"
    else: out += "; @launch kernel=%s grid=(256,1,1) block=(256,1,1) lds=163840\n" % K1
    if not FUSE: out += "; @launch kernel=%s grid=(256,1,1) block=(576,1,1) lds=0\n" % K2
    out += '.amdgcn_target "amdgcn-amd-amdhsa--gfx950"\n' + DOC + '.text\n' + MACROS
    lines = align_pass(g.lines, opt.get("minrun", 4)) if opt.get("align", 1) else g.lines
    lines = resolve(lines)
    out += "\n".join(compress(l) for l in lines) + "\n"
    out += '.section .rodata,"a"\n' + kernel_desc(K1, 512, 256) + ("" if FUSE else kernel_desc(K2, 96, 96, 40))
    return out

if __name__ == "__main__":
    kw = json.loads(sys.argv[2]) if len(sys.argv) > 2 else {}
    open(sys.argv[1], "w").write(gen(**kw))
```
